```python
import torch

def _softmax(x, axis=-1):
    return torch.softmax(x, dim=axis)
def _gelu(x):
    return torch.nn.functional.gelu(x, approximate="tanh")
def _silu(x):
    return torch.nn.functional.silu(x)
def _sigmoid(x):
    return torch.sigmoid(x)
def _layernorm(x, axis=-1, eps=1e-5):
    m = x.mean(dim=axis, keepdim=True)
    v = x.var(dim=axis, keepdim=True, unbiased=False)
    return (x - m) / torch.sqrt(v + eps)
def _scatter_add(tgt, idx, src, axis=0):
    return tgt.clone().index_add_(axis, idx, src)
def _segment_sum(src, seg, n):
    out = torch.zeros((n,) + src.shape[1:], dtype=src.dtype)
    return out.index_add_(0, seg, src)
def _pad(x, pw):
    flat = tuple(v for pair in reversed(pw) for v in pair)
    return torch.nn.functional.pad(x, flat)

kernel_name = 'standalone__mha_block_cached__near_ridge'

def setup_inputs():

    _w = (lambda a: (lambda t: t.to(torch.bfloat16) if t.is_floating_point() else t)(torch.as_tensor(a)))
    B, Sq, D = 16, 192, 640
    H, Sk, Dh = 32, 512, 192
    return {
        "x": _w((lambda *s: torch.randn(*s, dtype=torch.bfloat16) * 0.8)(B, Sq, D)),
        "k_cache": _w((lambda *s: torch.randn(*s, dtype=torch.bfloat16) * 0.8)(B, H, Sk, Dh)),
        "v_cache": _w((lambda *s: torch.randn(*s, dtype=torch.bfloat16) * 0.05)(B, H, Sk, Dh)),
        "wq": _w((lambda *s: torch.randn(*s, dtype=torch.bfloat16) * 0.8)(D, H * Dh) * (D ** -0.5)),
        "wo": _w((lambda *s: torch.randn(*s, dtype=torch.bfloat16) * 0.05)(H * Dh, D) * ((H * Dh) ** -0.5)),
    }

def reference(x, k_cache, v_cache, wq, wo):
    B, Sq, D = x.shape
    H, Dh = 32, 192
    q = (lambda x, *d: x.permute(*d))((x @ wq).reshape(B, Sq, H, Dh), 0, 2, 1, 3)
    scores = torch.einsum("bhqd,bhkd->bhqk", q, k_cache) * (Dh ** -0.5)
    p = _softmax(scores, axis=-1)
    o = torch.einsum("bhqk,bhkd->bhqd", p, v_cache)
    return (lambda x, *d: x.permute(*d))(o, 0, 2, 1, 3).reshape(B, Sq, H * Dh) @ wo
```

```python
import re


def V(i, n=1):
    return ("v", i, n)


def A(i, n=1):
    return ("a", i, n)


def S(i, n=1):
    return ("s", i, n)


def rtxt(r):
    if isinstance(r, str):
        return r
    if isinstance(r, (int,)):
        return str(r)
    k, i, n = r
    return f"{k}{i}" if n == 1 else f"{k}[{i}:{i + n - 1}]"


def regs(r):
    if isinstance(r, tuple):
        k, i, n = r
        return {(k, i + j) for j in range(n)}
    return set()


class I:
    __slots__ = ("txt", "cls", "defs", "uses", "cdefs", "tag", "info", "slots")

    def __init__(self, txt, cls, defs=(), uses=(), tag=None, info=None, cdefs=()):
        self.txt = txt
        self.cls = cls
        self.defs = set()
        for d in defs:
            self.defs |= regs(d) if isinstance(d, tuple) and len(d) == 3 else {d}
        self.uses = set()
        for u in uses:
            self.uses |= regs(u) if isinstance(u, tuple) and len(u) == 3 else ({u} if isinstance(u, tuple) else set())
        self.cdefs = set()
        for u in cdefs:
            self.cdefs |= regs(u)
        self.tag = tag
        self.info = info
        self.slots = 2 if cls in ("trans", "vmem", "dma", "store") else 1

    def __repr__(self):
        return self.txt


def mfma(d, a, b, c):
    ctxt = rtxt(c) if isinstance(c, tuple) else str(c)
    i = I(f"v_mfma_f32_16x16x32_bf16 {rtxt(d)}, {rtxt(a)}, {rtxt(b)}, {ctxt}", "mfma", [d], [a, b],
          cdefs=[c] if isinstance(c, tuple) else [])
    return i


def valu(op, d, *src, cls="valu", extra=""):
    t = f"{op} {rtxt(d)}, " + ", ".join(rtxt(s) for s in src) + extra
    return I(t, cls, [d] if isinstance(d, tuple) else [], [s for s in src if isinstance(s, tuple)])


def vexp(d, s):
    return valu("v_exp_f32", d, s, cls="trans")


def vrcp(d, s):
    return valu("v_rcp_f32", d, s, cls="trans")


def perm(op, x, y):
    return I(f"{op} {rtxt(x)}, {rtxt(y)}", "perm", [x, y], [x, y])


def salu(op, d, *src):
    t = f"{op} {rtxt(d)}" + ("".join(", " + rtxt(s) for s in src))
    defs = [d] if isinstance(d, tuple) else ([("m0", 0, 1)] if d == "m0" else [])
    return I(t, "salu", defs, [s for s in src if isinstance(s, tuple)])


def scmp(op, a, b):
    return I(f"{op} {rtxt(a)}, {rtxt(b)}", "salu", [], [s for s in (a, b) if isinstance(s, tuple)])


def raw(txt, cls="salu", defs=(), uses=()):
    return I(txt, cls, defs, uses)


def ds_read(op, d, addr, off):
    assert 0 <= off < 65536, off
    return I(f"{op} {rtxt(d)}, {rtxt(addr)} offset:{off}", "ds", [d], [addr])


def dma(voff, srd, soff, imm, nt=False, tag=None):
    t = f"buffer_load_dwordx4 {rtxt(voff)}, {rtxt(srd)}, {rtxt(soff)} offen offset:{imm}" + (" nt" if nt else "") + " lds"
    return I(t, "dma", [], [voff, srd, soff, ("m0", 0, 1)], tag=tag)


def vload(d, voff, srd, soff, imm, flags="", tag=None):
    t = f"buffer_load_dwordx4 {rtxt(d)}, {rtxt(voff)}, {rtxt(srd)}, {rtxt(soff)} offen offset:{imm}" + flags
    return I(t, "vmem", [d], [voff, srd, soff], tag=tag)


def vstore(data, voff, srd, soff, imm, flags="", tag=None, width=4):
    op = {4: "buffer_store_dwordx4", 2: "buffer_store_dwordx2", 1: "buffer_store_dword"}[width]
    t = f"{op} {rtxt(data)}, {rtxt(voff)}, {rtxt(srd)}, {rtxt(soff)} offen offset:{imm}" + flags
    return I(t, "store", [], [data, voff, srd, soff], tag=tag)


def wait(vm=None, lgkm=None):
    p = []
    if vm is not None:
        assert 0 <= vm <= 63, vm
        p.append(f"vmcnt({vm})")
    if lgkm is not None:
        assert 0 <= lgkm <= 15, lgkm
        p.append(f"lgkmcnt({lgkm})")
    return I("s_waitcnt " + " ".join(p), "wait", info=(vm, lgkm))


class WaitTag(I):
    def __init__(self, tags, lgkm=None):
        super().__init__("s_waitcnt ???", "wait", info=(None, lgkm))
        self.tag = ("waittag", tuple(tags))


def barrier():
    return I("s_barrier", "barrier")


def nop(n=0):
    return I(f"s_nop {n}", "nop", info=n)


def label(name):
    return I(f"{name}:", "label", info=name)


def branch(op, target):
    return I(f"{op} {target}", "branch", info=target)


class Gap:
    def __init__(self, m):
        self.m = m
        self.sc = []
        self.ds = []
        self.vm = []
        self.va = []
        self.post = []

    def used(self):
        n = max(0, len(self.sc) - 1)
        n += len(self.ds) + 2 * len(self.vm) + sum(x.slots for x in self.va) + len(self.post)
        return n

    def free(self):
        return 2 - self.used()

    def flat(self):
        out = []
        if self.m is not None:
            out.append(self.m)
        out += self.sc + self.ds + self.vm + self.va + self.post
        return out


class Op:
    def __init__(self, ins, deps=(), earliest=0, prio=0):
        self.ins = ins
        self.deps = list(deps)
        self.earliest = earliest
        self.gap = None
        self.prio = prio


def list_schedule(gaps, ops, g0, g1, overflow_ok=True):
    pending = list(ops)
    for g in range(g0, g1):
        gap = gaps[g]
        progress = True
        while progress and gap.free() > 0 and pending:
            progress = False
            for op in pending:
                if op.earliest > g:
                    continue
                if op.ins.slots > gap.free():
                    continue
                ok = True
                for d, dist in op.deps:
                    if d.gap is None or d.gap + dist > g:
                        ok = False
                        break
                if not ok:
                    continue
                op.gap = g
                gap.va.append(op.ins)
                pending.remove(op)
                progress = True
                break
    return pending


def resolve_and_check(seq, name="", vm_hist=None, check_loads=True):
    res = {}
    errs = []
    vm_fifo = list(vm_hist or [])
    lg_fifo = []
    pend_v = {}
    last_def = {}
    last_cread = {}
    state = 0
    max_out = 0
    for ins in seq:
        c = ins.cls
        if c == "label":
            continue
        if c == "wait":
            vm, lg = ins.info
            if isinstance(ins.tag, tuple) and ins.tag[0] == "waittag":
                tags = ins.tag[1]
                last = -1
                for k, (t, _) in enumerate(vm_fifo):
                    if t in tags:
                        last = k
                vm = len(vm_fifo) - 1 - last if last >= 0 else None
                if vm is not None and vm > 63:
                    vm = 63
                key = id(ins)
                res.setdefault(key, []).append(vm)
            if vm is not None:
                done = vm_fifo[: max(0, len(vm_fifo) - vm)]
                vm_fifo = vm_fifo[max(0, len(vm_fifo) - vm):]
                for _, d in done:
                    for r in d:
                        if pend_v.get(r) == "vm":
                            del pend_v[r]
            if lg is not None:
                done = lg_fifo[: max(0, len(lg_fifo) - lg)]
                lg_fifo = lg_fifo[max(0, len(lg_fifo) - lg):]
                for d in done:
                    for r in d:
                        if pend_v.get(r) == "lg":
                            del pend_v[r]
            state += 1
            continue
        if c == "nop":
            state += ins.info + 1
            continue
        if check_loads:
            for r in ins.uses | ins.cdefs:
                if r in pend_v:
                    errs.append(f"{name}: use of pending load reg {r} ({pend_v[r]}) in: {ins.txt}")
            for r in ins.defs:
                if r in pend_v:
                    errs.append(f"{name}: overwrite of pending load reg {r} in: {ins.txt}")

        def need(r, n, what):
            if r in last_def:
                st, cl = last_def[r]
                if cl in what and state - st - 1 < n:
                    errs.append(f"{name}: hazard {cl}->{c} reg {r} dist {state - st - 1} < {n}: {ins.txt}")

        if c == "mfma":
            for r in ins.uses:
                need(r, 8, ("mfma",))
                need(r, 2, ("valu", "trans", "perm"))
            for r in ins.cdefs:
                need(r, 2, ("valu", "trans", "perm"))
                if r not in ins.defs:
                    need(r, 8, ("mfma",))
            for r in ins.defs:
                if r not in ins.cdefs:
                    need(r, 8, ("mfma",))
        elif c in ("valu", "trans", "perm"):
            for r in ins.uses | ins.defs:
                need(r, 8, ("mfma",))
            for r in ins.uses:
                need(r, 1, ("trans",))
                if c == "perm":
                    need(r, 2, ("valu", "trans", "perm"))
            for r in ins.defs:
                if r in last_cread and state - last_cread[r] - 1 < 3:
                    errs.append(f"{name}: WAR on MFMA SrcC reg {r}: {ins.txt}")
                if r in last_def and last_def[r][1] == "storedata" and state - last_def[r][0] - 1 < 2:
                    errs.append(f"{name}: store data overwrite {r}: {ins.txt}")
        elif c in ("ds", "vmem", "dma", "store"):
            for r in ins.uses | ins.defs:
                need(r, 8, ("mfma",))
            for r in ins.uses:
                if r[0] == "s":
                    need(r, 5, ("valu_sgpr",))
                if r[0] == "m0":
                    need(r, 1, ("salu",))
        if c == "mfma":
            for r in ins.cdefs:
                last_cread[r] = state
        for r in ins.defs:
            cl = c
            if c in ("valu",) and r[0] == "s":
                cl = "valu_sgpr"
            last_def[r] = (state, cl)
        if c == "store":
            data = re.match(r"\S+ (\S+),", ins.txt).group(1)
            m = re.match(r"([va])\[(\d+):(\d+)\]", data)
            if m and int(m.group(3)) - int(m.group(2)) >= 2:
                for j in range(int(m.group(2)), int(m.group(3)) + 1):
                    last_def[(m.group(1), j)] = (state, "storedata")
        if c in ("vmem", "dma", "store"):
            d = set(ins.defs) if c == "vmem" else set()
            vm_fifo.append((ins.tag, d))
            for r in d:
                pend_v[r] = "vm"
            max_out = max(max_out, len(vm_fifo))
        if c == "ds":
            lg_fifo.append(set(ins.defs))
            if len(lg_fifo) > 15:
                pass
            for r in ins.defs:
                pend_v[r] = "lg"
        state += 1
    return res, errs, vm_fifo, max_out
```

```python
import sys
import numpy as np
from asmlib import *

NAME = "standalone__mha_block_cached__near_ridge"

CFG = dict(
    nt_kv=True,
    nt_w=False,
    timing=False,
    pst_flags="",
    red_flags="",
    dspair_v=False,
    dspair_k=False,
)

SLOT = 12288
XL = 10
NSLOT = 13
WIN = 5 * SLOT

def ACC(T, qb): return V((T * 3 + qb) * 4, 4)
def SB(p, kt, qb): return V(p * 24 + (kt * 3 + qb) * 4, 4)
def SBr(p, kt, qb, r): return V(p * 24 + (kt * 3 + qb) * 4 + r)
def PB(p, qb): return V(48 + p * 12 + qb * 4, 4)
def PBr(p, qb, r): return V(48 + p * 12 + qb * 4 + r)
NT = 8
def TT(k): return V(72 + k)
def NEGM(qb): return V(80 + 4 * qb, 4)
def NEGMr(qb, r=0): return V(80 + 4 * qb + r)
def L(qb): return V(92 + qb)
def LT(qb): return V(95 + qb)
def MT(k): return V(98 + k)
def OACC(p, nt, qb): return V(p * 48 + (nt * 3 + qb) * 4, 4)
def OACCr(p, nt, qb, r): return V(p * 48 + (nt * 3 + qb) * 4 + r)
def CT(u): return V(96 + 4 * u, 4)
def CTr(u, r): return V(96 + 4 * u + r)
def QF(kb, qb): return V(144 + (kb * 3 + qb) * 4, 4)
def QFr(kb, qb, r): return V(144 + (kb * 3 + qb) * 4 + r)
AK = [V(216), V(217)]
AV = [V(218 + i) for i in range(4)]
AW = [V(222 + i) for i in range(4)]
AO = [V(226 + i) for i in range(4)]
DKV = [V(230 + i) for i in range(3)]
DN = [V(233 + i) for i in range(3)]
DO = [V(236 + i) for i in range(3)]
XV = V(239)
PSV = V(240)
def PT(k): return V(241 + k)

def OA(T, qb): return A((T * 3 + qb) * 4, 4)
def OAr(T, qb, r): return A((T * 3 + qb) * 4 + r)
def XF(s, qb): return A(s * 12 + qb * 4, 4)
def O0P(kb, qb): return A(144 + (kb * 3 + qb) * 4, 4)
def O0Pr(kb, qb, r): return A(144 + (kb * 3 + qb) * 4 + r)
def FB(buf, f): return A(216 + buf * 8 + f * 4, 4)
def FBh(buf, f, h): return A(216 + buf * 8 + f * 4 + 2 * h, 2)

SRD_X, SRD_K, SRD_V = S(4, 4), S(8, 4), S(12, 4)
SRD_WO, SRD_WS, SRD_NX = S(20, 4), S(24, 4), S(28, 4)
s_w3072, s_koff, s_voff, s_nxoff = S(32), S(33), S(34), S(35)
s_nxinc = [S(36 + i) for i in range(4)]
s_x = [S(40 + i) for i in range(3)]
s_pst = [S(43), S(44)]
s_h, s_thr = S(45), S(46)
s_c2 = S(48, 2)
s_h0, s_b, s_pj, s_w = S(50), S(51), S(52), S(53)
s_t = [S(54 + i) for i in range(6)]
s_ret = S(60, 2)
s_stamp = 64

THR_BITS = 0x49800000
C_SCALE = np.float32(np.log2(np.e) / np.sqrt(192.0))
C_BITS = int(np.array([C_SCALE], dtype=np.float32).view(np.uint32)[0])


class LaneCalc:
    def __init__(self, out):
        self.out = out
        self.val = {}

    def _v(self, x):
        if isinstance(x, tuple):
            return self.val[x]
        return np.full(256, x, dtype=np.int64)

    def op(self, name, d, a, b, c=None):
        f = {
            "v_and_b32": lambda a, b: a & b,
            "v_or_b32": lambda a, b: a | b,
            "v_xor_b32": lambda a, b: a ^ b,
            "v_add_u32": lambda a, b: a + b,
            "v_sub_u32": lambda a, b: a - b,
            "v_lshlrev_b32": lambda a, b: b << a,
            "v_lshrrev_b32": lambda a, b: b >> a,
            "v_mul_u32_u24": lambda a, b: a * b,
        }[name]
        self.val[d] = f(self._v(a), self._v(b)) & 0xFFFFFFFF
        self.out.append(valu(name, d, a, b))
        return d


def build_lane_consts(out):
    lc = LaneCalc(out)
    tid = PT(0)
    out.append(valu("v_mov_b32", tid, V(0)))
    lc.val[tid] = np.arange(256, dtype=np.int64)
    lane, w, g, i16, r, c = PT(1), PT(2), PT(3), PT(4), PT(5), PT(6)
    t0, t1, t2, t3 = PT(7), PT(8), PT(9), PT(10)
    lc.op("v_and_b32", lane, 63, tid)
    lc.op("v_lshrrev_b32", w, 6, tid)
    lc.op("v_lshrrev_b32", g, 4, lane)
    lc.op("v_and_b32", i16, 15, lane)
    lc.op("v_lshrrev_b32", r, 2, i16)
    lc.op("v_and_b32", c, 3, i16)
    L_ = np.arange(256) & 63
    W_ = np.arange(256) >> 6
    G_, I_ = L_ >> 4, L_ & 15
    R_, C_ = I_ >> 2, I_ & 3
    exp = {}

    lc.op("v_lshrrev_b32", t0, 1, i16)
    lc.op("v_and_b32", t0, 3, t0)
    lc.op("v_lshlrev_b32", t0, 1, t0)
    lc.op("v_xor_b32", t0, g, t0)
    lc.op("v_lshlrev_b32", t0, 4, t0)
    lc.op("v_mul_u32_u24", t1, 384, i16)
    lc.op("v_add_u32", AK[0], t0, t1)
    lc.op("v_xor_b32", t0, 64, t0)
    lc.op("v_add_u32", AK[1], t0, t1)
    f = 2 * ((I_ >> 1) & 3)
    for b in range(2):
        exp[AK[b]] = I_ * 384 + ((4 * b + G_) ^ f) * 16

    cpart = PT(11)
    lc.op("v_lshrrev_b32", t0, 1, c)
    lc.op("v_lshlrev_b32", t0, 4, t0)
    lc.op("v_and_b32", t1, 1, c)
    lc.op("v_lshlrev_b32", t1, 3, t1)
    lc.op("v_add_u32", cpart, t0, t1)
    CP = (C_ >> 1) * 16 + (C_ & 1) * 8

    key = PT(12)
    lc.op("v_lshlrev_b32", key, 2, g)
    lc.op("v_add_u32", key, key, r)
    lc.op("v_lshrrev_b32", t0, 1, key)
    lc.op("v_and_b32", t0, 3, t0)
    lc.op("v_lshlrev_b32", t0, 5, t0)
    lc.op("v_mul_u32_u24", t1, 384, key)
    lc.op("v_add_u32", t1, t1, cpart)
    lc.op("v_lshlrev_b32", t2, 7, key)
    lc.op("v_add_u32", t2, t2, cpart)
    KEY = 4 * G_ + R_
    fv = 2 * ((KEY >> 1) & 3)
    for tt in range(4):
        lc.op("v_xor_b32", t3, 32 * tt, t0)
        lc.op("v_add_u32", AV[tt], t3, t1)
        lc.op("v_add_u32", AO[tt], t3, t2)
        exp[AV[tt]] = KEY * 384 + ((2 * tt) ^ fv) * 16 + CP
        exp[AO[tt]] = KEY * 128 + ((2 * tt) ^ fv) * 16 + CP
    lc.op("v_lshrrev_b32", t0, 1, r)
    lc.op("v_and_b32", t1, 1, g)
    lc.op("v_lshlrev_b32", t1, 1, t1)
    lc.op("v_or_b32", t0, t0, t1)
    lc.op("v_lshlrev_b32", t0, 5, t0)
    lc.op("v_lshlrev_b32", t1, 3, g)
    lc.op("v_add_u32", t1, t1, r)
    lc.op("v_mul_u32_u24", t1, 384, t1)
    lc.op("v_add_u32", t1, t1, cpart)
    ROW = 8 * G_ + R_
    fw = 2 * (((ROW >> 1) & 1) | (((ROW >> 3) & 1) << 1))
    for tt in range(4):
        lc.op("v_xor_b32", t3, 32 * tt, t0)
        lc.op("v_add_u32", AW[tt], t3, t1)
        exp[AW[tt]] = ROW * 384 + ((2 * tt) ^ fw) * 16 + CP

    for i in range(3):
        p = t0
        lc.op("v_add_u32", p, 64 * i, lane)
        lc.op("v_mul_u32_u24", t1, 2731, p)
        lc.op("v_lshrrev_b32", t1, 16, t1)
        lc.op("v_and_b32", t2, 6, t1)
        lc.op("v_and_b32", t3, 7, lane)
        lc.op("v_xor_b32", t2, t2, t3)
        lc.op("v_and_b32", t3, 56, lane)
        lc.op("v_add_u32", t2, t2, t3)
        lc.op("v_lshlrev_b32", t2, 4, t2)
        lc.op("v_mul_u32_u24", t3, 3072, w)
        lc.op("v_add_u32", DKV[i], t2, t3)
        P = 64 * i + L_
        RL = P // 24
        REM = P % 24
        rowg = 8 * W_ + RL
        fk = 2 * ((rowg >> 1) & 3)
        exp[DKV[i]] = rowg * 384 + (REM // 8) * 128 + ((REM % 8) ^ fk) * 16 - 1024 * i
        lc.op("v_and_b32", t2, 2, t1)
        lc.op("v_and_b32", t3, 1, w)
        lc.op("v_lshlrev_b32", t3, 2, t3)
        lc.op("v_or_b32", t2, t2, t3)
        lc.op("v_and_b32", t3, 7, lane)
        lc.op("v_xor_b32", t2, t2, t3)
        lc.op("v_lshlrev_b32", t2, 4, t2)
        lc.op("v_mul_u32_u24", t3, 24, t1)
        lc.op("v_sub_u32", t3, p, t3)
        lc.op("v_and_b32", t3, 24, t3)
        lc.op("v_lshlrev_b32", t3, 4, t3)
        lc.op("v_add_u32", t2, t2, t3)
        lc.op("v_lshlrev_b32", t3, 3, w)
        lc.op("v_add_u32", t3, t3, t1)
        lc.op("v_mul_u32_u24", t3, 12288, t3)
        lc.op("v_add_u32", t2, t2, t3)
        if i:
            lc.op("v_sub_u32", DN[i], t2, PT(13)) if False else None
            lc.out.append(valu("v_subrev_u32", DN[i], 1024 * i, t2))
            lc.val[DN[i]] = (lc.val[t2] - 1024 * i) & 0xFFFFFFFF
        else:
            lc.out.append(valu("v_mov_b32", DN[i], t2))
            lc.val[DN[i]] = lc.val[t2]
        fw2 = 2 * (((rowg >> 1) & 1) | (((rowg >> 3) & 1) << 1))
        exp[DN[i]] = rowg * 12288 + (REM // 8) * 128 + ((REM % 8) ^ fw2) * 16 - 1024 * i
        lc.op("v_lshrrev_b32", t1, 3, lane)
        lc.op("v_and_b32", t2, 6, t1)
        lc.op("v_and_b32", t3, 7, lane)
        lc.op("v_xor_b32", t2, t2, t3)
        lc.op("v_lshlrev_b32", t2, 4, t2)
        lc.op("v_mul_u32_u24", t3, 24, w)
        lc.op("v_add_u32", t3, t3, t1)
        lc.op("v_add_u32", t3, 8 * i, t3)
        lc.op("v_mul_u32_u24", t3, 1280, t3)
        lc.op("v_add_u32", t2, t2, t3)
        if i:
            lc.out.append(valu("v_subrev_u32", DO[i], 1024 * i, t2))
            lc.val[DO[i]] = (lc.val[t2] - 1024 * i) & 0xFFFFFFFF
        else:
            lc.out.append(valu("v_mov_b32", DO[i], t2))
            lc.val[DO[i]] = lc.val[t2]
        rowo = 24 * W_ + 8 * i + (L_ >> 3)
        fo = 2 * ((rowo >> 1) & 3)
        exp[DO[i]] = rowo * 1280 + ((L_ & 7) ^ fo) * 16 - 1024 * i
    lc.op("v_mul_u32_u24", t0, 48, w)
    lc.op("v_add_u32", t0, t0, i16)
    lc.op("v_mul_u32_u24", t0, 1280, t0)
    lc.op("v_lshlrev_b32", t1, 4, g)
    lc.op("v_add_u32", XV, t0, t1)
    exp[XV] = (48 * W_ + I_) * 1280 + 16 * G_
    lc.op("v_mul_u32_u24", t0, 6144, w)
    lc.op("v_lshlrev_b32", t1, 4, lane)
    lc.op("v_add_u32", PSV, t0, t1)
    exp[PSV] = W_ * 6144 + L_ * 16
    for k, vv in exp.items():
        assert (vv >= 0).all(), k
        assert (lc.val[k] == vv).all(), (k, lc.val[k][:70], vv[:70])
    return w


def a_item(j):
    if j == 0: return ("K", 0)
    if j == 1: return ("K", 1)
    if j == 31: return ("V", 15)
    if j % 2 == 0: return ("V", (j - 2) // 2)
    return ("K", (j + 1) // 2)


def item_kind(idx):
    if idx >= 144: return None
    if idx >= 104: return "O"
    r = idx % 52
    if r < 20: return "W"
    return a_item(r - 20)[0]


class Base:
    def __init__(self, regs_):
        self.regs = regs_
        self.base = [0] * len(regs_)


class Gen:
    def __init__(self, cfg):
        self.cfg = cfg
        self.bases = {"K": Base(AK), "V": Base(AV), "W": Base(AW), "O": Base(AO)}
        self.rare_sites = []

    def frag_reads(self, kind, idx, f, buf):
        slot = (idx % NSLOT) * SLOT
        win = (slot // WIN) * WIN
        off = slot - win
        B = self.bases[kind]
        if kind == "K":
            kt, kb = f // 6, f % 6
            ri = kb % 2
            return [(ds_read("ds_read_b128", FB(buf, f % 2), AK[ri], off + kt * 6144 + (kb // 2) * 128), ri, win)]
        if kind == "V":
            ri, j = f % 4, f // 4
            o, d2 = off + 128 * j, 6144
        elif kind == "W":
            ri, j = f % 4, f // 4
            o, d2 = off + 128 * j, 1536
        else:
            ri, j = f % 4, f // 4
            o, d2 = off + 4096 * j, 2048
        return [(ds_read("ds_read_b64_tr_b16", FBh(buf, f % 2, 0), B.regs[ri], o), ri, win),
                (ds_read("ds_read_b64_tr_b16", FBh(buf, f % 2, 1), B.regs[ri], o + d2), ri, win)]

    def place_reads(self, gaps, g0, kind, idx, grp):
        buf = grp % 3
        rl = []
        for f in (2 * grp, 2 * grp + 1):
            rl += self.frag_reads(kind, idx, f, buf)
        B = self.bases[kind]
        fix = []
        for ins, ri, win in rl:
            if B.base[ri] != win:
                d = win - B.base[ri]
                B.base[ri] = win
                if d > 0:
                    fix.append(valu("v_add_u32", B.regs[ri], d, B.regs[ri]))
                else:
                    fix.append(valu("v_subrev_u32", B.regs[ri], -d, B.regs[ri]))
        for k, fx in enumerate(fix):
            gi = g0 - 2 + (k % 2)
            gaps[gi].va.append(fx)
        pair = self.cfg["dspair_k"] if kind == "K" else self.cfg["dspair_v"]
        n = len(rl)
        for k, (ins, ri, win) in enumerate(rl):
            gi = g0 + (k // 2 if pair else k)
            gaps[gi].ds.append(ins)
        return n

    def nreads(self, kind):
        return 2 if kind == "K" else 4

    def dma_instr(self, idx, i):
        kind = item_kind(idx)
        nt = self.cfg["nt_kv"] if kind in ("K", "V") else self.cfg["nt_w"]
        if kind == "K":
            return dma(DKV[i], SRD_K, s_koff, 1024 * i, nt, tag=("item", idx))
        if kind == "V":
            return dma(DKV[i], SRD_V, s_voff, 1024 * i, nt, tag=("item", idx))
        return dma(DN[i], SRD_NX, s_nxoff, 1024 * i, nt, tag=("item", idx))

    def dma_adv(self, idx):
        kind = item_kind(idx)
        if kind == "K":
            return salu("s_add_u32", s_koff, s_koff, SLOT)
        if kind == "V":
            return salu("s_add_u32", s_voff, s_voff, SLOT)
        k = (idx % 52) if idx < 104 else (idx - 104)
        return salu("s_add_u32", s_nxoff, s_nxoff, s_nxinc[k % 4])

    def set_m0(self, idx):
        return salu("s_add_u32", "m0", s_w3072, (idx % NSLOT) * SLOT)

    def step_frame(self, idx, mf, extra_tags=(), defer=False):
        kind = item_kind(idx)
        nk = item_kind(idx + 1)
        gaps = [Gap(mf(i, FB((i // 6) % 3, (i // 3) % 2))) for i in range(36)]
        for G in range(6):
            if G < 4:
                self.place_reads(gaps, 6 * G, kind, idx, G + 2)
                cnt_next = self.nreads(kind)
            elif nk is not None and not defer:
                self.place_reads(gaps, 6 * G, nk, idx + 1, G - 4)
                cnt_next = self.nreads(nk)
            else:
                cnt_next = 0
            if G == 3:
                if nk is not None:
                    tags = [("item", idx + 1)] + list(extra_tags)
                    gaps[23].sc.append(WaitTag(tags, lgkm=cnt_next))
                    gaps[23].sc.append(barrier())
                else:
                    gaps[23].sc.append(wait(lgkm=cnt_next))
            elif G == 5:
                if nk is not None and not defer:
                    gaps[35].sc.append(wait(lgkm=cnt_next))
            elif G == 4:
                gaps[29].sc.append(wait(lgkm=cnt_next))
            else:
                gaps[6 * G + 5].sc.append(wait(lgkm=cnt_next))
        if item_kind(idx + 11) is not None:
            gaps[4].vm.append(self.dma_instr(idx + 11, 1))
            gaps[16].vm.append(self.dma_instr(idx + 11, 2))
            gaps[18].sc.append(self.dma_adv(idx + 11))
        if item_kind(idx + 12) is not None:
            gaps[26].sc.append(self.set_m0(idx + 12))
            gaps[28].vm.append(self.dma_instr(idx + 12, 0))
        return gaps

    def x_load(self, t, qb):
        return vload(XF(t % 12, qb), XV, SRD_X, s_x[qb], 64 * t, tag=("x", t))

    def q_phase(self, base_idx):
        out = []
        for t in range(20):
            idx = base_idx + t

            def mf(i, fr, t=t):
                T, qb = i // 3, i % 3
                return mfma(ACC(T, qb), fr, XF(t % 12, qb), 0 if t == 0 else ACC(T, qb))

            et = [("x", t + 1)] if t < 19 else []
            gaps = self.step_frame(idx, mf, extra_tags=et)
            if t + XL < 20:
                for qb, gi in enumerate((10, 22, 34)):
                    gaps[gi].vm.append(self.x_load(t + XL, qb))
            for g in gaps:
                out += g.flat()
        return out

    def q_pack(self):
        out = []
        fr = [(kb, qb) for kb in range(6) for qb in range(3)]
        for b0 in range(0, 18, 3):
            batch = fr[b0:b0 + 3]
            for kb, qb in batch:
                for T in (2 * kb, 2 * kb + 1):
                    a = ACC(T, qb)[1]
                    for h in (0, 2):
                        out.append(valu("v_pk_mul_f32", V(a + h, 2), V(a + h, 2), s_c2))
            for kb, qb in batch:
                a, b = ACC(2 * kb, qb)[1], ACC(2 * kb + 1, qb)[1]
                out.append(valu("v_cvt_pk_bf16_f32", QFr(kb, qb, 0), V(a), V(a + 1)))
                out.append(valu("v_cvt_pk_bf16_f32", QFr(kb, qb, 1), V(a + 2), V(a + 3)))
                out.append(valu("v_cvt_pk_bf16_f32", QFr(kb, qb, 2), V(b), V(b + 1)))
                out.append(valu("v_cvt_pk_bf16_f32", QFr(kb, qb, 3), V(b + 2), V(b + 3)))
            for kb, qb in batch:
                out.append(perm("v_permlane32_swap_b32", QFr(kb, qb, 0), QFr(kb, qb, 2)))
                out.append(perm("v_permlane32_swap_b32", QFr(kb, qb, 1), QFr(kb, qb, 3)))
            for kb, qb in batch:
                out.append(perm("v_permlane16_swap_b32", QFr(kb, qb, 0), QFr(kb, qb, 2)))
                out.append(perm("v_permlane16_swap_b32", QFr(kb, qb, 1), QFr(kb, qb, 3)))
        return autonop(out)

    def max_ops(self, p):
        ops = []
        last = {}

        def add(ins, deps=(), key=None):
            o = Op(ins, deps)
            ops.append(o)
            return o

        m = [MT(qb) for qb in range(3)]
        y = [MT(3 + qb) for qb in range(3)]
        prev = [None] * 3
        for qb in range(3):
            vals = [SBr(p, kt, qb, r) for kt in range(2) for r in range(4)]
            o = add(valu("v_max3_f32", m[qb], vals[0], vals[1], vals[2]))
            o = add(valu("v_max3_f32", m[qb], m[qb], vals[3], vals[4]), [(o, 0)])
            o = add(valu("v_max3_f32", m[qb], m[qb], vals[5], vals[6]), [(o, 0)])
            o = add(valu("v_max_f32", m[qb], m[qb], vals[7]), [(o, 0)])
            prev[qb] = o
        for sw in ("v_permlane32_swap_b32", "v_permlane16_swap_b32"):
            for qb in range(3):
                prev[qb] = add(valu("v_mov_b32", y[qb], m[qb]), [(prev[qb], 0)])
            for qb in range(3):
                prev[qb] = add(perm(sw, m[qb], y[qb]), [(prev[qb], 2)])
            for qb in range(3):
                prev[qb] = add(valu("v_max_f32", m[qb], m[qb], y[qb]), [(prev[qb], 1)])
        fin = []
        for qb in range(3):
            o = add(valu("v_xor_b32", NEGMr(qb, 0), 0x80000000, m[qb]), [(prev[qb], 0)])
            fin.append(o)
            for r in range(1, 4):
                add(valu("v_mov_b32", NEGMr(qb, r), NEGMr(qb, 0)), [(o, 0)])
        return ops, fin

    def softmax_ops(self, p, sub_deps=None, earliest_kt=(0, 0)):
        ops = []
        tuse = [[] for _ in range(NT)]
        tk = 0
        lt_prev = [None] * 3
        for kt in range(2):
            for qb in range(3):
                ex = []
                subs = []
                if sub_deps is not None:
                    for r in range(4):
                        o = Op(valu("v_add_f32", SBr(p, kt, qb, r), SBr(p, kt, qb, r), NEGMr(qb, 0)),
                               [(sub_deps[qb], 0)] if sub_deps[qb] is not None else [], earliest=earliest_kt[kt])
                        ops.append(o)
                        subs.append(o)
                for h in range(2):
                    pair = []
                    for r in (2 * h, 2 * h + 1):
                        t = tk % NT
                        deps = [(c, 0) for c in tuse[t]]
                        if subs:
                            deps.append((subs[r], 0))
                        e = Op(vexp(TT(t), SBr(p, kt, qb, r)), deps, earliest=earliest_kt[kt])
                        ops.append(e)
                        tuse[t] = []
                        pair.append((e, t))
                        tk += 1
                    (e0, t0), (e1, t1) = pair
                    if lt_prev[qb] is None:
                        a = Op(valu("v_add_f32", LT(qb), TT(t0), TT(t1)), [(e0, 1), (e1, 1)])
                        ops.append(a)
                        tuse[t0].append(a); tuse[t1].append(a)
                        lt_prev[qb] = a
                    else:
                        a = Op(valu("v_add_f32", LT(qb), LT(qb), TT(t0)), [(e0, 1), (lt_prev[qb], 0)])
                        ops.append(a); tuse[t0].append(a)
                        a2 = Op(valu("v_add_f32", LT(qb), LT(qb), TT(t1)), [(e1, 1), (a, 0)])
                        ops.append(a2); tuse[t1].append(a2)
                        lt_prev[qb] = a2
                    c = Op(valu("v_cvt_pk_bf16_f32", PBr(p, qb, 2 * kt + h), TT(t0), TT(t1)), [(e0, 1), (e1, 1)])
                    ops.append(c)
                    tuse[t0].append(c); tuse[t1].append(c)
        return ops, lt_prev

    def check_ops(self, lt_last, p):
        a = Op(valu("v_max3_f32", MT(6), LT(0), LT(1), LT(2)), [(o, 0) for o in lt_last])
        b = Op(I(f"v_cmp_lt_f32 vcc, {rtxt(s_thr)}, {rtxt(MT(6))}", "valu", [], [MT(6), s_thr]), [(a, 0)])
        return [a, b]

    def check_branch(self, p):
        k = len(self.rare_sites)
        self.rare_sites.append(p)
        return [branch("s_cbranch_vccnz", f"L_rs{k}"), label(f"L_rr{k}")]

    def l_acc(self):
        return [valu("v_add_f32", L(qb), L(qb), LT(qb)) for qb in range(3)]

    def emit_tail(self, pend):
        seq = [o.ins for o in pend]
        for o in pend:
            o.gap = 10 ** 9
        return seq

    def a_phase(self, base_idx, nx_switch):
        out = []
        steps = []
        for j in range(32):
            idx = base_idx + 20 + j
            kind, n = a_item(j)
            if kind == "K":
                p = n % 2

                def mf(i, fr, p=p, n=n):
                    f, qb = i // 3, i % 3
                    kt, kb = f // 6, f % 6
                    if kb == 0:
                        c = 0 if n < 2 else NEGM(qb)
                    else:
                        c = SB(p, kt, qb)
                    return mfma(SB(p, kt, qb), fr, QF(kb, qb), c)
            else:
                p = n % 2

                def mf(i, fr, p=p, n=n):
                    T, qb = i // 3, i % 3
                    return mfma(OA(T, qb), fr, PB(p, qb), 0 if n == 0 else OA(T, qb))
            steps.append(self.step_frame(idx, mf, defer=(j == 31)))
        gaps = [g for st in steps for g in st]

        def G(j, i=0): return 36 * j + i

        post = {j: [] for j in range(32)}
        pre = {j: [] for j in range(32)}
        mops, fin = self.max_ops(0)
        for o in mops: o.earliest = G(1, 0)
        sm0, lt0 = self.softmax_ops(0, sub_deps=fin, earliest_kt=(G(1, 0), G(1, 2)))
        pend = list_schedule(gaps, mops + sm0, G(1, 0), G(2, 0))
        post[1] += autonop_tail(self.emit_tail(pend))
        post[1] += [valu("v_mov_b32", L(qb), LT(qb)) for qb in range(3)]
        for n in range(1, 16):
            p = n % 2
            j0 = 2 * n
            j1 = j0 + 2 if n <= 14 else j0 + 1
            sub = [None, None, None] if n == 1 else None
            sm, ltl = self.softmax_ops(p, sub_deps=sub, earliest_kt=(G(j0, 0), G(j0, 3)))
            chk = self.check_ops(ltl, p)
            pend = list_schedule(gaps, sm + chk, G(j0, 0), G(j1, 0))
            post[j1 - 1] += autonop_tail(self.emit_tail(pend))
            post[j1 - 1] += self.check_branch(p)
            post[j1 - 1] += self.l_acc()
        pre[10] += nx_switch
        for j in range(32):
            out += pre[j]
            for g in steps[j]:
                out += g.flat()
            out += post[j]
        return out

    def rinv_ops(self):
        out = []
        y = [MT(3 + qb) for qb in range(3)]
        for sw in ("v_permlane32_swap_b32", "v_permlane16_swap_b32"):
            for qb in range(3): out.append(valu("v_mov_b32", y[qb], L(qb)))
            for qb in range(3): out.append(perm(sw, L(qb), y[qb]))
            for qb in range(3): out.append(valu("v_add_f32", L(qb), L(qb), y[qb]))
        for qb in range(3): out.append(vrcp(MT(8 + 2 * qb), L(qb)))
        for qb in range(3): out.append(valu("v_mov_b32", MT(9 + 2 * qb), MT(8 + 2 * qb)))
        return out

    def first_reads(self, kind, idx):
        out = []
        B = self.bases[kind]
        for grp in range(2):
            for f in (2 * grp, 2 * grp + 1):
                for ins, ri, win in self.frag_reads(kind, idx, f, grp % 3):
                    if B.base[ri] != win:
                        d = win - B.base[ri]
                        B.base[ri] = win
                        out.append(valu("v_add_u32", B.regs[ri], d, B.regs[ri]) if d > 0 else
                                   valu("v_subrev_u32", B.regs[ri], -d, B.regs[ri]))
                    out.append(ins)
        for ri in range(len(B.regs)):
            win = ((idx % NSLOT) * SLOT // WIN) * WIN
            if B.base[ri] != win:
                d = win - B.base[ri]
                B.base[ri] = win
                out.append(valu("v_add_u32", B.regs[ri], d, B.regs[ri]) if d > 0 else
                           valu("v_subrev_u32", B.regs[ri], -d, B.regs[ri]))
        return out

    def n_phase(self, h):
        out = self.first_reads("W" if h == 0 else "O", 52 if h == 0 else 104)
        if h == 0:
            out.append(WaitTag([("item", 54)]))
        out += self.rinv_ops()
        tmp = [V(0 + 8 * k, 8) for k in range(3)]
        pk = [V(24 + 4 * k, 4) for k in range(3)]
        for kb in range(6):
            for qb in range(3):
                t = tmp[qb][1]
                for tt, T in enumerate((2 * kb, 2 * kb + 1)):
                    for r in range(4):
                        out.append(I(f"v_accvgpr_read_b32 v{t + 4 * tt + r}, {rtxt(OAr(T, qb, r))}", "valu",
                                     [V(t + 4 * tt + r)], [OAr(T, qb, r)]))
            for qb in range(3):
                t = tmp[qb][1]
                for h2 in range(4):
                    out.append(valu("v_pk_mul_f32", V(t + 2 * h2, 2), V(t + 2 * h2, 2), V(MT(8 + 2 * qb)[1], 2)))
            for qb in range(3):
                t = tmp[qb][1]
                for r in range(4):
                    d = V(pk[qb][1] + r) if h == 0 else QFr(kb, qb, r)
                    out.append(valu("v_cvt_pk_bf16_f32", d, V(t + 2 * r), V(t + 2 * r + 1)))
            if h == 0:
                for qb in range(3):
                    for r in range(4):
                        out.append(I(f"v_accvgpr_write_b32 {rtxt(O0Pr(kb, qb, r))}, v{pk[qb][1] + r}", "valu",
                                     [O0Pr(kb, qb, r)], [V(pk[qb][1] + r)]))
                for t in (2 * kb, 2 * kb + 1):
                    if t < XL:
                        for qb in range(3):
                            out.append(self.x_load(t, qb))
        out.append(wait(lgkm=4))
        return autonop(out)

    def o_phase(self):
        out = []
        steps = []
        for j in range(40):
            c, s = j // 4, j % 4
            p = c % 2

            def mf(i, fr, s=s, p=p):
                f, qb = i // 3, i % 3
                jj, nt = f // 4, f % 4
                ks = 3 * s + jj
                h, kb = ks // 6, ks % 6
                b = O0P(kb, qb) if h == 0 else QF(kb, qb)
                return mfma(OACC(p, nt, qb), fr, b, 0 if ks == 0 else OACC(p, nt, qb))
            steps.append(self.step_frame(104 + j, mf))
        gaps = [g for st in steps for g in st]

        def cvts(p):
            ops = []
            for ntp in range(2):
                for qb in range(3):
                    u = ntp * 3 + qb
                    for h in range(2):
                        a = OACC(p, 2 * ntp + h, qb)[1]
                        ops.append(valu("v_cvt_pk_bf16_f32", CTr(u, 2 * h), V(a), V(a + 1)))
                        ops.append(valu("v_cvt_pk_bf16_f32", CTr(u, 2 * h + 1), V(a + 2), V(a + 3)))
            return ops

        def store(u, c):
            return vstore(CT(u), PSV, SRD_WS, s_pst[u // 4], (u % 4) * 1024, self.cfg["pst_flags"], tag=("st", c))

        def adv():
            return [salu("s_add_u32", s_pst[0], s_pst[0], 24576), salu("s_add_u32", s_pst[1], s_pst[1], 24576)]

        for c in range(1, 10):
            pp = (c - 1) % 2
            g0 = 36 * (4 * c)
            ops = [Op(x, earliest=g0 + 4) for x in cvts(pp)]
            pend = list_schedule(gaps, ops, g0, g0 + 36)
            assert not pend
            u = 0
            for s in (1, 2):
                for gi in (10, 22, 34):
                    gaps[36 * (4 * c + s) + gi].vm.append(store(u, c - 1))
                    u += 1
            a = adv()
            gaps[36 * (4 * c + 3) + 0].sc.append(a[0])
            gaps[36 * (4 * c + 3) + 1].sc.append(a[1])
        for g in gaps:
            out += g.flat()
        tail = [nop(7)] + cvts(1)
        tail += [store(u, 9) for u in range(6)]
        out += autonop(tail)
        return out

    def rare_code(self, p):
        out = [label(f"L_rare{p}"), nop(7), nop(7)]
        m = [MT(qb) for qb in range(3)]
        y = [MT(3 + qb) for qb in range(3)]
        f = [MT(8 + qb) for qb in range(3)]
        for qb in range(3):
            vals = [SBr(p, kt, qb, r) for kt in range(2) for r in range(4)]
            out.append(valu("v_max3_f32", m[qb], vals[0], vals[1], vals[2]))
            out.append(valu("v_max3_f32", m[qb], m[qb], vals[3], vals[4]))
            out.append(valu("v_max3_f32", m[qb], m[qb], vals[5], vals[6]))
            out.append(valu("v_max_f32", m[qb], m[qb], vals[7]))
        for sw in ("v_permlane32_swap_b32", "v_permlane16_swap_b32"):
            for qb in range(3): out.append(valu("v_mov_b32", y[qb], m[qb]))
            for qb in range(3): out.append(perm(sw, m[qb], y[qb]))
            for qb in range(3): out.append(valu("v_max_f32", m[qb], m[qb], y[qb]))
        for qb in range(3):
            out.append(valu("v_max_f32", m[qb], 0, m[qb]))
        for qb in range(3):
            out.append(valu("v_sub_f32", y[qb], 0, m[qb]))
        for qb in range(3):
            out.append(vexp(f[qb], y[qb]))
        for qb in range(3):
            for r in range(4):
                out.append(valu("v_sub_f32", NEGMr(qb, r), NEGMr(qb, r), m[qb]))
            for pp in range(2):
                for kt in range(2):
                    for r in range(4):
                        out.append(valu("v_sub_f32", SBr(pp, kt, qb, r), SBr(pp, kt, qb, r), m[qb]))
            out.append(valu("v_mul_f32", L(qb), L(qb), f[qb]))
            for T in range(12):
                for r in range(4):
                    a = OAr(T, qb, r)
                    out.append(I(f"v_accvgpr_read_b32 {rtxt(TT(r))}, {rtxt(a)}", "valu", [TT(r)], [a]))
                for r in range(4):
                    out.append(valu("v_mul_f32", TT(r), TT(r), f[qb]))
                for r in range(4):
                    a = OAr(T, qb, r)
                    out.append(I(f"v_accvgpr_write_b32 {rtxt(a)}, {rtxt(TT(r))}", "valu", [a], [TT(r)]))
        sm, _ = self.softmax_ops(p)
        out += [o.ins for o in sm]
        out = autonop(out)
        out += [nop(1), I(f"s_setpc_b64 {rtxt(s_ret)}", "branch")]
        return out


def autonop(seq):
    out = []
    last = {}
    st = 0
    for ins in seq:
        c = ins.cls
        need = 0

        def chk(r, n, what):
            nonlocal need
            if r in last and last[r][1] in what:
                need = max(need, n - (st - last[r][0] - 1))
        if c in ("valu", "trans", "perm"):
            for r in ins.uses:
                chk(r, 1, ("trans",))
                if c == "perm": chk(r, 2, ("valu", "trans", "perm"))
            for r in ins.uses | ins.defs:
                chk(r, 8, ("mfma",))
            for r in ins.defs:
                chk(r, 2, ("storedata",))
        elif c == "mfma":
            for r in ins.uses | ins.cdefs:
                chk(r, 2, ("valu", "trans", "perm"))
        elif c in ("ds", "vmem", "dma", "store"):
            for r in ins.uses:
                if r[0] == "m0": chk(r, 1, ("salu",))
        if need > 0:
            out.append(nop(need - 1))
            st += need
        out.append(ins)
        for r in ins.defs:
            last[r] = (st, c)
        if c == "store":
            for r in ins.uses:
                if r[0] in "va": last[r] = (st, "storedata")
        st += (ins.info + 1) if c == "nop" else (0 if c == "label" else 1)
    return out


autonop_tail = autonop


def srd(dst, ptr, nbytes):
    d = dst[1]
    return [salu("s_mov_b32", S(d), S(ptr)), salu("s_and_b32", S(d + 1), S(ptr + 1), 0xFFFF),
            salu("s_mov_b32", S(d + 2), nbytes), salu("s_mov_b32", S(d + 3), 0x00020000)]


def stamp(k):
    return [I(f"s_memtime s[{s_stamp + 2 * k}:{s_stamp + 2 * k + 1}]", "salu")]


def main_kernel(cfg):
    g = Gen(cfg)
    T = cfg["timing"]
    pro = []
    pro.append(label("mha_main_kernel"))
    pro += [scmp("s_cmp_ge_u32", S(2), 256), branch("s_cbranch_scc1", "L_main_exit")]
    pro.append(raw("s_load_dwordx16 s[64:79], s[0:1], 0", "salu"))
    lane_ops = []
    wreg = build_lane_consts(lane_ops)
    pro += lane_ops
    pro.append(I(f"v_readfirstlane_b32 {rtxt(s_w)}, {rtxt(wreg)}", "valu", [s_w], [wreg]))
    pro.append(raw("s_waitcnt lgkmcnt(0)", "salu"))
    pro += srd(SRD_X, 64, 16 * 192 * 640 * 2)
    pro += srd(SRD_K, 66, 16 * 32 * 512 * 192 * 2)
    pro += srd(SRD_V, 68, 16 * 32 * 512 * 192 * 2)
    pro += srd(SRD_NX, 70, 640 * 6144 * 2)
    pro += srd(SRD_WO, 72, 6144 * 640 * 2)
    pro += srd(SRD_WS, 78, 402653184)
    t0, t1 = s_t[0], s_t[1]
    pro += [
        salu("s_and_b32", t0, S(2), 7),
        salu("s_lshr_b32", t1, S(2), 3),
        salu("s_lshr_b32", s_b, t1, 1),
        salu("s_and_b32", t1, t1, 1),
        salu("s_lshl_b32", s_pj, t0, 1),
        salu("s_add_u32", s_pj, s_pj, t1),
        salu("s_lshl_b32", s_h0, s_pj, 1),
        salu("s_mul_i32", s_w3072, s_w, 3072),
        salu("s_lshl_b32", t0, s_b, 5),
        salu("s_add_u32", t0, t0, s_h0),
        salu("s_mul_i32", s_koff, t0, 196608),
        salu("s_mov_b32", s_voff, s_koff),
        salu("s_mul_i32", s_nxoff, s_h0, 384),
        salu("s_mul_i32", s_x[0], s_b, 245760),
        salu("s_add_u32", s_x[1], s_x[0], 20480),
        salu("s_add_u32", s_x[2], s_x[0], 40960),
        salu("s_lshl_b32", t0, s_b, 4),
        salu("s_add_u32", t0, t0, s_pj),
        salu("s_mul_i32", s_pst[0], t0, 245760),
        salu("s_add_u32", s_pst[1], s_pst[0], 4096),
        salu("s_mov_b32", s_h, 0),
        salu("s_mov_b32", s_thr, THR_BITS),
        salu("s_mov_b32", S(48), C_BITS),
        salu("s_mov_b32", S(49), C_BITS),
    ]
    for k in range(4):
        pro.append(salu("s_mov_b32", s_nxinc[k], 393216))
    if T:
        pro += [salu("s_mov_b32", S(80), S(76)), salu("s_mov_b32", S(81), S(77))]
        pro += stamp(0)
    for t in range(11):
        if t < 9:
            for qb in range(3):
                pro.append(g.x_load(t, qb))
        pro.append(g.set_m0(t))
        pro.append(nop(0))
        for i in range(3):
            pro.append(g.dma_instr(t, i))
        pro.append(g.dma_adv(t))
    pro += [g.set_m0(11), nop(0), g.dma_instr(11, 0)]
    pro += [WaitTag([("item", 1)]), barrier()]
    for t in range(9, XL):
        for qb in range(3):
            pro.append(g.x_load(t, qb))
    pro += g.first_reads("W", 0)
    pro.append(wait(lgkm=4))

    nxs = [
        scmp("s_cmp_eq_u32", s_h, 0),
        branch("s_cbranch_scc0", "L_nx1"),
        salu("s_add_u32", t0, s_h0, 1),
        salu("s_mul_i32", s_nxoff, t0, 384),
        branch("s_branch", "L_nx2"),
        label("L_nx1"),
        salu("s_mov_b32", S(28), S(20)), salu("s_mov_b32", S(29), S(21)), salu("s_mov_b32", S(30), S(22)),
        salu("s_mul_i32", s_nxoff, s_h0, 245760),
        salu("s_mov_b32", s_nxinc[0], 122880), salu("s_mov_b32", s_nxinc[1], 122880),
        salu("s_mov_b32", s_nxinc[2], 122880), salu("s_mov_b32", s_nxinc[3], 128 - 3 * 122880),
        valu("v_mov_b32", DN[0], DO[0]), valu("v_mov_b32", DN[1], DO[1]), valu("v_mov_b32", DN[2], DO[2]),
        label("L_nx2"),
    ]

    def body(base, first):
        b = [label("L_head")] if first else []
        if T: b += stamp_h(1)
        b.append(WaitTag([("x", 0)]))
        b += g.q_phase(base)
        if T: b += stamp_h(2)
        b += g.q_pack()
        if T: b += stamp_h(3)
        b += g.a_phase(base, nxs if first else [])
        if T: b += stamp_h(4)
        for kind in ("K", "V", "W"):
            B = g.bases[kind]
            want = 0
            for ri, r in enumerate(B.regs):
                if kind == "W":
                    continue
                if B.base[ri] != want:
                    d = want - B.base[ri]
                    b.append(valu("v_add_u32", r, d, r) if d > 0 else valu("v_subrev_u32", r, -d, r))
                    B.base[ri] = want
        return b

    def stamp_h(k):
        return [I(f"s_memtime s[56:57]", "salu"), raw("s_waitcnt lgkmcnt(0)", "salu"),
                scmp("s_cmp_eq_u32", s_h, 0),
                salu("s_cselect_b32", S(58), S(56), S(s_stamp + 2 * k)),
                salu("s_mov_b32", S(s_stamp + 2 * k), S(58)),
                salu("s_cselect_b32", S(58), S(s_stamp + 2 * k + 9), S(56)),
                salu("s_mov_b32", S(s_stamp + 2 * k + 9), S(58))]

    body0 = body(0, True)
    n0 = g.n_phase(0)
    assert g.bases["W"].base == [0, 0, 0, 0]
    sites = list(g.rare_sites)
    body1 = body(52, False)
    g.rare_sites = sites
    n1 = g.n_phase(1)
    oph = g.o_phase()

    loop_end = [scmp("s_cmp_eq_u32", s_h, 0), branch("s_cbranch_scc0", "L_last")]
    loop_back = [salu("s_mov_b32", s_h, 1), branch("s_branch", "L_head"), label("L_last")]
    fin = []
    if T:
        fin += [I("s_memtime s[56:57]", "salu"), raw("s_waitcnt lgkmcnt(0)", "salu"), salu("s_mov_b32", S(84), S(56))]
    fin += [raw("s_waitcnt vmcnt(0)", "salu")]
    if T:
        fin += [I("s_memtime s[56:57]", "salu"), raw("s_waitcnt lgkmcnt(0)", "salu"), salu("s_mov_b32", S(85), S(56))]
        lst = [64, 66, 68, 70, 72, 75, 77, 79, 81, 84, 85]
        for k, sr in enumerate(lst):
            fin.append(valu("v_mov_b32", V(k), S(sr)))
        fin += [salu("s_lshl_b32", t0, S(2), 6), salu("s_add_u32", t0, t0, 300 * 1024 * 1024),
                valu("v_mov_b32", V(20), 0)]
        fin += [raw("v_cmp_eq_u32 vcc, 0, v241", "valu"), raw("s_and_saveexec_b64 s[56:57], vcc", "salu")]
        for k in range(0, 12, 4):
            fin.append(vstore(V(k, 4), V(20), SRD_WS, t0, 4 * k))
        fin += [raw("s_waitcnt vmcnt(0)", "salu")]
    fin += [label("L_main_exit"), raw("s_endpgm", "salu")]

    waits0 = [i for i in body0 if isinstance(i, WaitTag)]
    waits1 = [i for i in body1 if isinstance(i, WaitTag)]
    assert len(waits0) == len(waits1)
    seq = pro + body0 + n0 + body1 + n1 + oph
    res, errs, _, maxout = resolve_and_check(seq, "main")
    for e in errs[:40]:
        print("ERR", e, file=sys.stderr)
    assert not errs, len(errs)
    print("max outstanding vmem", maxout, file=sys.stderr)

    def fin_wait(w, vals):
        vals = [v for v in vals if v is not None]
        vm = min(vals) if vals else None
        lg = w.info[1]
        p = []
        if vm is not None: p.append(f"vmcnt({vm})")
        if lg is not None: p.append(f"lgkmcnt({lg})")
        w.txt = "s_waitcnt " + " ".join(p) if p else "s_nop 0"
    for w0, w1 in zip(waits0, waits1):
        fin_wait(w0, res[id(w0)] + res[id(w1)])
    for w in [i for i in pro + oph + n0 + n1 if isinstance(i, WaitTag)]:
        fin_wait(w, res[id(w)])
    t0_ = [i.txt for i in body0 if not isinstance(i, WaitTag) and i.cls not in ("label", "branch") and i not in nxs]
    t1_ = [i.txt for i in body1 if not isinstance(i, WaitTag) and i.cls not in ("label", "branch")]
    assert t0_ == t1_, "loop passes differ"

    stubs = []
    for k, p in enumerate(sites):
        stubs += [label(f"L_rs{k}"), I(f"s_call_b64 {rtxt(s_ret)}, L_rare{p}", "branch"), branch("s_branch", f"L_rr{k}")]
    rare = g.rare_code(0) + g.rare_code(1)
    allc = pro + body0 + loop_end + n0 + loop_back + n1 + oph + fin + stubs + rare
    return allc


def reducer_kernel(cfg):
    o = []
    o.append(label("mha_reduce_kernel"))
    o += [scmp("s_cmp_ge_u32", S(2), 960), branch("s_cbranch_scc1", "L_red_exit")]
    o.append(raw("s_load_dwordx2 s[4:5], s[0:1], 40", "salu"))
    o.append(raw("s_load_dwordx2 s[6:7], s[0:1], 56", "salu"))
    tid = V(0)
    o += [valu("v_lshrrev_b32", V(1), 6, tid), valu("v_and_b32", V(2), 63, tid)]
    o.append(nop(0))
    o.append(I("v_readfirstlane_b32 s3, v1", "valu", [S(3)], [V(1)]))
    o.append(raw("s_waitcnt lgkmcnt(0)", "salu"))
    o += srd(S(8, 4), 4, 16 * 192 * 640 * 2)
    o += srd(S(12, 4), 6, 402653184)
    o += [salu("s_lshl_b32", S(16), S(2), 2), salu("s_add_u32", S(16), S(16), S(3)),
          salu("s_mul_hi_u32", S(17), S(16), (2 ** 32 + 239) // 240),
          salu("s_mul_i32", S(18), S(17), 240), salu("s_sub_u32", S(18), S(16), S(18)),
          salu("s_mul_i32", S(19), S(17), 16 * 240), salu("s_add_u32", S(19), S(19), S(18)),
          salu("s_lshl_b32", S(19), S(19), 10),
          valu("v_lshlrev_b32", V(3), 4, V(2))]
    for j in range(16):
        o.append(vload(V(16 + 4 * j, 4), V(3), S(12, 4), S(19), 0, cfg["red_flags"], tag=("p", j)))
        if j < 15:
            o.append(salu("s_add_u32", S(19), S(19), 245760))
    o += [salu("s_mul_hi_u32", S(20), S(18), (2 ** 32 + 23) // 24),
          salu("s_mul_i32", S(21), S(20), 24), salu("s_sub_u32", S(21), S(18), S(21)),
          salu("s_mul_hi_u32", S(22), S(21), (2 ** 32 + 5) // 6),
          salu("s_mul_i32", S(23), S(22), 6), salu("s_sub_u32", S(23), S(21), S(23)),
          salu("s_mul_hi_u32", S(24), S(23), (2 ** 32 + 2) // 3),
          salu("s_mul_i32", S(25), S(24), 3), salu("s_sub_u32", S(25), S(23), S(25)),
          salu("s_mul_i32", S(26), S(17), 192), salu("s_mul_i32", S(27), S(22), 48),
          salu("s_add_u32", S(26), S(26), S(27)), salu("s_lshl_b32", S(27), S(25), 4),
          salu("s_add_u32", S(26), S(26), S(27)), salu("s_mul_i32", S(26), S(26), 1280),
          salu("s_lshl_b32", S(27), S(20), 7), salu("s_add_u32", S(26), S(26), S(27)),
          salu("s_lshl_b32", S(27), S(24), 6), salu("s_add_u32", S(26), S(26), S(27)),
          valu("v_and_b32", V(4), 15, V(2)), valu("v_mul_u32_u24", V(4), 1280, V(4)),
          valu("v_lshrrev_b32", V(5), 4, V(2)), valu("v_lshlrev_b32", V(5), 4, V(5)),
          valu("v_add_u32", V(4), V(4), V(5)),
          salu("s_mov_b32", S(28), 0xFFFF0000)]
    acc = [V(8 + k) for k in range(8)]
    t = [V(6), V(7)]
    for j in range(16):
        o.append(wait(vm=15 - j))
        for r in range(4):
            src = V(16 + 4 * j + r)
            if j == 0:
                o.append(valu("v_lshlrev_b32", acc[2 * r], 16, src))
                o.append(valu("v_and_b32", acc[2 * r + 1], S(28), src))
            else:
                o.append(valu("v_lshlrev_b32", t[0], 16, src))
                o.append(valu("v_and_b32", t[1], S(28), src))
                o.append(valu("v_add_f32", acc[2 * r], acc[2 * r], t[0]))
                o.append(valu("v_add_f32", acc[2 * r + 1], acc[2 * r + 1], t[1]))
    pk = [V(80 + k) for k in range(4)]
    for r in range(4):
        o.append(valu("v_cvt_pk_bf16_f32", pk[r], acc[2 * r], acc[2 * r + 1]))
    o2 = [perm("v_permlane32_swap_b32", pk[0], pk[2]), perm("v_permlane32_swap_b32", pk[1], pk[3]),
          perm("v_permlane16_swap_b32", pk[0], pk[2]), perm("v_permlane16_swap_b32", pk[1], pk[3])]
    o += o2
    o = autonop(o)
    o.append(nop(1))
    o.append(vstore(V(80, 4), V(4), S(8, 4), S(26), 0))
    o.append(raw("s_waitcnt vmcnt(0)", "salu"))
    o += [label("L_red_exit"), raw("s_endpgm", "salu")]
    return o


def kd(name, nv, acc):
    return f""".amdhsa_kernel {name}
  .amdhsa_next_free_vgpr {nv}
  .amdhsa_next_free_sgpr 102
  .amdhsa_accum_offset {acc}
  .amdhsa_group_segment_fixed_size 0
  .amdhsa_kernarg_size 64
  .amdhsa_user_sgpr_count 2
  .amdhsa_user_sgpr_kernarg_segment_ptr 1
  .amdhsa_system_sgpr_workgroup_id_x 1
.end_amdhsa_kernel
"""


def fmt(seq):
    s = []
    for i in seq:
        s.append(i.txt if i.cls == "label" else " " + i.txt)
    return "\n".join(s) + "\n"


HEADER = """; Fused multi-head attention block for MI355X (gfx950), generated by my own script.
; launch 1: per workgroup two heads of one batch: Q projection, attention, output-projection partials (bf16) -> d_ws
; @launch kernel=mha_main_kernel grid=(256,1,1) block=(256,1,1) lds=159744
; @launch kernel=mha_reduce_kernel grid=(960,1,1) block=(256,1,1) lds=0
.amdgcn_target "amdgcn-amd-amdhsa--gfx950"
.text
"""


def build(cfg, path):
    m = main_kernel(cfg)
    r = reducer_kernel(cfg)
    s = HEADER
    for nm, code in (("mha_main_kernel", m), ("mha_reduce_kernel", r)):
        s += f".globl {nm}\n.p2align 8\n.type {nm},@function\n" + fmt(code)
    s += ".fill 64, 4, 0xBF800000\n"
    s += '.section .rodata,"a"\n.p2align 6\n' + kd("mha_main_kernel", 512, 256) + ".p2align 6\n" + kd("mha_reduce_kernel", 88, 88)
    open(path, "w").write(s)
    n_main = sum(1 for i in m if i.cls != "label")
    print(f"wrote {path}: {len(s)} bytes, main {n_main} instrs", file=sys.stderr)


if __name__ == "__main__":
    cfg = dict(CFG)
    path = "out.s"
    for a in sys.argv[1:]:
        if "=" in a:
            k, v = a.split("=", 1)
            cfg[k] = {"True": True, "False": False}.get(v, v)
        else:
            path = a
    build(cfg, path)
```

```python
import re


def V(i, n=1):
    return ("v", i, n)


def A(i, n=1):
    return ("a", i, n)


def S(i, n=1):
    return ("s", i, n)


def rtxt(r):
    if isinstance(r, str):
        return r
    if isinstance(r, (int,)):
        return str(r)
    k, i, n = r
    return f"{k}{i}" if n == 1 else f"{k}[{i}:{i + n - 1}]"


def regs(r):
    if isinstance(r, tuple):
        k, i, n = r
        return {(k, i + j) for j in range(n)}
    return set()


class I:
    __slots__ = ("txt", "cls", "defs", "uses", "cdefs", "tag", "info", "slots")

    def __init__(self, txt, cls, defs=(), uses=(), tag=None, info=None, cdefs=()):
        self.txt = txt
        self.cls = cls
        self.defs = set()
        for d in defs:
            self.defs |= regs(d) if isinstance(d, tuple) and len(d) == 3 else {d}
        self.uses = set()
        for u in uses:
            self.uses |= regs(u) if isinstance(u, tuple) and len(u) == 3 else ({u} if isinstance(u, tuple) else set())
        self.cdefs = set()
        for u in cdefs:
            self.cdefs |= regs(u)
        self.tag = tag
        self.info = info
        self.slots = 2 if cls in ("trans", "vmem", "dma", "store") else 1

    def __repr__(self):
        return self.txt


def mfma(d, a, b, c):
    ctxt = rtxt(c) if isinstance(c, tuple) else str(c)
    i = I(f"v_mfma_f32_16x16x32_bf16 {rtxt(d)}, {rtxt(a)}, {rtxt(b)}, {ctxt}", "mfma", [d], [a, b],
          cdefs=[c] if isinstance(c, tuple) else [])
    return i


def valu(op, d, *src, cls="valu", extra=""):
    t = f"{op} {rtxt(d)}, " + ", ".join(rtxt(s) for s in src) + extra
    return I(t, cls, [d] if isinstance(d, tuple) else [], [s for s in src if isinstance(s, tuple)])


def vexp(d, s):
    return valu("v_exp_f32", d, s, cls="trans")


def vrcp(d, s):
    return valu("v_rcp_f32", d, s, cls="trans")


def perm(op, x, y):
    return I(f"{op} {rtxt(x)}, {rtxt(y)}", "perm", [x, y], [x, y])


def salu(op, d, *src):
    t = f"{op} {rtxt(d)}" + ("".join(", " + rtxt(s) for s in src))
    defs = [d] if isinstance(d, tuple) else ([("m0", 0, 1)] if d == "m0" else [])
    return I(t, "salu", defs, [s for s in src if isinstance(s, tuple)])


def scmp(op, a, b):
    return I(f"{op} {rtxt(a)}, {rtxt(b)}", "salu", [], [s for s in (a, b) if isinstance(s, tuple)])


def raw(txt, cls="salu", defs=(), uses=()):
    return I(txt, cls, defs, uses)


def ds_read(op, d, addr, off):
    assert 0 <= off < 65536, off
    return I(f"{op} {rtxt(d)}, {rtxt(addr)} offset:{off}", "ds", [d], [addr])


def dma(voff, srd, soff, imm, nt=False, tag=None):
    t = f"buffer_load_dwordx4 {rtxt(voff)}, {rtxt(srd)}, {rtxt(soff)} offen offset:{imm}" + (" nt" if nt else "") + " lds"
    return I(t, "dma", [], [voff, srd, soff, ("m0", 0, 1)], tag=tag)


def vload(d, voff, srd, soff, imm, flags="", tag=None):
    t = f"buffer_load_dwordx4 {rtxt(d)}, {rtxt(voff)}, {rtxt(srd)}, {rtxt(soff)} offen offset:{imm}" + flags
    return I(t, "vmem", [d], [voff, srd, soff], tag=tag)


def vstore(data, voff, srd, soff, imm, flags="", tag=None, width=4):
    op = {4: "buffer_store_dwordx4", 2: "buffer_store_dwordx2", 1: "buffer_store_dword"}[width]
    t = f"{op} {rtxt(data)}, {rtxt(voff)}, {rtxt(srd)}, {rtxt(soff)} offen offset:{imm}" + flags
    return I(t, "store", [], [data, voff, srd, soff], tag=tag)


def wait(vm=None, lgkm=None):
    p = []
    if vm is not None:
        assert 0 <= vm <= 63, vm
        p.append(f"vmcnt({vm})")
    if lgkm is not None:
        assert 0 <= lgkm <= 15, lgkm
        p.append(f"lgkmcnt({lgkm})")
    return I("s_waitcnt " + " ".join(p), "wait", info=(vm, lgkm))


class WaitTag(I):
    def __init__(self, tags, lgkm=None):
        super().__init__("s_waitcnt ???", "wait", info=(None, lgkm))
        self.tag = ("waittag", tuple(tags))


class Macro(I):
    def __init__(self, body, n_vm):
        super().__init__("\n".join(b.txt if b.cls == "label" else " " + b.txt for b in body).lstrip(), "macro")
        self.info = n_vm


def barrier():
    return I("s_barrier", "barrier")


def nop(n=0):
    return I(f"s_nop {n}", "nop", info=n)


def label(name):
    return I(f"{name}:", "label", info=name)


def branch(op, target):
    return I(f"{op} {target}", "branch", info=target)


class Gap:
    def __init__(self, m):
        self.m = m
        self.sc = []
        self.ds = []
        self.vm = []
        self.va = []
        self.post = []

    def used(self):
        n = max(0, len(self.sc) - 1)
        n += len(self.ds) + 2 * len(self.vm) + sum(x.slots for x in self.va) + len(self.post)
        return n

    def free(self):
        return 2 - self.used()

    def flat(self):
        out = []
        if self.m is not None:
            out.append(self.m)
        out += self.sc + self.ds + self.vm + self.va + self.post
        return out


class Op:
    def __init__(self, ins, deps=(), earliest=0, prio=0):
        self.ins = ins
        self.deps = list(deps)
        self.earliest = earliest
        self.gap = None
        self.prio = prio


def list_schedule(gaps, ops, g0, g1, overflow_ok=True):
    pending = list(ops)

    def ready(op, g):
        if op.earliest > g:
            return False
        for d, dist in op.deps:
            if d.gap is None or d.gap + dist > g:
                return False
        return True

    for g in range(g0, g1):
        gap = gaps[g]
        while gap.free() > 0 and pending:
            pick = None
            if gap.free() >= 2:
                for op in pending:
                    if op.ins.slots == 2 and ready(op, g):
                        pick = op
                        break
            if pick is None:
                for op in pending:
                    if op.ins.slots == 1 and ready(op, g):
                        pick = op
                        break
            if pick is None:
                break
            pick.gap = g
            gap.va.append(pick.ins)
            pending.remove(pick)
    return pending


def resolve_and_check(seq, name="", vm_hist=None, check_loads=True):
    res = {}
    errs = []
    vm_fifo = list(vm_hist or [])
    lg_fifo = []
    pend_v = {}
    last_def = {}
    last_cread = {}
    state = 0
    max_out = 0
    for ins in seq:
        c = ins.cls
        if c == "label":
            continue
        if c == "wait":
            vm, lg = ins.info
            if isinstance(ins.tag, tuple) and ins.tag[0] == "waittag":
                tags = ins.tag[1]
                last = -1
                for k, (t, _) in enumerate(vm_fifo):
                    if t in tags:
                        last = k
                vm = len(vm_fifo) - 1 - last if last >= 0 else None
                if vm is not None and vm > 63:
                    vm = 63
                key = id(ins)
                res.setdefault(key, []).append(vm)
            if vm is not None:
                done = vm_fifo[: max(0, len(vm_fifo) - vm)]
                vm_fifo = vm_fifo[max(0, len(vm_fifo) - vm):]
                for _, d in done:
                    for r in d:
                        if pend_v.get(r) == "vm":
                            del pend_v[r]
            if lg is not None:
                done = lg_fifo[: max(0, len(lg_fifo) - lg)]
                lg_fifo = lg_fifo[max(0, len(lg_fifo) - lg):]
                for d in done:
                    for r in d:
                        if pend_v.get(r) == "lg":
                            del pend_v[r]
            state += 1
            continue
        if c == "nop":
            state += ins.info + 1
            continue
        if c == "macro":
            for _ in range(ins.info):
                vm_fifo.append((ins.tag, set()))
            max_out = max(max_out, len(vm_fifo))
            state += 4
            continue
        if check_loads:
            for r in ins.uses | ins.cdefs:
                if r in pend_v:
                    errs.append(f"{name}: use of pending load reg {r} ({pend_v[r]}) in: {ins.txt}")
            for r in ins.defs:
                if r in pend_v:
                    errs.append(f"{name}: overwrite of pending load reg {r} in: {ins.txt}")

        def need(r, n, what):
            if r in last_def:
                st, cl = last_def[r]
                if cl in what and state - st - 1 < n:
                    errs.append(f"{name}: hazard {cl}->{c} reg {r} dist {state - st - 1} < {n}: {ins.txt}")

        if c == "mfma":
            for r in ins.uses:
                need(r, 8, ("mfma",))
                need(r, 2, ("valu", "trans", "perm"))
            for r in ins.cdefs:
                need(r, 2, ("valu", "trans", "perm"))
                if r not in ins.defs:
                    need(r, 8, ("mfma",))
            for r in ins.defs:
                if r not in ins.cdefs:
                    need(r, 8, ("mfma",))
        elif c in ("valu", "trans", "perm"):
            for r in ins.uses | ins.defs:
                need(r, 8, ("mfma",))
            for r in ins.uses:
                need(r, 1, ("trans",))
                if c == "perm":
                    need(r, 2, ("valu", "trans", "perm"))
            for r in ins.defs:
                if r in last_cread and state - last_cread[r] - 1 < 3:
                    errs.append(f"{name}: WAR on MFMA SrcC reg {r}: {ins.txt}")
                if r in last_def and last_def[r][1] == "storedata" and state - last_def[r][0] - 1 < 2:
                    errs.append(f"{name}: store data overwrite {r}: {ins.txt}")
        elif c in ("ds", "vmem", "dma", "store"):
            for r in ins.uses | ins.defs:
                need(r, 8, ("mfma",))
            for r in ins.uses:
                if r[0] == "s":
                    need(r, 5, ("valu_sgpr",))
                if r[0] == "m0":
                    need(r, 1, ("salu",))
        if c == "mfma":
            for r in ins.cdefs:
                last_cread[r] = state
        for r in ins.defs:
            cl = c
            if c in ("valu",) and r[0] == "s":
                cl = "valu_sgpr"
            last_def[r] = (state, cl)
        if c == "store":
            data = re.match(r"\S+ (\S+),", ins.txt).group(1)
            m = re.match(r"([va])\[(\d+):(\d+)\]", data)
            if m and int(m.group(3)) - int(m.group(2)) >= 2:
                for j in range(int(m.group(2)), int(m.group(3)) + 1):
                    last_def[(m.group(1), j)] = (state, "storedata")
        if c in ("vmem", "dma", "store"):
            d = set(ins.defs) if c == "vmem" else set()
            vm_fifo.append((ins.tag, d))
            for r in d:
                pend_v[r] = "vm"
            max_out = max(max_out, len(vm_fifo))
        if c == "ds":
            lg_fifo.append(set(ins.defs))
            if len(lg_fifo) > 15:
                pass
            for r in ins.defs:
                pend_v[r] = "lg"
        state += 1
    return res, errs, vm_fifo, max_out
```

```python
import sys
import numpy as np
from asmlib import *

KNAME = "standalone__mha_block_cached__near_ridge_kernel"

CFG = dict(
    nt_kv=True,
    nt_w=False,
    timing=False,
    pst_flags=" sc1",
    red_flags=" sc1",
    dspair_v=True,
    dspair_w=False,
    dspair_k=False,
    x_flags="",
    no_x=False,
    no_st=False,
    map_nb=8,
    steptime=False,
    nx_step=10,
    pf_mode=0,
    single=False,
    fused=True,
    flag_step=31,
    poll_step=37,
    kv_rot=False,
    rot_shift=0,
    rot_mul=1,
    trickle=True,
    trk_steps='2.6.10.14',
    pf_mall=True,
    mall_order='xw',
    pfq_step=1,
    pf_x1=False,
    pf_start=False,
    pf_start_at=10,
    kv_same=False,
    pf_code=True,
    pf_data=False,
)

SLOT = 12288
NSLOT = 12
WIN = 5 * SLOT

def ACC(T, qb): return V((T * 3 + qb) * 4, 4)
def SB(p, kt, qb): return V(p * 24 + (kt * 3 + qb) * 4, 4)
def SBr(p, kt, qb, r): return V(p * 24 + (kt * 3 + qb) * 4 + r)
def PB(p, qb): return V(48 + p * 12 + qb * 4, 4)
def PBr(p, qb, r): return V(48 + p * 12 + qb * 4 + r)
NT = 16
def TT(k): return V(72 + k) if k < 8 else V(120 + k - 8)
def NEGM(qb): return V(80 + 4 * qb, 4)
def NEGMr(qb, r=0): return V(80 + 4 * qb + r)
def L(qb): return V(92 + qb)
def LT(qb): return V(95 + qb)
def MT(k): return V(98 + k)
def OACC(p, nt, qb): return V(p * 48 + (nt * 3 + qb) * 4, 4)
def OACCr(p, nt, qb, r): return V(p * 48 + (nt * 3 + qb) * 4 + r)
def CT(u): return V(96 + 4 * u, 4)
def CTr(u, r): return V(96 + 4 * u + r)
def QF(kb, qb): return V(144 + (kb * 3 + qb) * 4, 4)
def QFr(kb, qb, r): return V(144 + (kb * 3 + qb) * 4 + r)
AK = [V(216), V(217)]
AV = [V(218 + i) for i in range(4)]
AW = [V(222 + i) for i in range(4)]
AO = [V(226 + i) for i in range(4)]
DKV = [V(230 + i) for i in range(3)]
DA = [V(233 + i) for i in range(3)]
DB = [V(236 + i) for i in range(3)]
DO = [V(239 + i) for i in range(3)]
AX = [V(242), V(245)]
PSV = V(243)
def PT(k): return V(100 + k)
TID = V(244)
JUNK = A(255)
VPC = V(248, 2)
VLIN = V(250)
VWPF = V(251)
VTK = [V(247), V(251)]
VL128 = V(252)

RD = [V(120, 4), V(124, 4)]
SEL = [V(128, 4), V(132, 4)]
FLG = V(136)
VPOLL, VFV, VOUT, VZ = V(140), V(141), V(142), V(143)
VFO = V(250)
VCHK = V(249)
PART_OFF = 32768
FLAG_OFF = 64 << 20
SRD_DBG, SRD_OUT = S(20, 4), S(12, 4)
s_outp, s_dbgp = (S(18), S(19)), (S(3), S(47))
s_b16, s_kw, s_pb = S(60), S(33), S(34)
s_rl = S(63)
s_ro = [S(16), S(17), S(61), S(62)]
PSL = V(243)
def OA(T, qb): return A((T * 3 + qb) * 4, 4)
def OAr(T, qb, r): return A((T * 3 + qb) * 4 + r)
def XF(par, qb): return A((240 if par == 0 else 0) + qb * 4, 4)
def O0P(kb, qb): return A(144 + (kb * 3 + qb) * 4, 4)
def O0Pr(kb, qb, r): return A(144 + (kb * 3 + qb) * 4 + r)
def FB(buf, f): return A(216 + buf * 8 + f * 4, 4)
def FBh(buf, f, h): return A(216 + buf * 8 + f * 4 + 2 * h, 2)

SRD_A, SRD_K, SRD_V = S(4, 4), S(8, 4), S(12, 4)
SRD_WO, SRD_WS, SRD_B = S(20, 4), S(24, 4), S(28, 4)
s_w3072, s_koff, s_voff, s_aoff, s_boff = S(32), S(33), S(34), S(35), S(36)
s_ainc = [S(37), S(38)]
s_binc = [S(39), S(40)]
s_m0a = [S(41), S(42)]
s_kend, s_vend = S(16), S(17)
s_pst = [S(43), S(44)]
s_h, s_thr = S(45), S(46)
s_c2 = S(48, 2)
s_h0, s_b, s_pj, s_w = S(50), S(51), S(52), S(53)
s_t = [S(54 + i) for i in range(6)]
s_ret = S(90, 2)
s_stamp = 64

THR_BITS = 0x49800000
C_SCALE = np.float32(np.log2(np.e) / np.sqrt(192.0))
C_BITS = int(np.array([C_SCALE], dtype=np.float32).view(np.uint32)[0])


class LaneCalc:
    def __init__(self, out):
        self.out = out
        self.val = {}

    def _v(self, x):
        if isinstance(x, tuple):
            return self.val[x]
        return np.full(256, x, dtype=np.int64)

    def op(self, name, d, a, b, c=None):
        f = {
            "v_and_b32": lambda a, b: a & b,
            "v_or_b32": lambda a, b: a | b,
            "v_xor_b32": lambda a, b: a ^ b,
            "v_add_u32": lambda a, b: a + b,
            "v_sub_u32": lambda a, b: a - b,
            "v_lshlrev_b32": lambda a, b: b << a,
            "v_lshrrev_b32": lambda a, b: b >> a,
            "v_mul_u32_u24": lambda a, b: a * b,
        }[name]
        self.val[d] = f(self._v(a), self._v(b)) & 0xFFFFFFFF
        self.out.append(valu(name, d, a, b))
        return d


def build_lane_consts(out):
    lc = LaneCalc(out)
    tid = TID
    out.append(valu("v_mov_b32", tid, V(0)))
    lc.val[tid] = np.arange(256, dtype=np.int64)
    lane, w, g, i16, r, c = PT(1), PT(2), PT(3), PT(4), PT(5), PT(6)
    t0, t1, t2, t3 = PT(7), PT(8), PT(9), PT(10)
    lc.op("v_and_b32", lane, 63, tid)
    lc.op("v_lshrrev_b32", w, 6, tid)
    lc.op("v_lshrrev_b32", g, 4, lane)
    lc.op("v_and_b32", i16, 15, lane)
    lc.op("v_lshrrev_b32", r, 2, i16)
    lc.op("v_and_b32", c, 3, i16)
    L_ = np.arange(256) & 63
    W_ = np.arange(256) >> 6
    G_, I_ = L_ >> 4, L_ & 15
    R_, C_ = I_ >> 2, I_ & 3
    exp = {}

    lc.op("v_lshrrev_b32", t0, 1, i16)
    lc.op("v_and_b32", t0, 3, t0)
    lc.op("v_lshlrev_b32", t0, 1, t0)
    lc.op("v_xor_b32", t0, g, t0)
    lc.op("v_lshlrev_b32", t0, 4, t0)
    lc.op("v_mul_u32_u24", t1, 384, i16)
    lc.op("v_add_u32", AK[0], t0, t1)
    lc.op("v_xor_b32", t0, 64, t0)
    lc.op("v_add_u32", AK[1], t0, t1)
    f = 2 * ((I_ >> 1) & 3)
    for b in range(2):
        exp[AK[b]] = I_ * 384 + ((4 * b + G_) ^ f) * 16

    cpart = PT(11)
    lc.op("v_lshrrev_b32", t0, 1, c)
    lc.op("v_lshlrev_b32", t0, 4, t0)
    lc.op("v_and_b32", t1, 1, c)
    lc.op("v_lshlrev_b32", t1, 3, t1)
    lc.op("v_add_u32", cpart, t0, t1)
    CP = (C_ >> 1) * 16 + (C_ & 1) * 8

    key = PT(12)
    lc.op("v_lshlrev_b32", key, 2, g)
    lc.op("v_add_u32", key, key, r)
    lc.op("v_lshrrev_b32", t0, 1, key)
    lc.op("v_and_b32", t0, 3, t0)
    lc.op("v_lshlrev_b32", t0, 5, t0)
    lc.op("v_mul_u32_u24", t1, 384, key)
    lc.op("v_add_u32", t1, t1, cpart)
    lc.op("v_lshlrev_b32", t2, 7, key)
    lc.op("v_add_u32", t2, t2, cpart)
    KEY = 4 * G_ + R_
    fv = 2 * ((KEY >> 1) & 3)
    for tt in range(4):
        lc.op("v_xor_b32", t3, 32 * tt, t0)
        lc.op("v_add_u32", AV[tt], t3, t1)
        lc.op("v_add_u32", AO[tt], t3, t2)
        exp[AV[tt]] = KEY * 384 + ((2 * tt) ^ fv) * 16 + CP
        exp[AO[tt]] = KEY * 128 + ((2 * tt) ^ fv) * 16 + CP
    lc.op("v_lshrrev_b32", t0, 1, r)
    lc.op("v_and_b32", t1, 1, g)
    lc.op("v_lshlrev_b32", t1, 1, t1)
    lc.op("v_or_b32", t0, t0, t1)
    lc.op("v_lshlrev_b32", t0, 5, t0)
    lc.op("v_lshlrev_b32", t1, 3, g)
    lc.op("v_add_u32", t1, t1, r)
    lc.op("v_mul_u32_u24", t1, 384, t1)
    lc.op("v_add_u32", t1, t1, cpart)
    ROW = 8 * G_ + R_
    fw = 2 * (((ROW >> 1) & 1) | (((ROW >> 3) & 1) << 1))
    for tt in range(4):
        lc.op("v_xor_b32", t3, 32 * tt, t0)
        lc.op("v_add_u32", AW[tt], t3, t1)
        exp[AW[tt]] = ROW * 384 + ((2 * tt) ^ fw) * 16 + CP

    for i in range(3):
        p = t0
        lc.op("v_add_u32", p, 64 * i, lane)
        lc.op("v_mul_u32_u24", t1, 2731, p)
        lc.op("v_lshrrev_b32", t1, 16, t1)
        lc.op("v_and_b32", t2, 6, t1)
        lc.op("v_and_b32", t3, 7, lane)
        lc.op("v_xor_b32", t2, t2, t3)
        lc.op("v_and_b32", t3, 56, lane)
        lc.op("v_add_u32", t2, t2, t3)
        lc.op("v_lshlrev_b32", t2, 4, t2)
        lc.op("v_mul_u32_u24", t3, 3072, w)
        lc.op("v_add_u32", DKV[i], t2, t3)
        P = 64 * i + L_
        RL = P // 24
        REM = P % 24
        rowg = 8 * W_ + RL
        fk = 2 * ((rowg >> 1) & 3)
        exp[DKV[i]] = rowg * 384 + (REM // 8) * 128 + ((REM % 8) ^ fk) * 16 - 1024 * i
        lc.op("v_and_b32", t2, 2, t1)
        lc.op("v_and_b32", t3, 1, w)
        lc.op("v_lshlrev_b32", t3, 2, t3)
        lc.op("v_or_b32", t2, t2, t3)
        lc.op("v_and_b32", t3, 7, lane)
        lc.op("v_xor_b32", t2, t2, t3)
        lc.op("v_lshlrev_b32", t2, 4, t2)
        lc.op("v_mul_u32_u24", t3, 24, t1)
        lc.op("v_sub_u32", t3, p, t3)
        lc.op("v_and_b32", t3, 24, t3)
        lc.op("v_lshlrev_b32", t3, 4, t3)
        lc.op("v_add_u32", t2, t2, t3)
        lc.op("v_lshlrev_b32", t3, 3, w)
        lc.op("v_add_u32", t3, t3, t1)
        lc.op("v_mul_u32_u24", t3, 12288, t3)
        lc.op("v_add_u32", t2, t2, t3)
        if i:
            lc.op("v_sub_u32", DB[i], t2, PT(13)) if False else None
            lc.out.append(valu("v_subrev_u32", DB[i], 1024 * i, t2))
            lc.val[DB[i]] = (lc.val[t2] - 1024 * i) & 0xFFFFFFFF
        else:
            lc.out.append(valu("v_mov_b32", DB[i], t2))
            lc.val[DB[i]] = lc.val[t2]
        fw2 = 2 * (((rowg >> 1) & 1) | (((rowg >> 3) & 1) << 1))
        exp[DB[i]] = rowg * 12288 + (REM // 8) * 128 + ((REM % 8) ^ fw2) * 16 - 1024 * i
        lc.op("v_lshrrev_b32", t1, 3, lane)
        lc.op("v_and_b32", t2, 6, t1)
        lc.op("v_and_b32", t3, 7, lane)
        lc.op("v_xor_b32", t2, t2, t3)
        lc.op("v_lshlrev_b32", t2, 4, t2)
        lc.op("v_mul_u32_u24", t3, 24, w)
        lc.op("v_add_u32", t3, t3, t1)
        lc.op("v_add_u32", t3, 8 * i, t3)
        lc.op("v_mul_u32_u24", t3, 1280, t3)
        lc.op("v_add_u32", t2, t2, t3)
        if i:
            lc.out.append(valu("v_subrev_u32", DO[i], 1024 * i, t2))
            lc.val[DO[i]] = (lc.val[t2] - 1024 * i) & 0xFFFFFFFF
        else:
            lc.out.append(valu("v_mov_b32", DO[i], t2))
            lc.val[DO[i]] = lc.val[t2]
        rowo = 24 * W_ + 8 * i + (L_ >> 3)
        fo = 2 * ((rowo >> 1) & 3)
        exp[DO[i]] = rowo * 1280 + ((L_ & 7) ^ fo) * 16 - 1024 * i
    lc.op("v_lshrrev_b32", t0, 3, lane)
    lc.op("v_and_b32", t1, 6, t0)
    lc.op("v_and_b32", t2, 7, lane)
    lc.op("v_xor_b32", t1, t1, t2)
    lc.op("v_lshlrev_b32", t1, 4, t1)
    lc.op("v_mul_u32_u24", t2, 48, w)
    lc.op("v_add_u32", t0, t0, t2)
    lc.op("v_mul_u32_u24", t0, 1280, t0)
    lc.op("v_add_u32", DA[0], t0, t1)
    lc.op("v_add_u32", DA[1], 8 * 1280 - 1024, DA[0])
    lc.op("v_add_u32", DA[2], 2 * (8 * 1280 - 1024), DA[0])
    for i in range(3):
        exp[DA[i]] = (48 * W_ + 8 * i + (L_ >> 3)) * 1280 + ((L_ & 7) ^ ((L_ >> 3) & 6)) * 16 - 1024 * i
    lc.op("v_and_b32", t1, 6, i16)
    lc.op("v_xor_b32", t1, t1, g)
    lc.op("v_lshlrev_b32", t1, 4, t1)
    lc.op("v_lshlrev_b32", t0, 7, i16)
    lc.op("v_mul_u32_u24", t2, 6144, w)
    lc.op("v_add_u32", t0, t0, t2)
    lc.op("v_add_u32", AX[0], t0, t1)
    lc.op("v_xor_b32", t1, 64, t1)
    lc.op("v_add_u32", AX[1], t0, t1)
    for b in range(2):
        exp[AX[b]] = W_ * 6144 + I_ * 128 + ((4 * b + G_) ^ (I_ & 6)) * 16
    lc.out += [valu("v_mov_b32", VFO, 0x7FFFFF00), I(f"v_cmp_eq_u32 vcc, 0, {rtxt(tid)}", "valu", [], [tid]), nop(1),
               valu("v_mov_b32", t1, 0),
               I(f"v_cndmask_b32 {rtxt(VFO)}, {rtxt(VFO)}, {rtxt(t1)}, vcc", "valu", [VFO], [VFO, t1])]
    lc.op("v_lshlrev_b32", t0, 13, w)
    lc.op("v_lshlrev_b32", t1, 7, lane)
    lc.op("v_add_u32", VL128, t0, t1)
    exp[VL128] = W_ * 8192 + L_ * 128
    lc.op("v_mul_u32_u24", t0, 60, w)
    lc.op("v_add_u32", VWPF, t0, lane)
    exp[VWPF] = W_ * 60 + L_
    lc.op("v_mul_u32_u24", t0, 6144, w)
    lc.op("v_lshlrev_b32", t1, 4, lane)
    lc.op("v_add_u32", PSV, t0, t1)
    exp[PSV] = W_ * 6144 + L_ * 16
    for k, vv in exp.items():
        assert (vv >= 0).all(), k
        assert (lc.val[k] == vv).all(), (k, lc.val[k][:70], vv[:70])
    return w


def a_item(j):
    if j == 0: return ("K", 0)
    if j == 1: return ("K", 1)
    if j == 31: return ("V", 15)
    if j % 2 == 0: return ("V", (j - 2) // 2)
    return ("K", (j + 1) // 2)


HEAD_ITEMS = 72


def item_kind(idx):
    if idx >= 2 * HEAD_ITEMS + 40: return None
    if idx >= 2 * HEAD_ITEMS: return "O"
    r = idx % HEAD_ITEMS
    if r < 40: return "X" if r % 4 < 2 else "W"
    return a_item(r - 40)[0]


class Step:
    def __init__(self, aitem, xitem=None):
        self.aitem, self.xitem = aitem, xitem
        self.gaps = None


def program_steps():
    st = []
    for h in range(2):
        b = h * HEAD_ITEMS
        st += [Step(b + 4 * (t // 2) + 2 + t % 2, b + 4 * (t // 2)) for t in range(20)]
        st += [Step(b + 40 + j) for j in range(32)]
    st += [Step(2 * HEAD_ITEMS + j) for j in range(40)]
    return st


class Base:
    def __init__(self, regs_):
        self.regs = regs_
        self.base = [0] * len(regs_)


class Gen:
    def __init__(self, cfg):
        self.cfg = cfg
        self.bases = {"K": Base(AK), "V": Base(AV), "W": Base(AW), "O": Base(AO), "X": Base(AX)}
        self.steps = program_steps()
        self.new_items = []
        issued = 10
        for s_, st in enumerate(self.steps):
            done = set()
            for p_ in range(s_):
                done.add(self.steps[p_].aitem)
            for p_ in range(s_ + 1):
                x_ = self.steps[p_].xitem
                if x_ is not None and (p_ % 52) % 2 == 1:
                    done.add(x_); done.add(x_ + 1)
            free = -1
            while free + 1 in done: free += 1
            hi = min(free + NSLOT, issued + 2)
            new = [i for i in range(issued + 1, hi + 1) if item_kind(i) is not None]
            self.new_items.append(new)
            issued = max(issued, hi)
        self.rare_sites = []

    def frag_reads(self, kind, idx, f, buf):
        slot = (idx % NSLOT) * SLOT
        win = (slot // WIN) * WIN
        off = slot - win
        B = self.bases[kind]
        if kind == "K":
            kt, kb = f // 6, f % 6
            ri = kb % 2
            return [(ds_read("ds_read_b128", FB(buf, f % 2), AK[ri], off + kt * 6144 + (kb // 2) * 128), ri, win)]
        if kind == "V":
            ri, j = f % 4, f // 4
            o, d2 = off + 128 * j, 6144
        elif kind == "W":
            ri, j = f % 4, f // 4
            o, d2 = off + 128 * j, 1536
        else:
            ri, j = f % 4, f // 4
            o, d2 = off + 4096 * j, 2048
        return [(ds_read("ds_read_b64_tr_b16", FBh(buf, f % 2, 0), B.regs[ri], o), ri, win),
                (ds_read("ds_read_b64_tr_b16", FBh(buf, f % 2, 1), B.regs[ri], o + d2), ri, win)]

    def place_reads(self, gaps, g0, kind, idx, grp):
        buf = grp % 3
        rl = []
        for f in (2 * grp, 2 * grp + 1):
            rl += self.frag_reads(kind, idx, f, buf)
        B = self.bases[kind]
        fix = []
        for ins, ri, win in rl:
            if B.base[ri] != win:
                d = win - B.base[ri]
                B.base[ri] = win
                if d > 0:
                    fix.append(valu("v_add_u32", B.regs[ri], d, B.regs[ri]))
                else:
                    fix.append(valu("v_subrev_u32", B.regs[ri], -d, B.regs[ri]))
        for k, fx in enumerate(fix):
            gi = g0 - 2 + (k % 2)
            gaps[gi].va.append(fx)
        pair = self.cfg["dspair_k"] if kind == "K" else (self.cfg["dspair_v"] if kind == "V" else self.cfg["dspair_w"])
        n = len(rl)
        for k, (ins, ri, win) in enumerate(rl):
            gi = g0 + (k // 2 if pair else k)
            gaps[gi].ds.append(ins)
        return n

    def nreads(self, kind):
        return 2 if kind == "K" else 4

    def stream_of(self, idx):
        kind = item_kind(idx)
        if kind in ("K", "V"): return kind
        n = idx % HEAD_ITEMS if idx < 2 * HEAD_ITEMS else idx - 2 * HEAD_ITEMS
        return "A" if n % 4 < 2 else "B"

    def dma_instr(self, idx, i):
        st = self.stream_of(idx)
        tag = ("item", idx)
        if st == "K": return dma(DKV[i], SRD_K, s_koff, 1024 * i, self.cfg["nt_kv"], tag=tag)
        if st == "V": return dma(DKV[i], SRD_V, s_voff, 1024 * i, self.cfg["nt_kv"], tag=tag)
        if st == "A": return dma(DA[i], SRD_A, s_aoff, 1024 * i, self.cfg["nt_w"], tag=tag)
        return dma(DB[i], SRD_B, s_boff, 1024 * i, self.cfg["nt_w"], tag=tag)

    def dma_adv(self, idx):
        st = self.stream_of(idx)
        inc = 0 if self.cfg["kv_same"] else SLOT
        if st in ("K", "V") and self.cfg["kv_rot"]:
            off, end = (s_koff, s_kend) if st == "K" else (s_voff, s_vend)
            seq = [salu("s_add_u32", off, off, inc), scmp("s_cmp_eq_u32", off, end),
                   salu("s_cselect_b32", s_t[4], 196608, 0), salu("s_sub_u32", off, off, s_t[4])]
            n = a_item(idx % HEAD_ITEMS - 40)[1]
            if n == 15:
                seq += [salu("s_add_u32", off, off, 196608), salu("s_add_u32", end, end, 196608)]
            return seq
        if st == "K": return salu("s_add_u32", s_koff, s_koff, inc)
        if st == "V": return salu("s_add_u32", s_voff, s_voff, inc)
        n = idx % HEAD_ITEMS if idx < 2 * HEAD_ITEMS else idx - 2 * HEAD_ITEMS
        k = n % 2
        if st == "A": return salu("s_add_u32", s_aoff, s_aoff, s_ainc[k])
        return salu("s_add_u32", s_boff, s_boff, s_binc[k])

    def set_m0(self, idx):
        if self.stream_of(idx) == "A":
            n = idx % HEAD_ITEMS if idx < 2 * HEAD_ITEMS else idx - 2 * HEAD_ITEMS
            return salu("s_add_u32", "m0", s_m0a[n % 2], (idx % NSLOT) * SLOT)
        return salu("s_add_u32", "m0", s_w3072, (idx % NSLOT) * SLOT)

    def x_reads(self, idx, half):
        slot = (idx % NSLOT) * SLOT
        assert idx % 2 == 0 and (idx % NSLOT) + 1 < NSLOT
        win = (slot // WIN) * WIN
        B = self.bases["X"]
        fix = []
        for ri in range(2):
            if B.base[ri] != win:
                d = win - B.base[ri]
                B.base[ri] = win
                fix.append(valu("v_add_u32", AX[ri], d, AX[ri]) if d > 0 else valu("v_subrev_u32", AX[ri], -d, AX[ri]))
        return fix, [ds_read("ds_read_b128", XF(half, qb), AX[half], slot - win + 2048 * qb) for qb in range(3)]

    def frame(self, s_, mf, defer=False):
        st = self.steps[s_]
        nx = self.steps[s_ + 1] if s_ + 1 < len(self.steps) else None
        idx = st.aitem
        kind = item_kind(idx)
        gaps = [Gap(mf(i, FB((i // 6) % 3, (i // 3) % 2))) for i in range(36)]
        nds = [0] * 6
        for G in range(6):
            if G < 4:
                nds[G] = self.place_reads(gaps, 6 * G, kind, idx, G + 2)
            elif nx is not None and not defer:
                nds[G] = self.place_reads(gaps, 6 * G, item_kind(nx.aitem), nx.aitem, G - 4)
        if nx is not None and not defer and nx.xitem is not None:
            fix, rd = self.x_reads(nx.xitem, ((s_ + 1) % 52) % 2)
            for k_, f in enumerate(fix): gaps[20 + k_].va.append(f)
            gaps[24].ds.append(rd[0]); gaps[25].ds.append(rd[1]); gaps[26].ds.append(rd[2])
            nds[4] += 3
        for G in range(6):
            gi = 6 * G + 5
            if G == 3 and nx is not None:
                tags = [("item", nx.aitem)] + ([("item", nx.xitem), ("item", nx.xitem + 1)] if nx.xitem is not None else [])
                gaps[gi].sc.append(WaitTag(tags, lgkm=nds[G]))
                gaps[gi].sc.append(barrier())
            elif G == 5:
                if nx is not None and not defer:
                    gaps[gi].sc.append(wait(lgkm=nds[5]))
            else:
                gaps[gi].sc.append(wait(lgkm=nds[G]))
        if self.cfg["steptime"]:
            r = s_ % 52 if s_ < 104 else s_ - 104
            gaps[24].post.append(I("s_memtime s[92:93]", "salu"))
            seq = []
            seq = [raw("s_waitcnt lgkmcnt(0)"), raw(f"v_writelane_b32 v{253 if s_ < 104 else 255}, s92, {r}", "valu")]
            gaps[33].post += seq
        st.gaps = gaps
        return gaps

    def place_ring_dma(self, s0, s1):
        for s_ in range(max(s0 - 1, -1), s1):
            new = [10] if s_ < 0 else self.new_items[s_]
            carry = s_ < 0
            if not new: continue
            if len(new) == 1:
                plan = [(new[0], [(0, 28), (1, 4), (1, 16)])]
            elif len(new) == 2:
                plan = [(new[0], [(0, 28), (0, 34), (1, 4)]), (new[1], [(1, 10), (1, 16), (1, 22)])]
            else:
                raise AssertionError("three items")
            for idx, pos in plan:
                for i, (ds_, gi) in enumerate(pos):
                    t = s_ + ds_
                    if t < s0 or t >= s1: continue
                    g = self.steps[t].gaps
                    if i == 0: g[gi - 2].sc.append(self.set_m0(idx))
                    g[gi].vm.append(self.dma_instr(idx, i))
                    if i == 2:
                        adv = self.dma_adv(idx)
                        if isinstance(adv, list):
                            g[gi + 2].sc += adv
                        else:
                            g[gi + 2].sc.append(adv)

    def q_phase(self, h):
        s0 = 52 * h
        for t in range(20):
            def mf(i, fr, t=t):
                T, qb = i // 3, i % 3
                return mfma(ACC(T, qb), fr, XF(t % 2, qb), 0 if t == 0 else ACC(T, qb))
            self.frame(s0 + t, mf)

    def q_pack(self):
        out = []
        fr = [(kb, qb) for kb in range(6) for qb in range(3)]
        for b0 in range(0, 18, 3):
            batch = fr[b0:b0 + 3]
            for kb, qb in batch:
                for T in (2 * kb, 2 * kb + 1):
                    a = ACC(T, qb)[1]
                    for h in (0, 2):
                        out.append(valu("v_pk_mul_f32", V(a + h, 2), V(a + h, 2), s_c2))
            for kb, qb in batch:
                a, b = ACC(2 * kb, qb)[1], ACC(2 * kb + 1, qb)[1]
                out.append(valu("v_cvt_pk_bf16_f32", QFr(kb, qb, 0), V(a), V(a + 1)))
                out.append(valu("v_cvt_pk_bf16_f32", QFr(kb, qb, 1), V(a + 2), V(a + 3)))
                out.append(valu("v_cvt_pk_bf16_f32", QFr(kb, qb, 2), V(b), V(b + 1)))
                out.append(valu("v_cvt_pk_bf16_f32", QFr(kb, qb, 3), V(b + 2), V(b + 3)))
            for kb, qb in batch:
                out.append(perm("v_permlane32_swap_b32", QFr(kb, qb, 0), QFr(kb, qb, 2)))
                out.append(perm("v_permlane32_swap_b32", QFr(kb, qb, 1), QFr(kb, qb, 3)))
            for kb, qb in batch:
                out.append(perm("v_permlane16_swap_b32", QFr(kb, qb, 0), QFr(kb, qb, 2)))
                out.append(perm("v_permlane16_swap_b32", QFr(kb, qb, 1), QFr(kb, qb, 3)))
        return autonop(out)

    def max_ops(self, p):
        ops = []
        last = {}

        def add(ins, deps=(), key=None):
            o = Op(ins, deps)
            ops.append(o)
            return o

        m = [MT(qb) for qb in range(3)]
        y = [MT(3 + qb) for qb in range(3)]
        prev = [None] * 3
        for qb in range(3):
            vals = [SBr(p, kt, qb, r) for kt in range(2) for r in range(4)]
            o = add(valu("v_max3_f32", m[qb], vals[0], vals[1], vals[2]))
            o = add(valu("v_max3_f32", m[qb], m[qb], vals[3], vals[4]), [(o, 0)])
            o = add(valu("v_max3_f32", m[qb], m[qb], vals[5], vals[6]), [(o, 0)])
            o = add(valu("v_max_f32", m[qb], m[qb], vals[7]), [(o, 0)])
            prev[qb] = o
        for sw in ("v_permlane32_swap_b32", "v_permlane16_swap_b32"):
            for qb in range(3):
                prev[qb] = add(valu("v_mov_b32", y[qb], m[qb]), [(prev[qb], 0)])
            for qb in range(3):
                prev[qb] = add(perm(sw, m[qb], y[qb]), [(prev[qb], 2)])
            for qb in range(3):
                prev[qb] = add(valu("v_max_f32", m[qb], m[qb], y[qb]), [(prev[qb], 1)])
        fin = []
        for qb in range(3):
            o = add(valu("v_xor_b32", NEGMr(qb, 0), 0x80000000, m[qb]), [(prev[qb], 0)])
            fin.append(o)
            for r in range(1, 4):
                add(valu("v_mov_b32", NEGMr(qb, r), NEGMr(qb, 0)), [(o, 0)])
        return ops, fin

    def softmax_ops(self, p, sub_deps=None, earliest_kt=(0, 0), lacc=False):
        ops = []
        tuse = [[] for _ in range(NT)]
        tk = 0
        lt_prev = [None] * 3
        lacc_op = [None] * 3
        if lacc:
            for qb in range(3):
                lacc_op[qb] = Op(valu("v_add_f32", L(qb), L(qb), LT(qb)), [], earliest=earliest_kt[0])
                ops.append(lacc_op[qb])
        for kt in range(2):
            for qb in range(3):
                ex = []
                subs = []
                if sub_deps is not None:
                    for r in range(4):
                        o = Op(valu("v_add_f32", SBr(p, kt, qb, r), SBr(p, kt, qb, r), NEGMr(qb, 0)),
                               [(sub_deps[qb], 0)] if sub_deps[qb] is not None else [], earliest=earliest_kt[kt])
                        ops.append(o)
                        subs.append(o)
                for h in range(2):
                    pair = []
                    for r in (2 * h, 2 * h + 1):
                        t = tk % NT
                        deps = [(c, 0) for c in tuse[t]]
                        if subs:
                            deps.append((subs[r], 0))
                        e = Op(vexp(TT(t), SBr(p, kt, qb, r)), deps, earliest=earliest_kt[kt])
                        ops.append(e)
                        tuse[t] = []
                        pair.append((e, t))
                        tk += 1
                    (e0, t0), (e1, t1) = pair
                    if lt_prev[qb] is None:
                        a = Op(valu("v_add_f32", LT(qb), TT(t0), TT(t1)), [(e0, 1), (e1, 1)] +
                               ([(lacc_op[qb], 0)] if lacc_op[qb] is not None else []))
                        ops.append(a)
                        tuse[t0].append(a); tuse[t1].append(a)
                        lt_prev[qb] = a
                    else:
                        a = Op(valu("v_add_f32", LT(qb), LT(qb), TT(t0)), [(e0, 1), (lt_prev[qb], 0)])
                        ops.append(a); tuse[t0].append(a)
                        a2 = Op(valu("v_add_f32", LT(qb), LT(qb), TT(t1)), [(e1, 1), (a, 0)])
                        ops.append(a2); tuse[t1].append(a2)
                        lt_prev[qb] = a2
                    c = Op(valu("v_cvt_pk_bf16_f32", PBr(p, qb, 2 * kt + h), TT(t0), TT(t1)), [(e0, 1), (e1, 1)])
                    ops.append(c)
                    tuse[t0].append(c); tuse[t1].append(c)
        return ops, lt_prev

    def check_ops(self, lt_last, p):
        a = Op(valu("v_max3_f32", MT(6), LT(0), LT(1), LT(2)), [(o, 0) for o in lt_last])
        b = Op(I(f"v_cmp_lt_f32 vcc, {rtxt(s_thr)}, {rtxt(MT(6))}", "valu", [], [MT(6), s_thr]), [(a, 0)])
        return [a, b]

    def check_branch(self, p):
        k = len(self.rare_sites)
        self.rare_sites.append(p)
        return [branch("s_cbranch_vccnz", f"L_rs{k}"), label(f"L_rr{k}")]

    def l_acc(self):
        return [valu("v_add_f32", L(qb), L(qb), LT(qb)) for qb in range(3)]

    def emit_tail(self, pend):
        seq = [o.ins for o in pend]
        for o in pend:
            o.gap = 10 ** 9
        return seq

    def a_frames(self, h):
        for j in range(32):
            kind, n = a_item(j)
            if kind == "K":
                p = n % 2

                def mf(i, fr, p=p, n=n):
                    f, qb = i // 3, i % 3
                    kt, kb = f // 6, f % 6
                    if kb == 0:
                        c = 0 if n < 2 else NEGM(qb)
                    else:
                        c = SB(p, kt, qb)
                    return mfma(SB(p, kt, qb), fr, QF(kb, qb), c)
            else:
                p = n % 2

                def mf(i, fr, p=p, n=n):
                    T, qb = i // 3, i % 3
                    return mfma(OA(T, qb), fr, PB(p, qb), 0 if n == 0 else OA(T, qb))
            self.frame(52 * h + 20 + j, mf, defer=(j == 31))

    def a_phase(self, h, nx_switch):
        out = []
        steps = [self.steps[52 * h + 20 + j].gaps for j in range(32)]
        gaps = [g for st in steps for g in st]

        def G(j, i=0): return 36 * j + i

        post = {j: [] for j in range(32)}
        pre = {j: [] for j in range(32)}
        mops, fin = self.max_ops(0)
        for o in mops: o.earliest = G(1, 0)
        sm0, lt0 = self.softmax_ops(0, sub_deps=fin, earliest_kt=(G(1, 0), G(1, 2)))
        pend = list_schedule(gaps, mops + sm0, G(1, 0), G(2, 0))
        post[1] += autonop_tail(self.emit_tail(pend))
        post[1] += [valu("v_mov_b32", L(qb), LT(qb)) for qb in range(3)]
        for n in range(1, 16):
            p = n % 2
            j0 = 2 * n
            j1 = j0 + 2 if n <= 14 else j0 + 1
            sub = [None, None, None] if n == 1 else None
            sm, ltl = self.softmax_ops(p, sub_deps=sub, earliest_kt=(G(j0, 0), G(j0, 3)), lacc=(n > 1))
            chk = self.check_ops(ltl, p)
            pend = list_schedule(gaps, sm + chk, G(j0, 0), G(j1, 0))
            if pend: print(f"tile {n}: {len(pend)} ops in tail", file=sys.stderr)
            post[j1 - 1] += autonop_tail(self.emit_tail(pend))
            post[j1 - 1] += self.check_branch(p)
            if n == 15: post[j1 - 1] += self.l_acc()
        pre[int(self.cfg['nx_step'])] += nx_switch
        for j in range(32):
            out += pre[j]
            for g in steps[j]:
                out += g.flat()
            out += post[j]
        return out

    def rinv_ops(self):
        out = []
        y = [MT(3 + qb) for qb in range(3)]
        for sw in ("v_permlane32_swap_b32", "v_permlane16_swap_b32"):
            for qb in range(3): out.append(valu("v_mov_b32", y[qb], L(qb)))
            for qb in range(3): out.append(perm(sw, L(qb), y[qb]))
            for qb in range(3): out.append(valu("v_add_f32", L(qb), L(qb), y[qb]))
        for qb in range(3): out.append(vrcp(MT(8 + 2 * qb), L(qb)))
        for qb in range(3): out.append(valu("v_mov_b32", MT(9 + 2 * qb), MT(8 + 2 * qb)))
        return out

    def first_reads(self, kind, idx):
        out = []
        B = self.bases[kind]
        for grp in range(2):
            for f in (2 * grp, 2 * grp + 1):
                for ins, ri, win in self.frag_reads(kind, idx, f, grp % 3):
                    if B.base[ri] != win:
                        d = win - B.base[ri]
                        B.base[ri] = win
                        out.append(valu("v_add_u32", B.regs[ri], d, B.regs[ri]) if d > 0 else
                                   valu("v_subrev_u32", B.regs[ri], -d, B.regs[ri]))
                    out.append(ins)
        for ri in range(len(B.regs)):
            win = ((idx % NSLOT) * SLOT // WIN) * WIN
            if B.base[ri] != win:
                d = win - B.base[ri]
                B.base[ri] = win
                out.append(valu("v_add_u32", B.regs[ri], d, B.regs[ri]) if d > 0 else
                           valu("v_subrev_u32", B.regs[ri], -d, B.regs[ri]))
        return out

    def n_phase(self, h):
        if h == 0:
            fix, rd = self.x_reads(HEAD_ITEMS, 0)
            out = fix + rd + self.first_reads("W", HEAD_ITEMS + 2)
        else:
            out = self.first_reads("O", 2 * HEAD_ITEMS)
            if self.cfg["fused"]:
                out += self.reduce_setup()
        out += self.rinv_ops()
        tmp = [V(0 + 8 * k, 8) for k in range(3)]
        pk = [V(24 + 4 * k, 4) for k in range(3)]
        for kb in range(6):
            for qb in range(3):
                t = tmp[qb][1]
                for tt, T in enumerate((2 * kb, 2 * kb + 1)):
                    for r in range(4):
                        out.append(I(f"v_accvgpr_read_b32 v{t + 4 * tt + r}, {rtxt(OAr(T, qb, r))}", "valu",
                                     [V(t + 4 * tt + r)], [OAr(T, qb, r)]))
            for qb in range(3):
                t = tmp[qb][1]
                for h2 in range(4):
                    out.append(valu("v_pk_mul_f32", V(t + 2 * h2, 2), V(t + 2 * h2, 2), V(MT(8 + 2 * qb)[1], 2)))
            for qb in range(3):
                t = tmp[qb][1]
                for r in range(4):
                    d = V(pk[qb][1] + r) if h == 0 else QFr(kb, qb, r)
                    out.append(valu("v_cvt_pk_bf16_f32", d, V(t + 2 * r), V(t + 2 * r + 1)))
            if h == 0:
                for qb in range(3):
                    for r in range(4):
                        out.append(I(f"v_accvgpr_write_b32 {rtxt(O0Pr(kb, qb, r))}, v{pk[qb][1] + r}", "valu",
                                     [O0Pr(kb, qb, r)], [V(pk[qb][1] + r)]))
        out.append(wait(lgkm=4))
        return autonop(out)

    def o_phase(self):
        out = []
        for j in range(40):
            c, s = j // 4, j % 4
            p = c % 2

            def mf(i, fr, s=s, p=p):
                f, qb = i // 3, i % 3
                jj, nt = f // 4, f % 4
                ks = 3 * s + jj
                h, kb = ks // 6, ks % 6
                b = O0P(kb, qb) if h == 0 else QF(kb, qb)
                return mfma(OACC(p, nt, qb), fr, b, 0 if ks == 0 else OACC(p, nt, qb))
            self.frame(104 + j, mf)
        self.place_ring_dma(104, 144)
        gaps = [g for j in range(40) for g in self.steps[104 + j].gaps]

        def cvts(p):
            ops = []
            for ntp in range(2):
                for qb in range(3):
                    u = ntp * 3 + qb
                    for h in range(2):
                        a = OACC(p, 2 * ntp + h, qb)[1]
                        ops.append(valu("v_cvt_pk_bf16_f32", CTr(u, 2 * h), V(a), V(a + 1)))
                        ops.append(valu("v_cvt_pk_bf16_f32", CTr(u, 2 * h + 1), V(a + 2), V(a + 3)))
            return ops

        def store(u, c):
            return vstore(CT(u), PSV, SRD_WS, s_pst[u // 4], (u % 4) * 1024, self.cfg["pst_flags"], tag=("st", c))

        def adv():
            return [salu("s_add_u32", s_pst[0], s_pst[0], 24576), salu("s_add_u32", s_pst[1], s_pst[1], 24576)]

        spos = [(0, 22), (0, 34), (1, 10), (1, 22), (1, 34), (2, 10)]
        for c in range(1, 10):
            pp = (c - 1) % 2
            g0 = 36 * (4 * c)
            ops = [Op(x, earliest=g0 + 3) for x in cvts(pp)]
            pend = list_schedule(gaps, ops, g0, g0 + 36)
            assert not pend
            for u, (s, gi) in enumerate(spos):
                assert max(o.gap for o in ops[4 * u:4 * u + 4]) < g0 + 36 * s + gi
                if not self.cfg["no_st"]:
                    gaps[36 * (4 * c + s) + gi].vm.append(store(u, c - 1))
            a = adv()
            gaps[36 * (4 * c + 3) + 0].sc.append(a[0])
            gaps[36 * (4 * c + 3) + 1].sc.append(a[1])
        fused = self.cfg["fused"]
        post = {j: [] for j in range(40)}
        if fused:
            for k, (c, fs) in enumerate(((2, 17), (5, 29), (7, 37))):
                for x in gaps[36 * fs + 23].sc:
                    if isinstance(x, WaitTag):
                        x.tag = ("waittag", x.tag[1] + (("st", c),))
                gaps[36 * fs + 24].va.insert(0, valu("v_mov_b32", VFV, k + 1))
                gaps[36 * fs + 29].vm.append(self.flag_store())
            for r, (ps, cs, nper) in enumerate(((19, 21, 2), (31, 33, 3))):
                gaps[36 * ps + 35].vm.append(self.poll_load(("poll", r + 1)))
                post[cs - 1] += self.check_spin(r + 1, f"L_sp{r + 1}", WaitTag([("poll", r + 1)]))
                post[cs - 1] += [salu("s_add_u32", s_rl, s_pb, 64 * 1024 * r)]
                j = 0
                st_ = cs
                while j < 16:
                    for gi in (35, 11, 17)[:nper]:
                        if j == 16: break
                        if st_ == cs and gi < 24: continue
                        gaps[36 * st_ + gi].vm.append(vload(A(64 * r + 4 * j, 4), PSL, SRD_WS, s_rl, 0, self.cfg["red_flags"], tag=("red", r, j)))
                        gaps[36 * st_ + gi].post.append(salu("s_add_u32", s_rl, s_rl, 245760))
                        j += 1
                    st_ += 1
                assert st_ <= 40
            post[31] += self.red_mfma(0)
            gaps[36 * 39 + 29].vm.append(self.poll_load(("poll", 3)))
        for j in range(40):
            for g in self.steps[104 + j].gaps:
                out += g.flat()
            out += post[j]
        tail = [nop(7)] + cvts(1)
        tail += [store(u, 9) for u in range(6)]
        out += autonop(tail)
        if fused:
            out += self.reduce_tail()
        return out

    def flag_store(self):
        return vstore(VFV, VFO, SRD_WS, s_t[5], 0, " sc1", tag=("flag",), width=1)

    def poll_load(self, tag):
        return I(f"buffer_load_dword {rtxt(FLG)}, {rtxt(VPOLL)}, {rtxt(SRD_WS)}, {rtxt(s_b16)} offen sc1", "vmem", [FLG],
                 [VPOLL, SRD_WS, s_b16], tag=tag)

    def poll_test(self, k):
        return [I(f"v_cmp_le_u32 vcc, {k}, {rtxt(FLG)}", "valu", [], [FLG]), raw("s_nop 0"),
                raw(f"s_and_b32 {rtxt(s_t[1])}, vcc_lo, 0xffff"), raw(f"s_cmp_eq_u32 {rtxt(s_t[1])}, 0xffff")]

    def check_spin(self, k, name, first_wait):
        body = [raw("s_sleep 8"), I(self.poll_load(None).txt, "salu"), raw("s_waitcnt vmcnt(0)")]
        body += [I(x.txt, "salu") for x in self.poll_test(k)]
        o = [first_wait, scmp("s_cmp_eq_u32", s_w, 0), branch("s_cbranch_scc0", f"{name}_ok")]
        o += self.poll_test(k) + [branch("s_cbranch_scc1", f"{name}_ok"), salu("s_mov_b32", s_t[0], 1 << 18), label(f"{name}_loop")]
        o += [salu("s_sub_u32", s_t[0], s_t[0], 1), branch("s_cbranch_scc1", f"{name}_ok")]
        o += body + [branch("s_cbranch_scc0", f"{name}_loop"), label(f"{name}_ok")]
        return o

    def reduce_setup(self, pro_ptrs=True):
        o = []
        o += srd(SRD_OUT, None, 16 * 192 * 640 * 2, s_outp)
        lane, g_, m_, t0, t1, d1 = V(96), V(97), V(98), V(99), V(100), V(101)
        o += [WaitTag([("chk",)]), scmp("s_cmp_eq_u32", s_w, 0), branch("s_cbranch_scc0", "L_chk_ok"),
              I(f"v_readfirstlane_b32 {rtxt(s_t[1])}, {rtxt(VCHK)}", "valu", [s_t[1]], [VCHK]), raw("s_nop 3"),
              scmp("s_cmp_eq_u32", s_t[1], 16), branch("s_cbranch_scc1", "L_chk_ok"),
              salu("s_mov_b32", s_t[0], 1 << 18), label("L_chk_loop"),
              salu("s_sub_u32", s_t[0], s_t[0], 1), branch("s_cbranch_scc1", "L_chk_ok"), raw("s_sleep 8"),
              I(f"buffer_load_dword {rtxt(VCHK)}, {rtxt(VFO)}, {rtxt(SRD_DBG)}, {rtxt(s_b16)} offen sc1", "salu"), raw("s_waitcnt vmcnt(0)"),
              I(f"v_readfirstlane_b32 {rtxt(s_t[1])}, {rtxt(VCHK)}", "salu"), raw("s_nop 3"),
              scmp("s_cmp_eq_u32", s_t[1], 16), branch("s_cbranch_scc0", "L_chk_loop"), label("L_chk_ok")]
        o += [valu("v_and_b32", lane, 63, TID), valu("v_lshrrev_b32", g_, 4, lane), valu("v_and_b32", m_, 15, lane),
              valu("v_mul_u32_u24", t0, 1280, m_), valu("v_lshlrev_b32", t1, 4, g_), valu("v_add_u32", VOUT, t0, t1),
              valu("v_mov_b32", VZ, 0),
              valu("v_lshlrev_b32", t0, 2, TID), valu("v_mov_b32", VPOLL, 0x7FFFFF00),
              I(f"v_cmp_gt_u32 vcc, 16, {rtxt(TID)}", "valu", [], [TID]), nop(1),
              I(f"v_cndmask_b32 {rtxt(VPOLL)}, {rtxt(VPOLL)}, {rtxt(t0)}, vcc", "valu", [VPOLL], [VPOLL, t0]),
              valu("v_lshrrev_b32", t0, 2, m_), valu("v_and_b32", t1, 1, t0), valu("v_lshlrev_b32", t1, 4, t1),
              valu("v_lshrrev_b32", t0, 1, t0), valu("v_lshlrev_b32", t0, 2, t0), valu("v_add_u32", t1, t1, t0),
              valu("v_and_b32", t0, 3, m_), valu("v_add_u32", t1, t1, t0),
              valu("v_lshlrev_b32", t0, 3, g_), valu("v_sub_u32", d1, t1, t0)]
        for k in range(2):
            if k: o.append(valu("v_add_u32", d1, 8, d1))
            o += [valu("v_and_b32", t0, 1, d1), valu("v_lshlrev_b32", t0, 4, t0), valu("v_mov_b32", t1, 0x3F80),
                  valu("v_lshlrev_b32", t1, t0, t1), valu("v_lshrrev_b32", t0, 1, d1)]
            for d in range(4):
                o += [I(f"v_cmp_eq_u32 vcc, {d}, {rtxt(t0)}", "valu", [], [t0]), nop(1),
                      I(f"v_cndmask_b32 v{SEL[k][1] + d}, {rtxt(VZ)}, {rtxt(t1)}, vcc", "valu", [V(SEL[k][1] + d)], [VZ, t1])]
        o += [salu("s_lshl_b32", s_b16, s_b, 8), salu("s_add_u32", s_b16, s_b16, FLAG_OFF),
              salu("s_lshl_b32", s_t[0], s_pj, 2), salu("s_add_u32", s_t[5], s_b16, s_t[0]),
              salu("s_add_u32", s_kw, s_t[0], s_w)]
        for r in range(4):
            n, c, rem, w2, u, ntp, qb, a = s_t[0], s_t[1], s_t[2], s_t[3], S(63), S(100), S(101), s_ro[r]
            o += [salu("s_add_u32", n, s_kw, 64 * r),
                  salu("s_mul_hi_u32", c, n, (2 ** 32 + 23) // 24), salu("s_mul_i32", rem, c, 24), salu("s_sub_u32", rem, n, rem),
                  salu("s_mul_hi_u32", w2, rem, (2 ** 32 + 5) // 6), salu("s_mul_i32", u, w2, 6), salu("s_sub_u32", u, rem, u),
                  salu("s_mul_hi_u32", ntp, u, (2 ** 32 + 2) // 3), salu("s_mul_i32", qb, ntp, 3), salu("s_sub_u32", qb, u, qb),
                  salu("s_mul_i32", a, s_b, 192), salu("s_mul_i32", w2, w2, 48), salu("s_add_u32", a, a, w2),
                  salu("s_lshl_b32", qb, qb, 4), salu("s_add_u32", a, a, qb), salu("s_mul_i32", a, a, 1280),
                  salu("s_lshl_b32", c, c, 7), salu("s_add_u32", a, a, c), salu("s_lshl_b32", ntp, ntp, 6), salu("s_add_u32", a, a, ntp)]
            if r == 3:
                o += [scmp("s_cmp_ge_u32", n, 240), salu("s_cselect_b32", a, 0x7FFF0000, a)]
        o += [salu("s_mul_i32", s_pb, s_b, 16 * 245760), salu("s_lshl_b32", s_t[0], s_kw, 10), salu("s_add_u32", s_pb, s_pb, s_t[0]),
              salu("s_mul_i32", s_t[0], s_w, 6144), salu("s_sub_u32", s_t[0], PART_OFF, s_t[0]), salu("s_add_u32", s_pb, s_pb, s_t[0])]
        return o

    def red_loads(self, r):
        o = [salu("s_add_u32", s_t[0], s_pb, 64 * 1024 * r)]
        for j in range(16):
            o.append(vload(A(64 * r + 4 * j, 4), PSL, SRD_WS, s_t[0], 0, self.cfg["red_flags"], tag=("red", r, j)))
            if j < 15: o.append(salu("s_add_u32", s_t[0], s_t[0], 245760))
        return o

    def red_mfma(self, r):
        o = []
        for j in range(16):
            if j % 4 == 0: o.append(WaitTag([("red", r, j + 3)]))
            for k in range(2):
                o.append(mfma(RD[k], SEL[k], A(64 * r + 4 * j, 4), 0 if j == 0 else RD[k]))
        o.append(nop(7))
        pk = V(96, 4)
        for k in range(2):
            a = RD[k][1]
            o += [valu("v_cvt_pk_bf16_f32", V(96 + 2 * k), V(a), V(a + 1)), valu("v_cvt_pk_bf16_f32", V(97 + 2 * k), V(a + 2), V(a + 3))]
        o.append(vstore(pk, VOUT, SRD_OUT, s_ro[r], 0, "", tag=("out", r)))
        o.append(nop(1))
        return o

    def tstamp(self, k):
        if not self.cfg["steptime"]: return []
        return [I("s_memtime s[92:93]", "salu"), raw("s_waitcnt lgkmcnt(0)"), raw(f"v_writelane_b32 v255, s92, {40 + k}", "valu")]

    def reduce_tail(self):
        o = self.tstamp(0) + self.check_spin(3, "L_sp3", WaitTag([("poll", 3)])) + [barrier()] + self.tstamp(1)
        o += self.red_loads(2) + self.tstamp(2)
        o += [WaitTag([("st", 8), ("st", 9)]), barrier()] + self.tstamp(3) + [valu("v_mov_b32", VFV, 4), self.flag_store()]
        o += self.red_mfma(1) + self.tstamp(4)
        o += [self.poll_load(("poll", 4))] + self.red_mfma(2) + self.tstamp(5)
        o += self.tstamp(6) + self.check_spin(4, "L_sp4", WaitTag([("poll", 4)])) + [barrier()] + self.tstamp(7)
        o += self.red_loads(3) + self.tstamp(8)
        o += self.red_mfma(3) + self.tstamp(9) + self.tstamp(10)
        return o

    def rare_code(self, p):
        out = [label(f"L_rare{p}"), nop(7), nop(7)]
        m = [MT(qb) for qb in range(3)]
        y = [MT(3 + qb) for qb in range(3)]
        f = [MT(8 + qb) for qb in range(3)]
        for qb in range(3):
            vals = [SBr(p, kt, qb, r) for kt in range(2) for r in range(4)]
            out.append(valu("v_max3_f32", m[qb], vals[0], vals[1], vals[2]))
            out.append(valu("v_max3_f32", m[qb], m[qb], vals[3], vals[4]))
            out.append(valu("v_max3_f32", m[qb], m[qb], vals[5], vals[6]))
            out.append(valu("v_max_f32", m[qb], m[qb], vals[7]))
        for sw in ("v_permlane32_swap_b32", "v_permlane16_swap_b32"):
            for qb in range(3): out.append(valu("v_mov_b32", y[qb], m[qb]))
            for qb in range(3): out.append(perm(sw, m[qb], y[qb]))
            for qb in range(3): out.append(valu("v_max_f32", m[qb], m[qb], y[qb]))
        for qb in range(3):
            out.append(valu("v_max_f32", m[qb], 0, m[qb]))
        for qb in range(3):
            out.append(valu("v_sub_f32", y[qb], 0, m[qb]))
        for qb in range(3):
            out.append(vexp(f[qb], y[qb]))
        for qb in range(3):
            for r in range(4):
                out.append(valu("v_sub_f32", NEGMr(qb, r), NEGMr(qb, r), m[qb]))
            for pp in range(2):
                for kt in range(2):
                    for r in range(4):
                        out.append(valu("v_sub_f32", SBr(pp, kt, qb, r), SBr(pp, kt, qb, r), m[qb]))
            out.append(valu("v_mul_f32", L(qb), L(qb), f[qb]))
            for T in range(12):
                for r in range(4):
                    a = OAr(T, qb, r)
                    out.append(I(f"v_accvgpr_read_b32 {rtxt(TT(r))}, {rtxt(a)}", "valu", [TT(r)], [a]))
                for r in range(4):
                    out.append(valu("v_mul_f32", TT(r), TT(r), f[qb]))
                for r in range(4):
                    a = OAr(T, qb, r)
                    out.append(I(f"v_accvgpr_write_b32 {rtxt(a)}, {rtxt(TT(r))}", "valu", [a], [TT(r)]))
        sm, _ = self.softmax_ops(p)
        out += [o.ins for o in sm]
        out = autonop(out)
        out += [nop(1), I(f"s_setpc_b64 {rtxt(s_ret)}", "branch")]
        return out


def autonop(seq):
    out = []
    last = {}
    st = 0
    for ins in seq:
        c = ins.cls
        need = 0

        def chk(r, n, what):
            nonlocal need
            if r in last and last[r][1] in what:
                need = max(need, n - (st - last[r][0] - 1))
        if c in ("valu", "trans", "perm"):
            for r in ins.uses:
                chk(r, 1, ("trans",))
                if c == "perm": chk(r, 2, ("valu", "trans", "perm"))
            for r in ins.uses | ins.defs:
                chk(r, 8, ("mfma",))
            for r in ins.defs:
                chk(r, 2, ("storedata",))
        elif c == "mfma":
            for r in ins.uses | ins.cdefs:
                chk(r, 2, ("valu", "trans", "perm"))
        elif c in ("ds", "vmem", "dma", "store"):
            for r in ins.uses:
                if r[0] == "m0": chk(r, 1, ("salu",))
        if need > 0:
            out.append(nop(need - 1))
            st += need
        out.append(ins)
        for r in ins.defs:
            last[r] = (st, c)
        if c == "store":
            for r in ins.uses:
                if r[0] in "va": last[r] = (st, "storedata")
        st += (ins.info + 1) if c == "nop" else (0 if c == "label" else 1)
    return out


autonop_tail = autonop


def srd(dst, ptr, nbytes, pair=None):
    d = dst[1]
    lo, hi = pair if pair is not None else (S(ptr), S(ptr + 1))
    return [salu("s_mov_b32", S(d), lo), salu("s_and_b32", S(d + 1), hi, 0xFFFF),
            salu("s_mov_b32", S(d + 2), nbytes), salu("s_mov_b32", S(d + 3), 0x00020000)]


def stamp(k):
    return [I(f"s_memtime s[{s_stamp + 2 * k}:{s_stamp + 2 * k + 1}]", "salu")]


def pf_load(voff, srd_, soff, imm=0):
    return I(f"buffer_load_dword {rtxt(JUNK)}, {rtxt(voff)}, {rtxt(srd_)}, {rtxt(soff)} offen offset:{imm}", "vmem", [], [voff, srd_, soff])


def code_pf(target, extra_sreg=None):
    k = code_pf.n = getattr(code_pf, "n", 0) + 1
    o = [I("s_getpc_b64 s[56:57]", "salu"), label(f"L_pc{k}"),
         raw(f"s_add_u32 s56, s56, {target}-L_pc{k}"), raw("s_addc_u32 s57, s57, 0")]
    if extra_sreg is not None:
        o += [raw(f"s_add_u32 s56, s56, {rtxt(extra_sreg)}"), raw("s_addc_u32 s57, s57, 0")]
    o += [raw(f"v_mov_b32 v{VPC[1] + 1}, s57", "valu"),
          raw(f"v_add_co_u32 v{VPC[1]}, vcc, s56, {rtxt(VL128)}", "valu"),
          raw("s_nop 1"),
          raw(f"v_addc_co_u32 v{VPC[1] + 1}, vcc, 0, v{VPC[1] + 1}, vcc", "valu"),
          I(f"global_load_dword {rtxt(JUNK)}, {rtxt(VPC)}, off", "vmem", [], [])]
    return o


def main_kernel(cfg):
    g = Gen(cfg)
    T = cfg["timing"]
    pro = []
    pro.append(label("mha_main_kernel"))
    pro += [scmp("s_cmp_ge_u32", S(2), 256), branch("s_cbranch_scc1", "L_main_exit")]
    pro.append(raw("s_load_dwordx16 s[64:79], s[0:1], 0", "salu"))
    lane_ops = []
    wreg = build_lane_consts(lane_ops)
    pro += lane_ops
    pro.append(I(f"v_readfirstlane_b32 {rtxt(s_w)}, {rtxt(wreg)}", "valu", [s_w], [wreg]))
    pro.append(raw("s_waitcnt lgkmcnt(0)", "salu"))
    pro += srd(SRD_A, 64, 16 * 192 * 640 * 2)
    pro += srd(SRD_K, 66, 16 * 32 * 512 * 192 * 2)
    pro += srd(SRD_V, 68, 16 * 32 * 512 * 192 * 2)
    pro += srd(SRD_B, 70, 640 * 6144 * 2)
    pro += srd(SRD_WO, 72, 6144 * 640 * 2)
    pro += srd(SRD_WS, 78, 402653184)
    pro += [salu("s_mov_b32", s_outp[0], S(74)), salu("s_mov_b32", s_outp[1], S(75)),
            salu("s_mov_b32", s_dbgp[0], S(76)), salu("s_mov_b32", s_dbgp[1], S(77))]
    t0, t1 = s_t[0], s_t[1]
    nb = int(cfg["map_nb"]); npair = 32 // nb
    lg = lambda v: v.bit_length() - 1
    seen = set()
    for wg in range(256):
        a0, j = wg & 7, wg >> 3
        pj = (j & (npair - 1)) + ((a0 & (16 // npair - 1)) << lg(npair))
        bb = (j >> lg(npair)) + ((a0 >> lg(16 // npair)) << lg(nb))
        assert 0 <= pj < 16 and 0 <= bb < 16
        seen.add((bb, pj))
    assert len(seen) == 256
    pro += [
        salu("s_and_b32", t0, S(2), 7),
        salu("s_lshr_b32", t1, S(2), 3),
        salu("s_and_b32", s_pj, t1, npair - 1),
        salu("s_lshr_b32", s_b, t1, lg(npair)),
        salu("s_and_b32", t1, t0, 16 // npair - 1),
        salu("s_lshl_b32", t1, t1, lg(npair)),
        salu("s_add_u32", s_pj, s_pj, t1),
        salu("s_lshr_b32", t0, t0, lg(16 // npair)),
        salu("s_lshl_b32", t0, t0, lg(nb)),
        salu("s_add_u32", s_b, s_b, t0),
        salu("s_lshl_b32", s_h0, s_pj, 1),
        salu("s_mul_i32", s_w3072, s_w, 3072),
        salu("s_lshl_b32", t0, s_b, 5),
        salu("s_add_u32", t0, t0, s_h0),
        salu("s_mul_i32", s_koff, t0, 196608),
        salu("s_add_u32", s_kend, s_koff, 196608),
        salu("s_mov_b32", s_vend, s_kend),
        salu("s_lshr_b32", t1, S(2), int(cfg["rot_shift"])), salu("s_mul_i32", t1, t1, int(cfg["rot_mul"])), salu("s_and_b32", t1, t1, 15 if cfg["kv_rot"] else 0),
        salu("s_mul_i32", t1, t1, 12288), salu("s_add_u32", s_koff, s_koff, t1),
        salu("s_mov_b32", s_voff, s_koff),
        salu("s_mul_i32", s_boff, s_h0, 384),
        salu("s_mul_i32", s_aoff, s_b, 245760),
        salu("s_lshl_b32", t0, s_b, 4),
        salu("s_add_u32", t0, t0, s_pj),
        salu("s_mul_i32", s_pst[0], t0, 245760), salu("s_add_u32", s_pst[0], s_pst[0], PART_OFF),
        salu("s_add_u32", s_pst[1], s_pst[0], 4096),
        salu("s_mov_b32", s_h, 0),
        salu("s_mov_b32", s_thr, THR_BITS),
        salu("s_mov_b32", S(48), C_BITS),
        salu("s_mov_b32", S(49), C_BITS),
    ]
    pro += [salu("s_mov_b32", s_ainc[0], 24 * 1280), salu("s_mov_b32", s_ainc[1], 128 - 24 * 1280),
            salu("s_mov_b32", s_binc[0], 393216), salu("s_mov_b32", s_binc[1], 393216),
            salu("s_lshl_b32", s_m0a[0], s_w3072, 1), salu("s_sub_u32", s_m0a[1], s_m0a[0], 12288 - 3072)]
    if T:
        pro += stamp(0) + [I("s_memrealtime s[86:87]", "salu")]
    s_bsh, s_psh = S(62), S(63)
    assert nb == 8 or not cfg["pf_data"]
    pro += [salu("s_and_b32", s_bsh, s_b, nb - 1), salu("s_and_b32", s_psh, s_pj, npair - 1),
            salu("s_mul_i32", t0, s_bsh, 240),
            valu("v_add_u32", VWPF, t0, VWPF),
            valu("v_mul_u32_u24", PT(0), 21846, VWPF), valu("v_lshrrev_b32", PT(0), 16, PT(0)),
            valu("v_mul_u32_u24", PT(1), 3, PT(0)), valu("v_sub_u32", PT(1), VWPF, PT(1)),
            valu("v_mul_u32_u24", PT(0), 12288, PT(0)), valu("v_lshlrev_b32", PT(1), 7, PT(1)),
            valu("v_add_u32", VWPF, PT(0), PT(1))]
    assert all((n * 21846) >> 16 == n // 3 for n in range(2200))

    def mall_pf():
        gw = t1
        o = [salu("s_lshl_b32", gw, S(2), 2), salu("s_add_u32", gw, gw, s_w)]
        lane128 = PT(2)
        o += [valu("v_and_b32", PT(3), 63, TID), valu("v_lshlrev_b32", lane128, 7, PT(3))]
        order = cfg["mall_order"]
        for what in order:
            if what == "x":
                o += [valu("v_mov_b32", PT(4), 0x7FFFFF00), raw(f"v_cmp_gt_u32 vcc, 30, {rtxt(PT(3))}", "valu"), raw("s_nop 1"),
                      raw(f"v_cndmask_b32 {rtxt(PT(4))}, {rtxt(PT(4))}, {rtxt(lane128)}, vcc", "valu"),
                      salu("s_mul_i32", t0, gw, 3840), pf_load(PT(4), SRD_A, t0)]
            elif what == "w":
                o += [valu("v_mul_u32_u24", PT(5), 21846, PT(3)), valu("v_lshrrev_b32", PT(5), 16, PT(5)),
                      valu("v_mul_u32_u24", PT(6), 3, PT(5)), valu("v_sub_u32", PT(6), PT(3), PT(6)),
                      valu("v_mul_u32_u24", PT(5), 12288, PT(5)), valu("v_lshlrev_b32", PT(6), 7, PT(6)),
                      valu("v_add_u32", PT(5), PT(5), PT(6)),
                      valu("v_mov_b32", PT(4), 0x7FFFFF00), raw(f"v_cmp_gt_u32 vcc, 30, {rtxt(PT(3))}", "valu"), raw("s_nop 1"),
                      raw(f"v_cndmask_b32 {rtxt(PT(4))}, {rtxt(PT(4))}, {rtxt(PT(5))}, vcc", "valu"),
                      salu("s_and_b32", t0, gw, 15), salu("s_mul_i32", t0, t0, 768),
                      salu("s_lshr_b32", S(58), gw, 4), salu("s_mul_i32", S(58), S(58), 122880), salu("s_add_u32", t0, t0, S(58)),
                      pf_load(PT(4), SRD_B, t0)]
            elif what == "q":
                o += [salu("s_mul_i32", t0, gw, 7680), pf_load(lane128, SRD_B, t0)]
            else:
                o += [salu("s_mul_i32", t0, gw, 7680), pf_load(lane128, SRD_WO, t0)]
        return o

    def start_pf():
        o = []
        if cfg["pf_mall"]:
            o += mall_pf()
        if cfg["pf_start"]:
            o += [salu("s_mul_i32", t0, s_psh, 61440), salu("s_add_u32", t0, t0, s_aoff0),
                  pf_load(VLIN, SRD_A, t0), salu("s_add_u32", t0, t0, 8192), pf_load(VLIN, SRD_A, t0),
                  salu("s_mul_i32", t0, s_h0, 384), pf_load(VWPF, SRD_B, t0)]
        if cfg["pf_code"]:
            o += [salu("s_lshr_b32", t1, S(2), 3), salu("s_and_b32", t1, t1, 1), salu("s_lshl_b32", t1, t1, 15)]
            o += code_pf("L_head", t1)
        return o
    s_aoff0 = S(61)
    pro.append(salu("s_mul_i32", s_aoff0, s_b, 245760))
    if cfg["fused"]:
        pro += [salu("s_lshl_b32", t0, s_b, 8), salu("s_lshl_b32", t1, s_pj, 2), salu("s_add_u32", t0, t0, t1),
                salu("s_add_u32", t0, t0, FLAG_OFF), valu("v_mov_b32", PT(8), 0),
                vstore(PT(8), VFO, SRD_WS, t0, 0, " sc1", tag=("clr",), width=1)]
    for t in range(10):
        if t == int(cfg["pf_start_at"]): pro += start_pf()
        pro.append(g.set_m0(t))
        pro.append(nop(0))
        for i in range(3):
            pro.append(g.dma_instr(t, i))
        adv = g.dma_adv(t)
        pro += adv if isinstance(adv, list) else [adv]
    pro += [g.set_m0(10), nop(0), g.dma_instr(10, 0)]
    if int(cfg["pf_start_at"]) >= 10: pro += start_pf()
    pro += [WaitTag([("item", 0), ("item", 1), ("item", 2)]), barrier()]
    if cfg["fused"]:
        TMP = S(96, 4)
        pro += srd(TMP, None, 256, s_dbgp) + [salu("s_lshl_b32", t0, s_b, 4), valu("v_mov_b32", PT(8), 1), WaitTag([("clr",)]),
                I(f"buffer_atomic_add {rtxt(PT(8))}, {rtxt(VFO)}, {rtxt(TMP)}, {rtxt(t0)} offen", "store", [], [PT(8), VFO, TMP, t0], tag=("cnt",))]
    fix, rd = g.x_reads(0, 0)
    pro += fix + rd
    pro += g.first_reads("W", 2)
    pro.append(wait(lgkm=4))

    pfq = []
    mode = cfg["pf_mode"]
    if cfg["pf_data"]:
        p0 = [salu("s_add_u32", t1, s_h0, 1), salu("s_mul_i32", t1, t1, 384), pf_load(VWPF, SRD_B, t1), pf_load(VWPF, SRD_B, t1)]
        p1 = [salu("s_mul_i32", t1, s_bsh, 61440), salu("s_mul_i32", t0, s_h0, 245760), salu("s_add_u32", t1, t1, t0),
              pf_load(VLIN, SRD_WO, t1), salu("s_add_u32", t1, t1, 8192), pf_load(VLIN, SRD_WO, t1)]
        pfq = [Macro([scmp("s_cmp_eq_u32", s_h, 0), branch("s_cbranch_scc0", "L_pq1")] + p0 +
                     [branch("s_branch", "L_pq2"), label("L_pq1")] + p1 + [label("L_pq2")], 2)]
    trk = []
    if cfg["trickle"]:
        SRD_PF = S(96, 4)
        s_pf, s_pfinc = S(100), S(101)
        lane = PT(3)
        pro_extra = [salu("s_lshl_b32", t1, S(2), 2), salu("s_add_u32", t1, t1, s_w),
                     valu("v_and_b32", lane, 63, TID),
                     valu("v_mul_u32_u24", PT(5), 21846, lane), valu("v_lshrrev_b32", PT(5), 16, PT(5)),
                     valu("v_mul_u32_u24", PT(6), 3, PT(5)), valu("v_sub_u32", PT(6), lane, PT(6)),
                     valu("v_mul_u32_u24", PT(5), 12288, PT(5)), valu("v_lshlrev_b32", PT(6), 7, PT(6)),
                     valu("v_add_u32", PT(5), PT(5), PT(6)),
                     valu("v_mov_b32", VTK[0], 0x7FFFFF00), raw(f"v_cmp_gt_u32 vcc, 9, {rtxt(lane)}", "valu"), raw("s_nop 1"),
                     raw(f"v_cndmask_b32 {rtxt(VTK[0])}, {rtxt(VTK[0])}, {rtxt(PT(5))}, vcc", "valu"),
                     valu("v_lshlrev_b32", PT(5), 7, lane),
                     valu("v_mov_b32", VTK[1], 0x7FFFFF00), raw(f"v_cmp_gt_u32 vcc, 15, {rtxt(lane)}", "valu"), raw("s_nop 1"),
                     raw(f"v_cndmask_b32 {rtxt(VTK[1])}, {rtxt(VTK[1])}, {rtxt(PT(5))}, vcc", "valu"),
                     salu("s_and_b32", t0, t1, 15), salu("s_mul_i32", t0, t0, 768), salu("s_add_u32", t0, t0, 384),
                     salu("s_lshr_b32", s_pf, t1, 4), salu("s_mul_i32", s_pf, s_pf, 122880), salu("s_add_u32", s_pf, s_pf, t0),
                     salu("s_mov_b32", s_pfinc, 36864), salu("s_mul_i32", S(59), t1, 7680)]
        for k in range(4):
            pro_extra.append(salu("s_mov_b32", S(96 + k), S(SRD_B[1] + k)))
        pro += pro_extra
        trk = [pf_load(VTK[0], SRD_PF, s_pf), salu("s_add_u32", s_pf, s_pf, s_pfinc)]
        trk_switch = [salu("s_mov_b32", S(96 + k), S(SRD_WO[1] + k)) for k in range(3)]
        trk_switch += [salu("s_mov_b32", s_pf, S(59)), salu("s_mov_b32", s_pfinc, 1920), valu("v_mov_b32", VTK[0], VTK[1])]
    else:
        trk_switch = []
    p0, p1, nv = [], [], 0
    if cfg["pf_code"]:
        nv = 1
        p0 = [pf_load(VLIN, SRD_WS, t0)]
        p1 = code_pf("L_last")
    if cfg["pf_x1"]:
        nv += 2
        p0 += [salu("s_mul_i32", t1, s_psh, 61440), salu("s_add_u32", t1, t1, s_aoff),
               pf_load(VLIN, SRD_A, t1), salu("s_add_u32", t1, t1, 8192), pf_load(VLIN, SRD_A, t1)]
        p1 += [pf_load(VLIN, SRD_A, s_aoff), pf_load(VLIN, SRD_A, s_aoff)]
    p1b = []
    if cfg["fused"]:
        nv += 1
        p0 += [pf_load(VFO, SRD_WS, t0)]
        p1b = srd(SRD_DBG, None, 256, s_dbgp) + [salu("s_lshl_b32", s_b16, s_b, 4),
               I(f"buffer_load_dword {rtxt(VCHK)}, {rtxt(VFO)}, {rtxt(SRD_DBG)}, {rtxt(s_b16)} offen sc1", "vmem", [], [])]
    nxs = [
        scmp("s_cmp_eq_u32", s_h, 0),
        branch("s_cbranch_scc0", "L_nx1"),
        salu("s_add_u32", t0, s_h0, 1),
        salu("s_mul_i32", s_boff, t0, 384),
        salu("s_mul_i32", s_aoff, s_b, 245760),
    ] + trk_switch + p0 + [
        branch("s_branch", "L_nx2"),
        label("L_nx1"),
    ]
    for k in range(3):
        nxs += [salu("s_mov_b32", S(SRD_A[1] + k), S(SRD_WO[1] + k)), salu("s_mov_b32", S(SRD_B[1] + k), S(SRD_WO[1] + k))]
    nxs += [
        salu("s_mul_i32", s_aoff, s_h0, 245760),
        salu("s_add_u32", s_boff, s_aoff, 245760),
        salu("s_mov_b32", s_ainc[0], 122880), salu("s_mov_b32", s_ainc[1], 128 - 122880),
        salu("s_mov_b32", s_binc[0], 122880), salu("s_mov_b32", s_binc[1], 128 - 122880),
        salu("s_mov_b32", s_m0a[0], s_w3072), salu("s_mov_b32", s_m0a[1], s_w3072),
    ]
    for i in range(3):
        nxs += [valu("v_mov_b32", DA[i], DO[i]), valu("v_mov_b32", DB[i], DO[i])]
    nxs += p1 + p1b + [label("L_nx2")]
    nxm = [Macro(nxs, nv)]
    nxm[0].tag = ("chk",)

    trk_steps = [int(x) for x in str(cfg['trk_steps']).split('.')]

    def body(h, first):
        b = [label("L_head")] if first else []
        g.q_phase(h)
        g.a_frames(h)
        g.place_ring_dma(52 * h, 52 * h + 52)
        if T: b += stamp_h(1)
        for t in range(20):
            if t == int(cfg["pfq_step"]): b += pfq
            if cfg["trickle"] and t in trk_steps: b += trk
            for gp in g.steps[52 * h + t].gaps:
                b += gp.flat()
        if T: b += stamp_h(2)
        b += g.q_pack()
        if T: b += stamp_h(3)
        b += g.a_phase(h, nxm)
        if T: b += stamp_h(4)
        for kind in ("K", "V"):
            B = g.bases[kind]
            for ri, r in enumerate(B.regs):
                if B.base[ri] != 0:
                    b.append(valu("v_subrev_u32", r, B.base[ri], r))
                    B.base[ri] = 0
        return b

    def stamp_h(k):
        return [I(f"s_memtime s[56:57]", "salu"), raw("s_waitcnt lgkmcnt(0)", "salu"),
                scmp("s_cmp_eq_u32", s_h, 0),
                salu("s_cselect_b32", S(58), S(56), S(s_stamp + 2 * k)),
                salu("s_mov_b32", S(s_stamp + 2 * k), S(58)),
                salu("s_cselect_b32", S(58), S(s_stamp + 2 * k + 9), S(56)),
                salu("s_mov_b32", S(s_stamp + 2 * k + 9), S(58))]

    body0 = body(0, True)
    n0 = g.n_phase(0)
    assert g.bases["W"].base == [0, 0, 0, 0] and g.bases["X"].base == [0, 0]
    sites = list(g.rare_sites)
    body1 = body(1, False)
    g.rare_sites = sites
    n1 = g.n_phase(1)
    oph = g.o_phase()

    loop_end = [scmp("s_cmp_eq_u32", s_h, 0), branch("s_cbranch_scc0", "L_last")]
    loop_back = ([valu("v_mov_b32", V(254), V(253))] if cfg["steptime"] else []) + [salu("s_mov_b32", s_h, 1), branch("s_branch", "L_head"), label("L_last")]
    fin = []
    if T:
        fin += [I("s_memtime s[56:57]", "salu"), raw("s_waitcnt lgkmcnt(0)", "salu"), salu("s_mov_b32", S(84), S(56))]
    fin += [raw("s_waitcnt vmcnt(0)", "salu")]
    if T:
        fin += [I("s_memtime s[56:57]", "salu"), I("s_memrealtime s[88:89]", "salu"), raw("s_waitcnt lgkmcnt(0)", "salu"), salu("s_mov_b32", S(85), S(56)),
                salu("s_mov_b32", S(90), S(88)), salu("s_sub_u32", S(88), S(88), S(86))]
        lst = [64, 66, 68, 70, 72, 75, 77, 79, 81, 84, 85, 88, 86, 90]
        for k, sr in enumerate(lst):
            fin.append(valu("v_mov_b32", V(k), S(sr)))
        fin += [salu("s_lshl_b32", t0, S(2), 6), salu("s_add_u32", t0, t0, 300 * 1024 * 1024),
                valu("v_mov_b32", V(20), 0)]
        fin += [raw(f"v_cmp_eq_u32 vcc, 0, {rtxt(TID)}", "valu"), raw("s_and_saveexec_b64 s[56:57], vcc", "salu")]
        for k in range(0, 16, 4):
            fin.append(vstore(V(k, 4), V(20), SRD_WS, t0, 4 * k))
        fin += [raw("s_waitcnt vmcnt(0)", "salu")]
        if cfg["steptime"]:
            fin += [raw("s_mov_b64 exec, -1"), salu("s_mul_i32", t0, S(2), 768), salu("s_add_u32", t0, t0, 320 * 1024 * 1024),
                    raw(f"v_cmp_gt_u32 vcc, 64, {rtxt(TID)}", "valu"), raw("s_and_saveexec_b64 s[56:57], vcc", "salu"),
                    valu("v_lshlrev_b32", V(20), 2, TID)]
            for k in range(3):
                fin.append(vstore(V(253 + k), V(20), SRD_WS, t0, 256 * k, width=1))
            fin += [raw("s_waitcnt vmcnt(0)", "salu")]
    fin += [label("L_main_exit"), raw("s_endpgm", "salu")]

    waits0 = [i for i in body0 if isinstance(i, WaitTag)]
    waits1 = [i for i in body1 if isinstance(i, WaitTag)]
    assert len(waits0) == len(waits1)
    seq = pro + body0 + n0 + body1 + n1 + oph
    res, errs, _, maxout = resolve_and_check(seq, "main")
    for e in errs[:40]:
        print("ERR", e, file=sys.stderr)
    assert not errs, len(errs)
    print("max outstanding vmem", maxout, file=sys.stderr)

    def fin_wait(w, vals):
        vals = [v for v in vals if v is not None]
        vm = min(vals) if vals else None
        lg = w.info[1]
        p = []
        if vm is not None: p.append(f"vmcnt({vm})")
        if lg is not None: p.append(f"lgkmcnt({lg})")
        w.txt = "s_waitcnt " + " ".join(p) if p else "s_nop 0"
    for w0, w1 in zip(waits0, waits1):
        fin_wait(w0, res[id(w0)] + res[id(w1)])
    for w in [i for i in pro + oph + n0 + n1 if isinstance(i, WaitTag)]:
        fin_wait(w, res[id(w)])
    t0_ = [i.txt for i in body0 if not isinstance(i, WaitTag) and i.cls not in ("label", "branch")]
    t1_ = [i.txt for i in body1 if not isinstance(i, WaitTag) and i.cls not in ("label", "branch")]
    assert t0_ == t1_, "loop passes differ"

    stubs = []
    for k, p in enumerate(sites):
        stubs += [label(f"L_rs{k}"), I(f"s_call_b64 {rtxt(s_ret)}, L_rare{p}", "branch"), branch("s_branch", f"L_rr{k}")]
    rare = g.rare_code(0) + g.rare_code(1)
    allc = pro + body0 + loop_end + n0 + loop_back + n1 + oph + fin + stubs + rare
    return allc


def reducer_kernel(cfg):
    o = []
    o.append(label("mha_reduce_kernel"))
    o += [scmp("s_cmp_ge_u32", S(2), 960), branch("s_cbranch_scc1", "L_red_exit")]
    o.append(raw("s_load_dwordx2 s[4:5], s[0:1], 40", "salu"))
    o.append(raw("s_load_dwordx2 s[6:7], s[0:1], 56", "salu"))
    if cfg["timing"]:
        o.append(I("s_memrealtime s[40:41]", "salu"))
    tid = V(0)
    o += [valu("v_lshrrev_b32", V(1), 6, tid), valu("v_and_b32", V(2), 63, tid)]
    o.append(nop(0))
    o.append(I("v_readfirstlane_b32 s3, v1", "valu", [S(3)], [V(1)]))
    o.append(raw("s_waitcnt lgkmcnt(0)", "salu"))
    o += srd(S(8, 4), 4, 16 * 192 * 640 * 2)
    o += srd(S(12, 4), 6, 402653184)
    o += [salu("s_lshl_b32", S(16), S(2), 2), salu("s_add_u32", S(16), S(16), S(3)),
          salu("s_mul_hi_u32", S(17), S(16), (2 ** 32 + 239) // 240),
          salu("s_mul_i32", S(18), S(17), 240), salu("s_sub_u32", S(18), S(16), S(18)),
          salu("s_mul_i32", S(19), S(17), 16 * 240), salu("s_add_u32", S(19), S(19), S(18)),
          salu("s_lshl_b32", S(19), S(19), 10), salu("s_add_u32", S(19), S(19), PART_OFF),
          valu("v_lshlrev_b32", V(3), 4, V(2))]
    for j in range(16):
        o.append(vload(V(16 + 4 * j, 4), V(3), S(12, 4), S(19), 0, cfg["red_flags"], tag=("p", j)))
        if j < 15:
            o.append(salu("s_add_u32", S(19), S(19), 245760))
    o += [salu("s_mul_hi_u32", S(20), S(18), (2 ** 32 + 23) // 24),
          salu("s_mul_i32", S(21), S(20), 24), salu("s_sub_u32", S(21), S(18), S(21)),
          salu("s_mul_hi_u32", S(22), S(21), (2 ** 32 + 5) // 6),
          salu("s_mul_i32", S(23), S(22), 6), salu("s_sub_u32", S(23), S(21), S(23)),
          salu("s_mul_hi_u32", S(24), S(23), (2 ** 32 + 2) // 3),
          salu("s_mul_i32", S(25), S(24), 3), salu("s_sub_u32", S(25), S(23), S(25)),
          salu("s_mul_i32", S(26), S(17), 192), salu("s_mul_i32", S(27), S(22), 48),
          salu("s_add_u32", S(26), S(26), S(27)), salu("s_lshl_b32", S(27), S(25), 4),
          salu("s_add_u32", S(26), S(26), S(27)), salu("s_mul_i32", S(26), S(26), 1280),
          salu("s_lshl_b32", S(27), S(20), 7), salu("s_add_u32", S(26), S(26), S(27)),
          salu("s_lshl_b32", S(27), S(24), 6), salu("s_add_u32", S(26), S(26), S(27)),
          valu("v_and_b32", V(4), 15, V(2)), valu("v_mul_u32_u24", V(4), 1280, V(4)),
          valu("v_lshrrev_b32", V(5), 4, V(2)), valu("v_lshlrev_b32", V(5), 4, V(5)),
          valu("v_add_u32", V(4), V(4), V(5)),
          salu("s_mov_b32", S(28), 0xFFFF0000)]
    acc = [V(8 + k) for k in range(8)]
    t = [V(6), V(7)]
    for j in range(16):
        o.append(wait(vm=15 - j))
        for r in range(4):
            src = V(16 + 4 * j + r)
            if j == 0:
                o.append(valu("v_lshlrev_b32", acc[2 * r], 16, src))
                o.append(valu("v_and_b32", acc[2 * r + 1], S(28), src))
            else:
                o.append(valu("v_lshlrev_b32", t[0], 16, src))
                o.append(valu("v_and_b32", t[1], S(28), src))
                o.append(valu("v_add_f32", acc[2 * r], acc[2 * r], t[0]))
                o.append(valu("v_add_f32", acc[2 * r + 1], acc[2 * r + 1], t[1]))
    pk = [V(80 + k) for k in range(4)]
    for r in range(4):
        o.append(valu("v_cvt_pk_bf16_f32", pk[r], acc[2 * r], acc[2 * r + 1]))
    o2 = [perm("v_permlane32_swap_b32", pk[0], pk[2]), perm("v_permlane32_swap_b32", pk[1], pk[3]),
          perm("v_permlane16_swap_b32", pk[0], pk[2]), perm("v_permlane16_swap_b32", pk[1], pk[3])]
    o += o2
    o = autonop(o)
    o.append(nop(1))
    o.append(vstore(V(80, 4), V(4), S(8, 4), S(26), 0))
    o.append(raw("s_waitcnt vmcnt(0)", "salu"))
    if cfg["timing"]:
        o += [I("s_memrealtime s[42:43]", "salu"), raw("s_waitcnt lgkmcnt(0)", "salu"),
              valu("v_mov_b32", V(6), S(40)), valu("v_mov_b32", V(7), S(42)), valu("v_mov_b32", V(5), 0),
              salu("s_lshl_b32", S(30), S(16), 3), salu("s_add_u32", S(30), S(30), 310 * 1024 * 1024),
              raw("v_cmp_eq_u32 vcc, 0, v2", "valu"), raw("s_and_saveexec_b64 s[44:45], vcc", "salu"),
              vstore(V(6, 2), V(5), S(12, 4), S(30), 0, width=2), raw("s_waitcnt vmcnt(0)", "salu")]
    o += [label("L_red_exit"), raw("s_endpgm", "salu")]
    return o


def kd(name, nv, acc):
    return f""".amdhsa_kernel {name}
  .amdhsa_next_free_vgpr {nv}
  .amdhsa_next_free_sgpr 102
  .amdhsa_accum_offset {acc}
  .amdhsa_group_segment_fixed_size 0
  .amdhsa_kernarg_size 64
  .amdhsa_user_sgpr_count 2
  .amdhsa_user_sgpr_kernarg_segment_ptr 1
  .amdhsa_system_sgpr_workgroup_id_x 1
.end_amdhsa_kernel
"""


def fmt(seq):
    s = []
    for i in seq:
        s.append(i.txt if i.cls == "label" else " " + i.txt)
    return "\n".join(s) + "\n"


HEADER = """; Fused multi-head attention block for MI355X (gfx950); assembly produced by my own generator script.
; output projection of the two heads into bf16 partials (d_ws), then the 16 partials of a batch are summed.
"""


def build(cfg, path):
    m = main_kernel(cfg)
    s = HEADER
    lds = NSLOT * SLOT
    kname = KNAME if cfg["single"] else "mha_main_kernel"
    if cfg["single"]:
        assert cfg["fused"]
        s += f"; @launch grid=(256,1,1) block=(256,1,1) lds={lds}\n"
    else:
        s += f"; @launch kernel=mha_main_kernel grid=(256,1,1) block=(256,1,1) lds={lds}\n"
        if not cfg["fused"]:
            s += "; @launch kernel=mha_reduce_kernel grid=(960,1,1) block=(256,1,1) lds=0\n"
    s += '.amdgcn_target "amdgcn-amd-amdhsa--gfx950"\n.text\n'
    ks = [(kname, m)]
    if not cfg["fused"]:
        ks.append(("mha_reduce_kernel", reducer_kernel(cfg)))
    for nm, code in ks:
        body = fmt(code).replace("mha_main_kernel:", kname + ":")
        s += f".globl {nm}\n.p2align 8\n.type {nm},@function\n" + body
    s += ".fill 64, 4, 0xBF800000\n"
    s += '.section .rodata,"a"\n.p2align 6\n' + kd(kname, 512, 256)
    if not cfg["fused"]:
        s += ".p2align 6\n" + kd("mha_reduce_kernel", 88, 88)
    open(path, "w").write(s)
    n_main = sum(1 for i in m if i.cls != "label")
    print(f"wrote {path}: {len(s)} bytes, main {n_main} instrs", file=sys.stderr)


if __name__ == "__main__":
    cfg = dict(CFG)
    path = "out.s"
    for a in sys.argv[1:]:
        if "=" in a:
            k, v = a.split("=", 1)
            cfg[k] = {"True": True, "False": False}.get(v, v)
        else:
            path = a
    build(cfg, path)
```

```python
SLOT = 12288

def a_item(j):
    if j == 0: return ("K", 0)
    if j == 1: return ("K", 1)
    if j == 31: return ("V", 15)
    if j % 2 == 0: return ("V", (j - 2) // 2)
    return ("K", (j + 1) // 2)

QS = [0, 52]; AS = [20, 72]; OS = 104; NSTEP = 144

class Item:
    def __init__(self, name, kind, h, n, need, free, units=1, earliest=-10**9):
        self.name, self.kind, self.h, self.n = name, kind, h, n
        self.need, self.free, self.units, self.earliest = need, free, units, earliest
        self.slot = None; self.issue = None
    def __repr__(self): return f"{self.name}@{self.slot}(i{self.issue},n{self.need})"

def build(R=13, P=4, DW=3, DX=3, NW0=5, NX0=2, maxper=2, P0=None, xres=23, pro_max=99, early_max=2, early_steps=0, park0=None, park1=None, kv_end_max=2, DW0=None, NW00=None):
    X = {(h, u): Item(f"X{h}.{u}", "X", h, u, QS[h] + 2 * u - 1, QS[h] + 2 * u, 2) for h in range(2) for u in range(10)}
    W = {(h, t): Item(f"W{h}.{t}", "W", h, t, QS[h] + t - 1, QS[h] + t + 1) for h in range(2) for t in range(20)}
    KV = {}
    for h in range(2):
        for j in range(32):
            k, n = a_item(j)
            KV[(h, j)] = Item(f"{k}{h}.{n}", k, h, n, AS[h] + j - 1, AS[h] + j + 1)
    O = {j: Item(f"O{j}", "O", 0, j, OS + j - 1, OS + j + 1) for j in range(40)}
    npair = 2
    xslots = set(range(2 * npair))
    for h in range(2):
        p = P if (h == 1 or P0 is None) else P0
        prev_last = KV[(0, 31)] if h == 1 else None
        for u in range(10):
            it = X[(h, u)]; it.prio = it.need
            it.earliest = it.need - DX if u >= NX0 else -10**9
            it.allowed = None
        for t in range(20):
            it = W[(h, t)]; it.prio = it.need
            dw = DW0 if (h == 0 and DW0) else DW
            nw0 = NW00 if (h == 0 and NW00) else NW0
            it.earliest = it.need - dw if t >= nw0 else -10**9
        for j in range(32):
            it = KV[(h, j)]
            it.prio = it.need
            it.parked = j < p
            if j < p:
                it.prio = QS[h] + min(NW0, 2 * NX0) - 1.5
                pk = park0 if h == 0 else park1
                if pk: it.earliest = QS[h] + pk[j]; it.prio = it.earliest
    for j in range(40): O[j].prio = O[j].need
    queues = [[X[(h, u)] for h in range(2) for u in range(10)], [W[(h, t)] for h in range(2) for t in range(20)],
              [KV[(h, j)] for h in range(2) for j in range(32)], [O[j] for j in range(40)]]
    def gated(it):
        if it.kind in "XW":
            return it.h == 1 and KV[(0, 31)].issue is None
        if it.kind in "KV":
            if it.h == 1 and KV[(0, 31)].issue is None: return True
            if it.parked:
                need_first = [X[(it.h, u)] for u in range(NX0)] + [W[(it.h, t)] for t in range(NW0)]
                return any(x.issue is None for x in need_first)
            return X[(it.h, 9)].issue is None or W[(it.h, 19)].issue is None
        return KV[(1, 31)].issue is None
    owner = [None] * R
    seq = []
    def try_alloc(it, b):
        fr = [s for s in range(R) if owner[s] is None]
        if it.kind == "X":
            c = [s for s in range(0, 2 * npair, 2) if s in fr and s + 1 in fr]
            return c[0] if c else None
        inq = any(QS[h] - 14 <= b < QS[h] + 16 for h in range(2))
        if it.kind == "W" or (it.kind in "KV" and (it.parked or (it.h == 0 and AS[0] + xres - 13 <= it.need - 12 and it.n is not None and KVidx[it.name] >= xres))):
            fr = [s for s in fr if s not in xslots]
        return fr[0] if fr else None
    KVidx = {KV[k].name: k[1] for k in KV}
    for b in range(-1, NSTEP):
        for s in range(R):
            it = owner[s]
            if it is not None and it.free <= b: owner[s] = None
        units = 0
        xtra = 0
        while True:
            cands = []
            for q in queues:
                if not q: continue
                it = q[0]
                extra = 1 if (it.kind in "KV" and it.parked and it.earliest > -10**8) else 0
                lim = (early_max if b < early_steps else maxper) + extra + xtra
                if gated(it) or (b >= 0 and (it.earliest > b or units + it.units > lim)): continue
                if b < 0 and units + it.units > pro_max: continue
                s = try_alloc(it, b)
                if s is None: continue
                cands.append((it.prio, len(cands), q, it, s))
            if not cands: break
            _, _, q, it, s = min(cands, key=lambda c: (c[0], c[1]))
            q.pop(0)
            it.slot = s; it.issue = b
            for k in range(it.units): owner[s + k] = it
            units += it.units
            if b >= 0 and it.kind in "KV" and it.parked and it.earliest > -10**8: xtra += 1
            seq.append(it)
    assert not any(queues), [q[0] for q in queues if q]
    for it in seq:
        assert it.issue < it.need or it.issue == -1, it
    return seq, X, W, KV, O

def simulate(seq, cq=625, ca=640, co=635, lf=0.55, lh=0.85, svc=0.43, clk=1850., cold_q0=1.0, extra=None):
    extra = extra or {19: 1300, 51: 1900, 71: 1300, 103: 1900, 21: 500, 73: 500, 49: 400, 101: 400}
    byb = {}
    for it in seq: byb.setdefault(it.issue, []).append(it)
    t = 2.3 - 0.0; hbm = 0.0; vis = 0.0
    land = {}
    def issue(it, now):
        nonlocal hbm, vis
        if it.kind in "KV":
            hbm = max(hbm + svc, now + lh)
            f = hbm
        else:
            f = now + (cold_q0 * 2.0 if (it.h == 0 and it.kind in "XW") and cold_q0 > 1 else lf) + 0.05 * it.units
        vis = max(vis, f)
        land[it.name] = vis
    now0 = 0.6
    for it in byb.get(-1, []):
        issue(it, now0); now0 += 0.035 * it.units
    needs = {}
    for it in seq: needs.setdefault(it.need, []).append(it)
    t = max([land[i.name] for i in needs.get(-1, [])] + [now0])
    marks = {}
    stall_tot = 0
    for s in range(NSTEP):
        c = (cq if (s % 52) < 20 and s < 104 else (ca if s < 104 else co)) / clk
        tb = t + c * 2 / 3
        need = max([land[i.name] for i in needs.get(s, [])] + [0])
        st = max(0, need - tb); stall_tot += st
        tb += st
        for k, it in enumerate(byb.get(s, [])):
            issue(it, tb + 0.05 + 0.15 * k)
        t = tb + c / 3 + extra.get(s, 0) / clk
        marks[s] = (t, st)
    return t, stall_tot, marks

if __name__ == "__main__":
    for R, P, DW, DX, NW0, NX0 in ((13, 0, 7, 3, 9, 2), (13, 2, 5, 3, 7, 2), (13, 4, 3, 3, 5, 2), (13, 3, 4, 3, 6, 2), (13, 5, 2, 3, 4, 2)):
        try:
            seq, X, W, KV, O = build(R, P, DW, DX, NW0, NX0)
        except AssertionError as e:
            print(R, P, DW, DX, "infeasible", e); continue
        t, st, marks = simulate(seq)
        ph = lambda a, b: sum(marks[s][1] for s in range(a, b))
        dmin = min(it.need - it.issue for it in seq if it.issue >= 0)
        print(f"R={R} P={P} DW={DW} DX={DX}: total {t:.1f} us stalls {st:.2f}  Q0 {ph(0,19):.2f} A0 {ph(19,51):.2f} Q1 {ph(51,71):.2f} A1 {ph(71,103):.2f} O {ph(103,144):.2f} minD {dmin}")
    seq, X, W, KV, O = build(13, 4, 3, 3, 5, 2)
    print(" ".join(repr(i) for i in seq))
```

```python
import sys
import subprocess
import numpy as np
from asmlib import *
import gen as G
from gen import (ACC, SB, SBr, PB, PBr, TT, NEGM, NEGMr, L, LT, MT, OACC, CT, CTr, QF, QFr, AK, AV, AW, AO, DKV, DA, DB, DO,
                 AX, PSV, PT, TID, JUNK, VPC, VL128, VTK, VFO, VCHK, RD, SEL, FLG, VPOLL, VFV, VOUT, VZ, PSL, PART_OFF, FLAG_OFF,
                 SRD_DBG, SRD_OUT, s_outp, s_dbgp, s_b16, s_kw, s_pb, s_ro, s_rl, OA, OAr, O0P, O0Pr, FB, FBh,
                 SRD_A, SRD_K, SRD_V, SRD_WO, SRD_WS, SRD_B, s_w3072, s_pst, s_thr, s_c2, s_h0, s_b, s_pj, s_w, s_t, s_ret,
                 THR_BITS, C_BITS, SLOT, build_lane_consts, autonop, srd, pf_load, code_pf, kd, KNAME, Gen, a_item)
import sched

CFG = dict(
    nt_kv=True, timing=False, steptime=False, pst_flags=" sc1", red_flags=" sc1",
    dspair_v=True, dspair_k=False, dspair_w=False, no_st=False, map_nb=8,
    fused=True, single=False, kv_same=False,
    R=13, P=3, P0=None, DW=4, DX=3, NW0=6, NX0=2, xres=23,
    DW0=0, NW00=0, tlb='', park0='', park1='', pro_max=7, early_max=4, early_steps=3,
    pf_code=True, pf_w1=8, pf_wo=52, pf_start="xw", pf_start_step=0, code_steps='-1.14.34.56.78.98.118', macros=True,
)

SRD_X, SRD_W = SRD_A, SRD_B
G.SRD_DBG = S(4, 4)
SRD_DBG = G.SRD_DBG
s_kvb, s_wb, s_xb, s_ob = S(33), S(34), S(37), S(38)
s_do = [S(35), S(36)]
s_w6144 = S(41)
NSTEP = 144


def XF(u, half, qb): return V(144 + ((u % 2) * 2 + half) * 12 + 4 * qb, 4)


class Gen3(Gen):
    def __init__(self, cfg):
        self.cfg = cfg
        self.rare_sites = []
        i = lambda k: int(cfg[k])
        self.R = i("R")
        self.seq, self.X, self.W, self.KV, self.O = sched.build(
            R=self.R, P=i("P"), DW=i("DW"), DX=i("DX"), NW0=i("NW0"), NX0=i("NX0"),
            P0=None if cfg["P0"] in (None, "None") else int(cfg["P0"]), xres=i("xres"),
            pro_max=i("pro_max"), early_max=i("early_max"), early_steps=i("early_steps"),
            park0=[int(x) for x in str(cfg["park0"]).split(".")] if cfg["park0"] else None,
            park1=[int(x) for x in str(cfg["park1"]).split(".")] if cfg["park1"] else None,
            DW0=int(cfg["DW0"]) or None, NW00=int(cfg["NW00"]) or None)
        self.item = []
        for h in range(2):
            self.item += [self.W[(h, t)] for t in range(20)] + [self.KV[(h, j)] for j in range(32)]
        self.item += [self.O[j] for j in range(40)]
        self.gaps = [None] * NSTEP
        self.pre = {s: [] for s in range(NSTEP)}
        self.post = {s: [] for s in range(NSTEP)}
        self.regs = {"K": AK, "V": AV, "W": AW, "O": AO}
        self.plan = {}
        for kind in self.regs:
            its = [it for it in self.item if it.kind == kind]
            k = 0
            while k < len(its):
                lo = hi = its[k].slot
                e = k
                while e + 1 < len(its):
                    nl, nh = min(lo, its[e + 1].slot), max(hi, its[e + 1].slot)
                    if nh - nl > 4: break
                    lo, hi = nl, nh
                    e += 1
                for q in range(k, e + 1): self.plan[its[q].name] = lo * SLOT
                k = e + 1
        self.base = {kind: [0] * len(self.regs[kind]) for kind in self.regs}
        self.nunit = 0

    def frag_reads3(self, it, f, buf):
        win = self.plan[it.name]
        off = it.slot * SLOT - win
        kind = it.kind
        if kind == "K":
            kt, kb = f // 6, f % 6
            ri = kb % 2
            return [(ds_read("ds_read_b128", FB(buf, f % 2), AK[ri], off + kt * 6144 + (kb // 2) * 128), ri, win)]
        ri, j = f % 4, f // 4
        o, d2 = {"V": (off + 128 * j, 6144), "W": (off + 128 * j, 1536), "O": (off + 4096 * j, 2048)}[kind]
        r = self.regs[kind][ri]
        return [(ds_read("ds_read_b64_tr_b16", FBh(buf, f % 2, 0), r, o), ri, win),
                (ds_read("ds_read_b64_tr_b16", FBh(buf, f % 2, 1), r, o + d2), ri, win)]

    def fix(self, kind, ri, win):
        B = self.base[kind]
        if B[ri] == win: return None
        d = win - B[ri]
        B[ri] = win
        r = self.regs[kind][ri]
        return valu("v_add_u32", r, d, r) if d > 0 else valu("v_subrev_u32", r, -d, r)

    def place_reads3(self, gaps, g0, it, grp):
        rl = []
        for f in (2 * grp, 2 * grp + 1):
            rl += self.frag_reads3(it, f, grp % 3)
        fx = [x for x in (self.fix(it.kind, ri, win) for _, ri, win in rl) if x is not None]
        for k, x in enumerate(fx):
            gaps[g0 - 2 + (k % 2)].va.append(x)
        pair = self.cfg["dspair_k"] if it.kind == "K" else (self.cfg["dspair_v"] if it.kind == "V" else self.cfg["dspair_w"])
        for k, (ins, ri, win) in enumerate(rl):
            gaps[g0 + (k // 2 if pair else k)].ds.append(ins)
        return len(rl)

    def first_reads3(self, it):
        out = []
        for grp in range(2):
            for f in (2 * grp, 2 * grp + 1):
                for ins, ri, win in self.frag_reads3(it, f, grp % 3):
                    x = self.fix(it.kind, ri, win)
                    if x is not None: out.append(x)
                    out.append(ins)
        for ri in range(len(self.regs[it.kind])):
            x = self.fix(it.kind, ri, self.plan[it.name])
            if x is not None: out.append(x)
        return out

    def x_reads3(self, it):
        u = it.n
        return [ds_read("ds_read_b128", XF(u, half, qb), AX[half], it.slot * SLOT + 2048 * qb) for half in range(2) for qb in range(3)]

    def units(self, it):
        tag = ("item", it.name)
        out = []
        for k in range(it.units):
            so = s_do[self.nunit % 2]
            self.nunit += 1
            nt = False
            if it.kind == "X":
                m0 = salu("s_add_u32", "m0", s_w6144, it.slot * SLOT + 3072 * k)
                off = salu("s_add_u32", so, s_xb, 128 * it.n + 30720 * k)
                vo, sr = DA, SRD_X
            else:
                m0 = salu("s_add_u32", "m0", s_w3072, it.slot * SLOT)
                if it.kind in "KV":
                    imm = it.h * 196608 + (0 if self.cfg["kv_same"] else it.n * 12288)
                    off = salu("s_add_u32", so, s_kvb, imm)
                    vo, sr = DKV, (SRD_K if it.kind == "K" else SRD_V)
                    nt = self.cfg["nt_kv"]
                elif it.kind == "W":
                    off = salu("s_add_u32", so, s_wb, it.h * 384 + it.n * 393216)
                    vo, sr = DB, SRD_W
                else:
                    c, s = it.n // 4, it.n % 4
                    off = salu("s_add_u32", so, s_ob, s * 122880 + c * 128)
                    vo, sr = DO, SRD_WO
            out.append((m0, off, [dma(vo[i], sr, so, 1024 * i, nt, tag=tag) for i in range(3)]))
        return out

    def place_dma(self):
        for b in range(NSTEP):
            un = []
            for it in self.seq:
                if it.issue == b: un += self.units(it)
            assert len(un) <= 4
            if len(un) == 1:
                pos = [[(0, 28), (1, 4), (1, 16)]]
            elif len(un) == 2:
                pos = [[(0, 28), (0, 34), (1, 4)], [(1, 10), (1, 16), (1, 22)]]
            elif len(un) > 2:
                pos = [[(0, 28), (0, 29), (0, 34)], [(1, 2), (1, 4), (1, 5)], [(1, 8), (1, 10), (1, 11)], [(1, 14), (1, 16), (1, 17)]][:len(un)]
            else:
                pos = []
            for (m0, off, ins), ps in zip(un, pos):
                for i, (ds_, gi) in enumerate(ps):
                    g = self.gaps[b + ds_]
                    if i == 0:
                        g[gi - 2].sc.append(m0)
                        g[gi - 1].sc.append(off)
                    if len(un) > 2 and gi % 6 < 4 and g[gi].ds:
                        pass
                    g[gi].vm.append(ins[i])

    def frame3(self, s, mf):
        it = self.item[s]
        nx = self.item[s + 1] if s + 1 < NSTEP else None
        gaps = [Gap(mf(i, FB((i // 6) % 3, (i // 3) % 2))) for i in range(36)]
        nds = [0] * 6
        for Gi in range(6):
            if Gi < 4:
                nds[Gi] = self.place_reads3(gaps, 6 * Gi, it, Gi + 2)
            elif nx is not None:
                nds[Gi] = self.place_reads3(gaps, 6 * Gi, nx, Gi - 4)
        xs = [x for x in self.X.values() if x.need == s]
        if xs:
            rd = self.x_reads3(xs[0])
            for k, gi in enumerate((24, 25, 26, 27, 30, 31)):
                gaps[gi].ds.append(rd[k])
            nds[4] += 4
            nds[5] += 2
        need = [("item", x.name) for x in self.seq if x.need == s]
        for Gi in range(6):
            gi = 6 * Gi + 5
            if Gi == 3 and nx is not None:
                gaps[gi].sc += [WaitTag(need, lgkm=nds[Gi]), barrier()]
            elif Gi == 5:
                if nx is not None: gaps[gi].sc.append(wait(lgkm=nds[5]))
            else:
                gaps[gi].sc.append(wait(lgkm=nds[Gi]))
        if self.cfg["steptime"]:
            gaps[24].post.append(I("s_memtime s[92:93]", "salu"))
            gaps[33].post += [raw("s_waitcnt lgkmcnt(0)"), raw(f"v_writelane_b32 v{253 + s // 64}, s92, {s % 64}", "valu")]
        self.gaps[s] = gaps

    def build_frames(self):
        for h in range(2):
            for t in range(20):
                def mf(i, fr, t=t):
                    T, qb = i // 3, i % 3
                    return mfma(ACC(T, qb), fr, XF(t // 2, t % 2, qb), 0 if t == 0 else ACC(T, qb))
                self.frame3(52 * h + t, mf)
            for j in range(32):
                kind, n = a_item(j)
                p = n % 2
                if kind == "K":
                    def mf(i, fr, p=p, n=n):
                        f, qb = i // 3, i % 3
                        kt, kb = f // 6, f % 6
                        c = (0 if n < 2 else NEGM(qb)) if kb == 0 else SB(p, kt, qb)
                        return mfma(SB(p, kt, qb), fr, QF(kb, qb), c)
                else:
                    def mf(i, fr, p=p, n=n):
                        T, qb = i // 3, i % 3
                        return mfma(OA(T, qb), fr, PB(p, qb), 0 if n == 0 else OA(T, qb))
                self.frame3(52 * h + 20 + j, mf)
        for j in range(40):
            c, s = j // 4, j % 4

            def mf(i, fr, s=s, p=c % 2):
                f, qb = i // 3, i % 3
                jj, nt = f // 4, f % 4
                ks = 3 * s + jj
                h, kb = ks // 6, ks % 6
                b = O0P(kb, qb) if h == 0 else QF(kb, qb)
                return mfma(OACC(p, nt, qb), fr, b, 0 if ks == 0 else OACC(p, nt, qb))
            self.frame3(104 + j, mf)

    def a_fill(self, h):
        s0 = 52 * h + 20
        gaps = [g for j in range(32) for g in self.gaps[s0 + j]]
        Gx = lambda j, i=0: 36 * j + i
        mops, fin = self.max_ops(0)
        for o in mops: o.earliest = Gx(1, 0)
        sm0, _ = self.softmax_ops(0, sub_deps=fin, earliest_kt=(Gx(1, 0), Gx(1, 2)))
        pend = list_schedule(gaps, mops + sm0, Gx(1, 0), Gx(2, 0))
        self.post[s0 + 1] += autonop(self.emit_tail(pend)) + [valu("v_mov_b32", L(qb), LT(qb)) for qb in range(3)]
        for n in range(1, 16):
            p = n % 2
            j0 = 2 * n
            j1 = j0 + 2 if n <= 14 else j0 + 1
            sub = [None, None, None] if n == 1 else None
            sm, ltl = self.softmax_ops(p, sub_deps=sub, earliest_kt=(Gx(j0, 0), Gx(j0, 3)), lacc=(n > 1))
            pend = list_schedule(gaps, sm + self.check_ops(ltl, p), Gx(j0, 0), Gx(j1, 0))
            self.post[s0 + j1 - 1] += autonop(self.emit_tail(pend)) + self.check_branch(p)
            if n == 15: self.post[s0 + j1 - 1] += self.l_acc()

    def n_block(self, h):
        out = []
        if h == 1 and self.cfg["fused"]:
            out += self.reduce_setup()
        out += self.rinv_ops()
        tmp = [V(0 + 8 * k, 8) for k in range(3)]
        pk = [V(24 + 4 * k, 4) for k in range(3)]
        for kb in range(6):
            for qb in range(3):
                t = tmp[qb][1]
                for tt, T in enumerate((2 * kb, 2 * kb + 1)):
                    for r in range(4):
                        out.append(I(f"v_accvgpr_read_b32 v{t + 4 * tt + r}, {rtxt(OAr(T, qb, r))}", "valu",
                                     [V(t + 4 * tt + r)], [OAr(T, qb, r)]))
            for qb in range(3):
                t = tmp[qb][1]
                for h2 in range(4):
                    out.append(valu("v_pk_mul_f32", V(t + 2 * h2, 2), V(t + 2 * h2, 2), V(MT(8 + 2 * qb)[1], 2)))
            for qb in range(3):
                t = tmp[qb][1]
                for r in range(4):
                    d = V(pk[qb][1] + r) if h == 0 else QFr(kb, qb, r)
                    out.append(valu("v_cvt_pk_bf16_f32", d, V(t + 2 * r), V(t + 2 * r + 1)))
            if h == 0:
                for qb in range(3):
                    for r in range(4):
                        out.append(I(f"v_accvgpr_write_b32 {rtxt(O0Pr(kb, qb, r))}, v{pk[qb][1] + r}", "valu",
                                     [O0Pr(kb, qb, r)], [V(pk[qb][1] + r)]))
        return autonop(out)

    def o_fill(self):
        gaps = [g for j in range(40) for g in self.gaps[104 + j]]

        def cvts(p):
            ops = []
            for ntp in range(2):
                for qb in range(3):
                    u = ntp * 3 + qb
                    for h in range(2):
                        a = OACC(p, 2 * ntp + h, qb)[1]
                        ops.append(valu("v_cvt_pk_bf16_f32", CTr(u, 2 * h), V(a), V(a + 1)))
                        ops.append(valu("v_cvt_pk_bf16_f32", CTr(u, 2 * h + 1), V(a + 2), V(a + 3)))
            return ops

        def store(u, c):
            return vstore(CT(u), PSV, SRD_WS, s_pst[u // 4], (u % 4) * 1024, self.cfg["pst_flags"], tag=("st", c))

        spos = [(0, 22), (0, 34), (1, 10), (1, 22), (1, 34), (2, 10)]
        for c in range(1, 10):
            g0 = 36 * (4 * c)
            ops = [Op(x, earliest=g0 + 3) for x in cvts((c - 1) % 2)]
            assert not list_schedule(gaps, ops, g0, g0 + 36)
            for u, (s, gi) in enumerate(spos):
                assert max(o.gap for o in ops[4 * u:4 * u + 4]) < g0 + 36 * s + gi
                if not self.cfg["no_st"]:
                    gaps[36 * (4 * c + s) + gi].vm.append(store(u, c - 1))
            gaps[36 * (4 * c + 3) + 0].sc.append(salu("s_add_u32", s_pst[0], s_pst[0], 24576))
            gaps[36 * (4 * c + 3) + 1].sc.append(salu("s_add_u32", s_pst[1], s_pst[1], 24576))
        fused = self.cfg["fused"]
        if fused:
            for k, (c, fs) in enumerate(((2, 17), (5, 29), (7, 37))):
                for x in gaps[36 * fs + 23].sc:
                    if isinstance(x, WaitTag):
                        x.tag = ("waittag", x.tag[1] + (("st", c),))
                gaps[36 * fs + 24].va.insert(0, valu("v_mov_b32", VFV, k + 1))
                gaps[36 * fs + 29].vm.append(self.flag_store())
            for r, (ps, cs, nper) in enumerate(((19, 21, 2), (31, 33, 3))):
                gaps[36 * ps + 35].vm.append(self.poll_load(("poll", r + 1)))
                self.post[104 + cs - 1] += self.check_spin(r + 1, f"L_sp{r + 1}", WaitTag([("poll", r + 1)]))
                self.post[104 + cs - 1] += [salu("s_add_u32", s_rl, s_pb, 64 * 1024 * r)]
                j, st_ = 0, cs
                while j < 16:
                    for gi in (35, 11, 17)[:nper]:
                        if j == 16: break
                        if st_ == cs and gi < 24: continue
                        g = gaps[36 * st_ + gi]
                        g.vm.append(vload(A(64 * r + 4 * j, 4), PSL, SRD_WS, s_rl, 0, self.cfg["red_flags"], tag=("red", r, j)))
                        g.post.append(salu("s_add_u32", s_rl, s_rl, 245760))
                        j += 1
                    st_ += 1
                assert st_ <= 40
            self.post[104 + 31] += self.red_mfma(0)
            gaps[36 * 39 + 29].vm.append(self.poll_load(("poll", 3)))
        tail = autonop([nop(7)] + cvts(1) + [store(u, 9) for u in range(6)])
        if fused: tail += self.reduce_tail()
        self.post[143] += tail

    def tstamp(self, k):
        if not self.cfg["steptime"]: return []
        return [I("s_memtime s[92:93]", "salu"), raw("s_waitcnt lgkmcnt(0)"), raw(f"v_writelane_b32 v255, s92, {20 + k}", "valu")]


def stamp(k):
    return [I("s_memtime s[56:57]", "salu"), raw("s_waitcnt lgkmcnt(0)"), salu("s_mov_b32", S(64 + k), S(56))]


def main_kernel(cfg):
    g = Gen3(cfg)
    T = cfg["timing"]
    pro = [label("mha_main_kernel"), scmp("s_cmp_ge_u32", S(2), 256), branch("s_cbranch_scc1", "L_main_exit"),
           raw("s_load_dwordx16 s[64:79], s[0:1], 0")]
    lane_ops = []
    wreg = build_lane_consts(lane_ops)
    pro += lane_ops
    pro.append(I(f"v_readfirstlane_b32 {rtxt(s_w)}, {rtxt(wreg)}", "valu", [s_w], [wreg]))
    pro.append(raw("s_waitcnt lgkmcnt(0)"))
    pro += srd(SRD_X, 64, 16 * 192 * 640 * 2) + srd(SRD_K, 66, 16 * 32 * 512 * 192 * 2) + srd(SRD_V, 68, 16 * 32 * 512 * 192 * 2)
    pro += srd(SRD_W, 70, 640 * 6144 * 2) + srd(SRD_WO, 72, 6144 * 640 * 2) + srd(SRD_WS, 78, 402653184)
    pro += [salu("s_mov_b32", s_outp[0], S(74)), salu("s_mov_b32", s_outp[1], S(75)),
            salu("s_mov_b32", s_dbgp[0], S(76)), salu("s_mov_b32", s_dbgp[1], S(77))]
    t0, t1 = s_t[0], s_t[1]
    nb = int(cfg["map_nb"]); npair = 32 // nb
    lg = lambda v: v.bit_length() - 1
    seen = set()
    for wg in range(256):
        a0, j = wg & 7, wg >> 3
        pj = (j & (npair - 1)) + ((a0 & (16 // npair - 1)) << lg(npair))
        bb = (j >> lg(npair)) + ((a0 >> lg(16 // npair)) << lg(nb))
        seen.add((bb, pj))
    assert len(seen) == 256
    pro += [
        salu("s_and_b32", t0, S(2), 7), salu("s_lshr_b32", t1, S(2), 3),
        salu("s_and_b32", s_pj, t1, npair - 1), salu("s_lshr_b32", s_b, t1, lg(npair)),
        salu("s_and_b32", t1, t0, 16 // npair - 1), salu("s_lshl_b32", t1, t1, lg(npair)), salu("s_add_u32", s_pj, s_pj, t1),
        salu("s_lshr_b32", t0, t0, lg(16 // npair)), salu("s_lshl_b32", t0, t0, lg(nb)), salu("s_add_u32", s_b, s_b, t0),
        salu("s_lshl_b32", s_h0, s_pj, 1),
        salu("s_mul_i32", s_w3072, s_w, 3072), salu("s_lshl_b32", s_w6144, s_w3072, 1),
        salu("s_lshl_b32", t0, s_b, 5), salu("s_add_u32", t0, t0, s_h0), salu("s_mul_i32", s_kvb, t0, 196608),
        salu("s_mul_i32", s_wb, s_h0, 384), salu("s_mul_i32", s_xb, s_b, 245760), salu("s_mul_i32", s_ob, s_h0, 245760),
        salu("s_lshl_b32", t0, s_b, 4), salu("s_add_u32", t0, t0, s_pj),
        salu("s_mul_i32", s_pst[0], t0, 245760), salu("s_add_u32", s_pst[0], s_pst[0], PART_OFF),
        salu("s_add_u32", s_pst[1], s_pst[0], 4096),
        salu("s_mov_b32", s_thr, THR_BITS), salu("s_mov_b32", S(48), C_BITS), salu("s_mov_b32", S(49), C_BITS),
    ]
    if T: pro += [I("s_memrealtime s[86:87]", "salu")] + stamp(0)
    if cfg["fused"]:
        pro += [salu("s_lshl_b32", t0, s_b, 8), salu("s_lshl_b32", t1, s_pj, 2), salu("s_add_u32", t0, t0, t1),
                salu("s_add_u32", t0, t0, FLAG_OFF), valu("v_mov_b32", PT(8), 0),
                vstore(PT(8), VFO, SRD_WS, t0, 0, " sc1", tag=("clr",), width=1)]

    gw = S(59)
    lane, lane128 = PT(3), PT(2)
    OOB = 0x7FFFFF00

    def masked(dst, src, n):
        return [valu("v_mov_b32", dst, OOB), raw(f"v_cmp_gt_u32 vcc, {n}, {rtxt(lane)}", "valu"), raw("s_nop 1"),
                raw(f"v_cndmask_b32 {rtxt(dst)}, {rtxt(dst)}, {rtxt(src)}, vcc", "valu")]
    pfs = [salu("s_lshl_b32", gw, S(2), 2), salu("s_add_u32", gw, gw, s_w),
           valu("v_and_b32", lane, 63, TID), valu("v_lshlrev_b32", lane128, 7, lane),
           valu("v_mul_u32_u24", PT(5), 21846, lane), valu("v_lshrrev_b32", PT(5), 16, PT(5)),
           valu("v_mul_u32_u24", PT(6), 3, PT(5)), valu("v_sub_u32", PT(6), lane, PT(6)),
           valu("v_mul_u32_u24", PT(5), 12288, PT(5)), valu("v_lshlrev_b32", PT(6), 7, PT(6)), valu("v_add_u32", PT(5), PT(5), PT(6))]
    pfs += masked(VTK[0], PT(5), 30) + masked(VTK[1], lane128, 60) + masked(PT(4), lane128, 30)
    pfs += [salu("s_and_b32", t0, gw, 15), salu("s_mul_i32", t0, t0, 768), salu("s_lshr_b32", S(100), gw, 4),
            salu("s_mul_i32", S(100), S(100), 122880), salu("s_add_u32", S(100), S(100), t0), salu("s_mul_i32", S(101), gw, 7680)]
    start = []
    if "x" in cfg["pf_start"]:
        start += [salu("s_mul_i32", t0, gw, 3840), pf_load(PT(4), SRD_X, t0)]
    if "w" in cfg["pf_start"]:
        start += [pf_load(VTK[0], SRD_W, S(100))]
    if "1" in cfg["pf_start"]:
        start += [salu("s_add_u32", t0, S(100), 384), pf_load(VTK[0], SRD_W, t0)]
    code_steps = [int(x) for x in str(cfg["code_steps"]).split(".")]
    pfs2 = []
    if cfg["pf_code"]:
        pfs2 += [valu("v_and_b32", PT(7), 31, lane), valu("v_lshlrev_b32", PT(7), 7, PT(7)),
                 salu("s_lshl_b32", t0, s_w, 12), valu("v_add_u32", VL128, t0, PT(7))]
    if int(cfg["pf_start_step"]) == -2:
        pro += pfs + start
        pfs, start = [], []
    pfs += pfs2

    first = [it for it in g.seq if it.issue == -1]
    for k, it in enumerate(first):
        for m0, off, ins in g.units(it):
            pro += [m0, off, nop(0)] + ins
    if cfg["tlb"]:
        tl = [valu("v_and_b32", PT(9), 1, TID)]
        for what in str(cfg["tlb"]):
            if what in "kv":
                tl += [valu("v_mul_u32_u24", PT(10), 393216 - 128, PT(9)), pf_load(PT(10), SRD_K if what == "k" else SRD_V, s_kvb)]
            elif what == "o":
                tl += [valu("v_mul_u32_u24", PT(10), 491520 - 128, PT(9)), pf_load(PT(10), SRD_WO, s_ob)]
            elif what == "p":
                tl += [valu("v_mul_u32_u24", PT(10), 245760 - 128, PT(9)), pf_load(PT(10), SRD_WS, s_pst[0])]
        pro += tl
    pro += pfs
    if cfg["pf_code"] and code_steps[0] < 0: pro += code_pf("L_code")
    if int(cfg["pf_start_step"]) == -1: pro += start
    pro += [WaitTag([("item", it.name) for it in g.seq if it.need == -1]), barrier()]
    if cfg["fused"]:
        TMP = S(96, 4)
        pro += srd(TMP, None, 256, s_dbgp) + [salu("s_lshl_b32", t0, s_b, 4), valu("v_mov_b32", PT(8), 1), WaitTag([("clr",)]),
                I(f"buffer_atomic_add {rtxt(PT(8))}, {rtxt(VFO)}, {rtxt(TMP)}, {rtxt(t0)} offen", "store", [], [PT(8), VFO, TMP, t0], tag=("cnt",))]
    pro += g.x_reads3(g.X[(0, 0)]) + g.first_reads3(g.item[0]) + [wait(lgkm=4)]
    pro.append(label("L_code"))

    g.build_frames()
    g.place_dma()
    def put(s, gi, ins_list):
        gp = g.gaps[s][gi]
        for x in ins_list:
            if x.cls in ("vmem",): gp.vm.append(x)
            else: gp.sc.append(x)
    if int(cfg["pf_start_step"]) >= 0:
        g.pre[int(cfg["pf_start_step"])] += start
    if int(cfg["pf_w1"]) >= 0:
        put(int(cfg["pf_w1"]), 9, [salu("s_add_u32", t0, S(100), 384)])
        put(int(cfg["pf_w1"]), 11, [pf_load(VTK[0], SRD_W, t0)])
    if int(cfg["pf_wo"]) == 52:
        g.post[51] += [pf_load(VTK[1], SRD_WO, S(101))]
    elif int(cfg["pf_wo"]) >= 0:
        put(int(cfg["pf_wo"]), 11, [pf_load(VTK[1], SRD_WO, S(101))])
    if cfg["pf_code"]:
        for k, st_ in enumerate(code_steps):
            if st_ >= 0: g.pre[st_] += code_pf(f"L_code+{16384 * k}")
    if cfg["fused"]:
        g.pre[80] += srd(SRD_DBG2, None, 256, s_dbgp) + [salu("s_lshl_b32", s_b16, s_b, 4),
                      I(f"buffer_load_dword {rtxt(VCHK)}, {rtxt(VFO)}, {rtxt(SRD_DBG2)}, {rtxt(s_b16)} offen sc1", "vmem", [VCHK],
                        [VFO, SRD_DBG2, s_b16], tag=("chk",))]
    for h in range(2):
        g.a_fill(h)
        g.post[52 * h + 19] += g.q_pack() + (stamp(2 + 5 * h) if False else [])
        g.post[52 * h + 51] += g.n_block(h)
    g.o_fill()

    body = []
    marks = {0: 1, 20: 3, 52: 5, 72: 7}
    ends = {19: 2, 51: 4, 71: 6, 103: 8}
    for s in range(NSTEP):
        if T and s in marks: body += stamp(marks[s])
        body += g.pre[s]
        for gp in g.gaps[s]: body += gp.flat()
        if T and s in ends: body += stamp(ends[s])
        body += g.post[s]

    fin = []
    if T:
        fin += stamp(9)
    fin += [raw("s_waitcnt vmcnt(0)")]
    if T:
        fin += [I("s_memtime s[56:57]", "salu"), I("s_memrealtime s[88:89]", "salu"), raw("s_waitcnt lgkmcnt(0)"),
                salu("s_mov_b32", S(74), S(56)), salu("s_mov_b32", S(90), S(88)), salu("s_sub_u32", S(88), S(88), S(86))]
        lst = [64, 65, 66, 67, 68, 69, 70, 71, 72, 73, 74, 88, 86, 90]
        for k, sr in enumerate(lst): fin.append(valu("v_mov_b32", V(k), S(sr)))
        fin += [salu("s_lshl_b32", t0, S(2), 6), salu("s_add_u32", t0, t0, 300 * 1024 * 1024), valu("v_mov_b32", V(20), 0),
                raw(f"v_cmp_eq_u32 vcc, 0, {rtxt(TID)}", "valu"), raw("s_and_saveexec_b64 s[56:57], vcc")]
        for k in range(0, 16, 4): fin.append(vstore(V(k, 4), V(20), SRD_WS, t0, 4 * k))
        fin += [raw("s_waitcnt vmcnt(0)")]
        if cfg["steptime"]:
            fin += [raw("s_mov_b64 exec, -1"), salu("s_mul_i32", t0, S(2), 768), salu("s_add_u32", t0, t0, 320 * 1024 * 1024),
                    raw(f"v_cmp_gt_u32 vcc, 64, {rtxt(TID)}", "valu"), raw("s_and_saveexec_b64 s[56:57], vcc"),
                    valu("v_lshlrev_b32", V(20), 2, TID)]
            for k in range(3): fin.append(vstore(V(253 + k), V(20), SRD_WS, t0, 256 * k, width=1))
            fin += [raw("s_waitcnt vmcnt(0)")]
    fin += [label("L_main_exit"), raw("s_endpgm")]

    seq = pro + body
    res, errs, _, maxout = resolve_and_check(seq, "main")
    for e in errs[:30]: print("ERR", e, file=sys.stderr)
    assert not errs, len(errs)
    assert maxout <= 63, maxout
    for w in seq:
        if isinstance(w, WaitTag):
            vals = [v for v in res[id(w)] if v is not None]
            vm, lgk = (min(vals) if vals else None), w.info[1]
            p = ([f"vmcnt({vm})"] if vm is not None else []) + ([f"lgkmcnt({lgk})"] if lgk is not None else [])
            w.txt = "s_waitcnt " + " ".join(p) if p else "s_nop 0"
    stubs = []
    for k, p in enumerate(g.rare_sites):
        stubs += [label(f"L_rs{k}"), I(f"s_call_b64 {rtxt(s_ret)}, L_rare{p}", "branch"), branch("s_branch", f"L_rr{k}")]
    rare = g.rare_code(0) + g.rare_code(1)
    return seq + fin + stubs + rare


SRD_DBG2 = SRD_DBG

MACROS = """.macro MF d,a,b,c
v_mfma_f32_16x16x32_bf16 \\d,\\a,\\b,\\c
.endm
.macro TR d,a,o
ds_read_b64_tr_b16 \\d,\\a offset:\\o
.endm
.macro RD d,a,o
ds_read_b128 \\d,\\a offset:\\o
.endm
"""


def compact(line):
    import re
    t = line.strip()
    if t.startswith("v_mfma_f32_16x16x32_bf16 "):
        return "MF " + t.split(" ", 1)[1].replace(", ", ",")
    m = re.match(r"ds_read_b64_tr_b16 (\S+), (\S+) offset:(\d+)$", t)
    if m: return f"TR {m.group(1)},{m.group(2)},{m.group(3)}"
    m = re.match(r"ds_read_b128 (\S+), (\S+) offset:(\d+)$", t)
    if m: return f"RD {m.group(1)},{m.group(2)},{m.group(3)}"
    return t.replace(", ", ",")


HEADER = """; Fused multi-head attention block for MI355X (gfx950); assembly produced by my own generator script.
"""


def text_of(cfg, m, pad):
    kname = KNAME if cfg["single"] else "mha_main_kernel"
    lds = int(cfg["R"]) * SLOT
    s = HEADER
    if cfg["single"]:
        s += f"; @launch grid=(256,1,1) block=(256,1,1) lds={lds}\n"
    else:
        s += f"; @launch kernel=mha_main_kernel grid=(256,1,1) block=(256,1,1) lds={lds}\n"
        if not cfg["fused"]:
            s += "; @launch kernel=mha_reduce_kernel grid=(960,1,1) block=(256,1,1) lds=0\n"
    s += '.amdgcn_target "amdgcn-amd-amdhsa--gfx950"\n'
    if cfg["macros"]: s += MACROS
    s += ".text\n"
    ks = [(kname, m)]
    if not cfg["fused"]: ks.append(("mha_reduce_kernel", G.reducer_kernel(cfg)))
    for nm, code in ks:
        lines = []
        for i in code:
            for ln in i.txt.split("\n"):
                lines.append(compact(ln) if cfg["macros"] and i.cls != "label" else ln)
        s += f".globl {nm}\n.p2align 8\n.type {nm},@function\n" + "\n".join(lines).replace("mha_main_kernel:", kname + ":") + "\n"
    s += f".fill {pad}, 4, 0xBF800000\nL_text_end:\n"
    s += '.section .rodata,"a"\n.p2align 6\n' + kd(kname, 512, 256)
    if not cfg["fused"]: s += ".p2align 6\n" + kd("mha_reduce_kernel", 88, 88)
    return s


def build(cfg, path):
    m = main_kernel(cfg)
    s = text_of(cfg, m, 64)
    open("_g3.s", "w").write(s)
    r = subprocess.run(["clang", "-x", "assembler", "-target", "amdgcn-amd-amdhsa", "-mcpu=gfx950", "-c", "_g3.s", "-o", "_g3.o"],
                       capture_output=True, text=True)
    assert r.returncode == 0, r.stderr[:2000]
    sy = subprocess.run(["llvm-readelf", "-s", "_g3.o"], capture_output=True, text=True).stdout
    addr = {ln.split()[-1]: int(ln.split()[1], 16) for ln in sy.splitlines() if ln.strip().endswith(("L_code", "L_text_end", "L_main_exit"))}
    need = addr["L_code"] + 131072 + 256 - addr["L_text_end"]
    pad = 64 + max(0, (need + 3) // 4)
    s = text_of(cfg, m, pad)
    open(path, "w").write(s)
    n_main = sum(1 for i in m if i.cls != "label")
    print(f"wrote {path}: {len(s)} bytes, {n_main} instrs, code {addr['L_main_exit'] - addr['L_code']} B, pad {pad}", file=sys.stderr)


if __name__ == "__main__":
    cfg = dict(CFG)
    path = "out3.s"
    for a in sys.argv[1:]:
        if "=" in a:
            k, v = a.split("=", 1)
            assert k in cfg, k
            cfg[k] = {"True": True, "False": False}.get(v, v)
        else:
            path = a
    build(cfg, path)
```

```python
import sys
import subprocess
import numpy as np
from asmlib import *
import gen as G
from gen import (ACC, SB, SBr, PB, PBr, TT, NEGM, NEGMr, L, LT, MT, OACC, CT, CTr, QF, QFr, AK, AV, AW, AO, DKV, DA, DB, DO,
                 AX, PSV, PT, TID, JUNK, VPC, VL128, VTK, VFO, VCHK, RD, SEL, FLG, VPOLL, VFV, VOUT, VZ, PSL, PART_OFF, FLAG_OFF,
                 SRD_DBG, SRD_OUT, s_outp, s_dbgp, s_b16, s_kw, s_pb, s_ro, s_rl, OA, OAr, O0P, O0Pr, FB, FBh,
                 SRD_A, SRD_K, SRD_V, SRD_WO, SRD_WS, SRD_B, s_w3072, s_pst, s_thr, s_c2, s_h0, s_b, s_pj, s_w, s_t, s_ret,
                 THR_BITS, C_BITS, SLOT, build_lane_consts, autonop, srd, pf_load, code_pf, kd, KNAME, Gen, a_item)
import sched

CFG = dict(
    nt_kv=True, timing=False, steptime=False, pst_flags=" sc1", red_flags=" sc1",
    dspair_v=True, dspair_k=False, dspair_w=False, no_st=False, map_nb=8,
    fused=True, single=False, kv_same=False,
    R=13, P=3, P0=None, DW=4, DX=3, NW0=6, NX0=2, xres=23,
    DW0=0, NW00=0, tlb='', park0='', park1='', pro_max=7, early_max=4, early_steps=3,
    pf_code=True, pf_w1=8, pf_wo=52, pf_start="xw", pf_start_step=0, code_steps='-1.14.34.56.78.98.118', macros=True,
)

SRD_X, SRD_W = SRD_A, SRD_B
G.SRD_DBG = S(4, 4)
SRD_DBG = G.SRD_DBG
s_kvb, s_wb, s_xb, s_ob = S(33), S(34), S(37), S(38)
s_do = [S(35), S(36)]
s_w6144 = S(41)
NSTEP = 144


def XF(u, half, qb): return V(144 + ((u % 2) * 2 + half) * 12 + 4 * qb, 4)


class Gen3(Gen):
    def __init__(self, cfg):
        self.cfg = cfg
        self.rare_sites = []
        i = lambda k: int(cfg[k])
        self.R = i("R")
        self.seq, self.X, self.W, self.KV, self.O = sched.build(
            R=self.R, P=i("P"), DW=i("DW"), DX=i("DX"), NW0=i("NW0"), NX0=i("NX0"),
            P0=None if cfg["P0"] in (None, "None") else int(cfg["P0"]), xres=i("xres"),
            pro_max=i("pro_max"), early_max=i("early_max"), early_steps=i("early_steps"),
            park0=[int(x) for x in str(cfg["park0"]).split(".")] if cfg["park0"] else None,
            park1=[int(x) for x in str(cfg["park1"]).split(".")] if cfg["park1"] else None,
            DW0=int(cfg["DW0"]) or None, NW00=int(cfg["NW00"]) or None)
        self.item = []
        for h in range(2):
            self.item += [self.W[(h, t)] for t in range(20)] + [self.KV[(h, j)] for j in range(32)]
        self.item += [self.O[j] for j in range(40)]
        self.gaps = [None] * NSTEP
        self.pre = {s: [] for s in range(NSTEP)}
        self.post = {s: [] for s in range(NSTEP)}
        self.regs = {"K": AK, "V": AV, "W": AW, "O": AO}
        self.plan = {}
        for kind in self.regs:
            its = [it for it in self.item if it.kind == kind]
            k = 0
            while k < len(its):
                lo = hi = its[k].slot
                e = k
                while e + 1 < len(its):
                    nl, nh = min(lo, its[e + 1].slot), max(hi, its[e + 1].slot)
                    if nh - nl > 4: break
                    lo, hi = nl, nh
                    e += 1
                for q in range(k, e + 1): self.plan[its[q].name] = lo * SLOT
                k = e + 1
        self.base = {kind: [0] * len(self.regs[kind]) for kind in self.regs}
        self.nunit = 0
        self.fixes = {}

    def place_fixes(self):
        for s, lst in self.fixes.items():
            gaps = self.gaps[s]
            for x, lo, hi in lst:
                c = [g for g in range(lo, hi + 1) if gaps[g].free() == 1 and not gaps[g].vm and g != 23]
                if not c: c = [g for g in range(lo, hi + 1) if gaps[g].free() >= 1 and not gaps[g].vm and g != 23]
                if not c: c = [hi]
                gaps[c[0]].va.append(x)

    def frag_reads3(self, it, f, buf):
        win = self.plan[it.name]
        off = it.slot * SLOT - win
        kind = it.kind
        if kind == "K":
            kt, kb = f // 6, f % 6
            ri = kb % 2
            return [(ds_read("ds_read_b128", FB(buf, f % 2), AK[ri], off + kt * 6144 + (kb // 2) * 128), ri, win)]
        ri, j = f % 4, f // 4
        o, d2 = {"V": (off + 128 * j, 6144), "W": (off + 128 * j, 1536), "O": (off + 4096 * j, 2048)}[kind]
        r = self.regs[kind][ri]
        return [(ds_read("ds_read_b64_tr_b16", FBh(buf, f % 2, 0), r, o), ri, win),
                (ds_read("ds_read_b64_tr_b16", FBh(buf, f % 2, 1), r, o + d2), ri, win)]

    def fix(self, kind, ri, win):
        B = self.base[kind]
        if B[ri] == win: return None
        d = win - B[ri]
        B[ri] = win
        r = self.regs[kind][ri]
        return valu("v_add_u32", r, d, r) if d > 0 else valu("v_subrev_u32", r, -d, r)

    def place_reads3(self, gaps, g0, it, grp, cur=None):
        rl = []
        for f in (2 * grp, 2 * grp + 1):
            rl += self.frag_reads3(it, f, grp % 3)
        fx = [x for x in (self.fix(it.kind, ri, win) for _, ri, win in rl) if x is not None]
        if fx:
            same = (cur is not None and cur.kind == it.kind)
            if it.kind == "K":
                lo = 20 if same else 2
            elif g0 == 24:
                lo = 16 if same else 2
            else:
                lo = 22 if same else 2
            self.pending_fix += [(x, lo, g0 - 1) for x in fx]
        pair = self.cfg["dspair_k"] if it.kind == "K" else (self.cfg["dspair_v"] if it.kind == "V" else self.cfg["dspair_w"])
        for k, (ins, ri, win) in enumerate(rl):
            gaps[g0 + (k // 2 if pair else k)].ds.append(ins)
        return len(rl)

    def first_reads3(self, it):
        out = []
        for grp in range(2):
            for f in (2 * grp, 2 * grp + 1):
                for ins, ri, win in self.frag_reads3(it, f, grp % 3):
                    x = self.fix(it.kind, ri, win)
                    if x is not None: out.append(x)
                    out.append(ins)
        for ri in range(len(self.regs[it.kind])):
            x = self.fix(it.kind, ri, self.plan[it.name])
            if x is not None: out.append(x)
        return out

    def x_reads3(self, it):
        u = it.n
        return [ds_read("ds_read_b128", XF(u, half, qb), AX[half], it.slot * SLOT + 2048 * qb) for half in range(2) for qb in range(3)]

    def units(self, it):
        tag = ("item", it.name)
        out = []
        for k in range(it.units):
            so = s_do[self.nunit % 2]
            self.nunit += 1
            nt = False
            if it.kind == "X":
                m0 = salu("s_add_u32", "m0", s_w6144, it.slot * SLOT + 3072 * k)
                off = salu("s_add_u32", so, s_xb, 128 * it.n + 30720 * k)
                vo, sr = DA, SRD_X
            else:
                m0 = salu("s_add_u32", "m0", s_w3072, it.slot * SLOT)
                if it.kind in "KV":
                    imm = it.h * 196608 + (0 if self.cfg["kv_same"] else it.n * 12288)
                    off = salu("s_add_u32", so, s_kvb, imm)
                    vo, sr = DKV, (SRD_K if it.kind == "K" else SRD_V)
                    nt = self.cfg["nt_kv"]
                elif it.kind == "W":
                    off = salu("s_add_u32", so, s_wb, it.h * 384 + it.n * 393216)
                    vo, sr = DB, SRD_W
                else:
                    c, s = it.n // 4, it.n % 4
                    off = salu("s_add_u32", so, s_ob, s * 122880 + c * 128)
                    vo, sr = DO, SRD_WO
            out.append((m0, off, [dma(vo[i], sr, so, 1024 * i, nt, tag=tag) for i in range(3)]))
        return out

    def place_dma(self):
        for b in range(NSTEP):
            un = []
            for it in self.seq:
                if it.issue == b: un += self.units(it)
            assert len(un) <= 4
            if len(un) == 1:
                pos = [[(0, 28), (1, 4), (1, 16)]]
            elif len(un) == 2:
                pos = [[(0, 28), (0, 34), (1, 4)], [(1, 10), (1, 16), (1, 22)]]
            elif len(un) > 2:
                pos = [[(0, 28), (0, 29), (0, 34)], [(1, 2), (1, 4), (1, 5)], [(1, 8), (1, 10), (1, 11)], [(1, 14), (1, 16), (1, 17)]][:len(un)]
            else:
                pos = []
            for (m0, off, ins), ps in zip(un, pos):
                for i, (ds_, gi) in enumerate(ps):
                    g = self.gaps[b + ds_]
                    if i == 0:
                        g[gi - 2].sc.append(m0)
                        g[gi - 1].sc.append(off)
                    if len(un) > 2 and gi % 6 < 4 and g[gi].ds:
                        pass
                    g[gi].vm.append(ins[i])

    def frame3(self, s, mf):
        it = self.item[s]
        nx = self.item[s + 1] if s + 1 < NSTEP else None
        gaps = [Gap(mf(i, FB((i // 6) % 3, (i // 3) % 2))) for i in range(36)]
        nds = [0] * 6
        self.pending_fix = []
        for Gi in range(6):
            if Gi < 4:
                nds[Gi] = self.place_reads3(gaps, 6 * Gi, it, Gi + 2)
            elif nx is not None:
                nds[Gi] = self.place_reads3(gaps, 6 * Gi, nx, Gi - 4, cur=it)
        xs = [x for x in self.X.values() if x.need == s]
        if xs:
            rd = self.x_reads3(xs[0])
            for k, gi in enumerate((24, 25, 26, 27, 30, 31)):
                gaps[gi].ds.append(rd[k])
            nds[4] += 4
            nds[5] += 2
        need = [("item", x.name) for x in self.seq if x.need == s]
        for Gi in range(6):
            gi = 6 * Gi + 5
            if Gi == 3 and nx is not None:
                gaps[gi].sc += [WaitTag(need, lgkm=nds[Gi]), barrier()]
            elif Gi == 5:
                if nx is not None: gaps[gi].sc.append(wait(lgkm=nds[5]))
            else:
                gaps[gi].sc.append(wait(lgkm=nds[Gi]))
        self.fixes[s] = self.pending_fix
        if self.cfg["steptime"]:
            gaps[24].post.append(I("s_memtime s[92:93]", "salu"))
            gaps[33].post += [raw("s_waitcnt lgkmcnt(0)"), raw(f"v_writelane_b32 v{253 + s // 64}, s92, {s % 64}", "valu")]
        self.gaps[s] = gaps

    def build_frames(self):
        for h in range(2):
            for t in range(20):
                def mf(i, fr, t=t):
                    T, qb = i // 3, i % 3
                    return mfma(ACC(T, qb), fr, XF(t // 2, t % 2, qb), 0 if t == 0 else ACC(T, qb))
                self.frame3(52 * h + t, mf)
            for j in range(32):
                kind, n = a_item(j)
                p = n % 2
                if kind == "K":
                    def mf(i, fr, p=p, n=n):
                        f, qb = i // 3, i % 3
                        kt, kb = f // 6, f % 6
                        c = (0 if n < 2 else NEGM(qb)) if kb == 0 else SB(p, kt, qb)
                        return mfma(SB(p, kt, qb), fr, QF(kb, qb), c)
                else:
                    def mf(i, fr, p=p, n=n):
                        T, qb = i // 3, i % 3
                        return mfma(OA(T, qb), fr, PB(p, qb), 0 if n == 0 else OA(T, qb))
                self.frame3(52 * h + 20 + j, mf)
        for j in range(40):
            c, s = j // 4, j % 4

            def mf(i, fr, s=s, p=c % 2):
                f, qb = i // 3, i % 3
                jj, nt = f // 4, f % 4
                ks = 3 * s + jj
                h, kb = ks // 6, ks % 6
                b = O0P(kb, qb) if h == 0 else QF(kb, qb)
                return mfma(OACC(p, nt, qb), fr, b, 0 if ks == 0 else OACC(p, nt, qb))
            self.frame3(104 + j, mf)

    def a_fill(self, h):
        s0 = 52 * h + 20
        gaps = [g for j in range(32) for g in self.gaps[s0 + j]]
        Gx = lambda j, i=0: 36 * j + i
        mops, fin = self.max_ops(0)
        for o in mops: o.earliest = Gx(1, 0)
        sm0, _ = self.softmax_ops(0, sub_deps=fin, earliest_kt=(Gx(1, 0), Gx(1, 2)))
        pend = list_schedule(gaps, mops + sm0, Gx(1, 0), Gx(2, 0))
        self.post[s0 + 1] += autonop(self.emit_tail(pend)) + [valu("v_mov_b32", L(qb), LT(qb)) for qb in range(3)]
        for n in range(1, 16):
            p = n % 2
            j0 = 2 * n
            j1 = j0 + 2 if n <= 14 else j0 + 1
            sub = [None, None, None] if n == 1 else None
            sm, ltl = self.softmax_ops(p, sub_deps=sub, earliest_kt=(Gx(j0, 0), Gx(j0, 3)), lacc=(n > 1))
            pend = list_schedule(gaps, sm + self.check_ops(ltl, p), Gx(j0, 0), Gx(j1, 0))
            self.post[s0 + j1 - 1] += autonop(self.emit_tail(pend)) + self.check_branch(p)
            if n == 15: self.post[s0 + j1 - 1] += self.l_acc()

    def n_block(self, h):
        out = []
        if h == 1 and self.cfg["fused"]:
            out += self.reduce_setup()
        out += self.rinv_ops()
        tmp = [V(0 + 8 * k, 8) for k in range(3)]
        pk = [V(24 + 4 * k, 4) for k in range(3)]
        for kb in range(6):
            for qb in range(3):
                t = tmp[qb][1]
                for tt, T in enumerate((2 * kb, 2 * kb + 1)):
                    for r in range(4):
                        out.append(I(f"v_accvgpr_read_b32 v{t + 4 * tt + r}, {rtxt(OAr(T, qb, r))}", "valu",
                                     [V(t + 4 * tt + r)], [OAr(T, qb, r)]))
            for qb in range(3):
                t = tmp[qb][1]
                for h2 in range(4):
                    out.append(valu("v_pk_mul_f32", V(t + 2 * h2, 2), V(t + 2 * h2, 2), V(MT(8 + 2 * qb)[1], 2)))
            for qb in range(3):
                t = tmp[qb][1]
                for r in range(4):
                    d = V(pk[qb][1] + r) if h == 0 else QFr(kb, qb, r)
                    out.append(valu("v_cvt_pk_bf16_f32", d, V(t + 2 * r), V(t + 2 * r + 1)))
            if h == 0:
                for qb in range(3):
                    for r in range(4):
                        out.append(I(f"v_accvgpr_write_b32 {rtxt(O0Pr(kb, qb, r))}, v{pk[qb][1] + r}", "valu",
                                     [O0Pr(kb, qb, r)], [V(pk[qb][1] + r)]))
        return autonop(out)

    def o_fill(self):
        gaps = [g for j in range(40) for g in self.gaps[104 + j]]

        def cvts(p):
            ops = []
            for ntp in range(2):
                for qb in range(3):
                    u = ntp * 3 + qb
                    for h in range(2):
                        a = OACC(p, 2 * ntp + h, qb)[1]
                        ops.append(valu("v_cvt_pk_bf16_f32", CTr(u, 2 * h), V(a), V(a + 1)))
                        ops.append(valu("v_cvt_pk_bf16_f32", CTr(u, 2 * h + 1), V(a + 2), V(a + 3)))
            return ops

        def store(u, c):
            return vstore(CT(u), PSV, SRD_WS, s_pst[u // 4], (u % 4) * 1024, self.cfg["pst_flags"], tag=("st", c))

        spos = [(0, 22), (0, 34), (1, 10), (1, 22), (1, 34), (2, 10)]
        for c in range(1, 10):
            g0 = 36 * (4 * c)
            for u, (s, gi) in enumerate(spos):
                if not self.cfg["no_st"]:
                    gaps[36 * (4 * c + s) + gi].vm.append(store(u, c - 1))
            ops = [Op(x, earliest=g0 + 3) for x in cvts((c - 1) % 2)]
            assert not list_schedule(gaps, ops, g0, g0 + 36)
            for u, (s, gi) in enumerate(spos):
                assert max(o.gap for o in ops[4 * u:4 * u + 4]) < g0 + 36 * s + gi
            gaps[36 * (4 * c + 3) + 0].sc.append(salu("s_add_u32", s_pst[0], s_pst[0], 24576))
            gaps[36 * (4 * c + 3) + 1].sc.append(salu("s_add_u32", s_pst[1], s_pst[1], 24576))
        fused = self.cfg["fused"]
        if fused:
            for k, (c, fs) in enumerate(((2, 17), (5, 29), (7, 37))):
                for x in gaps[36 * fs + 23].sc:
                    if isinstance(x, WaitTag):
                        x.tag = ("waittag", x.tag[1] + (("st", c),))
                gaps[36 * fs + 24].va.insert(0, valu("v_mov_b32", VFV, k + 1))
                gaps[36 * fs + 29].vm.append(self.flag_store())
            for r, (ps, cs, nper) in enumerate(((19, 21, 2), (31, 33, 3))):
                gaps[36 * ps + 35].vm.append(self.poll_load(("poll", r + 1)))
                self.post[104 + cs - 1] += self.check_spin(r + 1, f"L_sp{r + 1}", WaitTag([("poll", r + 1)]))
                self.post[104 + cs - 1] += [salu("s_add_u32", s_rl, s_pb, 64 * 1024 * r)]
                j, st_ = 0, cs
                while j < 16:
                    for gi in (35, 11, 17)[:nper]:
                        if j == 16: break
                        if st_ == cs and gi < 24: continue
                        g = gaps[36 * st_ + gi]
                        g.vm.append(vload(A(64 * r + 4 * j, 4), PSL, SRD_WS, s_rl, 0, self.cfg["red_flags"], tag=("red", r, j)))
                        g.post.append(salu("s_add_u32", s_rl, s_rl, 245760))
                        j += 1
                    st_ += 1
                assert st_ <= 40
            self.post[104 + 31] += self.red_mfma(0)
            gaps[36 * 39 + 29].vm.append(self.poll_load(("poll", 3)))
        tail = autonop([nop(7)] + cvts(1) + [store(u, 9) for u in range(6)])
        if fused: tail += self.reduce_tail()
        self.post[143] += tail

    def tstamp(self, k):
        if not self.cfg["steptime"]: return []
        return [I("s_memtime s[92:93]", "salu"), raw("s_waitcnt lgkmcnt(0)"), raw(f"v_writelane_b32 v255, s92, {20 + k}", "valu")]


def stamp(k):
    return [I("s_memtime s[56:57]", "salu"), raw("s_waitcnt lgkmcnt(0)"), salu("s_mov_b32", S(64 + k), S(56))]


def main_kernel(cfg):
    g = Gen3(cfg)
    T = cfg["timing"]
    pro = [label("mha_main_kernel"), scmp("s_cmp_ge_u32", S(2), 256), branch("s_cbranch_scc1", "L_main_exit"),
           raw("s_load_dwordx16 s[64:79], s[0:1], 0")]
    lane_ops = []
    wreg = build_lane_consts(lane_ops)
    pro += lane_ops
    pro.append(I(f"v_readfirstlane_b32 {rtxt(s_w)}, {rtxt(wreg)}", "valu", [s_w], [wreg]))
    pro.append(raw("s_waitcnt lgkmcnt(0)"))
    pro += srd(SRD_X, 64, 16 * 192 * 640 * 2) + srd(SRD_K, 66, 16 * 32 * 512 * 192 * 2) + srd(SRD_V, 68, 16 * 32 * 512 * 192 * 2)
    pro += srd(SRD_W, 70, 640 * 6144 * 2) + srd(SRD_WO, 72, 6144 * 640 * 2) + srd(SRD_WS, 78, 402653184)
    pro += [salu("s_mov_b32", s_outp[0], S(74)), salu("s_mov_b32", s_outp[1], S(75)),
            salu("s_mov_b32", s_dbgp[0], S(76)), salu("s_mov_b32", s_dbgp[1], S(77))]
    t0, t1 = s_t[0], s_t[1]
    nb = int(cfg["map_nb"]); npair = 32 // nb
    lg = lambda v: v.bit_length() - 1
    seen = set()
    for wg in range(256):
        a0, j = wg & 7, wg >> 3
        pj = (j & (npair - 1)) + ((a0 & (16 // npair - 1)) << lg(npair))
        bb = (j >> lg(npair)) + ((a0 >> lg(16 // npair)) << lg(nb))
        seen.add((bb, pj))
    assert len(seen) == 256
    pro += [
        salu("s_and_b32", t0, S(2), 7), salu("s_lshr_b32", t1, S(2), 3),
        salu("s_and_b32", s_pj, t1, npair - 1), salu("s_lshr_b32", s_b, t1, lg(npair)),
        salu("s_and_b32", t1, t0, 16 // npair - 1), salu("s_lshl_b32", t1, t1, lg(npair)), salu("s_add_u32", s_pj, s_pj, t1),
        salu("s_lshr_b32", t0, t0, lg(16 // npair)), salu("s_lshl_b32", t0, t0, lg(nb)), salu("s_add_u32", s_b, s_b, t0),
        salu("s_lshl_b32", s_h0, s_pj, 1),
        salu("s_mul_i32", s_w3072, s_w, 3072), salu("s_lshl_b32", s_w6144, s_w3072, 1),
        salu("s_lshl_b32", t0, s_b, 5), salu("s_add_u32", t0, t0, s_h0), salu("s_mul_i32", s_kvb, t0, 196608),
        salu("s_mul_i32", s_wb, s_h0, 384), salu("s_mul_i32", s_xb, s_b, 245760), salu("s_mul_i32", s_ob, s_h0, 245760),
        salu("s_lshl_b32", t0, s_b, 4), salu("s_add_u32", t0, t0, s_pj),
        salu("s_mul_i32", s_pst[0], t0, 245760), salu("s_add_u32", s_pst[0], s_pst[0], PART_OFF),
        salu("s_add_u32", s_pst[1], s_pst[0], 4096),
        salu("s_mov_b32", s_thr, THR_BITS), salu("s_mov_b32", S(48), C_BITS), salu("s_mov_b32", S(49), C_BITS),
    ]
    if T: pro += [I("s_memrealtime s[86:87]", "salu")] + stamp(0)
    if cfg["fused"]:
        pro += [salu("s_lshl_b32", t0, s_b, 8), salu("s_lshl_b32", t1, s_pj, 2), salu("s_add_u32", t0, t0, t1),
                salu("s_add_u32", t0, t0, FLAG_OFF), valu("v_mov_b32", PT(8), 0),
                vstore(PT(8), VFO, SRD_WS, t0, 0, " sc1", tag=("clr",), width=1)]

    gw = S(59)
    lane, lane128 = PT(3), PT(2)
    OOB = 0x7FFFFF00

    def masked(dst, src, n):
        return [valu("v_mov_b32", dst, OOB), raw(f"v_cmp_gt_u32 vcc, {n}, {rtxt(lane)}", "valu"), raw("s_nop 1"),
                raw(f"v_cndmask_b32 {rtxt(dst)}, {rtxt(dst)}, {rtxt(src)}, vcc", "valu")]
    pfs = [salu("s_lshl_b32", gw, S(2), 2), salu("s_add_u32", gw, gw, s_w),
           valu("v_and_b32", lane, 63, TID), valu("v_lshlrev_b32", lane128, 7, lane),
           valu("v_mul_u32_u24", PT(5), 21846, lane), valu("v_lshrrev_b32", PT(5), 16, PT(5)),
           valu("v_mul_u32_u24", PT(6), 3, PT(5)), valu("v_sub_u32", PT(6), lane, PT(6)),
           valu("v_mul_u32_u24", PT(5), 12288, PT(5)), valu("v_lshlrev_b32", PT(6), 7, PT(6)), valu("v_add_u32", PT(5), PT(5), PT(6))]
    pfs += masked(VTK[0], PT(5), 30) + masked(VTK[1], lane128, 60) + masked(PT(4), lane128, 30)
    pfs += [salu("s_and_b32", t0, gw, 15), salu("s_mul_i32", t0, t0, 768), salu("s_lshr_b32", S(100), gw, 4),
            salu("s_mul_i32", S(100), S(100), 122880), salu("s_add_u32", S(100), S(100), t0), salu("s_mul_i32", S(101), gw, 7680)]
    start = []
    if "x" in cfg["pf_start"]:
        start += [salu("s_mul_i32", t0, gw, 3840), pf_load(PT(4), SRD_X, t0)]
    if "w" in cfg["pf_start"]:
        start += [pf_load(VTK[0], SRD_W, S(100))]
    if "1" in cfg["pf_start"]:
        start += [salu("s_add_u32", t0, S(100), 384), pf_load(VTK[0], SRD_W, t0)]
    code_steps = [int(x) for x in str(cfg["code_steps"]).split(".")]
    pfs2 = []
    if cfg["pf_code"]:
        pfs2 += [valu("v_and_b32", PT(7), 31, lane), valu("v_lshlrev_b32", PT(7), 7, PT(7)),
                 salu("s_lshl_b32", t0, s_w, 12), valu("v_add_u32", VL128, t0, PT(7))]
    if int(cfg["pf_start_step"]) == -2:
        pro += pfs + start
        pfs, start = [], []
    pfs += pfs2

    first = [it for it in g.seq if it.issue == -1]
    for k, it in enumerate(first):
        for m0, off, ins in g.units(it):
            pro += [m0, off, nop(0)] + ins
    if cfg["tlb"]:
        tl = [valu("v_and_b32", PT(9), 1, TID)]
        for what in str(cfg["tlb"]):
            if what in "kv":
                tl += [valu("v_mul_u32_u24", PT(10), 393216 - 128, PT(9)), pf_load(PT(10), SRD_K if what == "k" else SRD_V, s_kvb)]
            elif what == "o":
                tl += [valu("v_mul_u32_u24", PT(10), 491520 - 128, PT(9)), pf_load(PT(10), SRD_WO, s_ob)]
            elif what == "p":
                tl += [valu("v_mul_u32_u24", PT(10), 245760 - 128, PT(9)), pf_load(PT(10), SRD_WS, s_pst[0])]
        pro += tl
    pro += pfs
    if cfg["pf_code"] and code_steps[0] < 0: pro += code_pf("L_code")
    if int(cfg["pf_start_step"]) == -1: pro += start
    pro += [WaitTag([("item", it.name) for it in g.seq if it.need == -1]), barrier()]
    if cfg["fused"]:
        TMP = S(96, 4)
        pro += srd(TMP, None, 256, s_dbgp) + [salu("s_lshl_b32", t0, s_b, 4), valu("v_mov_b32", PT(8), 1), WaitTag([("clr",)]),
                I(f"buffer_atomic_add {rtxt(PT(8))}, {rtxt(VFO)}, {rtxt(TMP)}, {rtxt(t0)} offen", "store", [], [PT(8), VFO, TMP, t0], tag=("cnt",))]
    pro += g.x_reads3(g.X[(0, 0)]) + g.first_reads3(g.item[0]) + [wait(lgkm=4)]
    pro.append(label("L_code"))

    g.build_frames()
    g.place_dma()
    g.place_fixes()
    def put(s, gi, ins_list):
        gp = g.gaps[s][gi]
        for x in ins_list:
            if x.cls in ("vmem",): gp.vm.append(x)
            else: gp.sc.append(x)
    if int(cfg["pf_start_step"]) >= 0:
        g.pre[int(cfg["pf_start_step"])] += start
    if int(cfg["pf_w1"]) >= 0:
        put(int(cfg["pf_w1"]), 9, [salu("s_add_u32", t0, S(100), 384)])
        put(int(cfg["pf_w1"]), 11, [pf_load(VTK[0], SRD_W, t0)])
    if int(cfg["pf_wo"]) == 52:
        g.post[51] += [pf_load(VTK[1], SRD_WO, S(101))]
    elif int(cfg["pf_wo"]) >= 0:
        put(int(cfg["pf_wo"]), 11, [pf_load(VTK[1], SRD_WO, S(101))])
    if cfg["pf_code"]:
        for k, st_ in enumerate(code_steps):
            if st_ >= 0: g.pre[st_] += code_pf(f"L_code+{16384 * k}")
    if cfg["fused"]:
        g.pre[80] += srd(SRD_DBG2, None, 256, s_dbgp) + [salu("s_lshl_b32", s_b16, s_b, 4),
                      I(f"buffer_load_dword {rtxt(VCHK)}, {rtxt(VFO)}, {rtxt(SRD_DBG2)}, {rtxt(s_b16)} offen sc1", "vmem", [VCHK],
                        [VFO, SRD_DBG2, s_b16], tag=("chk",))]
    for h in range(2):
        g.a_fill(h)
        g.post[52 * h + 19] += g.q_pack() + (stamp(2 + 5 * h) if False else [])
        g.post[52 * h + 51] += g.n_block(h)
    g.o_fill()

    body = []
    marks = {0: 1, 20: 3, 52: 5, 72: 7}
    ends = {19: 2, 51: 4, 71: 6, 103: 8}
    for s in range(NSTEP):
        if T and s in marks: body += stamp(marks[s])
        body += g.pre[s]
        for gp in g.gaps[s]: body += gp.flat()
        if T and s in ends: body += stamp(ends[s])
        body += g.post[s]

    fin = []
    if T:
        fin += stamp(9)
    fin += [raw("s_waitcnt vmcnt(0)")]
    if T:
        fin += [I("s_memtime s[56:57]", "salu"), I("s_memrealtime s[88:89]", "salu"), raw("s_waitcnt lgkmcnt(0)"),
                salu("s_mov_b32", S(74), S(56)), salu("s_mov_b32", S(90), S(88)), salu("s_sub_u32", S(88), S(88), S(86))]
        lst = [64, 65, 66, 67, 68, 69, 70, 71, 72, 73, 74, 88, 86, 90]
        for k, sr in enumerate(lst): fin.append(valu("v_mov_b32", V(k), S(sr)))
        fin += [salu("s_lshl_b32", t0, S(2), 6), salu("s_add_u32", t0, t0, 300 * 1024 * 1024), valu("v_mov_b32", V(20), 0),
                raw(f"v_cmp_eq_u32 vcc, 0, {rtxt(TID)}", "valu"), raw("s_and_saveexec_b64 s[56:57], vcc")]
        for k in range(0, 16, 4): fin.append(vstore(V(k, 4), V(20), SRD_WS, t0, 4 * k))
        fin += [raw("s_waitcnt vmcnt(0)")]
        if cfg["steptime"]:
            fin += [raw("s_mov_b64 exec, -1"), salu("s_mul_i32", t0, S(2), 768), salu("s_add_u32", t0, t0, 320 * 1024 * 1024),
                    raw(f"v_cmp_gt_u32 vcc, 64, {rtxt(TID)}", "valu"), raw("s_and_saveexec_b64 s[56:57], vcc"),
                    valu("v_lshlrev_b32", V(20), 2, TID)]
            for k in range(3): fin.append(vstore(V(253 + k), V(20), SRD_WS, t0, 256 * k, width=1))
            fin += [raw("s_waitcnt vmcnt(0)")]
    fin += [label("L_main_exit"), raw("s_endpgm")]

    seq = pro + body
    res, errs, _, maxout = resolve_and_check(seq, "main")
    for e in errs[:30]: print("ERR", e, file=sys.stderr)
    assert not errs, len(errs)
    assert maxout <= 63, maxout
    for w in seq:
        if isinstance(w, WaitTag):
            vals = [v for v in res[id(w)] if v is not None]
            vm, lgk = (min(vals) if vals else None), w.info[1]
            p = ([f"vmcnt({vm})"] if vm is not None else []) + ([f"lgkmcnt({lgk})"] if lgk is not None else [])
            w.txt = "s_waitcnt " + " ".join(p) if p else "s_nop 0"
    stubs = []
    for k, p in enumerate(g.rare_sites):
        stubs += [label(f"L_rs{k}"), I(f"s_call_b64 {rtxt(s_ret)}, L_rare{p}", "branch"), branch("s_branch", f"L_rr{k}")]
    rare = g.rare_code(0) + g.rare_code(1)
    return seq + fin + stubs + rare


SRD_DBG2 = SRD_DBG

MACROS = """.macro MF d,a,b,c
v_mfma_f32_16x16x32_bf16 \\d,\\a,\\b,\\c
.endm
.macro TR d,a,o
ds_read_b64_tr_b16 \\d,\\a offset:\\o
.endm
.macro RD d,a,o
ds_read_b128 \\d,\\a offset:\\o
.endm
"""


def compact(line):
    import re
    t = line.strip()
    if t.startswith("v_mfma_f32_16x16x32_bf16 "):
        return "MF " + t.split(" ", 1)[1].replace(", ", ",")
    m = re.match(r"ds_read_b64_tr_b16 (\S+), (\S+) offset:(\d+)$", t)
    if m: return f"TR {m.group(1)},{m.group(2)},{m.group(3)}"
    m = re.match(r"ds_read_b128 (\S+), (\S+) offset:(\d+)$", t)
    if m: return f"RD {m.group(1)},{m.group(2)},{m.group(3)}"
    return t.replace(", ", ",")


HEADER = """; Fused multi-head attention block for MI355X (gfx950); assembly produced by my own generator script.
"""


def text_of(cfg, m, pad):
    kname = KNAME if cfg["single"] else "mha_main_kernel"
    lds = int(cfg["R"]) * SLOT
    s = HEADER
    if cfg["single"]:
        s += f"; @launch grid=(256,1,1) block=(256,1,1) lds={lds}\n"
    else:
        s += f"; @launch kernel=mha_main_kernel grid=(256,1,1) block=(256,1,1) lds={lds}\n"
        if not cfg["fused"]:
            s += "; @launch kernel=mha_reduce_kernel grid=(960,1,1) block=(256,1,1) lds=0\n"
    s += '.amdgcn_target "amdgcn-amd-amdhsa--gfx950"\n'
    if cfg["macros"]: s += MACROS
    s += ".text\n"
    ks = [(kname, m)]
    if not cfg["fused"]: ks.append(("mha_reduce_kernel", G.reducer_kernel(cfg)))
    for nm, code in ks:
        lines = []
        for i in code:
            for ln in i.txt.split("\n"):
                lines.append(compact(ln) if cfg["macros"] and i.cls != "label" else ln)
        s += f".globl {nm}\n.p2align 8\n.type {nm},@function\n" + "\n".join(lines).replace("mha_main_kernel:", kname + ":") + "\n"
    s += f".fill {pad}, 4, 0xBF800000\nL_text_end:\n"
    s += '.section .rodata,"a"\n.p2align 6\n' + kd(kname, 512, 256)
    if not cfg["fused"]: s += ".p2align 6\n" + kd("mha_reduce_kernel", 88, 88)
    return s


def build(cfg, path):
    m = main_kernel(cfg)
    s = text_of(cfg, m, 64)
    open("_g3.s", "w").write(s)
    r = subprocess.run(["clang", "-x", "assembler", "-target", "amdgcn-amd-amdhsa", "-mcpu=gfx950", "-c", "_g3.s", "-o", "_g3.o"],
                       capture_output=True, text=True)
    assert r.returncode == 0, r.stderr[:2000]
    sy = subprocess.run(["llvm-readelf", "-s", "_g3.o"], capture_output=True, text=True).stdout
    addr = {ln.split()[-1]: int(ln.split()[1], 16) for ln in sy.splitlines() if ln.strip().endswith(("L_code", "L_text_end", "L_main_exit"))}
    need = addr["L_code"] + 131072 + 256 - addr["L_text_end"]
    pad = 64 + max(0, (need + 3) // 4)
    s = text_of(cfg, m, pad)
    open(path, "w").write(s)
    n_main = sum(1 for i in m if i.cls != "label")
    print(f"wrote {path}: {len(s)} bytes, {n_main} instrs, code {addr['L_main_exit'] - addr['L_code']} B, pad {pad}", file=sys.stderr)


if __name__ == "__main__":
    cfg = dict(CFG)
    path = "out3.s"
    for a in sys.argv[1:]:
        if "=" in a:
            k, v = a.split("=", 1)
            assert k in cfg, k
            cfg[k] = {"True": True, "False": False}.get(v, v)
        else:
            path = a
    build(cfg, path)
```

```python
import re


def V(i, n=1):
    return ("v", i, n)


def A(i, n=1):
    return ("a", i, n)


def S(i, n=1):
    return ("s", i, n)


def rtxt(r):
    if isinstance(r, str):
        return r
    if isinstance(r, (int,)):
        return str(r)
    k, i, n = r
    return f"{k}{i}" if n == 1 else f"{k}[{i}:{i + n - 1}]"


def regs(r):
    if isinstance(r, tuple):
        k, i, n = r
        return {(k, i + j) for j in range(n)}
    return set()


class I:
    __slots__ = ("txt", "cls", "defs", "uses", "cdefs", "tag", "info", "slots")

    def __init__(self, txt, cls, defs=(), uses=(), tag=None, info=None, cdefs=()):
        self.txt = txt
        self.cls = cls
        self.defs = set()
        for d in defs:
            self.defs |= regs(d) if isinstance(d, tuple) and len(d) == 3 else {d}
        self.uses = set()
        for u in uses:
            self.uses |= regs(u) if isinstance(u, tuple) and len(u) == 3 else ({u} if isinstance(u, tuple) else set())
        self.cdefs = set()
        for u in cdefs:
            self.cdefs |= regs(u)
        self.tag = tag
        self.info = info
        self.slots = 2 if cls in ("trans", "vmem", "dma", "store") else 1

    def __repr__(self):
        return self.txt


def mfma(d, a, b, c):
    ctxt = rtxt(c) if isinstance(c, tuple) else str(c)
    i = I(f"v_mfma_f32_16x16x32_bf16 {rtxt(d)}, {rtxt(a)}, {rtxt(b)}, {ctxt}", "mfma", [d], [a, b],
          cdefs=[c] if isinstance(c, tuple) else [])
    return i


def valu(op, d, *src, cls="valu", extra=""):
    t = f"{op} {rtxt(d)}, " + ", ".join(rtxt(s) for s in src) + extra
    return I(t, cls, [d] if isinstance(d, tuple) else [], [s for s in src if isinstance(s, tuple)])


def vexp(d, s):
    return valu("v_exp_f32", d, s, cls="trans")


def vrcp(d, s):
    return valu("v_rcp_f32", d, s, cls="trans")


def perm(op, x, y):
    return I(f"{op} {rtxt(x)}, {rtxt(y)}", "perm", [x, y], [x, y])


def salu(op, d, *src):
    t = f"{op} {rtxt(d)}" + ("".join(", " + rtxt(s) for s in src))
    defs = [d] if isinstance(d, tuple) else ([("m0", 0, 1)] if d == "m0" else [])
    return I(t, "salu", defs, [s for s in src if isinstance(s, tuple)])


def scmp(op, a, b):
    return I(f"{op} {rtxt(a)}, {rtxt(b)}", "salu", [], [s for s in (a, b) if isinstance(s, tuple)])


def raw(txt, cls="salu", defs=(), uses=()):
    return I(txt, cls, defs, uses)


def ds_read(op, d, addr, off):
    assert 0 <= off < 65536, off
    return I(f"{op} {rtxt(d)}, {rtxt(addr)} offset:{off}", "ds", [d], [addr])


def ds_write(addr, data, off, tag=None):
    assert 0 <= off < 65536, off
    i = I(f"ds_write_b128 {rtxt(addr)}, {rtxt(data)} offset:{off}", "ds", [], [addr, data], tag=tag)
    i.info = ("write", regs(data))
    return i


def dma(voff, srd, soff, imm, nt=False, tag=None):
    t = f"buffer_load_dwordx4 {rtxt(voff)}, {rtxt(srd)}, {rtxt(soff)} offen offset:{imm}" + (" nt" if nt else "") + " lds"
    return I(t, "dma", [], [voff, srd, soff, ("m0", 0, 1)], tag=tag)


def vload(d, voff, srd, soff, imm, flags="", tag=None):
    t = f"buffer_load_dwordx4 {rtxt(d)}, {rtxt(voff)}, {rtxt(srd)}, {rtxt(soff)} offen offset:{imm}" + flags
    return I(t, "vmem", [d], [voff, srd, soff], tag=tag)


def vstore(data, voff, srd, soff, imm, flags="", tag=None, width=4):
    op = {4: "buffer_store_dwordx4", 2: "buffer_store_dwordx2", 1: "buffer_store_dword"}[width]
    t = f"{op} {rtxt(data)}, {rtxt(voff)}, {rtxt(srd)}, {rtxt(soff)} offen offset:{imm}" + flags
    return I(t, "store", [], [data, voff, srd, soff], tag=tag)


def wait(vm=None, lgkm=None):
    p = []
    if vm is not None:
        assert 0 <= vm <= 63, vm
        p.append(f"vmcnt({vm})")
    if lgkm is not None:
        assert 0 <= lgkm <= 15, lgkm
        p.append(f"lgkmcnt({lgkm})")
    return I("s_waitcnt " + " ".join(p), "wait", info=(vm, lgkm))


class WaitTag(I):
    def __init__(self, tags, lgkm=None, ltags=()):
        super().__init__("s_waitcnt ???", "wait", info=(None, lgkm))
        self.tag = ("waittag", tuple(tags))
        self.ltags = tuple(ltags)
        self.lres = None


class Macro(I):
    def __init__(self, body, n_vm):
        super().__init__("\n".join(b.txt if b.cls == "label" else " " + b.txt for b in body).lstrip(), "macro")
        self.info = n_vm


def barrier():
    return I("s_barrier", "barrier")


def nop(n=0):
    return I(f"s_nop {n}", "nop", info=n)


def label(name):
    return I(f"{name}:", "label", info=name)


def branch(op, target):
    return I(f"{op} {target}", "branch", info=target)


class Gap:
    def __init__(self, m):
        self.m = m
        self.sc = []
        self.ds = []
        self.vm = []
        self.va = []
        self.post = []

    def used(self):
        n = max(0, len(self.sc) - 1)
        n += len(self.ds) + 2 * len(self.vm) + sum(x.slots for x in self.va) + len(self.post)
        return n

    def free(self):
        return 2 - self.used()

    def flat(self):
        out = []
        if self.m is not None:
            out.append(self.m)
        out += self.sc + self.ds + self.vm + self.va + self.post
        return out


class Op:
    def __init__(self, ins, deps=(), earliest=0, prio=0):
        self.ins = ins
        self.deps = list(deps)
        self.earliest = earliest
        self.gap = None
        self.prio = prio


def list_schedule(gaps, ops, g0, g1, overflow_ok=True):
    pending = list(ops)

    def ready(op, g):
        if op.earliest > g:
            return False
        for d, dist in op.deps:
            if d.gap is None or d.gap + dist > g:
                return False
        return True

    for g in range(g0, g1):
        gap = gaps[g]
        while gap.free() > 0 and pending:
            pick = None
            if gap.free() >= 2:
                for op in pending:
                    if op.ins.slots == 2 and ready(op, g):
                        pick = op
                        break
            if pick is None:
                for op in pending:
                    if op.ins.slots == 1 and ready(op, g):
                        pick = op
                        break
            if pick is None:
                break
            pick.gap = g
            gap.va.append(pick.ins)
            pending.remove(pick)
    return pending


def resolve_and_check(seq, name="", vm_hist=None, check_loads=True):
    res = {}
    errs = []
    vm_fifo = list(vm_hist or [])
    lg_fifo = []
    pend_v = {}
    pend_src = {}
    last_def = {}
    last_cread = {}
    state = 0
    max_out = 0
    autos = [k for k, x in enumerate(seq) if x.cls == "wait" and isinstance(x, WaitTag) and x.info[1] == "auto"]
    nxt_auto = {a: (autos[n + 1] if n + 1 < len(autos) else len(seq)) for n, a in enumerate(autos)}
    for pos, ins in enumerate(seq):
        c = ins.cls
        if c == "label":
            continue
        if c == "wait":
            vm, lg = ins.info
            if isinstance(ins.tag, tuple) and ins.tag[0] == "waittag":
                tags = ins.tag[1]
                last = -1
                for k, (t, _) in enumerate(vm_fifo):
                    if t in tags:
                        last = k
                vm = len(vm_fifo) - 1 - last if last >= 0 else None
                if vm is not None and vm > 63:
                    vm = 63
                key = id(ins)
                res.setdefault(key, []).append(vm)
                if lg == "auto":
                    U = set()
                    for x in seq[pos + 1:nxt_auto[pos]]:
                        if x.cls != "label":
                            U |= x.uses | x.cdefs
                            U |= {("src",) + r for r in x.defs}
                    last = -1
                    for k, (d, t, src) in enumerate(lg_fifo):
                        if (d & U) or (t is not None and t in ins.ltags) or any(("src",) + r in U for r in src):
                            last = k
                    lg = min(15, len(lg_fifo) - 1 - last) if last >= 0 else None
                    ins.lres = lg
            if vm is not None:
                done = vm_fifo[: max(0, len(vm_fifo) - vm)]
                vm_fifo = vm_fifo[max(0, len(vm_fifo) - vm):]
                for _, d in done:
                    for r in d:
                        if pend_v.get(r) == "vm":
                            del pend_v[r]
            if lg is not None:
                done = lg_fifo[: max(0, len(lg_fifo) - lg)]
                lg_fifo = lg_fifo[max(0, len(lg_fifo) - lg):]
                for d, t, src in done:
                    for r in d:
                        if pend_v.get(r) == "lg":
                            del pend_v[r]
                    for r in src:
                        pend_src.pop(r, None)
            state += 1
            continue
        if c == "barrier":
            for d, t, src in lg_fifo:
                if src and t is not None and getattr(ins, "info", None) and t in ins.info:
                    errs.append(f"{name}: barrier publishes {t} before its LDS write completed")
        if c == "nop":
            state += ins.info + 1
            continue
        if c == "macro":
            for _ in range(ins.info):
                vm_fifo.append((ins.tag, set()))
            max_out = max(max_out, len(vm_fifo))
            state += 4
            continue
        if check_loads:
            for r in ins.uses | ins.cdefs:
                if r in pend_v:
                    errs.append(f"{name}: use of pending load reg {r} ({pend_v[r]}) in: {ins.txt}")
            for r in ins.defs:
                if r in pend_v:
                    errs.append(f"{name}: overwrite of pending load reg {r} in: {ins.txt}")
                if r in pend_src:
                    errs.append(f"{name}: overwrite of reg {r} still read by an LDS write in: {ins.txt}")

        def need(r, n, what):
            if r in last_def:
                st, cl = last_def[r]
                if cl in what and state - st - 1 < n:
                    errs.append(f"{name}: hazard {cl}->{c} reg {r} dist {state - st - 1} < {n}: {ins.txt}")

        if c == "mfma":
            for r in ins.uses:
                need(r, 8, ("mfma",))
                need(r, 2, ("valu", "trans", "perm"))
            for r in ins.cdefs:
                need(r, 2, ("valu", "trans", "perm"))
                if r not in ins.defs:
                    need(r, 8, ("mfma",))
            for r in ins.defs:
                if r not in ins.cdefs:
                    need(r, 8, ("mfma",))
        elif c in ("valu", "trans", "perm"):
            for r in ins.uses | ins.defs:
                need(r, 8, ("mfma",))
            for r in ins.uses:
                need(r, 1, ("trans",))
                if c == "perm":
                    need(r, 2, ("valu", "trans", "perm"))
            for r in ins.defs:
                if r in last_cread and state - last_cread[r] - 1 < 3:
                    errs.append(f"{name}: WAR on MFMA SrcC reg {r}: {ins.txt}")
                if r in last_def and last_def[r][1] == "storedata" and state - last_def[r][0] - 1 < 2:
                    errs.append(f"{name}: store data overwrite {r}: {ins.txt}")
        elif c in ("ds", "vmem", "dma", "store"):
            for r in ins.uses | ins.defs:
                need(r, 8, ("mfma",))
            for r in ins.uses:
                if r[0] == "s":
                    need(r, 5, ("valu_sgpr",))
                if r[0] == "m0":
                    need(r, 1, ("salu",))
        if c == "mfma":
            for r in ins.cdefs:
                last_cread[r] = state
        for r in ins.defs:
            cl = c
            if c in ("valu",) and r[0] == "s":
                cl = "valu_sgpr"
            last_def[r] = (state, cl)
        if c == "store":
            data = re.match(r"\S+ (\S+),", ins.txt).group(1)
            m = re.match(r"([va])\[(\d+):(\d+)\]", data)
            if m and int(m.group(3)) - int(m.group(2)) >= 2:
                for j in range(int(m.group(2)), int(m.group(3)) + 1):
                    last_def[(m.group(1), j)] = (state, "storedata")
        if c in ("vmem", "dma", "store"):
            d = set(ins.defs) if c == "vmem" else set()
            vm_fifo.append((ins.tag, d))
            for r in d:
                pend_v[r] = "vm"
            max_out = max(max_out, len(vm_fifo))
        if c == "ds":
            src = ins.info[1] if isinstance(ins.info, tuple) and ins.info[0] == "write" else set()
            lg_fifo.append((set(ins.defs), ins.tag, src))
            for r in src:
                pend_src[r] = True
            if len(lg_fifo) > 15:
                pass
            for r in ins.defs:
                pend_v[r] = "lg"
        state += 1
    return res, errs, vm_fifo, max_out
```

```python
SLOT = 12288

def a_item(j):
    if j == 0: return ("K", 0)
    if j == 1: return ("K", 1)
    if j == 31: return ("V", 15)
    if j % 2 == 0: return ("V", (j - 2) // 2)
    return ("K", (j + 1) // 2)

QS = [0, 52]; AS = [20, 72]; OS = 104; NSTEP = 144

class Item:
    def __init__(self, name, kind, h, n, need, free, units=1, earliest=-10**9):
        self.name, self.kind, self.h, self.n = name, kind, h, n
        self.need, self.free, self.units, self.earliest = need, free, units, earliest
        self.slot = None; self.issue = None
    def __repr__(self): return f"{self.name}@{self.slot}(i{self.issue},n{self.need})"

def build(R=13, P=4, DW=3, DX=3, NW0=5, NX0=2, maxper=2, P0=None, xres=23, pro_max=99, early_max=2, early_steps=0, park0=None, park1=None, kv_end_max=2, DW0=None, NW00=None, RP=0, npair=2, dump_max=3):
    X = {(h, u): Item(f"X{h}.{u}", "X", h, u, QS[h] + 2 * u - 1, QS[h] + 2 * u, 2) for h in range(2) for u in range(10)}
    W = {(h, t): Item(f"W{h}.{t}", "W", h, t, QS[h] + t - 1, QS[h] + t + 1) for h in range(2) for t in range(20)}
    KV = {}
    for h in range(2):
        for j in range(32):
            k, n = a_item(j)
            KV[(h, j)] = Item(f"{k}{h}.{n}", k, h, n, AS[h] + j - 1, AS[h] + j + 1)
    O = {j: Item(f"O{j}", "O", 0, j, OS + j - 1, OS + j + 1) for j in range(40)}
    xslots = set(range(2 * npair))
    for h in range(2):
        p = P if (h == 1 or P0 is None) else P0
        prev_last = KV[(0, 31)] if h == 1 else None
        for u in range(10):
            it = X[(h, u)]; it.prio = it.need
            it.earliest = it.need - DX if u >= NX0 else -10**9
            it.allowed = None
        for t in range(20):
            it = W[(h, t)]; it.prio = it.need
            dw = DW0 if (h == 0 and DW0) else DW
            nw0 = NW00 if (h == 0 and NW00) else NW0
            it.earliest = it.need - dw if t >= nw0 else -10**9
        for j in range(32):
            it = KV[(h, j)]
            it.prio = it.need
            it.parked = j < p
            it.reg = p <= j < p + RP
            if j < p:
                it.prio = QS[h] + min(NW0, 2 * NX0) - 1.5
                pk = park0 if h == 0 else park1
                if pk: it.earliest = QS[h] + pk[j]; it.prio = it.earliest
    for j in range(40): O[j].prio = O[j].need
    queues = [[X[(h, u)] for h in range(2) for u in range(10)], [W[(h, t)] for h in range(2) for t in range(20)],
              [KV[(h, j)] for h in range(2) for j in range(32)], [O[j] for j in range(40)]]
    def gated(it):
        if it.kind in "XW":
            return it.h == 1 and KV[(0, 31)].issue is None
        if it.kind in "KV":
            if it.h == 1 and KV[(0, 31)].issue is None: return True
            if it.parked:
                need_first = [X[(it.h, u)] for u in range(NX0)] + [W[(it.h, t)] for t in range(NW0)]
                return any(x.issue is None for x in need_first)
            return X[(it.h, 9)].issue is None or W[(it.h, 19)].issue is None
        return KV[(1, 31)].issue is None
    owner = [None] * R
    seq = []
    def try_alloc(it, b):
        fr = [s for s in range(R) if owner[s] is None]
        if it.kind == "X":
            c = [s for s in range(0, 2 * npair, 2) if s in fr and s + 1 in fr]
            return c[0] if c else None
        inq = any(QS[h] - 14 <= b < QS[h] + 16 for h in range(2))
        if it.kind == "W" or (it.kind in "KV" and (it.parked or (it.h == 0 and AS[0] + xres - 13 <= it.need - 12 and it.n is not None and KVidx[it.name] >= xres))):
            fr = [s for s in fr if s not in (xslots if (it.kind == 'W' or it.parked) else {0, 1, 2, 3})]
        return fr[0] if fr else None
    KVidx = {KV[k].name: k[1] for k in KV}
    for b in range(-1, NSTEP):
        for s in range(R):
            it = owner[s]
            if it is not None and it.free <= b: owner[s] = None
        units = 0
        xtra = 0
        dumps = 0
        while True:
            cands = []
            for q in queues:
                if not q: continue
                it = q[0]
                extra = 1 if (it.kind in "KV" and it.parked and it.earliest > -10**8) else 0
                lim = (early_max if b < early_steps else maxper) + extra + xtra
                if getattr(it, "reg", False):
                    if gated(it) or dumps >= (12 if b in (19, 71) else dump_max): continue
                elif gated(it) or (b >= 0 and (it.earliest > b or units + it.units > lim)): continue
                if b < 0 and units + it.units > pro_max: continue
                s = try_alloc(it, b)
                if s is None: continue
                cands.append((it.prio, len(cands), q, it, s))
            if not cands: break
            _, _, q, it, s = min(cands, key=lambda c: (c[0], c[1]))
            q.pop(0)
            it.slot = s; it.issue = b
            for k in range(it.units): owner[s + k] = it
            if getattr(it, "reg", False): dumps += 1
            else: units += it.units
            if b >= 0 and it.kind in "KV" and it.parked and it.earliest > -10**8: xtra += 1
            seq.append(it)
    assert not any(queues), [q[0] for q in queues if q]
    for it in seq:
        assert it.issue < it.need or it.issue == -1, it
        if getattr(it, "reg", False):
            assert it.issue <= AS[it.h], it
    return seq, X, W, KV, O

def simulate(seq, cq=625, ca=640, co=635, lf=0.55, lh=0.85, svc=0.43, clk=1850., cold_q0=1.0, extra=None):
    extra = extra or {19: 1300, 51: 1900, 71: 1300, 103: 1900, 21: 500, 73: 500, 49: 400, 101: 400}
    byb = {}
    for it in seq: byb.setdefault(it.issue, []).append(it)
    t = 2.3 - 0.0; hbm = 0.0; vis = 0.0
    land = {}
    def issue(it, now):
        nonlocal hbm, vis
        if it.kind in "KV":
            hbm = max(hbm + svc, now + lh)
            f = hbm
        else:
            f = now + (cold_q0 * 2.0 if (it.h == 0 and it.kind in "XW") and cold_q0 > 1 else lf) + 0.05 * it.units
        vis = max(vis, f)
        land[it.name] = vis
    now0 = 0.6
    for it in byb.get(-1, []):
        issue(it, now0); now0 += 0.035 * it.units
    needs = {}
    for it in seq: needs.setdefault(it.need, []).append(it)
    t = max([land[i.name] for i in needs.get(-1, [])] + [now0])
    marks = {}
    stall_tot = 0
    for s in range(NSTEP):
        c = (cq if (s % 52) < 20 and s < 104 else (ca if s < 104 else co)) / clk
        tb = t + c * 2 / 3
        need = max([land[i.name] for i in needs.get(s, [])] + [0])
        st = max(0, need - tb); stall_tot += st
        tb += st
        for k, it in enumerate(byb.get(s, [])):
            issue(it, tb + 0.05 + 0.15 * k)
        t = tb + c / 3 + extra.get(s, 0) / clk
        marks[s] = (t, st)
    return t, stall_tot, marks

if __name__ == "__main__":
    for R, P, DW, DX, NW0, NX0 in ((13, 0, 7, 3, 9, 2), (13, 2, 5, 3, 7, 2), (13, 4, 3, 3, 5, 2), (13, 3, 4, 3, 6, 2), (13, 5, 2, 3, 4, 2)):
        try:
            seq, X, W, KV, O = build(R, P, DW, DX, NW0, NX0)
        except AssertionError as e:
            print(R, P, DW, DX, "infeasible", e); continue
        t, st, marks = simulate(seq)
        ph = lambda a, b: sum(marks[s][1] for s in range(a, b))
        dmin = min(it.need - it.issue for it in seq if it.issue >= 0)
        print(f"R={R} P={P} DW={DW} DX={DX}: total {t:.1f} us stalls {st:.2f}  Q0 {ph(0,19):.2f} A0 {ph(19,51):.2f} Q1 {ph(51,71):.2f} A1 {ph(71,103):.2f} O {ph(103,144):.2f} minD {dmin}")
    seq, X, W, KV, O = build(13, 4, 3, 3, 5, 2)
    print(" ".join(repr(i) for i in seq))
```

```python
import sys
import subprocess
import numpy as np
from asmlib import *
import gen as G
from gen import (ACC, SB, SBr, PB, PBr, TT, NEGM, NEGMr, L, LT, MT, OACC, CT, CTr, QF, QFr, AK, AV, AW, AO, DKV, DA, DB, DO,
                 AX, PSV, PT, TID, JUNK, VPC, VL128, VTK, VFO, VCHK, RD, SEL, FLG, VPOLL, VFV, VOUT, VZ, PSL, PART_OFF, FLAG_OFF,
                 SRD_DBG, SRD_OUT, s_outp, s_dbgp, s_b16, s_kw, s_pb, s_ro, s_rl, OA, OAr, O0P, O0Pr, FB, FBh,
                 SRD_A, SRD_K, SRD_V, SRD_WO, SRD_WS, SRD_B, s_w3072, s_pst, s_thr, s_c2, s_h0, s_b, s_pj, s_w, s_t, s_ret,
                 THR_BITS, C_BITS, SLOT, build_lane_consts, autonop, srd, pf_load, code_pf, kd, KNAME, Gen, a_item)
import sched

CFG = dict(
    nt_kv=True, timing=False, steptime=False, pst_flags=" sc1", red_flags=" sc1",
    dspair_v=True, dspair_k=False, dspair_w=False, no_st=False, map_nb=8,
    fused=True, single=False, kv_same=False,
    R=13, P=3, P0=None, DW=4, DX=3, NW0=6, NX0=2, xres=23,
    kv_rot=False, rot_shift=0, rot_mul=1,
    tlb0=-1, tlb1=-1, tlb_stride=4096,
    RP=0, npair=2, rp_start0=3, rp_start1=0, rp_space=1.2,
    DW0=0, NW00=0, tlb='', park0='', park1='', d_flag=2, d_poll=1, d_chk=2, d_mfma=2, hu_in=6, hu_per=3, hide_n=True, pro_max=7, early_max=4, early_steps=3,
    pf_code=True, pf_w1=8, pf_wo=52, pf_start="xw", pf_start_step=0, code_lead=10, pf_code_all=True, macros=True,
)

SRD_X, SRD_W = SRD_A, SRD_B
G.SRD_DBG = S(4, 4)
SRD_DBG = G.SRD_DBG
s_kvb, s_wb, s_xb, s_ob = S(33), S(34), S(37), S(38)
s_do = [S(35), S(36)]
s_w6144 = S(41)
NSTEP = 144


AWR = V(246)
s_rp = S(39)
s_n0, s_kvb1 = S(40), S(42)
s_rl2 = [S(63), S(62)]
VHL = V(132)


def o_cs(j, reorder):
    if reorder and j < 8:
        return [(0, 0), (0, 1), (1, 0), (1, 1), (0, 2), (0, 3), (1, 2), (1, 3)][j]
    return j // 4, j % 4


def XF(u, half, qb): return V(144 + ((u % 2) * 2 + half) * 12 + 4 * qb, 4)


class Gen3(Gen):
    def __init__(self, cfg):
        self.cfg = cfg
        self.rare_sites = []
        i = lambda k: int(cfg[k])
        self.R = i("R")
        self.seq, self.X, self.W, self.KV, self.O = sched.build(
            R=self.R, P=i("P"), DW=i("DW"), DX=i("DX"), NW0=i("NW0"), NX0=i("NX0"),
            P0=None if cfg["P0"] in (None, "None") else int(cfg["P0"]), xres=i("xres"),
            pro_max=i("pro_max"), early_max=i("early_max"), early_steps=i("early_steps"),
            park0=[int(x) for x in str(cfg["park0"]).split(".")] if cfg["park0"] else None,
            park1=[int(x) for x in str(cfg["park1"]).split(".")] if cfg["park1"] else None,
            DW0=int(cfg["DW0"]) or None, NW00=int(cfg["NW00"]) or None, RP=i("RP"), npair=i("npair"))
        self.item = []
        for h in range(2):
            self.item += [self.W[(h, t)] for t in range(20)] + [self.KV[(h, j)] for j in range(32)]
        self.item += [self.O[j] for j in range(40)]
        self.gaps = [None] * NSTEP
        self.pre = {s: [] for s in range(NSTEP)}
        self.post = {s: [] for s in range(NSTEP)}
        self.regs = {"K": AK, "V": AV, "W": AW, "O": AO}
        self.plan = {}
        for kind in self.regs:
            its = [it for it in self.item if it.kind == kind]
            k = 0
            while k < len(its):
                lo = hi = its[k].slot
                e = k
                while e + 1 < len(its):
                    nl, nh = min(lo, its[e + 1].slot), max(hi, its[e + 1].slot)
                    if nh - nl > 4: break
                    lo, hi = nl, nh
                    e += 1
                for q in range(k, e + 1): self.plan[its[q].name] = lo * SLOT
                k = e + 1
        self.base = {kind: [0] * len(self.regs[kind]) for kind in self.regs}
        self.nunit = 0
        self.fixes = {}
        self.dump_block = {}

    def place_fixes(self):
        for s, lst in self.fixes.items():
            gaps = self.gaps[s]
            for x, lo, hi in lst:
                c = [g for g in range(lo, hi + 1) if gaps[g].free() == 1 and not gaps[g].vm and g != 23]
                if not c: c = [g for g in range(lo, hi + 1) if gaps[g].free() >= 1 and not gaps[g].vm and g != 23]
                if not c: c = [hi]
                gaps[c[0]].va.append(x)

    def frag_reads3(self, it, f, buf):
        win = self.plan[it.name]
        off = it.slot * SLOT - win
        kind = it.kind
        if kind == "K":
            kt, kb = f // 6, f % 6
            ri = kb % 2
            return [(ds_read("ds_read_b128", FB(buf, f % 2), AK[ri], off + kt * 6144 + (kb // 2) * 128), ri, win)]
        ri, j = f % 4, f // 4
        o, d2 = {"V": (off + 128 * j, 6144), "W": (off + 128 * j, 1536), "O": (off + 4096 * j, 2048)}[kind]
        r = self.regs[kind][ri]
        return [(ds_read("ds_read_b64_tr_b16", FBh(buf, f % 2, 0), r, o), ri, win),
                (ds_read("ds_read_b64_tr_b16", FBh(buf, f % 2, 1), r, o + d2), ri, win)]

    def fix(self, kind, ri, win):
        B = self.base[kind]
        if B[ri] == win: return None
        d = win - B[ri]
        B[ri] = win
        r = self.regs[kind][ri]
        return valu("v_add_u32", r, d, r) if d > 0 else valu("v_subrev_u32", r, -d, r)

    def place_reads3(self, gaps, g0, it, grp, cur=None):
        rl = []
        for f in (2 * grp, 2 * grp + 1):
            rl += self.frag_reads3(it, f, grp % 3)
        fx = [x for x in (self.fix(it.kind, ri, win) for _, ri, win in rl) if x is not None]
        if fx:
            same = (cur is not None and cur.kind == it.kind)
            if it.kind == "K":
                lo = 20 if same else 2
            elif g0 == 24:
                lo = 16 if same else 2
            else:
                lo = 22 if same else 2
            self.pending_fix += [(x, lo, g0 - 1) for x in fx]
        pair = self.cfg["dspair_k"] if it.kind == "K" else (self.cfg["dspair_v"] if it.kind == "V" else self.cfg["dspair_w"])
        for k, (ins, ri, win) in enumerate(rl):
            gaps[g0 + (k // 2 if pair else k)].ds.append(ins)
        return len(rl)

    def first_reads3(self, it):
        out = []
        for grp in range(2):
            for f in (2 * grp, 2 * grp + 1):
                for ins, ri, win in self.frag_reads3(it, f, grp % 3):
                    x = self.fix(it.kind, ri, win)
                    if x is not None: out.append(x)
                    out.append(ins)
        for ri in range(len(self.regs[it.kind])):
            x = self.fix(it.kind, ri, self.plan[it.name])
            if x is not None: out.append(x)
        return out

    def x_reads3(self, it):
        u = it.n
        return [ds_read("ds_read_b128", XF(u, half, qb), AX[half], it.slot * SLOT + 2048 * qb) for half in range(2) for qb in range(3)]

    def units(self, it):
        tag = ("item", it.name)
        out = []
        for k in range(it.units):
            so = s_do[self.nunit % 2]
            self.nunit += 1
            nt = False
            if it.kind == "X":
                m0 = salu("s_add_u32", "m0", s_w6144, it.slot * SLOT + 3072 * k)
                off = salu("s_add_u32", so, s_xb, 128 * it.n + 30720 * k)
                vo, sr = DA, SRD_X
            else:
                m0 = salu("s_add_u32", "m0", s_w3072, it.slot * SLOT)
                if it.kind in "KV":
                    off = self.kv_off(so, it)
                    vo, sr = DKV, (SRD_K if it.kind == "K" else SRD_V)
                    nt = self.cfg["nt_kv"]
                elif it.kind == "W":
                    off = salu("s_add_u32", so, s_wb, it.h * 384 + it.n * 393216)
                    vo, sr = DB, SRD_W
                else:
                    c, s = o_cs(it.n, self.cfg["hide_n"])
                    off = salu("s_add_u32", so, s_ob, s * 122880 + c * 128)
                    vo, sr = DO, SRD_WO
            out.append((m0, off, [dma(vo[i], sr, so, 1024 * i, nt, tag=tag) for i in range(3)]))
        return out

    def kv_off(self, so, it):
        if self.cfg["kv_rot"] and not self.cfg["kv_same"]:
            return [salu("s_xor_b32", so, s_n0, it.n), salu("s_mul_i32", so, so, 12288),
                    salu("s_add_u32", so, so, s_kvb if it.h == 0 else s_kvb1)]
        imm = it.h * 196608 + (0 if self.cfg["kv_same"] else it.n * 12288)
        return salu("s_add_u32", so, s_kvb, imm)

    def place_dma(self):
        for b in range(NSTEP):
            un = []
            for it in self.seq:
                if it.issue == b and not getattr(it, "reg", False): un += self.units(it)
            assert len(un) <= 4
            if len(un) == 1:
                pos = [[(0, 28), (1, 4), (1, 16)]]
            elif len(un) == 2:
                pos = [[(0, 28), (0, 34), (1, 4)], [(1, 10), (1, 16), (1, 22)]]
            elif len(un) > 2:
                pos = [[(0, 28), (0, 29), (0, 34)], [(1, 2), (1, 4), (1, 5)], [(1, 8), (1, 10), (1, 11)], [(1, 14), (1, 16), (1, 17)]][:len(un)]
            else:
                pos = []
            for (m0, off, ins), ps in zip(un, pos):
                for i, (ds_, gi) in enumerate(ps):
                    g = self.gaps[b + ds_]
                    if i == 0:
                        if isinstance(off, list):
                            (g[gi - 3] if gi >= 3 else self.gaps[b + ds_ - 1][36 + gi - 3]).sc.append(off[0])
                            g[gi - 2].sc += [off[1], m0]; g[gi - 1].sc.append(off[2])
                        else:
                            g[gi - 2].sc.append(m0)
                            g[gi - 1].sc.append(off)
                    if len(un) > 2 and gi % 6 < 4 and g[gi].ds:
                        pass
                    g[gi].vm.append(ins[i])

    def place_reg_tiles(self):
        self.dbase = 0
        for h in range(2):
            its = [self.KV[(h, j)] for j in range(32) if getattr(self.KV[(h, j)], "reg", False)]
            start = float(self.cfg["rp_start0" if h == 0 else "rp_start1"])
            last_s = -1
            for k, it in enumerate(its):
                s = 52 * h + int(start + k * float(self.cfg["rp_space"]))
                while len([gi for gi in (5, 11, 17, 29, 35) if not self.gaps[s][gi].vm]) < 3 or s <= last_s: s += 1
                last_s = s
                assert s + 2 <= it.issue, (it, s)
                g = self.gaps[s]
                off = self.kv_off(s_rp, it)
                if isinstance(off, list):
                    for q, x in enumerate(off): g[1 + q].sc.append(x)
                else:
                    g[3].sc.append(off)
                free = [gi for gi in (5, 11, 17, 29, 35) if not g[gi].vm][:3]
                assert len(free) == 3, (s, free)
                for i, gi in enumerate(free):
                    g[gi].vm.append(vload(A(12 * k + 4 * i, 4), DKV[i], SRD_K if it.kind == "K" else SRD_V, s_rp, 1024 * i,
                                          " nt" if self.cfg["nt_kv"] else "", tag=("reg", it.name)))
                it.rk = k
            for b in sorted({it.issue for it in its}):
                grp = [it for it in its if it.issue == b]
                wr = []
                for it in grp:
                    off = it.slot * SLOT
                    pre = []
                    if not (0 <= off - self.dbase and off - self.dbase + 2048 + 1024 <= 65536):
                        nb = min(off, (self.R - 5) * SLOT)
                        d = nb - self.dbase
                        self.dbase = nb
                        pre = [valu("v_add_u32", AWR, d, AWR) if d > 0 else valu("v_subrev_u32", AWR, -d, AWR)]
                    wr.append((it, pre, [ds_write(AWR, A(12 * it.rk + 4 * i, 4), off - self.dbase + 1024 * i, tag=("dump", it.name)) for i in range(3)]))
                if b % 52 == 19:
                    blk = []
                    for it, pre, w in wr: blk += [WaitTag([("reg", it.name)])] + pre + w
                    self.dump_block[b] = blk
                    continue
                cand = [(b, gi) for gi in range(24, 36)] + [(b + 1, gi) for gi in range(0, 22)]
                ci = 0
                for it, pre, w in wr:
                    first = True
                    for x in w:
                        while True:
                            st_, gi = cand[ci]
                            gp = self.gaps[st_][gi]
                            ok = not gp.vm and gp.free() >= 1 and len(gp.ds) < 2
                            if first and pre:
                                pst, pg = cand[ci - 1] if ci > 0 else (None, None)
                                ok = ok and ci > 0
                            if ok: break
                            ci += 1
                        if first:
                            gp.sc.append(WaitTag([("reg", it.name)]))
                            if pre:
                                pst, pg = cand[ci - 1]
                                self.gaps[pst][pg].va += pre
                            first = False
                        gp.ds.append(x)
                        ci += 1

    def frame3(self, s, mf):
        it = self.item[s]
        nx = self.item[s + 1] if s + 1 < NSTEP else None
        gaps = [Gap(mf(i, FB((i // 6) % 3, (i // 3) % 2))) for i in range(36)]
        nds = [0] * 6
        self.pending_fix = []
        for Gi in range(6):
            if Gi < 4:
                nds[Gi] = self.place_reads3(gaps, 6 * Gi, it, Gi + 2)
            elif nx is not None:
                nds[Gi] = self.place_reads3(gaps, 6 * Gi, nx, Gi - 4, cur=it)
        xs = [x for x in self.X.values() if x.need == s]
        if xs:
            rd = self.x_reads3(xs[0])
            for k, gi in enumerate((24, 25, 26, 27, 30, 31)):
                gaps[gi].ds.append(rd[k])
            nds[4] += 4
            nds[5] += 2
        need = [("item", x.name) for x in self.seq if x.need == s]
        for Gi in range(6):
            gi = 6 * Gi + 5
            if Gi == 3 and nx is not None:
                lt = [("dump", x.name) for x in self.seq if x.need == s]
                bar = barrier()
                bar.info = lt
                gaps[gi].sc += [WaitTag(need, lgkm="auto", ltags=lt), bar]
            elif Gi == 5:
                if nx is not None: gaps[gi].sc.append(WaitTag([], lgkm="auto"))
            else:
                gaps[gi].sc.append(WaitTag([], lgkm="auto"))
        self.fixes[s] = self.pending_fix
        if self.cfg["steptime"]:
            gaps[24].post.append(I("s_memtime s[92:93]", "salu"))
            gaps[33].post += [raw("s_waitcnt lgkmcnt(0)"), raw(f"v_writelane_b32 v{253 + s // 64}, s92, {s % 64}", "valu")]
        self.gaps[s] = gaps

    def build_frames(self):
        for h in range(2):
            for t in range(20):
                def mf(i, fr, t=t):
                    T, qb = i // 3, i % 3
                    return mfma(ACC(T, qb), fr, XF(t // 2, t % 2, qb), 0 if t == 0 else ACC(T, qb))
                self.frame3(52 * h + t, mf)
            for j in range(32):
                kind, n = a_item(j)
                p = n % 2
                if kind == "K":
                    def mf(i, fr, p=p, n=n):
                        f, qb = i // 3, i % 3
                        kt, kb = f // 6, f % 6
                        c = (0 if n < 2 else NEGM(qb)) if kb == 0 else SB(p, kt, qb)
                        return mfma(SB(p, kt, qb), fr, QF(kb, qb), c)
                else:
                    def mf(i, fr, p=p, n=n):
                        T, qb = i // 3, i % 3
                        return mfma(OA(T, qb), fr, PB(p, qb), 0 if n == 0 else OA(T, qb))
                self.frame3(52 * h + 20 + j, mf)
        for j in range(40):
            c, s = o_cs(j, self.cfg["hide_n"])

            def mf(i, fr, s=s, p=c % 2):
                f, qb = i // 3, i % 3
                jj, nt = f // 4, f % 4
                ks = 3 * s + jj
                h, kb = ks // 6, ks % 6
                b = O0P(kb, qb) if h == 0 else QF(kb, qb)
                return mfma(OACC(p, nt, qb), fr, b, 0 if ks == 0 else OACC(p, nt, qb))
            self.frame3(104 + j, mf)

    def a_fill(self, h):
        s0 = 52 * h + 20
        gaps = [g for j in range(32) for g in self.gaps[s0 + j]]
        Gx = lambda j, i=0: 36 * j + i
        mops, fin = self.max_ops(0)
        for o in mops: o.earliest = Gx(1, 0)
        sm0, _ = self.softmax_ops(0, sub_deps=fin, earliest_kt=(Gx(1, 0), Gx(1, 2)))
        pend = list_schedule(gaps, mops + sm0, Gx(1, 0), Gx(2, 0))
        self.post[s0 + 1] += autonop(self.emit_tail(pend)) + [valu("v_mov_b32", L(qb), LT(qb)) for qb in range(3)]
        for n in range(1, 16):
            p = n % 2
            j0 = 2 * n
            j1 = j0 + 2 if n <= 14 else j0 + 1
            sub = [None, None, None] if n == 1 else None
            sm, ltl = self.softmax_ops(p, sub_deps=sub, earliest_kt=(Gx(j0, 0), Gx(j0, 3)), lacc=(n > 1))
            pend = list_schedule(gaps, sm + self.check_ops(ltl, p), Gx(j0, 0), Gx(j1, 0))
            self.post[s0 + j1 - 1] += autonop(self.emit_tail(pend)) + self.check_branch(p)
            if n == 15: self.post[s0 + j1 - 1] += self.l_acc()

    RINV = [V(192), V(193), V(194)]

    def rinv_fill(self, h):
        gaps = self.gaps[52 * h + 51]
        y = [MT(3 + qb) for qb in range(3)]
        dst = self.RINV if h == 0 else [MT(8), MT(9), MT(10)]
        ops, prev = [], [None] * 3
        for sw in ("v_permlane32_swap_b32", "v_permlane16_swap_b32"):
            for qb in range(3):
                o = Op(valu("v_mov_b32", y[qb], L(qb)), [(prev[qb], 0)] if prev[qb] else []); ops.append(o); prev[qb] = o
            for qb in range(3):
                o = Op(perm(sw, L(qb), y[qb]), [(prev[qb], 2)]); ops.append(o); prev[qb] = o
            for qb in range(3):
                o = Op(valu("v_add_f32", L(qb), L(qb), y[qb]), [(prev[qb], 1)]); ops.append(o); prev[qb] = o
        for qb in range(3):
            o = Op(vrcp(dst[qb], L(qb)), [(prev[qb], 0)]); ops.append(o)
        assert not list_schedule(gaps, ops, 0, 36)

    def norm_ops(self, h, tsets, rinv):
        ops, last_use, rd_last, unit_last = [], [[] for _ in tsets], {}, {}
        k = 0
        for kb in range(6):
            for qb in range(3):
                ts = k % len(tsets)
                t = tsets[ts]
                dep0 = [(x, 0) for x in last_use[ts]]
                rds = []
                for tt, T in enumerate((2 * kb, 2 * kb + 1)):
                    for r in range(4):
                        o = Op(I(f"v_accvgpr_read_b32 v{t + 4 * tt + r}, {rtxt(OAr(T, qb, r))}", "valu", [V(t + 4 * tt + r)], [OAr(T, qb, r)]), list(dep0))
                        ops.append(o); rds.append(o)
                        rd_last[T] = o
                mul = []
                for r in range(8):
                    o = Op(valu("v_mul_f32", V(t + r), V(t + r), rinv[qb]), [(rds[r], 0)]); ops.append(o); mul.append(o)
                cv = []
                for r in range(4):
                    d = V(t + r) if h == 0 else QFr(kb, qb, r)
                    deps = [(mul[2 * r], 0), (mul[2 * r + 1], 0)] + ([(cv[-1], 0)] if cv and h == 0 else [])
                    o = Op(valu("v_cvt_pk_bf16_f32", d, V(t + 2 * r), V(t + 2 * r + 1)), deps); ops.append(o); cv.append(o)
                fin = cv
                if h == 0:
                    fin = []
                    for r in range(4):
                        o = Op(I(f"v_accvgpr_write_b32 {rtxt(O0Pr(kb, qb, r))}, v{t + r}", "valu", [O0Pr(kb, qb, r)], [V(t + r)]), [(cv[r], 0), (cv[-1], 0)])
                        ops.append(o); fin.append(o)
                last_use[ts] = fin
                unit_last[(kb, qb)] = fin
                k += 1
        return ops, rd_last, unit_last

    def n0_fill(self):
        gaps = [g for s in range(52, 72) for g in self.gaps[s]]
        ops, rd_last, _ = self.norm_ops(0, [198, 206], self.RINV)
        pend = list_schedule(gaps, ops, 0, 36 * 19)
        assert not pend, len(pend)
        self.n0_free = {T: 52 * 36 + o.gap for T, o in rd_last.items()}

    def n1_fill(self):
        gaps = [g for j in range(8) for g in self.gaps[104 + j]]
        rinv = [MT(8), MT(9), MT(10)]
        ops, _, unit_last = self.norm_ops(1, [112, 120], rinv)
        done = []
        lim = {kb: 36 * (4 + kb // 3) + 12 * (kb % 3) - 1 for kb in range(6)}
        g = 0
        rest = ops
        for kb in range(6):
            mine = [o for o in rest if any(o in unit_ops for unit_ops in [self._unit_ops(ops, kb)])]
            pend = list_schedule(gaps, mine, g, lim[kb])
            if pend:
                gi = lim[kb]
                gaps[gi].post += autonop([o.ins for o in pend]) + [nop(1)]
                for o in pend: o.gap = gi + 1
            rest = [o for o in rest if o not in mine]

    def _unit_ops(self, ops, kb):
        return ops[60 * kb:60 * kb + 60]

    def n_block(self, h):
        out = []
        if h == 1 and self.cfg["fused"]:
            out += self.hu_setup()
        out += self.rinv_ops()
        tmp = [V(0 + 8 * k, 8) for k in range(3)]
        pk = [V(24 + 4 * k, 4) for k in range(3)]
        for kb in range(6):
            for qb in range(3):
                t = tmp[qb][1]
                for tt, T in enumerate((2 * kb, 2 * kb + 1)):
                    for r in range(4):
                        out.append(I(f"v_accvgpr_read_b32 v{t + 4 * tt + r}, {rtxt(OAr(T, qb, r))}", "valu",
                                     [V(t + 4 * tt + r)], [OAr(T, qb, r)]))
            for qb in range(3):
                t = tmp[qb][1]
                for h2 in range(4):
                    out.append(valu("v_pk_mul_f32", V(t + 2 * h2, 2), V(t + 2 * h2, 2), V(MT(8 + 2 * qb)[1], 2)))
            for qb in range(3):
                t = tmp[qb][1]
                for r in range(4):
                    d = V(pk[qb][1] + r) if h == 0 else QFr(kb, qb, r)
                    out.append(valu("v_cvt_pk_bf16_f32", d, V(t + 2 * r), V(t + 2 * r + 1)))
            if h == 0:
                for qb in range(3):
                    for r in range(4):
                        out.append(I(f"v_accvgpr_write_b32 {rtxt(O0Pr(kb, qb, r))}, v{pk[qb][1] + r}", "valu",
                                     [O0Pr(kb, qb, r)], [V(pk[qb][1] + r)]))
        return autonop(out)

    def o_fill(self):
        gaps = [g for j in range(40) for g in self.gaps[104 + j]]

        def cvts(p):
            ops = []
            for ntp in range(2):
                for qb in range(3):
                    u = ntp * 3 + qb
                    for h in range(2):
                        a = OACC(p, 2 * ntp + h, qb)[1]
                        ops.append(valu("v_cvt_pk_bf16_f32", CTr(u, 2 * h), V(a), V(a + 1)))
                        ops.append(valu("v_cvt_pk_bf16_f32", CTr(u, 2 * h + 1), V(a + 2), V(a + 3)))
            return ops

        def store(u, c):
            return vstore(CT(u), PSV, SRD_WS, s_pst[u // 4], (u % 4) * 1024, self.cfg["pst_flags"], tag=("st", c))

        spos = [(0, 22), (0, 34), (1, 10), (1, 22), (1, 34), (2, 10)]
        last_step = {}
        for j in range(40): last_step[o_cs(j, self.cfg["hide_n"])[0]] = j
        prev_store_gap = -1
        for c in range(9):
            j0 = last_step[c] + 1
            g0 = 36 * j0
            e0 = max(g0 + 3, prev_store_gap + 1)
            ops = [Op(x, earliest=e0) for x in cvts(c % 2)]
            pos = [g0 + 36 * s + gi for s, gi in spos]
            pos = [p_ for p_ in pos if p_ > e0 + 8]
            k = 3
            while len(pos) < 6:
                nxt = g0 + 36 * (k // 1) + (10, 22, 34)[0]
                for gi in (10, 22, 34):
                    p_ = g0 + 36 * 2 + gi if k == 3 else g0 + 36 * (k - 1) + gi
                    if p_ not in pos and p_ > (pos[-1] if pos else 0) and len(pos) < 6: pos.append(p_)
                k += 1
            for u, p_ in enumerate(pos):
                if not self.cfg["no_st"]:
                    gaps[p_].vm.append(store(u, c))
            assert not list_schedule(gaps, ops, e0, e0 + 40)
            for u, p_ in enumerate(pos):
                assert max(o.gap for o in ops[4 * u:4 * u + 4]) < p_, (c, u, p_)
            prev_store_gap = pos[-1]
            self.last_store = getattr(self, "last_store", {})
            self.last_store[c] = pos[-1]
            ga = pos[-1] + 1
            gaps[ga].sc.append(salu("s_add_u32", s_pst[0], s_pst[0], 24576))
            gaps[ga + 1].sc.append(salu("s_add_u32", s_pst[1], s_pst[1], 24576))
        fused = self.cfg["fused"]
        if fused:
            self.hu_fill(gaps)
        tail = autonop([nop(7)] + cvts(1) + [store(u, 9) for u in range(6)])
        if fused: tail += self.hu_tail()
        self.post[143] += tail

    HU_NEED = [1, 2, 3, 5, 6, 7, 9, 9]

    def hu_buf(self, rho, t): return A(32 * (rho % 4 if rho in self.hu_inloop else rho) + 4 * t, 4)

    def hu_load(self, rho, t):
        return vload(self.hu_buf(rho, t), VHL, SRD_WS, s_rl2[rho % 2], 0, self.cfg["red_flags"], tag=("red", rho, t))

    def hu_adv(self, rho):
        return salu("s_add_u32", s_rl2[rho % 2], s_rl2[rho % 2], 2 * 245760)

    def hu_mfma(self, rho):
        o = []
        for t in range(8):
            if t % 4 == 0: o.append(WaitTag([("red", rho, t + 3)]))
            o.append(mfma(RD[0], SEL[0], self.hu_buf(rho, t), 0 if t == 0 else RD[0]))
        a = RD[0][1]
        o += [nop(7), valu("v_cvt_pk_bf16_f32", V(RD[1][1]), V(a), V(a + 1)), valu("v_cvt_pk_bf16_f32", V(RD[1][1] + 1), V(a + 2), V(a + 3)),
              vstore(V(RD[1][1], 2), VOUT, SRD_OUT, s_ro[rho % 2], 0, "", tag=("out", rho), width=2), nop(1)]
        return self.hu_out_off(rho) + o

    def hu_out_off(self, rho):
        hu, n, c, rem, w2, u, ntp, a = s_t[0], s_t[1], s_t[2], s_t[3], S(100), S(101), S(61), s_ro[rho % 2]
        o = [salu("s_add_u32", hu, s_kw, 64 * rho), salu("s_lshr_b32", n, hu, 1),
             salu("s_mul_hi_u32", c, n, (2 ** 32 + 23) // 24), salu("s_mul_i32", rem, c, 24), salu("s_sub_u32", rem, n, rem),
             salu("s_mul_hi_u32", w2, rem, (2 ** 32 + 5) // 6), salu("s_mul_i32", u, w2, 6), salu("s_sub_u32", u, rem, u),
             salu("s_mul_hi_u32", ntp, u, (2 ** 32 + 2) // 3), salu("s_mul_i32", rem, ntp, 3), salu("s_sub_u32", u, u, rem),
             salu("s_mul_i32", a, s_b, 192), salu("s_mul_i32", w2, w2, 48), salu("s_add_u32", a, a, w2),
             salu("s_lshl_b32", u, u, 4), salu("s_add_u32", a, a, u), salu("s_mul_i32", a, a, 1280),
             salu("s_lshl_b32", c, c, 7), salu("s_add_u32", a, a, c), salu("s_lshl_b32", ntp, ntp, 6), salu("s_add_u32", a, a, ntp),
             salu("s_and_b32", n, hu, 1), salu("s_lshl_b32", n, n, 4), salu("s_add_u32", a, a, n)]
        if rho == 7:
            o += [scmp("s_cmp_ge_u32", hu, 480), salu("s_cselect_b32", a, 0x7FFF0000, a)]
        return o

    def hu_base(self, rho):
        return salu("s_add_u32", s_rl2[rho % 2], s_pb, 64 * 512 * rho)

    def hu_setup(self):
        lane, g_, m_, t0, t1 = V(96), V(97), V(98), V(99), V(100)
        o = srd(SRD_OUT, None, 16 * 192 * 640 * 2, s_outp)
        o += [WaitTag([("chk",)]), scmp("s_cmp_eq_u32", s_w, 0), branch("s_cbranch_scc0", "L_chk_ok"),
              I(f"v_readfirstlane_b32 {rtxt(s_t[1])}, {rtxt(VCHK)}", "valu", [s_t[1]], [VCHK]), raw("s_nop 3"),
              scmp("s_cmp_ge_u32", s_t[1], 16), branch("s_cbranch_scc1", "L_chk_ok"),
              salu("s_mov_b32", s_t[0], 1 << 18), label("L_chk_loop"),
              salu("s_sub_u32", s_t[0], s_t[0], 1), branch("s_cbranch_scc1", "L_chk_ok"), raw("s_sleep 8"),
              I(f"buffer_load_dword {rtxt(VCHK)}, {rtxt(VFO)}, {rtxt(SRD_DBG)}, {rtxt(s_b16)} offen sc1", "salu"), raw("s_waitcnt vmcnt(0)"),
              I(f"v_readfirstlane_b32 {rtxt(s_t[1])}, {rtxt(VCHK)}", "salu"), raw("s_nop 3"),
              scmp("s_cmp_ge_u32", s_t[1], 16), branch("s_cbranch_scc0", "L_chk_loop"), label("L_chk_ok")]
        cnd = lambda d, a, b: I(f"v_cndmask_b32 {rtxt(d)}, {rtxt(a)}, {rtxt(b)}, vcc", "valu", [d], [a, b])
        cmp_ = lambda txt, u: I(txt, "valu", [], [u])
        o += [valu("v_and_b32", lane, 63, TID), valu("v_lshrrev_b32", g_, 4, lane), valu("v_and_b32", m_, 15, lane),
              valu("v_mov_b32", VZ, 0),
              valu("v_mul_u32_u24", t0, 1280, m_), valu("v_and_b32", t1, 1, g_), valu("v_lshlrev_b32", t1, 5, t1), valu("v_add_u32", t0, t0, t1),
              valu("v_lshrrev_b32", t1, 1, g_), valu("v_lshlrev_b32", t1, 3, t1), valu("v_add_u32", VOUT, t0, t1),
              valu("v_lshrrev_b32", t0, 5, lane), valu("v_mul_u32_u24", t0, 245760, t0), valu("v_and_b32", t1, 31, lane),
              valu("v_lshlrev_b32", t1, 4, t1), valu("v_add_u32", VHL, t0, t1),
              valu("v_lshlrev_b32", t0, 2, TID), valu("v_mov_b32", VPOLL, 0x7FFFFF00),
              cmp_(f"v_cmp_gt_u32 vcc, 16, {rtxt(TID)}", TID), nop(1), cnd(VPOLL, VPOLL, t0),
              valu("v_and_b32", t0, 1, m_), valu("v_lshlrev_b32", t0, 4, t0), valu("v_mov_b32", t1, 0x3F80), valu("v_lshlrev_b32", t1, t0, t1),
              valu("v_lshrrev_b32", t0, 3, m_), valu("v_and_b32", g_, 1, g_),
              cmp_(f"v_cmp_eq_u32 vcc, {rtxt(t0)}, {rtxt(g_)}", t0), nop(1), cnd(t1, VZ, t1),
              valu("v_lshrrev_b32", t0, 1, m_), valu("v_and_b32", t0, 3, t0)]
        for d in range(4):
            o += [cmp_(f"v_cmp_eq_u32 vcc, {d}, {rtxt(t0)}", t0), nop(1), cnd(V(SEL[0][1] + d), VZ, t1)]
        o += [salu("s_lshl_b32", s_b16, s_b, 8), salu("s_add_u32", s_b16, s_b16, FLAG_OFF),
              salu("s_lshl_b32", s_t[0], s_pj, 2), salu("s_add_u32", s_t[5], s_b16, s_t[0]), salu("s_add_u32", s_kw, s_t[0], s_w),
              salu("s_mul_i32", s_pb, s_b, 16 * 245760), salu("s_lshl_b32", s_t[0], s_kw, 9), salu("s_add_u32", s_pb, s_pb, s_t[0]),
              salu("s_add_u32", s_pb, s_pb, PART_OFF)]
        return o

    def add_wait_tag(self, gaps, fs, tag):
        for x in gaps[36 * fs + 23].sc:
            if isinstance(x, WaitTag):
                x.tag = ("waittag", x.tag[1] + (tag,))

    def hu_fill(self, gaps):
        d_flag, d_poll, d_chk = int(self.cfg["d_flag"]), int(self.cfg["d_poll"]), int(self.cfg["d_chk"])
        n_in = int(self.cfg["hu_in"])
        self.hu_pending = []
        self.hu_inloop = set()
        published = set()
        for rho in range(8):
            c = self.HU_NEED[rho]
            if c == 9: break
            fs = self.last_store[c] // 36 + d_flag
            if c not in published and fs <= 38:
                published.add(c)
                self.add_wait_tag(gaps, fs, ("st", c))
                gaps[36 * fs + 24].va.insert(0, valu("v_mov_b32", VFV, c + 1))
                gaps[36 * fs + 29].vm.append(self.flag_store())
            ps = fs + d_poll
            cs = ps + d_chk
            if rho >= n_in or cs > 39:
                self.hu_pending.append((rho, 0))
                continue
            self.hu_inloop.add(rho)
            gaps[36 * ps + 35].vm.append(self.poll_load(("poll", rho)))
            self.post[104 + cs - 1] += self.check_spin(c + 1, f"L_sp{rho}", WaitTag([("poll", rho)])) + [self.hu_base(rho)]
            t, st_ = 0, cs
            while t < 8 and st_ < 40:
                for gi in sorted((35, 11, 17)[:int(self.cfg['hu_per'])]):
                    if t == 8: break
                    if st_ == cs and gi < 24: continue
                    g = gaps[36 * st_ + gi]
                    if g.vm: continue
                    g.vm.append(self.hu_load(rho, t))
                    g.post.append(self.hu_adv(rho))
                    t += 1
                st_ += 1
            self.hu_end = getattr(self, "hu_end", {})
            self.hu_end[rho] = st_
            if rho - 2 in self.hu_end: assert self.hu_end[rho - 2] <= cs, (rho, self.hu_end, cs)
            ms = st_ + int(self.cfg["d_mfma"])
            if t == 8 and ms <= 39:
                self.post[104 + ms - 1] += self.hu_mfma(rho)
            else:
                self.hu_pending.append((rho, t, "polled"))

    def hu_tail(self):
        o = self.tstamp(0)
        pend = self.hu_pending
        for p in pend:
            if len(p) == 3:
                rho, t0 = p[0], p[1]
                for t in range(t0, 8):
                    o += [self.hu_load(rho, t), self.hu_adv(rho)]
        late = [p[0] for p in pend if len(p) == 2]
        o += self.tstamp(1)
        if late:
            c = max(self.HU_NEED[r] for r in late)
            o += [self.poll_load(("poll", "late"))]
        o += [WaitTag([("st", 8), ("st", 9)]), barrier()] + self.tstamp(2) + [valu("v_mov_b32", VFV, 10), self.flag_store()]
        inflight = [p[0] for p in pend if len(p) == 3]
        if late:
            o += self.check_spin(c + 1, "L_spl", WaitTag([("poll", "late")])) + [barrier()]
            for r in late:
                if len(inflight) >= 4: o += self.hu_mfma(inflight.pop(0))
                o.append(self.hu_base(r))
                for t in range(8): o += [self.hu_load(r, t), self.hu_adv(r)]
                inflight.append(r)
        o += self.tstamp(3)
        while len(inflight) > 1: o += self.hu_mfma(inflight.pop(0))
        o += self.tstamp(4)
        o += [self.poll_load(("poll", "fin"))]
        for r in inflight: o += self.hu_mfma(r)
        o += self.tstamp(5) + self.check_spin(10, "L_spf", WaitTag([("poll", "fin")])) + [barrier()] + self.tstamp(6)
        for r in (6, 7):
            o.append(self.hu_base(r))
            for t in range(8): o += [self.hu_load(r, t), self.hu_adv(r)]
        o += self.tstamp(7) + self.hu_mfma(6) + self.tstamp(8) + self.hu_mfma(7) + self.tstamp(9) + self.tstamp(10)
        return o

    def tstamp(self, k):
        if not self.cfg["steptime"]: return []
        return [I("s_memtime s[92:93]", "salu"), raw("s_waitcnt lgkmcnt(0)"), raw(f"v_writelane_b32 v255, s92, {20 + k}", "valu")]


def stamp(k):
    return [I("s_memtime s[56:57]", "salu"), raw("s_waitcnt lgkmcnt(0)"), salu("s_mov_b32", S(64 + k), S(56))]


def main_kernel(cfg):
    g = Gen3(cfg)
    T = cfg["timing"]
    pro = [label("mha_main_kernel"), scmp("s_cmp_ge_u32", S(2), 256), branch("s_cbranch_scc1", "L_main_exit"),
           raw("s_load_dwordx16 s[64:79], s[0:1], 0")]
    lane_ops = []
    wreg = build_lane_consts(lane_ops)
    pro += lane_ops
    pro.append(I(f"v_readfirstlane_b32 {rtxt(s_w)}, {rtxt(wreg)}", "valu", [s_w], [wreg]))
    pro.append(raw("s_waitcnt lgkmcnt(0)"))
    pro += srd(SRD_X, 64, 16 * 192 * 640 * 2) + srd(SRD_K, 66, 16 * 32 * 512 * 192 * 2) + srd(SRD_V, 68, 16 * 32 * 512 * 192 * 2)
    pro += srd(SRD_W, 70, 640 * 6144 * 2) + srd(SRD_WO, 72, 6144 * 640 * 2) + srd(SRD_WS, 78, 402653184)
    pro += [salu("s_mov_b32", s_outp[0], S(74)), salu("s_mov_b32", s_outp[1], S(75)),
            salu("s_mov_b32", s_dbgp[0], S(76)), salu("s_mov_b32", s_dbgp[1], S(77))]
    t0, t1 = s_t[0], s_t[1]
    nb = int(cfg["map_nb"]); npair = 32 // nb
    lg = lambda v: v.bit_length() - 1
    seen = set()
    for wg in range(256):
        a0, j = wg & 7, wg >> 3
        pj = (j & (npair - 1)) + ((a0 & (16 // npair - 1)) << lg(npair))
        bb = (j >> lg(npair)) + ((a0 >> lg(16 // npair)) << lg(nb))
        seen.add((bb, pj))
    assert len(seen) == 256
    pro += [
        salu("s_and_b32", t0, S(2), 7), salu("s_lshr_b32", t1, S(2), 3),
        salu("s_and_b32", s_pj, t1, npair - 1), salu("s_lshr_b32", s_b, t1, lg(npair)),
        salu("s_and_b32", t1, t0, 16 // npair - 1), salu("s_lshl_b32", t1, t1, lg(npair)), salu("s_add_u32", s_pj, s_pj, t1),
        salu("s_lshr_b32", t0, t0, lg(16 // npair)), salu("s_lshl_b32", t0, t0, lg(nb)), salu("s_add_u32", s_b, s_b, t0),
        salu("s_lshl_b32", s_h0, s_pj, 1),
        salu("s_mul_i32", s_w3072, s_w, 3072), salu("s_lshl_b32", s_w6144, s_w3072, 1),
        salu("s_lshl_b32", t0, s_b, 5), salu("s_add_u32", t0, t0, s_h0), salu("s_mul_i32", s_kvb, t0, 196608),
        salu("s_add_u32", s_kvb1, s_kvb, 196608),
        salu("s_lshr_b32", s_n0, S(2), int(cfg["rot_shift"])), salu("s_mul_i32", s_n0, s_n0, int(cfg["rot_mul"])), salu("s_and_b32", s_n0, s_n0, 15),
        salu("s_mul_i32", s_wb, s_h0, 384), salu("s_mul_i32", s_xb, s_b, 245760), salu("s_mul_i32", s_ob, s_h0, 245760),
        salu("s_lshl_b32", t0, s_b, 4), salu("s_add_u32", t0, t0, s_pj),
        salu("s_mul_i32", s_pst[0], t0, 245760), salu("s_add_u32", s_pst[0], s_pst[0], PART_OFF),
        salu("s_add_u32", s_pst[1], s_pst[0], 4096),
        salu("s_mov_b32", s_thr, THR_BITS), salu("s_mov_b32", S(48), C_BITS), salu("s_mov_b32", S(49), C_BITS),
    ]
    if T: pro += [I("s_memrealtime s[86:87]", "salu")] + stamp(0)
    if cfg["fused"]:
        pro += [salu("s_lshl_b32", t0, s_b, 8), salu("s_lshl_b32", t1, s_pj, 2), salu("s_add_u32", t0, t0, t1),
                salu("s_add_u32", t0, t0, FLAG_OFF), valu("v_mov_b32", PT(8), 0),
                vstore(PT(8), VFO, SRD_WS, t0, 0, " sc1", tag=("clr",), width=1)]

    gw = S(59)
    lane, lane128 = PT(3), PT(2)
    OOB = 0x7FFFFF00

    def masked(dst, src, n):
        return [valu("v_mov_b32", dst, OOB), raw(f"v_cmp_gt_u32 vcc, {n}, {rtxt(lane)}", "valu"), raw("s_nop 1"),
                raw(f"v_cndmask_b32 {rtxt(dst)}, {rtxt(dst)}, {rtxt(src)}, vcc", "valu")]
    pfs = [salu("s_lshl_b32", gw, S(2), 2), salu("s_add_u32", gw, gw, s_w),
           valu("v_and_b32", lane, 63, TID), valu("v_lshlrev_b32", lane128, 7, lane),
           valu("v_mul_u32_u24", PT(5), 21846, lane), valu("v_lshrrev_b32", PT(5), 16, PT(5)),
           valu("v_mul_u32_u24", PT(6), 3, PT(5)), valu("v_sub_u32", PT(6), lane, PT(6)),
           valu("v_mul_u32_u24", PT(5), 12288, PT(5)), valu("v_lshlrev_b32", PT(6), 7, PT(6)), valu("v_add_u32", PT(5), PT(5), PT(6))]
    pfs += masked(VTK[0], PT(5), 30) + masked(VTK[1], lane128, 60) + masked(PT(4), lane128, 30)
    pfs += [salu("s_and_b32", t0, gw, 15), salu("s_mul_i32", t0, t0, 768), salu("s_lshr_b32", S(100), gw, 4),
            salu("s_mul_i32", S(100), S(100), 122880), salu("s_add_u32", S(100), S(100), t0), salu("s_mul_i32", S(101), gw, 7680)]
    start = []
    if "x" in cfg["pf_start"]:
        start += [salu("s_mul_i32", t0, gw, 3840), pf_load(PT(4), SRD_X, t0)]
    if "w" in cfg["pf_start"]:
        start += [pf_load(VTK[0], SRD_W, S(100))]
    if "1" in cfg["pf_start"]:
        start += [salu("s_add_u32", t0, S(100), 384), pf_load(VTK[0], SRD_W, t0)]
    code_steps = cfg["_code_steps"]
    pfs2 = []
    if cfg["pf_code"]:
        pfs2 += [valu("v_and_b32", PT(7), 31, lane), valu("v_lshlrev_b32", PT(7), 7, PT(7)),
                 salu("s_lshl_b32", t0, s_w, 12), valu("v_add_u32", VL128, t0, PT(7))]
    if int(cfg["pf_start_step"]) == -2:
        pro += pfs + start
        pfs, start = [], []
    pfs += pfs2
    pfs += [valu("v_and_b32", PT(7), 63, TID), valu("v_lshlrev_b32", PT(7), 4, PT(7)), valu("v_add_u32", AWR, s_w3072, PT(7))]

    first = [it for it in g.seq if it.issue == -1]
    for k, it in enumerate(first):
        for m0, off, ins in g.units(it):
            pro += [m0] + (off if isinstance(off, list) else [off]) + [nop(0)] + ins
    if cfg["tlb"]:
        tl = [valu("v_and_b32", PT(9), 1, TID)]
        for what in str(cfg["tlb"]):
            if what in "kv":
                tl += [valu("v_mul_u32_u24", PT(10), 393216 - 128, PT(9)), pf_load(PT(10), SRD_K if what == "k" else SRD_V, s_kvb)]
            elif what == "o":
                tl += [valu("v_mul_u32_u24", PT(10), 491520 - 128, PT(9)), pf_load(PT(10), SRD_WO, s_ob)]
            elif what == "p":
                tl += [valu("v_mul_u32_u24", PT(10), 245760 - 128, PT(9)), pf_load(PT(10), SRD_WS, s_pst[0])]
        pro += tl
    pro += pfs
    if cfg["pf_code"]:
        for k, st_ in enumerate(code_steps):
            if st_ < 0: pro += code_pf(f"L_code+{16384 * k}")
    if cfg["pf_code_all"]:
        pro += [valu("v_lshlrev_b32", PT(9), 7, TID), valu("v_mov_b32", PT(10), S(2)), valu("v_lshlrev_b32", PT(10), 9, PT(10)),
                valu("v_add_u32", PT(9), PT(9), PT(10)),
                I("s_getpc_b64 s[56:57]", "salu"), label("L_pcall"), raw("s_add_u32 s56, s56, L_code-L_pcall"), raw("s_addc_u32 s57, s57, 0"),
                raw(f"v_mov_b32 v{VPC[1] + 1}, s57", "valu"), raw(f"v_add_co_u32 v{VPC[1]}, vcc, s56, {rtxt(PT(9))}", "valu"), raw("s_nop 1"),
                raw(f"v_addc_co_u32 v{VPC[1] + 1}, vcc, 0, v{VPC[1] + 1}, vcc", "valu"),
                raw(f"v_cmp_gt_u32 vcc, 4, {rtxt(TID)}", "valu"), raw("s_and_saveexec_b64 s[56:57], vcc"),
                raw("s_cbranch_execz L_pcall_skip"),
                I(f"global_load_dword {rtxt(JUNK)}, {rtxt(VPC)}, off", "salu", [], []), label("L_pcall_skip"),
                raw("s_mov_b64 exec, s[56:57]")]
    if int(cfg["pf_start_step"]) == -1: pro += start
    pro += [WaitTag([("item", it.name) for it in g.seq if it.need == -1]), barrier()]
    if cfg["fused"]:
        TMP = S(96, 4)
        pro += srd(TMP, None, 256, s_dbgp) + [salu("s_lshl_b32", t0, s_b, 4), valu("v_mov_b32", PT(8), 1), WaitTag([("clr",)]),
                I(f"buffer_atomic_add {rtxt(PT(8))}, {rtxt(VFO)}, {rtxt(TMP)}, {rtxt(t0)} offen", "store", [], [PT(8), VFO, TMP, t0], tag=("cnt",))]
    pro += g.x_reads3(g.X[(0, 0)]) + g.first_reads3(g.item[0]) + [wait(lgkm=4)]
    pro.append(label("L_code"))

    g.build_frames()
    g.place_dma()
    g.place_reg_tiles()
    g.place_fixes()
    def put(s, gi, ins_list):
        gp = g.gaps[s][gi]
        for x in ins_list:
            if x.cls in ("vmem",): gp.vm.append(x)
            else: gp.sc.append(x)
    def tlb_touch(h, tmp):
        st = int(cfg["tlb_stride"])
        n = (196608 + st - 1) // st
        o = [valu("v_mul_u32_u24", tmp, st, TID), valu("v_mov_b32", V(tmp[1] + 1), OOB),
             raw(f"v_cmp_gt_u32 vcc, {n}, {rtxt(TID)}", "valu"), raw("s_nop 1"),
             raw(f"v_cndmask_b32 {rtxt(tmp)}, v{tmp[1] + 1}, {rtxt(tmp)}, vcc", "valu"),
             salu("s_add_u32", t0, s_kvb, h * 196608)]
        for sr in (SRD_K, SRD_V):
            x = pf_load(tmp, sr, t0)
            x.txt += " nt"
            o.append(x)
        return o
    if int(cfg["tlb0"]) >= 0: g.pre[int(cfg["tlb0"])] += tlb_touch(0, V(192))
    if int(cfg["tlb1"]) >= 0: g.pre[int(cfg["tlb1"])] += tlb_touch(1, V(128))
    if int(cfg["pf_start_step"]) >= 0:
        g.pre[int(cfg["pf_start_step"])] += start
    if int(cfg["pf_w1"]) >= 0:
        put(int(cfg["pf_w1"]), 9, [salu("s_add_u32", t0, S(100), 384)])
        put(int(cfg["pf_w1"]), 11, [pf_load(VTK[0], SRD_W, t0)])
    if int(cfg["pf_wo"]) == 52:
        g.post[51] += [pf_load(VTK[1], SRD_WO, S(101))]
    elif int(cfg["pf_wo"]) >= 0:
        put(int(cfg["pf_wo"]), 11, [pf_load(VTK[1], SRD_WO, S(101))])
    if cfg["pf_code"]:
        for k, st_ in enumerate(code_steps):
            if st_ >= 0: g.pre[st_] += code_pf(f"L_code+{16384 * k}")
    if cfg["fused"]:
        g.pre[80] += srd(SRD_DBG2, None, 256, s_dbgp) + [salu("s_lshl_b32", s_b16, s_b, 4),
                      I(f"buffer_load_dword {rtxt(VCHK)}, {rtxt(VFO)}, {rtxt(SRD_DBG2)}, {rtxt(s_b16)} offen sc1", "vmem", [VCHK],
                        [VFO, SRD_DBG2, s_b16], tag=("chk",))]
    if cfg["hide_n"]:
        g.rinv_fill(0); g.rinv_fill(1)
        g.n0_fill()
        g.n1_fill()
        if cfg["fused"]:
            g.post[103] += g.hu_setup()
    for h in range(2):
        g.a_fill(h)
        g.post[52 * h + 19] += g.dump_block.get(52 * h + 19, []) + g.q_pack()
        if not cfg["hide_n"]:
            g.post[52 * h + 51] += g.n_block(h)
    g.o_fill()

    body = []
    marks = {0: 1, 20: 3, 52: 5, 72: 7}
    ends = {19: 2, 51: 4, 71: 6, 103: 8}
    for s in range(NSTEP):
        body.append(label(f"L_st{s}"))
        if T and s in marks: body += stamp(marks[s])
        body += g.pre[s]
        for gp in g.gaps[s]: body += gp.flat()
        if T and s in ends: body += stamp(ends[s])
        body += g.post[s]

    fin = []
    if T:
        fin += stamp(9)
    fin += [raw("s_waitcnt vmcnt(0)")]
    if T:
        fin += [I("s_memtime s[56:57]", "salu"), I("s_memrealtime s[88:89]", "salu"), raw("s_waitcnt lgkmcnt(0)"),
                salu("s_mov_b32", S(74), S(56)), salu("s_mov_b32", S(90), S(88)), salu("s_sub_u32", S(88), S(88), S(86))]
        lst = [64, 65, 66, 67, 68, 69, 70, 71, 72, 73, 74, 88, 86, 90]
        for k, sr in enumerate(lst): fin.append(valu("v_mov_b32", V(k), S(sr)))
        fin += [salu("s_lshl_b32", t0, S(2), 6), salu("s_add_u32", t0, t0, 300 * 1024 * 1024), valu("v_mov_b32", V(20), 0),
                raw(f"v_cmp_eq_u32 vcc, 0, {rtxt(TID)}", "valu"), raw("s_and_saveexec_b64 s[56:57], vcc")]
        for k in range(0, 16, 4): fin.append(vstore(V(k, 4), V(20), SRD_WS, t0, 4 * k))
        fin += [raw("s_waitcnt vmcnt(0)")]
        if cfg["steptime"]:
            fin += [raw("s_mov_b64 exec, -1"), salu("s_mul_i32", t0, S(2), 768), salu("s_add_u32", t0, t0, 320 * 1024 * 1024),
                    raw(f"v_cmp_gt_u32 vcc, 64, {rtxt(TID)}", "valu"), raw("s_and_saveexec_b64 s[56:57], vcc"),
                    valu("v_lshlrev_b32", V(20), 2, TID)]
            for k in range(3): fin.append(vstore(V(253 + k), V(20), SRD_WS, t0, 256 * k, width=1))
            fin += [raw("s_waitcnt vmcnt(0)")]
    fin += [label("L_main_exit"), raw("s_endpgm")]

    seq = pro + body
    res, errs, _, maxout = resolve_and_check(seq, "main")
    for e in errs[:30]: print("ERR", e, file=sys.stderr)
    assert not errs, len(errs)
    assert maxout <= 63, maxout
    final = []
    for w in seq:
        if isinstance(w, WaitTag):
            vals = [v for v in res[id(w)] if v is not None]
            vm, lgk = (min(vals) if vals else None), (w.lres if w.info[1] == "auto" else w.info[1])
            if vm is None and lgk is None:
                continue
            final.append(wait(vm, lgk))
        else:
            final.append(w)
    seq = final
    _, errs, _, _ = resolve_and_check(seq, "final")
    for e in errs[:30]: print("ERR", e, file=sys.stderr)
    assert not errs, len(errs)
    stubs = []
    for k, p in enumerate(g.rare_sites):
        stubs += [label(f"L_rs{k}"), I(f"s_call_b64 {rtxt(s_ret)}, L_rare{p}", "branch"), branch("s_branch", f"L_rr{k}")]
    rare = g.rare_code(0) + g.rare_code(1)
    return seq + fin + stubs + rare


SRD_DBG2 = SRD_DBG

MACROS = """.macro MF d,a,b,c
v_mfma_f32_16x16x32_bf16 \\d,\\a,\\b,\\c
.endm
.macro TR d,a,o
ds_read_b64_tr_b16 \\d,\\a offset:\\o
.endm
.macro RD d,a,o
ds_read_b128 \\d,\\a offset:\\o
.endm
"""


def compact(line):
    import re
    t = line.strip()
    if t.startswith("v_mfma_f32_16x16x32_bf16 "):
        return "MF " + t.split(" ", 1)[1].replace(", ", ",")
    m = re.match(r"ds_read_b64_tr_b16 (\S+), (\S+) offset:(\d+)$", t)
    if m: return f"TR {m.group(1)},{m.group(2)},{m.group(3)}"
    m = re.match(r"ds_read_b128 (\S+), (\S+) offset:(\d+)$", t)
    if m: return f"RD {m.group(1)},{m.group(2)},{m.group(3)}"
    return t.replace(", ", ",")


HEADER = """; Fused multi-head attention block for MI355X (gfx950); assembly produced by my own generator script.
"""


def text_of(cfg, m, pad):
    kname = KNAME if cfg["single"] else "mha_main_kernel"
    lds = int(cfg["R"]) * SLOT
    s = HEADER
    if cfg["single"]:
        s += f"; @launch grid=(256,1,1) block=(256,1,1) lds={lds}\n"
    else:
        s += f"; @launch kernel=mha_main_kernel grid=(256,1,1) block=(256,1,1) lds={lds}\n"
        if not cfg["fused"]:
            s += "; @launch kernel=mha_reduce_kernel grid=(960,1,1) block=(256,1,1) lds=0\n"
    s += '.amdgcn_target "amdgcn-amd-amdhsa--gfx950"\n'
    if cfg["macros"]: s += MACROS
    s += ".text\n"
    ks = [(kname, m)]
    if not cfg["fused"]: ks.append(("mha_reduce_kernel", G.reducer_kernel(cfg)))
    for nm, code in ks:
        lines = []
        for i in code:
            for ln in i.txt.split("\n"):
                lines.append(compact(ln) if cfg["macros"] and i.cls != "label" else ln)
        s += f".globl {nm}\n.p2align 8\n.type {nm},@function\n" + "\n".join(lines).replace("mha_main_kernel:", kname + ":") + "\n"
    s += f".fill {pad}, 4, 0xBF800000\nL_text_end:\n"
    s += '.section .rodata,"a"\n.p2align 6\n' + kd(kname, 512, 256)
    if not cfg["fused"]: s += ".p2align 6\n" + kd("mha_reduce_kernel", 88, 88)
    return s


def assemble_syms(text):
    open("_g3.s", "w").write(text)
    r = subprocess.run(["clang", "-x", "assembler", "-target", "amdgcn-amd-amdhsa", "-mcpu=gfx950", "-c", "_g3.s", "-o", "_g3.o"],
                       capture_output=True, text=True)
    assert r.returncode == 0, r.stderr[:2000]
    sy = subprocess.run(["llvm-readelf", "-s", "_g3.o"], capture_output=True, text=True).stdout
    return {ln.split()[-1]: int(ln.split()[1], 16) for ln in sy.splitlines() if " L_" in ln and len(ln.split()) >= 8}


def build(cfg, path):
    import importlib
    cfg = dict(cfg)
    cfg["_code_steps"] = [-1] + [max(0, 21 * k - 10) for k in range(1, 8)]
    for it in range(2):
        G.code_pf.n = 0
        m = main_kernel(cfg)
        addr = assemble_syms(text_of(cfg, m, 64))
        base = addr["L_code"]
        end = addr["L_main_exit"] - base
        npiece = (end + 16383) // 16384
        steps = []
        for k in range(npiece):
            first = min([s for s in range(NSTEP) if addr[f"L_st{s}"] - base + 1024 > 16384 * k] or [NSTEP - 1])
            s_ = first - int(cfg["code_lead"])
            steps.append(-1 if s_ < 0 else s_)
        cfg["_code_steps"] = steps
    G.code_pf.n = 0
    m = main_kernel(cfg)
    addr = assemble_syms(text_of(cfg, m, 64))
    span = max(16384 * len(cfg["_code_steps"]), 131072)
    need = addr["L_code"] + span + 256 - addr["L_text_end"]
    pad = 64 + max(0, (need + 3) // 4)
    s = text_of(cfg, m, pad)
    open(path, "w").write(s)
    n_main = sum(1 for i in m if i.cls != "label")
    print(f"wrote {path}: {len(s)} bytes, {n_main} instrs, code {addr['L_main_exit'] - addr['L_code']} B, pad {pad}, code pf steps {cfg['_code_steps']}", file=sys.stderr)


if __name__ == "__main__":
    cfg = dict(CFG)
    path = "out3.s"
    for a in sys.argv[1:]:
        if "=" in a:
            k, v = a.split("=", 1)
            assert k in cfg, k
            cfg[k] = {"True": True, "False": False}.get(v, v)
        else:
            path = a
    build(cfg, path)
```

```python
SLOT = 12288

def a_item(j):
    if j == 0: return ("K", 0)
    if j == 1: return ("K", 1)
    if j == 31: return ("V", 15)
    if j % 2 == 0: return ("V", (j - 2) // 2)
    return ("K", (j + 1) // 2)

QS = [0, 52]; AS = [20, 72]; OS = 104; NSTEP = 144

class Item:
    def __init__(self, name, kind, h, n, need, free, units=1, earliest=-10**9):
        self.name, self.kind, self.h, self.n = name, kind, h, n
        self.need, self.free, self.units, self.earliest = need, free, units, earliest
        self.slot = None; self.issue = None
    def __repr__(self): return f"{self.name}@{self.slot}(i{self.issue},n{self.need})"

def build(R=13, P=4, DW=3, DX=3, NW0=5, NX0=2, maxper=2, P0=None, xres=23, pro_max=99, early_max=2, early_steps=0, park0=None, park1=None, kv_end_max=2, DW0=None, NW00=None, RP=0, npair=2, dump_max=3, npair0=None, DX0=None, NX00=None, rp_load=None):
    X = {(h, u): Item(f"X{h}.{u}", "X", h, u, QS[h] + 2 * u - 1, QS[h] + 2 * u, 2) for h in range(2) for u in range(10)}
    W = {(h, t): Item(f"W{h}.{t}", "W", h, t, QS[h] + t - 1, QS[h] + t + 1) for h in range(2) for t in range(20)}
    KV = {}
    for h in range(2):
        for j in range(32):
            k, n = a_item(j)
            KV[(h, j)] = Item(f"{k}{h}.{n}", k, h, n, AS[h] + j - 1, AS[h] + j + 1)
    O = {j: Item(f"O{j}", "O", 0, j, OS + j - 1, OS + j + 1) for j in range(40)}
    xslots = set(range(2 * npair))
    for h in range(2):
        p = P if (h == 1 or P0 is None) else P0
        prev_last = KV[(0, 31)] if h == 1 else None
        for u in range(10):
            it = X[(h, u)]; it.prio = it.need
            dx = DX0 if (h == 0 and DX0) else DX
            nx0 = NX00 if (h == 0 and NX00) else NX0
            it.earliest = it.need - dx if u >= nx0 else -10**9
            it.allowed = None
        for t in range(20):
            it = W[(h, t)]; it.prio = it.need
            dw = DW0 if (h == 0 and DW0) else DW
            nw0 = NW00 if (h == 0 and NW00) else NW0
            it.earliest = it.need - dw if t >= nw0 else -10**9
        for j in range(32):
            it = KV[(h, j)]
            it.prio = it.need
            it.parked = j < p
            it.reg = p <= j < p + RP
            if it.reg and rp_load: it.dump_earliest = QS[h] + rp_load(h, j - p) + 3
            if j < p:
                it.prio = QS[h] + min(NW0, 2 * NX0) - 1.5
                pk = park0 if h == 0 else park1
                if pk: it.earliest = QS[h] + pk[j]; it.prio = it.earliest
    for j in range(40): O[j].prio = O[j].need
    queues = [[X[(h, u)] for h in range(2) for u in range(10)], [W[(h, t)] for h in range(2) for t in range(20)],
              [KV[(h, j)] for h in range(2) for j in range(32)], [O[j] for j in range(40)]]
    def gated(it):
        if it.kind in "XW":
            return it.h == 1 and KV[(0, 31)].issue is None
        if it.kind in "KV":
            if it.h == 1 and KV[(0, 31)].issue is None: return True
            if it.parked:
                need_first = [X[(it.h, u)] for u in range(NX0)] + [W[(it.h, t)] for t in range(NW0)]
                return any(x.issue is None for x in need_first)
            return X[(it.h, 9)].issue is None or W[(it.h, 19)].issue is None
        return KV[(1, 31)].issue is None
    owner = [None] * R
    seq = []
    def try_alloc(it, b):
        fr = [s for s in range(R) if owner[s] is None]
        if it.kind == "X":
            np_ = npair0 if (it.h == 0 and npair0) else npair
            c = [s for s in range(0, 2 * np_, 2) if s in fr and s + 1 in fr]
            return c[0] if c else None
        inq = any(QS[h] - 14 <= b < QS[h] + 16 for h in range(2))
        if it.kind == "W" or (it.kind in "KV" and (it.parked or (it.h == 0 and AS[0] + xres - 13 <= it.need - 12 and it.n is not None and KVidx[it.name] >= xres))):
            xs_ = set(range(2 * (npair0 if (it.h == 0 and npair0) else npair)))
            fr = [s for s in fr if s not in (xs_ if (it.kind == 'W' or it.parked) else {0, 1, 2, 3})]
        return fr[0] if fr else None
    KVidx = {KV[k].name: k[1] for k in KV}
    for b in range(-1, NSTEP):
        for s in range(R):
            it = owner[s]
            if it is not None and it.free <= b: owner[s] = None
        units = 0
        xtra = 0
        dumps = 0
        while True:
            cands = []
            for q in queues:
                if not q: continue
                it = q[0]
                extra = 1 if (it.kind in "KV" and it.parked and it.earliest > -10**8) else 0
                lim = (early_max if b < early_steps else maxper) + extra + xtra
                if getattr(it, "reg", False):
                    if gated(it) or dumps >= (12 if b in (19, 71) else dump_max) or b < getattr(it, "dump_earliest", -99): continue
                elif gated(it) or (b >= 0 and (it.earliest > b or units + it.units > lim)): continue
                if b < 0 and units + it.units > pro_max: continue
                s = try_alloc(it, b)
                if s is None: continue
                cands.append((it.prio, len(cands), q, it, s))
            if not cands: break
            _, _, q, it, s = min(cands, key=lambda c: (c[0], c[1]))
            q.pop(0)
            it.slot = s; it.issue = b
            for k in range(it.units): owner[s + k] = it
            if getattr(it, "reg", False): dumps += 1
            else: units += it.units
            if b >= 0 and it.kind in "KV" and it.parked and it.earliest > -10**8: xtra += 1
            seq.append(it)
    assert not any(queues), [q[0] for q in queues if q]
    for it in seq:
        assert it.issue < it.need or it.issue == -1, it
        if getattr(it, "reg", False):
            assert it.issue <= AS[it.h], it
    return seq, X, W, KV, O

def simulate(seq, cq=625, ca=640, co=635, lf=0.55, lh=0.85, svc=0.43, clk=1850., cold_q0=1.0, extra=None):
    extra = extra or {19: 1300, 51: 1900, 71: 1300, 103: 1900, 21: 500, 73: 500, 49: 400, 101: 400}
    byb = {}
    for it in seq: byb.setdefault(it.issue, []).append(it)
    t = 2.3 - 0.0; hbm = 0.0; vis = 0.0
    land = {}
    def issue(it, now):
        nonlocal hbm, vis
        if it.kind in "KV":
            hbm = max(hbm + svc, now + lh)
            f = hbm
        else:
            f = now + (cold_q0 * 2.0 if (it.h == 0 and it.kind in "XW") and cold_q0 > 1 else lf) + 0.05 * it.units
        vis = max(vis, f)
        land[it.name] = vis
    now0 = 0.6
    for it in byb.get(-1, []):
        issue(it, now0); now0 += 0.035 * it.units
    needs = {}
    for it in seq: needs.setdefault(it.need, []).append(it)
    t = max([land[i.name] for i in needs.get(-1, [])] + [now0])
    marks = {}
    stall_tot = 0
    for s in range(NSTEP):
        c = (cq if (s % 52) < 20 and s < 104 else (ca if s < 104 else co)) / clk
        tb = t + c * 2 / 3
        need = max([land[i.name] for i in needs.get(s, [])] + [0])
        st = max(0, need - tb); stall_tot += st
        tb += st
        for k, it in enumerate(byb.get(s, [])):
            issue(it, tb + 0.05 + 0.15 * k)
        t = tb + c / 3 + extra.get(s, 0) / clk
        marks[s] = (t, st)
    return t, stall_tot, marks

if __name__ == "__main__":
    for R, P, DW, DX, NW0, NX0 in ((13, 0, 7, 3, 9, 2), (13, 2, 5, 3, 7, 2), (13, 4, 3, 3, 5, 2), (13, 3, 4, 3, 6, 2), (13, 5, 2, 3, 4, 2)):
        try:
            seq, X, W, KV, O = build(R, P, DW, DX, NW0, NX0)
        except AssertionError as e:
            print(R, P, DW, DX, "infeasible", e); continue
        t, st, marks = simulate(seq)
        ph = lambda a, b: sum(marks[s][1] for s in range(a, b))
        dmin = min(it.need - it.issue for it in seq if it.issue >= 0)
        print(f"R={R} P={P} DW={DW} DX={DX}: total {t:.1f} us stalls {st:.2f}  Q0 {ph(0,19):.2f} A0 {ph(19,51):.2f} Q1 {ph(51,71):.2f} A1 {ph(71,103):.2f} O {ph(103,144):.2f} minD {dmin}")
    seq, X, W, KV, O = build(13, 4, 3, 3, 5, 2)
    print(" ".join(repr(i) for i in seq))
```

```python
import sys
import subprocess
import numpy as np
from asmlib import *
import gen as G
from gen import (ACC, SB, SBr, PB, PBr, TT, NEGM, NEGMr, L, LT, MT, OACC, CT, CTr, QF, QFr, AK, AV, AW, AO, DKV, DA, DB, DO,
                 AX, PSV, PT, TID, JUNK, VPC, VL128, VTK, VFO, VCHK, RD, SEL, FLG, VPOLL, VFV, VOUT, VZ, PSL, PART_OFF, FLAG_OFF,
                 SRD_DBG, SRD_OUT, s_outp, s_dbgp, s_b16, s_kw, s_pb, s_ro, s_rl, OA, OAr, O0P, O0Pr, FB, FBh,
                 SRD_A, SRD_K, SRD_V, SRD_WO, SRD_WS, SRD_B, s_w3072, s_pst, s_thr, s_c2, s_h0, s_b, s_pj, s_w, s_t, s_ret,
                 THR_BITS, C_BITS, SLOT, build_lane_consts, autonop, srd, pf_load, code_pf, kd, KNAME, Gen, a_item)
import sched

CFG = dict(
    nt_kv=True, timing=False, steptime=False, pst_flags=" sc1", red_flags=" sc1",
    dspair_v=True, dspair_k=False, dspair_w=False, no_st=False, map_nb=8,
    fused=True, single=False, kv_same=False,
    R=13, P=3, P0=None, DW=4, DX=3, NW0=6, NX0=2, xres=23,
    kv_rot=False, rot_shift=0, rot_mul=1,
    tlb0=-1, tlb1=-1, tlb_stride=4096,
    npair0=0, DX0=0, NX00=0, nt_w0=False, nt_w1=False, nt_x0=False, nt_x1=False,
    RP=0, npair=2, rp_start0=3, rp_start1=0, rp_space=1.2,
    DW0=0, NW00=0, tlb='', park0='', park1='', d_flag=2, d_poll=1, d_chk=2, d_mfma=3, hu_in=6, hu_per=3, pf_entry=True, hide_n=True, wo_split='53.57.61.65', w1_split='', pro_max=7, early_max=4, early_steps=3,
    pf_code=True, pf_w1=8, pf_wo=52, pf_start="xw", pf_start_step=0, code_lead=10, pf_code_all=True, macros=True,
)

SRD_X, SRD_W = SRD_A, SRD_B
G.SRD_DBG = S(4, 4)
SRD_DBG = G.SRD_DBG
s_kvb, s_wb, s_xb, s_ob = S(33), S(34), S(37), S(38)
s_do = [S(35), S(36)]
s_w6144 = S(41)
NSTEP = 144


AWR = V(246)
s_rp = S(39)
s_n0, s_kvb1 = S(40), S(42)
s_rl2 = [S(63), S(62)]
VHL = V(132)


def o_cs(j, reorder):
    if reorder and j < 8:
        return [(0, 0), (0, 1), (1, 0), (1, 1), (0, 2), (0, 3), (1, 2), (1, 3)][j]
    return j // 4, j % 4


def XF(u, half, qb): return V(144 + ((u % 2) * 2 + half) * 12 + 4 * qb, 4)


class Gen3(Gen):
    def __init__(self, cfg):
        self.cfg = cfg
        self.rare_sites = []
        i = lambda k: int(cfg[k])
        self.R = i("R")
        self.seq, self.X, self.W, self.KV, self.O = sched.build(
            R=self.R, P=i("P"), DW=i("DW"), DX=i("DX"), NW0=i("NW0"), NX0=i("NX0"),
            P0=None if cfg["P0"] in (None, "None") else int(cfg["P0"]), xres=i("xres"),
            pro_max=i("pro_max"), early_max=i("early_max"), early_steps=i("early_steps"),
            park0=[int(x) for x in str(cfg["park0"]).split(".")] if cfg["park0"] else None,
            park1=[int(x) for x in str(cfg["park1"]).split(".")] if cfg["park1"] else None,
            DW0=int(cfg["DW0"]) or None, NW00=int(cfg["NW00"]) or None, RP=i("RP"), npair=i("npair"),
            npair0=int(cfg["npair0"]) or None, DX0=int(cfg["DX0"]) or None, NX00=int(cfg["NX00"]) or None)
        self.item = []
        for h in range(2):
            self.item += [self.W[(h, t)] for t in range(20)] + [self.KV[(h, j)] for j in range(32)]
        self.item += [self.O[j] for j in range(40)]
        self.gaps = [None] * NSTEP
        self.pre = {s: [] for s in range(NSTEP)}
        self.post = {s: [] for s in range(NSTEP)}
        self.regs = {"K": AK, "V": AV, "W": AW, "O": AO}
        self.plan = {}
        for kind in self.regs:
            its = [it for it in self.item if it.kind == kind]
            k = 0
            while k < len(its):
                lo = hi = its[k].slot
                e = k
                while e + 1 < len(its):
                    nl, nh = min(lo, its[e + 1].slot), max(hi, its[e + 1].slot)
                    if nh - nl > 4: break
                    lo, hi = nl, nh
                    e += 1
                for q in range(k, e + 1): self.plan[its[q].name] = lo * SLOT
                k = e + 1
        self.base = {kind: [0] * len(self.regs[kind]) for kind in self.regs}
        self.nunit = 0
        self.fixes = {}
        self.dump_block = {}
        self.rp1_first = {}

    def place_fixes(self):
        for s, lst in self.fixes.items():
            gaps = self.gaps[s]
            for x, lo, hi in lst:
                c = [g for g in range(lo, hi + 1) if gaps[g].free() == 1 and not gaps[g].vm and g != 23]
                if not c: c = [g for g in range(lo, hi + 1) if gaps[g].free() >= 1 and not gaps[g].vm and g != 23]
                if not c: c = [hi]
                gaps[c[0]].va.append(x)

    def frag_reads3(self, it, f, buf):
        win = self.plan[it.name]
        off = it.slot * SLOT - win
        kind = it.kind
        if kind == "K":
            kt, kb = f // 6, f % 6
            ri = kb % 2
            return [(ds_read("ds_read_b128", FB(buf, f % 2), AK[ri], off + kt * 6144 + (kb // 2) * 128), ri, win)]
        ri, j = f % 4, f // 4
        o, d2 = {"V": (off + 128 * j, 6144), "W": (off + 128 * j, 1536), "O": (off + 4096 * j, 2048)}[kind]
        r = self.regs[kind][ri]
        return [(ds_read("ds_read_b64_tr_b16", FBh(buf, f % 2, 0), r, o), ri, win),
                (ds_read("ds_read_b64_tr_b16", FBh(buf, f % 2, 1), r, o + d2), ri, win)]

    def fix(self, kind, ri, win):
        B = self.base[kind]
        if B[ri] == win: return None
        d = win - B[ri]
        B[ri] = win
        r = self.regs[kind][ri]
        return valu("v_add_u32", r, d, r) if d > 0 else valu("v_subrev_u32", r, -d, r)

    def place_reads3(self, gaps, g0, it, grp, cur=None):
        rl = []
        for f in (2 * grp, 2 * grp + 1):
            rl += self.frag_reads3(it, f, grp % 3)
        fx = [x for x in (self.fix(it.kind, ri, win) for _, ri, win in rl) if x is not None]
        if fx:
            same = (cur is not None and cur.kind == it.kind)
            if it.kind == "K":
                lo = 20 if same else 2
            elif g0 == 24:
                lo = 16 if same else 2
            else:
                lo = 22 if same else 2
            self.pending_fix += [(x, lo, g0 - 1) for x in fx]
        pair = self.cfg["dspair_k"] if it.kind == "K" else (self.cfg["dspair_v"] if it.kind == "V" else self.cfg["dspair_w"])
        for k, (ins, ri, win) in enumerate(rl):
            gaps[g0 + (k // 2 if pair else k)].ds.append(ins)
        return len(rl)

    def first_reads3(self, it):
        out = []
        for grp in range(2):
            for f in (2 * grp, 2 * grp + 1):
                for ins, ri, win in self.frag_reads3(it, f, grp % 3):
                    x = self.fix(it.kind, ri, win)
                    if x is not None: out.append(x)
                    out.append(ins)
        for ri in range(len(self.regs[it.kind])):
            x = self.fix(it.kind, ri, self.plan[it.name])
            if x is not None: out.append(x)
        return out

    def x_reads3(self, it):
        u = it.n
        return [ds_read("ds_read_b128", XF(u, half, qb), AX[half], it.slot * SLOT + 2048 * qb) for half in range(2) for qb in range(3)]

    def units(self, it):
        tag = ("item", it.name)
        out = []
        for k in range(it.units):
            so = s_do[self.nunit % 2]
            self.nunit += 1
            nt = False
            if it.kind == "X":
                m0 = salu("s_add_u32", "m0", s_w6144, it.slot * SLOT + 3072 * k)
                off = salu("s_add_u32", so, s_xb, 128 * it.n + 30720 * k)
                vo, sr = DA, SRD_X
                nt = bool(self.cfg["nt_x0"]) if it.h == 0 else bool(self.cfg["nt_x1"])
            else:
                m0 = salu("s_add_u32", "m0", s_w3072, it.slot * SLOT)
                if it.kind in "KV":
                    off = self.kv_off(so, it)
                    vo, sr = DKV, (SRD_K if it.kind == "K" else SRD_V)
                    nt = self.cfg["nt_kv"]
                elif it.kind == "W":
                    off = salu("s_add_u32", so, s_wb, it.h * 384 + it.n * 393216)
                    vo, sr = DB, SRD_W
                    nt = bool(self.cfg["nt_w0"]) if it.h == 0 else bool(self.cfg["nt_w1"])
                else:
                    c, s = o_cs(it.n, self.cfg["hide_n"])
                    off = salu("s_add_u32", so, s_ob, s * 122880 + c * 128)
                    vo, sr = DO, SRD_WO
            out.append((m0, off, [dma(vo[i], sr, so, 1024 * i, nt, tag=tag) for i in range(3)]))
        return out

    def kv_off(self, so, it):
        if self.cfg["kv_rot"] and not self.cfg["kv_same"]:
            return [salu("s_xor_b32", so, s_n0, it.n), salu("s_mul_i32", so, so, 12288),
                    salu("s_add_u32", so, so, s_kvb if it.h == 0 else s_kvb1)]
        imm = it.h * 196608 + (0 if self.cfg["kv_same"] else it.n * 12288)
        return salu("s_add_u32", so, s_kvb, imm)

    def place_dma(self):
        for b in range(NSTEP):
            un = []
            for it in self.seq:
                if it.issue == b and not getattr(it, "reg", False): un += self.units(it)
            assert len(un) <= 4
            if len(un) == 1:
                pos = [[(0, 28), (1, 4), (1, 16)]]
            elif len(un) == 2:
                pos = [[(0, 28), (0, 34), (1, 4)], [(1, 10), (1, 16), (1, 22)]]
            elif len(un) > 2:
                pos = [[(0, 28), (0, 29), (0, 34)], [(1, 2), (1, 4), (1, 5)], [(1, 8), (1, 10), (1, 11)], [(1, 14), (1, 16), (1, 17)]][:len(un)]
            else:
                pos = []
            for (m0, off, ins), ps in zip(un, pos):
                for i, (ds_, gi) in enumerate(ps):
                    g = self.gaps[b + ds_]
                    if i == 0:
                        if isinstance(off, list):
                            (g[gi - 3] if gi >= 3 else self.gaps[b + ds_ - 1][36 + gi - 3]).sc.append(off[0])
                            g[gi - 2].sc += [off[1], m0]; g[gi - 1].sc.append(off[2])
                        else:
                            g[gi - 2].sc.append(m0)
                            g[gi - 1].sc.append(off)
                    if len(un) > 2 and gi % 6 < 4 and g[gi].ds:
                        pass
                    g[gi].vm.append(ins[i])

    def place_reg_tiles(self):
        self.dbase = 0
        for h in range(2):
            its = [self.KV[(h, j)] for j in range(32) if getattr(self.KV[(h, j)], "reg", False)]
            start = float(self.cfg["rp_start0" if h == 0 else "rp_start1"])
            last_s = -1
            for k, it in enumerate(its):
                s = 52 * h + int(start + k * float(self.cfg["rp_space"]))
                if h == 1 and self.cfg["hide_n"]:
                    s = max(s, 52 + int(2.45 * (k // 2 + 1)) + 1)
                while len([gi for gi in (5, 11, 17, 29, 35) if not self.gaps[s][gi].vm]) < 3 or s <= last_s: s += 1
                if h == 1: self.rp1_first[k] = s * 36 + min(gi for gi in (5, 11, 17, 29, 35) if not self.gaps[s][gi].vm)
                last_s = s
                assert s + 2 <= it.issue, (it, s)
                g = self.gaps[s]
                off = self.kv_off(s_rp, it)
                if isinstance(off, list):
                    for q, x in enumerate(off): g[1 + q].sc.append(x)
                else:
                    g[3].sc.append(off)
                free = [gi for gi in (5, 11, 17, 29, 35) if not g[gi].vm][:3]
                assert len(free) == 3, (s, free)
                for i, gi in enumerate(free):
                    g[gi].vm.append(vload(A(12 * k + 4 * i, 4), DKV[i], SRD_K if it.kind == "K" else SRD_V, s_rp, 1024 * i,
                                          " nt" if self.cfg["nt_kv"] else "", tag=("reg", it.name)))
                it.rk = k
            for b in sorted({it.issue for it in its}):
                grp = [it for it in its if it.issue == b]
                wr = []
                for it in grp:
                    off = it.slot * SLOT
                    pre = []
                    if not (0 <= off - self.dbase and off - self.dbase + 2048 + 1024 <= 65536):
                        nb = min(off, (self.R - 5) * SLOT)
                        d = nb - self.dbase
                        self.dbase = nb
                        pre = [valu("v_add_u32", AWR, d, AWR) if d > 0 else valu("v_subrev_u32", AWR, -d, AWR)]
                    wr.append((it, pre, [ds_write(AWR, A(12 * it.rk + 4 * i, 4), off - self.dbase + 1024 * i, tag=("dump", it.name)) for i in range(3)]))
                if b % 52 == 19:
                    blk = []
                    for it, pre, w in wr: blk += [WaitTag([("reg", it.name)])] + pre + w
                    self.dump_block[b] = blk
                    continue
                cand = [(b, gi) for gi in range(24, 36)] + [(b + 1, gi) for gi in range(0, 22)]
                ci = 0
                for it, pre, w in wr:
                    first = True
                    for x in w:
                        while True:
                            st_, gi = cand[ci]
                            gp = self.gaps[st_][gi]
                            ok = not gp.vm and gp.free() >= 1 and len(gp.ds) < 2
                            if first and pre:
                                pst, pg = cand[ci - 1] if ci > 0 else (None, None)
                                ok = ok and ci > 0
                            if ok: break
                            ci += 1
                        if first:
                            gp.sc.append(WaitTag([("reg", it.name)]))
                            if pre:
                                pst, pg = cand[ci - 1]
                                self.gaps[pst][pg].va += pre
                            first = False
                        gp.ds.append(x)
                        ci += 1

    def frame3(self, s, mf):
        it = self.item[s]
        nx = self.item[s + 1] if s + 1 < NSTEP else None
        gaps = [Gap(mf(i, FB((i // 6) % 3, (i // 3) % 2))) for i in range(36)]
        nds = [0] * 6
        self.pending_fix = []
        for Gi in range(6):
            if Gi < 4:
                nds[Gi] = self.place_reads3(gaps, 6 * Gi, it, Gi + 2)
            elif nx is not None:
                nds[Gi] = self.place_reads3(gaps, 6 * Gi, nx, Gi - 4, cur=it)
        xs = [x for x in self.X.values() if x.need == s]
        if xs:
            rd = self.x_reads3(xs[0])
            for k, gi in enumerate((24, 25, 26, 27, 30, 31)):
                gaps[gi].ds.append(rd[k])
            nds[4] += 4
            nds[5] += 2
        need = [("item", x.name) for x in self.seq if x.need == s]
        for Gi in range(6):
            gi = 6 * Gi + 5
            if Gi == 3 and nx is not None:
                lt = [("dump", x.name) for x in self.seq if x.need == s]
                bar = barrier()
                bar.info = lt
                gaps[gi].sc += [WaitTag(need, lgkm="auto", ltags=lt), bar]
            elif Gi == 5:
                if nx is not None: gaps[gi].sc.append(WaitTag([], lgkm="auto"))
            else:
                gaps[gi].sc.append(WaitTag([], lgkm="auto"))
        self.fixes[s] = self.pending_fix
        if self.cfg["steptime"]:
            gaps[24].post.append(I("s_memtime s[92:93]", "salu"))
            gaps[33].post += [raw("s_waitcnt lgkmcnt(0)"), raw(f"v_writelane_b32 v{253 + s // 64}, s92, {s % 64}", "valu")]
        self.gaps[s] = gaps

    def build_frames(self):
        for h in range(2):
            for t in range(20):
                def mf(i, fr, t=t):
                    T, qb = i // 3, i % 3
                    return mfma(ACC(T, qb), fr, XF(t // 2, t % 2, qb), 0 if t == 0 else ACC(T, qb))
                self.frame3(52 * h + t, mf)
            for j in range(32):
                kind, n = a_item(j)
                p = n % 2
                if kind == "K":
                    def mf(i, fr, p=p, n=n):
                        f, qb = i // 3, i % 3
                        kt, kb = f // 6, f % 6
                        c = (0 if n < 2 else NEGM(qb)) if kb == 0 else SB(p, kt, qb)
                        return mfma(SB(p, kt, qb), fr, QF(kb, qb), c)
                else:
                    def mf(i, fr, p=p, n=n):
                        T, qb = i // 3, i % 3
                        return mfma(OA(T, qb), fr, PB(p, qb), 0 if n == 0 else OA(T, qb))
                self.frame3(52 * h + 20 + j, mf)
        for j in range(40):
            c, s = o_cs(j, self.cfg["hide_n"])

            def mf(i, fr, s=s, p=c % 2):
                f, qb = i // 3, i % 3
                jj, nt = f // 4, f % 4
                ks = 3 * s + jj
                h, kb = ks // 6, ks % 6
                b = O0P(kb, qb) if h == 0 else QF(kb, qb)
                return mfma(OACC(p, nt, qb), fr, b, 0 if ks == 0 else OACC(p, nt, qb))
            self.frame3(104 + j, mf)

    def a_fill(self, h):
        s0 = 52 * h + 20
        gaps = [g for j in range(32) for g in self.gaps[s0 + j]]
        Gx = lambda j, i=0: 36 * j + i
        mops, fin = self.max_ops(0)
        for o in mops: o.earliest = Gx(1, 0)
        sm0, _ = self.softmax_ops(0, sub_deps=fin, earliest_kt=(Gx(1, 0), Gx(1, 2)))
        pend = list_schedule(gaps, mops + sm0, Gx(1, 0), Gx(2, 0))
        self.post[s0 + 1] += autonop(self.emit_tail(pend)) + [valu("v_mov_b32", L(qb), LT(qb)) for qb in range(3)]
        for n in range(1, 16):
            p = n % 2
            j0 = 2 * n
            j1 = j0 + 2 if n <= 14 else j0 + 1
            sub = [None, None, None] if n == 1 else None
            sm, ltl = self.softmax_ops(p, sub_deps=sub, earliest_kt=(Gx(j0, 0), Gx(j0, 3)), lacc=(n > 1))
            pend = list_schedule(gaps, sm + self.check_ops(ltl, p), Gx(j0, 0), Gx(j1, 0))
            self.post[s0 + j1 - 1] += autonop(self.emit_tail(pend)) + self.check_branch(p)
            if n == 15: self.post[s0 + j1 - 1] += self.l_acc()

    RINV = [V(192), V(193), V(194)]

    def rinv_fill(self, h):
        gaps = self.gaps[52 * h + 51]
        y = [MT(3 + qb) for qb in range(3)]
        dst = self.RINV if h == 0 else [MT(8), MT(9), MT(10)]
        ops, prev = [], [None] * 3
        for sw in ("v_permlane32_swap_b32", "v_permlane16_swap_b32"):
            for qb in range(3):
                o = Op(valu("v_mov_b32", y[qb], L(qb)), [(prev[qb], 0)] if prev[qb] else []); ops.append(o); prev[qb] = o
            for qb in range(3):
                o = Op(perm(sw, L(qb), y[qb]), [(prev[qb], 2)]); ops.append(o); prev[qb] = o
            for qb in range(3):
                o = Op(valu("v_add_f32", L(qb), L(qb), y[qb]), [(prev[qb], 1)]); ops.append(o); prev[qb] = o
        for qb in range(3):
            o = Op(vrcp(dst[qb], L(qb)), [(prev[qb], 0)]); ops.append(o)
        assert not list_schedule(gaps, ops, 0, 36)

    def norm_ops(self, h, tsets, rinv):
        ops, last_use, rd_last, unit_last = [], [[] for _ in tsets], {}, {}
        k = 0
        for kb in range(6):
            for qb in range(3):
                ts = k % len(tsets)
                t = tsets[ts]
                dep0 = [(x, 0) for x in last_use[ts]]
                rds = []
                for tt, T in enumerate((2 * kb, 2 * kb + 1)):
                    for r in range(4):
                        o = Op(I(f"v_accvgpr_read_b32 v{t + 4 * tt + r}, {rtxt(OAr(T, qb, r))}", "valu", [V(t + 4 * tt + r)], [OAr(T, qb, r)]), list(dep0))
                        ops.append(o); rds.append(o)
                        rd_last[T] = o
                mul = []
                for r in range(8):
                    o = Op(valu("v_mul_f32", V(t + r), V(t + r), rinv[qb]), [(rds[r], 0)]); ops.append(o); mul.append(o)
                cv = []
                for r in range(4):
                    d = V(t + r) if h == 0 else QFr(kb, qb, r)
                    deps = [(mul[2 * r], 0), (mul[2 * r + 1], 0)] + ([(cv[-1], 0)] if cv and h == 0 else [])
                    o = Op(valu("v_cvt_pk_bf16_f32", d, V(t + 2 * r), V(t + 2 * r + 1)), deps); ops.append(o); cv.append(o)
                fin = cv
                if h == 0:
                    fin = []
                    for r in range(4):
                        o = Op(I(f"v_accvgpr_write_b32 {rtxt(O0Pr(kb, qb, r))}, v{t + r}", "valu", [O0Pr(kb, qb, r)], [V(t + r)]), [(cv[r], 0), (cv[-1], 0)])
                        ops.append(o); fin.append(o)
                last_use[ts] = fin
                unit_last[(kb, qb)] = fin
                k += 1
        return ops, rd_last, unit_last

    def n0_fill(self):
        gaps = [g for s in range(52, 72) for g in self.gaps[s]]
        ops, rd_last, _ = self.norm_ops(0, [198, 206], self.RINV)
        pend = list_schedule(gaps, ops, 0, 36 * 19)
        assert not pend, len(pend)
        self.n0_free = {T: 52 * 36 + o.gap for T, o in rd_last.items()}
        for k, g0 in self.rp1_first.items():
            assert self.n0_free[k] < g0, (k, self.n0_free[k], g0)

    def n1_fill(self):
        gaps = [g for j in range(8) for g in self.gaps[104 + j]]
        rinv = [MT(8), MT(9), MT(10)]
        ops, _, unit_last = self.norm_ops(1, [112, 120], rinv)
        done = []
        lim = {kb: 36 * (4 + kb // 3) + 12 * (kb % 3) - 1 for kb in range(6)}
        g = 0
        rest = ops
        for kb in range(6):
            mine = [o for o in rest if any(o in unit_ops for unit_ops in [self._unit_ops(ops, kb)])]
            pend = list_schedule(gaps, mine, g, lim[kb])
            if pend:
                gi = lim[kb]
                gaps[gi].post += autonop([o.ins for o in pend]) + [nop(1)]
                for o in pend: o.gap = gi + 1
            rest = [o for o in rest if o not in mine]

    def _unit_ops(self, ops, kb):
        return ops[60 * kb:60 * kb + 60]

    def n_block(self, h):
        out = []
        if h == 1 and self.cfg["fused"]:
            out += self.hu_setup()
        out += self.rinv_ops()
        tmp = [V(0 + 8 * k, 8) for k in range(3)]
        pk = [V(24 + 4 * k, 4) for k in range(3)]
        for kb in range(6):
            for qb in range(3):
                t = tmp[qb][1]
                for tt, T in enumerate((2 * kb, 2 * kb + 1)):
                    for r in range(4):
                        out.append(I(f"v_accvgpr_read_b32 v{t + 4 * tt + r}, {rtxt(OAr(T, qb, r))}", "valu",
                                     [V(t + 4 * tt + r)], [OAr(T, qb, r)]))
            for qb in range(3):
                t = tmp[qb][1]
                for h2 in range(4):
                    out.append(valu("v_pk_mul_f32", V(t + 2 * h2, 2), V(t + 2 * h2, 2), V(MT(8 + 2 * qb)[1], 2)))
            for qb in range(3):
                t = tmp[qb][1]
                for r in range(4):
                    d = V(pk[qb][1] + r) if h == 0 else QFr(kb, qb, r)
                    out.append(valu("v_cvt_pk_bf16_f32", d, V(t + 2 * r), V(t + 2 * r + 1)))
            if h == 0:
                for qb in range(3):
                    for r in range(4):
                        out.append(I(f"v_accvgpr_write_b32 {rtxt(O0Pr(kb, qb, r))}, v{pk[qb][1] + r}", "valu",
                                     [O0Pr(kb, qb, r)], [V(pk[qb][1] + r)]))
        return autonop(out)

    def o_fill(self):
        gaps = [g for j in range(40) for g in self.gaps[104 + j]]

        def cvts(p):
            ops = []
            for ntp in range(2):
                for qb in range(3):
                    u = ntp * 3 + qb
                    for h in range(2):
                        a = OACC(p, 2 * ntp + h, qb)[1]
                        ops.append(valu("v_cvt_pk_bf16_f32", CTr(u, 2 * h), V(a), V(a + 1)))
                        ops.append(valu("v_cvt_pk_bf16_f32", CTr(u, 2 * h + 1), V(a + 2), V(a + 3)))
            return ops

        def store(u, c):
            return vstore(CT(u), PSV, SRD_WS, s_pst[u // 4], (u % 4) * 1024, self.cfg["pst_flags"], tag=("st", c))

        spos = [(0, 22), (0, 34), (1, 10), (1, 22), (1, 34), (2, 10)]
        last_step = {}
        for j in range(40): last_step[o_cs(j, self.cfg["hide_n"])[0]] = j
        prev_store_gap = -1
        for c in range(9):
            j0 = last_step[c] + 1
            g0 = 36 * j0
            e0 = max(g0 + 3, prev_store_gap + 1)
            ops = [Op(x, earliest=e0) for x in cvts(c % 2)]
            pos = [g0 + 36 * s + gi for s, gi in spos]
            pos = [p_ for p_ in pos if p_ > e0 + 8]
            k = 3
            while len(pos) < 6:
                nxt = g0 + 36 * (k // 1) + (10, 22, 34)[0]
                for gi in (10, 22, 34):
                    p_ = g0 + 36 * 2 + gi if k == 3 else g0 + 36 * (k - 1) + gi
                    if p_ not in pos and p_ > (pos[-1] if pos else 0) and len(pos) < 6: pos.append(p_)
                k += 1
            for u, p_ in enumerate(pos):
                if not self.cfg["no_st"]:
                    gaps[p_].vm.append(store(u, c))
            assert not list_schedule(gaps, ops, e0, e0 + 40)
            for u, p_ in enumerate(pos):
                assert max(o.gap for o in ops[4 * u:4 * u + 4]) < p_, (c, u, p_)
            prev_store_gap = pos[-1]
            self.last_store = getattr(self, "last_store", {})
            self.last_store[c] = pos[-1]
            ga = pos[-1] + 1
            gaps[ga].sc.append(salu("s_add_u32", s_pst[0], s_pst[0], 24576))
            gaps[ga + 1].sc.append(salu("s_add_u32", s_pst[1], s_pst[1], 24576))
        fused = self.cfg["fused"]
        if fused:
            self.hu_fill(gaps)
        tail = autonop([nop(7)] + cvts(1) + [store(u, 9) for u in range(6)])
        if fused: tail += self.hu_tail()
        self.post[143] += tail

    HU_NEED = [1, 2, 3, 5, 6, 7, 8, 9]
    HU_BASE = [0, 64, 128, 192, 256, 320, 384, 432]
    HU_LIM = [480, 480, 480, 480, 480, 480, 432, 480]

    def hu_buf(self, rho, t): return A(32 * (rho % 4 if rho in self.hu_inloop else rho) + 4 * t, 4)

    def hu_load(self, rho, t):
        return vload(self.hu_buf(rho, t), VHL, SRD_WS, s_rl2[rho % 2], 0, self.cfg["red_flags"], tag=("red", rho, t))

    def hu_adv(self, rho):
        return salu("s_add_u32", s_rl2[rho % 2], s_rl2[rho % 2], 2 * 245760)

    def hu_mfma(self, rho):
        o = []
        for t in range(8):
            if t % 4 == 0: o.append(WaitTag([("red", rho, t + 3)]))
            o.append(mfma(RD[0], SEL[0], self.hu_buf(rho, t), 0 if t == 0 else RD[0]))
        a = RD[0][1]
        o += [nop(7), valu("v_cvt_pk_bf16_f32", V(RD[1][1]), V(a), V(a + 1)), valu("v_cvt_pk_bf16_f32", V(RD[1][1] + 1), V(a + 2), V(a + 3)),
              vstore(V(RD[1][1], 2), VOUT, SRD_OUT, s_ro[rho % 2], 0, "", tag=("out", rho), width=2), nop(1)]
        return self.hu_out_off(rho) + o

    def hu_out_off(self, rho):
        hu, n, c, rem, w2, u, ntp, a = s_t[0], s_t[1], s_t[2], s_t[3], S(100), S(101), S(61), s_ro[rho % 2]
        o = [salu("s_add_u32", hu, s_kw, self.HU_BASE[rho]), salu("s_lshr_b32", n, hu, 1),
             salu("s_mul_hi_u32", c, n, (2 ** 32 + 23) // 24), salu("s_mul_i32", rem, c, 24), salu("s_sub_u32", rem, n, rem),
             salu("s_mul_hi_u32", w2, rem, (2 ** 32 + 5) // 6), salu("s_mul_i32", u, w2, 6), salu("s_sub_u32", u, rem, u),
             salu("s_mul_hi_u32", ntp, u, (2 ** 32 + 2) // 3), salu("s_mul_i32", rem, ntp, 3), salu("s_sub_u32", u, u, rem),
             salu("s_mul_i32", a, s_b, 192), salu("s_mul_i32", w2, w2, 48), salu("s_add_u32", a, a, w2),
             salu("s_lshl_b32", u, u, 4), salu("s_add_u32", a, a, u), salu("s_mul_i32", a, a, 1280),
             salu("s_lshl_b32", c, c, 7), salu("s_add_u32", a, a, c), salu("s_lshl_b32", ntp, ntp, 6), salu("s_add_u32", a, a, ntp),
             salu("s_and_b32", n, hu, 1), salu("s_lshl_b32", n, n, 4), salu("s_add_u32", a, a, n)]
        if rho >= 6:
            o += [scmp("s_cmp_ge_u32", hu, self.HU_LIM[rho]), salu("s_cselect_b32", a, 0x7FFF0000, a)]
        return o

    def hu_base(self, rho):
        return salu("s_add_u32", s_rl2[rho % 2], s_pb, 512 * self.HU_BASE[rho])

    def hu_setup(self):
        lane, g_, m_, t0, t1 = V(96), V(97), V(98), V(99), V(100)
        o = srd(SRD_OUT, None, 16 * 192 * 640 * 2, s_outp)
        o += [WaitTag([("chk",)]), scmp("s_cmp_eq_u32", s_w, 0), branch("s_cbranch_scc0", "L_chk_ok"),
              I(f"v_readfirstlane_b32 {rtxt(s_t[1])}, {rtxt(VCHK)}", "valu", [s_t[1]], [VCHK]), raw("s_nop 3"),
              scmp("s_cmp_ge_u32", s_t[1], 16), branch("s_cbranch_scc1", "L_chk_ok"),
              salu("s_mov_b32", s_t[0], 1 << 18), label("L_chk_loop"),
              salu("s_sub_u32", s_t[0], s_t[0], 1), branch("s_cbranch_scc1", "L_chk_ok"), raw("s_sleep 8"),
              I(f"buffer_load_dword {rtxt(VCHK)}, {rtxt(VFO)}, {rtxt(SRD_DBG)}, {rtxt(s_b16)} offen sc1", "salu"), raw("s_waitcnt vmcnt(0)"),
              I(f"v_readfirstlane_b32 {rtxt(s_t[1])}, {rtxt(VCHK)}", "salu"), raw("s_nop 3"),
              scmp("s_cmp_ge_u32", s_t[1], 16), branch("s_cbranch_scc0", "L_chk_loop"), label("L_chk_ok")]
        cnd = lambda d, a, b: I(f"v_cndmask_b32 {rtxt(d)}, {rtxt(a)}, {rtxt(b)}, vcc", "valu", [d], [a, b])
        cmp_ = lambda txt, u: I(txt, "valu", [], [u])
        o += [valu("v_and_b32", lane, 63, TID), valu("v_lshrrev_b32", g_, 4, lane), valu("v_and_b32", m_, 15, lane),
              valu("v_mov_b32", VZ, 0),
              valu("v_mul_u32_u24", t0, 1280, m_), valu("v_and_b32", t1, 1, g_), valu("v_lshlrev_b32", t1, 5, t1), valu("v_add_u32", t0, t0, t1),
              valu("v_lshrrev_b32", t1, 1, g_), valu("v_lshlrev_b32", t1, 3, t1), valu("v_add_u32", VOUT, t0, t1),
              valu("v_lshrrev_b32", t0, 5, lane), valu("v_mul_u32_u24", t0, 245760, t0), valu("v_and_b32", t1, 31, lane),
              valu("v_lshlrev_b32", t1, 4, t1), valu("v_add_u32", VHL, t0, t1),
              valu("v_lshlrev_b32", t0, 2, TID), valu("v_mov_b32", VPOLL, 0x7FFFFF00),
              cmp_(f"v_cmp_gt_u32 vcc, 16, {rtxt(TID)}", TID), nop(1), cnd(VPOLL, VPOLL, t0),
              valu("v_and_b32", t0, 1, m_), valu("v_lshlrev_b32", t0, 4, t0), valu("v_mov_b32", t1, 0x3F80), valu("v_lshlrev_b32", t1, t0, t1),
              valu("v_lshrrev_b32", t0, 3, m_), valu("v_and_b32", g_, 1, g_),
              cmp_(f"v_cmp_eq_u32 vcc, {rtxt(t0)}, {rtxt(g_)}", t0), nop(1), cnd(t1, VZ, t1),
              valu("v_lshrrev_b32", t0, 1, m_), valu("v_and_b32", t0, 3, t0)]
        for d in range(4):
            o += [cmp_(f"v_cmp_eq_u32 vcc, {d}, {rtxt(t0)}", t0), nop(1), cnd(V(SEL[0][1] + d), VZ, t1)]
        o += [salu("s_lshl_b32", s_b16, s_b, 8), salu("s_add_u32", s_b16, s_b16, FLAG_OFF),
              salu("s_lshl_b32", s_t[0], s_pj, 2), salu("s_add_u32", s_t[5], s_b16, s_t[0]), salu("s_add_u32", s_kw, s_t[0], s_w),
              salu("s_mul_i32", s_pb, s_b, 16 * 245760), salu("s_lshl_b32", s_t[0], s_kw, 9), salu("s_add_u32", s_pb, s_pb, s_t[0]),
              salu("s_add_u32", s_pb, s_pb, PART_OFF)]
        return o

    def add_wait_tag(self, gaps, fs, tag):
        for x in gaps[36 * fs + 23].sc:
            if isinstance(x, WaitTag):
                x.tag = ("waittag", x.tag[1] + (tag,))

    def hu_fill(self, gaps):
        d_flag, d_poll, d_chk = int(self.cfg["d_flag"]), int(self.cfg["d_poll"]), int(self.cfg["d_chk"])
        n_in = int(self.cfg["hu_in"])
        self.hu_pending = []
        self.hu_inloop = set()
        published = set()
        for rho in range(8):
            c = self.HU_NEED[rho]
            if c >= 8: break
            fs = self.last_store[c] // 36 + d_flag
            if c not in published and fs <= 38:
                published.add(c)
                self.add_wait_tag(gaps, fs, ("st", c))
                gaps[36 * fs + 24].va.insert(0, valu("v_mov_b32", VFV, c + 1))
                gaps[36 * fs + 29].vm.append(self.flag_store())
            ps = fs + d_poll
            cs = ps + d_chk
            if rho >= n_in or cs > 39:
                self.hu_pending.append((rho, 0))
                continue
            self.hu_inloop.add(rho)
            gaps[36 * ps + 35].vm.append(self.poll_load(("poll", rho)))
            self.post[104 + cs - 1] += self.check_spin(c + 1, f"L_sp{rho}", WaitTag([("poll", rho)])) + [self.hu_base(rho)]
            t, st_ = 0, cs
            while t < 8 and st_ < 40:
                for gi in sorted((35, 11, 17)[:int(self.cfg['hu_per'])]):
                    if t == 8: break
                    if st_ == cs and gi < 24: continue
                    g = gaps[36 * st_ + gi]
                    if g.vm: continue
                    g.vm.append(self.hu_load(rho, t))
                    g.post.append(self.hu_adv(rho))
                    t += 1
                st_ += 1
            self.hu_end = getattr(self, "hu_end", {})
            self.hu_end[rho] = st_
            if rho - 2 in self.hu_end: assert self.hu_end[rho - 2] <= cs, (rho, self.hu_end, cs)
            ms = st_ + int(self.cfg["d_mfma"])
            if t == 8 and ms <= 39:
                self.post[104 + ms - 1] += self.hu_mfma(rho)
            else:
                self.hu_pending.append((rho, t, "polled"))

    def hu_tail(self):
        pend = self.hu_pending
        ready = [p[0] for p in pend if len(p) == 3 and p[1] == 8]
        partial = [(p[0], p[1]) for p in pend if len(p) == 3 and p[1] < 8]
        late = [p[0] for p in pend if len(p) == 2]
        flag = lambda k: [valu("v_mov_b32", VFV, k), self.flag_store()]

        def loads(r, t0=0):
            o = [self.hu_base(r)] if t0 == 0 else []
            for t in range(t0, 8): o += [self.hu_load(r, t), self.hu_adv(r)]
            return o
        o = self.tstamp(0)
        if late: o += [self.poll_load(("poll", "late"))]
        o += [WaitTag([("st", 8)]), barrier()] + flag(9)
        for r in ready: o += self.hu_mfma(r)
        o += self.tstamp(1)
        o += [WaitTag([("st", 9)]), barrier()] + self.tstamp(2) + flag(10)
        inflight = []
        for r, t0 in partial:
            o += loads(r, t0)
            inflight.append(r)
        if late:
            c = max(self.HU_NEED[r] for r in late)
            o += self.check_spin(c + 1, "L_spl", WaitTag([("poll", "late")])) + [barrier()]
            for r in late:
                if len(inflight) >= 4: o += self.hu_mfma(inflight.pop(0))
                o += loads(r)
                inflight.append(r)
        o += self.tstamp(3)
        o += [self.poll_load(("poll", 9))]
        while len(inflight) > 1: o += self.hu_mfma(inflight.pop(0))
        o += self.check_spin(9, "L_sp9", WaitTag([("poll", 9)])) + [barrier()] + self.tstamp(4)
        o += loads(6) + [self.poll_load(("poll", "fin"))]
        for r in inflight: o += self.hu_mfma(r)
        o += self.tstamp(5) + self.check_spin(10, "L_spf", WaitTag([("poll", "fin")])) + [barrier()] + self.tstamp(6)
        o += loads(7) + self.tstamp(7) + self.hu_mfma(6) + self.tstamp(8) + self.hu_mfma(7) + self.tstamp(9) + self.tstamp(10)
        return o

    def tstamp(self, k):
        if not self.cfg["steptime"]: return []
        return [I("s_memtime s[92:93]", "salu"), raw("s_waitcnt lgkmcnt(0)"), raw(f"v_writelane_b32 v255, s92, {20 + k}", "valu")]


def stamp(k):
    return [I("s_memtime s[56:57]", "salu"), raw("s_waitcnt lgkmcnt(0)"), salu("s_mov_b32", S(64 + k), S(56))]


def main_kernel(cfg):
    g = Gen3(cfg)
    T = cfg["timing"]
    pro = [label("mha_main_kernel"), scmp("s_cmp_ge_u32", S(2), 256), branch("s_cbranch_scc1", "L_main_exit"),
           raw("s_load_dwordx16 s[64:79], s[0:1], 0")]
    if cfg["pf_entry"]:
        pro += [I("s_getpc_b64 s[56:57]", "salu"), label("L_pce"), raw("s_add_u32 s56, s56, mha_main_kernel-L_pce"), raw("s_addc_u32 s57, s57, -1") if False else raw("s_subb_u32 s57, s57, 0") if False else raw("s_nop 0"),
                ]
        pro = pro[:-4] + [I("s_getpc_b64 s[56:57]", "salu"), label("L_pce"),
                raw("s_and_b32 s56, s56, 0xffffff00"),
                valu("v_lshlrev_b32", V(1), 7, V(0)), raw("v_mov_b32 v3, s57", "valu"),
                raw("v_add_co_u32 v2, vcc, s56, v1", "valu"), raw("s_nop 1"), raw("v_addc_co_u32 v3, vcc, 0, v3, vcc", "valu"),
                I(f"global_load_dword {rtxt(JUNK)}, v[2:3], off", "vmem", [], [])]
    lane_ops = []
    wreg = build_lane_consts(lane_ops)
    pro += lane_ops
    pro.append(I(f"v_readfirstlane_b32 {rtxt(s_w)}, {rtxt(wreg)}", "valu", [s_w], [wreg]))
    pro.append(raw("s_waitcnt lgkmcnt(0)"))
    pro += srd(SRD_X, 64, 16 * 192 * 640 * 2) + srd(SRD_K, 66, 16 * 32 * 512 * 192 * 2) + srd(SRD_V, 68, 16 * 32 * 512 * 192 * 2)
    pro += srd(SRD_W, 70, 640 * 6144 * 2) + srd(SRD_WO, 72, 6144 * 640 * 2) + srd(SRD_WS, 78, 402653184)
    pro += [salu("s_mov_b32", s_outp[0], S(74)), salu("s_mov_b32", s_outp[1], S(75)),
            salu("s_mov_b32", s_dbgp[0], S(76)), salu("s_mov_b32", s_dbgp[1], S(77))]
    t0, t1 = s_t[0], s_t[1]
    nb = int(cfg["map_nb"]); npair = 32 // nb
    lg = lambda v: v.bit_length() - 1
    seen = set()
    for wg in range(256):
        a0, j = wg & 7, wg >> 3
        pj = (j & (npair - 1)) + ((a0 & (16 // npair - 1)) << lg(npair))
        bb = (j >> lg(npair)) + ((a0 >> lg(16 // npair)) << lg(nb))
        seen.add((bb, pj))
    assert len(seen) == 256
    pro += [
        salu("s_and_b32", t0, S(2), 7), salu("s_lshr_b32", t1, S(2), 3),
        salu("s_and_b32", s_pj, t1, npair - 1), salu("s_lshr_b32", s_b, t1, lg(npair)),
        salu("s_and_b32", t1, t0, 16 // npair - 1), salu("s_lshl_b32", t1, t1, lg(npair)), salu("s_add_u32", s_pj, s_pj, t1),
        salu("s_lshr_b32", t0, t0, lg(16 // npair)), salu("s_lshl_b32", t0, t0, lg(nb)), salu("s_add_u32", s_b, s_b, t0),
        salu("s_lshl_b32", s_h0, s_pj, 1),
        salu("s_mul_i32", s_w3072, s_w, 3072), salu("s_lshl_b32", s_w6144, s_w3072, 1),
        salu("s_lshl_b32", t0, s_b, 5), salu("s_add_u32", t0, t0, s_h0), salu("s_mul_i32", s_kvb, t0, 196608),
        salu("s_add_u32", s_kvb1, s_kvb, 196608),
        salu("s_lshr_b32", s_n0, S(2), int(cfg["rot_shift"])), salu("s_mul_i32", s_n0, s_n0, int(cfg["rot_mul"])), salu("s_and_b32", s_n0, s_n0, 15),
        salu("s_mul_i32", s_wb, s_h0, 384), salu("s_mul_i32", s_xb, s_b, 245760), salu("s_mul_i32", s_ob, s_h0, 245760),
        salu("s_lshl_b32", t0, s_b, 4), salu("s_add_u32", t0, t0, s_pj),
        salu("s_mul_i32", s_pst[0], t0, 245760), salu("s_add_u32", s_pst[0], s_pst[0], PART_OFF),
        salu("s_add_u32", s_pst[1], s_pst[0], 4096),
        salu("s_mov_b32", s_thr, THR_BITS), salu("s_mov_b32", S(48), C_BITS), salu("s_mov_b32", S(49), C_BITS),
    ]
    if T: pro += [I("s_memrealtime s[86:87]", "salu")] + stamp(0)
    if cfg["fused"]:
        pro += [salu("s_lshl_b32", t0, s_b, 8), salu("s_lshl_b32", t1, s_pj, 2), salu("s_add_u32", t0, t0, t1),
                salu("s_add_u32", t0, t0, FLAG_OFF), valu("v_mov_b32", PT(8), 0),
                vstore(PT(8), VFO, SRD_WS, t0, 0, " sc1", tag=("clr",), width=1)]

    gw = S(59)
    lane, lane128 = PT(3), PT(2)
    OOB = 0x7FFFFF00

    def masked(dst, src, n):
        return [valu("v_mov_b32", dst, OOB), raw(f"v_cmp_gt_u32 vcc, {n}, {rtxt(lane)}", "valu"), raw("s_nop 1"),
                raw(f"v_cndmask_b32 {rtxt(dst)}, {rtxt(dst)}, {rtxt(src)}, vcc", "valu")]
    pfs = [salu("s_lshl_b32", gw, S(2), 2), salu("s_add_u32", gw, gw, s_w),
           valu("v_and_b32", lane, 63, TID), valu("v_lshlrev_b32", lane128, 7, lane),
           valu("v_mul_u32_u24", PT(5), 21846, lane), valu("v_lshrrev_b32", PT(5), 16, PT(5)),
           valu("v_mul_u32_u24", PT(6), 3, PT(5)), valu("v_sub_u32", PT(6), lane, PT(6)),
           valu("v_mul_u32_u24", PT(5), 12288, PT(5)), valu("v_lshlrev_b32", PT(6), 7, PT(6)), valu("v_add_u32", PT(5), PT(5), PT(6))]
    pfs += masked(VTK[0], PT(5), 30) + masked(VTK[1], lane128, 60) + masked(PT(4), lane128, 30)
    pfs += [salu("s_and_b32", t0, gw, 15), salu("s_mul_i32", t0, t0, 768), salu("s_lshr_b32", S(100), gw, 4),
            salu("s_mul_i32", S(100), S(100), 122880), salu("s_add_u32", S(100), S(100), t0), salu("s_mul_i32", S(101), gw, 7680)]
    start = []
    if "x" in cfg["pf_start"]:
        start += [salu("s_mul_i32", t0, gw, 3840), pf_load(PT(4), SRD_X, t0)]
    if "w" in cfg["pf_start"]:
        start += [pf_load(VTK[0], SRD_W, S(100))]
    if "1" in cfg["pf_start"]:
        start += [salu("s_add_u32", t0, S(100), 384), pf_load(VTK[0], SRD_W, t0)]
    code_steps = cfg["_code_steps"]
    pfs2 = []
    if cfg["pf_code"]:
        pfs2 += [valu("v_and_b32", PT(7), 31, lane), valu("v_lshlrev_b32", PT(7), 7, PT(7)),
                 salu("s_lshl_b32", t0, s_w, 12), valu("v_add_u32", VL128, t0, PT(7))]
    if int(cfg["pf_start_step"]) == -2:
        pro += pfs + start
        pfs, start = [], []
    pfs += pfs2
    pfs += [valu("v_and_b32", PT(7), 63, TID), valu("v_lshlrev_b32", PT(7), 4, PT(7)), valu("v_add_u32", AWR, s_w3072, PT(7))]

    first = [it for it in g.seq if it.issue == -1]
    for k, it in enumerate(first):
        for m0, off, ins in g.units(it):
            pro += [m0] + (off if isinstance(off, list) else [off]) + [nop(0)] + ins
    if cfg["tlb"]:
        tl = [valu("v_and_b32", PT(9), 1, TID)]
        for what in str(cfg["tlb"]):
            if what in "kv":
                tl += [valu("v_mul_u32_u24", PT(10), 393216 - 128, PT(9)), pf_load(PT(10), SRD_K if what == "k" else SRD_V, s_kvb)]
            elif what == "o":
                tl += [valu("v_mul_u32_u24", PT(10), 491520 - 128, PT(9)), pf_load(PT(10), SRD_WO, s_ob)]
            elif what == "p":
                tl += [valu("v_mul_u32_u24", PT(10), 245760 - 128, PT(9)), pf_load(PT(10), SRD_WS, s_pst[0])]
        pro += tl
    pro += pfs
    if cfg["pf_code"]:
        for k, st_ in enumerate(code_steps):
            if st_ < 0 and not (cfg["pf_entry"] and k == 0): pro += code_pf(f"L_code+{16384 * k}")
    if cfg["pf_code_all"]:
        pro += [valu("v_lshlrev_b32", PT(9), 7, TID), valu("v_mov_b32", PT(10), S(2)), valu("v_lshlrev_b32", PT(10), 9, PT(10)),
                valu("v_add_u32", PT(9), PT(9), PT(10)),
                I("s_getpc_b64 s[56:57]", "salu"), label("L_pcall"), raw("s_add_u32 s56, s56, L_code-L_pcall"), raw("s_addc_u32 s57, s57, 0"),
                raw(f"v_mov_b32 v{VPC[1] + 1}, s57", "valu"), raw(f"v_add_co_u32 v{VPC[1]}, vcc, s56, {rtxt(PT(9))}", "valu"), raw("s_nop 1"),
                raw(f"v_addc_co_u32 v{VPC[1] + 1}, vcc, 0, v{VPC[1] + 1}, vcc", "valu"),
                raw(f"v_cmp_gt_u32 vcc, 4, {rtxt(TID)}", "valu"), raw("s_and_saveexec_b64 s[56:57], vcc"),
                raw("s_cbranch_execz L_pcall_skip"),
                I(f"global_load_dword {rtxt(JUNK)}, {rtxt(VPC)}, off", "salu", [], []), label("L_pcall_skip"),
                raw("s_mov_b64 exec, s[56:57]")]
    if int(cfg["pf_start_step"]) == -1: pro += start
    pro += [WaitTag([("item", it.name) for it in g.seq if it.need == -1]), barrier()]
    if cfg["fused"]:
        TMP = S(96, 4)
        pro += srd(TMP, None, 256, s_dbgp) + [salu("s_lshl_b32", t0, s_b, 4), valu("v_mov_b32", PT(8), 1), WaitTag([("clr",)]),
                I(f"buffer_atomic_add {rtxt(PT(8))}, {rtxt(VFO)}, {rtxt(TMP)}, {rtxt(t0)} offen", "store", [], [PT(8), VFO, TMP, t0], tag=("cnt",))]
    pro += g.x_reads3(g.X[(0, 0)]) + g.first_reads3(g.item[0]) + [wait(lgkm=4)]
    pro.append(label("L_code"))

    g.build_frames()
    g.place_dma()
    g.place_reg_tiles()
    g.place_fixes()
    def put(s, gi, ins_list):
        gp = g.gaps[s][gi]
        for x in ins_list:
            if x.cls in ("vmem",): gp.vm.append(x)
            else: gp.sc.append(x)
    def tlb_touch(h, tmp):
        st = int(cfg["tlb_stride"])
        n = (196608 + st - 1) // st
        o = [valu("v_mul_u32_u24", tmp, st, TID), valu("v_mov_b32", V(tmp[1] + 1), OOB),
             raw(f"v_cmp_gt_u32 vcc, {n}, {rtxt(TID)}", "valu"), raw("s_nop 1"),
             raw(f"v_cndmask_b32 {rtxt(tmp)}, v{tmp[1] + 1}, {rtxt(tmp)}, vcc", "valu"),
             salu("s_add_u32", t0, s_kvb, h * 196608)]
        for sr in (SRD_K, SRD_V):
            x = pf_load(tmp, sr, t0)
            x.txt += " nt"
            o.append(x)
        return o
    if int(cfg["tlb0"]) >= 0: g.pre[int(cfg["tlb0"])] += tlb_touch(0, V(192))
    if int(cfg["tlb1"]) >= 0: g.pre[int(cfg["tlb1"])] += tlb_touch(1, V(128))
    if int(cfg["pf_start_step"]) >= 0:
        g.pre[int(cfg["pf_start_step"])] += start
    if cfg["w1_split"]:
        steps_ = [int(x) for x in str(cfg["w1_split"]).split(".")]
        n_ = 30 // len(steps_)
        for k, st_ in enumerate(steps_):
            g.pre[st_] += [valu("v_subrev_u32", V(213), n_ * k, V(215)), valu("v_mov_b32", V(214), OOB),
                           raw(f"v_cmp_gt_u32 vcc, {n_}, v213", "valu"), raw("s_nop 1"),
                           raw(f"v_cndmask_b32 v214, v214, {rtxt(VTK[0])}, vcc", "valu"),
                           salu("s_add_u32", t0, S(100), 384), pf_load(V(214), SRD_W, t0)]
        g.pre[steps_[0]] = [valu("v_and_b32", V(215), 63, TID)] + g.pre[steps_[0]]
    elif int(cfg["pf_w1"]) == 19:
        g.post[19] = [salu("s_add_u32", t0, S(100), 384), pf_load(VTK[0], SRD_W, t0)] + g.post[19]
    elif int(cfg["pf_w1"]) >= 0:
        put(int(cfg["pf_w1"]), 9, [salu("s_add_u32", t0, S(100), 384)])
        put(int(cfg["pf_w1"]), 11, [pf_load(VTK[0], SRD_W, t0)])
    if cfg["wo_split"]:
        steps_ = [int(x) for x in str(cfg["wo_split"]).split(".")]
        n_ = 60 // len(steps_)
        for k, st_ in enumerate(steps_):
            g.pre[st_] += [valu("v_mov_b32", V(214), OOB), raw(f"v_cmp_gt_u32 vcc, {n_}, {rtxt(V(215))}", "valu"), raw("s_nop 1"),
                           raw(f"v_cndmask_b32 v214, v214, {rtxt(VTK[1])}, vcc", "valu"),
                           salu("s_add_u32", t0, S(101), 128 * n_ * k), pf_load(V(214), SRD_WO, t0)]
        g.pre[steps_[0]] = [valu("v_and_b32", V(215), 63, TID)] + g.pre[steps_[0]]
    elif int(cfg["pf_wo"]) == 52:
        g.post[51] += [pf_load(VTK[1], SRD_WO, S(101))]
    elif int(cfg["pf_wo"]) >= 0:
        put(int(cfg["pf_wo"]), 11, [pf_load(VTK[1], SRD_WO, S(101))])
    if cfg["pf_code"]:
        for k, st_ in enumerate(code_steps):
            if st_ >= 0: g.pre[st_] += code_pf(f"L_code+{16384 * k}")
    if cfg["fused"]:
        g.pre[80] += srd(SRD_DBG2, None, 256, s_dbgp) + [salu("s_lshl_b32", s_b16, s_b, 4),
                      I(f"buffer_load_dword {rtxt(VCHK)}, {rtxt(VFO)}, {rtxt(SRD_DBG2)}, {rtxt(s_b16)} offen sc1", "vmem", [VCHK],
                        [VFO, SRD_DBG2, s_b16], tag=("chk",))]
    if cfg["hide_n"]:
        g.rinv_fill(0); g.rinv_fill(1)
        g.n0_fill()
        g.n1_fill()
        if cfg["fused"]:
            g.post[103] += g.hu_setup()
    for h in range(2):
        g.a_fill(h)
        g.post[52 * h + 19] += g.dump_block.get(52 * h + 19, []) + g.q_pack()
        if not cfg["hide_n"]:
            g.post[52 * h + 51] += g.n_block(h)
    g.o_fill()

    body = []
    marks = {0: 1, 20: 3, 52: 5, 72: 7}
    ends = {19: 2, 51: 4, 71: 6, 103: 8}
    for s in range(NSTEP):
        body.append(label(f"L_st{s}"))
        if T and s in marks: body += stamp(marks[s])
        body += g.pre[s]
        for gp in g.gaps[s]: body += gp.flat()
        if T and s in ends: body += stamp(ends[s])
        body += g.post[s]

    fin = []
    if T:
        fin += stamp(9)
    fin += [raw("s_waitcnt vmcnt(0)")]
    if T:
        fin += [I("s_memtime s[56:57]", "salu"), I("s_memrealtime s[88:89]", "salu"), raw("s_waitcnt lgkmcnt(0)"),
                salu("s_mov_b32", S(74), S(56)), salu("s_mov_b32", S(90), S(88)), salu("s_sub_u32", S(88), S(88), S(86))]
        lst = [64, 65, 66, 67, 68, 69, 70, 71, 72, 73, 74, 88, 86, 90]
        for k, sr in enumerate(lst): fin.append(valu("v_mov_b32", V(k), S(sr)))
        fin += [salu("s_lshl_b32", t0, S(2), 6), salu("s_add_u32", t0, t0, 300 * 1024 * 1024), valu("v_mov_b32", V(20), 0),
                raw(f"v_cmp_eq_u32 vcc, 0, {rtxt(TID)}", "valu"), raw("s_and_saveexec_b64 s[56:57], vcc")]
        for k in range(0, 16, 4): fin.append(vstore(V(k, 4), V(20), SRD_WS, t0, 4 * k))
        fin += [raw("s_waitcnt vmcnt(0)")]
        if cfg["steptime"]:
            fin += [raw("s_mov_b64 exec, -1"), salu("s_mul_i32", t0, S(2), 768), salu("s_add_u32", t0, t0, 320 * 1024 * 1024),
                    raw(f"v_cmp_gt_u32 vcc, 64, {rtxt(TID)}", "valu"), raw("s_and_saveexec_b64 s[56:57], vcc"),
                    valu("v_lshlrev_b32", V(20), 2, TID)]
            for k in range(3): fin.append(vstore(V(253 + k), V(20), SRD_WS, t0, 256 * k, width=1))
            fin += [raw("s_waitcnt vmcnt(0)")]
    fin += [label("L_main_exit"), raw("s_endpgm")]

    seq = pro + body
    res, errs, _, maxout = resolve_and_check(seq, "main")
    for e in errs[:30]: print("ERR", e, file=sys.stderr)
    assert not errs, len(errs)
    assert maxout <= 63, maxout
    final = []
    for w in seq:
        if isinstance(w, WaitTag):
            vals = [v for v in res[id(w)] if v is not None]
            vm, lgk = (min(vals) if vals else None), (w.lres if w.info[1] == "auto" else w.info[1])
            if vm is None and lgk is None:
                continue
            final.append(wait(vm, lgk))
        else:
            final.append(w)
    seq = final
    _, errs, _, _ = resolve_and_check(seq, "final")
    for e in errs[:30]: print("ERR", e, file=sys.stderr)
    assert not errs, len(errs)
    stubs = []
    for k, p in enumerate(g.rare_sites):
        stubs += [label(f"L_rs{k}"), I(f"s_call_b64 {rtxt(s_ret)}, L_rare{p}", "branch"), branch("s_branch", f"L_rr{k}")]
    rare = g.rare_code(0) + g.rare_code(1)
    return seq + fin + stubs + rare


SRD_DBG2 = SRD_DBG

MACROS = """.macro MF d,a,b,c
v_mfma_f32_16x16x32_bf16 \\d,\\a,\\b,\\c
.endm
.macro TR d,a,o
ds_read_b64_tr_b16 \\d,\\a offset:\\o
.endm
.macro RD d,a,o
ds_read_b128 \\d,\\a offset:\\o
.endm
"""


def compact(line):
    import re
    t = line.strip()
    if t.startswith("v_mfma_f32_16x16x32_bf16 "):
        return "MF " + t.split(" ", 1)[1].replace(", ", ",")
    m = re.match(r"ds_read_b64_tr_b16 (\S+), (\S+) offset:(\d+)$", t)
    if m: return f"TR {m.group(1)},{m.group(2)},{m.group(3)}"
    m = re.match(r"ds_read_b128 (\S+), (\S+) offset:(\d+)$", t)
    if m: return f"RD {m.group(1)},{m.group(2)},{m.group(3)}"
    return t.replace(", ", ",")


HEADER = """; Fused multi-head attention block for MI355X (gfx950); assembly produced by my own generator script.
"""


def text_of(cfg, m, pad):
    kname = KNAME if cfg["single"] else "mha_main_kernel"
    lds = int(cfg["R"]) * SLOT
    s = HEADER
    if cfg["single"]:
        s += f"; @launch grid=(256,1,1) block=(256,1,1) lds={lds}\n"
    else:
        s += f"; @launch kernel=mha_main_kernel grid=(256,1,1) block=(256,1,1) lds={lds}\n"
        if not cfg["fused"]:
            s += "; @launch kernel=mha_reduce_kernel grid=(960,1,1) block=(256,1,1) lds=0\n"
    s += '.amdgcn_target "amdgcn-amd-amdhsa--gfx950"\n'
    if cfg["macros"]: s += MACROS
    s += ".text\n"
    ks = [(kname, m)]
    if not cfg["fused"]: ks.append(("mha_reduce_kernel", G.reducer_kernel(cfg)))
    for nm, code in ks:
        lines = []
        for i in code:
            for ln in i.txt.split("\n"):
                lines.append(compact(ln) if cfg["macros"] and i.cls != "label" else ln)
        s += f".globl {nm}\n.p2align 8\n.type {nm},@function\n" + "\n".join(lines).replace("mha_main_kernel:", kname + ":") + "\n"
    s += f".fill {pad}, 4, 0xBF800000\nL_text_end:\n"
    s += '.section .rodata,"a"\n.p2align 6\n' + kd(kname, 512, 256)
    if not cfg["fused"]: s += ".p2align 6\n" + kd("mha_reduce_kernel", 88, 88)
    return s


def assemble_syms(text):
    open("_g3.s", "w").write(text)
    r = subprocess.run(["clang", "-x", "assembler", "-target", "amdgcn-amd-amdhsa", "-mcpu=gfx950", "-c", "_g3.s", "-o", "_g3.o"],
                       capture_output=True, text=True)
    assert r.returncode == 0, r.stderr[:2000]
    sy = subprocess.run(["llvm-readelf", "-s", "_g3.o"], capture_output=True, text=True).stdout
    return {ln.split()[-1]: int(ln.split()[1], 16) for ln in sy.splitlines() if " L_" in ln and len(ln.split()) >= 8}


def build(cfg, path):
    import importlib
    cfg = dict(cfg)
    cfg["_code_steps"] = [-1] + [max(0, 21 * k - 10) for k in range(1, 8)]
    for it in range(2):
        G.code_pf.n = 0
        m = main_kernel(cfg)
        addr = assemble_syms(text_of(cfg, m, 64))
        base = addr["L_code"]
        end = addr["L_main_exit"] - base
        npiece = (end + 16383) // 16384
        steps = []
        for k in range(npiece):
            first = min([s for s in range(NSTEP) if addr[f"L_st{s}"] - base + 1024 > 16384 * k] or [NSTEP - 1])
            s_ = first - int(cfg["code_lead"])
            steps.append(-1 if s_ < 0 else s_)
        cfg["_code_steps"] = steps
    G.code_pf.n = 0
    m = main_kernel(cfg)
    addr = assemble_syms(text_of(cfg, m, 64))
    span = max(16384 * len(cfg["_code_steps"]), 131072)
    need = addr["L_code"] + span + 256 - addr["L_text_end"]
    pad = 64 + max(0, (need + 3) // 4)
    s = text_of(cfg, m, pad)
    open(path, "w").write(s)
    n_main = sum(1 for i in m if i.cls != "label")
    print(f"wrote {path}: {len(s)} bytes, {n_main} instrs, code {addr['L_main_exit'] - addr['L_code']} B, pad {pad}, code pf steps {cfg['_code_steps']}", file=sys.stderr)


if __name__ == "__main__":
    cfg = dict(CFG)
    path = "out3.s"
    for a in sys.argv[1:]:
        if "=" in a:
            k, v = a.split("=", 1)
            assert k in cfg, k
            cfg[k] = {"True": True, "False": False}.get(v, v)
        else:
            path = a
    build(cfg, path)
```

```python
import sys
import numpy as np
from asmlib import *

KNAME = "standalone__mha_block_cached__near_ridge_kernel"

CFG = dict(
    nt_kv=True,
    nt_w=False,
    timing=False,
    pst_flags=" sc1",
    red_flags=" sc1",
    dspair_v=True,
    dspair_w=False,
    dspair_k=False,
    x_flags="",
    no_x=False,
    no_st=False,
    map_nb=8,
    steptime=False,
    nx_step=10,
    pf_mode=0,
    single=False,
    fused=True,
    flag_step=31,
    poll_step=37,
    kv_rot=False,
    rot_shift=0,
    rot_mul=1,
    trickle=True,
    trk_steps='2.6.10.14',
    pf_mall=True,
    mall_order='xw',
    pfq_step=1,
    pf_x1=False,
    pf_start=False,
    pf_start_at=10,
    kv_same=False,
    pf_code=True,
    pf_data=False,
)

SLOT = 12288
NSLOT = 12
WIN = 5 * SLOT

def ACC(T, qb): return V((T * 3 + qb) * 4, 4)
def SB(p, kt, qb): return V(p * 24 + (kt * 3 + qb) * 4, 4)
def SBr(p, kt, qb, r): return V(p * 24 + (kt * 3 + qb) * 4 + r)
def PB(p, qb): return V(48 + p * 12 + qb * 4, 4)
def PBr(p, qb, r): return V(48 + p * 12 + qb * 4 + r)
NT = 16
def TT(k): return V(72 + k) if k < 8 else V(120 + k - 8)
def NEGM(qb): return V(80 + 4 * qb, 4)
def NEGMr(qb, r=0): return V(80 + 4 * qb + r)
def L(qb): return V(92 + qb)
def LT(qb): return V(95 + qb)
def MT(k): return V(98 + k)
def OACC(p, nt, qb): return V(p * 48 + (nt * 3 + qb) * 4, 4)
def OACCr(p, nt, qb, r): return V(p * 48 + (nt * 3 + qb) * 4 + r)
def CT(u): return V(96 + 4 * u, 4)
def CTr(u, r): return V(96 + 4 * u + r)
def QF(kb, qb): return V(144 + (kb * 3 + qb) * 4, 4)
def QFr(kb, qb, r): return V(144 + (kb * 3 + qb) * 4 + r)
AK = [V(216), V(217)]
AV = [V(218 + i) for i in range(4)]
AW = [V(222 + i) for i in range(4)]
AO = [V(226 + i) for i in range(4)]
DKV = [V(230 + i) for i in range(3)]
DA = [V(233 + i) for i in range(3)]
DB = [V(236 + i) for i in range(3)]
DO = [V(239 + i) for i in range(3)]
AX = [V(242), V(245)]
PSV = V(243)
def PT(k): return V(100 + k)
TID = V(244)
JUNK = A(255)
VPC = V(248, 2)
VLIN = V(250)
VWPF = V(251)
VTK = [V(247), V(251)]
VL128 = V(252)

RD = [V(120, 4), V(124, 4)]
SEL = [V(128, 4), V(132, 4)]
FLG = V(136)
VPOLL, VFV, VOUT, VZ = V(140), V(141), V(142), V(143)
VFO = V(250)
VCHK = V(249)
PART_OFF = 32768
FLAG_OFF = 64 << 20
SRD_DBG, SRD_OUT = S(20, 4), S(12, 4)
s_outp, s_dbgp = (S(18), S(19)), (S(3), S(47))
s_b16, s_kw, s_pb = S(60), S(33), S(34)
s_rl = S(63)
s_ro = [S(16), S(17), S(61), S(62)]
PSL = V(243)
def OA(T, qb): return A((T * 3 + qb) * 4, 4)
def OAr(T, qb, r): return A((T * 3 + qb) * 4 + r)
def XF(par, qb): return A((240 if par == 0 else 0) + qb * 4, 4)
def O0P(kb, qb): return A(144 + (kb * 3 + qb) * 4, 4)
def O0Pr(kb, qb, r): return A(144 + (kb * 3 + qb) * 4 + r)
def FB(buf, f): return A(216 + buf * 8 + f * 4, 4)
def FBh(buf, f, h): return A(216 + buf * 8 + f * 4 + 2 * h, 2)

SRD_A, SRD_K, SRD_V = S(4, 4), S(8, 4), S(12, 4)
SRD_WO, SRD_WS, SRD_B = S(20, 4), S(24, 4), S(28, 4)
s_w3072, s_koff, s_voff, s_aoff, s_boff = S(32), S(33), S(34), S(35), S(36)
s_ainc = [S(37), S(38)]
s_binc = [S(39), S(40)]
s_m0a = [S(41), S(42)]
s_kend, s_vend = S(16), S(17)
s_pst = [S(43), S(44)]
s_h, s_thr = S(45), S(46)
s_c2 = S(48, 2)
s_h0, s_b, s_pj, s_w = S(50), S(51), S(52), S(53)
s_t = [S(54 + i) for i in range(6)]
s_ret = S(90, 2)
s_stamp = 64

THR_BITS = 0x49800000
C_SCALE = np.float32(np.log2(np.e) / np.sqrt(192.0))
C_BITS = int(np.array([C_SCALE], dtype=np.float32).view(np.uint32)[0])


class LaneCalc:
    def __init__(self, out):
        self.out = out
        self.val = {}

    def _v(self, x):
        if isinstance(x, tuple):
            return self.val[x]
        return np.full(256, x, dtype=np.int64)

    def op(self, name, d, a, b, c=None):
        f = {
            "v_and_b32": lambda a, b: a & b,
            "v_or_b32": lambda a, b: a | b,
            "v_xor_b32": lambda a, b: a ^ b,
            "v_add_u32": lambda a, b: a + b,
            "v_sub_u32": lambda a, b: a - b,
            "v_lshlrev_b32": lambda a, b: b << a,
            "v_lshrrev_b32": lambda a, b: b >> a,
            "v_mul_u32_u24": lambda a, b: a * b,
        }[name]
        self.val[d] = f(self._v(a), self._v(b)) & 0xFFFFFFFF
        self.out.append(valu(name, d, a, b))
        return d


def build_lane_consts(out):
    lc = LaneCalc(out)
    tid = TID
    out.append(valu("v_mov_b32", tid, V(0)))
    lc.val[tid] = np.arange(256, dtype=np.int64)
    lane, w, g, i16, r, c = PT(1), PT(2), PT(3), PT(4), PT(5), PT(6)
    t0, t1, t2, t3 = PT(7), PT(8), PT(9), PT(10)
    lc.op("v_and_b32", lane, 63, tid)
    lc.op("v_lshrrev_b32", w, 6, tid)
    lc.op("v_lshrrev_b32", g, 4, lane)
    lc.op("v_and_b32", i16, 15, lane)
    lc.op("v_lshrrev_b32", r, 2, i16)
    lc.op("v_and_b32", c, 3, i16)
    L_ = np.arange(256) & 63
    W_ = np.arange(256) >> 6
    G_, I_ = L_ >> 4, L_ & 15
    R_, C_ = I_ >> 2, I_ & 3
    exp = {}

    lc.op("v_lshrrev_b32", t0, 1, i16)
    lc.op("v_and_b32", t0, 3, t0)
    lc.op("v_lshlrev_b32", t0, 1, t0)
    lc.op("v_xor_b32", t0, g, t0)
    lc.op("v_lshlrev_b32", t0, 4, t0)
    lc.op("v_mul_u32_u24", t1, 384, i16)
    lc.op("v_add_u32", AK[0], t0, t1)
    lc.op("v_xor_b32", t0, 64, t0)
    lc.op("v_add_u32", AK[1], t0, t1)
    f = 2 * ((I_ >> 1) & 3)
    for b in range(2):
        exp[AK[b]] = I_ * 384 + ((4 * b + G_) ^ f) * 16

    cpart = PT(11)
    lc.op("v_lshrrev_b32", t0, 1, c)
    lc.op("v_lshlrev_b32", t0, 4, t0)
    lc.op("v_and_b32", t1, 1, c)
    lc.op("v_lshlrev_b32", t1, 3, t1)
    lc.op("v_add_u32", cpart, t0, t1)
    CP = (C_ >> 1) * 16 + (C_ & 1) * 8

    key = PT(12)
    lc.op("v_lshlrev_b32", key, 2, g)
    lc.op("v_add_u32", key, key, r)
    lc.op("v_lshrrev_b32", t0, 1, key)
    lc.op("v_and_b32", t0, 3, t0)
    lc.op("v_lshlrev_b32", t0, 5, t0)
    lc.op("v_mul_u32_u24", t1, 384, key)
    lc.op("v_add_u32", t1, t1, cpart)
    lc.op("v_lshlrev_b32", t2, 7, key)
    lc.op("v_add_u32", t2, t2, cpart)
    KEY = 4 * G_ + R_
    fv = 2 * ((KEY >> 1) & 3)
    for tt in range(4):
        lc.op("v_xor_b32", t3, 32 * tt, t0)
        lc.op("v_add_u32", AV[tt], t3, t1)
        lc.op("v_add_u32", AO[tt], t3, t2)
        exp[AV[tt]] = KEY * 384 + ((2 * tt) ^ fv) * 16 + CP
        exp[AO[tt]] = KEY * 128 + ((2 * tt) ^ fv) * 16 + CP
    lc.op("v_lshrrev_b32", t0, 1, r)
    lc.op("v_and_b32", t1, 1, g)
    lc.op("v_lshlrev_b32", t1, 1, t1)
    lc.op("v_or_b32", t0, t0, t1)
    lc.op("v_lshlrev_b32", t0, 5, t0)
    lc.op("v_lshlrev_b32", t1, 3, g)
    lc.op("v_add_u32", t1, t1, r)
    lc.op("v_mul_u32_u24", t1, 384, t1)
    lc.op("v_add_u32", t1, t1, cpart)
    ROW = 8 * G_ + R_
    fw = 2 * (((ROW >> 1) & 1) | (((ROW >> 3) & 1) << 1))
    for tt in range(4):
        lc.op("v_xor_b32", t3, 32 * tt, t0)
        lc.op("v_add_u32", AW[tt], t3, t1)
        exp[AW[tt]] = ROW * 384 + ((2 * tt) ^ fw) * 16 + CP

    for i in range(3):
        p = t0
        lc.op("v_add_u32", p, 64 * i, lane)
        lc.op("v_mul_u32_u24", t1, 2731, p)
        lc.op("v_lshrrev_b32", t1, 16, t1)
        lc.op("v_and_b32", t2, 6, t1)
        lc.op("v_and_b32", t3, 7, lane)
        lc.op("v_xor_b32", t2, t2, t3)
        lc.op("v_and_b32", t3, 56, lane)
        lc.op("v_add_u32", t2, t2, t3)
        lc.op("v_lshlrev_b32", t2, 4, t2)
        lc.op("v_mul_u32_u24", t3, 3072, w)
        lc.op("v_add_u32", DKV[i], t2, t3)
        P = 64 * i + L_
        RL = P // 24
        REM = P % 24
        rowg = 8 * W_ + RL
        fk = 2 * ((rowg >> 1) & 3)
        exp[DKV[i]] = rowg * 384 + (REM // 8) * 128 + ((REM % 8) ^ fk) * 16 - 1024 * i
        lc.op("v_and_b32", t2, 2, t1)
        lc.op("v_and_b32", t3, 1, w)
        lc.op("v_lshlrev_b32", t3, 2, t3)
        lc.op("v_or_b32", t2, t2, t3)
        lc.op("v_and_b32", t3, 7, lane)
        lc.op("v_xor_b32", t2, t2, t3)
        lc.op("v_lshlrev_b32", t2, 4, t2)
        lc.op("v_mul_u32_u24", t3, 24, t1)
        lc.op("v_sub_u32", t3, p, t3)
        lc.op("v_and_b32", t3, 24, t3)
        lc.op("v_lshlrev_b32", t3, 4, t3)
        lc.op("v_add_u32", t2, t2, t3)
        lc.op("v_lshlrev_b32", t3, 3, w)
        lc.op("v_add_u32", t3, t3, t1)
        lc.op("v_mul_u32_u24", t3, 12288, t3)
        lc.op("v_add_u32", t2, t2, t3)
        if i:
            lc.op("v_sub_u32", DB[i], t2, PT(13)) if False else None
            lc.out.append(valu("v_subrev_u32", DB[i], 1024 * i, t2))
            lc.val[DB[i]] = (lc.val[t2] - 1024 * i) & 0xFFFFFFFF
        else:
            lc.out.append(valu("v_mov_b32", DB[i], t2))
            lc.val[DB[i]] = lc.val[t2]
        fw2 = 2 * (((rowg >> 1) & 1) | (((rowg >> 3) & 1) << 1))
        exp[DB[i]] = rowg * 12288 + (REM // 8) * 128 + ((REM % 8) ^ fw2) * 16 - 1024 * i
        lc.op("v_lshrrev_b32", t1, 3, lane)
        lc.op("v_and_b32", t2, 6, t1)
        lc.op("v_and_b32", t3, 7, lane)
        lc.op("v_xor_b32", t2, t2, t3)
        lc.op("v_lshlrev_b32", t2, 4, t2)
        lc.op("v_mul_u32_u24", t3, 24, w)
        lc.op("v_add_u32", t3, t3, t1)
        lc.op("v_add_u32", t3, 8 * i, t3)
        lc.op("v_mul_u32_u24", t3, 1280, t3)
        lc.op("v_add_u32", t2, t2, t3)
        if i:
            lc.out.append(valu("v_subrev_u32", DO[i], 1024 * i, t2))
            lc.val[DO[i]] = (lc.val[t2] - 1024 * i) & 0xFFFFFFFF
        else:
            lc.out.append(valu("v_mov_b32", DO[i], t2))
            lc.val[DO[i]] = lc.val[t2]
        rowo = 24 * W_ + 8 * i + (L_ >> 3)
        fo = 2 * ((rowo >> 1) & 3)
        exp[DO[i]] = rowo * 1280 + ((L_ & 7) ^ fo) * 16 - 1024 * i
    lc.op("v_lshrrev_b32", t0, 3, lane)
    lc.op("v_and_b32", t1, 6, t0)
    lc.op("v_and_b32", t2, 7, lane)
    lc.op("v_xor_b32", t1, t1, t2)
    lc.op("v_lshlrev_b32", t1, 4, t1)
    lc.op("v_mul_u32_u24", t2, 48, w)
    lc.op("v_add_u32", t0, t0, t2)
    lc.op("v_mul_u32_u24", t0, 1280, t0)
    lc.op("v_add_u32", DA[0], t0, t1)
    lc.op("v_add_u32", DA[1], 8 * 1280 - 1024, DA[0])
    lc.op("v_add_u32", DA[2], 2 * (8 * 1280 - 1024), DA[0])
    for i in range(3):
        exp[DA[i]] = (48 * W_ + 8 * i + (L_ >> 3)) * 1280 + ((L_ & 7) ^ ((L_ >> 3) & 6)) * 16 - 1024 * i
    lc.op("v_and_b32", t1, 6, i16)
    lc.op("v_xor_b32", t1, t1, g)
    lc.op("v_lshlrev_b32", t1, 4, t1)
    lc.op("v_lshlrev_b32", t0, 7, i16)
    lc.op("v_mul_u32_u24", t2, 6144, w)
    lc.op("v_add_u32", t0, t0, t2)
    lc.op("v_add_u32", AX[0], t0, t1)
    lc.op("v_xor_b32", t1, 64, t1)
    lc.op("v_add_u32", AX[1], t0, t1)
    for b in range(2):
        exp[AX[b]] = W_ * 6144 + I_ * 128 + ((4 * b + G_) ^ (I_ & 6)) * 16
    lc.out += [valu("v_mov_b32", VFO, 0x7FFFFF00), I(f"v_cmp_eq_u32 vcc, 0, {rtxt(tid)}", "valu", [], [tid]), nop(1),
               valu("v_mov_b32", t1, 0),
               I(f"v_cndmask_b32 {rtxt(VFO)}, {rtxt(VFO)}, {rtxt(t1)}, vcc", "valu", [VFO], [VFO, t1])]
    lc.op("v_lshlrev_b32", t0, 13, w)
    lc.op("v_lshlrev_b32", t1, 7, lane)
    lc.op("v_add_u32", VL128, t0, t1)
    exp[VL128] = W_ * 8192 + L_ * 128
    lc.op("v_mul_u32_u24", t0, 60, w)
    lc.op("v_add_u32", VWPF, t0, lane)
    exp[VWPF] = W_ * 60 + L_
    lc.op("v_mul_u32_u24", t0, 6144, w)
    lc.op("v_lshlrev_b32", t1, 4, lane)
    lc.op("v_add_u32", PSV, t0, t1)
    exp[PSV] = W_ * 6144 + L_ * 16
    for k, vv in exp.items():
        assert (vv >= 0).all(), k
        assert (lc.val[k] == vv).all(), (k, lc.val[k][:70], vv[:70])
    return w


def a_item(j):
    if j == 0: return ("K", 0)
    if j == 1: return ("K", 1)
    if j == 31: return ("V", 15)
    if j % 2 == 0: return ("V", (j - 2) // 2)
    return ("K", (j + 1) // 2)


HEAD_ITEMS = 72


def item_kind(idx):
    if idx >= 2 * HEAD_ITEMS + 40: return None
    if idx >= 2 * HEAD_ITEMS: return "O"
    r = idx % HEAD_ITEMS
    if r < 40: return "X" if r % 4 < 2 else "W"
    return a_item(r - 40)[0]


class Step:
    def __init__(self, aitem, xitem=None):
        self.aitem, self.xitem = aitem, xitem
        self.gaps = None


def program_steps():
    st = []
    for h in range(2):
        b = h * HEAD_ITEMS
        st += [Step(b + 4 * (t // 2) + 2 + t % 2, b + 4 * (t // 2)) for t in range(20)]
        st += [Step(b + 40 + j) for j in range(32)]
    st += [Step(2 * HEAD_ITEMS + j) for j in range(40)]
    return st


class Base:
    def __init__(self, regs_):
        self.regs = regs_
        self.base = [0] * len(regs_)


class Gen:
    def __init__(self, cfg):
        self.cfg = cfg
        self.bases = {"K": Base(AK), "V": Base(AV), "W": Base(AW), "O": Base(AO), "X": Base(AX)}
        self.steps = program_steps()
        self.new_items = []
        issued = 10
        for s_, st in enumerate(self.steps):
            done = set()
            for p_ in range(s_):
                done.add(self.steps[p_].aitem)
            for p_ in range(s_ + 1):
                x_ = self.steps[p_].xitem
                if x_ is not None and (p_ % 52) % 2 == 1:
                    done.add(x_); done.add(x_ + 1)
            free = -1
            while free + 1 in done: free += 1
            hi = min(free + NSLOT, issued + 2)
            new = [i for i in range(issued + 1, hi + 1) if item_kind(i) is not None]
            self.new_items.append(new)
            issued = max(issued, hi)
        self.rare_sites = []

    def frag_reads(self, kind, idx, f, buf):
        slot = (idx % NSLOT) * SLOT
        win = (slot // WIN) * WIN
        off = slot - win
        B = self.bases[kind]
        if kind == "K":
            kt, kb = f // 6, f % 6
            ri = kb % 2
            return [(ds_read("ds_read_b128", FB(buf, f % 2), AK[ri], off + kt * 6144 + (kb // 2) * 128), ri, win)]
        if kind == "V":
            ri, j = f % 4, f // 4
            o, d2 = off + 128 * j, 6144
        elif kind == "W":
            ri, j = f % 4, f // 4
            o, d2 = off + 128 * j, 1536
        else:
            ri, j = f % 4, f // 4
            o, d2 = off + 4096 * j, 2048
        return [(ds_read("ds_read_b64_tr_b16", FBh(buf, f % 2, 0), B.regs[ri], o), ri, win),
                (ds_read("ds_read_b64_tr_b16", FBh(buf, f % 2, 1), B.regs[ri], o + d2), ri, win)]

    def place_reads(self, gaps, g0, kind, idx, grp):
        buf = grp % 3
        rl = []
        for f in (2 * grp, 2 * grp + 1):
            rl += self.frag_reads(kind, idx, f, buf)
        B = self.bases[kind]
        fix = []
        for ins, ri, win in rl:
            if B.base[ri] != win:
                d = win - B.base[ri]
                B.base[ri] = win
                if d > 0:
                    fix.append(valu("v_add_u32", B.regs[ri], d, B.regs[ri]))
                else:
                    fix.append(valu("v_subrev_u32", B.regs[ri], -d, B.regs[ri]))
        for k, fx in enumerate(fix):
            gi = g0 - 2 + (k % 2)
            gaps[gi].va.append(fx)
        pair = self.cfg["dspair_k"] if kind == "K" else (self.cfg["dspair_v"] if kind == "V" else self.cfg["dspair_w"])
        n = len(rl)
        for k, (ins, ri, win) in enumerate(rl):
            gi = g0 + (k // 2 if pair else k)
            gaps[gi].ds.append(ins)
        return n

    def nreads(self, kind):
        return 2 if kind == "K" else 4

    def stream_of(self, idx):
        kind = item_kind(idx)
        if kind in ("K", "V"): return kind
        n = idx % HEAD_ITEMS if idx < 2 * HEAD_ITEMS else idx - 2 * HEAD_ITEMS
        return "A" if n % 4 < 2 else "B"

    def dma_instr(self, idx, i):
        st = self.stream_of(idx)
        tag = ("item", idx)
        if st == "K": return dma(DKV[i], SRD_K, s_koff, 1024 * i, self.cfg["nt_kv"], tag=tag)
        if st == "V": return dma(DKV[i], SRD_V, s_voff, 1024 * i, self.cfg["nt_kv"], tag=tag)
        if st == "A": return dma(DA[i], SRD_A, s_aoff, 1024 * i, self.cfg["nt_w"], tag=tag)
        return dma(DB[i], SRD_B, s_boff, 1024 * i, self.cfg["nt_w"], tag=tag)

    def dma_adv(self, idx):
        st = self.stream_of(idx)
        inc = 0 if self.cfg["kv_same"] else SLOT
        if st in ("K", "V") and self.cfg["kv_rot"]:
            off, end = (s_koff, s_kend) if st == "K" else (s_voff, s_vend)
            seq = [salu("s_add_u32", off, off, inc), scmp("s_cmp_eq_u32", off, end),
                   salu("s_cselect_b32", s_t[4], 196608, 0), salu("s_sub_u32", off, off, s_t[4])]
            n = a_item(idx % HEAD_ITEMS - 40)[1]
            if n == 15:
                seq += [salu("s_add_u32", off, off, 196608), salu("s_add_u32", end, end, 196608)]
            return seq
        if st == "K": return salu("s_add_u32", s_koff, s_koff, inc)
        if st == "V": return salu("s_add_u32", s_voff, s_voff, inc)
        n = idx % HEAD_ITEMS if idx < 2 * HEAD_ITEMS else idx - 2 * HEAD_ITEMS
        k = n % 2
        if st == "A": return salu("s_add_u32", s_aoff, s_aoff, s_ainc[k])
        return salu("s_add_u32", s_boff, s_boff, s_binc[k])

    def set_m0(self, idx):
        if self.stream_of(idx) == "A":
            n = idx % HEAD_ITEMS if idx < 2 * HEAD_ITEMS else idx - 2 * HEAD_ITEMS
            return salu("s_add_u32", "m0", s_m0a[n % 2], (idx % NSLOT) * SLOT)
        return salu("s_add_u32", "m0", s_w3072, (idx % NSLOT) * SLOT)

    def x_reads(self, idx, half):
        slot = (idx % NSLOT) * SLOT
        assert idx % 2 == 0 and (idx % NSLOT) + 1 < NSLOT
        win = (slot // WIN) * WIN
        B = self.bases["X"]
        fix = []
        for ri in range(2):
            if B.base[ri] != win:
                d = win - B.base[ri]
                B.base[ri] = win
                fix.append(valu("v_add_u32", AX[ri], d, AX[ri]) if d > 0 else valu("v_subrev_u32", AX[ri], -d, AX[ri]))
        return fix, [ds_read("ds_read_b128", XF(half, qb), AX[half], slot - win + 2048 * qb) for qb in range(3)]

    def frame(self, s_, mf, defer=False):
        st = self.steps[s_]
        nx = self.steps[s_ + 1] if s_ + 1 < len(self.steps) else None
        idx = st.aitem
        kind = item_kind(idx)
        gaps = [Gap(mf(i, FB((i // 6) % 3, (i // 3) % 2))) for i in range(36)]
        nds = [0] * 6
        for G in range(6):
            if G < 4:
                nds[G] = self.place_reads(gaps, 6 * G, kind, idx, G + 2)
            elif nx is not None and not defer:
                nds[G] = self.place_reads(gaps, 6 * G, item_kind(nx.aitem), nx.aitem, G - 4)
        if nx is not None and not defer and nx.xitem is not None:
            fix, rd = self.x_reads(nx.xitem, ((s_ + 1) % 52) % 2)
            for k_, f in enumerate(fix): gaps[20 + k_].va.append(f)
            gaps[24].ds.append(rd[0]); gaps[25].ds.append(rd[1]); gaps[26].ds.append(rd[2])
            nds[4] += 3
        for G in range(6):
            gi = 6 * G + 5
            if G == 3 and nx is not None:
                tags = [("item", nx.aitem)] + ([("item", nx.xitem), ("item", nx.xitem + 1)] if nx.xitem is not None else [])
                gaps[gi].sc.append(WaitTag(tags, lgkm=nds[G]))
                gaps[gi].sc.append(barrier())
            elif G == 5:
                if nx is not None and not defer:
                    gaps[gi].sc.append(wait(lgkm=nds[5]))
            else:
                gaps[gi].sc.append(wait(lgkm=nds[G]))
        if self.cfg["steptime"]:
            r = s_ % 52 if s_ < 104 else s_ - 104
            gaps[24].post.append(I("s_memtime s[92:93]", "salu"))
            seq = []
            seq = [raw("s_waitcnt lgkmcnt(0)"), raw(f"v_writelane_b32 v{253 if s_ < 104 else 255}, s92, {r}", "valu")]
            gaps[33].post += seq
        st.gaps = gaps
        return gaps

    def place_ring_dma(self, s0, s1):
        for s_ in range(max(s0 - 1, -1), s1):
            new = [10] if s_ < 0 else self.new_items[s_]
            carry = s_ < 0
            if not new: continue
            if len(new) == 1:
                plan = [(new[0], [(0, 28), (1, 4), (1, 16)])]
            elif len(new) == 2:
                plan = [(new[0], [(0, 28), (0, 34), (1, 4)]), (new[1], [(1, 10), (1, 16), (1, 22)])]
            else:
                raise AssertionError("three items")
            for idx, pos in plan:
                for i, (ds_, gi) in enumerate(pos):
                    t = s_ + ds_
                    if t < s0 or t >= s1: continue
                    g = self.steps[t].gaps
                    if i == 0: g[gi - 2].sc.append(self.set_m0(idx))
                    g[gi].vm.append(self.dma_instr(idx, i))
                    if i == 2:
                        adv = self.dma_adv(idx)
                        if isinstance(adv, list):
                            g[gi + 2].sc += adv
                        else:
                            g[gi + 2].sc.append(adv)

    def q_phase(self, h):
        s0 = 52 * h
        for t in range(20):
            def mf(i, fr, t=t):
                T, qb = i // 3, i % 3
                return mfma(ACC(T, qb), fr, XF(t % 2, qb), 0 if t == 0 else ACC(T, qb))
            self.frame(s0 + t, mf)

    def q_pack(self):
        out = []
        fr = [(kb, qb) for kb in range(6) for qb in range(3)]
        for b0 in range(0, 18, 3):
            batch = fr[b0:b0 + 3]
            for kb, qb in batch:
                for T in (2 * kb, 2 * kb + 1):
                    a = ACC(T, qb)[1]
                    for h in (0, 2):
                        out.append(valu("v_pk_mul_f32", V(a + h, 2), V(a + h, 2), s_c2))
            for kb, qb in batch:
                a, b = ACC(2 * kb, qb)[1], ACC(2 * kb + 1, qb)[1]
                out.append(valu("v_cvt_pk_bf16_f32", QFr(kb, qb, 0), V(a), V(a + 1)))
                out.append(valu("v_cvt_pk_bf16_f32", QFr(kb, qb, 1), V(a + 2), V(a + 3)))
                out.append(valu("v_cvt_pk_bf16_f32", QFr(kb, qb, 2), V(b), V(b + 1)))
                out.append(valu("v_cvt_pk_bf16_f32", QFr(kb, qb, 3), V(b + 2), V(b + 3)))
            for kb, qb in batch:
                out.append(perm("v_permlane32_swap_b32", QFr(kb, qb, 0), QFr(kb, qb, 2)))
                out.append(perm("v_permlane32_swap_b32", QFr(kb, qb, 1), QFr(kb, qb, 3)))
            for kb, qb in batch:
                out.append(perm("v_permlane16_swap_b32", QFr(kb, qb, 0), QFr(kb, qb, 2)))
                out.append(perm("v_permlane16_swap_b32", QFr(kb, qb, 1), QFr(kb, qb, 3)))
        return autonop(out)

    def max_ops(self, p):
        ops = []
        last = {}

        def add(ins, deps=(), key=None):
            o = Op(ins, deps)
            ops.append(o)
            return o

        m = [MT(qb) for qb in range(3)]
        y = [MT(3 + qb) for qb in range(3)]
        prev = [None] * 3
        for qb in range(3):
            vals = [SBr(p, kt, qb, r) for kt in range(2) for r in range(4)]
            o = add(valu("v_max3_f32", m[qb], vals[0], vals[1], vals[2]))
            o = add(valu("v_max3_f32", m[qb], m[qb], vals[3], vals[4]), [(o, 0)])
            o = add(valu("v_max3_f32", m[qb], m[qb], vals[5], vals[6]), [(o, 0)])
            o = add(valu("v_max_f32", m[qb], m[qb], vals[7]), [(o, 0)])
            prev[qb] = o
        for sw in ("v_permlane32_swap_b32", "v_permlane16_swap_b32"):
            for qb in range(3):
                prev[qb] = add(valu("v_mov_b32", y[qb], m[qb]), [(prev[qb], 0)])
            for qb in range(3):
                prev[qb] = add(perm(sw, m[qb], y[qb]), [(prev[qb], 2)])
            for qb in range(3):
                prev[qb] = add(valu("v_max_f32", m[qb], m[qb], y[qb]), [(prev[qb], 1)])
        fin = []
        for qb in range(3):
            o = add(valu("v_xor_b32", NEGMr(qb, 0), 0x80000000, m[qb]), [(prev[qb], 0)])
            fin.append(o)
            for r in range(1, 4):
                add(valu("v_mov_b32", NEGMr(qb, r), NEGMr(qb, 0)), [(o, 0)])
        return ops, fin

    def softmax_ops(self, p, sub_deps=None, earliest_kt=(0, 0), lacc=False):
        ops = []
        tuse = [[] for _ in range(NT)]
        tk = 0
        lt_prev = [None] * 3
        lacc_op = [None] * 3
        if lacc:
            for qb in range(3):
                lacc_op[qb] = Op(valu("v_add_f32", L(qb), L(qb), LT(qb)), [], earliest=earliest_kt[0])
                ops.append(lacc_op[qb])
        for kt in range(2):
            for qb in range(3):
                ex = []
                subs = []
                if sub_deps is not None:
                    for r in range(4):
                        o = Op(valu("v_add_f32", SBr(p, kt, qb, r), SBr(p, kt, qb, r), NEGMr(qb, 0)),
                               [(sub_deps[qb], 0)] if sub_deps[qb] is not None else [], earliest=earliest_kt[kt])
                        ops.append(o)
                        subs.append(o)
                for h in range(2):
                    pair = []
                    for r in (2 * h, 2 * h + 1):
                        t = tk % NT
                        deps = [(c, 0) for c in tuse[t]]
                        if subs:
                            deps.append((subs[r], 0))
                        e = Op(vexp(TT(t), SBr(p, kt, qb, r)), deps, earliest=earliest_kt[kt])
                        ops.append(e)
                        tuse[t] = []
                        pair.append((e, t))
                        tk += 1
                    (e0, t0), (e1, t1) = pair
                    if lt_prev[qb] is None:
                        a = Op(valu("v_add_f32", LT(qb), TT(t0), TT(t1)), [(e0, 1), (e1, 1)] +
                               ([(lacc_op[qb], 0)] if lacc_op[qb] is not None else []))
                        ops.append(a)
                        tuse[t0].append(a); tuse[t1].append(a)
                        lt_prev[qb] = a
                    else:
                        a = Op(valu("v_add_f32", LT(qb), LT(qb), TT(t0)), [(e0, 1), (lt_prev[qb], 0)])
                        ops.append(a); tuse[t0].append(a)
                        a2 = Op(valu("v_add_f32", LT(qb), LT(qb), TT(t1)), [(e1, 1), (a, 0)])
                        ops.append(a2); tuse[t1].append(a2)
                        lt_prev[qb] = a2
                    c = Op(valu("v_cvt_pk_bf16_f32", PBr(p, qb, 2 * kt + h), TT(t0), TT(t1)), [(e0, 1), (e1, 1)])
                    ops.append(c)
                    tuse[t0].append(c); tuse[t1].append(c)
        return ops, lt_prev

    def check_ops(self, lt_last, p):
        a = Op(valu("v_max3_f32", MT(6), LT(0), LT(1), LT(2)), [(o, 0) for o in lt_last])
        b = Op(I(f"v_cmp_lt_f32 vcc, {rtxt(s_thr)}, {rtxt(MT(6))}", "valu", [], [MT(6), s_thr]), [(a, 0)])
        return [a, b]

    def check_branch(self, p):
        k = len(self.rare_sites)
        self.rare_sites.append(p)
        return [branch("s_cbranch_vccnz", f"L_rs{k}"), label(f"L_rr{k}")]

    def l_acc(self):
        return [valu("v_add_f32", L(qb), L(qb), LT(qb)) for qb in range(3)]

    def emit_tail(self, pend):
        seq = [o.ins for o in pend]
        for o in pend:
            o.gap = 10 ** 9
        return seq

    def a_frames(self, h):
        for j in range(32):
            kind, n = a_item(j)
            if kind == "K":
                p = n % 2

                def mf(i, fr, p=p, n=n):
                    f, qb = i // 3, i % 3
                    kt, kb = f // 6, f % 6
                    if kb == 0:
                        c = 0 if n < 2 else NEGM(qb)
                    else:
                        c = SB(p, kt, qb)
                    return mfma(SB(p, kt, qb), fr, QF(kb, qb), c)
            else:
                p = n % 2

                def mf(i, fr, p=p, n=n):
                    T, qb = i // 3, i % 3
                    return mfma(OA(T, qb), fr, PB(p, qb), 0 if n == 0 else OA(T, qb))
            self.frame(52 * h + 20 + j, mf, defer=(j == 31))

    def a_phase(self, h, nx_switch):
        out = []
        steps = [self.steps[52 * h + 20 + j].gaps for j in range(32)]
        gaps = [g for st in steps for g in st]

        def G(j, i=0): return 36 * j + i

        post = {j: [] for j in range(32)}
        pre = {j: [] for j in range(32)}
        mops, fin = self.max_ops(0)
        for o in mops: o.earliest = G(1, 0)
        sm0, lt0 = self.softmax_ops(0, sub_deps=fin, earliest_kt=(G(1, 0), G(1, 2)))
        pend = list_schedule(gaps, mops + sm0, G(1, 0), G(2, 0))
        post[1] += autonop_tail(self.emit_tail(pend))
        post[1] += [valu("v_mov_b32", L(qb), LT(qb)) for qb in range(3)]
        for n in range(1, 16):
            p = n % 2
            j0 = 2 * n
            j1 = j0 + 2 if n <= 14 else j0 + 1
            sub = [None, None, None] if n == 1 else None
            sm, ltl = self.softmax_ops(p, sub_deps=sub, earliest_kt=(G(j0, 0), G(j0, 3)), lacc=(n > 1))
            chk = self.check_ops(ltl, p)
            pend = list_schedule(gaps, sm + chk, G(j0, 0), G(j1, 0))
            if pend: print(f"tile {n}: {len(pend)} ops in tail", file=sys.stderr)
            post[j1 - 1] += autonop_tail(self.emit_tail(pend))
            post[j1 - 1] += self.check_branch(p)
            if n == 15: post[j1 - 1] += self.l_acc()
        pre[int(self.cfg['nx_step'])] += nx_switch
        for j in range(32):
            out += pre[j]
            for g in steps[j]:
                out += g.flat()
            out += post[j]
        return out

    def rinv_ops(self):
        out = []
        y = [MT(3 + qb) for qb in range(3)]
        for sw in ("v_permlane32_swap_b32", "v_permlane16_swap_b32"):
            for qb in range(3): out.append(valu("v_mov_b32", y[qb], L(qb)))
            for qb in range(3): out.append(perm(sw, L(qb), y[qb]))
            for qb in range(3): out.append(valu("v_add_f32", L(qb), L(qb), y[qb]))
        for qb in range(3): out.append(vrcp(MT(8 + 2 * qb), L(qb)))
        for qb in range(3): out.append(valu("v_mov_b32", MT(9 + 2 * qb), MT(8 + 2 * qb)))
        return out

    def first_reads(self, kind, idx):
        out = []
        B = self.bases[kind]
        for grp in range(2):
            for f in (2 * grp, 2 * grp + 1):
                for ins, ri, win in self.frag_reads(kind, idx, f, grp % 3):
                    if B.base[ri] != win:
                        d = win - B.base[ri]
                        B.base[ri] = win
                        out.append(valu("v_add_u32", B.regs[ri], d, B.regs[ri]) if d > 0 else
                                   valu("v_subrev_u32", B.regs[ri], -d, B.regs[ri]))
                    out.append(ins)
        for ri in range(len(B.regs)):
            win = ((idx % NSLOT) * SLOT // WIN) * WIN
            if B.base[ri] != win:
                d = win - B.base[ri]
                B.base[ri] = win
                out.append(valu("v_add_u32", B.regs[ri], d, B.regs[ri]) if d > 0 else
                           valu("v_subrev_u32", B.regs[ri], -d, B.regs[ri]))
        return out

    def n_phase(self, h):
        if h == 0:
            fix, rd = self.x_reads(HEAD_ITEMS, 0)
            out = fix + rd + self.first_reads("W", HEAD_ITEMS + 2)
        else:
            out = self.first_reads("O", 2 * HEAD_ITEMS)
            if self.cfg["fused"]:
                out += self.reduce_setup()
        out += self.rinv_ops()
        tmp = [V(0 + 8 * k, 8) for k in range(3)]
        pk = [V(24 + 4 * k, 4) for k in range(3)]
        for kb in range(6):
            for qb in range(3):
                t = tmp[qb][1]
                for tt, T in enumerate((2 * kb, 2 * kb + 1)):
                    for r in range(4):
                        out.append(I(f"v_accvgpr_read_b32 v{t + 4 * tt + r}, {rtxt(OAr(T, qb, r))}", "valu",
                                     [V(t + 4 * tt + r)], [OAr(T, qb, r)]))
            for qb in range(3):
                t = tmp[qb][1]
                for h2 in range(4):
                    out.append(valu("v_pk_mul_f32", V(t + 2 * h2, 2), V(t + 2 * h2, 2), V(MT(8 + 2 * qb)[1], 2)))
            for qb in range(3):
                t = tmp[qb][1]
                for r in range(4):
                    d = V(pk[qb][1] + r) if h == 0 else QFr(kb, qb, r)
                    out.append(valu("v_cvt_pk_bf16_f32", d, V(t + 2 * r), V(t + 2 * r + 1)))
            if h == 0:
                for qb in range(3):
                    for r in range(4):
                        out.append(I(f"v_accvgpr_write_b32 {rtxt(O0Pr(kb, qb, r))}, v{pk[qb][1] + r}", "valu",
                                     [O0Pr(kb, qb, r)], [V(pk[qb][1] + r)]))
        out.append(wait(lgkm=4))
        return autonop(out)

    def o_phase(self):
        out = []
        for j in range(40):
            c, s = j // 4, j % 4
            p = c % 2

            def mf(i, fr, s=s, p=p):
                f, qb = i // 3, i % 3
                jj, nt = f // 4, f % 4
                ks = 3 * s + jj
                h, kb = ks // 6, ks % 6
                b = O0P(kb, qb) if h == 0 else QF(kb, qb)
                return mfma(OACC(p, nt, qb), fr, b, 0 if ks == 0 else OACC(p, nt, qb))
            self.frame(104 + j, mf)
        self.place_ring_dma(104, 144)
        gaps = [g for j in range(40) for g in self.steps[104 + j].gaps]

        def cvts(p):
            ops = []
            for ntp in range(2):
                for qb in range(3):
                    u = ntp * 3 + qb
                    for h in range(2):
                        a = OACC(p, 2 * ntp + h, qb)[1]
                        ops.append(valu("v_cvt_pk_bf16_f32", CTr(u, 2 * h), V(a), V(a + 1)))
                        ops.append(valu("v_cvt_pk_bf16_f32", CTr(u, 2 * h + 1), V(a + 2), V(a + 3)))
            return ops

        def store(u, c):
            return vstore(CT(u), PSV, SRD_WS, s_pst[u // 4], (u % 4) * 1024, self.cfg["pst_flags"], tag=("st", c))

        def adv():
            return [salu("s_add_u32", s_pst[0], s_pst[0], 24576), salu("s_add_u32", s_pst[1], s_pst[1], 24576)]

        spos = [(0, 22), (0, 34), (1, 10), (1, 22), (1, 34), (2, 10)]
        for c in range(1, 10):
            pp = (c - 1) % 2
            g0 = 36 * (4 * c)
            ops = [Op(x, earliest=g0 + 3) for x in cvts(pp)]
            pend = list_schedule(gaps, ops, g0, g0 + 36)
            assert not pend
            for u, (s, gi) in enumerate(spos):
                assert max(o.gap for o in ops[4 * u:4 * u + 4]) < g0 + 36 * s + gi
                if not self.cfg["no_st"]:
                    gaps[36 * (4 * c + s) + gi].vm.append(store(u, c - 1))
            a = adv()
            gaps[36 * (4 * c + 3) + 0].sc.append(a[0])
            gaps[36 * (4 * c + 3) + 1].sc.append(a[1])
        fused = self.cfg["fused"]
        post = {j: [] for j in range(40)}
        if fused:
            for k, (c, fs) in enumerate(((2, 17), (5, 29), (7, 37))):
                for x in gaps[36 * fs + 23].sc:
                    if isinstance(x, WaitTag):
                        x.tag = ("waittag", x.tag[1] + (("st", c),))
                gaps[36 * fs + 24].va.insert(0, valu("v_mov_b32", VFV, k + 1))
                gaps[36 * fs + 29].vm.append(self.flag_store())
            for r, (ps, cs, nper) in enumerate(((19, 21, 2), (31, 33, 3))):
                gaps[36 * ps + 35].vm.append(self.poll_load(("poll", r + 1)))
                post[cs - 1] += self.check_spin(r + 1, f"L_sp{r + 1}", WaitTag([("poll", r + 1)]))
                post[cs - 1] += [salu("s_add_u32", s_rl, s_pb, 64 * 1024 * r)]
                j = 0
                st_ = cs
                while j < 16:
                    for gi in (35, 11, 17)[:nper]:
                        if j == 16: break
                        if st_ == cs and gi < 24: continue
                        gaps[36 * st_ + gi].vm.append(vload(A(64 * r + 4 * j, 4), PSL, SRD_WS, s_rl, 0, self.cfg["red_flags"], tag=("red", r, j)))
                        gaps[36 * st_ + gi].post.append(salu("s_add_u32", s_rl, s_rl, 245760))
                        j += 1
                    st_ += 1
                assert st_ <= 40
            post[31] += self.red_mfma(0)
            gaps[36 * 39 + 29].vm.append(self.poll_load(("poll", 3)))
        for j in range(40):
            for g in self.steps[104 + j].gaps:
                out += g.flat()
            out += post[j]
        tail = [nop(7)] + cvts(1)
        tail += [store(u, 9) for u in range(6)]
        out += autonop(tail)
        if fused:
            out += self.reduce_tail()
        return out

    def flag_store(self):
        return vstore(VFV, VFO, SRD_WS, s_t[5], 0, " sc1", tag=("flag",), width=1)

    def poll_load(self, tag):
        return I(f"buffer_load_dword {rtxt(FLG)}, {rtxt(VPOLL)}, {rtxt(SRD_WS)}, {rtxt(s_b16)} offen sc1", "vmem", [FLG],
                 [VPOLL, SRD_WS, s_b16], tag=tag)

    def poll_test(self, k):
        return [I(f"v_cmp_le_u32 vcc, {k}, {rtxt(FLG)}", "valu", [], [FLG]), raw("s_nop 0"),
                raw(f"s_and_b32 {rtxt(s_t[1])}, vcc_lo, 0xffff"), raw(f"s_cmp_eq_u32 {rtxt(s_t[1])}, 0xffff")]

    def check_spin(self, k, name, first_wait):
        body = [raw(f"s_sleep {self.cfg.get('spin_sleep', 8)}"), I(self.poll_load(None).txt, "salu"), raw("s_waitcnt vmcnt(0)")]
        body += [I(x.txt, "salu") for x in self.poll_test(k)]
        o = [first_wait, scmp("s_cmp_eq_u32", s_w, 0), branch("s_cbranch_scc0", f"{name}_ok")]
        o += self.poll_test(k) + [branch("s_cbranch_scc1", f"{name}_ok"), salu("s_mov_b32", s_t[0], 1 << 18), label(f"{name}_loop")]
        o += [salu("s_sub_u32", s_t[0], s_t[0], 1), branch("s_cbranch_scc1", f"{name}_ok")]
        o += body + [branch("s_cbranch_scc0", f"{name}_loop"), label(f"{name}_ok")]
        return o

    def reduce_setup(self, pro_ptrs=True):
        o = []
        o += srd(SRD_OUT, None, 16 * 192 * 640 * 2, s_outp)
        lane, g_, m_, t0, t1, d1 = V(96), V(97), V(98), V(99), V(100), V(101)
        o += [WaitTag([("chk",)]), scmp("s_cmp_eq_u32", s_w, 0), branch("s_cbranch_scc0", "L_chk_ok"),
              I(f"v_readfirstlane_b32 {rtxt(s_t[1])}, {rtxt(VCHK)}", "valu", [s_t[1]], [VCHK]), raw("s_nop 3"),
              scmp("s_cmp_eq_u32", s_t[1], 16), branch("s_cbranch_scc1", "L_chk_ok"),
              salu("s_mov_b32", s_t[0], 1 << 18), label("L_chk_loop"),
              salu("s_sub_u32", s_t[0], s_t[0], 1), branch("s_cbranch_scc1", "L_chk_ok"), raw("s_sleep 8"),
              I(f"buffer_load_dword {rtxt(VCHK)}, {rtxt(VFO)}, {rtxt(SRD_DBG)}, {rtxt(s_b16)} offen sc1", "salu"), raw("s_waitcnt vmcnt(0)"),
              I(f"v_readfirstlane_b32 {rtxt(s_t[1])}, {rtxt(VCHK)}", "salu"), raw("s_nop 3"),
              scmp("s_cmp_eq_u32", s_t[1], 16), branch("s_cbranch_scc0", "L_chk_loop"), label("L_chk_ok")]
        o += [valu("v_and_b32", lane, 63, TID), valu("v_lshrrev_b32", g_, 4, lane), valu("v_and_b32", m_, 15, lane),
              valu("v_mul_u32_u24", t0, 1280, m_), valu("v_lshlrev_b32", t1, 4, g_), valu("v_add_u32", VOUT, t0, t1),
              valu("v_mov_b32", VZ, 0),
              valu("v_lshlrev_b32", t0, 2, TID), valu("v_mov_b32", VPOLL, 0x7FFFFF00),
              I(f"v_cmp_gt_u32 vcc, 16, {rtxt(TID)}", "valu", [], [TID]), nop(1),
              I(f"v_cndmask_b32 {rtxt(VPOLL)}, {rtxt(VPOLL)}, {rtxt(t0)}, vcc", "valu", [VPOLL], [VPOLL, t0]),
              valu("v_lshrrev_b32", t0, 2, m_), valu("v_and_b32", t1, 1, t0), valu("v_lshlrev_b32", t1, 4, t1),
              valu("v_lshrrev_b32", t0, 1, t0), valu("v_lshlrev_b32", t0, 2, t0), valu("v_add_u32", t1, t1, t0),
              valu("v_and_b32", t0, 3, m_), valu("v_add_u32", t1, t1, t0),
              valu("v_lshlrev_b32", t0, 3, g_), valu("v_sub_u32", d1, t1, t0)]
        for k in range(2):
            if k: o.append(valu("v_add_u32", d1, 8, d1))
            o += [valu("v_and_b32", t0, 1, d1), valu("v_lshlrev_b32", t0, 4, t0), valu("v_mov_b32", t1, 0x3F80),
                  valu("v_lshlrev_b32", t1, t0, t1), valu("v_lshrrev_b32", t0, 1, d1)]
            for d in range(4):
                o += [I(f"v_cmp_eq_u32 vcc, {d}, {rtxt(t0)}", "valu", [], [t0]), nop(1),
                      I(f"v_cndmask_b32 v{SEL[k][1] + d}, {rtxt(VZ)}, {rtxt(t1)}, vcc", "valu", [V(SEL[k][1] + d)], [VZ, t1])]
        o += [salu("s_lshl_b32", s_b16, s_b, 8), salu("s_add_u32", s_b16, s_b16, FLAG_OFF),
              salu("s_lshl_b32", s_t[0], s_pj, 2), salu("s_add_u32", s_t[5], s_b16, s_t[0]),
              salu("s_add_u32", s_kw, s_t[0], s_w)]
        for r in range(4):
            n, c, rem, w2, u, ntp, qb, a = s_t[0], s_t[1], s_t[2], s_t[3], S(63), S(100), S(101), s_ro[r]
            o += [salu("s_add_u32", n, s_kw, 64 * r),
                  salu("s_mul_hi_u32", c, n, (2 ** 32 + 23) // 24), salu("s_mul_i32", rem, c, 24), salu("s_sub_u32", rem, n, rem),
                  salu("s_mul_hi_u32", w2, rem, (2 ** 32 + 5) // 6), salu("s_mul_i32", u, w2, 6), salu("s_sub_u32", u, rem, u),
                  salu("s_mul_hi_u32", ntp, u, (2 ** 32 + 2) // 3), salu("s_mul_i32", qb, ntp, 3), salu("s_sub_u32", qb, u, qb),
                  salu("s_mul_i32", a, s_b, 192), salu("s_mul_i32", w2, w2, 48), salu("s_add_u32", a, a, w2),
                  salu("s_lshl_b32", qb, qb, 4), salu("s_add_u32", a, a, qb), salu("s_mul_i32", a, a, 1280),
                  salu("s_lshl_b32", c, c, 7), salu("s_add_u32", a, a, c), salu("s_lshl_b32", ntp, ntp, 6), salu("s_add_u32", a, a, ntp)]
            if r == 3:
                o += [scmp("s_cmp_ge_u32", n, 240), salu("s_cselect_b32", a, 0x7FFF0000, a)]
        o += [salu("s_mul_i32", s_pb, s_b, 16 * 245760), salu("s_lshl_b32", s_t[0], s_kw, 10), salu("s_add_u32", s_pb, s_pb, s_t[0]),
              salu("s_mul_i32", s_t[0], s_w, 6144), salu("s_sub_u32", s_t[0], PART_OFF, s_t[0]), salu("s_add_u32", s_pb, s_pb, s_t[0])]
        return o

    def red_loads(self, r):
        o = [salu("s_add_u32", s_t[0], s_pb, 64 * 1024 * r)]
        for j in range(16):
            o.append(vload(A(64 * r + 4 * j, 4), PSL, SRD_WS, s_t[0], 0, self.cfg["red_flags"], tag=("red", r, j)))
            if j < 15: o.append(salu("s_add_u32", s_t[0], s_t[0], 245760))
        return o

    def red_mfma(self, r):
        o = []
        for j in range(16):
            if j % 4 == 0: o.append(WaitTag([("red", r, j + 3)]))
            for k in range(2):
                o.append(mfma(RD[k], SEL[k], A(64 * r + 4 * j, 4), 0 if j == 0 else RD[k]))
        o.append(nop(7))
        pk = V(96, 4)
        for k in range(2):
            a = RD[k][1]
            o += [valu("v_cvt_pk_bf16_f32", V(96 + 2 * k), V(a), V(a + 1)), valu("v_cvt_pk_bf16_f32", V(97 + 2 * k), V(a + 2), V(a + 3))]
        o.append(vstore(pk, VOUT, SRD_OUT, s_ro[r], 0, "", tag=("out", r)))
        o.append(nop(1))
        return o

    def tstamp(self, k):
        if not self.cfg["steptime"]: return []
        return [I("s_memtime s[92:93]", "salu"), raw("s_waitcnt lgkmcnt(0)"), raw(f"v_writelane_b32 v255, s92, {40 + k}", "valu")]

    def reduce_tail(self):
        o = self.tstamp(0) + self.check_spin(3, "L_sp3", WaitTag([("poll", 3)])) + [barrier()] + self.tstamp(1)
        o += self.red_loads(2) + self.tstamp(2)
        o += [WaitTag([("st", 8), ("st", 9)]), barrier()] + self.tstamp(3) + [valu("v_mov_b32", VFV, 4), self.flag_store()]
        o += self.red_mfma(1) + self.tstamp(4)
        o += [self.poll_load(("poll", 4))] + self.red_mfma(2) + self.tstamp(5)
        o += self.tstamp(6) + self.check_spin(4, "L_sp4", WaitTag([("poll", 4)])) + [barrier()] + self.tstamp(7)
        o += self.red_loads(3) + self.tstamp(8)
        o += self.red_mfma(3) + self.tstamp(9) + self.tstamp(10)
        return o

    def rare_code(self, p):
        out = [label(f"L_rare{p}"), nop(7), nop(7)]
        m = [MT(qb) for qb in range(3)]
        y = [MT(3 + qb) for qb in range(3)]
        f = [MT(8 + qb) for qb in range(3)]
        for qb in range(3):
            vals = [SBr(p, kt, qb, r) for kt in range(2) for r in range(4)]
            out.append(valu("v_max3_f32", m[qb], vals[0], vals[1], vals[2]))
            out.append(valu("v_max3_f32", m[qb], m[qb], vals[3], vals[4]))
            out.append(valu("v_max3_f32", m[qb], m[qb], vals[5], vals[6]))
            out.append(valu("v_max_f32", m[qb], m[qb], vals[7]))
        for sw in ("v_permlane32_swap_b32", "v_permlane16_swap_b32"):
            for qb in range(3): out.append(valu("v_mov_b32", y[qb], m[qb]))
            for qb in range(3): out.append(perm(sw, m[qb], y[qb]))
            for qb in range(3): out.append(valu("v_max_f32", m[qb], m[qb], y[qb]))
        for qb in range(3):
            out.append(valu("v_max_f32", m[qb], 0, m[qb]))
        for qb in range(3):
            out.append(valu("v_sub_f32", y[qb], 0, m[qb]))
        for qb in range(3):
            out.append(vexp(f[qb], y[qb]))
        for qb in range(3):
            for r in range(4):
                out.append(valu("v_sub_f32", NEGMr(qb, r), NEGMr(qb, r), m[qb]))
            for pp in range(2):
                for kt in range(2):
                    for r in range(4):
                        out.append(valu("v_sub_f32", SBr(pp, kt, qb, r), SBr(pp, kt, qb, r), m[qb]))
            out.append(valu("v_mul_f32", L(qb), L(qb), f[qb]))
            for T in range(12):
                for r in range(4):
                    a = OAr(T, qb, r)
                    out.append(I(f"v_accvgpr_read_b32 {rtxt(TT(r))}, {rtxt(a)}", "valu", [TT(r)], [a]))
                for r in range(4):
                    out.append(valu("v_mul_f32", TT(r), TT(r), f[qb]))
                for r in range(4):
                    a = OAr(T, qb, r)
                    out.append(I(f"v_accvgpr_write_b32 {rtxt(a)}, {rtxt(TT(r))}", "valu", [a], [TT(r)]))
        sm, _ = self.softmax_ops(p)
        out += [o.ins for o in sm]
        out = autonop(out)
        out += [nop(1), I(f"s_setpc_b64 {rtxt(s_ret)}", "branch")]
        return out


def autonop(seq):
    out = []
    last = {}
    st = 0
    for ins in seq:
        c = ins.cls
        need = 0

        def chk(r, n, what):
            nonlocal need
            if r in last and last[r][1] in what:
                need = max(need, n - (st - last[r][0] - 1))
        if c in ("valu", "trans", "perm"):
            for r in ins.uses:
                chk(r, 1, ("trans",))
                if c == "perm": chk(r, 2, ("valu", "trans", "perm"))
            for r in ins.uses | ins.defs:
                chk(r, 8, ("mfma",))
            for r in ins.defs:
                chk(r, 2, ("storedata",))
        elif c == "mfma":
            for r in ins.uses | ins.cdefs:
                chk(r, 2, ("valu", "trans", "perm"))
        elif c in ("ds", "vmem", "dma", "store"):
            for r in ins.uses:
                if r[0] == "m0": chk(r, 1, ("salu",))
        if need > 0:
            out.append(nop(need - 1))
            st += need
        out.append(ins)
        for r in ins.defs:
            last[r] = (st, c)
        if c == "store":
            for r in ins.uses:
                if r[0] in "va": last[r] = (st, "storedata")
        st += (ins.info + 1) if c == "nop" else (0 if c == "label" else 1)
    return out


autonop_tail = autonop


def srd(dst, ptr, nbytes, pair=None):
    d = dst[1]
    lo, hi = pair if pair is not None else (S(ptr), S(ptr + 1))
    return [salu("s_mov_b32", S(d), lo), salu("s_and_b32", S(d + 1), hi, 0xFFFF),
            salu("s_mov_b32", S(d + 2), nbytes), salu("s_mov_b32", S(d + 3), 0x00020000)]


def stamp(k):
    return [I(f"s_memtime s[{s_stamp + 2 * k}:{s_stamp + 2 * k + 1}]", "salu")]


def pf_load(voff, srd_, soff, imm=0):
    return I(f"buffer_load_dword {rtxt(JUNK)}, {rtxt(voff)}, {rtxt(srd_)}, {rtxt(soff)} offen offset:{imm}", "vmem", [], [voff, srd_, soff])


def code_pf(target, extra_sreg=None, sub=0):
    k = code_pf.n = getattr(code_pf, "n", 0) + 1
    o = []
    if sub:
        o += [raw("s_lshr_b32 s56, s2, 3"), raw(f"s_and_b32 s56, s56, {sub - 1}"), raw("s_cmp_eq_u32 s56, 0"), branch("s_cbranch_scc0", f"L_pcs{k}")]
    o += [I("s_getpc_b64 s[56:57]", "salu"), label(f"L_pc{k}"),
          raw(f"s_add_u32 s56, s56, {target}-L_pc{k}"), raw("s_addc_u32 s57, s57, 0")]
    if extra_sreg is not None:
        o += [raw(f"s_add_u32 s56, s56, {rtxt(extra_sreg)}"), raw("s_addc_u32 s57, s57, 0")]
    o += [raw(f"v_mov_b32 v{VPC[1] + 1}, s57", "valu"),
          raw(f"v_add_co_u32 v{VPC[1]}, vcc, s56, {rtxt(VL128)}", "valu"),
          raw("s_nop 1"),
          raw(f"v_addc_co_u32 v{VPC[1] + 1}, vcc, 0, v{VPC[1] + 1}, vcc", "valu"),
          I(f"global_load_dword {rtxt(JUNK)}, {rtxt(VPC)}, off", "salu" if sub else "vmem", [], [])]
    if sub:
        o += [label(f"L_pcs{k}")]
    return o


def main_kernel(cfg):
    g = Gen(cfg)
    T = cfg["timing"]
    pro = []
    pro.append(label("mha_main_kernel"))
    pro += [scmp("s_cmp_ge_u32", S(2), 256), branch("s_cbranch_scc1", "L_main_exit")]
    pro.append(raw("s_load_dwordx16 s[64:79], s[0:1], 0", "salu"))
    lane_ops = []
    wreg = build_lane_consts(lane_ops)
    pro += lane_ops
    pro.append(I(f"v_readfirstlane_b32 {rtxt(s_w)}, {rtxt(wreg)}", "valu", [s_w], [wreg]))
    pro.append(raw("s_waitcnt lgkmcnt(0)", "salu"))
    pro += srd(SRD_A, 64, 16 * 192 * 640 * 2)
    pro += srd(SRD_K, 66, 16 * 32 * 512 * 192 * 2)
    pro += srd(SRD_V, 68, 16 * 32 * 512 * 192 * 2)
    pro += srd(SRD_B, 70, 640 * 6144 * 2)
    pro += srd(SRD_WO, 72, 6144 * 640 * 2)
    pro += srd(SRD_WS, 78, 402653184)
    pro += [salu("s_mov_b32", s_outp[0], S(74)), salu("s_mov_b32", s_outp[1], S(75)),
            salu("s_mov_b32", s_dbgp[0], S(76)), salu("s_mov_b32", s_dbgp[1], S(77))]
    t0, t1 = s_t[0], s_t[1]
    nb = int(cfg["map_nb"]); npair = 32 // nb
    lg = lambda v: v.bit_length() - 1
    seen = set()
    for wg in range(256):
        a0, j = wg & 7, wg >> 3
        pj = (j & (npair - 1)) + ((a0 & (16 // npair - 1)) << lg(npair))
        bb = (j >> lg(npair)) + ((a0 >> lg(16 // npair)) << lg(nb))
        assert 0 <= pj < 16 and 0 <= bb < 16
        seen.add((bb, pj))
    assert len(seen) == 256
    pro += [
        salu("s_and_b32", t0, S(2), 7),
        salu("s_lshr_b32", t1, S(2), 3),
        salu("s_and_b32", s_pj, t1, npair - 1),
        salu("s_lshr_b32", s_b, t1, lg(npair)),
        salu("s_and_b32", t1, t0, 16 // npair - 1),
        salu("s_lshl_b32", t1, t1, lg(npair)),
        salu("s_add_u32", s_pj, s_pj, t1),
        salu("s_lshr_b32", t0, t0, lg(16 // npair)),
        salu("s_lshl_b32", t0, t0, lg(nb)),
        salu("s_add_u32", s_b, s_b, t0),
        salu("s_lshl_b32", s_h0, s_pj, 1),
        salu("s_mul_i32", s_w3072, s_w, 3072),
        salu("s_lshl_b32", t0, s_b, 5),
        salu("s_add_u32", t0, t0, s_h0),
        salu("s_mul_i32", s_koff, t0, 196608),
        salu("s_add_u32", s_kend, s_koff, 196608),
        salu("s_mov_b32", s_vend, s_kend),
        salu("s_lshr_b32", t1, S(2), int(cfg["rot_shift"])), salu("s_mul_i32", t1, t1, int(cfg["rot_mul"])), salu("s_and_b32", t1, t1, 15 if cfg["kv_rot"] else 0),
        salu("s_mul_i32", t1, t1, 12288), salu("s_add_u32", s_koff, s_koff, t1),
        salu("s_mov_b32", s_voff, s_koff),
        salu("s_mul_i32", s_boff, s_h0, 384),
        salu("s_mul_i32", s_aoff, s_b, 245760),
        salu("s_lshl_b32", t0, s_b, 4),
        salu("s_add_u32", t0, t0, s_pj),
        salu("s_mul_i32", s_pst[0], t0, 245760), salu("s_add_u32", s_pst[0], s_pst[0], PART_OFF),
        salu("s_add_u32", s_pst[1], s_pst[0], 4096),
        salu("s_mov_b32", s_h, 0),
        salu("s_mov_b32", s_thr, THR_BITS),
        salu("s_mov_b32", S(48), C_BITS),
        salu("s_mov_b32", S(49), C_BITS),
    ]
    pro += [salu("s_mov_b32", s_ainc[0], 24 * 1280), salu("s_mov_b32", s_ainc[1], 128 - 24 * 1280),
            salu("s_mov_b32", s_binc[0], 393216), salu("s_mov_b32", s_binc[1], 393216),
            salu("s_lshl_b32", s_m0a[0], s_w3072, 1), salu("s_sub_u32", s_m0a[1], s_m0a[0], 12288 - 3072)]
    if T:
        pro += stamp(0) + [I("s_memrealtime s[86:87]", "salu")]
    s_bsh, s_psh = S(62), S(63)
    assert nb == 8 or not cfg["pf_data"]
    pro += [salu("s_and_b32", s_bsh, s_b, nb - 1), salu("s_and_b32", s_psh, s_pj, npair - 1),
            salu("s_mul_i32", t0, s_bsh, 240),
            valu("v_add_u32", VWPF, t0, VWPF),
            valu("v_mul_u32_u24", PT(0), 21846, VWPF), valu("v_lshrrev_b32", PT(0), 16, PT(0)),
            valu("v_mul_u32_u24", PT(1), 3, PT(0)), valu("v_sub_u32", PT(1), VWPF, PT(1)),
            valu("v_mul_u32_u24", PT(0), 12288, PT(0)), valu("v_lshlrev_b32", PT(1), 7, PT(1)),
            valu("v_add_u32", VWPF, PT(0), PT(1))]
    assert all((n * 21846) >> 16 == n // 3 for n in range(2200))

    def mall_pf():
        gw = t1
        o = [salu("s_lshl_b32", gw, S(2), 2), salu("s_add_u32", gw, gw, s_w)]
        lane128 = PT(2)
        o += [valu("v_and_b32", PT(3), 63, TID), valu("v_lshlrev_b32", lane128, 7, PT(3))]
        order = cfg["mall_order"]
        for what in order:
            if what == "x":
                o += [valu("v_mov_b32", PT(4), 0x7FFFFF00), raw(f"v_cmp_gt_u32 vcc, 30, {rtxt(PT(3))}", "valu"), raw("s_nop 1"),
                      raw(f"v_cndmask_b32 {rtxt(PT(4))}, {rtxt(PT(4))}, {rtxt(lane128)}, vcc", "valu"),
                      salu("s_mul_i32", t0, gw, 3840), pf_load(PT(4), SRD_A, t0)]
            elif what == "w":
                o += [valu("v_mul_u32_u24", PT(5), 21846, PT(3)), valu("v_lshrrev_b32", PT(5), 16, PT(5)),
                      valu("v_mul_u32_u24", PT(6), 3, PT(5)), valu("v_sub_u32", PT(6), PT(3), PT(6)),
                      valu("v_mul_u32_u24", PT(5), 12288, PT(5)), valu("v_lshlrev_b32", PT(6), 7, PT(6)),
                      valu("v_add_u32", PT(5), PT(5), PT(6)),
                      valu("v_mov_b32", PT(4), 0x7FFFFF00), raw(f"v_cmp_gt_u32 vcc, 30, {rtxt(PT(3))}", "valu"), raw("s_nop 1"),
                      raw(f"v_cndmask_b32 {rtxt(PT(4))}, {rtxt(PT(4))}, {rtxt(PT(5))}, vcc", "valu"),
                      salu("s_and_b32", t0, gw, 15), salu("s_mul_i32", t0, t0, 768),
                      salu("s_lshr_b32", S(58), gw, 4), salu("s_mul_i32", S(58), S(58), 122880), salu("s_add_u32", t0, t0, S(58)),
                      pf_load(PT(4), SRD_B, t0)]
            elif what == "q":
                o += [salu("s_mul_i32", t0, gw, 7680), pf_load(lane128, SRD_B, t0)]
            else:
                o += [salu("s_mul_i32", t0, gw, 7680), pf_load(lane128, SRD_WO, t0)]
        return o

    def start_pf():
        o = []
        if cfg["pf_mall"]:
            o += mall_pf()
        if cfg["pf_start"]:
            o += [salu("s_mul_i32", t0, s_psh, 61440), salu("s_add_u32", t0, t0, s_aoff0),
                  pf_load(VLIN, SRD_A, t0), salu("s_add_u32", t0, t0, 8192), pf_load(VLIN, SRD_A, t0),
                  salu("s_mul_i32", t0, s_h0, 384), pf_load(VWPF, SRD_B, t0)]
        if cfg["pf_code"]:
            o += [salu("s_lshr_b32", t1, S(2), 3), salu("s_and_b32", t1, t1, 1), salu("s_lshl_b32", t1, t1, 15)]
            o += code_pf("L_head", t1)
        return o
    s_aoff0 = S(61)
    pro.append(salu("s_mul_i32", s_aoff0, s_b, 245760))
    if cfg["fused"]:
        pro += [salu("s_lshl_b32", t0, s_b, 8), salu("s_lshl_b32", t1, s_pj, 2), salu("s_add_u32", t0, t0, t1),
                salu("s_add_u32", t0, t0, FLAG_OFF), valu("v_mov_b32", PT(8), 0),
                vstore(PT(8), VFO, SRD_WS, t0, 0, " sc1", tag=("clr",), width=1)]
    for t in range(10):
        if t == int(cfg["pf_start_at"]): pro += start_pf()
        pro.append(g.set_m0(t))
        pro.append(nop(0))
        for i in range(3):
            pro.append(g.dma_instr(t, i))
        adv = g.dma_adv(t)
        pro += adv if isinstance(adv, list) else [adv]
    pro += [g.set_m0(10), nop(0), g.dma_instr(10, 0)]
    if int(cfg["pf_start_at"]) >= 10: pro += start_pf()
    pro += [WaitTag([("item", 0), ("item", 1), ("item", 2)]), barrier()]
    if cfg["fused"]:
        TMP = S(96, 4)
        pro += srd(TMP, None, 256, s_dbgp) + [salu("s_lshl_b32", t0, s_b, 4), valu("v_mov_b32", PT(8), 1), WaitTag([("clr",)]),
                I(f"buffer_atomic_add {rtxt(PT(8))}, {rtxt(VFO)}, {rtxt(TMP)}, {rtxt(t0)} offen", "store", [], [PT(8), VFO, TMP, t0], tag=("cnt",))]
    fix, rd = g.x_reads(0, 0)
    pro += fix + rd
    pro += g.first_reads("W", 2)
    pro.append(wait(lgkm=4))

    pfq = []
    mode = cfg["pf_mode"]
    if cfg["pf_data"]:
        p0 = [salu("s_add_u32", t1, s_h0, 1), salu("s_mul_i32", t1, t1, 384), pf_load(VWPF, SRD_B, t1), pf_load(VWPF, SRD_B, t1)]
        p1 = [salu("s_mul_i32", t1, s_bsh, 61440), salu("s_mul_i32", t0, s_h0, 245760), salu("s_add_u32", t1, t1, t0),
              pf_load(VLIN, SRD_WO, t1), salu("s_add_u32", t1, t1, 8192), pf_load(VLIN, SRD_WO, t1)]
        pfq = [Macro([scmp("s_cmp_eq_u32", s_h, 0), branch("s_cbranch_scc0", "L_pq1")] + p0 +
                     [branch("s_branch", "L_pq2"), label("L_pq1")] + p1 + [label("L_pq2")], 2)]
    trk = []
    if cfg["trickle"]:
        SRD_PF = S(96, 4)
        s_pf, s_pfinc = S(100), S(101)
        lane = PT(3)
        pro_extra = [salu("s_lshl_b32", t1, S(2), 2), salu("s_add_u32", t1, t1, s_w),
                     valu("v_and_b32", lane, 63, TID),
                     valu("v_mul_u32_u24", PT(5), 21846, lane), valu("v_lshrrev_b32", PT(5), 16, PT(5)),
                     valu("v_mul_u32_u24", PT(6), 3, PT(5)), valu("v_sub_u32", PT(6), lane, PT(6)),
                     valu("v_mul_u32_u24", PT(5), 12288, PT(5)), valu("v_lshlrev_b32", PT(6), 7, PT(6)),
                     valu("v_add_u32", PT(5), PT(5), PT(6)),
                     valu("v_mov_b32", VTK[0], 0x7FFFFF00), raw(f"v_cmp_gt_u32 vcc, 9, {rtxt(lane)}", "valu"), raw("s_nop 1"),
                     raw(f"v_cndmask_b32 {rtxt(VTK[0])}, {rtxt(VTK[0])}, {rtxt(PT(5))}, vcc", "valu"),
                     valu("v_lshlrev_b32", PT(5), 7, lane),
                     valu("v_mov_b32", VTK[1], 0x7FFFFF00), raw(f"v_cmp_gt_u32 vcc, 15, {rtxt(lane)}", "valu"), raw("s_nop 1"),
                     raw(f"v_cndmask_b32 {rtxt(VTK[1])}, {rtxt(VTK[1])}, {rtxt(PT(5))}, vcc", "valu"),
                     salu("s_and_b32", t0, t1, 15), salu("s_mul_i32", t0, t0, 768), salu("s_add_u32", t0, t0, 384),
                     salu("s_lshr_b32", s_pf, t1, 4), salu("s_mul_i32", s_pf, s_pf, 122880), salu("s_add_u32", s_pf, s_pf, t0),
                     salu("s_mov_b32", s_pfinc, 36864), salu("s_mul_i32", S(59), t1, 7680)]
        for k in range(4):
            pro_extra.append(salu("s_mov_b32", S(96 + k), S(SRD_B[1] + k)))
        pro += pro_extra
        trk = [pf_load(VTK[0], SRD_PF, s_pf), salu("s_add_u32", s_pf, s_pf, s_pfinc)]
        trk_switch = [salu("s_mov_b32", S(96 + k), S(SRD_WO[1] + k)) for k in range(3)]
        trk_switch += [salu("s_mov_b32", s_pf, S(59)), salu("s_mov_b32", s_pfinc, 1920), valu("v_mov_b32", VTK[0], VTK[1])]
    else:
        trk_switch = []
    p0, p1, nv = [], [], 0
    if cfg["pf_code"]:
        nv = 1
        p0 = [pf_load(VLIN, SRD_WS, t0)]
        p1 = code_pf("L_last")
    if cfg["pf_x1"]:
        nv += 2
        p0 += [salu("s_mul_i32", t1, s_psh, 61440), salu("s_add_u32", t1, t1, s_aoff),
               pf_load(VLIN, SRD_A, t1), salu("s_add_u32", t1, t1, 8192), pf_load(VLIN, SRD_A, t1)]
        p1 += [pf_load(VLIN, SRD_A, s_aoff), pf_load(VLIN, SRD_A, s_aoff)]
    p1b = []
    if cfg["fused"]:
        nv += 1
        p0 += [pf_load(VFO, SRD_WS, t0)]
        p1b = srd(SRD_DBG, None, 256, s_dbgp) + [salu("s_lshl_b32", s_b16, s_b, 4),
               I(f"buffer_load_dword {rtxt(VCHK)}, {rtxt(VFO)}, {rtxt(SRD_DBG)}, {rtxt(s_b16)} offen sc1", "vmem", [], [])]
    nxs = [
        scmp("s_cmp_eq_u32", s_h, 0),
        branch("s_cbranch_scc0", "L_nx1"),
        salu("s_add_u32", t0, s_h0, 1),
        salu("s_mul_i32", s_boff, t0, 384),
        salu("s_mul_i32", s_aoff, s_b, 245760),
    ] + trk_switch + p0 + [
        branch("s_branch", "L_nx2"),
        label("L_nx1"),
    ]
    for k in range(3):
        nxs += [salu("s_mov_b32", S(SRD_A[1] + k), S(SRD_WO[1] + k)), salu("s_mov_b32", S(SRD_B[1] + k), S(SRD_WO[1] + k))]
    nxs += [
        salu("s_mul_i32", s_aoff, s_h0, 245760),
        salu("s_add_u32", s_boff, s_aoff, 245760),
        salu("s_mov_b32", s_ainc[0], 122880), salu("s_mov_b32", s_ainc[1], 128 - 122880),
        salu("s_mov_b32", s_binc[0], 122880), salu("s_mov_b32", s_binc[1], 128 - 122880),
        salu("s_mov_b32", s_m0a[0], s_w3072), salu("s_mov_b32", s_m0a[1], s_w3072),
    ]
    for i in range(3):
        nxs += [valu("v_mov_b32", DA[i], DO[i]), valu("v_mov_b32", DB[i], DO[i])]
    nxs += p1 + p1b + [label("L_nx2")]
    nxm = [Macro(nxs, nv)]
    nxm[0].tag = ("chk",)

    trk_steps = [int(x) for x in str(cfg['trk_steps']).split('.')]

    def body(h, first):
        b = [label("L_head")] if first else []
        g.q_phase(h)
        g.a_frames(h)
        g.place_ring_dma(52 * h, 52 * h + 52)
        if T: b += stamp_h(1)
        for t in range(20):
            if t == int(cfg["pfq_step"]): b += pfq
            if cfg["trickle"] and t in trk_steps: b += trk
            for gp in g.steps[52 * h + t].gaps:
                b += gp.flat()
        if T: b += stamp_h(2)
        b += g.q_pack()
        if T: b += stamp_h(3)
        b += g.a_phase(h, nxm)
        if T: b += stamp_h(4)
        for kind in ("K", "V"):
            B = g.bases[kind]
            for ri, r in enumerate(B.regs):
                if B.base[ri] != 0:
                    b.append(valu("v_subrev_u32", r, B.base[ri], r))
                    B.base[ri] = 0
        return b

    def stamp_h(k):
        return [I(f"s_memtime s[56:57]", "salu"), raw("s_waitcnt lgkmcnt(0)", "salu"),
                scmp("s_cmp_eq_u32", s_h, 0),
                salu("s_cselect_b32", S(58), S(56), S(s_stamp + 2 * k)),
                salu("s_mov_b32", S(s_stamp + 2 * k), S(58)),
                salu("s_cselect_b32", S(58), S(s_stamp + 2 * k + 9), S(56)),
                salu("s_mov_b32", S(s_stamp + 2 * k + 9), S(58))]

    body0 = body(0, True)
    n0 = g.n_phase(0)
    assert g.bases["W"].base == [0, 0, 0, 0] and g.bases["X"].base == [0, 0]
    sites = list(g.rare_sites)
    body1 = body(1, False)
    g.rare_sites = sites
    n1 = g.n_phase(1)
    oph = g.o_phase()

    loop_end = [scmp("s_cmp_eq_u32", s_h, 0), branch("s_cbranch_scc0", "L_last")]
    loop_back = ([valu("v_mov_b32", V(254), V(253))] if cfg["steptime"] else []) + [salu("s_mov_b32", s_h, 1), branch("s_branch", "L_head"), label("L_last")]
    fin = []
    if T:
        fin += [I("s_memtime s[56:57]", "salu"), raw("s_waitcnt lgkmcnt(0)", "salu"), salu("s_mov_b32", S(84), S(56))]
    fin += [raw("s_waitcnt vmcnt(0)", "salu")]
    if T:
        fin += [I("s_memtime s[56:57]", "salu"), I("s_memrealtime s[88:89]", "salu"), raw("s_waitcnt lgkmcnt(0)", "salu"), salu("s_mov_b32", S(85), S(56)),
                salu("s_mov_b32", S(90), S(88)), salu("s_sub_u32", S(88), S(88), S(86))]
        lst = [64, 66, 68, 70, 72, 75, 77, 79, 81, 84, 85, 88, 86, 90]
        for k, sr in enumerate(lst):
            fin.append(valu("v_mov_b32", V(k), S(sr)))
        fin += [salu("s_lshl_b32", t0, S(2), 6), salu("s_add_u32", t0, t0, 300 * 1024 * 1024),
                valu("v_mov_b32", V(20), 0)]
        fin += [raw(f"v_cmp_eq_u32 vcc, 0, {rtxt(TID)}", "valu"), raw("s_and_saveexec_b64 s[56:57], vcc", "salu")]
        for k in range(0, 16, 4):
            fin.append(vstore(V(k, 4), V(20), SRD_WS, t0, 4 * k))
        fin += [raw("s_waitcnt vmcnt(0)", "salu")]
        if cfg["steptime"]:
            fin += [raw("s_mov_b64 exec, -1"), salu("s_mul_i32", t0, S(2), 768), salu("s_add_u32", t0, t0, 320 * 1024 * 1024),
                    raw(f"v_cmp_gt_u32 vcc, 64, {rtxt(TID)}", "valu"), raw("s_and_saveexec_b64 s[56:57], vcc", "salu"),
                    valu("v_lshlrev_b32", V(20), 2, TID)]
            for k in range(3):
                fin.append(vstore(V(253 + k), V(20), SRD_WS, t0, 256 * k, width=1))
            fin += [raw("s_waitcnt vmcnt(0)", "salu")]
    fin += [label("L_main_exit"), raw("s_endpgm", "salu")]

    waits0 = [i for i in body0 if isinstance(i, WaitTag)]
    waits1 = [i for i in body1 if isinstance(i, WaitTag)]
    assert len(waits0) == len(waits1)
    seq = pro + body0 + n0 + body1 + n1 + oph
    res, errs, _, maxout = resolve_and_check(seq, "main")
    for e in errs[:40]:
        print("ERR", e, file=sys.stderr)
    assert not errs, len(errs)
    print("max outstanding vmem", maxout, file=sys.stderr)

    def fin_wait(w, vals):
        vals = [v for v in vals if v is not None]
        vm = min(vals) if vals else None
        lg = w.info[1]
        p = []
        if vm is not None: p.append(f"vmcnt({vm})")
        if lg is not None: p.append(f"lgkmcnt({lg})")
        w.txt = "s_waitcnt " + " ".join(p) if p else "s_nop 0"
    for w0, w1 in zip(waits0, waits1):
        fin_wait(w0, res[id(w0)] + res[id(w1)])
    for w in [i for i in pro + oph + n0 + n1 if isinstance(i, WaitTag)]:
        fin_wait(w, res[id(w)])
    t0_ = [i.txt for i in body0 if not isinstance(i, WaitTag) and i.cls not in ("label", "branch")]
    t1_ = [i.txt for i in body1 if not isinstance(i, WaitTag) and i.cls not in ("label", "branch")]
    assert t0_ == t1_, "loop passes differ"

    stubs = []
    for k, p in enumerate(sites):
        stubs += [label(f"L_rs{k}"), I(f"s_call_b64 {rtxt(s_ret)}, L_rare{p}", "branch"), branch("s_branch", f"L_rr{k}")]
    rare = g.rare_code(0) + g.rare_code(1)
    allc = pro + body0 + loop_end + n0 + loop_back + n1 + oph + fin + stubs + rare
    return allc


def reducer_kernel(cfg):
    o = []
    o.append(label("mha_reduce_kernel"))
    o += [scmp("s_cmp_ge_u32", S(2), 960), branch("s_cbranch_scc1", "L_red_exit")]
    o.append(raw("s_load_dwordx2 s[4:5], s[0:1], 40", "salu"))
    o.append(raw("s_load_dwordx2 s[6:7], s[0:1], 56", "salu"))
    if cfg["timing"]:
        o.append(I("s_memrealtime s[40:41]", "salu"))
    tid = V(0)
    o += [valu("v_lshrrev_b32", V(1), 6, tid), valu("v_and_b32", V(2), 63, tid)]
    o.append(nop(0))
    o.append(I("v_readfirstlane_b32 s3, v1", "valu", [S(3)], [V(1)]))
    o.append(raw("s_waitcnt lgkmcnt(0)", "salu"))
    o += srd(S(8, 4), 4, 16 * 192 * 640 * 2)
    o += srd(S(12, 4), 6, 402653184)
    o += [salu("s_lshl_b32", S(16), S(2), 2), salu("s_add_u32", S(16), S(16), S(3)),
          salu("s_mul_hi_u32", S(17), S(16), (2 ** 32 + 239) // 240),
          salu("s_mul_i32", S(18), S(17), 240), salu("s_sub_u32", S(18), S(16), S(18)),
          salu("s_mul_i32", S(19), S(17), 16 * 240), salu("s_add_u32", S(19), S(19), S(18)),
          salu("s_lshl_b32", S(19), S(19), 10), salu("s_add_u32", S(19), S(19), PART_OFF),
          valu("v_lshlrev_b32", V(3), 4, V(2))]
    for j in range(16):
        o.append(vload(V(16 + 4 * j, 4), V(3), S(12, 4), S(19), 0, cfg["red_flags"], tag=("p", j)))
        if j < 15:
            o.append(salu("s_add_u32", S(19), S(19), 245760))
    o += [salu("s_mul_hi_u32", S(20), S(18), (2 ** 32 + 23) // 24),
          salu("s_mul_i32", S(21), S(20), 24), salu("s_sub_u32", S(21), S(18), S(21)),
          salu("s_mul_hi_u32", S(22), S(21), (2 ** 32 + 5) // 6),
          salu("s_mul_i32", S(23), S(22), 6), salu("s_sub_u32", S(23), S(21), S(23)),
          salu("s_mul_hi_u32", S(24), S(23), (2 ** 32 + 2) // 3),
          salu("s_mul_i32", S(25), S(24), 3), salu("s_sub_u32", S(25), S(23), S(25)),
          salu("s_mul_i32", S(26), S(17), 192), salu("s_mul_i32", S(27), S(22), 48),
          salu("s_add_u32", S(26), S(26), S(27)), salu("s_lshl_b32", S(27), S(25), 4),
          salu("s_add_u32", S(26), S(26), S(27)), salu("s_mul_i32", S(26), S(26), 1280),
          salu("s_lshl_b32", S(27), S(20), 7), salu("s_add_u32", S(26), S(26), S(27)),
          salu("s_lshl_b32", S(27), S(24), 6), salu("s_add_u32", S(26), S(26), S(27)),
          valu("v_and_b32", V(4), 15, V(2)), valu("v_mul_u32_u24", V(4), 1280, V(4)),
          valu("v_lshrrev_b32", V(5), 4, V(2)), valu("v_lshlrev_b32", V(5), 4, V(5)),
          valu("v_add_u32", V(4), V(4), V(5)),
          salu("s_mov_b32", S(28), 0xFFFF0000)]
    acc = [V(8 + k) for k in range(8)]
    t = [V(6), V(7)]
    for j in range(16):
        o.append(wait(vm=15 - j))
        for r in range(4):
            src = V(16 + 4 * j + r)
            if j == 0:
                o.append(valu("v_lshlrev_b32", acc[2 * r], 16, src))
                o.append(valu("v_and_b32", acc[2 * r + 1], S(28), src))
            else:
                o.append(valu("v_lshlrev_b32", t[0], 16, src))
                o.append(valu("v_and_b32", t[1], S(28), src))
                o.append(valu("v_add_f32", acc[2 * r], acc[2 * r], t[0]))
                o.append(valu("v_add_f32", acc[2 * r + 1], acc[2 * r + 1], t[1]))
    pk = [V(80 + k) for k in range(4)]
    for r in range(4):
        o.append(valu("v_cvt_pk_bf16_f32", pk[r], acc[2 * r], acc[2 * r + 1]))
    o2 = [perm("v_permlane32_swap_b32", pk[0], pk[2]), perm("v_permlane32_swap_b32", pk[1], pk[3]),
          perm("v_permlane16_swap_b32", pk[0], pk[2]), perm("v_permlane16_swap_b32", pk[1], pk[3])]
    o += o2
    o = autonop(o)
    o.append(nop(1))
    o.append(vstore(V(80, 4), V(4), S(8, 4), S(26), 0))
    o.append(raw("s_waitcnt vmcnt(0)", "salu"))
    if cfg["timing"]:
        o += [I("s_memrealtime s[42:43]", "salu"), raw("s_waitcnt lgkmcnt(0)", "salu"),
              valu("v_mov_b32", V(6), S(40)), valu("v_mov_b32", V(7), S(42)), valu("v_mov_b32", V(5), 0),
              salu("s_lshl_b32", S(30), S(16), 3), salu("s_add_u32", S(30), S(30), 310 * 1024 * 1024),
              raw("v_cmp_eq_u32 vcc, 0, v2", "valu"), raw("s_and_saveexec_b64 s[44:45], vcc", "salu"),
              vstore(V(6, 2), V(5), S(12, 4), S(30), 0, width=2), raw("s_waitcnt vmcnt(0)", "salu")]
    o += [label("L_red_exit"), raw("s_endpgm", "salu")]
    return o


def kd(name, nv, acc):
    return f""".amdhsa_kernel {name}
  .amdhsa_next_free_vgpr {nv}
  .amdhsa_next_free_sgpr 102
  .amdhsa_accum_offset {acc}
  .amdhsa_group_segment_fixed_size 0
  .amdhsa_kernarg_size 64
  .amdhsa_user_sgpr_count 2
  .amdhsa_user_sgpr_kernarg_segment_ptr 1
  .amdhsa_system_sgpr_workgroup_id_x 1
.end_amdhsa_kernel
"""


def fmt(seq):
    s = []
    for i in seq:
        s.append(i.txt if i.cls == "label" else " " + i.txt)
    return "\n".join(s) + "\n"


HEADER = """; Fused multi-head attention block for MI355X (gfx950); assembly produced by my own generator script.
; output projection of the two heads into bf16 partials (d_ws), then the 16 partials of a batch are summed.
"""


def build(cfg, path):
    m = main_kernel(cfg)
    s = HEADER
    lds = NSLOT * SLOT
    kname = KNAME if cfg["single"] else "mha_main_kernel"
    if cfg["single"]:
        assert cfg["fused"]
        s += f"; @launch grid=(256,1,1) block=(256,1,1) lds={lds}\n"
    else:
        s += f"; @launch kernel=mha_main_kernel grid=(256,1,1) block=(256,1,1) lds={lds}\n"
        if not cfg["fused"]:
            s += "; @launch kernel=mha_reduce_kernel grid=(960,1,1) block=(256,1,1) lds=0\n"
    s += '.amdgcn_target "amdgcn-amd-amdhsa--gfx950"\n.text\n'
    ks = [(kname, m)]
    if not cfg["fused"]:
        ks.append(("mha_reduce_kernel", reducer_kernel(cfg)))
    for nm, code in ks:
        body = fmt(code).replace("mha_main_kernel:", kname + ":")
        s += f".globl {nm}\n.p2align 8\n.type {nm},@function\n" + body
    s += ".fill 64, 4, 0xBF800000\n"
    s += '.section .rodata,"a"\n.p2align 6\n' + kd(kname, 512, 256)
    if not cfg["fused"]:
        s += ".p2align 6\n" + kd("mha_reduce_kernel", 88, 88)
    open(path, "w").write(s)
    n_main = sum(1 for i in m if i.cls != "label")
    print(f"wrote {path}: {len(s)} bytes, main {n_main} instrs", file=sys.stderr)


if __name__ == "__main__":
    cfg = dict(CFG)
    path = "out.s"
    for a in sys.argv[1:]:
        if "=" in a:
            k, v = a.split("=", 1)
            cfg[k] = {"True": True, "False": False}.get(v, v)
        else:
            path = a
    build(cfg, path)
```

```python
import sys
import subprocess
import numpy as np
from asmlib import *
import gen as G
from gen import (ACC, SB, SBr, PB, PBr, TT, NEGM, NEGMr, L, LT, MT, OACC, CT, CTr, QF, QFr, AK, AV, AW, AO, DKV, DA, DB, DO,
                 AX, PSV, PT, TID, JUNK, VPC, VL128, VTK, VFO, VCHK, RD, SEL, FLG, VPOLL, VFV, VOUT, VZ, PSL, PART_OFF, FLAG_OFF,
                 SRD_DBG, SRD_OUT, s_outp, s_dbgp, s_b16, s_kw, s_pb, s_ro, s_rl, OA, OAr, O0P, O0Pr, FB, FBh,
                 SRD_A, SRD_K, SRD_V, SRD_WO, SRD_WS, SRD_B, s_w3072, s_pst, s_thr, s_c2, s_h0, s_b, s_pj, s_w, s_t, s_ret,
                 THR_BITS, C_BITS, SLOT, build_lane_consts, autonop, srd, pf_load, code_pf, kd, KNAME, Gen, a_item)
import sched

CFG = dict(
    nt_kv=True, timing=False, steptime=False, pst_flags=" sc1", red_flags=" sc1",
    dspair_v=True, dspair_k=False, dspair_w=False, no_st=False, map_nb=8,
    fused=True, single=False, kv_same=False,
    R=13, P=3, P0=None, DW=4, DX=3, NW0=6, NX0=2, xres=23,
    kv_rot=False, rot_shift=0, rot_mul=1,
    tlb0=-1, tlb1=-1, tlb_stride=4096,
    npair0=0, DX0=0, NX00=0, nt_w0=False, nt_w1=False, nt_x0=False, nt_x1=False,
    RP=0, npair=2, rp_start0=3, rp_start1=0, rp_space=1.2,
    DW0=0, NW00=0, tlb='', park0='', park1='', d_flag=2, d_poll=1, d_chk=2, d_mfma=3, hu_in=6, hu_per=3, out_flags='', pf_sub=8, pf_entry=False, hide_n=True, wo_split='53.57.61.65', w1_split='', pro_max=7, early_max=4, early_steps=3,
    pf_code=True, pf_w1=8, pf_wo=52, pf_start="xw", pf_start_step=0, code_lead=14, pf_code_all=False, macros=True,
)

SRD_X, SRD_W = SRD_A, SRD_B
G.SRD_DBG = S(4, 4)
SRD_DBG = G.SRD_DBG
s_kvb, s_wb, s_xb, s_ob = S(33), S(34), S(37), S(38)
s_do = [S(35), S(36)]
s_w6144 = S(41)
NSTEP = 144


VCHK = V(143)
AWR = V(246)
s_rp = S(39)
s_n0, s_kvb1 = S(40), S(42)
s_rl2 = [S(63), S(62)]
VHL = V(132)


def o_cs(j, reorder):
    if reorder and j < 8:
        return [(0, 0), (0, 1), (1, 0), (1, 1), (0, 2), (0, 3), (1, 2), (1, 3)][j]
    return j // 4, j % 4


def XF(u, half, qb): return V(144 + ((u % 2) * 2 + half) * 12 + 4 * qb, 4)


class Gen3(Gen):
    def __init__(self, cfg):
        self.cfg = cfg
        self.rare_sites = []
        i = lambda k: int(cfg[k])
        self.R = i("R")
        self.seq, self.X, self.W, self.KV, self.O = sched.build(
            R=self.R, P=i("P"), DW=i("DW"), DX=i("DX"), NW0=i("NW0"), NX0=i("NX0"),
            P0=None if cfg["P0"] in (None, "None") else int(cfg["P0"]), xres=i("xres"),
            pro_max=i("pro_max"), early_max=i("early_max"), early_steps=i("early_steps"),
            park0=[int(x) for x in str(cfg["park0"]).split(".")] if cfg["park0"] else None,
            park1=[int(x) for x in str(cfg["park1"]).split(".")] if cfg["park1"] else None,
            DW0=int(cfg["DW0"]) or None, NW00=int(cfg["NW00"]) or None, RP=i("RP"), npair=i("npair"),
            npair0=int(cfg["npair0"]) or None, DX0=int(cfg["DX0"]) or None, NX00=int(cfg["NX00"]) or None)
        self.item = []
        for h in range(2):
            self.item += [self.W[(h, t)] for t in range(20)] + [self.KV[(h, j)] for j in range(32)]
        self.item += [self.O[j] for j in range(40)]
        self.gaps = [None] * NSTEP
        self.pre = {s: [] for s in range(NSTEP)}
        self.post = {s: [] for s in range(NSTEP)}
        self.regs = {"K": AK, "V": AV, "W": AW, "O": AO}
        self.plan = {}
        for kind in self.regs:
            its = [it for it in self.item if it.kind == kind]
            k = 0
            while k < len(its):
                lo = hi = its[k].slot
                e = k
                while e + 1 < len(its):
                    nl, nh = min(lo, its[e + 1].slot), max(hi, its[e + 1].slot)
                    if nh - nl > 4: break
                    lo, hi = nl, nh
                    e += 1
                for q in range(k, e + 1): self.plan[its[q].name] = lo * SLOT
                k = e + 1
        self.base = {kind: [0] * len(self.regs[kind]) for kind in self.regs}
        self.nunit = 0
        self.fixes = {}
        self.dump_block = {}
        self.rp1_first = {}

    def place_fixes(self):
        for s, lst in self.fixes.items():
            gaps = self.gaps[s]
            for x, lo, hi in lst:
                c = [g for g in range(lo, hi + 1) if gaps[g].free() == 1 and not gaps[g].vm and g != 23]
                if not c: c = [g for g in range(lo, hi + 1) if gaps[g].free() >= 1 and not gaps[g].vm and g != 23]
                if not c: c = [hi]
                gaps[c[0]].va.append(x)

    def frag_reads3(self, it, f, buf):
        win = self.plan[it.name]
        off = it.slot * SLOT - win
        kind = it.kind
        if kind == "K":
            kt, kb = f // 6, f % 6
            ri = kb % 2
            return [(ds_read("ds_read_b128", FB(buf, f % 2), AK[ri], off + kt * 6144 + (kb // 2) * 128), ri, win)]
        ri, j = f % 4, f // 4
        o, d2 = {"V": (off + 128 * j, 6144), "W": (off + 128 * j, 1536), "O": (off + 4096 * j, 2048)}[kind]
        r = self.regs[kind][ri]
        return [(ds_read("ds_read_b64_tr_b16", FBh(buf, f % 2, 0), r, o), ri, win),
                (ds_read("ds_read_b64_tr_b16", FBh(buf, f % 2, 1), r, o + d2), ri, win)]

    def fix(self, kind, ri, win):
        B = self.base[kind]
        if B[ri] == win: return None
        d = win - B[ri]
        B[ri] = win
        r = self.regs[kind][ri]
        return valu("v_add_u32", r, d, r) if d > 0 else valu("v_subrev_u32", r, -d, r)

    def place_reads3(self, gaps, g0, it, grp, cur=None):
        rl = []
        for f in (2 * grp, 2 * grp + 1):
            rl += self.frag_reads3(it, f, grp % 3)
        fx = [x for x in (self.fix(it.kind, ri, win) for _, ri, win in rl) if x is not None]
        if fx:
            same = (cur is not None and cur.kind == it.kind)
            if it.kind == "K":
                lo = 20 if same else 2
            elif g0 == 24:
                lo = 16 if same else 2
            else:
                lo = 22 if same else 2
            self.pending_fix += [(x, lo, g0 - 1) for x in fx]
        pair = self.cfg["dspair_k"] if it.kind == "K" else (self.cfg["dspair_v"] if it.kind == "V" else self.cfg["dspair_w"])
        for k, (ins, ri, win) in enumerate(rl):
            gaps[g0 + (k // 2 if pair else k)].ds.append(ins)
        return len(rl)

    def first_reads3(self, it):
        out = []
        for grp in range(2):
            for f in (2 * grp, 2 * grp + 1):
                for ins, ri, win in self.frag_reads3(it, f, grp % 3):
                    x = self.fix(it.kind, ri, win)
                    if x is not None: out.append(x)
                    out.append(ins)
        for ri in range(len(self.regs[it.kind])):
            x = self.fix(it.kind, ri, self.plan[it.name])
            if x is not None: out.append(x)
        return out

    def x_reads3(self, it):
        u = it.n
        return [ds_read("ds_read_b128", XF(u, half, qb), AX[half], it.slot * SLOT + 2048 * qb) for half in range(2) for qb in range(3)]

    def units(self, it):
        tag = ("item", it.name)
        out = []
        for k in range(it.units):
            so = s_do[self.nunit % 2]
            self.nunit += 1
            nt = False
            if it.kind == "X":
                m0 = salu("s_add_u32", "m0", s_w6144, it.slot * SLOT + 3072 * k)
                off = salu("s_add_u32", so, s_xb, 128 * it.n + 30720 * k)
                vo, sr = DA, SRD_X
                nt = bool(self.cfg["nt_x0"]) if it.h == 0 else bool(self.cfg["nt_x1"])
            else:
                m0 = salu("s_add_u32", "m0", s_w3072, it.slot * SLOT)
                if it.kind in "KV":
                    off = self.kv_off(so, it)
                    vo, sr = DKV, (SRD_K if it.kind == "K" else SRD_V)
                    nt = self.cfg["nt_kv"]
                elif it.kind == "W":
                    off = salu("s_add_u32", so, s_wb, it.h * 384 + it.n * 393216)
                    vo, sr = DB, SRD_W
                    nt = bool(self.cfg["nt_w0"]) if it.h == 0 else bool(self.cfg["nt_w1"])
                else:
                    c, s = o_cs(it.n, self.cfg["hide_n"])
                    off = salu("s_add_u32", so, s_ob, s * 122880 + c * 128)
                    vo, sr = DO, SRD_WO
            out.append((m0, off, [dma(vo[i], sr, so, 1024 * i, nt, tag=tag) for i in range(3)]))
        return out

    def kv_off(self, so, it):
        if self.cfg["kv_rot"] and not self.cfg["kv_same"]:
            return [salu("s_xor_b32", so, s_n0, it.n), salu("s_mul_i32", so, so, 12288),
                    salu("s_add_u32", so, so, s_kvb if it.h == 0 else s_kvb1)]
        imm = it.h * 196608 + (0 if self.cfg["kv_same"] else it.n * 12288)
        return salu("s_add_u32", so, s_kvb, imm)

    def place_dma(self):
        for b in range(NSTEP):
            un = []
            for it in self.seq:
                if it.issue == b and not getattr(it, "reg", False): un += self.units(it)
            assert len(un) <= 4
            if len(un) == 1:
                pos = [[(0, 28), (1, 4), (1, 16)]]
            elif len(un) == 2:
                pos = [[(0, 28), (0, 34), (1, 4)], [(1, 10), (1, 16), (1, 22)]]
            elif len(un) > 2:
                pos = [[(0, 28), (0, 29), (0, 34)], [(1, 2), (1, 4), (1, 5)], [(1, 8), (1, 10), (1, 11)], [(1, 14), (1, 16), (1, 17)]][:len(un)]
            else:
                pos = []
            for (m0, off, ins), ps in zip(un, pos):
                for i, (ds_, gi) in enumerate(ps):
                    g = self.gaps[b + ds_]
                    if i == 0:
                        if isinstance(off, list):
                            (g[gi - 3] if gi >= 3 else self.gaps[b + ds_ - 1][36 + gi - 3]).sc.append(off[0])
                            g[gi - 2].sc += [off[1], m0]; g[gi - 1].sc.append(off[2])
                        else:
                            g[gi - 2].sc.append(m0)
                            g[gi - 1].sc.append(off)
                    if len(un) > 2 and gi % 6 < 4 and g[gi].ds:
                        pass
                    g[gi].vm.append(ins[i])

    def place_reg_tiles(self):
        self.dbase = 0
        for h in range(2):
            its = [self.KV[(h, j)] for j in range(32) if getattr(self.KV[(h, j)], "reg", False)]
            start = float(self.cfg["rp_start0" if h == 0 else "rp_start1"])
            last_s = -1
            for k, it in enumerate(its):
                s = 52 * h + int(start + k * float(self.cfg["rp_space"]))
                if h == 1 and self.cfg["hide_n"]:
                    s = max(s, 52 + int(2.45 * (k // 2 + 1)) + 1)
                while len([gi for gi in (5, 11, 17, 29, 35) if not self.gaps[s][gi].vm]) < 3 or s <= last_s: s += 1
                if h == 1: self.rp1_first[k] = s * 36 + min(gi for gi in (5, 11, 17, 29, 35) if not self.gaps[s][gi].vm)
                last_s = s
                assert s + 2 <= it.issue, (it, s)
                g = self.gaps[s]
                off = self.kv_off(s_rp, it)
                if isinstance(off, list):
                    for q, x in enumerate(off): g[1 + q].sc.append(x)
                else:
                    g[3].sc.append(off)
                free = [gi for gi in (5, 11, 17, 29, 35) if not g[gi].vm][:3]
                assert len(free) == 3, (s, free)
                for i, gi in enumerate(free):
                    g[gi].vm.append(vload(A(12 * k + 4 * i, 4), DKV[i], SRD_K if it.kind == "K" else SRD_V, s_rp, 1024 * i,
                                          " nt" if self.cfg["nt_kv"] else "", tag=("reg", it.name)))
                it.rk = k
            for b in sorted({it.issue for it in its}):
                grp = [it for it in its if it.issue == b]
                wr = []
                for it in grp:
                    off = it.slot * SLOT
                    pre = []
                    if not (0 <= off - self.dbase and off - self.dbase + 2048 + 1024 <= 65536):
                        nb = min(off, (self.R - 5) * SLOT)
                        d = nb - self.dbase
                        self.dbase = nb
                        pre = [valu("v_add_u32", AWR, d, AWR) if d > 0 else valu("v_subrev_u32", AWR, -d, AWR)]
                    wr.append((it, pre, [ds_write(AWR, A(12 * it.rk + 4 * i, 4), off - self.dbase + 1024 * i, tag=("dump", it.name)) for i in range(3)]))
                if b % 52 == 19:
                    blk = []
                    for it, pre, w in wr: blk += [WaitTag([("reg", it.name)])] + pre + w
                    self.dump_block[b] = blk
                    continue
                cand = [(b, gi) for gi in range(24, 36)] + [(b + 1, gi) for gi in range(0, 22)]
                ci = 0
                for it, pre, w in wr:
                    first = True
                    for x in w:
                        while True:
                            st_, gi = cand[ci]
                            gp = self.gaps[st_][gi]
                            ok = not gp.vm and gp.free() >= 1 and len(gp.ds) < 2
                            if first and pre:
                                pst, pg = cand[ci - 1] if ci > 0 else (None, None)
                                ok = ok and ci > 0
                            if ok: break
                            ci += 1
                        if first:
                            gp.sc.append(WaitTag([("reg", it.name)]))
                            if pre:
                                pst, pg = cand[ci - 1]
                                self.gaps[pst][pg].va += pre
                            first = False
                        gp.ds.append(x)
                        ci += 1

    def frame3(self, s, mf):
        it = self.item[s]
        nx = self.item[s + 1] if s + 1 < NSTEP else None
        gaps = [Gap(mf(i, FB((i // 6) % 3, (i // 3) % 2))) for i in range(36)]
        nds = [0] * 6
        self.pending_fix = []
        for Gi in range(6):
            if Gi < 4:
                nds[Gi] = self.place_reads3(gaps, 6 * Gi, it, Gi + 2)
            elif nx is not None:
                nds[Gi] = self.place_reads3(gaps, 6 * Gi, nx, Gi - 4, cur=it)
        xs = [x for x in self.X.values() if x.need == s]
        if xs:
            rd = self.x_reads3(xs[0])
            for k, gi in enumerate((24, 25, 26, 27, 30, 31)):
                gaps[gi].ds.append(rd[k])
            nds[4] += 4
            nds[5] += 2
        need = [("item", x.name) for x in self.seq if x.need == s]
        for Gi in range(6):
            gi = 6 * Gi + 5
            if Gi == 3 and nx is not None:
                lt = [("dump", x.name) for x in self.seq if x.need == s]
                bar = barrier()
                bar.info = lt
                gaps[gi].sc += [WaitTag(need, lgkm="auto", ltags=lt), bar]
            elif Gi == 5:
                if nx is not None: gaps[gi].sc.append(WaitTag([], lgkm="auto"))
            else:
                gaps[gi].sc.append(WaitTag([], lgkm="auto"))
        self.fixes[s] = self.pending_fix
        if self.cfg["steptime"]:
            gaps[24].post.append(I("s_memtime s[92:93]", "salu"))
            gaps[33].post += [raw("s_waitcnt lgkmcnt(0)"), raw(f"v_writelane_b32 v{253 + s // 64}, s92, {s % 64}", "valu")]
        self.gaps[s] = gaps

    def build_frames(self):
        for h in range(2):
            for t in range(20):
                def mf(i, fr, t=t):
                    T, qb = i // 3, i % 3
                    return mfma(ACC(T, qb), fr, XF(t // 2, t % 2, qb), 0 if t == 0 else ACC(T, qb))
                self.frame3(52 * h + t, mf)
            for j in range(32):
                kind, n = a_item(j)
                p = n % 2
                if kind == "K":
                    def mf(i, fr, p=p, n=n):
                        f, qb = i // 3, i % 3
                        kt, kb = f // 6, f % 6
                        c = (0 if n < 2 else NEGM(qb)) if kb == 0 else SB(p, kt, qb)
                        return mfma(SB(p, kt, qb), fr, QF(kb, qb), c)
                else:
                    def mf(i, fr, p=p, n=n):
                        T, qb = i // 3, i % 3
                        return mfma(OA(T, qb), fr, PB(p, qb), 0 if n == 0 else OA(T, qb))
                self.frame3(52 * h + 20 + j, mf)
        for j in range(40):
            c, s = o_cs(j, self.cfg["hide_n"])

            def mf(i, fr, s=s, p=c % 2):
                f, qb = i // 3, i % 3
                jj, nt = f // 4, f % 4
                ks = 3 * s + jj
                h, kb = ks // 6, ks % 6
                b = O0P(kb, qb) if h == 0 else QF(kb, qb)
                return mfma(OACC(p, nt, qb), fr, b, 0 if ks == 0 else OACC(p, nt, qb))
            self.frame3(104 + j, mf)

    def a_fill(self, h):
        s0 = 52 * h + 20
        gaps = [g for j in range(32) for g in self.gaps[s0 + j]]
        Gx = lambda j, i=0: 36 * j + i
        mops, fin = self.max_ops(0)
        for o in mops: o.earliest = Gx(1, 0)
        sm0, _ = self.softmax_ops(0, sub_deps=fin, earliest_kt=(Gx(1, 0), Gx(1, 2)))
        pend = list_schedule(gaps, mops + sm0, Gx(1, 0), Gx(2, 0))
        self.post[s0 + 1] += autonop(self.emit_tail(pend)) + [valu("v_mov_b32", L(qb), LT(qb)) for qb in range(3)]
        for n in range(1, 16):
            p = n % 2
            j0 = 2 * n
            j1 = j0 + 2 if n <= 14 else j0 + 1
            sub = [None, None, None] if n == 1 else None
            sm, ltl = self.softmax_ops(p, sub_deps=sub, earliest_kt=(Gx(j0, 0), Gx(j0, 3)), lacc=(n > 1))
            pend = list_schedule(gaps, sm + self.check_ops(ltl, p), Gx(j0, 0), Gx(j1, 0))
            self.post[s0 + j1 - 1] += autonop(self.emit_tail(pend)) + self.check_branch(p)
            if n == 15: self.post[s0 + j1 - 1] += self.l_acc()

    RINV = [V(192), V(193), V(194)]

    def rinv_fill(self, h):
        gaps = self.gaps[52 * h + 51]
        y = [MT(3 + qb) for qb in range(3)]
        dst = self.RINV if h == 0 else [MT(8), MT(9), MT(10)]
        ops, prev = [], [None] * 3
        for sw in ("v_permlane32_swap_b32", "v_permlane16_swap_b32"):
            for qb in range(3):
                o = Op(valu("v_mov_b32", y[qb], L(qb)), [(prev[qb], 0)] if prev[qb] else []); ops.append(o); prev[qb] = o
            for qb in range(3):
                o = Op(perm(sw, L(qb), y[qb]), [(prev[qb], 2)]); ops.append(o); prev[qb] = o
            for qb in range(3):
                o = Op(valu("v_add_f32", L(qb), L(qb), y[qb]), [(prev[qb], 1)]); ops.append(o); prev[qb] = o
        for qb in range(3):
            o = Op(vrcp(dst[qb], L(qb)), [(prev[qb], 0)]); ops.append(o)
        assert not list_schedule(gaps, ops, 0, 36)

    def norm_ops(self, h, tsets, rinv):
        ops, last_use, rd_last, unit_last = [], [[] for _ in tsets], {}, {}
        k = 0
        for kb in range(6):
            for qb in range(3):
                ts = k % len(tsets)
                t = tsets[ts]
                dep0 = [(x, 0) for x in last_use[ts]]
                rds = []
                for tt, T in enumerate((2 * kb, 2 * kb + 1)):
                    for r in range(4):
                        o = Op(I(f"v_accvgpr_read_b32 v{t + 4 * tt + r}, {rtxt(OAr(T, qb, r))}", "valu", [V(t + 4 * tt + r)], [OAr(T, qb, r)]), list(dep0))
                        ops.append(o); rds.append(o)
                        rd_last[T] = o
                mul = []
                for r in range(8):
                    o = Op(valu("v_mul_f32", V(t + r), V(t + r), rinv[qb]), [(rds[r], 0)]); ops.append(o); mul.append(o)
                cv = []
                for r in range(4):
                    d = V(t + r) if h == 0 else QFr(kb, qb, r)
                    deps = [(mul[2 * r], 0), (mul[2 * r + 1], 0)] + ([(cv[-1], 0)] if cv and h == 0 else [])
                    o = Op(valu("v_cvt_pk_bf16_f32", d, V(t + 2 * r), V(t + 2 * r + 1)), deps); ops.append(o); cv.append(o)
                fin = cv
                if h == 0:
                    fin = []
                    for r in range(4):
                        o = Op(I(f"v_accvgpr_write_b32 {rtxt(O0Pr(kb, qb, r))}, v{t + r}", "valu", [O0Pr(kb, qb, r)], [V(t + r)]), [(cv[r], 0), (cv[-1], 0)])
                        ops.append(o); fin.append(o)
                last_use[ts] = fin
                unit_last[(kb, qb)] = fin
                k += 1
        return ops, rd_last, unit_last

    def n0_fill(self):
        gaps = [g for s in range(52, 72) for g in self.gaps[s]]
        ops, rd_last, _ = self.norm_ops(0, [198, 206], self.RINV)
        pend = list_schedule(gaps, ops, 0, 36 * 19)
        assert not pend, len(pend)
        self.n0_free = {T: 52 * 36 + o.gap for T, o in rd_last.items()}
        for k, g0 in self.rp1_first.items():
            assert self.n0_free[k] < g0, (k, self.n0_free[k], g0)

    def n1_fill(self):
        gaps = [g for j in range(8) for g in self.gaps[104 + j]]
        rinv = [MT(8), MT(9), MT(10)]
        ops, _, unit_last = self.norm_ops(1, [112, 120], rinv)
        done = []
        lim = {kb: 36 * (4 + kb // 3) + 12 * (kb % 3) - 1 for kb in range(6)}
        g = 0
        rest = ops
        for kb in range(6):
            mine = [o for o in rest if any(o in unit_ops for unit_ops in [self._unit_ops(ops, kb)])]
            pend = list_schedule(gaps, mine, g, lim[kb])
            if pend:
                gi = lim[kb]
                gaps[gi].post += autonop([o.ins for o in pend]) + [nop(1)]
                for o in pend: o.gap = gi + 1
            rest = [o for o in rest if o not in mine]

    def _unit_ops(self, ops, kb):
        return ops[60 * kb:60 * kb + 60]

    def n_block(self, h):
        out = []
        if h == 1 and self.cfg["fused"]:
            out += self.hu_setup()
        out += self.rinv_ops()
        tmp = [V(0 + 8 * k, 8) for k in range(3)]
        pk = [V(24 + 4 * k, 4) for k in range(3)]
        for kb in range(6):
            for qb in range(3):
                t = tmp[qb][1]
                for tt, T in enumerate((2 * kb, 2 * kb + 1)):
                    for r in range(4):
                        out.append(I(f"v_accvgpr_read_b32 v{t + 4 * tt + r}, {rtxt(OAr(T, qb, r))}", "valu",
                                     [V(t + 4 * tt + r)], [OAr(T, qb, r)]))
            for qb in range(3):
                t = tmp[qb][1]
                for h2 in range(4):
                    out.append(valu("v_pk_mul_f32", V(t + 2 * h2, 2), V(t + 2 * h2, 2), V(MT(8 + 2 * qb)[1], 2)))
            for qb in range(3):
                t = tmp[qb][1]
                for r in range(4):
                    d = V(pk[qb][1] + r) if h == 0 else QFr(kb, qb, r)
                    out.append(valu("v_cvt_pk_bf16_f32", d, V(t + 2 * r), V(t + 2 * r + 1)))
            if h == 0:
                for qb in range(3):
                    for r in range(4):
                        out.append(I(f"v_accvgpr_write_b32 {rtxt(O0Pr(kb, qb, r))}, v{pk[qb][1] + r}", "valu",
                                     [O0Pr(kb, qb, r)], [V(pk[qb][1] + r)]))
        return autonop(out)

    def o_fill(self):
        gaps = [g for j in range(40) for g in self.gaps[104 + j]]

        def cvts(p):
            ops = []
            for ntp in range(2):
                for qb in range(3):
                    u = ntp * 3 + qb
                    for h in range(2):
                        a = OACC(p, 2 * ntp + h, qb)[1]
                        ops.append(valu("v_cvt_pk_bf16_f32", CTr(u, 2 * h), V(a), V(a + 1)))
                        ops.append(valu("v_cvt_pk_bf16_f32", CTr(u, 2 * h + 1), V(a + 2), V(a + 3)))
            return ops

        def store(u, c):
            return vstore(CT(u), PSV, SRD_WS, s_pst[u // 4], (u % 4) * 1024, self.cfg["pst_flags"], tag=("st", c))

        spos = [(0, 22), (0, 34), (1, 10), (1, 22), (1, 34), (2, 10)]
        last_step = {}
        for j in range(40): last_step[o_cs(j, self.cfg["hide_n"])[0]] = j
        prev_store_gap = -1
        for c in range(9):
            j0 = last_step[c] + 1
            g0 = 36 * j0
            e0 = max(g0 + 3, prev_store_gap + 1)
            ops = [Op(x, earliest=e0) for x in cvts(c % 2)]
            pos = [g0 + 36 * s + gi for s, gi in spos]
            pos = [p_ for p_ in pos if p_ > e0 + 8]
            k = 3
            while len(pos) < 6:
                nxt = g0 + 36 * (k // 1) + (10, 22, 34)[0]
                for gi in (10, 22, 34):
                    p_ = g0 + 36 * 2 + gi if k == 3 else g0 + 36 * (k - 1) + gi
                    if p_ not in pos and p_ > (pos[-1] if pos else 0) and len(pos) < 6: pos.append(p_)
                k += 1
            for u, p_ in enumerate(pos):
                if not self.cfg["no_st"]:
                    gaps[p_].vm.append(store(u, c))
            assert not list_schedule(gaps, ops, e0, e0 + 40)
            for u, p_ in enumerate(pos):
                assert max(o.gap for o in ops[4 * u:4 * u + 4]) < p_, (c, u, p_)
            prev_store_gap = pos[-1]
            self.last_store = getattr(self, "last_store", {})
            self.last_store[c] = pos[-1]
            ga = pos[-1] + 1
            gaps[ga].sc.append(salu("s_add_u32", s_pst[0], s_pst[0], 24576))
            gaps[ga + 1].sc.append(salu("s_add_u32", s_pst[1], s_pst[1], 24576))
        fused = self.cfg["fused"]
        if fused:
            self.hu_fill(gaps)
        tail = autonop([nop(7)] + cvts(1) + [store(u, 9) for u in range(6)])
        if fused: tail += self.hu_tail()
        self.post[143] += tail

    HU_NEED = [1, 2, 3, 5, 6, 7, 8, 9]
    HU_BASE = [0, 64, 128, 192, 256, 320, 384, 432]
    HU_LIM = [480, 480, 480, 480, 480, 480, 432, 480]

    def hu_buf(self, rho, t): return A(32 * (rho % 4 if rho in self.hu_inloop else rho) + 4 * t, 4)

    def hu_load(self, rho, t):
        return vload(self.hu_buf(rho, t), VHL, SRD_WS, s_rl2[rho % 2], 0, self.cfg["red_flags"], tag=("red", rho, t))

    def hu_adv(self, rho):
        return salu("s_add_u32", s_rl2[rho % 2], s_rl2[rho % 2], 2 * 245760)

    def hu_mfma(self, rho):
        o = []
        for t in range(8):
            if t % 4 == 0: o.append(WaitTag([("red", rho, t + 3)]))
            o.append(mfma(RD[0], SEL[0], self.hu_buf(rho, t), 0 if t == 0 else RD[0]))
        a = RD[0][1]
        o += [nop(7), valu("v_cvt_pk_bf16_f32", V(RD[1][1]), V(a), V(a + 1)), valu("v_cvt_pk_bf16_f32", V(RD[1][1] + 1), V(a + 2), V(a + 3)),
              vstore(V(RD[1][1], 2), VOUT, SRD_OUT, s_ro[rho % 2], 0, self.cfg["out_flags"], tag=("out", rho), width=2), nop(1)]
        return self.hu_out_off(rho) + o

    def hu_out_off(self, rho):
        hu, n, c, rem, w2, u, ntp, a = s_t[0], s_t[1], s_t[2], s_t[3], S(100), S(101), S(61), s_ro[rho % 2]
        o = [salu("s_add_u32", hu, s_kw, self.HU_BASE[rho]), salu("s_lshr_b32", n, hu, 1),
             salu("s_mul_hi_u32", c, n, (2 ** 32 + 23) // 24), salu("s_mul_i32", rem, c, 24), salu("s_sub_u32", rem, n, rem),
             salu("s_mul_hi_u32", w2, rem, (2 ** 32 + 5) // 6), salu("s_mul_i32", u, w2, 6), salu("s_sub_u32", u, rem, u),
             salu("s_mul_hi_u32", ntp, u, (2 ** 32 + 2) // 3), salu("s_mul_i32", rem, ntp, 3), salu("s_sub_u32", u, u, rem),
             salu("s_mul_i32", a, s_b, 192), salu("s_mul_i32", w2, w2, 48), salu("s_add_u32", a, a, w2),
             salu("s_lshl_b32", u, u, 4), salu("s_add_u32", a, a, u), salu("s_mul_i32", a, a, 1280),
             salu("s_lshl_b32", c, c, 7), salu("s_add_u32", a, a, c), salu("s_lshl_b32", ntp, ntp, 6), salu("s_add_u32", a, a, ntp),
             salu("s_and_b32", n, hu, 1), salu("s_lshl_b32", n, n, 4), salu("s_add_u32", a, a, n)]
        if rho >= 6:
            o += [scmp("s_cmp_ge_u32", hu, self.HU_LIM[rho]), salu("s_cselect_b32", a, 0x7FFF0000, a)]
        return o

    def hu_base(self, rho):
        return salu("s_add_u32", s_rl2[rho % 2], s_pb, 512 * self.HU_BASE[rho])

    def hu_setup(self):
        lane, g_, m_, t0, t1 = V(96), V(97), V(98), V(99), V(100)
        o = srd(SRD_OUT, None, 16 * 192 * 640 * 2, s_outp)
        o += [WaitTag([("chk",)]), scmp("s_cmp_eq_u32", s_w, 0), branch("s_cbranch_scc0", "L_chk_ok"),
              I(f"v_readfirstlane_b32 {rtxt(s_t[1])}, {rtxt(VCHK)}", "valu", [s_t[1]], [VCHK]), raw("s_nop 3"),
              scmp("s_cmp_ge_u32", s_t[1], 16), branch("s_cbranch_scc1", "L_chk_ok"),
              salu("s_mov_b32", s_t[0], 1 << 18), label("L_chk_loop"),
              salu("s_sub_u32", s_t[0], s_t[0], 1), branch("s_cbranch_scc1", "L_chk_ok"), raw("s_sleep 8"),
              I(f"buffer_load_dword {rtxt(VCHK)}, {rtxt(VFO)}, {rtxt(SRD_DBG)}, {rtxt(s_b16)} offen sc1", "salu"), raw("s_waitcnt vmcnt(0)"),
              I(f"v_readfirstlane_b32 {rtxt(s_t[1])}, {rtxt(VCHK)}", "salu"), raw("s_nop 3"),
              scmp("s_cmp_ge_u32", s_t[1], 16), branch("s_cbranch_scc0", "L_chk_loop"), label("L_chk_ok")]
        cnd = lambda d, a, b: I(f"v_cndmask_b32 {rtxt(d)}, {rtxt(a)}, {rtxt(b)}, vcc", "valu", [d], [a, b])
        cmp_ = lambda txt, u: I(txt, "valu", [], [u])
        o += [valu("v_and_b32", lane, 63, TID), valu("v_lshrrev_b32", g_, 4, lane), valu("v_and_b32", m_, 15, lane),
              valu("v_mov_b32", VZ, 0),
              valu("v_mul_u32_u24", t0, 1280, m_), valu("v_and_b32", t1, 1, g_), valu("v_lshlrev_b32", t1, 5, t1), valu("v_add_u32", t0, t0, t1),
              valu("v_lshrrev_b32", t1, 1, g_), valu("v_lshlrev_b32", t1, 3, t1), valu("v_add_u32", VOUT, t0, t1),
              valu("v_lshrrev_b32", t0, 5, lane), valu("v_mul_u32_u24", t0, 245760, t0), valu("v_and_b32", t1, 31, lane),
              valu("v_lshlrev_b32", t1, 4, t1), valu("v_add_u32", VHL, t0, t1),
              valu("v_lshlrev_b32", t0, 2, TID), valu("v_mov_b32", VPOLL, 0x7FFFFF00),
              cmp_(f"v_cmp_gt_u32 vcc, 16, {rtxt(TID)}", TID), nop(1), cnd(VPOLL, VPOLL, t0),
              valu("v_and_b32", t0, 1, m_), valu("v_lshlrev_b32", t0, 4, t0), valu("v_mov_b32", t1, 0x3F80), valu("v_lshlrev_b32", t1, t0, t1),
              valu("v_lshrrev_b32", t0, 3, m_), valu("v_and_b32", g_, 1, g_),
              cmp_(f"v_cmp_eq_u32 vcc, {rtxt(t0)}, {rtxt(g_)}", t0), nop(1), cnd(t1, VZ, t1),
              valu("v_lshrrev_b32", t0, 1, m_), valu("v_and_b32", t0, 3, t0)]
        for d in range(4):
            o += [cmp_(f"v_cmp_eq_u32 vcc, {d}, {rtxt(t0)}", t0), nop(1), cnd(V(SEL[0][1] + d), VZ, t1)]
        o += [salu("s_lshl_b32", s_b16, s_b, 8), salu("s_add_u32", s_b16, s_b16, FLAG_OFF),
              salu("s_lshl_b32", s_t[0], s_pj, 2), salu("s_add_u32", s_t[5], s_b16, s_t[0]), salu("s_add_u32", s_kw, s_t[0], s_w),
              salu("s_mul_i32", s_pb, s_b, 16 * 245760), salu("s_lshl_b32", s_t[0], s_kw, 9), salu("s_add_u32", s_pb, s_pb, s_t[0]),
              salu("s_add_u32", s_pb, s_pb, PART_OFF)]
        return o

    def add_wait_tag(self, gaps, fs, tag):
        for x in gaps[36 * fs + 23].sc:
            if isinstance(x, WaitTag):
                x.tag = ("waittag", x.tag[1] + (tag,))

    def hu_fill(self, gaps):
        d_flag, d_poll, d_chk = int(self.cfg["d_flag"]), int(self.cfg["d_poll"]), int(self.cfg["d_chk"])
        n_in = int(self.cfg["hu_in"])
        self.hu_pending = []
        self.hu_inloop = set()
        published = set()
        for rho in range(8):
            c = self.HU_NEED[rho]
            if c >= 8: break
            fs = self.last_store[c] // 36 + d_flag
            if c not in published and fs <= 38:
                published.add(c)
                self.add_wait_tag(gaps, fs, ("st", c))
                gaps[36 * fs + 24].va.insert(0, valu("v_mov_b32", VFV, c + 1))
                gaps[36 * fs + 29].vm.append(self.flag_store())
            ps = fs + d_poll
            cs = ps + d_chk
            if rho >= n_in or cs > 39:
                self.hu_pending.append((rho, 0))
                continue
            self.hu_inloop.add(rho)
            gaps[36 * ps + 35].vm.append(self.poll_load(("poll", rho)))
            self.post[104 + cs - 1] += self.check_spin(c + 1, f"L_sp{rho}", WaitTag([("poll", rho)])) + [self.hu_base(rho)]
            t, st_ = 0, cs
            while t < 8 and st_ < 40:
                for gi in sorted((35, 11, 17)[:int(self.cfg['hu_per'])]):
                    if t == 8: break
                    if st_ == cs and gi < 24: continue
                    g = gaps[36 * st_ + gi]
                    if g.vm: continue
                    g.vm.append(self.hu_load(rho, t))
                    g.post.append(self.hu_adv(rho))
                    t += 1
                st_ += 1
            self.hu_end = getattr(self, "hu_end", {})
            self.hu_end[rho] = st_
            if rho - 2 in self.hu_end: assert self.hu_end[rho - 2] <= cs, (rho, self.hu_end, cs)
            ms = st_ + int(self.cfg["d_mfma"])
            if t == 8 and ms <= 39:
                self.post[104 + ms - 1] += self.hu_mfma(rho)
            else:
                self.hu_pending.append((rho, t, "polled"))

    def hu_tail(self):
        pend = self.hu_pending
        ready = [p[0] for p in pend if len(p) == 3 and p[1] == 8]
        partial = [(p[0], p[1]) for p in pend if len(p) == 3 and p[1] < 8]
        late = [p[0] for p in pend if len(p) == 2]
        flag = lambda k: [valu("v_mov_b32", VFV, k), self.flag_store()]

        def loads(r, t0=0):
            o = [self.hu_base(r)] if t0 == 0 else []
            for t in range(t0, 8): o += [self.hu_load(r, t), self.hu_adv(r)]
            return o
        o = self.tstamp(0)
        if late: o += [self.poll_load(("poll", "late"))]
        o += [WaitTag([("st", 8)]), barrier()] + flag(9)
        for r in ready: o += self.hu_mfma(r)
        o += self.tstamp(1)
        o += [WaitTag([("st", 9)]), barrier()] + self.tstamp(2) + flag(10)
        inflight = []
        for r, t0 in partial:
            o += loads(r, t0)
            inflight.append(r)
        if late:
            c = max(self.HU_NEED[r] for r in late)
            o += self.check_spin(c + 1, "L_spl", WaitTag([("poll", "late")])) + [barrier()]
            for r in late:
                if len(inflight) >= 4: o += self.hu_mfma(inflight.pop(0))
                o += loads(r)
                inflight.append(r)
        o += self.tstamp(3)
        o += [self.poll_load(("poll", 9))]
        while len(inflight) > 1: o += self.hu_mfma(inflight.pop(0))
        o += self.check_spin(9, "L_sp9", WaitTag([("poll", 9)])) + [barrier()] + self.tstamp(4)
        o += loads(6) + [self.poll_load(("poll", "fin"))]
        for r in inflight: o += self.hu_mfma(r)
        o += self.tstamp(5) + self.check_spin(10, "L_spf", WaitTag([("poll", "fin")])) + [barrier()] + self.tstamp(6)
        o += loads(7) + self.tstamp(7) + self.hu_mfma(6) + self.tstamp(8) + self.hu_mfma(7) + self.tstamp(9) + self.tstamp(10)
        return o

    def tstamp(self, k):
        if not self.cfg["steptime"]: return []
        return [I("s_memtime s[92:93]", "salu"), raw("s_waitcnt lgkmcnt(0)"), raw(f"v_writelane_b32 v255, s92, {20 + k}", "valu")]


def stamp(k):
    return [I("s_memtime s[56:57]", "salu"), raw("s_waitcnt lgkmcnt(0)"), salu("s_mov_b32", S(64 + k), S(56))]


def main_kernel(cfg):
    g = Gen3(cfg)
    T = cfg["timing"]
    pro = [label("mha_main_kernel"), scmp("s_cmp_ge_u32", S(2), 256), branch("s_cbranch_scc1", "L_main_exit"),
           raw("s_load_dwordx16 s[64:79], s[0:1], 0")]
    if cfg["pf_entry"]:
        pro += [I("s_getpc_b64 s[56:57]", "salu"), label("L_pce"), raw("s_add_u32 s56, s56, mha_main_kernel-L_pce"), raw("s_addc_u32 s57, s57, -1") if False else raw("s_subb_u32 s57, s57, 0") if False else raw("s_nop 0"),
                ]
        pro = pro[:-4] + [I("s_getpc_b64 s[56:57]", "salu"), label("L_pce"),
                raw("s_and_b32 s56, s56, 0xffffff00"),
                valu("v_lshlrev_b32", V(1), 7, V(0)), raw("v_mov_b32 v3, s57", "valu"),
                raw("v_add_co_u32 v2, vcc, s56, v1", "valu"), raw("s_nop 1"), raw("v_addc_co_u32 v3, vcc, 0, v3, vcc", "valu"),
                I(f"global_load_dword {rtxt(JUNK)}, v[2:3], off", "vmem", [], [])]
    lane_ops = []
    wreg = build_lane_consts(lane_ops)
    pro += lane_ops
    pro.append(I(f"v_readfirstlane_b32 {rtxt(s_w)}, {rtxt(wreg)}", "valu", [s_w], [wreg]))
    pro.append(raw("s_waitcnt lgkmcnt(0)"))
    pro += srd(SRD_X, 64, 16 * 192 * 640 * 2) + srd(SRD_K, 66, 16 * 32 * 512 * 192 * 2) + srd(SRD_V, 68, 16 * 32 * 512 * 192 * 2)
    pro += srd(SRD_W, 70, 640 * 6144 * 2) + srd(SRD_WO, 72, 6144 * 640 * 2) + srd(SRD_WS, 78, 402653184)
    pro += [salu("s_mov_b32", s_outp[0], S(74)), salu("s_mov_b32", s_outp[1], S(75)),
            salu("s_mov_b32", s_dbgp[0], S(76)), salu("s_mov_b32", s_dbgp[1], S(77))]
    t0, t1 = s_t[0], s_t[1]
    nb = int(cfg["map_nb"]); npair = 32 // nb
    lg = lambda v: v.bit_length() - 1
    seen = set()
    for wg in range(256):
        a0, j = wg & 7, wg >> 3
        pj = (j & (npair - 1)) + ((a0 & (16 // npair - 1)) << lg(npair))
        bb = (j >> lg(npair)) + ((a0 >> lg(16 // npair)) << lg(nb))
        seen.add((bb, pj))
    assert len(seen) == 256
    pro += [
        salu("s_and_b32", t0, S(2), 7), salu("s_lshr_b32", t1, S(2), 3),
        salu("s_and_b32", s_pj, t1, npair - 1), salu("s_lshr_b32", s_b, t1, lg(npair)),
        salu("s_and_b32", t1, t0, 16 // npair - 1), salu("s_lshl_b32", t1, t1, lg(npair)), salu("s_add_u32", s_pj, s_pj, t1),
        salu("s_lshr_b32", t0, t0, lg(16 // npair)), salu("s_lshl_b32", t0, t0, lg(nb)), salu("s_add_u32", s_b, s_b, t0),
        salu("s_lshl_b32", s_h0, s_pj, 1),
        salu("s_mul_i32", s_w3072, s_w, 3072), salu("s_lshl_b32", s_w6144, s_w3072, 1),
        salu("s_lshl_b32", t0, s_b, 5), salu("s_add_u32", t0, t0, s_h0), salu("s_mul_i32", s_kvb, t0, 196608),
        salu("s_add_u32", s_kvb1, s_kvb, 196608),
        salu("s_lshr_b32", s_n0, S(2), int(cfg["rot_shift"])), salu("s_mul_i32", s_n0, s_n0, int(cfg["rot_mul"])), salu("s_and_b32", s_n0, s_n0, 15),
        salu("s_mul_i32", s_wb, s_h0, 384), salu("s_mul_i32", s_xb, s_b, 245760), salu("s_mul_i32", s_ob, s_h0, 245760),
        salu("s_lshl_b32", t0, s_b, 4), salu("s_add_u32", t0, t0, s_pj),
        salu("s_mul_i32", s_pst[0], t0, 245760), salu("s_add_u32", s_pst[0], s_pst[0], PART_OFF),
        salu("s_add_u32", s_pst[1], s_pst[0], 4096),
        salu("s_mov_b32", s_thr, THR_BITS), salu("s_mov_b32", S(48), C_BITS), salu("s_mov_b32", S(49), C_BITS),
    ]
    if T: pro += [I("s_memrealtime s[86:87]", "salu")] + stamp(0)
    if cfg["fused"]:
        pro += [salu("s_lshl_b32", t0, s_b, 8), salu("s_lshl_b32", t1, s_pj, 2), salu("s_add_u32", t0, t0, t1),
                salu("s_add_u32", t0, t0, FLAG_OFF), valu("v_mov_b32", PT(8), 0),
                vstore(PT(8), VFO, SRD_WS, t0, 0, " sc1", tag=("clr",), width=1)]

    gw = S(59)
    lane, lane128 = PT(3), PT(2)
    OOB = 0x7FFFFF00

    def masked(dst, src, n):
        return [valu("v_mov_b32", dst, OOB), raw(f"v_cmp_gt_u32 vcc, {n}, {rtxt(lane)}", "valu"), raw("s_nop 1"),
                raw(f"v_cndmask_b32 {rtxt(dst)}, {rtxt(dst)}, {rtxt(src)}, vcc", "valu")]
    pfs = [salu("s_lshl_b32", gw, S(2), 2), salu("s_add_u32", gw, gw, s_w),
           valu("v_and_b32", lane, 63, TID), valu("v_lshlrev_b32", lane128, 7, lane),
           valu("v_mul_u32_u24", PT(5), 21846, lane), valu("v_lshrrev_b32", PT(5), 16, PT(5)),
           valu("v_mul_u32_u24", PT(6), 3, PT(5)), valu("v_sub_u32", PT(6), lane, PT(6)),
           valu("v_mul_u32_u24", PT(5), 12288, PT(5)), valu("v_lshlrev_b32", PT(6), 7, PT(6)), valu("v_add_u32", PT(5), PT(5), PT(6))]
    pfs += masked(VTK[0], PT(5), 30) + masked(VTK[1], lane128, 60) + masked(PT(4), lane128, 30)
    pfs += [salu("s_and_b32", t0, gw, 15), salu("s_mul_i32", t0, t0, 768), salu("s_lshr_b32", S(100), gw, 4),
            salu("s_mul_i32", S(100), S(100), 122880), salu("s_add_u32", S(100), S(100), t0), salu("s_mul_i32", S(101), gw, 7680)]
    start = []
    if "x" in cfg["pf_start"]:
        start += [salu("s_mul_i32", t0, gw, 3840), pf_load(PT(4), SRD_X, t0)]
    if "w" in cfg["pf_start"]:
        start += [pf_load(VTK[0], SRD_W, S(100))]
    if "1" in cfg["pf_start"]:
        start += [salu("s_add_u32", t0, S(100), 384), pf_load(VTK[0], SRD_W, t0)]
    code_steps = cfg["_code_steps"]
    pfs2 = []
    if cfg["pf_code"]:
        pfs2 += [valu("v_and_b32", PT(7), 31, lane), valu("v_lshlrev_b32", PT(7), 7, PT(7)),
                 salu("s_lshl_b32", t0, s_w, 12), valu("v_add_u32", VL128, t0, PT(7))]
    if int(cfg["pf_start_step"]) == -2:
        pro += pfs + start
        pfs, start = [], []
    pfs += pfs2
    pfs += [valu("v_and_b32", PT(7), 63, TID), valu("v_lshlrev_b32", PT(7), 4, PT(7)), valu("v_add_u32", AWR, s_w3072, PT(7))]

    first = [it for it in g.seq if it.issue == -1]
    for k, it in enumerate(first):
        for m0, off, ins in g.units(it):
            pro += [m0] + (off if isinstance(off, list) else [off]) + [nop(0)] + ins
    if cfg["tlb"]:
        tl = [valu("v_and_b32", PT(9), 1, TID)]
        for what in str(cfg["tlb"]):
            if what in "kv":
                tl += [valu("v_mul_u32_u24", PT(10), 393216 - 128, PT(9)), pf_load(PT(10), SRD_K if what == "k" else SRD_V, s_kvb)]
            elif what == "o":
                tl += [valu("v_mul_u32_u24", PT(10), 491520 - 128, PT(9)), pf_load(PT(10), SRD_WO, s_ob)]
            elif what == "p":
                tl += [valu("v_mul_u32_u24", PT(10), 245760 - 128, PT(9)), pf_load(PT(10), SRD_WS, s_pst[0])]
        pro += tl
    pro += pfs
    if cfg["pf_code"]:
        for k, st_ in enumerate(code_steps):
            if st_ < 0 and not (cfg["pf_entry"] and k == 0): pro += code_pf(f"L_code+{16384 * k}", sub=int(cfg["pf_sub"]))
    if cfg["pf_code_all"]:
        pro += [valu("v_lshlrev_b32", PT(9), 7, TID), valu("v_mov_b32", PT(10), S(2)), valu("v_lshlrev_b32", PT(10), 9, PT(10)),
                valu("v_add_u32", PT(9), PT(9), PT(10)),
                I("s_getpc_b64 s[56:57]", "salu"), label("L_pcall"), raw("s_add_u32 s56, s56, L_code-L_pcall"), raw("s_addc_u32 s57, s57, 0"),
                raw(f"v_mov_b32 v{VPC[1] + 1}, s57", "valu"), raw(f"v_add_co_u32 v{VPC[1]}, vcc, s56, {rtxt(PT(9))}", "valu"), raw("s_nop 1"),
                raw(f"v_addc_co_u32 v{VPC[1] + 1}, vcc, 0, v{VPC[1] + 1}, vcc", "valu"),
                raw(f"v_cmp_gt_u32 vcc, 4, {rtxt(TID)}", "valu"), raw("s_and_saveexec_b64 s[56:57], vcc"),
                raw("s_cbranch_execz L_pcall_skip"),
                I(f"global_load_dword {rtxt(JUNK)}, {rtxt(VPC)}, off", "salu", [], []), label("L_pcall_skip"),
                raw("s_mov_b64 exec, s[56:57]")]
    if int(cfg["pf_start_step"]) == -1: pro += start
    pro += [WaitTag([("item", it.name) for it in g.seq if it.need == -1]), barrier()]
    if cfg["fused"]:
        TMP = S(96, 4)
        pro += srd(TMP, None, 256, s_dbgp) + [salu("s_lshl_b32", t0, s_b, 4), valu("v_mov_b32", PT(8), 1), WaitTag([("clr",)]),
                I(f"buffer_atomic_add {rtxt(PT(8))}, {rtxt(VFO)}, {rtxt(TMP)}, {rtxt(t0)} offen", "store", [], [PT(8), VFO, TMP, t0], tag=("cnt",))]
    pro += g.x_reads3(g.X[(0, 0)]) + g.first_reads3(g.item[0]) + [wait(lgkm=4)]
    pro.append(label("L_code"))

    g.build_frames()
    g.place_dma()
    g.place_reg_tiles()
    g.place_fixes()
    def put(s, gi, ins_list):
        gp = g.gaps[s][gi]
        for x in ins_list:
            if x.cls in ("vmem",): gp.vm.append(x)
            else: gp.sc.append(x)
    def tlb_touch(h, tmp):
        st = int(cfg["tlb_stride"])
        n = (196608 + st - 1) // st
        o = [valu("v_mul_u32_u24", tmp, st, TID), valu("v_mov_b32", V(tmp[1] + 1), OOB),
             raw(f"v_cmp_gt_u32 vcc, {n}, {rtxt(TID)}", "valu"), raw("s_nop 1"),
             raw(f"v_cndmask_b32 {rtxt(tmp)}, v{tmp[1] + 1}, {rtxt(tmp)}, vcc", "valu"),
             salu("s_add_u32", t0, s_kvb, h * 196608)]
        for sr in (SRD_K, SRD_V):
            x = pf_load(tmp, sr, t0)
            x.txt += " nt"
            o.append(x)
        return o
    if int(cfg["tlb0"]) >= 0: g.pre[int(cfg["tlb0"])] += tlb_touch(0, V(192))
    if int(cfg["tlb1"]) >= 0: g.pre[int(cfg["tlb1"])] += tlb_touch(1, V(128))
    if int(cfg["pf_start_step"]) >= 0:
        g.pre[int(cfg["pf_start_step"])] += start
    if cfg["w1_split"]:
        steps_ = [int(x) for x in str(cfg["w1_split"]).split(".")]
        n_ = 30 // len(steps_)
        for k, st_ in enumerate(steps_):
            g.pre[st_] += [valu("v_subrev_u32", V(213), n_ * k, V(215)), valu("v_mov_b32", V(214), OOB),
                           raw(f"v_cmp_gt_u32 vcc, {n_}, v213", "valu"), raw("s_nop 1"),
                           raw(f"v_cndmask_b32 v214, v214, {rtxt(VTK[0])}, vcc", "valu"),
                           salu("s_add_u32", t0, S(100), 384), pf_load(V(214), SRD_W, t0)]
        g.pre[steps_[0]] = [valu("v_and_b32", V(215), 63, TID)] + g.pre[steps_[0]]
    elif int(cfg["pf_w1"]) == 19:
        g.post[19] = [salu("s_add_u32", t0, S(100), 384), pf_load(VTK[0], SRD_W, t0)] + g.post[19]
    elif int(cfg["pf_w1"]) >= 0:
        put(int(cfg["pf_w1"]), 9, [salu("s_add_u32", t0, S(100), 384)])
        put(int(cfg["pf_w1"]), 11, [pf_load(VTK[0], SRD_W, t0)])
    if cfg["wo_split"]:
        steps_ = [int(x) for x in str(cfg["wo_split"]).split(".")]
        n_ = 60 // len(steps_)
        for k, st_ in enumerate(steps_):
            g.pre[st_] += [valu("v_mov_b32", V(214), OOB), raw(f"v_cmp_gt_u32 vcc, {n_}, {rtxt(V(215))}", "valu"), raw("s_nop 1"),
                           raw(f"v_cndmask_b32 v214, v214, {rtxt(VTK[1])}, vcc", "valu"),
                           salu("s_add_u32", t0, S(101), 128 * n_ * k), pf_load(V(214), SRD_WO, t0)]
        g.pre[steps_[0]] = [valu("v_and_b32", V(215), 63, TID)] + g.pre[steps_[0]]
    elif int(cfg["pf_wo"]) == 52:
        g.post[51] += [pf_load(VTK[1], SRD_WO, S(101))]
    elif int(cfg["pf_wo"]) >= 0:
        put(int(cfg["pf_wo"]), 11, [pf_load(VTK[1], SRD_WO, S(101))])
    if cfg["pf_code"]:
        for k, st_ in enumerate(code_steps):
            if st_ >= 0: g.pre[st_] += code_pf(f"L_code+{16384 * k}", sub=int(cfg["pf_sub"]))
    if cfg["fused"]:
        g.pre[80] += srd(SRD_DBG2, None, 256, s_dbgp) + [salu("s_lshl_b32", s_b16, s_b, 4),
                      I(f"buffer_load_dword {rtxt(VCHK)}, {rtxt(VFO)}, {rtxt(SRD_DBG2)}, {rtxt(s_b16)} offen sc1", "vmem", [VCHK],
                        [VFO, SRD_DBG2, s_b16], tag=("chk",))]
    if cfg["hide_n"]:
        g.rinv_fill(0); g.rinv_fill(1)
        g.n0_fill()
        g.n1_fill()
        if cfg["fused"]:
            g.post[103] += g.hu_setup()
    for h in range(2):
        g.a_fill(h)
        g.post[52 * h + 19] += g.dump_block.get(52 * h + 19, []) + g.q_pack()
        if not cfg["hide_n"]:
            g.post[52 * h + 51] += g.n_block(h)
    g.o_fill()

    body = []
    marks = {0: 1, 20: 3, 52: 5, 72: 7}
    ends = {19: 2, 51: 4, 71: 6, 103: 8}
    for s in range(NSTEP):
        body.append(label(f"L_st{s}"))
        if T and s in marks: body += stamp(marks[s])
        body += g.pre[s]
        for gp in g.gaps[s]: body += gp.flat()
        if T and s in ends: body += stamp(ends[s])
        body += g.post[s]

    fin = []
    if T:
        fin += stamp(9)
    fin += [raw("s_waitcnt vmcnt(0)")]
    if T:
        fin += [I("s_memtime s[56:57]", "salu"), I("s_memrealtime s[88:89]", "salu"), raw("s_waitcnt lgkmcnt(0)"),
                salu("s_mov_b32", S(74), S(56)), salu("s_mov_b32", S(90), S(88)), salu("s_sub_u32", S(88), S(88), S(86))]
        lst = [64, 65, 66, 67, 68, 69, 70, 71, 72, 73, 74, 88, 86, 90]
        for k, sr in enumerate(lst): fin.append(valu("v_mov_b32", V(k), S(sr)))
        fin += [salu("s_lshl_b32", t0, S(2), 6), salu("s_add_u32", t0, t0, 300 * 1024 * 1024), valu("v_mov_b32", V(20), 0),
                raw(f"v_cmp_eq_u32 vcc, 0, {rtxt(TID)}", "valu"), raw("s_and_saveexec_b64 s[56:57], vcc")]
        for k in range(0, 16, 4): fin.append(vstore(V(k, 4), V(20), SRD_WS, t0, 4 * k))
        fin += [raw("s_waitcnt vmcnt(0)")]
        if cfg["steptime"]:
            fin += [raw("s_mov_b64 exec, -1"), salu("s_mul_i32", t0, S(2), 768), salu("s_add_u32", t0, t0, 320 * 1024 * 1024),
                    raw(f"v_cmp_gt_u32 vcc, 64, {rtxt(TID)}", "valu"), raw("s_and_saveexec_b64 s[56:57], vcc"),
                    valu("v_lshlrev_b32", V(20), 2, TID)]
            for k in range(3): fin.append(vstore(V(253 + k), V(20), SRD_WS, t0, 256 * k, width=1))
            fin += [raw("s_waitcnt vmcnt(0)")]
    fin += [label("L_main_exit"), raw("s_endpgm")]

    seq = pro + body
    res, errs, _, maxout = resolve_and_check(seq, "main")
    for e in errs[:30]: print("ERR", e, file=sys.stderr)
    assert not errs, len(errs)
    assert maxout <= 63, maxout
    final = []
    for w in seq:
        if isinstance(w, WaitTag):
            vals = [v for v in res[id(w)] if v is not None]
            vm, lgk = (min(vals) if vals else None), (w.lres if w.info[1] == "auto" else w.info[1])
            if vm is None and lgk is None:
                continue
            final.append(wait(vm, lgk))
        else:
            final.append(w)
    seq = final
    _, errs, _, _ = resolve_and_check(seq, "final")
    for e in errs[:30]: print("ERR", e, file=sys.stderr)
    assert not errs, len(errs)
    stubs = []
    for k, p in enumerate(g.rare_sites):
        stubs += [label(f"L_rs{k}"), I(f"s_call_b64 {rtxt(s_ret)}, L_rare{p}", "branch"), branch("s_branch", f"L_rr{k}")]
    rare = g.rare_code(0) + g.rare_code(1)
    return seq + fin + stubs + rare


SRD_DBG2 = SRD_DBG

MACROS = """.macro MF d,a,b,c
v_mfma_f32_16x16x32_bf16 \\d,\\a,\\b,\\c
.endm
.macro TR d,a,o
ds_read_b64_tr_b16 \\d,\\a offset:\\o
.endm
.macro RD d,a,o
ds_read_b128 \\d,\\a offset:\\o
.endm
"""


def compact(line):
    import re
    t = line.strip()
    if t.startswith("v_mfma_f32_16x16x32_bf16 "):
        return "MF " + t.split(" ", 1)[1].replace(", ", ",")
    m = re.match(r"ds_read_b64_tr_b16 (\S+), (\S+) offset:(\d+)$", t)
    if m: return f"TR {m.group(1)},{m.group(2)},{m.group(3)}"
    m = re.match(r"ds_read_b128 (\S+), (\S+) offset:(\d+)$", t)
    if m: return f"RD {m.group(1)},{m.group(2)},{m.group(3)}"
    return t.replace(", ", ",")


HEADER = """; Fused multi-head attention block for MI355X (gfx950); assembly produced by my own generator script.
"""


def text_of(cfg, m, pad):
    kname = KNAME if cfg["single"] else "mha_main_kernel"
    lds = int(cfg["R"]) * SLOT
    s = HEADER
    if cfg["single"]:
        s += f"; @launch grid=(256,1,1) block=(256,1,1) lds={lds}\n"
    else:
        s += f"; @launch kernel=mha_main_kernel grid=(256,1,1) block=(256,1,1) lds={lds}\n"
        if not cfg["fused"]:
            s += "; @launch kernel=mha_reduce_kernel grid=(960,1,1) block=(256,1,1) lds=0\n"
    s += '.amdgcn_target "amdgcn-amd-amdhsa--gfx950"\n'
    if cfg["macros"]: s += MACROS
    s += ".text\n"
    ks = [(kname, m)]
    if not cfg["fused"]: ks.append(("mha_reduce_kernel", G.reducer_kernel(cfg)))
    for nm, code in ks:
        lines = []
        for i in code:
            for ln in i.txt.split("\n"):
                lines.append(compact(ln) if cfg["macros"] and i.cls != "label" else ln)
        s += f".globl {nm}\n.p2align 8\n.type {nm},@function\n" + "\n".join(lines).replace("mha_main_kernel:", kname + ":") + "\n"
    s += f".fill {pad}, 4, 0xBF800000\nL_text_end:\n"
    s += '.section .rodata,"a"\n.p2align 6\n' + kd(kname, 512, 256)
    if not cfg["fused"]: s += ".p2align 6\n" + kd("mha_reduce_kernel", 88, 88)
    return s


def assemble_syms(text):
    open("_g3.s", "w").write(text)
    r = subprocess.run(["clang", "-x", "assembler", "-target", "amdgcn-amd-amdhsa", "-mcpu=gfx950", "-c", "_g3.s", "-o", "_g3.o"],
                       capture_output=True, text=True)
    assert r.returncode == 0, r.stderr[:2000]
    sy = subprocess.run(["llvm-readelf", "-s", "_g3.o"], capture_output=True, text=True).stdout
    return {ln.split()[-1]: int(ln.split()[1], 16) for ln in sy.splitlines() if " L_" in ln and len(ln.split()) >= 8}


def build(cfg, path):
    import importlib
    cfg = dict(cfg)
    cfg["_code_steps"] = [-1] + [max(0, 21 * k - 10) for k in range(1, 8)]
    for it in range(2):
        G.code_pf.n = 0
        m = main_kernel(cfg)
        addr = assemble_syms(text_of(cfg, m, 64))
        base = addr["L_code"]
        end = addr["L_main_exit"] - base
        npiece = (end + 16383) // 16384
        steps = []
        for k in range(npiece):
            first = min([s for s in range(NSTEP) if addr[f"L_st{s}"] - base + 1024 > 16384 * k] or [NSTEP - 1])
            s_ = first - int(cfg["code_lead"])
            steps.append(-1 if s_ < 0 else s_)
        cfg["_code_steps"] = steps
    G.code_pf.n = 0
    m = main_kernel(cfg)
    addr = assemble_syms(text_of(cfg, m, 64))
    span = max(16384 * len(cfg["_code_steps"]), 131072)
    need = addr["L_code"] + span + 256 - addr["L_text_end"]
    pad = 64 + max(0, (need + 3) // 4)
    s = text_of(cfg, m, pad)
    open(path, "w").write(s)
    n_main = sum(1 for i in m if i.cls != "label")
    print(f"wrote {path}: {len(s)} bytes, {n_main} instrs, code {addr['L_main_exit'] - addr['L_code']} B, pad {pad}, code pf steps {cfg['_code_steps']}", file=sys.stderr)


if __name__ == "__main__":
    cfg = dict(CFG)
    path = "out3.s"
    for a in sys.argv[1:]:
        if "=" in a:
            k, v = a.split("=", 1)
            assert k in cfg, k
            cfg[k] = {"True": True, "False": False}.get(v, v)
        else:
            path = a
    build(cfg, path)
```

```python
import sys
import subprocess
import numpy as np
from asmlib import *
import gen as G
from gen import (ACC, SB, SBr, PB, PBr, TT, NEGM, NEGMr, L, LT, MT, OACC, CT, CTr, QF, QFr, AK, AV, AW, AO, DKV, DA, DB, DO,
                 AX, PSV, PT, TID, JUNK, VPC, VL128, VTK, VFO, VCHK, RD, SEL, FLG, VPOLL, VFV, VOUT, VZ, PSL, PART_OFF, FLAG_OFF,
                 SRD_DBG, SRD_OUT, s_outp, s_dbgp, s_b16, s_kw, s_pb, s_ro, s_rl, OA, OAr, O0P, O0Pr, FB, FBh,
                 SRD_A, SRD_K, SRD_V, SRD_WO, SRD_WS, SRD_B, s_w3072, s_pst, s_thr, s_c2, s_h0, s_b, s_pj, s_w, s_t, s_ret,
                 THR_BITS, C_BITS, SLOT, build_lane_consts, autonop, srd, pf_load, code_pf, kd, KNAME, Gen, a_item)
import sched

CFG = dict(
    nt_kv=True, timing=False, steptime=False, pst_flags=" sc1", red_flags=" sc1",
    dspair_v=True, dspair_k=False, dspair_w=False, no_st=False, map_nb=8,
    fused=True, single=False, kv_same=False,
    R=13, P=3, P0=None, DW=4, DX=3, NW0=6, NX0=2, xres=23,
    kv_rot=False, rot_shift=0, rot_mul=1,
    tlb0=-1, tlb1=-1, tlb_stride=4096,
    npair0=0, DX0=0, NX00=0, nt_w0=False, nt_w1=False, nt_x0=False, nt_x1=False,
    RP=0, npair=2, rp_start0=3, rp_start1=0, rp_space=1.2,
    DW0=0, NW00=0, tlb='', park0='', park1='', d_flag=2, d_poll=1, d_chk=2, d_mfma=3, hu_in=6, hu_per=3, out_flags='', pf_sub=8, pf_entry=False, hide_n=True, wo_split='53.57.61.65', w1_split='', pro_max=7, early_max=4, early_steps=3,
    pf_code=True, pf_w1=8, pf_wo=52, pf_start="xw", pf_start_step=0, code_lead=14, pf_code_all=False, macros=True,
)

SRD_X, SRD_W = SRD_A, SRD_B
G.SRD_DBG = S(4, 4)
SRD_DBG = G.SRD_DBG
s_kvb, s_wb, s_xb, s_ob = S(33), S(34), S(37), S(38)
s_do = [S(35), S(36)]
s_w6144 = S(41)
NSTEP = 144


VCHK = V(143)
AWR = V(246)
s_rp = S(39)
s_n0, s_kvb1 = S(40), S(42)
s_rl2 = [S(63), S(62)]
VHL = V(132)


def o_cs(j, reorder):
    if reorder and j < 8:
        return [(0, 0), (0, 1), (1, 0), (1, 1), (0, 2), (0, 3), (1, 2), (1, 3)][j]
    return j // 4, j % 4


def XF(u, half, qb): return V(144 + ((u % 2) * 2 + half) * 12 + 4 * qb, 4)


class Gen3(Gen):
    def __init__(self, cfg):
        self.cfg = cfg
        self.rare_sites = []
        i = lambda k: int(cfg[k])
        self.R = i("R")
        self.seq, self.X, self.W, self.KV, self.O = sched.build(
            R=self.R, P=i("P"), DW=i("DW"), DX=i("DX"), NW0=i("NW0"), NX0=i("NX0"),
            P0=None if cfg["P0"] in (None, "None") else int(cfg["P0"]), xres=i("xres"),
            pro_max=i("pro_max"), early_max=i("early_max"), early_steps=i("early_steps"),
            park0=[int(x) for x in str(cfg["park0"]).split(".")] if cfg["park0"] else None,
            park1=[int(x) for x in str(cfg["park1"]).split(".")] if cfg["park1"] else None,
            DW0=int(cfg["DW0"]) or None, NW00=int(cfg["NW00"]) or None, RP=i("RP"), npair=i("npair"),
            npair0=int(cfg["npair0"]) or None, DX0=int(cfg["DX0"]) or None, NX00=int(cfg["NX00"]) or None)
        self.item = []
        for h in range(2):
            self.item += [self.W[(h, t)] for t in range(20)] + [self.KV[(h, j)] for j in range(32)]
        self.item += [self.O[j] for j in range(40)]
        self.gaps = [None] * NSTEP
        self.pre = {s: [] for s in range(NSTEP)}
        self.post = {s: [] for s in range(NSTEP)}
        self.regs = {"K": AK, "V": AV, "W": AW, "O": AO}
        self.plan = {}
        for kind in self.regs:
            its = [it for it in self.item if it.kind == kind]
            k = 0
            while k < len(its):
                lo = hi = its[k].slot
                e = k
                while e + 1 < len(its):
                    nl, nh = min(lo, its[e + 1].slot), max(hi, its[e + 1].slot)
                    if nh - nl > 4: break
                    lo, hi = nl, nh
                    e += 1
                for q in range(k, e + 1): self.plan[its[q].name] = lo * SLOT
                k = e + 1
        self.base = {kind: [0] * len(self.regs[kind]) for kind in self.regs}
        self.nunit = 0
        self.fixes = {}
        self.dump_block = {}
        self.rp1_first = {}

    def place_fixes(self):
        for s, lst in self.fixes.items():
            gaps = self.gaps[s]
            for x, lo, hi in lst:
                c = [g for g in range(lo, hi + 1) if gaps[g].free() == 1 and not gaps[g].vm and g != 23]
                if not c: c = [g for g in range(lo, hi + 1) if gaps[g].free() >= 1 and not gaps[g].vm and g != 23]
                if not c: c = [hi]
                gaps[c[0]].va.append(x)

    def frag_reads3(self, it, f, buf):
        win = self.plan[it.name]
        off = it.slot * SLOT - win
        kind = it.kind
        if kind == "K":
            kt, kb = f // 6, f % 6
            ri = kb % 2
            return [(ds_read("ds_read_b128", FB(buf, f % 2), AK[ri], off + kt * 6144 + (kb // 2) * 128), ri, win)]
        ri, j = f % 4, f // 4
        o, d2 = {"V": (off + 128 * j, 6144), "W": (off + 128 * j, 1536), "O": (off + 4096 * j, 2048)}[kind]
        r = self.regs[kind][ri]
        return [(ds_read("ds_read_b64_tr_b16", FBh(buf, f % 2, 0), r, o), ri, win),
                (ds_read("ds_read_b64_tr_b16", FBh(buf, f % 2, 1), r, o + d2), ri, win)]

    def fix(self, kind, ri, win):
        B = self.base[kind]
        if B[ri] == win: return None
        d = win - B[ri]
        B[ri] = win
        r = self.regs[kind][ri]
        return valu("v_add_u32", r, d, r) if d > 0 else valu("v_subrev_u32", r, -d, r)

    def place_reads3(self, gaps, g0, it, grp, cur=None):
        rl = []
        for f in (2 * grp, 2 * grp + 1):
            rl += self.frag_reads3(it, f, grp % 3)
        fx = [x for x in (self.fix(it.kind, ri, win) for _, ri, win in rl) if x is not None]
        if fx:
            same = (cur is not None and cur.kind == it.kind)
            if it.kind == "K":
                lo = 20 if same else 2
            elif g0 == 24:
                lo = 16 if same else 2
            else:
                lo = 22 if same else 2
            self.pending_fix += [(x, lo, g0 - 1) for x in fx]
        pair = self.cfg["dspair_k"] if it.kind == "K" else (self.cfg["dspair_v"] if it.kind == "V" else self.cfg["dspair_w"])
        for k, (ins, ri, win) in enumerate(rl):
            gaps[g0 + (k // 2 if pair else k)].ds.append(ins)
        return len(rl)

    def first_reads3(self, it):
        out = []
        for grp in range(2):
            for f in (2 * grp, 2 * grp + 1):
                for ins, ri, win in self.frag_reads3(it, f, grp % 3):
                    x = self.fix(it.kind, ri, win)
                    if x is not None: out.append(x)
                    out.append(ins)
        for ri in range(len(self.regs[it.kind])):
            x = self.fix(it.kind, ri, self.plan[it.name])
            if x is not None: out.append(x)
        return out

    def x_reads3(self, it):
        u = it.n
        return [ds_read("ds_read_b128", XF(u, half, qb), AX[half], it.slot * SLOT + 2048 * qb) for half in range(2) for qb in range(3)]

    def units(self, it):
        tag = ("item", it.name)
        out = []
        for k in range(it.units):
            so = s_do[self.nunit % 2]
            self.nunit += 1
            nt = False
            if it.kind == "X":
                m0 = salu("s_add_u32", "m0", s_w6144, it.slot * SLOT + 3072 * k)
                off = salu("s_add_u32", so, s_xb, 128 * it.n + 30720 * k)
                vo, sr = DA, SRD_X
                nt = bool(self.cfg["nt_x0"]) if it.h == 0 else bool(self.cfg["nt_x1"])
            else:
                m0 = salu("s_add_u32", "m0", s_w3072, it.slot * SLOT)
                if it.kind in "KV":
                    off = self.kv_off(so, it)
                    vo, sr = DKV, (SRD_K if it.kind == "K" else SRD_V)
                    nt = self.cfg["nt_kv"]
                elif it.kind == "W":
                    off = salu("s_add_u32", so, s_wb, it.h * 384 + it.n * 393216)
                    vo, sr = DB, SRD_W
                    nt = bool(self.cfg["nt_w0"]) if it.h == 0 else bool(self.cfg["nt_w1"])
                else:
                    c, s = o_cs(it.n, self.cfg["hide_n"])
                    off = salu("s_add_u32", so, s_ob, s * 122880 + c * 128)
                    vo, sr = DO, SRD_WO
            out.append((m0, off, [dma(vo[i], sr, so, 1024 * i, nt, tag=tag) for i in range(3)]))
        return out

    def kv_off(self, so, it):
        if self.cfg["kv_rot"] and not self.cfg["kv_same"]:
            return [salu("s_xor_b32", so, s_n0, it.n), salu("s_mul_i32", so, so, 12288),
                    salu("s_add_u32", so, so, s_kvb if it.h == 0 else s_kvb1)]
        imm = it.h * 196608 + (0 if self.cfg["kv_same"] else it.n * 12288)
        return salu("s_add_u32", so, s_kvb, imm)

    def place_dma(self):
        for b in range(NSTEP):
            un = []
            for it in self.seq:
                if it.issue == b and not getattr(it, "reg", False): un += self.units(it)
            assert len(un) <= 4
            if len(un) == 1:
                pos = [[(0, 28), (1, 4), (1, 16)]]
            elif len(un) == 2:
                pos = [[(0, 28), (0, 34), (1, 4)], [(1, 10), (1, 16), (1, 22)]]
            elif len(un) > 2:
                pos = [[(0, 28), (0, 29), (0, 34)], [(1, 2), (1, 4), (1, 5)], [(1, 8), (1, 10), (1, 11)], [(1, 14), (1, 16), (1, 17)]][:len(un)]
            else:
                pos = []
            for (m0, off, ins), ps in zip(un, pos):
                for i, (ds_, gi) in enumerate(ps):
                    g = self.gaps[b + ds_]
                    if i == 0:
                        if isinstance(off, list):
                            (g[gi - 3] if gi >= 3 else self.gaps[b + ds_ - 1][36 + gi - 3]).sc.append(off[0])
                            g[gi - 2].sc += [off[1], m0]; g[gi - 1].sc.append(off[2])
                        else:
                            g[gi - 2].sc.append(m0)
                            g[gi - 1].sc.append(off)
                    if len(un) > 2 and gi % 6 < 4 and g[gi].ds:
                        pass
                    g[gi].vm.append(ins[i])

    def place_reg_tiles(self):
        self.dbase = 0
        for h in range(2):
            its = [self.KV[(h, j)] for j in range(32) if getattr(self.KV[(h, j)], "reg", False)]
            start = float(self.cfg["rp_start0" if h == 0 else "rp_start1"])
            last_s = -1
            for k, it in enumerate(its):
                s = 52 * h + int(start + k * float(self.cfg["rp_space"]))
                if h == 1 and self.cfg["hide_n"]:
                    s = max(s, 52 + int(2.45 * (k // 2 + 1)) + 1)
                while len([gi for gi in (5, 11, 17, 29, 35) if not self.gaps[s][gi].vm]) < 3 or s <= last_s: s += 1
                if h == 1: self.rp1_first[k] = s * 36 + min(gi for gi in (5, 11, 17, 29, 35) if not self.gaps[s][gi].vm)
                last_s = s
                assert s + 2 <= it.issue, (it, s)
                g = self.gaps[s]
                off = self.kv_off(s_rp, it)
                if isinstance(off, list):
                    for q, x in enumerate(off): g[1 + q].sc.append(x)
                else:
                    g[3].sc.append(off)
                free = [gi for gi in (5, 11, 17, 29, 35) if not g[gi].vm][:3]
                assert len(free) == 3, (s, free)
                for i, gi in enumerate(free):
                    g[gi].vm.append(vload(A(12 * k + 4 * i, 4), DKV[i], SRD_K if it.kind == "K" else SRD_V, s_rp, 1024 * i,
                                          " nt" if self.cfg["nt_kv"] else "", tag=("reg", it.name)))
                it.rk = k
            for b in sorted({it.issue for it in its}):
                grp = [it for it in its if it.issue == b]
                wr = []
                for it in grp:
                    off = it.slot * SLOT
                    pre = []
                    if not (0 <= off - self.dbase and off - self.dbase + 2048 + 1024 <= 65536):
                        nb = min(off, (self.R - 5) * SLOT)
                        d = nb - self.dbase
                        self.dbase = nb
                        pre = [valu("v_add_u32", AWR, d, AWR) if d > 0 else valu("v_subrev_u32", AWR, -d, AWR)]
                    wr.append((it, pre, [ds_write(AWR, A(12 * it.rk + 4 * i, 4), off - self.dbase + 1024 * i, tag=("dump", it.name)) for i in range(3)]))
                if b % 52 == 19:
                    blk = []
                    for it, pre, w in wr: blk += [WaitTag([("reg", it.name)])] + pre + w
                    self.dump_block[b] = blk
                    continue
                cand = [(b, gi) for gi in range(24, 36)] + [(b + 1, gi) for gi in range(0, 22)]
                ci = 0
                for it, pre, w in wr:
                    first = True
                    for x in w:
                        while True:
                            st_, gi = cand[ci]
                            gp = self.gaps[st_][gi]
                            ok = not gp.vm and gp.free() >= 1 and len(gp.ds) < 2
                            if first and pre:
                                pst, pg = cand[ci - 1] if ci > 0 else (None, None)
                                ok = ok and ci > 0
                            if ok: break
                            ci += 1
                        if first:
                            gp.sc.append(WaitTag([("reg", it.name)]))
                            if pre:
                                pst, pg = cand[ci - 1]
                                self.gaps[pst][pg].va += pre
                            first = False
                        gp.ds.append(x)
                        ci += 1

    def frame3(self, s, mf):
        it = self.item[s]
        nx = self.item[s + 1] if s + 1 < NSTEP else None
        gaps = [Gap(mf(i, FB((i // 6) % 3, (i // 3) % 2))) for i in range(36)]
        nds = [0] * 6
        self.pending_fix = []
        for Gi in range(6):
            if Gi < 4:
                nds[Gi] = self.place_reads3(gaps, 6 * Gi, it, Gi + 2)
            elif nx is not None:
                nds[Gi] = self.place_reads3(gaps, 6 * Gi, nx, Gi - 4, cur=it)
        xs = [x for x in self.X.values() if x.need == s]
        if xs:
            rd = self.x_reads3(xs[0])
            for k, gi in enumerate((24, 25, 26, 27, 30, 31)):
                gaps[gi].ds.append(rd[k])
            nds[4] += 4
            nds[5] += 2
        need = [("item", x.name) for x in self.seq if x.need == s]
        for Gi in range(6):
            gi = 6 * Gi + 5
            if Gi == 3 and nx is not None:
                lt = [("dump", x.name) for x in self.seq if x.need == s]
                bar = barrier()
                bar.info = lt
                gaps[gi].sc += [WaitTag(need, lgkm="auto", ltags=lt), bar]
            elif Gi == 5:
                if nx is not None: gaps[gi].sc.append(WaitTag([], lgkm="auto"))
            else:
                gaps[gi].sc.append(WaitTag([], lgkm="auto"))
        self.fixes[s] = self.pending_fix
        if self.cfg["steptime"]:
            gaps[24].post.append(I("s_memtime s[92:93]", "salu"))
            gaps[33].post += [raw("s_waitcnt lgkmcnt(0)"), raw(f"v_writelane_b32 v{253 + s // 64}, s92, {s % 64}", "valu")]
        self.gaps[s] = gaps

    def build_frames(self):
        for h in range(2):
            for t in range(20):
                def mf(i, fr, t=t):
                    T, qb = i // 3, i % 3
                    return mfma(ACC(T, qb), fr, XF(t // 2, t % 2, qb), 0 if t == 0 else ACC(T, qb))
                self.frame3(52 * h + t, mf)
            for j in range(32):
                kind, n = a_item(j)
                p = n % 2
                if kind == "K":
                    def mf(i, fr, p=p, n=n):
                        f, qb = i // 3, i % 3
                        kt, kb = f // 6, f % 6
                        c = (0 if n < 2 else NEGM(qb)) if kb == 0 else SB(p, kt, qb)
                        return mfma(SB(p, kt, qb), fr, QF(kb, qb), c)
                else:
                    def mf(i, fr, p=p, n=n):
                        T, qb = i // 3, i % 3
                        return mfma(OA(T, qb), fr, PB(p, qb), 0 if n == 0 else OA(T, qb))
                self.frame3(52 * h + 20 + j, mf)
        for j in range(40):
            c, s = o_cs(j, self.cfg["hide_n"])

            def mf(i, fr, s=s, p=c % 2):
                f, qb = i // 3, i % 3
                jj, nt = f // 4, f % 4
                ks = 3 * s + jj
                h, kb = ks // 6, ks % 6
                b = O0P(kb, qb) if h == 0 else QF(kb, qb)
                return mfma(OACC(p, nt, qb), fr, b, 0 if ks == 0 else OACC(p, nt, qb))
            self.frame3(104 + j, mf)

    def a_fill(self, h):
        s0 = 52 * h + 20
        gaps = [g for j in range(32) for g in self.gaps[s0 + j]]
        Gx = lambda j, i=0: 36 * j + i
        mops, fin = self.max_ops(0)
        for o in mops: o.earliest = Gx(1, 0)
        sm0, _ = self.softmax_ops(0, sub_deps=fin, earliest_kt=(Gx(1, 0), Gx(1, 2)))
        pend = list_schedule(gaps, mops + sm0, Gx(1, 0), Gx(2, 0))
        self.post[s0 + 1] += autonop(self.emit_tail(pend)) + [valu("v_mov_b32", L(qb), LT(qb)) for qb in range(3)]
        for n in range(1, 16):
            p = n % 2
            j0 = 2 * n
            j1 = j0 + 2 if n <= 14 else j0 + 1
            sub = [None, None, None] if n == 1 else None
            sm, ltl = self.softmax_ops(p, sub_deps=sub, earliest_kt=(Gx(j0, 0), Gx(j0, 3)), lacc=(n > 1))
            pend = list_schedule(gaps, sm + self.check_ops(ltl, p), Gx(j0, 0), Gx(j1, 0))
            self.post[s0 + j1 - 1] += autonop(self.emit_tail(pend)) + self.check_branch(p)
            if n == 15: self.post[s0 + j1 - 1] += self.l_acc()

    RINV = [V(192), V(193), V(194)]

    def rinv_fill(self, h):
        gaps = self.gaps[52 * h + 51]
        y = [MT(3 + qb) for qb in range(3)]
        dst = self.RINV if h == 0 else [MT(8), MT(9), MT(10)]
        ops, prev = [], [None] * 3
        for sw in ("v_permlane32_swap_b32", "v_permlane16_swap_b32"):
            for qb in range(3):
                o = Op(valu("v_mov_b32", y[qb], L(qb)), [(prev[qb], 0)] if prev[qb] else []); ops.append(o); prev[qb] = o
            for qb in range(3):
                o = Op(perm(sw, L(qb), y[qb]), [(prev[qb], 2)]); ops.append(o); prev[qb] = o
            for qb in range(3):
                o = Op(valu("v_add_f32", L(qb), L(qb), y[qb]), [(prev[qb], 1)]); ops.append(o); prev[qb] = o
        for qb in range(3):
            o = Op(vrcp(dst[qb], L(qb)), [(prev[qb], 0)]); ops.append(o)
        assert not list_schedule(gaps, ops, 0, 36)

    def norm_ops(self, h, tsets, rinv):
        ops, last_use, rd_last, unit_last = [], [[] for _ in tsets], {}, {}
        k = 0
        for kb in range(6):
            for qb in range(3):
                ts = k % len(tsets)
                t = tsets[ts]
                dep0 = [(x, 0) for x in last_use[ts]]
                rds = []
                for tt, T in enumerate((2 * kb, 2 * kb + 1)):
                    for r in range(4):
                        o = Op(I(f"v_accvgpr_read_b32 v{t + 4 * tt + r}, {rtxt(OAr(T, qb, r))}", "valu", [V(t + 4 * tt + r)], [OAr(T, qb, r)]), list(dep0))
                        ops.append(o); rds.append(o)
                        rd_last[T] = o
                mul = []
                for r in range(8):
                    o = Op(valu("v_mul_f32", V(t + r), V(t + r), rinv[qb]), [(rds[r], 0)]); ops.append(o); mul.append(o)
                cv = []
                for r in range(4):
                    d = V(t + r) if h == 0 else QFr(kb, qb, r)
                    deps = [(mul[2 * r], 0), (mul[2 * r + 1], 0)] + ([(cv[-1], 0)] if cv and h == 0 else [])
                    o = Op(valu("v_cvt_pk_bf16_f32", d, V(t + 2 * r), V(t + 2 * r + 1)), deps); ops.append(o); cv.append(o)
                fin = cv
                if h == 0:
                    fin = []
                    for r in range(4):
                        o = Op(I(f"v_accvgpr_write_b32 {rtxt(O0Pr(kb, qb, r))}, v{t + r}", "valu", [O0Pr(kb, qb, r)], [V(t + r)]), [(cv[r], 0), (cv[-1], 0)])
                        ops.append(o); fin.append(o)
                last_use[ts] = fin
                unit_last[(kb, qb)] = fin
                k += 1
        return ops, rd_last, unit_last

    def n0_fill(self):
        gaps = [g for s in range(52, 72) for g in self.gaps[s]]
        ops, rd_last, _ = self.norm_ops(0, [198, 206], self.RINV)
        pend = list_schedule(gaps, ops, 0, 36 * 19)
        assert not pend, len(pend)
        self.n0_free = {T: 52 * 36 + o.gap for T, o in rd_last.items()}
        for k, g0 in self.rp1_first.items():
            assert self.n0_free[k] < g0, (k, self.n0_free[k], g0)

    def n1_fill(self):
        gaps = [g for j in range(8) for g in self.gaps[104 + j]]
        rinv = [MT(8), MT(9), MT(10)]
        ops, _, unit_last = self.norm_ops(1, [112, 120], rinv)
        done = []
        lim = {kb: 36 * (4 + kb // 3) + 12 * (kb % 3) - 1 for kb in range(6)}
        g = 0
        rest = ops
        for kb in range(6):
            mine = [o for o in rest if any(o in unit_ops for unit_ops in [self._unit_ops(ops, kb)])]
            pend = list_schedule(gaps, mine, g, lim[kb])
            if pend:
                gi = lim[kb]
                gaps[gi].post += autonop([o.ins for o in pend]) + [nop(1)]
                for o in pend: o.gap = gi + 1
            rest = [o for o in rest if o not in mine]

    def _unit_ops(self, ops, kb):
        return ops[60 * kb:60 * kb + 60]

    def n_block(self, h):
        out = []
        if h == 1 and self.cfg["fused"]:
            out += self.hu_setup()
        out += self.rinv_ops()
        tmp = [V(0 + 8 * k, 8) for k in range(3)]
        pk = [V(24 + 4 * k, 4) for k in range(3)]
        for kb in range(6):
            for qb in range(3):
                t = tmp[qb][1]
                for tt, T in enumerate((2 * kb, 2 * kb + 1)):
                    for r in range(4):
                        out.append(I(f"v_accvgpr_read_b32 v{t + 4 * tt + r}, {rtxt(OAr(T, qb, r))}", "valu",
                                     [V(t + 4 * tt + r)], [OAr(T, qb, r)]))
            for qb in range(3):
                t = tmp[qb][1]
                for h2 in range(4):
                    out.append(valu("v_pk_mul_f32", V(t + 2 * h2, 2), V(t + 2 * h2, 2), V(MT(8 + 2 * qb)[1], 2)))
            for qb in range(3):
                t = tmp[qb][1]
                for r in range(4):
                    d = V(pk[qb][1] + r) if h == 0 else QFr(kb, qb, r)
                    out.append(valu("v_cvt_pk_bf16_f32", d, V(t + 2 * r), V(t + 2 * r + 1)))
            if h == 0:
                for qb in range(3):
                    for r in range(4):
                        out.append(I(f"v_accvgpr_write_b32 {rtxt(O0Pr(kb, qb, r))}, v{pk[qb][1] + r}", "valu",
                                     [O0Pr(kb, qb, r)], [V(pk[qb][1] + r)]))
        return autonop(out)

    def o_fill(self):
        gaps = [g for j in range(40) for g in self.gaps[104 + j]]

        def cvts(p):
            ops = []
            for ntp in range(2):
                for qb in range(3):
                    u = ntp * 3 + qb
                    for h in range(2):
                        a = OACC(p, 2 * ntp + h, qb)[1]
                        ops.append(valu("v_cvt_pk_bf16_f32", CTr(u, 2 * h), V(a), V(a + 1)))
                        ops.append(valu("v_cvt_pk_bf16_f32", CTr(u, 2 * h + 1), V(a + 2), V(a + 3)))
            return ops

        def store(u, c):
            return vstore(CT(u), PSV, SRD_WS, s_pst[u // 4], (u % 4) * 1024, self.cfg["pst_flags"], tag=("st", c))

        spos = [(0, 22), (0, 34), (1, 10), (1, 22), (1, 34), (2, 10)]
        last_step = {}
        for j in range(40): last_step[o_cs(j, self.cfg["hide_n"])[0]] = j
        prev_store_gap = -1
        for c in range(9):
            j0 = last_step[c] + 1
            g0 = 36 * j0
            e0 = max(g0 + 3, prev_store_gap + 1)
            ops = [Op(x, earliest=e0) for x in cvts(c % 2)]
            pos = [g0 + 36 * s + gi for s, gi in spos]
            pos = [p_ for p_ in pos if p_ > e0 + 8]
            k = 3
            while len(pos) < 6:
                nxt = g0 + 36 * (k // 1) + (10, 22, 34)[0]
                for gi in (10, 22, 34):
                    p_ = g0 + 36 * 2 + gi if k == 3 else g0 + 36 * (k - 1) + gi
                    if p_ not in pos and p_ > (pos[-1] if pos else 0) and len(pos) < 6: pos.append(p_)
                k += 1
            for u, p_ in enumerate(pos):
                if not self.cfg["no_st"]:
                    gaps[p_].vm.append(store(u, c))
            assert not list_schedule(gaps, ops, e0, e0 + 40)
            for u, p_ in enumerate(pos):
                assert max(o.gap for o in ops[4 * u:4 * u + 4]) < p_, (c, u, p_)
            prev_store_gap = pos[-1]
            self.last_store = getattr(self, "last_store", {})
            self.last_store[c] = pos[-1]
            ga = pos[-1] + 1
            gaps[ga].sc.append(salu("s_add_u32", s_pst[0], s_pst[0], 24576))
            gaps[ga + 1].sc.append(salu("s_add_u32", s_pst[1], s_pst[1], 24576))
        fused = self.cfg["fused"]
        if fused:
            self.hu_fill(gaps)
        tail = autonop([nop(7)] + cvts(1) + [store(u, 9) for u in range(6)])
        if fused: tail += self.hu_tail()
        self.post[143] += tail

    HU_NEED = [1, 2, 3, 5, 6, 7, 8, 9]
    HU_BASE = [0, 64, 128, 192, 256, 320, 384, 432]
    HU_LIM = [480, 480, 480, 480, 480, 480, 432, 480]

    def hu_buf(self, rho, t): return A(32 * (rho % 4 if rho in self.hu_inloop else rho) + 4 * t, 4)

    def hu_load(self, rho, t):
        return vload(self.hu_buf(rho, t), VHL, SRD_WS, s_rl2[rho % 2], 0, self.cfg["red_flags"], tag=("red", rho, t))

    def hu_adv(self, rho):
        return salu("s_add_u32", s_rl2[rho % 2], s_rl2[rho % 2], 2 * 245760)

    def hu_mfma(self, rho):
        o = []
        for t in range(8):
            if t % 4 == 0: o.append(WaitTag([("red", rho, t + 3)]))
            o.append(mfma(RD[0], SEL[0], self.hu_buf(rho, t), 0 if t == 0 else RD[0]))
        a = RD[0][1]
        o += [nop(7), valu("v_cvt_pk_bf16_f32", V(RD[1][1]), V(a), V(a + 1)), valu("v_cvt_pk_bf16_f32", V(RD[1][1] + 1), V(a + 2), V(a + 3)),
              vstore(V(RD[1][1], 2), VOUT, SRD_OUT, s_ro[rho % 2], 0, self.cfg["out_flags"], tag=("out", rho), width=2), nop(1)]
        return self.hu_out_off(rho) + o

    def hu_out_off(self, rho):
        hu, n, c, rem, w2, u, ntp, a = s_t[0], s_t[1], s_t[2], s_t[3], S(100), S(101), S(61), s_ro[rho % 2]
        o = [salu("s_add_u32", hu, s_kw, self.HU_BASE[rho]), salu("s_lshr_b32", n, hu, 1),
             salu("s_mul_hi_u32", c, n, (2 ** 32 + 23) // 24), salu("s_mul_i32", rem, c, 24), salu("s_sub_u32", rem, n, rem),
             salu("s_mul_hi_u32", w2, rem, (2 ** 32 + 5) // 6), salu("s_mul_i32", u, w2, 6), salu("s_sub_u32", u, rem, u),
             salu("s_mul_hi_u32", ntp, u, (2 ** 32 + 2) // 3), salu("s_mul_i32", rem, ntp, 3), salu("s_sub_u32", u, u, rem),
             salu("s_mul_i32", a, s_b, 192), salu("s_mul_i32", w2, w2, 48), salu("s_add_u32", a, a, w2),
             salu("s_lshl_b32", u, u, 4), salu("s_add_u32", a, a, u), salu("s_mul_i32", a, a, 1280),
             salu("s_lshl_b32", c, c, 7), salu("s_add_u32", a, a, c), salu("s_lshl_b32", ntp, ntp, 6), salu("s_add_u32", a, a, ntp),
             salu("s_and_b32", n, hu, 1), salu("s_lshl_b32", n, n, 4), salu("s_add_u32", a, a, n)]
        if rho >= 6:
            o += [scmp("s_cmp_ge_u32", hu, self.HU_LIM[rho]), salu("s_cselect_b32", a, 0x7FFF0000, a)]
        return o

    def hu_base(self, rho):
        return salu("s_add_u32", s_rl2[rho % 2], s_pb, 512 * self.HU_BASE[rho])

    def hu_setup(self):
        lane, g_, m_, t0, t1 = V(96), V(97), V(98), V(99), V(100)
        o = srd(SRD_OUT, None, 16 * 192 * 640 * 2, s_outp)
        o += [WaitTag([("chk",)]), scmp("s_cmp_eq_u32", s_w, 0), branch("s_cbranch_scc0", "L_chk_ok"),
              I(f"v_readfirstlane_b32 {rtxt(s_t[1])}, {rtxt(VCHK)}", "valu", [s_t[1]], [VCHK]), raw("s_nop 3"),
              scmp("s_cmp_ge_u32", s_t[1], 16), branch("s_cbranch_scc1", "L_chk_ok"),
              salu("s_mov_b32", s_t[0], 1 << 18), label("L_chk_loop"),
              salu("s_sub_u32", s_t[0], s_t[0], 1), branch("s_cbranch_scc1", "L_chk_ok"), raw("s_sleep 8"),
              I(f"buffer_load_dword {rtxt(VCHK)}, {rtxt(VFO)}, {rtxt(SRD_DBG)}, {rtxt(s_b16)} offen sc1", "salu"), raw("s_waitcnt vmcnt(0)"),
              I(f"v_readfirstlane_b32 {rtxt(s_t[1])}, {rtxt(VCHK)}", "salu"), raw("s_nop 3"),
              scmp("s_cmp_ge_u32", s_t[1], 16), branch("s_cbranch_scc0", "L_chk_loop"), label("L_chk_ok")]
        cnd = lambda d, a, b: I(f"v_cndmask_b32 {rtxt(d)}, {rtxt(a)}, {rtxt(b)}, vcc", "valu", [d], [a, b])
        cmp_ = lambda txt, u: I(txt, "valu", [], [u])
        o += [valu("v_and_b32", lane, 63, TID), valu("v_lshrrev_b32", g_, 4, lane), valu("v_and_b32", m_, 15, lane),
              valu("v_mov_b32", VZ, 0),
              valu("v_mul_u32_u24", t0, 1280, m_), valu("v_and_b32", t1, 1, g_), valu("v_lshlrev_b32", t1, 5, t1), valu("v_add_u32", t0, t0, t1),
              valu("v_lshrrev_b32", t1, 1, g_), valu("v_lshlrev_b32", t1, 3, t1), valu("v_add_u32", VOUT, t0, t1),
              valu("v_lshrrev_b32", t0, 5, lane), valu("v_mul_u32_u24", t0, 245760, t0), valu("v_and_b32", t1, 31, lane),
              valu("v_lshlrev_b32", t1, 4, t1), valu("v_add_u32", VHL, t0, t1),
              valu("v_lshlrev_b32", t0, 2, TID), valu("v_mov_b32", VPOLL, 0x7FFFFF00),
              cmp_(f"v_cmp_gt_u32 vcc, 16, {rtxt(TID)}", TID), nop(1), cnd(VPOLL, VPOLL, t0),
              valu("v_and_b32", t0, 1, m_), valu("v_lshlrev_b32", t0, 4, t0), valu("v_mov_b32", t1, 0x3F80), valu("v_lshlrev_b32", t1, t0, t1),
              valu("v_lshrrev_b32", t0, 3, m_), valu("v_and_b32", g_, 1, g_),
              cmp_(f"v_cmp_eq_u32 vcc, {rtxt(t0)}, {rtxt(g_)}", t0), nop(1), cnd(t1, VZ, t1),
              valu("v_lshrrev_b32", t0, 1, m_), valu("v_and_b32", t0, 3, t0)]
        for d in range(4):
            o += [cmp_(f"v_cmp_eq_u32 vcc, {d}, {rtxt(t0)}", t0), nop(1), cnd(V(SEL[0][1] + d), VZ, t1)]
        o += [salu("s_lshl_b32", s_b16, s_b, 8), salu("s_add_u32", s_b16, s_b16, FLAG_OFF),
              salu("s_lshl_b32", s_t[0], s_pj, 2), salu("s_add_u32", s_t[5], s_b16, s_t[0]), salu("s_add_u32", s_kw, s_t[0], s_w),
              salu("s_mul_i32", s_pb, s_b, 16 * 245760), salu("s_lshl_b32", s_t[0], s_kw, 9), salu("s_add_u32", s_pb, s_pb, s_t[0]),
              salu("s_add_u32", s_pb, s_pb, PART_OFF)]
        return o

    def add_wait_tag(self, gaps, fs, tag):
        for x in gaps[36 * fs + 23].sc:
            if isinstance(x, WaitTag):
                x.tag = ("waittag", x.tag[1] + (tag,))

    def hu_fill(self, gaps):
        d_flag, d_poll, d_chk = int(self.cfg["d_flag"]), int(self.cfg["d_poll"]), int(self.cfg["d_chk"])
        n_in = int(self.cfg["hu_in"])
        self.hu_pending = []
        self.hu_inloop = set()
        published = set()
        for rho in range(8):
            c = self.HU_NEED[rho]
            if c >= 8: break
            fs = self.last_store[c] // 36 + d_flag
            if c not in published and fs <= 38:
                published.add(c)
                self.add_wait_tag(gaps, fs, ("st", c))
                gaps[36 * fs + 24].va.insert(0, valu("v_mov_b32", VFV, c + 1))
                gaps[36 * fs + 29].vm.append(self.flag_store())
            ps = fs + d_poll
            cs = ps + d_chk
            if rho >= n_in or cs > 38:
                self.hu_pending.append((rho, 0))
                continue
            self.hu_inloop.add(rho)
            gaps[36 * ps + 35].vm.append(self.poll_load(("poll", rho)))
            self.post[104 + cs - 1] += self.check_spin(c + 1, f"L_sp{rho}", WaitTag([("poll", rho)])) + [self.hu_base(rho)]
            t, st_ = 0, cs
            while t < 8 and st_ < 40:
                for gi in sorted((35, 11, 17)[:int(self.cfg['hu_per'])]):
                    if t == 8: break
                    if st_ == cs and gi < 24: continue
                    g = gaps[36 * st_ + gi]
                    if g.vm: continue
                    g.vm.append(self.hu_load(rho, t))
                    g.post.append(self.hu_adv(rho))
                    t += 1
                st_ += 1
            self.hu_end = getattr(self, "hu_end", {})
            self.hu_end[rho] = st_
            if rho - 2 in self.hu_end: assert self.hu_end[rho - 2] <= cs, (rho, self.hu_end, cs)
            ms = st_ + int(self.cfg["d_mfma"])
            if t == 8 and ms <= 39:
                self.post[104 + ms - 1] += self.hu_mfma(rho)
            else:
                self.hu_pending.append((rho, t, "polled"))

    def hu_tail(self):
        pend = self.hu_pending
        ready = [p[0] for p in pend if len(p) == 3 and p[1] == 8]
        partial = [(p[0], p[1]) for p in pend if len(p) == 3 and p[1] < 8]
        late = [p[0] for p in pend if len(p) == 2]
        flag = lambda k: [valu("v_mov_b32", VFV, k), self.flag_store()]

        def loads(r, t0=0):
            o = [self.hu_base(r)] if t0 == 0 else []
            for t in range(t0, 8): o += [self.hu_load(r, t), self.hu_adv(r)]
            return o
        o = self.tstamp(0)
        if late: o += [self.poll_load(("poll", "late"))]
        o += [WaitTag([("st", 8)]), barrier()] + flag(9)
        for r in ready: o += self.hu_mfma(r)
        o += self.tstamp(1)
        o += [WaitTag([("st", 9)]), barrier()] + self.tstamp(2) + flag(10)
        inflight = []
        for r, t0 in partial:
            o += loads(r, t0)
            inflight.append(r)
        if late:
            c = max(self.HU_NEED[r] for r in late)
            o += self.check_spin(c + 1, "L_spl", WaitTag([("poll", "late")])) + [barrier()]
            for r in late:
                if len(inflight) >= 4: o += self.hu_mfma(inflight.pop(0))
                o += loads(r)
                inflight.append(r)
        o += self.tstamp(3)
        o += [self.poll_load(("poll", 9))]
        while len(inflight) > 1: o += self.hu_mfma(inflight.pop(0))
        o += self.check_spin(9, "L_sp9", WaitTag([("poll", 9)])) + [barrier()] + self.tstamp(4)
        o += loads(6) + [self.poll_load(("poll", "fin"))]
        for r in inflight: o += self.hu_mfma(r)
        o += self.tstamp(5) + self.check_spin(10, "L_spf", WaitTag([("poll", "fin")])) + [barrier()] + self.tstamp(6)
        o += loads(7) + self.tstamp(7) + self.hu_mfma(6) + self.tstamp(8) + self.hu_mfma(7) + self.tstamp(9) + self.tstamp(10)
        return o

    def tstamp(self, k):
        if not self.cfg["steptime"]: return []
        return [I("s_memtime s[92:93]", "salu"), raw("s_waitcnt lgkmcnt(0)"), raw(f"v_writelane_b32 v255, s92, {20 + k}", "valu")]


def stamp(k):
    return [I("s_memtime s[56:57]", "salu"), raw("s_waitcnt lgkmcnt(0)"), salu("s_mov_b32", S(64 + k), S(56))]


def main_kernel(cfg):
    g = Gen3(cfg)
    T = cfg["timing"]
    pro = [label("mha_main_kernel"), scmp("s_cmp_ge_u32", S(2), 256), branch("s_cbranch_scc1", "L_main_exit"),
           raw("s_load_dwordx16 s[64:79], s[0:1], 0")]
    if cfg["pf_entry"]:
        pro += [I("s_getpc_b64 s[56:57]", "salu"), label("L_pce"), raw("s_add_u32 s56, s56, mha_main_kernel-L_pce"), raw("s_addc_u32 s57, s57, -1") if False else raw("s_subb_u32 s57, s57, 0") if False else raw("s_nop 0"),
                ]
        pro = pro[:-4] + [I("s_getpc_b64 s[56:57]", "salu"), label("L_pce"),
                raw("s_and_b32 s56, s56, 0xffffff00"),
                valu("v_lshlrev_b32", V(1), 7, V(0)), raw("v_mov_b32 v3, s57", "valu"),
                raw("v_add_co_u32 v2, vcc, s56, v1", "valu"), raw("s_nop 1"), raw("v_addc_co_u32 v3, vcc, 0, v3, vcc", "valu"),
                I(f"global_load_dword {rtxt(JUNK)}, v[2:3], off", "vmem", [], [])]
    lane_ops = []
    wreg = build_lane_consts(lane_ops)
    pro += lane_ops
    pro.append(I(f"v_readfirstlane_b32 {rtxt(s_w)}, {rtxt(wreg)}", "valu", [s_w], [wreg]))
    pro.append(raw("s_waitcnt lgkmcnt(0)"))
    pro += srd(SRD_X, 64, 16 * 192 * 640 * 2) + srd(SRD_K, 66, 16 * 32 * 512 * 192 * 2) + srd(SRD_V, 68, 16 * 32 * 512 * 192 * 2)
    pro += srd(SRD_W, 70, 640 * 6144 * 2) + srd(SRD_WO, 72, 6144 * 640 * 2) + srd(SRD_WS, 78, 402653184)
    pro += [salu("s_mov_b32", s_outp[0], S(74)), salu("s_mov_b32", s_outp[1], S(75)),
            salu("s_mov_b32", s_dbgp[0], S(76)), salu("s_mov_b32", s_dbgp[1], S(77))]
    t0, t1 = s_t[0], s_t[1]
    nb = int(cfg["map_nb"]); npair = 32 // nb
    lg = lambda v: v.bit_length() - 1
    seen = set()
    for wg in range(256):
        a0, j = wg & 7, wg >> 3
        pj = (j & (npair - 1)) + ((a0 & (16 // npair - 1)) << lg(npair))
        bb = (j >> lg(npair)) + ((a0 >> lg(16 // npair)) << lg(nb))
        seen.add((bb, pj))
    assert len(seen) == 256
    pro += [
        salu("s_and_b32", t0, S(2), 7), salu("s_lshr_b32", t1, S(2), 3),
        salu("s_and_b32", s_pj, t1, npair - 1), salu("s_lshr_b32", s_b, t1, lg(npair)),
        salu("s_and_b32", t1, t0, 16 // npair - 1), salu("s_lshl_b32", t1, t1, lg(npair)), salu("s_add_u32", s_pj, s_pj, t1),
        salu("s_lshr_b32", t0, t0, lg(16 // npair)), salu("s_lshl_b32", t0, t0, lg(nb)), salu("s_add_u32", s_b, s_b, t0),
        salu("s_lshl_b32", s_h0, s_pj, 1),
        salu("s_mul_i32", s_w3072, s_w, 3072), salu("s_lshl_b32", s_w6144, s_w3072, 1),
        salu("s_lshl_b32", t0, s_b, 5), salu("s_add_u32", t0, t0, s_h0), salu("s_mul_i32", s_kvb, t0, 196608),
        salu("s_add_u32", s_kvb1, s_kvb, 196608),
        salu("s_lshr_b32", s_n0, S(2), int(cfg["rot_shift"])), salu("s_mul_i32", s_n0, s_n0, int(cfg["rot_mul"])), salu("s_and_b32", s_n0, s_n0, 15),
        salu("s_mul_i32", s_wb, s_h0, 384), salu("s_mul_i32", s_xb, s_b, 245760), salu("s_mul_i32", s_ob, s_h0, 245760),
        salu("s_lshl_b32", t0, s_b, 4), salu("s_add_u32", t0, t0, s_pj),
        salu("s_mul_i32", s_pst[0], t0, 245760), salu("s_add_u32", s_pst[0], s_pst[0], PART_OFF),
        salu("s_add_u32", s_pst[1], s_pst[0], 4096),
        salu("s_mov_b32", s_thr, THR_BITS), salu("s_mov_b32", S(48), C_BITS), salu("s_mov_b32", S(49), C_BITS),
    ]
    if T: pro += [I("s_memrealtime s[86:87]", "salu")] + stamp(0)
    if cfg["fused"]:
        pro += [salu("s_lshl_b32", t0, s_b, 8), salu("s_lshl_b32", t1, s_pj, 2), salu("s_add_u32", t0, t0, t1),
                salu("s_add_u32", t0, t0, FLAG_OFF), valu("v_mov_b32", PT(8), 0),
                vstore(PT(8), VFO, SRD_WS, t0, 0, " sc1", tag=("clr",), width=1)]

    gw = S(59)
    lane, lane128 = PT(3), PT(2)
    OOB = 0x7FFFFF00

    def masked(dst, src, n):
        return [valu("v_mov_b32", dst, OOB), raw(f"v_cmp_gt_u32 vcc, {n}, {rtxt(lane)}", "valu"), raw("s_nop 1"),
                raw(f"v_cndmask_b32 {rtxt(dst)}, {rtxt(dst)}, {rtxt(src)}, vcc", "valu")]
    pfs = [salu("s_lshl_b32", gw, S(2), 2), salu("s_add_u32", gw, gw, s_w),
           valu("v_and_b32", lane, 63, TID), valu("v_lshlrev_b32", lane128, 7, lane),
           valu("v_mul_u32_u24", PT(5), 21846, lane), valu("v_lshrrev_b32", PT(5), 16, PT(5)),
           valu("v_mul_u32_u24", PT(6), 3, PT(5)), valu("v_sub_u32", PT(6), lane, PT(6)),
           valu("v_mul_u32_u24", PT(5), 12288, PT(5)), valu("v_lshlrev_b32", PT(6), 7, PT(6)), valu("v_add_u32", PT(5), PT(5), PT(6))]
    pfs += masked(VTK[0], PT(5), 30) + masked(VTK[1], lane128, 60) + masked(PT(4), lane128, 30)
    pfs += [salu("s_and_b32", t0, gw, 15), salu("s_mul_i32", t0, t0, 768), salu("s_lshr_b32", S(100), gw, 4),
            salu("s_mul_i32", S(100), S(100), 122880), salu("s_add_u32", S(100), S(100), t0), salu("s_mul_i32", S(101), gw, 7680)]
    start = []
    if "x" in cfg["pf_start"]:
        start += [salu("s_mul_i32", t0, gw, 3840), pf_load(PT(4), SRD_X, t0)]
    if "w" in cfg["pf_start"]:
        start += [pf_load(VTK[0], SRD_W, S(100))]
    if "1" in cfg["pf_start"]:
        start += [salu("s_add_u32", t0, S(100), 384), pf_load(VTK[0], SRD_W, t0)]
    code_steps = cfg["_code_steps"]
    pfs2 = []
    if cfg["pf_code"]:
        pfs2 += [valu("v_and_b32", PT(7), 31, lane), valu("v_lshlrev_b32", PT(7), 7, PT(7)),
                 salu("s_lshl_b32", t0, s_w, 12), valu("v_add_u32", VL128, t0, PT(7))]
    if int(cfg["pf_start_step"]) == -2:
        pro += pfs + start
        pfs, start = [], []
    pfs += pfs2
    pfs += [valu("v_and_b32", PT(7), 63, TID), valu("v_lshlrev_b32", PT(7), 4, PT(7)), valu("v_add_u32", AWR, s_w3072, PT(7))]

    first = [it for it in g.seq if it.issue == -1]
    for k, it in enumerate(first):
        for m0, off, ins in g.units(it):
            pro += [m0] + (off if isinstance(off, list) else [off]) + [nop(0)] + ins
    if cfg["tlb"]:
        tl = [valu("v_and_b32", PT(9), 1, TID)]
        for what in str(cfg["tlb"]):
            if what in "kv":
                tl += [valu("v_mul_u32_u24", PT(10), 393216 - 128, PT(9)), pf_load(PT(10), SRD_K if what == "k" else SRD_V, s_kvb)]
            elif what == "o":
                tl += [valu("v_mul_u32_u24", PT(10), 491520 - 128, PT(9)), pf_load(PT(10), SRD_WO, s_ob)]
            elif what == "p":
                tl += [valu("v_mul_u32_u24", PT(10), 245760 - 128, PT(9)), pf_load(PT(10), SRD_WS, s_pst[0])]
        pro += tl
    pro += pfs
    if cfg["pf_code"]:
        for k, st_ in enumerate(code_steps):
            if st_ < 0 and not (cfg["pf_entry"] and k == 0): pro += code_pf(f"L_code+{16384 * k}", sub=int(cfg["pf_sub"]))
    if cfg["pf_code_all"]:
        pro += [valu("v_lshlrev_b32", PT(9), 7, TID), valu("v_mov_b32", PT(10), S(2)), valu("v_lshlrev_b32", PT(10), 9, PT(10)),
                valu("v_add_u32", PT(9), PT(9), PT(10)),
                I("s_getpc_b64 s[56:57]", "salu"), label("L_pcall"), raw("s_add_u32 s56, s56, L_code-L_pcall"), raw("s_addc_u32 s57, s57, 0"),
                raw(f"v_mov_b32 v{VPC[1] + 1}, s57", "valu"), raw(f"v_add_co_u32 v{VPC[1]}, vcc, s56, {rtxt(PT(9))}", "valu"), raw("s_nop 1"),
                raw(f"v_addc_co_u32 v{VPC[1] + 1}, vcc, 0, v{VPC[1] + 1}, vcc", "valu"),
                raw(f"v_cmp_gt_u32 vcc, 4, {rtxt(TID)}", "valu"), raw("s_and_saveexec_b64 s[56:57], vcc"),
                raw("s_cbranch_execz L_pcall_skip"),
                I(f"global_load_dword {rtxt(JUNK)}, {rtxt(VPC)}, off", "salu", [], []), label("L_pcall_skip"),
                raw("s_mov_b64 exec, s[56:57]")]
    if int(cfg["pf_start_step"]) == -1: pro += start
    pro += [WaitTag([("item", it.name) for it in g.seq if it.need == -1]), barrier()]
    if cfg["fused"]:
        TMP = S(96, 4)
        pro += srd(TMP, None, 256, s_dbgp) + [salu("s_lshl_b32", t0, s_b, 4), valu("v_mov_b32", PT(8), 1), WaitTag([("clr",)]),
                I(f"buffer_atomic_add {rtxt(PT(8))}, {rtxt(VFO)}, {rtxt(TMP)}, {rtxt(t0)} offen", "store", [], [PT(8), VFO, TMP, t0], tag=("cnt",))]
    pro += g.x_reads3(g.X[(0, 0)]) + g.first_reads3(g.item[0]) + [wait(lgkm=4)]
    pro.append(label("L_code"))

    g.build_frames()
    g.place_dma()
    g.place_reg_tiles()
    g.place_fixes()
    def put(s, gi, ins_list):
        gp = g.gaps[s][gi]
        for x in ins_list:
            if x.cls in ("vmem",): gp.vm.append(x)
            else: gp.sc.append(x)
    def tlb_touch(h, tmp):
        st = int(cfg["tlb_stride"])
        n = (196608 + st - 1) // st
        o = [valu("v_mul_u32_u24", tmp, st, TID), valu("v_mov_b32", V(tmp[1] + 1), OOB),
             raw(f"v_cmp_gt_u32 vcc, {n}, {rtxt(TID)}", "valu"), raw("s_nop 1"),
             raw(f"v_cndmask_b32 {rtxt(tmp)}, v{tmp[1] + 1}, {rtxt(tmp)}, vcc", "valu"),
             salu("s_add_u32", t0, s_kvb, h * 196608)]
        for sr in (SRD_K, SRD_V):
            x = pf_load(tmp, sr, t0)
            x.txt += " nt"
            o.append(x)
        return o
    if int(cfg["tlb0"]) >= 0: g.pre[int(cfg["tlb0"])] += tlb_touch(0, V(192))
    if int(cfg["tlb1"]) >= 0: g.pre[int(cfg["tlb1"])] += tlb_touch(1, V(128))
    if int(cfg["pf_start_step"]) >= 0:
        g.pre[int(cfg["pf_start_step"])] += start
    if cfg["w1_split"]:
        steps_ = [int(x) for x in str(cfg["w1_split"]).split(".")]
        n_ = 30 // len(steps_)
        for k, st_ in enumerate(steps_):
            g.pre[st_] += [valu("v_subrev_u32", V(213), n_ * k, V(215)), valu("v_mov_b32", V(214), OOB),
                           raw(f"v_cmp_gt_u32 vcc, {n_}, v213", "valu"), raw("s_nop 1"),
                           raw(f"v_cndmask_b32 v214, v214, {rtxt(VTK[0])}, vcc", "valu"),
                           salu("s_add_u32", t0, S(100), 384), pf_load(V(214), SRD_W, t0)]
        g.pre[steps_[0]] = [valu("v_and_b32", V(215), 63, TID)] + g.pre[steps_[0]]
    elif int(cfg["pf_w1"]) == 19:
        g.post[19] = [salu("s_add_u32", t0, S(100), 384), pf_load(VTK[0], SRD_W, t0)] + g.post[19]
    elif int(cfg["pf_w1"]) >= 0:
        put(int(cfg["pf_w1"]), 9, [salu("s_add_u32", t0, S(100), 384)])
        put(int(cfg["pf_w1"]), 11, [pf_load(VTK[0], SRD_W, t0)])
    if cfg["wo_split"]:
        steps_ = [int(x) for x in str(cfg["wo_split"]).split(".")]
        n_ = 60 // len(steps_)
        for k, st_ in enumerate(steps_):
            g.pre[st_] += [valu("v_mov_b32", V(214), OOB), raw(f"v_cmp_gt_u32 vcc, {n_}, {rtxt(V(215))}", "valu"), raw("s_nop 1"),
                           raw(f"v_cndmask_b32 v214, v214, {rtxt(VTK[1])}, vcc", "valu"),
                           salu("s_add_u32", t0, S(101), 128 * n_ * k), pf_load(V(214), SRD_WO, t0)]
        g.pre[steps_[0]] = [valu("v_and_b32", V(215), 63, TID)] + g.pre[steps_[0]]
    elif int(cfg["pf_wo"]) == 52:
        g.post[51] += [pf_load(VTK[1], SRD_WO, S(101))]
    elif int(cfg["pf_wo"]) >= 0:
        put(int(cfg["pf_wo"]), 11, [pf_load(VTK[1], SRD_WO, S(101))])
    if cfg["pf_code"]:
        for k, st_ in enumerate(code_steps):
            if st_ >= 0: g.pre[st_] += code_pf(f"L_code+{16384 * k}", sub=int(cfg["pf_sub"]))
    if cfg["fused"]:
        g.pre[80] += srd(SRD_DBG2, None, 256, s_dbgp) + [salu("s_lshl_b32", s_b16, s_b, 4),
                      I(f"buffer_load_dword {rtxt(VCHK)}, {rtxt(VFO)}, {rtxt(SRD_DBG2)}, {rtxt(s_b16)} offen sc1", "vmem", [VCHK],
                        [VFO, SRD_DBG2, s_b16], tag=("chk",))]
    if cfg["hide_n"]:
        g.rinv_fill(0); g.rinv_fill(1)
        g.n0_fill()
        g.n1_fill()
        if cfg["fused"]:
            g.post[103] += g.hu_setup()
    for h in range(2):
        g.a_fill(h)
        g.post[52 * h + 19] += g.dump_block.get(52 * h + 19, []) + g.q_pack()
        if not cfg["hide_n"]:
            g.post[52 * h + 51] += g.n_block(h)
    g.o_fill()

    body = []
    marks = {0: 1, 20: 3, 52: 5, 72: 7}
    ends = {19: 2, 51: 4, 71: 6, 103: 8}
    for s in range(NSTEP):
        body.append(label(f"L_st{s}"))
        if T and s in marks: body += stamp(marks[s])
        body += g.pre[s]
        for gp in g.gaps[s]: body += gp.flat()
        if T and s in ends: body += stamp(ends[s])
        body += g.post[s]

    fin = []
    if T:
        fin += stamp(9)
    fin += [raw("s_waitcnt vmcnt(0)")]
    if T:
        fin += [I("s_memtime s[56:57]", "salu"), I("s_memrealtime s[88:89]", "salu"), raw("s_waitcnt lgkmcnt(0)"),
                salu("s_mov_b32", S(74), S(56)), salu("s_mov_b32", S(90), S(88)), salu("s_sub_u32", S(88), S(88), S(86))]
        lst = [64, 65, 66, 67, 68, 69, 70, 71, 72, 73, 74, 88, 86, 90]
        for k, sr in enumerate(lst): fin.append(valu("v_mov_b32", V(k), S(sr)))
        fin += [salu("s_lshl_b32", t0, S(2), 6), salu("s_add_u32", t0, t0, 300 * 1024 * 1024), valu("v_mov_b32", V(20), 0),
                raw(f"v_cmp_eq_u32 vcc, 0, {rtxt(TID)}", "valu"), raw("s_and_saveexec_b64 s[56:57], vcc")]
        for k in range(0, 16, 4): fin.append(vstore(V(k, 4), V(20), SRD_WS, t0, 4 * k))
        fin += [raw("s_waitcnt vmcnt(0)")]
        if cfg["steptime"]:
            fin += [raw("s_mov_b64 exec, -1"), salu("s_mul_i32", t0, S(2), 768), salu("s_add_u32", t0, t0, 320 * 1024 * 1024),
                    raw(f"v_cmp_gt_u32 vcc, 64, {rtxt(TID)}", "valu"), raw("s_and_saveexec_b64 s[56:57], vcc"),
                    valu("v_lshlrev_b32", V(20), 2, TID)]
            for k in range(3): fin.append(vstore(V(253 + k), V(20), SRD_WS, t0, 256 * k, width=1))
            fin += [raw("s_waitcnt vmcnt(0)")]
    fin += [label("L_main_exit"), raw("s_endpgm")]

    seq = pro + body
    state = {"checked": set(), "published": set()}
    for x in seq:
        if x.cls == "label" and str(x.info).startswith("L_sp") and str(x.info).endswith("_ok"):
            state["checked"].add(x.info[4:-3])
        elif x.cls == "barrier":
            state["published"] |= state["checked"]
        elif x.cls == "vmem" and isinstance(x.tag, tuple) and x.tag and x.tag[0] == "red":
            rho = x.tag[1]
            ok = str(rho) in state["published"] or "f" in state["published"] or ("l" in state["published"] and rho < 6) or (rho == 6 and "9" in state["published"])
            assert ok, ("partial load not ordered after its check", x.tag, state)
    res, errs, _, maxout = resolve_and_check(seq, "main")
    for e in errs[:30]: print("ERR", e, file=sys.stderr)
    assert not errs, len(errs)
    assert maxout <= 63, maxout
    final = []
    for w in seq:
        if isinstance(w, WaitTag):
            vals = [v for v in res[id(w)] if v is not None]
            vm, lgk = (min(vals) if vals else None), (w.lres if w.info[1] == "auto" else w.info[1])
            if vm is None and lgk is None:
                continue
            final.append(wait(vm, lgk))
        else:
            final.append(w)
    seq = final
    _, errs, _, _ = resolve_and_check(seq, "final")
    for e in errs[:30]: print("ERR", e, file=sys.stderr)
    assert not errs, len(errs)
    stubs = []
    for k, p in enumerate(g.rare_sites):
        stubs += [label(f"L_rs{k}"), I(f"s_call_b64 {rtxt(s_ret)}, L_rare{p}", "branch"), branch("s_branch", f"L_rr{k}")]
    rare = g.rare_code(0) + g.rare_code(1)
    return seq + fin + stubs + rare


SRD_DBG2 = SRD_DBG

MACROS = """.macro MF d,a,b,c
v_mfma_f32_16x16x32_bf16 \\d,\\a,\\b,\\c
.endm
.macro TR d,a,o
ds_read_b64_tr_b16 \\d,\\a offset:\\o
.endm
.macro RD d,a,o
ds_read_b128 \\d,\\a offset:\\o
.endm
"""


def compact(line):
    import re
    t = line.strip()
    if t.startswith("v_mfma_f32_16x16x32_bf16 "):
        return "MF " + t.split(" ", 1)[1].replace(", ", ",")
    m = re.match(r"ds_read_b64_tr_b16 (\S+), (\S+) offset:(\d+)$", t)
    if m: return f"TR {m.group(1)},{m.group(2)},{m.group(3)}"
    m = re.match(r"ds_read_b128 (\S+), (\S+) offset:(\d+)$", t)
    if m: return f"RD {m.group(1)},{m.group(2)},{m.group(3)}"
    return t.replace(", ", ",")


HEADER = """; Fused multi-head attention block for MI355X (gfx950); assembly produced by my own generator script.
"""


def text_of(cfg, m, pad):
    kname = KNAME if cfg["single"] else "mha_main_kernel"
    lds = int(cfg["R"]) * SLOT
    s = HEADER
    if cfg["single"]:
        s += f"; @launch grid=(256,1,1) block=(256,1,1) lds={lds}\n"
    else:
        s += f"; @launch kernel=mha_main_kernel grid=(256,1,1) block=(256,1,1) lds={lds}\n"
        if not cfg["fused"]:
            s += "; @launch kernel=mha_reduce_kernel grid=(960,1,1) block=(256,1,1) lds=0\n"
    s += '.amdgcn_target "amdgcn-amd-amdhsa--gfx950"\n'
    if cfg["macros"]: s += MACROS
    s += ".text\n"
    ks = [(kname, m)]
    if not cfg["fused"]: ks.append(("mha_reduce_kernel", G.reducer_kernel(cfg)))
    for nm, code in ks:
        lines = []
        for i in code:
            for ln in i.txt.split("\n"):
                lines.append(compact(ln) if cfg["macros"] and i.cls != "label" else ln)
        s += f".globl {nm}\n.p2align 8\n.type {nm},@function\n" + "\n".join(lines).replace("mha_main_kernel:", kname + ":") + "\n"
    s += f".fill {pad}, 4, 0xBF800000\nL_text_end:\n"
    s += '.section .rodata,"a"\n.p2align 6\n' + kd(kname, 512, 256)
    if not cfg["fused"]: s += ".p2align 6\n" + kd("mha_reduce_kernel", 88, 88)
    return s


def assemble_syms(text):
    open("_g3.s", "w").write(text)
    r = subprocess.run(["clang", "-x", "assembler", "-target", "amdgcn-amd-amdhsa", "-mcpu=gfx950", "-c", "_g3.s", "-o", "_g3.o"],
                       capture_output=True, text=True)
    assert r.returncode == 0, r.stderr[:2000]
    sy = subprocess.run(["llvm-readelf", "-s", "_g3.o"], capture_output=True, text=True).stdout
    return {ln.split()[-1]: int(ln.split()[1], 16) for ln in sy.splitlines() if " L_" in ln and len(ln.split()) >= 8}


def build(cfg, path):
    import importlib
    cfg = dict(cfg)
    cfg["_code_steps"] = [-1] + [max(0, 21 * k - 10) for k in range(1, 8)]
    for it in range(2):
        G.code_pf.n = 0
        m = main_kernel(cfg)
        addr = assemble_syms(text_of(cfg, m, 64))
        base = addr["L_code"]
        end = addr["L_main_exit"] - base
        npiece = (end + 16383) // 16384
        steps = []
        for k in range(npiece):
            first = min([s for s in range(NSTEP) if addr[f"L_st{s}"] - base + 1024 > 16384 * k] or [NSTEP - 1])
            s_ = first - int(cfg["code_lead"])
            steps.append(-1 if s_ < 0 else s_)
        cfg["_code_steps"] = steps
    G.code_pf.n = 0
    m = main_kernel(cfg)
    addr = assemble_syms(text_of(cfg, m, 64))
    span = max(16384 * len(cfg["_code_steps"]), 131072)
    need = addr["L_code"] + span + 256 - addr["L_text_end"]
    pad = 64 + max(0, (need + 3) // 4)
    s = text_of(cfg, m, pad)
    open(path, "w").write(s)
    n_main = sum(1 for i in m if i.cls != "label")
    print(f"wrote {path}: {len(s)} bytes, {n_main} instrs, code {addr['L_main_exit'] - addr['L_code']} B, pad {pad}, code pf steps {cfg['_code_steps']}", file=sys.stderr)


if __name__ == "__main__":
    cfg = dict(CFG)
    path = "out3.s"
    for a in sys.argv[1:]:
        if "=" in a:
            k, v = a.split("=", 1)
            assert k in cfg, k
            cfg[k] = {"True": True, "False": False}.get(v, v)
        else:
            path = a
    build(cfg, path)
```

```python
import sys
import subprocess
import numpy as np
from asmlib import *
import gen as G
from gen import (ACC, SB, SBr, PB, PBr, TT, NEGM, NEGMr, L, LT, MT, OACC, CT, CTr, QF, QFr, AK, AV, AW, AO, DKV, DA, DB, DO,
                 AX, PSV, PT, TID, JUNK, VPC, VL128, VTK, VFO, VCHK, RD, SEL, FLG, VPOLL, VFV, VOUT, VZ, PSL, PART_OFF, FLAG_OFF,
                 SRD_DBG, SRD_OUT, s_outp, s_dbgp, s_b16, s_kw, s_pb, s_ro, s_rl, OA, OAr, O0P, O0Pr, FB, FBh,
                 SRD_A, SRD_K, SRD_V, SRD_WO, SRD_WS, SRD_B, s_w3072, s_pst, s_thr, s_c2, s_h0, s_b, s_pj, s_w, s_t, s_ret,
                 THR_BITS, C_BITS, SLOT, build_lane_consts, autonop, srd, pf_load, code_pf, kd, KNAME, Gen, a_item)
import sched

CFG = dict(
    nt_kv=True, timing=False, steptime=False, pst_flags=" sc1", red_flags=" sc1",
    dspair_v=True, dspair_k=False, dspair_w=False, no_st=False, map_nb=8,
    fused=True, single=False, kv_same=False,
    R=13, P=3, P0=None, DW=4, DX=3, NW0=6, NX0=2, xres=23,
    kv_rot=False, rot_shift=0, rot_mul=1,
    tlb0=-1, tlb1=-1, tlb_stride=4096,
    npair0=0, DX0=0, NX00=0, nt_w0=False, nt_w1=False, nt_x0=False, nt_x1=False,
    RP=0, npair=2, rp_start0=3, rp_start1=0, rp_space=1.2,
    DW0=0, NW00=0, tlb='', park0='', park1='', d_flag=2, d_poll=1, d_chk=2, d_mfma=3, hu_in=6, hu_per=3, fast_pro=True, out_flags='', pf_sub=8, pf_entry=False, hide_n=True, wo_split='53.57.61.65', w1_split='', pro_max=7, early_max=4, early_steps=3,
    pf_code=True, pf_w1=8, pf_wo=52, pf_start="xw", pf_start_step=0, code_lead=14, pf_code_all=False, macros=True,
)

SRD_X, SRD_W = SRD_A, SRD_B
G.SRD_DBG = S(4, 4)
SRD_DBG = G.SRD_DBG
s_kvb, s_wb, s_xb, s_ob = S(33), S(34), S(37), S(38)
s_do = [S(35), S(36)]
s_w6144 = S(41)
NSTEP = 144


VCHK = V(143)
AWR = V(246)
s_rp = S(39)
s_n0, s_kvb1 = S(40), S(42)
s_rl2 = [S(63), S(62)]
VHL = V(132)


def o_cs(j, reorder):
    if reorder and j < 8:
        return [(0, 0), (0, 1), (1, 0), (1, 1), (0, 2), (0, 3), (1, 2), (1, 3)][j]
    return j // 4, j % 4


def XF(u, half, qb): return V(144 + ((u % 2) * 2 + half) * 12 + 4 * qb, 4)


class Gen3(Gen):
    def __init__(self, cfg):
        self.cfg = cfg
        self.rare_sites = []
        i = lambda k: int(cfg[k])
        self.R = i("R")
        self.seq, self.X, self.W, self.KV, self.O = sched.build(
            R=self.R, P=i("P"), DW=i("DW"), DX=i("DX"), NW0=i("NW0"), NX0=i("NX0"),
            P0=None if cfg["P0"] in (None, "None") else int(cfg["P0"]), xres=i("xres"),
            pro_max=i("pro_max"), early_max=i("early_max"), early_steps=i("early_steps"),
            park0=[int(x) for x in str(cfg["park0"]).split(".")] if cfg["park0"] else None,
            park1=[int(x) for x in str(cfg["park1"]).split(".")] if cfg["park1"] else None,
            DW0=int(cfg["DW0"]) or None, NW00=int(cfg["NW00"]) or None, RP=i("RP"), npair=i("npair"),
            npair0=int(cfg["npair0"]) or None, DX0=int(cfg["DX0"]) or None, NX00=int(cfg["NX00"]) or None)
        self.item = []
        for h in range(2):
            self.item += [self.W[(h, t)] for t in range(20)] + [self.KV[(h, j)] for j in range(32)]
        self.item += [self.O[j] for j in range(40)]
        self.gaps = [None] * NSTEP
        self.pre = {s: [] for s in range(NSTEP)}
        self.post = {s: [] for s in range(NSTEP)}
        self.regs = {"K": AK, "V": AV, "W": AW, "O": AO}
        self.plan = {}
        for kind in self.regs:
            its = [it for it in self.item if it.kind == kind]
            k = 0
            while k < len(its):
                lo = hi = its[k].slot
                e = k
                while e + 1 < len(its):
                    nl, nh = min(lo, its[e + 1].slot), max(hi, its[e + 1].slot)
                    if nh - nl > 4: break
                    lo, hi = nl, nh
                    e += 1
                for q in range(k, e + 1): self.plan[its[q].name] = lo * SLOT
                k = e + 1
        self.base = {kind: [0] * len(self.regs[kind]) for kind in self.regs}
        self.nunit = 0
        self.fixes = {}
        self.dump_block = {}
        self.rp1_first = {}

    def place_fixes(self):
        for s, lst in self.fixes.items():
            gaps = self.gaps[s]
            for x, lo, hi in lst:
                c = [g for g in range(lo, hi + 1) if gaps[g].free() == 1 and not gaps[g].vm and g != 23]
                if not c: c = [g for g in range(lo, hi + 1) if gaps[g].free() >= 1 and not gaps[g].vm and g != 23]
                if not c: c = [hi]
                gaps[c[0]].va.append(x)

    def frag_reads3(self, it, f, buf):
        win = self.plan[it.name]
        off = it.slot * SLOT - win
        kind = it.kind
        if kind == "K":
            kt, kb = f // 6, f % 6
            ri = kb % 2
            return [(ds_read("ds_read_b128", FB(buf, f % 2), AK[ri], off + kt * 6144 + (kb // 2) * 128), ri, win)]
        ri, j = f % 4, f // 4
        o, d2 = {"V": (off + 128 * j, 6144), "W": (off + 128 * j, 1536), "O": (off + 4096 * j, 2048)}[kind]
        r = self.regs[kind][ri]
        return [(ds_read("ds_read_b64_tr_b16", FBh(buf, f % 2, 0), r, o), ri, win),
                (ds_read("ds_read_b64_tr_b16", FBh(buf, f % 2, 1), r, o + d2), ri, win)]

    def fix(self, kind, ri, win):
        B = self.base[kind]
        if B[ri] == win: return None
        d = win - B[ri]
        B[ri] = win
        r = self.regs[kind][ri]
        return valu("v_add_u32", r, d, r) if d > 0 else valu("v_subrev_u32", r, -d, r)

    def place_reads3(self, gaps, g0, it, grp, cur=None):
        rl = []
        for f in (2 * grp, 2 * grp + 1):
            rl += self.frag_reads3(it, f, grp % 3)
        fx = [x for x in (self.fix(it.kind, ri, win) for _, ri, win in rl) if x is not None]
        if fx:
            same = (cur is not None and cur.kind == it.kind)
            if it.kind == "K":
                lo = 20 if same else 2
            elif g0 == 24:
                lo = 16 if same else 2
            else:
                lo = 22 if same else 2
            self.pending_fix += [(x, lo, g0 - 1) for x in fx]
        pair = self.cfg["dspair_k"] if it.kind == "K" else (self.cfg["dspair_v"] if it.kind == "V" else self.cfg["dspair_w"])
        for k, (ins, ri, win) in enumerate(rl):
            gaps[g0 + (k // 2 if pair else k)].ds.append(ins)
        return len(rl)

    def first_reads3(self, it):
        out = []
        for grp in range(2):
            for f in (2 * grp, 2 * grp + 1):
                for ins, ri, win in self.frag_reads3(it, f, grp % 3):
                    x = self.fix(it.kind, ri, win)
                    if x is not None: out.append(x)
                    out.append(ins)
        for ri in range(len(self.regs[it.kind])):
            x = self.fix(it.kind, ri, self.plan[it.name])
            if x is not None: out.append(x)
        return out

    def x_reads3(self, it):
        u = it.n
        return [ds_read("ds_read_b128", XF(u, half, qb), AX[half], it.slot * SLOT + 2048 * qb) for half in range(2) for qb in range(3)]

    def units(self, it):
        tag = ("item", it.name)
        out = []
        for k in range(it.units):
            so = s_do[self.nunit % 2]
            self.nunit += 1
            nt = False
            if it.kind == "X":
                m0 = salu("s_add_u32", "m0", s_w6144, it.slot * SLOT + 3072 * k)
                off = salu("s_add_u32", so, s_xb, 128 * it.n + 30720 * k)
                vo, sr = DA, SRD_X
                nt = bool(self.cfg["nt_x0"]) if it.h == 0 else bool(self.cfg["nt_x1"])
            else:
                m0 = salu("s_add_u32", "m0", s_w3072, it.slot * SLOT)
                if it.kind in "KV":
                    off = self.kv_off(so, it)
                    vo, sr = DKV, (SRD_K if it.kind == "K" else SRD_V)
                    nt = self.cfg["nt_kv"]
                elif it.kind == "W":
                    off = salu("s_add_u32", so, s_wb, it.h * 384 + it.n * 393216)
                    vo, sr = DB, SRD_W
                    nt = bool(self.cfg["nt_w0"]) if it.h == 0 else bool(self.cfg["nt_w1"])
                else:
                    c, s = o_cs(it.n, self.cfg["hide_n"])
                    off = salu("s_add_u32", so, s_ob, s * 122880 + c * 128)
                    vo, sr = DO, SRD_WO
            out.append((m0, off, [dma(vo[i], sr, so, 1024 * i, nt, tag=tag) for i in range(3)]))
        return out

    def kv_off(self, so, it):
        if self.cfg["kv_rot"] and not self.cfg["kv_same"]:
            return [salu("s_xor_b32", so, s_n0, it.n), salu("s_mul_i32", so, so, 12288),
                    salu("s_add_u32", so, so, s_kvb if it.h == 0 else s_kvb1)]
        imm = it.h * 196608 + (0 if self.cfg["kv_same"] else it.n * 12288)
        return salu("s_add_u32", so, s_kvb, imm)

    def place_dma(self):
        for b in range(NSTEP):
            un = []
            for it in self.seq:
                if it.issue == b and not getattr(it, "reg", False): un += self.units(it)
            assert len(un) <= 4
            if len(un) == 1:
                pos = [[(0, 28), (1, 4), (1, 16)]]
            elif len(un) == 2:
                pos = [[(0, 28), (0, 34), (1, 4)], [(1, 10), (1, 16), (1, 22)]]
            elif len(un) > 2:
                pos = [[(0, 28), (0, 29), (0, 34)], [(1, 2), (1, 4), (1, 5)], [(1, 8), (1, 10), (1, 11)], [(1, 14), (1, 16), (1, 17)]][:len(un)]
            else:
                pos = []
            for (m0, off, ins), ps in zip(un, pos):
                for i, (ds_, gi) in enumerate(ps):
                    g = self.gaps[b + ds_]
                    if i == 0:
                        if isinstance(off, list):
                            (g[gi - 3] if gi >= 3 else self.gaps[b + ds_ - 1][36 + gi - 3]).sc.append(off[0])
                            g[gi - 2].sc += [off[1], m0]; g[gi - 1].sc.append(off[2])
                        else:
                            g[gi - 2].sc.append(m0)
                            g[gi - 1].sc.append(off)
                    if len(un) > 2 and gi % 6 < 4 and g[gi].ds:
                        pass
                    g[gi].vm.append(ins[i])

    def place_reg_tiles(self):
        self.dbase = 0
        for h in range(2):
            its = [self.KV[(h, j)] for j in range(32) if getattr(self.KV[(h, j)], "reg", False)]
            start = float(self.cfg["rp_start0" if h == 0 else "rp_start1"])
            last_s = -1
            for k, it in enumerate(its):
                s = 52 * h + int(start + k * float(self.cfg["rp_space"]))
                if h == 1 and self.cfg["hide_n"]:
                    s = max(s, 52 + int(2.45 * (k // 2 + 1)) + 1)
                while len([gi for gi in (5, 11, 17, 29, 35) if not self.gaps[s][gi].vm]) < 3 or s <= last_s: s += 1
                if h == 1: self.rp1_first[k] = s * 36 + min(gi for gi in (5, 11, 17, 29, 35) if not self.gaps[s][gi].vm)
                last_s = s
                assert s + 2 <= it.issue, (it, s)
                g = self.gaps[s]
                off = self.kv_off(s_rp, it)
                if isinstance(off, list):
                    for q, x in enumerate(off): g[1 + q].sc.append(x)
                else:
                    g[3].sc.append(off)
                free = [gi for gi in (5, 11, 17, 29, 35) if not g[gi].vm][:3]
                assert len(free) == 3, (s, free)
                for i, gi in enumerate(free):
                    g[gi].vm.append(vload(A(12 * k + 4 * i, 4), DKV[i], SRD_K if it.kind == "K" else SRD_V, s_rp, 1024 * i,
                                          " nt" if self.cfg["nt_kv"] else "", tag=("reg", it.name)))
                it.rk = k
            for b in sorted({it.issue for it in its}):
                grp = [it for it in its if it.issue == b]
                wr = []
                for it in grp:
                    off = it.slot * SLOT
                    pre = []
                    if not (0 <= off - self.dbase and off - self.dbase + 2048 + 1024 <= 65536):
                        nb = min(off, (self.R - 5) * SLOT)
                        d = nb - self.dbase
                        self.dbase = nb
                        pre = [valu("v_add_u32", AWR, d, AWR) if d > 0 else valu("v_subrev_u32", AWR, -d, AWR)]
                    wr.append((it, pre, [ds_write(AWR, A(12 * it.rk + 4 * i, 4), off - self.dbase + 1024 * i, tag=("dump", it.name)) for i in range(3)]))
                if b % 52 == 19:
                    blk = []
                    for it, pre, w in wr: blk += [WaitTag([("reg", it.name)])] + pre + w
                    self.dump_block[b] = blk
                    continue
                cand = [(b, gi) for gi in range(24, 36)] + [(b + 1, gi) for gi in range(0, 22)]
                ci = 0
                for it, pre, w in wr:
                    first = True
                    for x in w:
                        while True:
                            st_, gi = cand[ci]
                            gp = self.gaps[st_][gi]
                            ok = not gp.vm and gp.free() >= 1 and len(gp.ds) < 2
                            if first and pre:
                                pst, pg = cand[ci - 1] if ci > 0 else (None, None)
                                ok = ok and ci > 0
                            if ok: break
                            ci += 1
                        if first:
                            gp.sc.append(WaitTag([("reg", it.name)]))
                            if pre:
                                pst, pg = cand[ci - 1]
                                self.gaps[pst][pg].va += pre
                            first = False
                        gp.ds.append(x)
                        ci += 1

    def frame3(self, s, mf):
        it = self.item[s]
        nx = self.item[s + 1] if s + 1 < NSTEP else None
        gaps = [Gap(mf(i, FB((i // 6) % 3, (i // 3) % 2))) for i in range(36)]
        nds = [0] * 6
        self.pending_fix = []
        for Gi in range(6):
            if Gi < 4:
                nds[Gi] = self.place_reads3(gaps, 6 * Gi, it, Gi + 2)
            elif nx is not None:
                nds[Gi] = self.place_reads3(gaps, 6 * Gi, nx, Gi - 4, cur=it)
        xs = [x for x in self.X.values() if x.need == s]
        if xs:
            rd = self.x_reads3(xs[0])
            for k, gi in enumerate((24, 25, 26, 27, 30, 31)):
                gaps[gi].ds.append(rd[k])
            nds[4] += 4
            nds[5] += 2
        need = [("item", x.name) for x in self.seq if x.need == s]
        for Gi in range(6):
            gi = 6 * Gi + 5
            if Gi == 3 and nx is not None:
                lt = [("dump", x.name) for x in self.seq if x.need == s]
                bar = barrier()
                bar.info = lt
                gaps[gi].sc += [WaitTag(need, lgkm="auto", ltags=lt), bar]
            elif Gi == 5:
                if nx is not None: gaps[gi].sc.append(WaitTag([], lgkm="auto"))
            else:
                gaps[gi].sc.append(WaitTag([], lgkm="auto"))
        self.fixes[s] = self.pending_fix
        if self.cfg["steptime"]:
            gaps[24].post.append(I("s_memtime s[92:93]", "salu"))
            gaps[33].post += [raw("s_waitcnt lgkmcnt(0)"), raw(f"v_writelane_b32 v{253 + s // 64}, s92, {s % 64}", "valu")]
        self.gaps[s] = gaps

    def build_frames(self):
        for h in range(2):
            for t in range(20):
                def mf(i, fr, t=t):
                    T, qb = i // 3, i % 3
                    return mfma(ACC(T, qb), fr, XF(t // 2, t % 2, qb), 0 if t == 0 else ACC(T, qb))
                self.frame3(52 * h + t, mf)
            for j in range(32):
                kind, n = a_item(j)
                p = n % 2
                if kind == "K":
                    def mf(i, fr, p=p, n=n):
                        f, qb = i // 3, i % 3
                        kt, kb = f // 6, f % 6
                        c = (0 if n < 2 else NEGM(qb)) if kb == 0 else SB(p, kt, qb)
                        return mfma(SB(p, kt, qb), fr, QF(kb, qb), c)
                else:
                    def mf(i, fr, p=p, n=n):
                        T, qb = i // 3, i % 3
                        return mfma(OA(T, qb), fr, PB(p, qb), 0 if n == 0 else OA(T, qb))
                self.frame3(52 * h + 20 + j, mf)
        for j in range(40):
            c, s = o_cs(j, self.cfg["hide_n"])

            def mf(i, fr, s=s, p=c % 2):
                f, qb = i // 3, i % 3
                jj, nt = f // 4, f % 4
                ks = 3 * s + jj
                h, kb = ks // 6, ks % 6
                b = O0P(kb, qb) if h == 0 else QF(kb, qb)
                return mfma(OACC(p, nt, qb), fr, b, 0 if ks == 0 else OACC(p, nt, qb))
            self.frame3(104 + j, mf)

    def a_fill(self, h):
        s0 = 52 * h + 20
        gaps = [g for j in range(32) for g in self.gaps[s0 + j]]
        Gx = lambda j, i=0: 36 * j + i
        mops, fin = self.max_ops(0)
        for o in mops: o.earliest = Gx(1, 0)
        sm0, _ = self.softmax_ops(0, sub_deps=fin, earliest_kt=(Gx(1, 0), Gx(1, 2)))
        pend = list_schedule(gaps, mops + sm0, Gx(1, 0), Gx(2, 0))
        self.post[s0 + 1] += autonop(self.emit_tail(pend)) + [valu("v_mov_b32", L(qb), LT(qb)) for qb in range(3)]
        for n in range(1, 16):
            p = n % 2
            j0 = 2 * n
            j1 = j0 + 2 if n <= 14 else j0 + 1
            sub = [None, None, None] if n == 1 else None
            sm, ltl = self.softmax_ops(p, sub_deps=sub, earliest_kt=(Gx(j0, 0), Gx(j0, 3)), lacc=(n > 1))
            pend = list_schedule(gaps, sm + self.check_ops(ltl, p), Gx(j0, 0), Gx(j1, 0))
            self.post[s0 + j1 - 1] += autonop(self.emit_tail(pend)) + self.check_branch(p)
            if n == 15: self.post[s0 + j1 - 1] += self.l_acc()

    RINV = [V(192), V(193), V(194)]

    def rinv_fill(self, h):
        gaps = self.gaps[52 * h + 51]
        y = [MT(3 + qb) for qb in range(3)]
        dst = self.RINV if h == 0 else [MT(8), MT(9), MT(10)]
        ops, prev = [], [None] * 3
        for sw in ("v_permlane32_swap_b32", "v_permlane16_swap_b32"):
            for qb in range(3):
                o = Op(valu("v_mov_b32", y[qb], L(qb)), [(prev[qb], 0)] if prev[qb] else []); ops.append(o); prev[qb] = o
            for qb in range(3):
                o = Op(perm(sw, L(qb), y[qb]), [(prev[qb], 2)]); ops.append(o); prev[qb] = o
            for qb in range(3):
                o = Op(valu("v_add_f32", L(qb), L(qb), y[qb]), [(prev[qb], 1)]); ops.append(o); prev[qb] = o
        for qb in range(3):
            o = Op(vrcp(dst[qb], L(qb)), [(prev[qb], 0)]); ops.append(o)
        assert not list_schedule(gaps, ops, 0, 36)

    def norm_ops(self, h, tsets, rinv):
        ops, last_use, rd_last, unit_last = [], [[] for _ in tsets], {}, {}
        k = 0
        for kb in range(6):
            for qb in range(3):
                ts = k % len(tsets)
                t = tsets[ts]
                dep0 = [(x, 0) for x in last_use[ts]]
                rds = []
                for tt, T in enumerate((2 * kb, 2 * kb + 1)):
                    for r in range(4):
                        o = Op(I(f"v_accvgpr_read_b32 v{t + 4 * tt + r}, {rtxt(OAr(T, qb, r))}", "valu", [V(t + 4 * tt + r)], [OAr(T, qb, r)]), list(dep0))
                        ops.append(o); rds.append(o)
                        rd_last[T] = o
                mul = []
                for r in range(8):
                    o = Op(valu("v_mul_f32", V(t + r), V(t + r), rinv[qb]), [(rds[r], 0)]); ops.append(o); mul.append(o)
                cv = []
                for r in range(4):
                    d = V(t + r) if h == 0 else QFr(kb, qb, r)
                    deps = [(mul[2 * r], 0), (mul[2 * r + 1], 0)] + ([(cv[-1], 0)] if cv and h == 0 else [])
                    o = Op(valu("v_cvt_pk_bf16_f32", d, V(t + 2 * r), V(t + 2 * r + 1)), deps); ops.append(o); cv.append(o)
                fin = cv
                if h == 0:
                    fin = []
                    for r in range(4):
                        o = Op(I(f"v_accvgpr_write_b32 {rtxt(O0Pr(kb, qb, r))}, v{t + r}", "valu", [O0Pr(kb, qb, r)], [V(t + r)]), [(cv[r], 0), (cv[-1], 0)])
                        ops.append(o); fin.append(o)
                last_use[ts] = fin
                unit_last[(kb, qb)] = fin
                k += 1
        return ops, rd_last, unit_last

    def n0_fill(self):
        gaps = [g for s in range(52, 72) for g in self.gaps[s]]
        ops, rd_last, _ = self.norm_ops(0, [198, 206], self.RINV)
        pend = list_schedule(gaps, ops, 0, 36 * 19)
        assert not pend, len(pend)
        self.n0_free = {T: 52 * 36 + o.gap for T, o in rd_last.items()}
        for k, g0 in self.rp1_first.items():
            assert self.n0_free[k] < g0, (k, self.n0_free[k], g0)

    def n1_fill(self):
        gaps = [g for j in range(8) for g in self.gaps[104 + j]]
        rinv = [MT(8), MT(9), MT(10)]
        ops, _, unit_last = self.norm_ops(1, [112, 120], rinv)
        done = []
        lim = {kb: 36 * (4 + kb // 3) + 12 * (kb % 3) - 1 for kb in range(6)}
        g = 0
        rest = ops
        for kb in range(6):
            mine = [o for o in rest if any(o in unit_ops for unit_ops in [self._unit_ops(ops, kb)])]
            pend = list_schedule(gaps, mine, g, lim[kb])
            if pend:
                gi = lim[kb]
                gaps[gi].post += autonop([o.ins for o in pend]) + [nop(1)]
                for o in pend: o.gap = gi + 1
            rest = [o for o in rest if o not in mine]

    def _unit_ops(self, ops, kb):
        return ops[60 * kb:60 * kb + 60]

    def n_block(self, h):
        out = []
        if h == 1 and self.cfg["fused"]:
            out += self.hu_setup()
        out += self.rinv_ops()
        tmp = [V(0 + 8 * k, 8) for k in range(3)]
        pk = [V(24 + 4 * k, 4) for k in range(3)]
        for kb in range(6):
            for qb in range(3):
                t = tmp[qb][1]
                for tt, T in enumerate((2 * kb, 2 * kb + 1)):
                    for r in range(4):
                        out.append(I(f"v_accvgpr_read_b32 v{t + 4 * tt + r}, {rtxt(OAr(T, qb, r))}", "valu",
                                     [V(t + 4 * tt + r)], [OAr(T, qb, r)]))
            for qb in range(3):
                t = tmp[qb][1]
                for h2 in range(4):
                    out.append(valu("v_pk_mul_f32", V(t + 2 * h2, 2), V(t + 2 * h2, 2), V(MT(8 + 2 * qb)[1], 2)))
            for qb in range(3):
                t = tmp[qb][1]
                for r in range(4):
                    d = V(pk[qb][1] + r) if h == 0 else QFr(kb, qb, r)
                    out.append(valu("v_cvt_pk_bf16_f32", d, V(t + 2 * r), V(t + 2 * r + 1)))
            if h == 0:
                for qb in range(3):
                    for r in range(4):
                        out.append(I(f"v_accvgpr_write_b32 {rtxt(O0Pr(kb, qb, r))}, v{pk[qb][1] + r}", "valu",
                                     [O0Pr(kb, qb, r)], [V(pk[qb][1] + r)]))
        return autonop(out)

    def o_fill(self):
        gaps = [g for j in range(40) for g in self.gaps[104 + j]]

        def cvts(p):
            ops = []
            for ntp in range(2):
                for qb in range(3):
                    u = ntp * 3 + qb
                    for h in range(2):
                        a = OACC(p, 2 * ntp + h, qb)[1]
                        ops.append(valu("v_cvt_pk_bf16_f32", CTr(u, 2 * h), V(a), V(a + 1)))
                        ops.append(valu("v_cvt_pk_bf16_f32", CTr(u, 2 * h + 1), V(a + 2), V(a + 3)))
            return ops

        def store(u, c):
            return vstore(CT(u), PSV, SRD_WS, s_pst[u // 4], (u % 4) * 1024, self.cfg["pst_flags"], tag=("st", c))

        spos = [(0, 22), (0, 34), (1, 10), (1, 22), (1, 34), (2, 10)]
        last_step = {}
        for j in range(40): last_step[o_cs(j, self.cfg["hide_n"])[0]] = j
        prev_store_gap = -1
        for c in range(9):
            j0 = last_step[c] + 1
            g0 = 36 * j0
            e0 = max(g0 + 3, prev_store_gap + 1)
            ops = [Op(x, earliest=e0) for x in cvts(c % 2)]
            pos = [g0 + 36 * s + gi for s, gi in spos]
            pos = [p_ for p_ in pos if p_ > e0 + 8]
            k = 3
            while len(pos) < 6:
                nxt = g0 + 36 * (k // 1) + (10, 22, 34)[0]
                for gi in (10, 22, 34):
                    p_ = g0 + 36 * 2 + gi if k == 3 else g0 + 36 * (k - 1) + gi
                    if p_ not in pos and p_ > (pos[-1] if pos else 0) and len(pos) < 6: pos.append(p_)
                k += 1
            for u, p_ in enumerate(pos):
                if not self.cfg["no_st"]:
                    gaps[p_].vm.append(store(u, c))
            assert not list_schedule(gaps, ops, e0, e0 + 40)
            for u, p_ in enumerate(pos):
                assert max(o.gap for o in ops[4 * u:4 * u + 4]) < p_, (c, u, p_)
            prev_store_gap = pos[-1]
            self.last_store = getattr(self, "last_store", {})
            self.last_store[c] = pos[-1]
            ga = pos[-1] + 1
            gaps[ga].sc.append(salu("s_add_u32", s_pst[0], s_pst[0], 24576))
            gaps[ga + 1].sc.append(salu("s_add_u32", s_pst[1], s_pst[1], 24576))
        fused = self.cfg["fused"]
        if fused:
            self.hu_fill(gaps)
        tail = autonop([nop(7)] + cvts(1) + [store(u, 9) for u in range(6)])
        if fused: tail += self.hu_tail()
        self.post[143] += tail

    HU_NEED = [1, 2, 3, 5, 6, 7, 8, 9]
    HU_BASE = [0, 64, 128, 192, 256, 320, 384, 432]
    HU_LIM = [480, 480, 480, 480, 480, 480, 432, 480]

    def hu_buf(self, rho, t): return A(32 * (rho % 4 if rho in self.hu_inloop else rho) + 4 * t, 4)

    def hu_load(self, rho, t):
        return vload(self.hu_buf(rho, t), VHL, SRD_WS, s_rl2[rho % 2], 0, self.cfg["red_flags"], tag=("red", rho, t))

    def hu_adv(self, rho):
        return salu("s_add_u32", s_rl2[rho % 2], s_rl2[rho % 2], 2 * 245760)

    def hu_mfma(self, rho):
        o = []
        for t in range(8):
            if t % 4 == 0: o.append(WaitTag([("red", rho, t + 3)]))
            o.append(mfma(RD[0], SEL[0], self.hu_buf(rho, t), 0 if t == 0 else RD[0]))
        a = RD[0][1]
        o += [nop(7), valu("v_cvt_pk_bf16_f32", V(RD[1][1]), V(a), V(a + 1)), valu("v_cvt_pk_bf16_f32", V(RD[1][1] + 1), V(a + 2), V(a + 3)),
              vstore(V(RD[1][1], 2), VOUT, SRD_OUT, s_ro[rho % 2], 0, self.cfg["out_flags"], tag=("out", rho), width=2), nop(1)]
        return self.hu_out_off(rho) + o

    def hu_out_off(self, rho):
        hu, n, c, rem, w2, u, ntp, a = s_t[0], s_t[1], s_t[2], s_t[3], S(100), S(101), S(61), s_ro[rho % 2]
        o = [salu("s_add_u32", hu, s_kw, self.HU_BASE[rho]), salu("s_lshr_b32", n, hu, 1),
             salu("s_mul_hi_u32", c, n, (2 ** 32 + 23) // 24), salu("s_mul_i32", rem, c, 24), salu("s_sub_u32", rem, n, rem),
             salu("s_mul_hi_u32", w2, rem, (2 ** 32 + 5) // 6), salu("s_mul_i32", u, w2, 6), salu("s_sub_u32", u, rem, u),
             salu("s_mul_hi_u32", ntp, u, (2 ** 32 + 2) // 3), salu("s_mul_i32", rem, ntp, 3), salu("s_sub_u32", u, u, rem),
             salu("s_mul_i32", a, s_b, 192), salu("s_mul_i32", w2, w2, 48), salu("s_add_u32", a, a, w2),
             salu("s_lshl_b32", u, u, 4), salu("s_add_u32", a, a, u), salu("s_mul_i32", a, a, 1280),
             salu("s_lshl_b32", c, c, 7), salu("s_add_u32", a, a, c), salu("s_lshl_b32", ntp, ntp, 6), salu("s_add_u32", a, a, ntp),
             salu("s_and_b32", n, hu, 1), salu("s_lshl_b32", n, n, 4), salu("s_add_u32", a, a, n)]
        if rho >= 6:
            o += [scmp("s_cmp_ge_u32", hu, self.HU_LIM[rho]), salu("s_cselect_b32", a, 0x7FFF0000, a)]
        return o

    def hu_base(self, rho):
        return salu("s_add_u32", s_rl2[rho % 2], s_pb, 512 * self.HU_BASE[rho])

    def hu_setup(self):
        lane, g_, m_, t0, t1 = V(96), V(97), V(98), V(99), V(100)
        o = srd(SRD_OUT, None, 16 * 192 * 640 * 2, s_outp)
        o += [WaitTag([("chk",)]), scmp("s_cmp_eq_u32", s_w, 0), branch("s_cbranch_scc0", "L_chk_ok"),
              I(f"v_readfirstlane_b32 {rtxt(s_t[1])}, {rtxt(VCHK)}", "valu", [s_t[1]], [VCHK]), raw("s_nop 3"),
              scmp("s_cmp_ge_u32", s_t[1], 16), branch("s_cbranch_scc1", "L_chk_ok"),
              salu("s_mov_b32", s_t[0], 1 << 18), label("L_chk_loop"),
              salu("s_sub_u32", s_t[0], s_t[0], 1), branch("s_cbranch_scc1", "L_chk_ok"), raw("s_sleep 8"),
              I(f"buffer_load_dword {rtxt(VCHK)}, {rtxt(VFO)}, {rtxt(SRD_DBG)}, {rtxt(s_b16)} offen sc1", "salu"), raw("s_waitcnt vmcnt(0)"),
              I(f"v_readfirstlane_b32 {rtxt(s_t[1])}, {rtxt(VCHK)}", "salu"), raw("s_nop 3"),
              scmp("s_cmp_ge_u32", s_t[1], 16), branch("s_cbranch_scc0", "L_chk_loop"), label("L_chk_ok")]
        cnd = lambda d, a, b: I(f"v_cndmask_b32 {rtxt(d)}, {rtxt(a)}, {rtxt(b)}, vcc", "valu", [d], [a, b])
        cmp_ = lambda txt, u: I(txt, "valu", [], [u])
        o += [valu("v_and_b32", lane, 63, TID), valu("v_lshrrev_b32", g_, 4, lane), valu("v_and_b32", m_, 15, lane),
              valu("v_mov_b32", VZ, 0),
              valu("v_mul_u32_u24", t0, 1280, m_), valu("v_and_b32", t1, 1, g_), valu("v_lshlrev_b32", t1, 5, t1), valu("v_add_u32", t0, t0, t1),
              valu("v_lshrrev_b32", t1, 1, g_), valu("v_lshlrev_b32", t1, 3, t1), valu("v_add_u32", VOUT, t0, t1),
              valu("v_lshrrev_b32", t0, 5, lane), valu("v_mul_u32_u24", t0, 245760, t0), valu("v_and_b32", t1, 31, lane),
              valu("v_lshlrev_b32", t1, 4, t1), valu("v_add_u32", VHL, t0, t1),
              valu("v_lshlrev_b32", t0, 2, TID), valu("v_mov_b32", VPOLL, 0x7FFFFF00),
              cmp_(f"v_cmp_gt_u32 vcc, 16, {rtxt(TID)}", TID), nop(1), cnd(VPOLL, VPOLL, t0),
              valu("v_and_b32", t0, 1, m_), valu("v_lshlrev_b32", t0, 4, t0), valu("v_mov_b32", t1, 0x3F80), valu("v_lshlrev_b32", t1, t0, t1),
              valu("v_lshrrev_b32", t0, 3, m_), valu("v_and_b32", g_, 1, g_),
              cmp_(f"v_cmp_eq_u32 vcc, {rtxt(t0)}, {rtxt(g_)}", t0), nop(1), cnd(t1, VZ, t1),
              valu("v_lshrrev_b32", t0, 1, m_), valu("v_and_b32", t0, 3, t0)]
        for d in range(4):
            o += [cmp_(f"v_cmp_eq_u32 vcc, {d}, {rtxt(t0)}", t0), nop(1), cnd(V(SEL[0][1] + d), VZ, t1)]
        o += [salu("s_lshl_b32", s_b16, s_b, 8), salu("s_add_u32", s_b16, s_b16, FLAG_OFF),
              salu("s_lshl_b32", s_t[0], s_pj, 2), salu("s_add_u32", s_t[5], s_b16, s_t[0]), salu("s_add_u32", s_kw, s_t[0], s_w),
              salu("s_mul_i32", s_pb, s_b, 16 * 245760), salu("s_lshl_b32", s_t[0], s_kw, 9), salu("s_add_u32", s_pb, s_pb, s_t[0]),
              salu("s_add_u32", s_pb, s_pb, PART_OFF)]
        return o

    def add_wait_tag(self, gaps, fs, tag):
        for x in gaps[36 * fs + 23].sc:
            if isinstance(x, WaitTag):
                x.tag = ("waittag", x.tag[1] + (tag,))

    def hu_fill(self, gaps):
        d_flag, d_poll, d_chk = int(self.cfg["d_flag"]), int(self.cfg["d_poll"]), int(self.cfg["d_chk"])
        n_in = int(self.cfg["hu_in"])
        self.hu_pending = []
        self.hu_inloop = set()
        published = set()
        for rho in range(8):
            c = self.HU_NEED[rho]
            if c >= 8: break
            fs = self.last_store[c] // 36 + d_flag
            if c not in published and fs <= 38:
                published.add(c)
                self.add_wait_tag(gaps, fs, ("st", c))
                gaps[36 * fs + 24].va.insert(0, valu("v_mov_b32", VFV, c + 1))
                gaps[36 * fs + 29].vm.append(self.flag_store())
            ps = fs + d_poll
            cs = ps + d_chk
            if rho >= n_in or cs > 38:
                self.hu_pending.append((rho, 0))
                continue
            self.hu_inloop.add(rho)
            gaps[36 * ps + 35].vm.append(self.poll_load(("poll", rho)))
            self.post[104 + cs - 1] += self.check_spin(c + 1, f"L_sp{rho}", WaitTag([("poll", rho)])) + [self.hu_base(rho)]
            t, st_ = 0, cs
            while t < 8 and st_ < 40:
                for gi in sorted((35, 11, 17)[:int(self.cfg['hu_per'])]):
                    if t == 8: break
                    if st_ == cs and gi < 24: continue
                    g = gaps[36 * st_ + gi]
                    if g.vm: continue
                    g.vm.append(self.hu_load(rho, t))
                    g.post.append(self.hu_adv(rho))
                    t += 1
                st_ += 1
            self.hu_end = getattr(self, "hu_end", {})
            self.hu_end[rho] = st_
            if rho - 2 in self.hu_end: assert self.hu_end[rho - 2] <= cs, (rho, self.hu_end, cs)
            ms = st_ + int(self.cfg["d_mfma"])
            if t == 8 and ms <= 39:
                self.post[104 + ms - 1] += self.hu_mfma(rho)
            else:
                self.hu_pending.append((rho, t, "polled"))

    def hu_tail(self):
        pend = self.hu_pending
        ready = [p[0] for p in pend if len(p) == 3 and p[1] == 8]
        partial = [(p[0], p[1]) for p in pend if len(p) == 3 and p[1] < 8]
        late = [p[0] for p in pend if len(p) == 2]
        flag = lambda k: [valu("v_mov_b32", VFV, k), self.flag_store()]

        def loads(r, t0=0):
            o = [self.hu_base(r)] if t0 == 0 else []
            for t in range(t0, 8): o += [self.hu_load(r, t), self.hu_adv(r)]
            return o
        o = self.tstamp(0)
        if late: o += [self.poll_load(("poll", "late"))]
        o += [WaitTag([("st", 8)]), barrier()] + flag(9)
        for r in ready: o += self.hu_mfma(r)
        o += self.tstamp(1)
        o += [WaitTag([("st", 9)]), barrier()] + self.tstamp(2) + flag(10)
        inflight = []
        for r, t0 in partial:
            o += loads(r, t0)
            inflight.append(r)
        if late:
            c = max(self.HU_NEED[r] for r in late)
            o += self.check_spin(c + 1, "L_spl", WaitTag([("poll", "late")])) + [barrier()]
            for r in late:
                if len(inflight) >= 4: o += self.hu_mfma(inflight.pop(0))
                o += loads(r)
                inflight.append(r)
        o += self.tstamp(3)
        o += [self.poll_load(("poll", 9))]
        while len(inflight) > 1: o += self.hu_mfma(inflight.pop(0))
        o += self.check_spin(9, "L_sp9", WaitTag([("poll", 9)])) + [barrier()] + self.tstamp(4)
        o += loads(6) + [self.poll_load(("poll", "fin"))]
        for r in inflight: o += self.hu_mfma(r)
        o += self.tstamp(5) + self.check_spin(10, "L_spf", WaitTag([("poll", "fin")])) + [barrier()] + self.tstamp(6)
        o += loads(7) + self.tstamp(7) + self.hu_mfma(6) + self.tstamp(8) + self.hu_mfma(7) + self.tstamp(9) + self.tstamp(10)
        return o

    def tstamp(self, k):
        if not self.cfg["steptime"]: return []
        return [I("s_memtime s[92:93]", "salu"), raw("s_waitcnt lgkmcnt(0)"), raw(f"v_writelane_b32 v255, s92, {20 + k}", "valu")]


def stamp(k):
    return [I("s_memtime s[56:57]", "salu"), raw("s_waitcnt lgkmcnt(0)"), salu("s_mov_b32", S(64 + k), S(56))]


def main_kernel(cfg):
    g = Gen3(cfg)
    T = cfg["timing"]
    pro = [label("mha_main_kernel"), scmp("s_cmp_ge_u32", S(2), 256), branch("s_cbranch_scc1", "L_main_exit"),
           raw("s_load_dwordx16 s[64:79], s[0:1], 0")]
    if cfg["pf_entry"]:
        pro += [I("s_getpc_b64 s[56:57]", "salu"), label("L_pce"), raw("s_add_u32 s56, s56, mha_main_kernel-L_pce"), raw("s_addc_u32 s57, s57, -1") if False else raw("s_subb_u32 s57, s57, 0") if False else raw("s_nop 0"),
                ]
        pro = pro[:-4] + [I("s_getpc_b64 s[56:57]", "salu"), label("L_pce"),
                raw("s_and_b32 s56, s56, 0xffffff00"),
                valu("v_lshlrev_b32", V(1), 7, V(0)), raw("v_mov_b32 v3, s57", "valu"),
                raw("v_add_co_u32 v2, vcc, s56, v1", "valu"), raw("s_nop 1"), raw("v_addc_co_u32 v3, vcc, 0, v3, vcc", "valu"),
                I(f"global_load_dword {rtxt(JUNK)}, v[2:3], off", "vmem", [], [])]
    lane_ops = []
    wreg = build_lane_consts(lane_ops)
    t0, t1 = s_t[0], s_t[1]
    nb = int(cfg["map_nb"]); npair = 32 // nb
    lg = lambda v: v.bit_length() - 1
    seen = set()
    for wg in range(256):
        a0, j = wg & 7, wg >> 3
        pj = (j & (npair - 1)) + ((a0 & (16 // npair - 1)) << lg(npair))
        bb = (j >> lg(npair)) + ((a0 >> lg(16 // npair)) << lg(nb))
        seen.add((bb, pj))
    assert len(seen) == 256
    ids = [
        salu("s_and_b32", t0, S(2), 7), salu("s_lshr_b32", t1, S(2), 3),
        salu("s_and_b32", s_pj, t1, npair - 1), salu("s_lshr_b32", s_b, t1, lg(npair)),
        salu("s_and_b32", t1, t0, 16 // npair - 1), salu("s_lshl_b32", t1, t1, lg(npair)), salu("s_add_u32", s_pj, s_pj, t1),
        salu("s_lshr_b32", t0, t0, lg(16 // npair)), salu("s_lshl_b32", t0, t0, lg(nb)), salu("s_add_u32", s_b, s_b, t0),
        salu("s_lshl_b32", s_h0, s_pj, 1),
        salu("s_mul_i32", s_wb, s_h0, 384), salu("s_mul_i32", s_xb, s_b, 245760)]
    wave_sc = [salu("s_mul_i32", s_w3072, s_w, 3072), salu("s_lshl_b32", s_w6144, s_w3072, 1)]
    srd_first = srd(SRD_X, 64, 16 * 192 * 640 * 2) + srd(SRD_W, 70, 640 * 6144 * 2)
    srd_rest = srd(SRD_K, 66, 16 * 32 * 512 * 192 * 2) + srd(SRD_V, 68, 16 * 32 * 512 * 192 * 2)
    srd_rest += srd(SRD_WO, 72, 6144 * 640 * 2) + srd(SRD_WS, 78, 402653184)
    srd_rest += [salu("s_mov_b32", s_outp[0], S(74)), salu("s_mov_b32", s_outp[1], S(75)),
                 salu("s_mov_b32", s_dbgp[0], S(76)), salu("s_mov_b32", s_dbgp[1], S(77))]
    sc_rest = [
        salu("s_lshl_b32", t0, s_b, 5), salu("s_add_u32", t0, t0, s_h0), salu("s_mul_i32", s_kvb, t0, 196608),
        salu("s_add_u32", s_kvb1, s_kvb, 196608),
        salu("s_lshr_b32", s_n0, S(2), int(cfg["rot_shift"])), salu("s_mul_i32", s_n0, s_n0, int(cfg["rot_mul"])), salu("s_and_b32", s_n0, s_n0, 15),
        salu("s_mul_i32", s_ob, s_h0, 245760),
        salu("s_lshl_b32", t0, s_b, 4), salu("s_add_u32", t0, t0, s_pj),
        salu("s_mul_i32", s_pst[0], t0, 245760), salu("s_add_u32", s_pst[0], s_pst[0], PART_OFF),
        salu("s_add_u32", s_pst[1], s_pst[0], 4096),
        salu("s_mov_b32", s_thr, THR_BITS), salu("s_mov_b32", S(48), C_BITS), salu("s_mov_b32", S(49), C_BITS),
    ]
    clr = []
    if cfg["fused"]:
        clr = [salu("s_lshl_b32", t0, s_b, 8), salu("s_lshl_b32", t1, s_pj, 2), salu("s_add_u32", t0, t0, t1),
               salu("s_add_u32", t0, t0, FLAG_OFF), valu("v_mov_b32", PT(8), 0),
               vstore(PT(8), VFO, SRD_WS, t0, 0, " sc1", tag=("clr",), width=1)]
    rfl = [nop(0), I(f"v_readfirstlane_b32 {rtxt(s_w)}, {rtxt(wreg)}", "valu", [s_w], [wreg])]
    first = [it for it in g.seq if it.issue == -1]
    first_tiles = []
    for it in first:
        for m0, off, ins in g.units(it):
            first_tiles += [m0] + (off if isinstance(off, list) else [off]) + [nop(0)] + ins
    if cfg["fast_pro"]:
        need = set()
        for r in DA + DB + [wreg]: need |= regs(r)
        keep = []
        for ins in reversed(lane_ops):
            if ins.defs & need:
                keep.append(ins)
                if not (ins.defs <= ins.uses): need -= ins.defs
                need |= {u for u in ins.uses if u[0] == "v"}
        keep.reverse()
        pro += ids + keep + rfl + [raw("s_waitcnt lgkmcnt(0)")] + srd_first + wave_sc
        if T: pro += [I("s_memrealtime s[86:87]", "salu")]
        pro += first_tiles
        pro += lane_ops + srd_rest + sc_rest + clr
        if T: pro += stamp(0)
    else:
        pro += lane_ops + rfl + [raw("s_waitcnt lgkmcnt(0)")] + srd_first + srd_rest + ids + wave_sc + sc_rest
        if T: pro += [I("s_memrealtime s[86:87]", "salu")] + stamp(0)
        pro += clr

    gw = S(59)
    lane, lane128 = PT(3), PT(2)
    OOB = 0x7FFFFF00

    def masked(dst, src, n):
        return [valu("v_mov_b32", dst, OOB), raw(f"v_cmp_gt_u32 vcc, {n}, {rtxt(lane)}", "valu"), raw("s_nop 1"),
                raw(f"v_cndmask_b32 {rtxt(dst)}, {rtxt(dst)}, {rtxt(src)}, vcc", "valu")]
    pfs = [salu("s_lshl_b32", gw, S(2), 2), salu("s_add_u32", gw, gw, s_w),
           valu("v_and_b32", lane, 63, TID), valu("v_lshlrev_b32", lane128, 7, lane),
           valu("v_mul_u32_u24", PT(5), 21846, lane), valu("v_lshrrev_b32", PT(5), 16, PT(5)),
           valu("v_mul_u32_u24", PT(6), 3, PT(5)), valu("v_sub_u32", PT(6), lane, PT(6)),
           valu("v_mul_u32_u24", PT(5), 12288, PT(5)), valu("v_lshlrev_b32", PT(6), 7, PT(6)), valu("v_add_u32", PT(5), PT(5), PT(6))]
    pfs += masked(VTK[0], PT(5), 30) + masked(VTK[1], lane128, 60) + masked(PT(4), lane128, 30)
    pfs += [salu("s_and_b32", t0, gw, 15), salu("s_mul_i32", t0, t0, 768), salu("s_lshr_b32", S(100), gw, 4),
            salu("s_mul_i32", S(100), S(100), 122880), salu("s_add_u32", S(100), S(100), t0), salu("s_mul_i32", S(101), gw, 7680)]
    start = []
    if "x" in cfg["pf_start"]:
        start += [salu("s_mul_i32", t0, gw, 3840), pf_load(PT(4), SRD_X, t0)]
    if "w" in cfg["pf_start"]:
        start += [pf_load(VTK[0], SRD_W, S(100))]
    if "1" in cfg["pf_start"]:
        start += [salu("s_add_u32", t0, S(100), 384), pf_load(VTK[0], SRD_W, t0)]
    code_steps = cfg["_code_steps"]
    pfs2 = []
    if cfg["pf_code"]:
        pfs2 += [valu("v_and_b32", PT(7), 31, lane), valu("v_lshlrev_b32", PT(7), 7, PT(7)),
                 salu("s_lshl_b32", t0, s_w, 12), valu("v_add_u32", VL128, t0, PT(7))]
    if int(cfg["pf_start_step"]) == -2:
        pro += pfs + start
        pfs, start = [], []
    pfs += pfs2
    pfs += [valu("v_and_b32", PT(7), 63, TID), valu("v_lshlrev_b32", PT(7), 4, PT(7)), valu("v_add_u32", AWR, s_w3072, PT(7))]

    if not cfg["fast_pro"]: pro += first_tiles
    if cfg["tlb"]:
        tl = [valu("v_and_b32", PT(9), 1, TID)]
        for what in str(cfg["tlb"]):
            if what in "kv":
                tl += [valu("v_mul_u32_u24", PT(10), 393216 - 128, PT(9)), pf_load(PT(10), SRD_K if what == "k" else SRD_V, s_kvb)]
            elif what == "o":
                tl += [valu("v_mul_u32_u24", PT(10), 491520 - 128, PT(9)), pf_load(PT(10), SRD_WO, s_ob)]
            elif what == "p":
                tl += [valu("v_mul_u32_u24", PT(10), 245760 - 128, PT(9)), pf_load(PT(10), SRD_WS, s_pst[0])]
        pro += tl
    pro += pfs
    if cfg["pf_code"]:
        for k, st_ in enumerate(code_steps):
            if st_ < 0 and not (cfg["pf_entry"] and k == 0): pro += code_pf(f"L_code+{16384 * k}", sub=int(cfg["pf_sub"]))
    if cfg["pf_code_all"]:
        pro += [valu("v_lshlrev_b32", PT(9), 7, TID), valu("v_mov_b32", PT(10), S(2)), valu("v_lshlrev_b32", PT(10), 9, PT(10)),
                valu("v_add_u32", PT(9), PT(9), PT(10)),
                I("s_getpc_b64 s[56:57]", "salu"), label("L_pcall"), raw("s_add_u32 s56, s56, L_code-L_pcall"), raw("s_addc_u32 s57, s57, 0"),
                raw(f"v_mov_b32 v{VPC[1] + 1}, s57", "valu"), raw(f"v_add_co_u32 v{VPC[1]}, vcc, s56, {rtxt(PT(9))}", "valu"), raw("s_nop 1"),
                raw(f"v_addc_co_u32 v{VPC[1] + 1}, vcc, 0, v{VPC[1] + 1}, vcc", "valu"),
                raw(f"v_cmp_gt_u32 vcc, 4, {rtxt(TID)}", "valu"), raw("s_and_saveexec_b64 s[56:57], vcc"),
                raw("s_cbranch_execz L_pcall_skip"),
                I(f"global_load_dword {rtxt(JUNK)}, {rtxt(VPC)}, off", "salu", [], []), label("L_pcall_skip"),
                raw("s_mov_b64 exec, s[56:57]")]
    if int(cfg["pf_start_step"]) == -1: pro += start
    pro += [WaitTag([("item", it.name) for it in g.seq if it.need == -1]), barrier()]
    cnt_blk = []
    if cfg["fused"]:
        TMP = S(96, 4)
        vone = V(212) if cfg["fast_pro"] else PT(8)
        cnt_blk = srd(TMP, None, 256, s_dbgp) + [salu("s_lshl_b32", t0, s_b, 4), valu("v_mov_b32", vone, 1), WaitTag([("clr",)]),
                I(f"buffer_atomic_add {rtxt(vone)}, {rtxt(VFO)}, {rtxt(TMP)}, {rtxt(t0)} offen", "store", [], [vone, VFO, TMP, t0], tag=("cnt",))]
        if not cfg["fast_pro"]: pro += cnt_blk
    pro += g.x_reads3(g.X[(0, 0)]) + g.first_reads3(g.item[0]) + [wait(lgkm=4)]
    pro.append(label("L_code"))

    if cfg["fast_pro"]: g.pre[5] += cnt_blk
    g.build_frames()
    g.place_dma()
    g.place_reg_tiles()
    g.place_fixes()
    def put(s, gi, ins_list):
        gp = g.gaps[s][gi]
        for x in ins_list:
            if x.cls in ("vmem",): gp.vm.append(x)
            else: gp.sc.append(x)
    def tlb_touch(h, tmp):
        st = int(cfg["tlb_stride"])
        n = (196608 + st - 1) // st
        o = [valu("v_mul_u32_u24", tmp, st, TID), valu("v_mov_b32", V(tmp[1] + 1), OOB),
             raw(f"v_cmp_gt_u32 vcc, {n}, {rtxt(TID)}", "valu"), raw("s_nop 1"),
             raw(f"v_cndmask_b32 {rtxt(tmp)}, v{tmp[1] + 1}, {rtxt(tmp)}, vcc", "valu"),
             salu("s_add_u32", t0, s_kvb, h * 196608)]
        for sr in (SRD_K, SRD_V):
            x = pf_load(tmp, sr, t0)
            x.txt += " nt"
            o.append(x)
        return o
    if int(cfg["tlb0"]) >= 0: g.pre[int(cfg["tlb0"])] += tlb_touch(0, V(192))
    if int(cfg["tlb1"]) >= 0: g.pre[int(cfg["tlb1"])] += tlb_touch(1, V(128))
    if int(cfg["pf_start_step"]) >= 0:
        g.pre[int(cfg["pf_start_step"])] += start
    if cfg["w1_split"]:
        steps_ = [int(x) for x in str(cfg["w1_split"]).split(".")]
        n_ = 30 // len(steps_)
        for k, st_ in enumerate(steps_):
            g.pre[st_] += [valu("v_subrev_u32", V(213), n_ * k, V(215)), valu("v_mov_b32", V(214), OOB),
                           raw(f"v_cmp_gt_u32 vcc, {n_}, v213", "valu"), raw("s_nop 1"),
                           raw(f"v_cndmask_b32 v214, v214, {rtxt(VTK[0])}, vcc", "valu"),
                           salu("s_add_u32", t0, S(100), 384), pf_load(V(214), SRD_W, t0)]
        g.pre[steps_[0]] = [valu("v_and_b32", V(215), 63, TID)] + g.pre[steps_[0]]
    elif int(cfg["pf_w1"]) == 19:
        g.post[19] = [salu("s_add_u32", t0, S(100), 384), pf_load(VTK[0], SRD_W, t0)] + g.post[19]
    elif int(cfg["pf_w1"]) >= 0:
        put(int(cfg["pf_w1"]), 9, [salu("s_add_u32", t0, S(100), 384)])
        put(int(cfg["pf_w1"]), 11, [pf_load(VTK[0], SRD_W, t0)])
    if cfg["wo_split"]:
        steps_ = [int(x) for x in str(cfg["wo_split"]).split(".")]
        n_ = 60 // len(steps_)
        for k, st_ in enumerate(steps_):
            g.pre[st_] += [valu("v_mov_b32", V(214), OOB), raw(f"v_cmp_gt_u32 vcc, {n_}, {rtxt(V(215))}", "valu"), raw("s_nop 1"),
                           raw(f"v_cndmask_b32 v214, v214, {rtxt(VTK[1])}, vcc", "valu"),
                           salu("s_add_u32", t0, S(101), 128 * n_ * k), pf_load(V(214), SRD_WO, t0)]
        g.pre[steps_[0]] = [valu("v_and_b32", V(215), 63, TID)] + g.pre[steps_[0]]
    elif int(cfg["pf_wo"]) == 52:
        g.post[51] += [pf_load(VTK[1], SRD_WO, S(101))]
    elif int(cfg["pf_wo"]) >= 0:
        put(int(cfg["pf_wo"]), 11, [pf_load(VTK[1], SRD_WO, S(101))])
    if cfg["pf_code"]:
        for k, st_ in enumerate(code_steps):
            if st_ >= 0: g.pre[st_] += code_pf(f"L_code+{16384 * k}", sub=int(cfg["pf_sub"]))
    if cfg["fused"]:
        g.pre[80] += srd(SRD_DBG2, None, 256, s_dbgp) + [salu("s_lshl_b32", s_b16, s_b, 4),
                      I(f"buffer_load_dword {rtxt(VCHK)}, {rtxt(VFO)}, {rtxt(SRD_DBG2)}, {rtxt(s_b16)} offen sc1", "vmem", [VCHK],
                        [VFO, SRD_DBG2, s_b16], tag=("chk",))]
    if cfg["hide_n"]:
        g.rinv_fill(0); g.rinv_fill(1)
        g.n0_fill()
        g.n1_fill()
        if cfg["fused"]:
            g.post[103] += g.hu_setup()
    for h in range(2):
        g.a_fill(h)
        g.post[52 * h + 19] += g.dump_block.get(52 * h + 19, []) + g.q_pack()
        if not cfg["hide_n"]:
            g.post[52 * h + 51] += g.n_block(h)
    g.o_fill()

    body = []
    marks = {0: 1, 20: 3, 52: 5, 72: 7}
    ends = {19: 2, 51: 4, 71: 6, 103: 8}
    for s in range(NSTEP):
        body.append(label(f"L_st{s}"))
        if T and s in marks: body += stamp(marks[s])
        body += g.pre[s]
        for gp in g.gaps[s]: body += gp.flat()
        if T and s in ends: body += stamp(ends[s])
        body += g.post[s]

    fin = []
    if T:
        fin += stamp(9)
    fin += [raw("s_waitcnt vmcnt(0)")]
    if T:
        fin += [I("s_memtime s[56:57]", "salu"), I("s_memrealtime s[88:89]", "salu"), raw("s_waitcnt lgkmcnt(0)"),
                salu("s_mov_b32", S(74), S(56)), salu("s_mov_b32", S(90), S(88)), salu("s_sub_u32", S(88), S(88), S(86))]
        lst = [64, 65, 66, 67, 68, 69, 70, 71, 72, 73, 74, 88, 86, 90]
        for k, sr in enumerate(lst): fin.append(valu("v_mov_b32", V(k), S(sr)))
        fin += [salu("s_lshl_b32", t0, S(2), 6), salu("s_add_u32", t0, t0, 300 * 1024 * 1024), valu("v_mov_b32", V(20), 0),
                raw(f"v_cmp_eq_u32 vcc, 0, {rtxt(TID)}", "valu"), raw("s_and_saveexec_b64 s[56:57], vcc")]
        for k in range(0, 16, 4): fin.append(vstore(V(k, 4), V(20), SRD_WS, t0, 4 * k))
        fin += [raw("s_waitcnt vmcnt(0)")]
        if cfg["steptime"]:
            fin += [raw("s_mov_b64 exec, -1"), salu("s_mul_i32", t0, S(2), 768), salu("s_add_u32", t0, t0, 320 * 1024 * 1024),
                    raw(f"v_cmp_gt_u32 vcc, 64, {rtxt(TID)}", "valu"), raw("s_and_saveexec_b64 s[56:57], vcc"),
                    valu("v_lshlrev_b32", V(20), 2, TID)]
            for k in range(3): fin.append(vstore(V(253 + k), V(20), SRD_WS, t0, 256 * k, width=1))
            fin += [raw("s_waitcnt vmcnt(0)")]
    fin += [label("L_main_exit"), raw("s_endpgm")]

    seq = pro + body
    state = {"checked": set(), "published": set()}
    for x in seq:
        if x.cls == "label" and str(x.info).startswith("L_sp") and str(x.info).endswith("_ok"):
            state["checked"].add(x.info[4:-3])
        elif x.cls == "barrier":
            state["published"] |= state["checked"]
        elif x.cls == "vmem" and isinstance(x.tag, tuple) and x.tag and x.tag[0] == "red":
            rho = x.tag[1]
            ok = str(rho) in state["published"] or "f" in state["published"] or ("l" in state["published"] and rho < 6) or (rho == 6 and "9" in state["published"])
            assert ok, ("partial load not ordered after its check", x.tag, state)
    res, errs, _, maxout = resolve_and_check(seq, "main")
    for e in errs[:30]: print("ERR", e, file=sys.stderr)
    assert not errs, len(errs)
    assert maxout <= 63, maxout
    final = []
    for w in seq:
        if isinstance(w, WaitTag):
            vals = [v for v in res[id(w)] if v is not None]
            vm, lgk = (min(vals) if vals else None), (w.lres if w.info[1] == "auto" else w.info[1])
            if vm is None and lgk is None:
                continue
            final.append(wait(vm, lgk))
        else:
            final.append(w)
    seq = final
    _, errs, _, _ = resolve_and_check(seq, "final")
    for e in errs[:30]: print("ERR", e, file=sys.stderr)
    assert not errs, len(errs)
    stubs = []
    for k, p in enumerate(g.rare_sites):
        stubs += [label(f"L_rs{k}"), I(f"s_call_b64 {rtxt(s_ret)}, L_rare{p}", "branch"), branch("s_branch", f"L_rr{k}")]
    rare = g.rare_code(0) + g.rare_code(1)
    return seq + fin + stubs + rare


SRD_DBG2 = SRD_DBG

MACROS = """.macro MF d,a,b,c
v_mfma_f32_16x16x32_bf16 \\d,\\a,\\b,\\c
.endm
.macro TR d,a,o
ds_read_b64_tr_b16 \\d,\\a offset:\\o
.endm
.macro RD d,a,o
ds_read_b128 \\d,\\a offset:\\o
.endm
"""


def compact(line):
    import re
    t = line.strip()
    if t.startswith("v_mfma_f32_16x16x32_bf16 "):
        return "MF " + t.split(" ", 1)[1].replace(", ", ",")
    m = re.match(r"ds_read_b64_tr_b16 (\S+), (\S+) offset:(\d+)$", t)
    if m: return f"TR {m.group(1)},{m.group(2)},{m.group(3)}"
    m = re.match(r"ds_read_b128 (\S+), (\S+) offset:(\d+)$", t)
    if m: return f"RD {m.group(1)},{m.group(2)},{m.group(3)}"
    return t.replace(", ", ",")


HEADER = """; Fused multi-head attention block for MI355X (gfx950); assembly produced by my own generator script.
"""


def text_of(cfg, m, pad):
    kname = KNAME if cfg["single"] else "mha_main_kernel"
    lds = int(cfg["R"]) * SLOT
    s = HEADER
    if cfg["single"]:
        s += f"; @launch grid=(256,1,1) block=(256,1,1) lds={lds}\n"
    else:
        s += f"; @launch kernel=mha_main_kernel grid=(256,1,1) block=(256,1,1) lds={lds}\n"
        if not cfg["fused"]:
            s += "; @launch kernel=mha_reduce_kernel grid=(960,1,1) block=(256,1,1) lds=0\n"
    s += '.amdgcn_target "amdgcn-amd-amdhsa--gfx950"\n'
    if cfg["macros"]: s += MACROS
    s += ".text\n"
    ks = [(kname, m)]
    if not cfg["fused"]: ks.append(("mha_reduce_kernel", G.reducer_kernel(cfg)))
    for nm, code in ks:
        lines = []
        for i in code:
            for ln in i.txt.split("\n"):
                lines.append(compact(ln) if cfg["macros"] and i.cls != "label" else ln)
        s += f".globl {nm}\n.p2align 8\n.type {nm},@function\n" + "\n".join(lines).replace("mha_main_kernel:", kname + ":") + "\n"
    s += f".fill {pad}, 4, 0xBF800000\nL_text_end:\n"
    s += '.section .rodata,"a"\n.p2align 6\n' + kd(kname, 512, 256)
    if not cfg["fused"]: s += ".p2align 6\n" + kd("mha_reduce_kernel", 88, 88)
    return s


def assemble_syms(text):
    open("_g3.s", "w").write(text)
    r = subprocess.run(["clang", "-x", "assembler", "-target", "amdgcn-amd-amdhsa", "-mcpu=gfx950", "-c", "_g3.s", "-o", "_g3.o"],
                       capture_output=True, text=True)
    assert r.returncode == 0, r.stderr[:2000]
    sy = subprocess.run(["llvm-readelf", "-s", "_g3.o"], capture_output=True, text=True).stdout
    return {ln.split()[-1]: int(ln.split()[1], 16) for ln in sy.splitlines() if " L_" in ln and len(ln.split()) >= 8}


def build(cfg, path):
    import importlib
    cfg = dict(cfg)
    cfg["_code_steps"] = [-1] + [max(0, 21 * k - 10) for k in range(1, 8)]
    for it in range(2):
        G.code_pf.n = 0
        m = main_kernel(cfg)
        addr = assemble_syms(text_of(cfg, m, 64))
        base = addr["L_code"]
        end = addr["L_main_exit"] - base
        npiece = (end + 16383) // 16384
        steps = []
        for k in range(npiece):
            first = min([s for s in range(NSTEP) if addr[f"L_st{s}"] - base + 1024 > 16384 * k] or [NSTEP - 1])
            s_ = first - int(cfg["code_lead"])
            steps.append(-1 if s_ < 0 else s_)
        cfg["_code_steps"] = steps
    G.code_pf.n = 0
    m = main_kernel(cfg)
    addr = assemble_syms(text_of(cfg, m, 64))
    span = max(16384 * len(cfg["_code_steps"]), 131072)
    need = addr["L_code"] + span + 256 - addr["L_text_end"]
    pad = 64 + max(0, (need + 3) // 4)
    s = text_of(cfg, m, pad)
    open(path, "w").write(s)
    n_main = sum(1 for i in m if i.cls != "label")
    print(f"wrote {path}: {len(s)} bytes, {n_main} instrs, code {addr['L_main_exit'] - addr['L_code']} B, pad {pad}, code pf steps {cfg['_code_steps']}", file=sys.stderr)


if __name__ == "__main__":
    cfg = dict(CFG)
    path = "out3.s"
    for a in sys.argv[1:]:
        if "=" in a:
            k, v = a.split("=", 1)
            assert k in cfg, k
            cfg[k] = {"True": True, "False": False}.get(v, v)
        else:
            path = a
    build(cfg, path)
```

```python
import sys
import subprocess
import numpy as np
from asmlib import *
import gen as G
from gen import (ACC, SB, SBr, PB, PBr, TT, NEGM, NEGMr, L, LT, MT, OACC, CT, CTr, QF, QFr, AK, AV, AW, AO, DKV, DA, DB, DO,
                 AX, PSV, PT, TID, JUNK, VPC, VL128, VTK, VFO, VCHK, RD, SEL, FLG, VPOLL, VFV, VOUT, VZ, PSL, PART_OFF, FLAG_OFF,
                 SRD_DBG, SRD_OUT, s_outp, s_dbgp, s_b16, s_kw, s_pb, s_ro, s_rl, OA, OAr, O0P, O0Pr, FB, FBh,
                 SRD_A, SRD_K, SRD_V, SRD_WO, SRD_WS, SRD_B, s_w3072, s_pst, s_thr, s_c2, s_h0, s_b, s_pj, s_w, s_t, s_ret,
                 THR_BITS, C_BITS, SLOT, build_lane_consts, autonop, srd, pf_load, code_pf, kd, KNAME, Gen, a_item)
import sched

CFG = dict(
    nt_kv=True, timing=False, steptime=False, pst_flags=" sc1", red_flags=" sc1",
    dspair_v=True, dspair_k=False, dspair_w=False, no_st=False, map_nb=8,
    fused=True, single=False, kv_same=False,
    R=13, P=3, P0=None, DW=4, DX=3, NW0=6, NX0=2, xres=23,
    kv_rot=False, rot_shift=0, rot_mul=1,
    tlb0=-1, tlb1=-1, tlb_stride=4096,
    npair0=0, DX0=0, NX00=0, nt_w0=False, nt_w1=False, nt_x0=False, nt_x1=False,
    RP=0, npair=2, rp_start0=3, rp_start1=0, rp_space=1.2,
    DW0=0, NW00=0, tlb='', park0='', park1='', d_flag=2, d_poll=1, d_chk=2, d_mfma=3, hu_in=6, hu_per=3, fast_pro=True, out_flags='', pf_sub=8, pf_entry=False, hide_n=True, wo_split='53.57.61.65', w1_split='', pro_max=7, early_max=4, early_steps=3,
    pf_code=True, pf_w1=8, pf_wo=52, pf_start="xw", pf_start_step=0, code_lead=14, pf_code_all=False, macros=True,
)

SRD_X, SRD_W = SRD_A, SRD_B
G.SRD_DBG = S(4, 4)
SRD_DBG = G.SRD_DBG
s_kvb, s_wb, s_xb, s_ob = S(33), S(34), S(37), S(38)
s_do = [S(35), S(36)]
s_w6144 = S(41)
NSTEP = 144


VCHK = V(143)
AWR = V(246)
s_rp = S(39)
s_n0, s_kvb1 = S(40), S(42)
s_rl2 = [S(63), S(62)]
VHL = V(132)


def o_cs(j, reorder):
    if reorder and j < 8:
        return [(0, 0), (0, 1), (1, 0), (1, 1), (0, 2), (0, 3), (1, 2), (1, 3)][j]
    return j // 4, j % 4


def XF(u, half, qb): return V(144 + ((u % 2) * 2 + half) * 12 + 4 * qb, 4)


class Gen3(Gen):
    def __init__(self, cfg):
        self.cfg = cfg
        self.rare_sites = []
        i = lambda k: int(cfg[k])
        self.R = i("R")
        self.seq, self.X, self.W, self.KV, self.O = sched.build(
            R=self.R, P=i("P"), DW=i("DW"), DX=i("DX"), NW0=i("NW0"), NX0=i("NX0"),
            P0=None if cfg["P0"] in (None, "None") else int(cfg["P0"]), xres=i("xres"),
            pro_max=i("pro_max"), early_max=i("early_max"), early_steps=i("early_steps"),
            park0=[int(x) for x in str(cfg["park0"]).split(".")] if cfg["park0"] else None,
            park1=[int(x) for x in str(cfg["park1"]).split(".")] if cfg["park1"] else None,
            DW0=int(cfg["DW0"]) or None, NW00=int(cfg["NW00"]) or None, RP=i("RP"), npair=i("npair"),
            rp_load=self.rp_load_step, npair0=int(cfg["npair0"]) or None, DX0=int(cfg["DX0"]) or None, NX00=int(cfg["NX00"]) or None)
        self.item = []
        for h in range(2):
            self.item += [self.W[(h, t)] for t in range(20)] + [self.KV[(h, j)] for j in range(32)]
        self.item += [self.O[j] for j in range(40)]
        self.gaps = [None] * NSTEP
        self.pre = {s: [] for s in range(NSTEP)}
        self.post = {s: [] for s in range(NSTEP)}
        self.regs = {"K": AK, "V": AV, "W": AW, "O": AO}
        self.plan = {}
        for kind in self.regs:
            its = [it for it in self.item if it.kind == kind]
            k = 0
            while k < len(its):
                lo = hi = its[k].slot
                e = k
                while e + 1 < len(its):
                    nl, nh = min(lo, its[e + 1].slot), max(hi, its[e + 1].slot)
                    if nh - nl > 4: break
                    lo, hi = nl, nh
                    e += 1
                for q in range(k, e + 1): self.plan[its[q].name] = lo * SLOT
                k = e + 1
        self.base = {kind: [0] * len(self.regs[kind]) for kind in self.regs}
        self.nunit = 0
        self.fixes = {}
        self.dump_block = {}
        self.rp1_first = {}

    def rp_load_step(self, h, k):
        s = int(float(self.cfg["rp_start0" if h == 0 else "rp_start1"]) + k * float(self.cfg["rp_space"]))
        if h == 1 and self.cfg["hide_n"]:
            s = max(s, int(2.45 * (k // 2 + 1)) + 1)
        return s

    def place_fixes(self):
        for s, lst in self.fixes.items():
            gaps = self.gaps[s]
            for x, lo, hi in lst:
                c = [g for g in range(lo, hi + 1) if gaps[g].free() == 1 and not gaps[g].vm and g != 23]
                if not c: c = [g for g in range(lo, hi + 1) if gaps[g].free() >= 1 and not gaps[g].vm and g != 23]
                if not c: c = [hi]
                gaps[c[0]].va.append(x)

    def frag_reads3(self, it, f, buf):
        win = self.plan[it.name]
        off = it.slot * SLOT - win
        kind = it.kind
        if kind == "K":
            kt, kb = f // 6, f % 6
            ri = kb % 2
            return [(ds_read("ds_read_b128", FB(buf, f % 2), AK[ri], off + kt * 6144 + (kb // 2) * 128), ri, win)]
        ri, j = f % 4, f // 4
        o, d2 = {"V": (off + 128 * j, 6144), "W": (off + 128 * j, 1536), "O": (off + 4096 * j, 2048)}[kind]
        r = self.regs[kind][ri]
        return [(ds_read("ds_read_b64_tr_b16", FBh(buf, f % 2, 0), r, o), ri, win),
                (ds_read("ds_read_b64_tr_b16", FBh(buf, f % 2, 1), r, o + d2), ri, win)]

    def fix(self, kind, ri, win):
        B = self.base[kind]
        if B[ri] == win: return None
        d = win - B[ri]
        B[ri] = win
        r = self.regs[kind][ri]
        return valu("v_add_u32", r, d, r) if d > 0 else valu("v_subrev_u32", r, -d, r)

    def place_reads3(self, gaps, g0, it, grp, cur=None):
        rl = []
        for f in (2 * grp, 2 * grp + 1):
            rl += self.frag_reads3(it, f, grp % 3)
        fx = [x for x in (self.fix(it.kind, ri, win) for _, ri, win in rl) if x is not None]
        if fx:
            same = (cur is not None and cur.kind == it.kind)
            if it.kind == "K":
                lo = 20 if same else 2
            elif g0 == 24:
                lo = 16 if same else 2
            else:
                lo = 22 if same else 2
            self.pending_fix += [(x, lo, g0 - 1) for x in fx]
        pair = self.cfg["dspair_k"] if it.kind == "K" else (self.cfg["dspair_v"] if it.kind == "V" else self.cfg["dspair_w"])
        for k, (ins, ri, win) in enumerate(rl):
            gaps[g0 + (k // 2 if pair else k)].ds.append(ins)
        return len(rl)

    def first_reads3(self, it):
        out = []
        for grp in range(2):
            for f in (2 * grp, 2 * grp + 1):
                for ins, ri, win in self.frag_reads3(it, f, grp % 3):
                    x = self.fix(it.kind, ri, win)
                    if x is not None: out.append(x)
                    out.append(ins)
        for ri in range(len(self.regs[it.kind])):
            x = self.fix(it.kind, ri, self.plan[it.name])
            if x is not None: out.append(x)
        return out

    def x_reads3(self, it):
        u = it.n
        return [ds_read("ds_read_b128", XF(u, half, qb), AX[half], it.slot * SLOT + 2048 * qb) for half in range(2) for qb in range(3)]

    def units(self, it):
        tag = ("item", it.name)
        out = []
        for k in range(it.units):
            so = s_do[self.nunit % 2]
            self.nunit += 1
            nt = False
            if it.kind == "X":
                m0 = salu("s_add_u32", "m0", s_w6144, it.slot * SLOT + 3072 * k)
                off = salu("s_add_u32", so, s_xb, 128 * it.n + 30720 * k)
                vo, sr = DA, SRD_X
                nt = bool(self.cfg["nt_x0"]) if it.h == 0 else bool(self.cfg["nt_x1"])
            else:
                m0 = salu("s_add_u32", "m0", s_w3072, it.slot * SLOT)
                if it.kind in "KV":
                    off = self.kv_off(so, it)
                    vo, sr = DKV, (SRD_K if it.kind == "K" else SRD_V)
                    nt = self.cfg["nt_kv"]
                elif it.kind == "W":
                    off = salu("s_add_u32", so, s_wb, it.h * 384 + it.n * 393216)
                    vo, sr = DB, SRD_W
                    nt = bool(self.cfg["nt_w0"]) if it.h == 0 else bool(self.cfg["nt_w1"])
                else:
                    c, s = o_cs(it.n, self.cfg["hide_n"])
                    off = salu("s_add_u32", so, s_ob, s * 122880 + c * 128)
                    vo, sr = DO, SRD_WO
            out.append((m0, off, [dma(vo[i], sr, so, 1024 * i, nt, tag=tag) for i in range(3)]))
        return out

    def kv_off(self, so, it):
        if self.cfg["kv_rot"] and not self.cfg["kv_same"]:
            return [salu("s_xor_b32", so, s_n0, it.n), salu("s_mul_i32", so, so, 12288),
                    salu("s_add_u32", so, so, s_kvb if it.h == 0 else s_kvb1)]
        imm = it.h * 196608 + (0 if self.cfg["kv_same"] else it.n * 12288)
        return salu("s_add_u32", so, s_kvb, imm)

    def place_dma(self):
        for b in range(NSTEP):
            un = []
            for it in self.seq:
                if it.issue == b and not getattr(it, "reg", False): un += self.units(it)
            assert len(un) <= 4
            if len(un) == 1:
                pos = [[(0, 28), (1, 4), (1, 16)]]
            elif len(un) == 2:
                pos = [[(0, 28), (0, 34), (1, 4)], [(1, 10), (1, 16), (1, 22)]]
            elif len(un) > 2:
                pos = [[(0, 28), (0, 29), (0, 34)], [(1, 2), (1, 4), (1, 5)], [(1, 8), (1, 10), (1, 11)], [(1, 14), (1, 16), (1, 17)]][:len(un)]
            else:
                pos = []
            for (m0, off, ins), ps in zip(un, pos):
                for i, (ds_, gi) in enumerate(ps):
                    g = self.gaps[b + ds_]
                    if i == 0:
                        if isinstance(off, list):
                            (g[gi - 3] if gi >= 3 else self.gaps[b + ds_ - 1][36 + gi - 3]).sc.append(off[0])
                            g[gi - 2].sc += [off[1], m0]; g[gi - 1].sc.append(off[2])
                        else:
                            g[gi - 2].sc.append(m0)
                            g[gi - 1].sc.append(off)
                    if len(un) > 2 and gi % 6 < 4 and g[gi].ds:
                        pass
                    g[gi].vm.append(ins[i])

    def place_reg_tiles(self):
        self.dbase = 0
        for h in range(2):
            its = [self.KV[(h, j)] for j in range(32) if getattr(self.KV[(h, j)], "reg", False)]
            start = float(self.cfg["rp_start0" if h == 0 else "rp_start1"])
            last_s = -1
            for k, it in enumerate(its):
                s = 52 * h + self.rp_load_step(h, k)
                while len([gi for gi in (5, 11, 17, 29, 35) if not self.gaps[s][gi].vm]) < 3 or s <= last_s: s += 1
                if h == 1: self.rp1_first[k] = s * 36 + min(gi for gi in (5, 11, 17, 29, 35) if not self.gaps[s][gi].vm)
                last_s = s
                assert s + 2 <= it.issue, (it, s)
                g = self.gaps[s]
                off = self.kv_off(s_rp, it)
                if isinstance(off, list):
                    for q, x in enumerate(off): g[1 + q].sc.append(x)
                else:
                    g[3].sc.append(off)
                free = [gi for gi in (5, 11, 17, 29, 35) if not g[gi].vm][:3]
                assert len(free) == 3, (s, free)
                for i, gi in enumerate(free):
                    g[gi].vm.append(vload(A(12 * k + 4 * i, 4), DKV[i], SRD_K if it.kind == "K" else SRD_V, s_rp, 1024 * i,
                                          " nt" if self.cfg["nt_kv"] else "", tag=("reg", it.name)))
                it.rk = k
            for b in sorted({it.issue for it in its}):
                grp = [it for it in its if it.issue == b]
                wr = []
                for it in grp:
                    off = it.slot * SLOT
                    pre = []
                    if not (0 <= off - self.dbase and off - self.dbase + 2048 + 1024 <= 65536):
                        nb = min(off, (self.R - 5) * SLOT)
                        d = nb - self.dbase
                        self.dbase = nb
                        pre = [valu("v_add_u32", AWR, d, AWR) if d > 0 else valu("v_subrev_u32", AWR, -d, AWR)]
                    wr.append((it, pre, [ds_write(AWR, A(12 * it.rk + 4 * i, 4), off - self.dbase + 1024 * i, tag=("dump", it.name)) for i in range(3)]))
                if b % 52 == 19:
                    blk = []
                    for it, pre, w in wr: blk += [WaitTag([("reg", it.name)])] + pre + w
                    self.dump_block[b] = blk
                    continue
                cand = [(b, gi) for gi in range(24, 36)] + [(b + 1, gi) for gi in range(0, 22)]
                ci = 0
                for it, pre, w in wr:
                    first = True
                    for x in w:
                        while True:
                            st_, gi = cand[ci]
                            gp = self.gaps[st_][gi]
                            ok = not gp.vm and gp.free() >= 1 and len(gp.ds) < 2
                            if first and pre:
                                pst, pg = cand[ci - 1] if ci > 0 else (None, None)
                                ok = ok and ci > 0
                            if ok: break
                            ci += 1
                        if first:
                            gp.sc.append(WaitTag([("reg", it.name)]))
                            if pre:
                                pst, pg = cand[ci - 1]
                                self.gaps[pst][pg].va += pre
                            first = False
                        gp.ds.append(x)
                        ci += 1

    def frame3(self, s, mf):
        it = self.item[s]
        nx = self.item[s + 1] if s + 1 < NSTEP else None
        gaps = [Gap(mf(i, FB((i // 6) % 3, (i // 3) % 2))) for i in range(36)]
        nds = [0] * 6
        self.pending_fix = []
        for Gi in range(6):
            if Gi < 4:
                nds[Gi] = self.place_reads3(gaps, 6 * Gi, it, Gi + 2)
            elif nx is not None:
                nds[Gi] = self.place_reads3(gaps, 6 * Gi, nx, Gi - 4, cur=it)
        xs = [x for x in self.X.values() if x.need == s]
        if xs:
            rd = self.x_reads3(xs[0])
            for k, gi in enumerate((24, 25, 26, 27, 30, 31)):
                gaps[gi].ds.append(rd[k])
            nds[4] += 4
            nds[5] += 2
        need = [("item", x.name) for x in self.seq if x.need == s]
        for Gi in range(6):
            gi = 6 * Gi + 5
            if Gi == 3 and nx is not None:
                lt = [("dump", x.name) for x in self.seq if x.need == s]
                bar = barrier()
                bar.info = lt
                gaps[gi].sc += [WaitTag(need, lgkm="auto", ltags=lt), bar]
            elif Gi == 5:
                if nx is not None: gaps[gi].sc.append(WaitTag([], lgkm="auto"))
            else:
                gaps[gi].sc.append(WaitTag([], lgkm="auto"))
        self.fixes[s] = self.pending_fix
        if self.cfg["steptime"]:
            gaps[24].post.append(I("s_memtime s[92:93]", "salu"))
            gaps[33].post += [raw("s_waitcnt lgkmcnt(0)"), raw(f"v_writelane_b32 v{253 + s // 64}, s92, {s % 64}", "valu")]
        self.gaps[s] = gaps

    def build_frames(self):
        for h in range(2):
            for t in range(20):
                def mf(i, fr, t=t):
                    T, qb = i // 3, i % 3
                    return mfma(ACC(T, qb), fr, XF(t // 2, t % 2, qb), 0 if t == 0 else ACC(T, qb))
                self.frame3(52 * h + t, mf)
            for j in range(32):
                kind, n = a_item(j)
                p = n % 2
                if kind == "K":
                    def mf(i, fr, p=p, n=n):
                        f, qb = i // 3, i % 3
                        kt, kb = f // 6, f % 6
                        c = (0 if n < 2 else NEGM(qb)) if kb == 0 else SB(p, kt, qb)
                        return mfma(SB(p, kt, qb), fr, QF(kb, qb), c)
                else:
                    def mf(i, fr, p=p, n=n):
                        T, qb = i // 3, i % 3
                        return mfma(OA(T, qb), fr, PB(p, qb), 0 if n == 0 else OA(T, qb))
                self.frame3(52 * h + 20 + j, mf)
        for j in range(40):
            c, s = o_cs(j, self.cfg["hide_n"])

            def mf(i, fr, s=s, p=c % 2):
                f, qb = i // 3, i % 3
                jj, nt = f // 4, f % 4
                ks = 3 * s + jj
                h, kb = ks // 6, ks % 6
                b = O0P(kb, qb) if h == 0 else QF(kb, qb)
                return mfma(OACC(p, nt, qb), fr, b, 0 if ks == 0 else OACC(p, nt, qb))
            self.frame3(104 + j, mf)

    def a_fill(self, h):
        s0 = 52 * h + 20
        gaps = [g for j in range(32) for g in self.gaps[s0 + j]]
        Gx = lambda j, i=0: 36 * j + i
        mops, fin = self.max_ops(0)
        for o in mops: o.earliest = Gx(1, 0)
        sm0, _ = self.softmax_ops(0, sub_deps=fin, earliest_kt=(Gx(1, 0), Gx(1, 2)))
        pend = list_schedule(gaps, mops + sm0, Gx(1, 0), Gx(2, 0))
        self.post[s0 + 1] += autonop(self.emit_tail(pend)) + [valu("v_mov_b32", L(qb), LT(qb)) for qb in range(3)]
        for n in range(1, 16):
            p = n % 2
            j0 = 2 * n
            j1 = j0 + 2 if n <= 14 else j0 + 1
            sub = [None, None, None] if n == 1 else None
            sm, ltl = self.softmax_ops(p, sub_deps=sub, earliest_kt=(Gx(j0, 0), Gx(j0, 3)), lacc=(n > 1))
            pend = list_schedule(gaps, sm + self.check_ops(ltl, p), Gx(j0, 0), Gx(j1, 0))
            self.post[s0 + j1 - 1] += autonop(self.emit_tail(pend)) + self.check_branch(p)
            if n == 15: self.post[s0 + j1 - 1] += self.l_acc()

    RINV = [V(192), V(193), V(194)]

    def rinv_fill(self, h):
        gaps = self.gaps[52 * h + 51]
        y = [MT(3 + qb) for qb in range(3)]
        dst = self.RINV if h == 0 else [MT(8), MT(9), MT(10)]
        ops, prev = [], [None] * 3
        for sw in ("v_permlane32_swap_b32", "v_permlane16_swap_b32"):
            for qb in range(3):
                o = Op(valu("v_mov_b32", y[qb], L(qb)), [(prev[qb], 0)] if prev[qb] else []); ops.append(o); prev[qb] = o
            for qb in range(3):
                o = Op(perm(sw, L(qb), y[qb]), [(prev[qb], 2)]); ops.append(o); prev[qb] = o
            for qb in range(3):
                o = Op(valu("v_add_f32", L(qb), L(qb), y[qb]), [(prev[qb], 1)]); ops.append(o); prev[qb] = o
        for qb in range(3):
            o = Op(vrcp(dst[qb], L(qb)), [(prev[qb], 0)]); ops.append(o)
        assert not list_schedule(gaps, ops, 0, 36)

    def norm_ops(self, h, tsets, rinv):
        ops, last_use, rd_last, unit_last = [], [[] for _ in tsets], {}, {}
        k = 0
        for kb in range(6):
            for qb in range(3):
                ts = k % len(tsets)
                t = tsets[ts]
                dep0 = [(x, 0) for x in last_use[ts]]
                rds = []
                for tt, T in enumerate((2 * kb, 2 * kb + 1)):
                    for r in range(4):
                        o = Op(I(f"v_accvgpr_read_b32 v{t + 4 * tt + r}, {rtxt(OAr(T, qb, r))}", "valu", [V(t + 4 * tt + r)], [OAr(T, qb, r)]), list(dep0))
                        ops.append(o); rds.append(o)
                        rd_last[T] = o
                mul = []
                for r in range(8):
                    o = Op(valu("v_mul_f32", V(t + r), V(t + r), rinv[qb]), [(rds[r], 0)]); ops.append(o); mul.append(o)
                cv = []
                for r in range(4):
                    d = V(t + r) if h == 0 else QFr(kb, qb, r)
                    deps = [(mul[2 * r], 0), (mul[2 * r + 1], 0)] + ([(cv[-1], 0)] if cv and h == 0 else [])
                    o = Op(valu("v_cvt_pk_bf16_f32", d, V(t + 2 * r), V(t + 2 * r + 1)), deps); ops.append(o); cv.append(o)
                fin = cv
                if h == 0:
                    fin = []
                    for r in range(4):
                        o = Op(I(f"v_accvgpr_write_b32 {rtxt(O0Pr(kb, qb, r))}, v{t + r}", "valu", [O0Pr(kb, qb, r)], [V(t + r)]), [(cv[r], 0), (cv[-1], 0)])
                        ops.append(o); fin.append(o)
                last_use[ts] = fin
                unit_last[(kb, qb)] = fin
                k += 1
        return ops, rd_last, unit_last

    def n0_fill(self):
        gaps = [g for s in range(52, 72) for g in self.gaps[s]]
        ops, rd_last, _ = self.norm_ops(0, [198, 206], self.RINV)
        pend = list_schedule(gaps, ops, 0, 36 * 19)
        assert not pend, len(pend)
        self.n0_free = {T: 52 * 36 + o.gap for T, o in rd_last.items()}
        for k, g0 in self.rp1_first.items():
            assert self.n0_free[k] < g0, (k, self.n0_free[k], g0)

    def n1_fill(self):
        gaps = [g for j in range(8) for g in self.gaps[104 + j]]
        rinv = [MT(8), MT(9), MT(10)]
        ops, _, unit_last = self.norm_ops(1, [112, 120], rinv)
        done = []
        lim = {kb: 36 * (4 + kb // 3) + 12 * (kb % 3) - 1 for kb in range(6)}
        g = 0
        rest = ops
        for kb in range(6):
            mine = [o for o in rest if any(o in unit_ops for unit_ops in [self._unit_ops(ops, kb)])]
            pend = list_schedule(gaps, mine, g, lim[kb])
            if pend:
                gi = lim[kb]
                gaps[gi].post += autonop([o.ins for o in pend]) + [nop(1)]
                for o in pend: o.gap = gi + 1
            rest = [o for o in rest if o not in mine]

    def _unit_ops(self, ops, kb):
        return ops[60 * kb:60 * kb + 60]

    def n_block(self, h):
        out = []
        if h == 1 and self.cfg["fused"]:
            out += self.hu_setup()
        out += self.rinv_ops()
        tmp = [V(0 + 8 * k, 8) for k in range(3)]
        pk = [V(24 + 4 * k, 4) for k in range(3)]
        for kb in range(6):
            for qb in range(3):
                t = tmp[qb][1]
                for tt, T in enumerate((2 * kb, 2 * kb + 1)):
                    for r in range(4):
                        out.append(I(f"v_accvgpr_read_b32 v{t + 4 * tt + r}, {rtxt(OAr(T, qb, r))}", "valu",
                                     [V(t + 4 * tt + r)], [OAr(T, qb, r)]))
            for qb in range(3):
                t = tmp[qb][1]
                for h2 in range(4):
                    out.append(valu("v_pk_mul_f32", V(t + 2 * h2, 2), V(t + 2 * h2, 2), V(MT(8 + 2 * qb)[1], 2)))
            for qb in range(3):
                t = tmp[qb][1]
                for r in range(4):
                    d = V(pk[qb][1] + r) if h == 0 else QFr(kb, qb, r)
                    out.append(valu("v_cvt_pk_bf16_f32", d, V(t + 2 * r), V(t + 2 * r + 1)))
            if h == 0:
                for qb in range(3):
                    for r in range(4):
                        out.append(I(f"v_accvgpr_write_b32 {rtxt(O0Pr(kb, qb, r))}, v{pk[qb][1] + r}", "valu",
                                     [O0Pr(kb, qb, r)], [V(pk[qb][1] + r)]))
        return autonop(out)

    def o_fill(self):
        gaps = [g for j in range(40) for g in self.gaps[104 + j]]

        def cvts(p):
            ops = []
            for ntp in range(2):
                for qb in range(3):
                    u = ntp * 3 + qb
                    for h in range(2):
                        a = OACC(p, 2 * ntp + h, qb)[1]
                        ops.append(valu("v_cvt_pk_bf16_f32", CTr(u, 2 * h), V(a), V(a + 1)))
                        ops.append(valu("v_cvt_pk_bf16_f32", CTr(u, 2 * h + 1), V(a + 2), V(a + 3)))
            return ops

        def store(u, c):
            return vstore(CT(u), PSV, SRD_WS, s_pst[u // 4], (u % 4) * 1024, self.cfg["pst_flags"], tag=("st", c))

        spos = [(0, 22), (0, 34), (1, 10), (1, 22), (1, 34), (2, 10)]
        last_step = {}
        for j in range(40): last_step[o_cs(j, self.cfg["hide_n"])[0]] = j
        prev_store_gap = -1
        for c in range(9):
            j0 = last_step[c] + 1
            g0 = 36 * j0
            e0 = max(g0 + 3, prev_store_gap + 1)
            ops = [Op(x, earliest=e0) for x in cvts(c % 2)]
            pos = [g0 + 36 * s + gi for s, gi in spos]
            pos = [p_ for p_ in pos if p_ > e0 + 8]
            k = 3
            while len(pos) < 6:
                nxt = g0 + 36 * (k // 1) + (10, 22, 34)[0]
                for gi in (10, 22, 34):
                    p_ = g0 + 36 * 2 + gi if k == 3 else g0 + 36 * (k - 1) + gi
                    if p_ not in pos and p_ > (pos[-1] if pos else 0) and len(pos) < 6: pos.append(p_)
                k += 1
            for u, p_ in enumerate(pos):
                if not self.cfg["no_st"]:
                    gaps[p_].vm.append(store(u, c))
            assert not list_schedule(gaps, ops, e0, e0 + 40)
            for u, p_ in enumerate(pos):
                assert max(o.gap for o in ops[4 * u:4 * u + 4]) < p_, (c, u, p_)
            prev_store_gap = pos[-1]
            self.last_store = getattr(self, "last_store", {})
            self.last_store[c] = pos[-1]
            ga = pos[-1] + 1
            gaps[ga].sc.append(salu("s_add_u32", s_pst[0], s_pst[0], 24576))
            gaps[ga + 1].sc.append(salu("s_add_u32", s_pst[1], s_pst[1], 24576))
        fused = self.cfg["fused"]
        if fused:
            self.hu_fill(gaps)
        tail = autonop([nop(7)] + cvts(1) + [store(u, 9) for u in range(6)])
        if fused: tail += self.hu_tail()
        self.post[143] += tail

    HU_NEED = [1, 2, 3, 5, 6, 7, 8, 9]
    HU_BASE = [0, 64, 128, 192, 256, 320, 384, 432]
    HU_LIM = [480, 480, 480, 480, 480, 480, 432, 480]

    def hu_buf(self, rho, t): return A(32 * (rho % 4 if rho in self.hu_inloop else rho) + 4 * t, 4)

    def hu_load(self, rho, t):
        return vload(self.hu_buf(rho, t), VHL, SRD_WS, s_rl2[rho % 2], 0, self.cfg["red_flags"], tag=("red", rho, t))

    def hu_adv(self, rho):
        return salu("s_add_u32", s_rl2[rho % 2], s_rl2[rho % 2], 2 * 245760)

    def hu_mfma(self, rho):
        o = []
        for t in range(8):
            if t % 4 == 0: o.append(WaitTag([("red", rho, t + 3)]))
            o.append(mfma(RD[0], SEL[0], self.hu_buf(rho, t), 0 if t == 0 else RD[0]))
        a = RD[0][1]
        o += [nop(7), valu("v_cvt_pk_bf16_f32", V(RD[1][1]), V(a), V(a + 1)), valu("v_cvt_pk_bf16_f32", V(RD[1][1] + 1), V(a + 2), V(a + 3)),
              vstore(V(RD[1][1], 2), VOUT, SRD_OUT, s_ro[rho % 2], 0, self.cfg["out_flags"], tag=("out", rho), width=2), nop(1)]
        return self.hu_out_off(rho) + o

    def hu_out_off(self, rho):
        hu, n, c, rem, w2, u, ntp, a = s_t[0], s_t[1], s_t[2], s_t[3], S(100), S(101), S(61), s_ro[rho % 2]
        o = [salu("s_add_u32", hu, s_kw, self.HU_BASE[rho]), salu("s_lshr_b32", n, hu, 1),
             salu("s_mul_hi_u32", c, n, (2 ** 32 + 23) // 24), salu("s_mul_i32", rem, c, 24), salu("s_sub_u32", rem, n, rem),
             salu("s_mul_hi_u32", w2, rem, (2 ** 32 + 5) // 6), salu("s_mul_i32", u, w2, 6), salu("s_sub_u32", u, rem, u),
             salu("s_mul_hi_u32", ntp, u, (2 ** 32 + 2) // 3), salu("s_mul_i32", rem, ntp, 3), salu("s_sub_u32", u, u, rem),
             salu("s_mul_i32", a, s_b, 192), salu("s_mul_i32", w2, w2, 48), salu("s_add_u32", a, a, w2),
             salu("s_lshl_b32", u, u, 4), salu("s_add_u32", a, a, u), salu("s_mul_i32", a, a, 1280),
             salu("s_lshl_b32", c, c, 7), salu("s_add_u32", a, a, c), salu("s_lshl_b32", ntp, ntp, 6), salu("s_add_u32", a, a, ntp),
             salu("s_and_b32", n, hu, 1), salu("s_lshl_b32", n, n, 4), salu("s_add_u32", a, a, n)]
        if rho >= 6:
            o += [scmp("s_cmp_ge_u32", hu, self.HU_LIM[rho]), salu("s_cselect_b32", a, 0x7FFF0000, a)]
        return o

    def hu_base(self, rho):
        return salu("s_add_u32", s_rl2[rho % 2], s_pb, 512 * self.HU_BASE[rho])

    def hu_setup(self):
        lane, g_, m_, t0, t1 = V(96), V(97), V(98), V(99), V(100)
        o = srd(SRD_OUT, None, 16 * 192 * 640 * 2, s_outp)
        o += [WaitTag([("chk",)]), scmp("s_cmp_eq_u32", s_w, 0), branch("s_cbranch_scc0", "L_chk_ok"),
              I(f"v_readfirstlane_b32 {rtxt(s_t[1])}, {rtxt(VCHK)}", "valu", [s_t[1]], [VCHK]), raw("s_nop 3"),
              scmp("s_cmp_ge_u32", s_t[1], 16), branch("s_cbranch_scc1", "L_chk_ok"),
              salu("s_mov_b32", s_t[0], 1 << 18), label("L_chk_loop"),
              salu("s_sub_u32", s_t[0], s_t[0], 1), branch("s_cbranch_scc1", "L_chk_ok"), raw("s_sleep 8"),
              I(f"buffer_load_dword {rtxt(VCHK)}, {rtxt(VFO)}, {rtxt(SRD_DBG)}, {rtxt(s_b16)} offen sc1", "salu"), raw("s_waitcnt vmcnt(0)"),
              I(f"v_readfirstlane_b32 {rtxt(s_t[1])}, {rtxt(VCHK)}", "salu"), raw("s_nop 3"),
              scmp("s_cmp_ge_u32", s_t[1], 16), branch("s_cbranch_scc0", "L_chk_loop"), label("L_chk_ok")]
        cnd = lambda d, a, b: I(f"v_cndmask_b32 {rtxt(d)}, {rtxt(a)}, {rtxt(b)}, vcc", "valu", [d], [a, b])
        cmp_ = lambda txt, u: I(txt, "valu", [], [u])
        o += [valu("v_and_b32", lane, 63, TID), valu("v_lshrrev_b32", g_, 4, lane), valu("v_and_b32", m_, 15, lane),
              valu("v_mov_b32", VZ, 0),
              valu("v_mul_u32_u24", t0, 1280, m_), valu("v_and_b32", t1, 1, g_), valu("v_lshlrev_b32", t1, 5, t1), valu("v_add_u32", t0, t0, t1),
              valu("v_lshrrev_b32", t1, 1, g_), valu("v_lshlrev_b32", t1, 3, t1), valu("v_add_u32", VOUT, t0, t1),
              valu("v_lshrrev_b32", t0, 5, lane), valu("v_mul_u32_u24", t0, 245760, t0), valu("v_and_b32", t1, 31, lane),
              valu("v_lshlrev_b32", t1, 4, t1), valu("v_add_u32", VHL, t0, t1),
              valu("v_lshlrev_b32", t0, 2, TID), valu("v_mov_b32", VPOLL, 0x7FFFFF00),
              cmp_(f"v_cmp_gt_u32 vcc, 16, {rtxt(TID)}", TID), nop(1), cnd(VPOLL, VPOLL, t0),
              valu("v_and_b32", t0, 1, m_), valu("v_lshlrev_b32", t0, 4, t0), valu("v_mov_b32", t1, 0x3F80), valu("v_lshlrev_b32", t1, t0, t1),
              valu("v_lshrrev_b32", t0, 3, m_), valu("v_and_b32", g_, 1, g_),
              cmp_(f"v_cmp_eq_u32 vcc, {rtxt(t0)}, {rtxt(g_)}", t0), nop(1), cnd(t1, VZ, t1),
              valu("v_lshrrev_b32", t0, 1, m_), valu("v_and_b32", t0, 3, t0)]
        for d in range(4):
            o += [cmp_(f"v_cmp_eq_u32 vcc, {d}, {rtxt(t0)}", t0), nop(1), cnd(V(SEL[0][1] + d), VZ, t1)]
        o += [salu("s_lshl_b32", s_b16, s_b, 8), salu("s_add_u32", s_b16, s_b16, FLAG_OFF),
              salu("s_lshl_b32", s_t[0], s_pj, 2), salu("s_add_u32", s_t[5], s_b16, s_t[0]), salu("s_add_u32", s_kw, s_t[0], s_w),
              salu("s_mul_i32", s_pb, s_b, 16 * 245760), salu("s_lshl_b32", s_t[0], s_kw, 9), salu("s_add_u32", s_pb, s_pb, s_t[0]),
              salu("s_add_u32", s_pb, s_pb, PART_OFF)]
        return o

    def add_wait_tag(self, gaps, fs, tag):
        for x in gaps[36 * fs + 23].sc:
            if isinstance(x, WaitTag):
                x.tag = ("waittag", x.tag[1] + (tag,))

    def hu_fill(self, gaps):
        d_flag, d_poll, d_chk = int(self.cfg["d_flag"]), int(self.cfg["d_poll"]), int(self.cfg["d_chk"])
        n_in = int(self.cfg["hu_in"])
        self.hu_pending = []
        self.hu_inloop = set()
        published = set()
        for rho in range(8):
            c = self.HU_NEED[rho]
            if c >= 8: break
            fs = self.last_store[c] // 36 + d_flag
            if c not in published and fs <= 38:
                published.add(c)
                self.add_wait_tag(gaps, fs, ("st", c))
                gaps[36 * fs + 24].va.insert(0, valu("v_mov_b32", VFV, c + 1))
                gaps[36 * fs + 29].vm.append(self.flag_store())
            ps = fs + d_poll
            cs = ps + d_chk
            if rho >= n_in or cs > 38:
                self.hu_pending.append((rho, 0))
                continue
            self.hu_inloop.add(rho)
            gaps[36 * ps + 35].vm.append(self.poll_load(("poll", rho)))
            self.post[104 + cs - 1] += self.check_spin(c + 1, f"L_sp{rho}", WaitTag([("poll", rho)])) + [self.hu_base(rho)]
            t, st_ = 0, cs
            while t < 8 and st_ < 40:
                for gi in sorted((35, 11, 17)[:int(self.cfg['hu_per'])]):
                    if t == 8: break
                    if st_ == cs and gi < 24: continue
                    g = gaps[36 * st_ + gi]
                    if g.vm: continue
                    g.vm.append(self.hu_load(rho, t))
                    g.post.append(self.hu_adv(rho))
                    t += 1
                st_ += 1
            self.hu_end = getattr(self, "hu_end", {})
            self.hu_end[rho] = st_
            if rho - 2 in self.hu_end: assert self.hu_end[rho - 2] <= cs, (rho, self.hu_end, cs)
            ms = st_ + int(self.cfg["d_mfma"])
            if t == 8 and ms <= 39:
                self.post[104 + ms - 1] += self.hu_mfma(rho)
            else:
                self.hu_pending.append((rho, t, "polled"))

    def hu_tail(self):
        pend = self.hu_pending
        ready = [p[0] for p in pend if len(p) == 3 and p[1] == 8]
        partial = [(p[0], p[1]) for p in pend if len(p) == 3 and p[1] < 8]
        late = [p[0] for p in pend if len(p) == 2]
        flag = lambda k: [valu("v_mov_b32", VFV, k), self.flag_store()]

        def loads(r, t0=0):
            o = [self.hu_base(r)] if t0 == 0 else []
            for t in range(t0, 8): o += [self.hu_load(r, t), self.hu_adv(r)]
            return o
        o = self.tstamp(0)
        if late: o += [self.poll_load(("poll", "late"))]
        o += [WaitTag([("st", 8)]), barrier()] + flag(9)
        for r in ready: o += self.hu_mfma(r)
        o += self.tstamp(1)
        o += [WaitTag([("st", 9)]), barrier()] + self.tstamp(2) + flag(10)
        inflight = []
        for r, t0 in partial:
            o += loads(r, t0)
            inflight.append(r)
        if late:
            c = max(self.HU_NEED[r] for r in late)
            o += self.check_spin(c + 1, "L_spl", WaitTag([("poll", "late")])) + [barrier()]
            for r in late:
                if len(inflight) >= 4: o += self.hu_mfma(inflight.pop(0))
                o += loads(r)
                inflight.append(r)
        o += self.tstamp(3)
        o += [self.poll_load(("poll", 9))]
        while len(inflight) > 1: o += self.hu_mfma(inflight.pop(0))
        o += self.check_spin(9, "L_sp9", WaitTag([("poll", 9)])) + [barrier()] + self.tstamp(4)
        o += loads(6) + [self.poll_load(("poll", "fin"))]
        for r in inflight: o += self.hu_mfma(r)
        o += self.tstamp(5) + self.check_spin(10, "L_spf", WaitTag([("poll", "fin")])) + [barrier()] + self.tstamp(6)
        o += loads(7) + self.tstamp(7) + self.hu_mfma(6) + self.tstamp(8) + self.hu_mfma(7) + self.tstamp(9) + self.tstamp(10)
        return o

    def tstamp(self, k):
        if not self.cfg["steptime"]: return []
        return [I("s_memtime s[92:93]", "salu"), raw("s_waitcnt lgkmcnt(0)"), raw(f"v_writelane_b32 v255, s92, {20 + k}", "valu")]


def stamp(k):
    return [I("s_memtime s[56:57]", "salu"), raw("s_waitcnt lgkmcnt(0)"), salu("s_mov_b32", S(64 + k), S(56))]


def main_kernel(cfg):
    g = Gen3(cfg)
    T = cfg["timing"]
    pro = [label("mha_main_kernel"), scmp("s_cmp_ge_u32", S(2), 256), branch("s_cbranch_scc1", "L_main_exit"),
           raw("s_load_dwordx16 s[64:79], s[0:1], 0")]
    if cfg["pf_entry"]:
        pro += [I("s_getpc_b64 s[56:57]", "salu"), label("L_pce"), raw("s_add_u32 s56, s56, mha_main_kernel-L_pce"), raw("s_addc_u32 s57, s57, -1") if False else raw("s_subb_u32 s57, s57, 0") if False else raw("s_nop 0"),
                ]
        pro = pro[:-4] + [I("s_getpc_b64 s[56:57]", "salu"), label("L_pce"),
                raw("s_and_b32 s56, s56, 0xffffff00"),
                valu("v_lshlrev_b32", V(1), 7, V(0)), raw("v_mov_b32 v3, s57", "valu"),
                raw("v_add_co_u32 v2, vcc, s56, v1", "valu"), raw("s_nop 1"), raw("v_addc_co_u32 v3, vcc, 0, v3, vcc", "valu"),
                I(f"global_load_dword {rtxt(JUNK)}, v[2:3], off", "vmem", [], [])]
    lane_ops = []
    wreg = build_lane_consts(lane_ops)
    t0, t1 = s_t[0], s_t[1]
    nb = int(cfg["map_nb"]); npair = 32 // nb
    lg = lambda v: v.bit_length() - 1
    seen = set()
    for wg in range(256):
        a0, j = wg & 7, wg >> 3
        pj = (j & (npair - 1)) + ((a0 & (16 // npair - 1)) << lg(npair))
        bb = (j >> lg(npair)) + ((a0 >> lg(16 // npair)) << lg(nb))
        seen.add((bb, pj))
    assert len(seen) == 256
    ids = [
        salu("s_and_b32", t0, S(2), 7), salu("s_lshr_b32", t1, S(2), 3),
        salu("s_and_b32", s_pj, t1, npair - 1), salu("s_lshr_b32", s_b, t1, lg(npair)),
        salu("s_and_b32", t1, t0, 16 // npair - 1), salu("s_lshl_b32", t1, t1, lg(npair)), salu("s_add_u32", s_pj, s_pj, t1),
        salu("s_lshr_b32", t0, t0, lg(16 // npair)), salu("s_lshl_b32", t0, t0, lg(nb)), salu("s_add_u32", s_b, s_b, t0),
        salu("s_lshl_b32", s_h0, s_pj, 1),
        salu("s_mul_i32", s_wb, s_h0, 384), salu("s_mul_i32", s_xb, s_b, 245760)]
    wave_sc = [salu("s_mul_i32", s_w3072, s_w, 3072), salu("s_lshl_b32", s_w6144, s_w3072, 1)]
    srd_first = srd(SRD_X, 64, 16 * 192 * 640 * 2) + srd(SRD_W, 70, 640 * 6144 * 2)
    srd_rest = srd(SRD_K, 66, 16 * 32 * 512 * 192 * 2) + srd(SRD_V, 68, 16 * 32 * 512 * 192 * 2)
    srd_rest += srd(SRD_WO, 72, 6144 * 640 * 2) + srd(SRD_WS, 78, 402653184)
    srd_rest += [salu("s_mov_b32", s_outp[0], S(74)), salu("s_mov_b32", s_outp[1], S(75)),
                 salu("s_mov_b32", s_dbgp[0], S(76)), salu("s_mov_b32", s_dbgp[1], S(77))]
    sc_rest = [
        salu("s_lshl_b32", t0, s_b, 5), salu("s_add_u32", t0, t0, s_h0), salu("s_mul_i32", s_kvb, t0, 196608),
        salu("s_add_u32", s_kvb1, s_kvb, 196608),
        salu("s_lshr_b32", s_n0, S(2), int(cfg["rot_shift"])), salu("s_mul_i32", s_n0, s_n0, int(cfg["rot_mul"])), salu("s_and_b32", s_n0, s_n0, 15),
        salu("s_mul_i32", s_ob, s_h0, 245760),
        salu("s_lshl_b32", t0, s_b, 4), salu("s_add_u32", t0, t0, s_pj),
        salu("s_mul_i32", s_pst[0], t0, 245760), salu("s_add_u32", s_pst[0], s_pst[0], PART_OFF),
        salu("s_add_u32", s_pst[1], s_pst[0], 4096),
        salu("s_mov_b32", s_thr, THR_BITS), salu("s_mov_b32", S(48), C_BITS), salu("s_mov_b32", S(49), C_BITS),
    ]
    clr = []
    if cfg["fused"]:
        clr = [salu("s_lshl_b32", t0, s_b, 8), salu("s_lshl_b32", t1, s_pj, 2), salu("s_add_u32", t0, t0, t1),
               salu("s_add_u32", t0, t0, FLAG_OFF), valu("v_mov_b32", PT(8), 0),
               vstore(PT(8), VFO, SRD_WS, t0, 0, " sc1", tag=("clr",), width=1)]
    rfl = [nop(0), I(f"v_readfirstlane_b32 {rtxt(s_w)}, {rtxt(wreg)}", "valu", [s_w], [wreg])]
    first = [it for it in g.seq if it.issue == -1]
    first_tiles = []
    for it in first:
        for m0, off, ins in g.units(it):
            first_tiles += [m0] + (off if isinstance(off, list) else [off]) + [nop(0)] + ins
    if cfg["fast_pro"]:
        need = set()
        for r in DA + DB + [wreg]: need |= regs(r)
        keep = []
        for ins in reversed(lane_ops):
            if ins.defs & need:
                keep.append(ins)
                if not (ins.defs <= ins.uses): need -= ins.defs
                need |= {u for u in ins.uses if u[0] == "v"}
        keep.reverse()
        pro += ids + keep + rfl + [raw("s_waitcnt lgkmcnt(0)")] + srd_first + wave_sc
        if T: pro += [I("s_memrealtime s[86:87]", "salu")]
        pro += first_tiles
        pro += lane_ops + srd_rest + sc_rest + clr
        if T: pro += stamp(0)
    else:
        pro += lane_ops + rfl + [raw("s_waitcnt lgkmcnt(0)")] + srd_first + srd_rest + ids + wave_sc + sc_rest
        if T: pro += [I("s_memrealtime s[86:87]", "salu")] + stamp(0)
        pro += clr

    gw = S(59)
    lane, lane128 = PT(3), PT(2)
    OOB = 0x7FFFFF00

    def masked(dst, src, n):
        return [valu("v_mov_b32", dst, OOB), raw(f"v_cmp_gt_u32 vcc, {n}, {rtxt(lane)}", "valu"), raw("s_nop 1"),
                raw(f"v_cndmask_b32 {rtxt(dst)}, {rtxt(dst)}, {rtxt(src)}, vcc", "valu")]
    pfs = [salu("s_lshl_b32", gw, S(2), 2), salu("s_add_u32", gw, gw, s_w),
           valu("v_and_b32", lane, 63, TID), valu("v_lshlrev_b32", lane128, 7, lane),
           valu("v_mul_u32_u24", PT(5), 21846, lane), valu("v_lshrrev_b32", PT(5), 16, PT(5)),
           valu("v_mul_u32_u24", PT(6), 3, PT(5)), valu("v_sub_u32", PT(6), lane, PT(6)),
           valu("v_mul_u32_u24", PT(5), 12288, PT(5)), valu("v_lshlrev_b32", PT(6), 7, PT(6)), valu("v_add_u32", PT(5), PT(5), PT(6))]
    pfs += masked(VTK[0], PT(5), 30) + masked(VTK[1], lane128, 60) + masked(PT(4), lane128, 30)
    pfs += [salu("s_and_b32", t0, gw, 15), salu("s_mul_i32", t0, t0, 768), salu("s_lshr_b32", S(100), gw, 4),
            salu("s_mul_i32", S(100), S(100), 122880), salu("s_add_u32", S(100), S(100), t0), salu("s_mul_i32", S(101), gw, 7680)]
    start = []
    if "x" in cfg["pf_start"]:
        start += [salu("s_mul_i32", t0, gw, 3840), pf_load(PT(4), SRD_X, t0)]
    if "w" in cfg["pf_start"]:
        start += [pf_load(VTK[0], SRD_W, S(100))]
    if "1" in cfg["pf_start"]:
        start += [salu("s_add_u32", t0, S(100), 384), pf_load(VTK[0], SRD_W, t0)]
    code_steps = cfg["_code_steps"]
    pfs2 = []
    if cfg["pf_code"]:
        pfs2 += [valu("v_and_b32", PT(7), 31, lane), valu("v_lshlrev_b32", PT(7), 7, PT(7)),
                 salu("s_lshl_b32", t0, s_w, 12), valu("v_add_u32", VL128, t0, PT(7))]
    if int(cfg["pf_start_step"]) == -2:
        pro += pfs + start
        pfs, start = [], []
    pfs += pfs2
    pfs += [valu("v_and_b32", PT(7), 63, TID), valu("v_lshlrev_b32", PT(7), 4, PT(7)), valu("v_add_u32", AWR, s_w3072, PT(7))]

    if not cfg["fast_pro"]: pro += first_tiles
    if cfg["tlb"]:
        tl = [valu("v_and_b32", PT(9), 1, TID)]
        for what in str(cfg["tlb"]):
            if what in "kv":
                tl += [valu("v_mul_u32_u24", PT(10), 393216 - 128, PT(9)), pf_load(PT(10), SRD_K if what == "k" else SRD_V, s_kvb)]
            elif what == "o":
                tl += [valu("v_mul_u32_u24", PT(10), 491520 - 128, PT(9)), pf_load(PT(10), SRD_WO, s_ob)]
            elif what == "p":
                tl += [valu("v_mul_u32_u24", PT(10), 245760 - 128, PT(9)), pf_load(PT(10), SRD_WS, s_pst[0])]
        pro += tl
    pro += pfs
    if cfg["pf_code"]:
        for k, st_ in enumerate(code_steps):
            if st_ < 0 and not (cfg["pf_entry"] and k == 0): pro += code_pf(f"L_code+{16384 * k}", sub=int(cfg["pf_sub"]))
    if cfg["pf_code_all"]:
        pro += [valu("v_lshlrev_b32", PT(9), 7, TID), valu("v_mov_b32", PT(10), S(2)), valu("v_lshlrev_b32", PT(10), 9, PT(10)),
                valu("v_add_u32", PT(9), PT(9), PT(10)),
                I("s_getpc_b64 s[56:57]", "salu"), label("L_pcall"), raw("s_add_u32 s56, s56, L_code-L_pcall"), raw("s_addc_u32 s57, s57, 0"),
                raw(f"v_mov_b32 v{VPC[1] + 1}, s57", "valu"), raw(f"v_add_co_u32 v{VPC[1]}, vcc, s56, {rtxt(PT(9))}", "valu"), raw("s_nop 1"),
                raw(f"v_addc_co_u32 v{VPC[1] + 1}, vcc, 0, v{VPC[1] + 1}, vcc", "valu"),
                raw(f"v_cmp_gt_u32 vcc, 4, {rtxt(TID)}", "valu"), raw("s_and_saveexec_b64 s[56:57], vcc"),
                raw("s_cbranch_execz L_pcall_skip"),
                I(f"global_load_dword {rtxt(JUNK)}, {rtxt(VPC)}, off", "salu", [], []), label("L_pcall_skip"),
                raw("s_mov_b64 exec, s[56:57]")]
    if int(cfg["pf_start_step"]) == -1: pro += start
    pro += [WaitTag([("item", it.name) for it in g.seq if it.need == -1]), barrier()]
    cnt_blk = []
    if cfg["fused"]:
        TMP = S(96, 4)
        vone = V(212) if cfg["fast_pro"] else PT(8)
        cnt_blk = srd(TMP, None, 256, s_dbgp) + [salu("s_lshl_b32", t0, s_b, 4), valu("v_mov_b32", vone, 1), WaitTag([("clr",)]),
                I(f"buffer_atomic_add {rtxt(vone)}, {rtxt(VFO)}, {rtxt(TMP)}, {rtxt(t0)} offen", "store", [], [vone, VFO, TMP, t0], tag=("cnt",))]
        if not cfg["fast_pro"]: pro += cnt_blk
    pro += g.x_reads3(g.X[(0, 0)]) + g.first_reads3(g.item[0]) + [wait(lgkm=4)]
    pro.append(label("L_code"))

    if cfg["fast_pro"]: g.pre[5] += cnt_blk
    g.build_frames()
    g.place_dma()
    g.place_reg_tiles()
    g.place_fixes()
    def put(s, gi, ins_list):
        gp = g.gaps[s][gi]
        for x in ins_list:
            if x.cls in ("vmem",): gp.vm.append(x)
            else: gp.sc.append(x)
    def tlb_touch(h, tmp):
        st = int(cfg["tlb_stride"])
        n = (196608 + st - 1) // st
        o = [valu("v_mul_u32_u24", tmp, st, TID), valu("v_mov_b32", V(tmp[1] + 1), OOB),
             raw(f"v_cmp_gt_u32 vcc, {n}, {rtxt(TID)}", "valu"), raw("s_nop 1"),
             raw(f"v_cndmask_b32 {rtxt(tmp)}, v{tmp[1] + 1}, {rtxt(tmp)}, vcc", "valu"),
             salu("s_add_u32", t0, s_kvb, h * 196608)]
        for sr in (SRD_K, SRD_V):
            x = pf_load(tmp, sr, t0)
            x.txt += " nt"
            o.append(x)
        return o
    if int(cfg["tlb0"]) >= 0: g.pre[int(cfg["tlb0"])] += tlb_touch(0, V(192))
    if int(cfg["tlb1"]) >= 0: g.pre[int(cfg["tlb1"])] += tlb_touch(1, V(128))
    if int(cfg["pf_start_step"]) >= 0:
        g.pre[int(cfg["pf_start_step"])] += start
    if cfg["w1_split"]:
        steps_ = [int(x) for x in str(cfg["w1_split"]).split(".")]
        n_ = 30 // len(steps_)
        for k, st_ in enumerate(steps_):
            g.pre[st_] += [valu("v_subrev_u32", V(213), n_ * k, V(215)), valu("v_mov_b32", V(214), OOB),
                           raw(f"v_cmp_gt_u32 vcc, {n_}, v213", "valu"), raw("s_nop 1"),
                           raw(f"v_cndmask_b32 v214, v214, {rtxt(VTK[0])}, vcc", "valu"),
                           salu("s_add_u32", t0, S(100), 384), pf_load(V(214), SRD_W, t0)]
        g.pre[steps_[0]] = [valu("v_and_b32", V(215), 63, TID)] + g.pre[steps_[0]]
    elif int(cfg["pf_w1"]) == 19:
        g.post[19] = [salu("s_add_u32", t0, S(100), 384), pf_load(VTK[0], SRD_W, t0)] + g.post[19]
    elif int(cfg["pf_w1"]) >= 0:
        put(int(cfg["pf_w1"]), 9, [salu("s_add_u32", t0, S(100), 384)])
        put(int(cfg["pf_w1"]), 11, [pf_load(VTK[0], SRD_W, t0)])
    if cfg["wo_split"]:
        steps_ = [int(x) for x in str(cfg["wo_split"]).split(".")]
        n_ = 60 // len(steps_)
        for k, st_ in enumerate(steps_):
            g.pre[st_] += [valu("v_mov_b32", V(214), OOB), raw(f"v_cmp_gt_u32 vcc, {n_}, {rtxt(V(215))}", "valu"), raw("s_nop 1"),
                           raw(f"v_cndmask_b32 v214, v214, {rtxt(VTK[1])}, vcc", "valu"),
                           salu("s_add_u32", t0, S(101), 128 * n_ * k), pf_load(V(214), SRD_WO, t0)]
        g.pre[steps_[0]] = [valu("v_and_b32", V(215), 63, TID)] + g.pre[steps_[0]]
    elif int(cfg["pf_wo"]) == 52:
        g.post[51] += [pf_load(VTK[1], SRD_WO, S(101))]
    elif int(cfg["pf_wo"]) >= 0:
        put(int(cfg["pf_wo"]), 11, [pf_load(VTK[1], SRD_WO, S(101))])
    if cfg["pf_code"]:
        for k, st_ in enumerate(code_steps):
            if st_ >= 0: g.pre[st_] += code_pf(f"L_code+{16384 * k}", sub=int(cfg["pf_sub"]))
    if cfg["fused"]:
        g.pre[80] += srd(SRD_DBG2, None, 256, s_dbgp) + [salu("s_lshl_b32", s_b16, s_b, 4),
                      I(f"buffer_load_dword {rtxt(VCHK)}, {rtxt(VFO)}, {rtxt(SRD_DBG2)}, {rtxt(s_b16)} offen sc1", "vmem", [VCHK],
                        [VFO, SRD_DBG2, s_b16], tag=("chk",))]
    if cfg["hide_n"]:
        g.rinv_fill(0); g.rinv_fill(1)
        g.n0_fill()
        g.n1_fill()
        if cfg["fused"]:
            g.post[103] += g.hu_setup()
    for h in range(2):
        g.a_fill(h)
        g.post[52 * h + 19] += g.dump_block.get(52 * h + 19, []) + g.q_pack()
        if not cfg["hide_n"]:
            g.post[52 * h + 51] += g.n_block(h)
    g.o_fill()

    body = []
    marks = {0: 1, 20: 3, 52: 5, 72: 7}
    ends = {19: 2, 51: 4, 71: 6, 103: 8}
    for s in range(NSTEP):
        body.append(label(f"L_st{s}"))
        if T and s in marks: body += stamp(marks[s])
        body += g.pre[s]
        for gp in g.gaps[s]: body += gp.flat()
        if T and s in ends: body += stamp(ends[s])
        body += g.post[s]

    fin = []
    if T:
        fin += stamp(9)
    fin += [raw("s_waitcnt vmcnt(0)")]
    if T:
        fin += [I("s_memtime s[56:57]", "salu"), I("s_memrealtime s[88:89]", "salu"), raw("s_waitcnt lgkmcnt(0)"),
                salu("s_mov_b32", S(74), S(56)), salu("s_mov_b32", S(90), S(88)), salu("s_sub_u32", S(88), S(88), S(86))]
        lst = [64, 65, 66, 67, 68, 69, 70, 71, 72, 73, 74, 88, 86, 90]
        for k, sr in enumerate(lst): fin.append(valu("v_mov_b32", V(k), S(sr)))
        fin += [salu("s_lshl_b32", t0, S(2), 6), salu("s_add_u32", t0, t0, 300 * 1024 * 1024), valu("v_mov_b32", V(20), 0),
                raw(f"v_cmp_eq_u32 vcc, 0, {rtxt(TID)}", "valu"), raw("s_and_saveexec_b64 s[56:57], vcc")]
        for k in range(0, 16, 4): fin.append(vstore(V(k, 4), V(20), SRD_WS, t0, 4 * k))
        fin += [raw("s_waitcnt vmcnt(0)")]
        if cfg["steptime"]:
            fin += [raw("s_mov_b64 exec, -1"), salu("s_mul_i32", t0, S(2), 768), salu("s_add_u32", t0, t0, 320 * 1024 * 1024),
                    raw(f"v_cmp_gt_u32 vcc, 64, {rtxt(TID)}", "valu"), raw("s_and_saveexec_b64 s[56:57], vcc"),
                    valu("v_lshlrev_b32", V(20), 2, TID)]
            for k in range(3): fin.append(vstore(V(253 + k), V(20), SRD_WS, t0, 256 * k, width=1))
            fin += [raw("s_waitcnt vmcnt(0)")]
    fin += [label("L_main_exit"), raw("s_endpgm")]

    seq = pro + body
    state = {"checked": set(), "published": set()}
    for x in seq:
        if x.cls == "label" and str(x.info).startswith("L_sp") and str(x.info).endswith("_ok"):
            state["checked"].add(x.info[4:-3])
        elif x.cls == "barrier":
            state["published"] |= state["checked"]
        elif x.cls == "vmem" and isinstance(x.tag, tuple) and x.tag and x.tag[0] == "red":
            rho = x.tag[1]
            ok = str(rho) in state["published"] or "f" in state["published"] or ("l" in state["published"] and rho < 6) or (rho == 6 and "9" in state["published"])
            assert ok, ("partial load not ordered after its check", x.tag, state)
    res, errs, _, maxout = resolve_and_check(seq, "main")
    for e in errs[:30]: print("ERR", e, file=sys.stderr)
    assert not errs, len(errs)
    assert maxout <= 63, maxout
    final = []
    for w in seq:
        if isinstance(w, WaitTag):
            vals = [v for v in res[id(w)] if v is not None]
            vm, lgk = (min(vals) if vals else None), (w.lres if w.info[1] == "auto" else w.info[1])
            if vm is None and lgk is None:
                continue
            final.append(wait(vm, lgk))
        else:
            final.append(w)
    seq = final
    _, errs, _, _ = resolve_and_check(seq, "final")
    for e in errs[:30]: print("ERR", e, file=sys.stderr)
    assert not errs, len(errs)
    stubs = []
    for k, p in enumerate(g.rare_sites):
        stubs += [label(f"L_rs{k}"), I(f"s_call_b64 {rtxt(s_ret)}, L_rare{p}", "branch"), branch("s_branch", f"L_rr{k}")]
    rare = g.rare_code(0) + g.rare_code(1)
    return seq + fin + stubs + rare


SRD_DBG2 = SRD_DBG

MACROS = """.macro MF d,a,b,c
v_mfma_f32_16x16x32_bf16 \\d,\\a,\\b,\\c
.endm
.macro TR d,a,o
ds_read_b64_tr_b16 \\d,\\a offset:\\o
.endm
.macro RD d,a,o
ds_read_b128 \\d,\\a offset:\\o
.endm
"""


def compact(line):
    import re
    t = line.strip()
    if t.startswith("v_mfma_f32_16x16x32_bf16 "):
        return "MF " + t.split(" ", 1)[1].replace(", ", ",")
    m = re.match(r"ds_read_b64_tr_b16 (\S+), (\S+) offset:(\d+)$", t)
    if m: return f"TR {m.group(1)},{m.group(2)},{m.group(3)}"
    m = re.match(r"ds_read_b128 (\S+), (\S+) offset:(\d+)$", t)
    if m: return f"RD {m.group(1)},{m.group(2)},{m.group(3)}"
    return t.replace(", ", ",")


HEADER = """; Fused multi-head attention block for MI355X (gfx950); assembly produced by my own generator script.
"""


def text_of(cfg, m, pad):
    kname = KNAME if cfg["single"] else "mha_main_kernel"
    lds = int(cfg["R"]) * SLOT
    s = HEADER
    if cfg["single"]:
        s += f"; @launch grid=(256,1,1) block=(256,1,1) lds={lds}\n"
    else:
        s += f"; @launch kernel=mha_main_kernel grid=(256,1,1) block=(256,1,1) lds={lds}\n"
        if not cfg["fused"]:
            s += "; @launch kernel=mha_reduce_kernel grid=(960,1,1) block=(256,1,1) lds=0\n"
    s += '.amdgcn_target "amdgcn-amd-amdhsa--gfx950"\n'
    if cfg["macros"]: s += MACROS
    s += ".text\n"
    ks = [(kname, m)]
    if not cfg["fused"]: ks.append(("mha_reduce_kernel", G.reducer_kernel(cfg)))
    for nm, code in ks:
        lines = []
        for i in code:
            for ln in i.txt.split("\n"):
                lines.append(compact(ln) if cfg["macros"] and i.cls != "label" else ln)
        s += f".globl {nm}\n.p2align 8\n.type {nm},@function\n" + "\n".join(lines).replace("mha_main_kernel:", kname + ":") + "\n"
    s += f".fill {pad}, 4, 0xBF800000\nL_text_end:\n"
    s += '.section .rodata,"a"\n.p2align 6\n' + kd(kname, 512, 256)
    if not cfg["fused"]: s += ".p2align 6\n" + kd("mha_reduce_kernel", 88, 88)
    return s


def assemble_syms(text):
    open("_g3.s", "w").write(text)
    r = subprocess.run(["clang", "-x", "assembler", "-target", "amdgcn-amd-amdhsa", "-mcpu=gfx950", "-c", "_g3.s", "-o", "_g3.o"],
                       capture_output=True, text=True)
    assert r.returncode == 0, r.stderr[:2000]
    sy = subprocess.run(["llvm-readelf", "-s", "_g3.o"], capture_output=True, text=True).stdout
    return {ln.split()[-1]: int(ln.split()[1], 16) for ln in sy.splitlines() if " L_" in ln and len(ln.split()) >= 8}


def build(cfg, path):
    import importlib
    cfg = dict(cfg)
    cfg["_code_steps"] = [-1] + [max(0, 21 * k - 10) for k in range(1, 8)]
    for it in range(2):
        G.code_pf.n = 0
        m = main_kernel(cfg)
        addr = assemble_syms(text_of(cfg, m, 64))
        base = addr["L_code"]
        end = addr["L_main_exit"] - base
        npiece = (end + 16383) // 16384
        steps = []
        for k in range(npiece):
            first = min([s for s in range(NSTEP) if addr[f"L_st{s}"] - base + 1024 > 16384 * k] or [NSTEP - 1])
            s_ = first - int(cfg["code_lead"])
            steps.append(-1 if s_ < 0 else s_)
        cfg["_code_steps"] = steps
    G.code_pf.n = 0
    m = main_kernel(cfg)
    addr = assemble_syms(text_of(cfg, m, 64))
    span = max(16384 * len(cfg["_code_steps"]), 131072)
    need = addr["L_code"] + span + 256 - addr["L_text_end"]
    pad = 64 + max(0, (need + 3) // 4)
    s = text_of(cfg, m, pad)
    open(path, "w").write(s)
    n_main = sum(1 for i in m if i.cls != "label")
    print(f"wrote {path}: {len(s)} bytes, {n_main} instrs, code {addr['L_main_exit'] - addr['L_code']} B, pad {pad}, code pf steps {cfg['_code_steps']}", file=sys.stderr)


if __name__ == "__main__":
    cfg = dict(CFG)
    path = "out3.s"
    for a in sys.argv[1:]:
        if "=" in a:
            k, v = a.split("=", 1)
            assert k in cfg, k
            cfg[k] = {"True": True, "False": False}.get(v, v)
        else:
            path = a
    build(cfg, path)
```

```python
import sys
import subprocess
import numpy as np
from asmlib import *
import gen as G
from gen import (ACC, SB, SBr, PB, PBr, TT, NEGM, NEGMr, L, LT, MT, OACC, CT, CTr, QF, QFr, AK, AV, AW, AO, DKV, DA, DB, DO,
                 AX, PSV, PT, TID, JUNK, VPC, VL128, VTK, VFO, VCHK, RD, SEL, FLG, VPOLL, VFV, VOUT, VZ, PSL, PART_OFF, FLAG_OFF,
                 SRD_DBG, SRD_OUT, s_outp, s_dbgp, s_b16, s_kw, s_pb, s_ro, s_rl, OA, OAr, O0P, O0Pr, FB, FBh,
                 SRD_A, SRD_K, SRD_V, SRD_WO, SRD_WS, SRD_B, s_w3072, s_pst, s_thr, s_c2, s_h0, s_b, s_pj, s_w, s_t, s_ret,
                 THR_BITS, C_BITS, SLOT, build_lane_consts, autonop, srd, pf_load, code_pf, kd, KNAME, Gen, a_item)
import sched

CFG = dict(
    nt_kv=True, timing=False, steptime=False, pst_flags=" sc1", red_flags=" sc1",
    dspair_v=True, dspair_k=False, dspair_w=False, no_st=False, map_nb=8,
    fused=True, single=False, kv_same=False,
    R=13, P=3, P0=None, DW=4, DX=3, NW0=6, NX0=2, xres=23,
    kv_rot=False, rot_shift=0, rot_mul=1,
    tlb0=-1, tlb1=-1, tlb_stride=4096,
    npair0=0, DX0=0, NX00=0, nt_w0=False, nt_w1=False, nt_x0=False, nt_x1=False,
    RP=0, npair=2, rp_start0=3, rp_start1=0, rp_space=1.2,
    DW0=0, NW00=0, tlb='', park0='', park1='', d_flag=2, d_poll=1, d_chk=2, d_mfma=3, hu_in=6, hu_per=3, hu_pre=True, spin_sleep=2, stamp_entry=False, fast_pro=True, out_flags='', pf_sub=8, pf_entry=False, hide_n=True, wo_split='53.57.61.65', w1_split='', pro_max=7, early_max=4, early_steps=3,
    pf_code=True, pf_w1=8, pf_wo=52, pf_start="xw", pf_start_step=0, code_lead=14, pf_code_all=False, macros=True,
)

SRD_X, SRD_W = SRD_A, SRD_B
G.SRD_DBG = S(4, 4)
SRD_DBG = G.SRD_DBG
s_kvb, s_wb, s_xb, s_ob = S(33), S(34), S(37), S(38)
s_do = [S(35), S(36)]
s_w6144 = S(41)
NSTEP = 144


VCHK = V(143)
AWR = V(246)
s_rp = S(39)
s_n0, s_kvb1 = S(40), S(42)
s_rl2 = [S(63), S(62)]
VHL = V(132)


def o_cs(j, reorder):
    if reorder and j < 8:
        return [(0, 0), (0, 1), (1, 0), (1, 1), (0, 2), (0, 3), (1, 2), (1, 3)][j]
    return j // 4, j % 4


def XF(u, half, qb): return V(144 + ((u % 2) * 2 + half) * 12 + 4 * qb, 4)


class Gen3(Gen):
    def __init__(self, cfg):
        self.cfg = cfg
        self.rare_sites = []
        i = lambda k: int(cfg[k])
        self.R = i("R")
        self.seq, self.X, self.W, self.KV, self.O = sched.build(
            R=self.R, P=i("P"), DW=i("DW"), DX=i("DX"), NW0=i("NW0"), NX0=i("NX0"),
            P0=None if cfg["P0"] in (None, "None") else int(cfg["P0"]), xres=i("xres"),
            pro_max=i("pro_max"), early_max=i("early_max"), early_steps=i("early_steps"),
            park0=[int(x) for x in str(cfg["park0"]).split(".")] if cfg["park0"] else None,
            park1=[int(x) for x in str(cfg["park1"]).split(".")] if cfg["park1"] else None,
            DW0=int(cfg["DW0"]) or None, NW00=int(cfg["NW00"]) or None, RP=i("RP"), npair=i("npair"),
            rp_load=self.rp_load_step, npair0=int(cfg["npair0"]) or None, DX0=int(cfg["DX0"]) or None, NX00=int(cfg["NX00"]) or None)
        self.item = []
        for h in range(2):
            self.item += [self.W[(h, t)] for t in range(20)] + [self.KV[(h, j)] for j in range(32)]
        self.item += [self.O[j] for j in range(40)]
        self.gaps = [None] * NSTEP
        self.pre = {s: [] for s in range(NSTEP)}
        self.post = {s: [] for s in range(NSTEP)}
        self.regs = {"K": AK, "V": AV, "W": AW, "O": AO}
        self.plan = {}
        for kind in self.regs:
            its = [it for it in self.item if it.kind == kind]
            k = 0
            while k < len(its):
                lo = hi = its[k].slot
                e = k
                while e + 1 < len(its):
                    nl, nh = min(lo, its[e + 1].slot), max(hi, its[e + 1].slot)
                    if nh - nl > 4: break
                    lo, hi = nl, nh
                    e += 1
                for q in range(k, e + 1): self.plan[its[q].name] = lo * SLOT
                k = e + 1
        self.base = {kind: [0] * len(self.regs[kind]) for kind in self.regs}
        self.nunit = 0
        self.fixes = {}
        self.dump_block = {}
        self.rp1_first = {}

    def rp_load_step(self, h, k):
        s = int(float(self.cfg["rp_start0" if h == 0 else "rp_start1"]) + k * float(self.cfg["rp_space"]))
        if h == 1 and self.cfg["hide_n"]:
            s = max(s, int(2.45 * (k // 2 + 1)) + 1)
        return s

    def place_fixes(self):
        for s, lst in self.fixes.items():
            gaps = self.gaps[s]
            for x, lo, hi in lst:
                c = [g for g in range(lo, hi + 1) if gaps[g].free() == 1 and not gaps[g].vm and g != 23]
                if not c: c = [g for g in range(lo, hi + 1) if gaps[g].free() >= 1 and not gaps[g].vm and g != 23]
                if not c: c = [hi]
                gaps[c[0]].va.append(x)

    def frag_reads3(self, it, f, buf):
        win = self.plan[it.name]
        off = it.slot * SLOT - win
        kind = it.kind
        if kind == "K":
            kt, kb = f // 6, f % 6
            ri = kb % 2
            return [(ds_read("ds_read_b128", FB(buf, f % 2), AK[ri], off + kt * 6144 + (kb // 2) * 128), ri, win)]
        ri, j = f % 4, f // 4
        o, d2 = {"V": (off + 128 * j, 6144), "W": (off + 128 * j, 1536), "O": (off + 4096 * j, 2048)}[kind]
        r = self.regs[kind][ri]
        return [(ds_read("ds_read_b64_tr_b16", FBh(buf, f % 2, 0), r, o), ri, win),
                (ds_read("ds_read_b64_tr_b16", FBh(buf, f % 2, 1), r, o + d2), ri, win)]

    def fix(self, kind, ri, win):
        B = self.base[kind]
        if B[ri] == win: return None
        d = win - B[ri]
        B[ri] = win
        r = self.regs[kind][ri]
        return valu("v_add_u32", r, d, r) if d > 0 else valu("v_subrev_u32", r, -d, r)

    def place_reads3(self, gaps, g0, it, grp, cur=None):
        rl = []
        for f in (2 * grp, 2 * grp + 1):
            rl += self.frag_reads3(it, f, grp % 3)
        fx = [x for x in (self.fix(it.kind, ri, win) for _, ri, win in rl) if x is not None]
        if fx:
            same = (cur is not None and cur.kind == it.kind)
            if it.kind == "K":
                lo = 20 if same else 2
            elif g0 == 24:
                lo = 16 if same else 2
            else:
                lo = 22 if same else 2
            self.pending_fix += [(x, lo, g0 - 1) for x in fx]
        pair = self.cfg["dspair_k"] if it.kind == "K" else (self.cfg["dspair_v"] if it.kind == "V" else self.cfg["dspair_w"])
        for k, (ins, ri, win) in enumerate(rl):
            gaps[g0 + (k // 2 if pair else k)].ds.append(ins)
        return len(rl)

    def first_reads3(self, it):
        out = []
        for grp in range(2):
            for f in (2 * grp, 2 * grp + 1):
                for ins, ri, win in self.frag_reads3(it, f, grp % 3):
                    x = self.fix(it.kind, ri, win)
                    if x is not None: out.append(x)
                    out.append(ins)
        for ri in range(len(self.regs[it.kind])):
            x = self.fix(it.kind, ri, self.plan[it.name])
            if x is not None: out.append(x)
        return out

    def x_reads3(self, it):
        u = it.n
        return [ds_read("ds_read_b128", XF(u, half, qb), AX[half], it.slot * SLOT + 2048 * qb) for half in range(2) for qb in range(3)]

    def units(self, it):
        tag = ("item", it.name)
        out = []
        for k in range(it.units):
            so = s_do[self.nunit % 2]
            self.nunit += 1
            nt = False
            if it.kind == "X":
                m0 = salu("s_add_u32", "m0", s_w6144, it.slot * SLOT + 3072 * k)
                off = salu("s_add_u32", so, s_xb, 128 * it.n + 30720 * k)
                vo, sr = DA, SRD_X
                nt = bool(self.cfg["nt_x0"]) if it.h == 0 else bool(self.cfg["nt_x1"])
            else:
                m0 = salu("s_add_u32", "m0", s_w3072, it.slot * SLOT)
                if it.kind in "KV":
                    off = self.kv_off(so, it)
                    vo, sr = DKV, (SRD_K if it.kind == "K" else SRD_V)
                    nt = self.cfg["nt_kv"]
                elif it.kind == "W":
                    off = salu("s_add_u32", so, s_wb, it.h * 384 + it.n * 393216)
                    vo, sr = DB, SRD_W
                    nt = bool(self.cfg["nt_w0"]) if it.h == 0 else bool(self.cfg["nt_w1"])
                else:
                    c, s = o_cs(it.n, self.cfg["hide_n"])
                    off = salu("s_add_u32", so, s_ob, s * 122880 + c * 128)
                    vo, sr = DO, SRD_WO
            out.append((m0, off, [dma(vo[i], sr, so, 1024 * i, nt, tag=tag) for i in range(3)]))
        return out

    def kv_off(self, so, it):
        if self.cfg["kv_rot"] and not self.cfg["kv_same"]:
            return [salu("s_xor_b32", so, s_n0, it.n), salu("s_mul_i32", so, so, 12288),
                    salu("s_add_u32", so, so, s_kvb if it.h == 0 else s_kvb1)]
        imm = it.h * 196608 + (0 if self.cfg["kv_same"] else it.n * 12288)
        return salu("s_add_u32", so, s_kvb, imm)

    def place_dma(self):
        for b in range(NSTEP):
            un = []
            for it in self.seq:
                if it.issue == b and not getattr(it, "reg", False): un += self.units(it)
            assert len(un) <= 4
            if len(un) == 1:
                pos = [[(0, 28), (1, 4), (1, 16)]]
            elif len(un) == 2:
                pos = [[(0, 28), (0, 34), (1, 4)], [(1, 10), (1, 16), (1, 22)]]
            elif len(un) > 2:
                pos = [[(0, 28), (0, 29), (0, 34)], [(1, 2), (1, 4), (1, 5)], [(1, 8), (1, 10), (1, 11)], [(1, 14), (1, 16), (1, 17)]][:len(un)]
            else:
                pos = []
            for (m0, off, ins), ps in zip(un, pos):
                for i, (ds_, gi) in enumerate(ps):
                    g = self.gaps[b + ds_]
                    if i == 0:
                        if isinstance(off, list):
                            (g[gi - 3] if gi >= 3 else self.gaps[b + ds_ - 1][36 + gi - 3]).sc.append(off[0])
                            g[gi - 2].sc += [off[1], m0]; g[gi - 1].sc.append(off[2])
                        else:
                            g[gi - 2].sc.append(m0)
                            g[gi - 1].sc.append(off)
                    if len(un) > 2 and gi % 6 < 4 and g[gi].ds:
                        pass
                    g[gi].vm.append(ins[i])

    def place_reg_tiles(self):
        self.dbase = 0
        for h in range(2):
            its = [self.KV[(h, j)] for j in range(32) if getattr(self.KV[(h, j)], "reg", False)]
            start = float(self.cfg["rp_start0" if h == 0 else "rp_start1"])
            last_s = -1
            for k, it in enumerate(its):
                s = 52 * h + self.rp_load_step(h, k)
                while len([gi for gi in (5, 11, 17, 29, 35) if not self.gaps[s][gi].vm]) < 3 or s <= last_s: s += 1
                if h == 1: self.rp1_first[k] = s * 36 + min(gi for gi in (5, 11, 17, 29, 35) if not self.gaps[s][gi].vm)
                last_s = s
                assert s + 2 <= it.issue, (it, s)
                g = self.gaps[s]
                off = self.kv_off(s_rp, it)
                if isinstance(off, list):
                    for q, x in enumerate(off): g[1 + q].sc.append(x)
                else:
                    g[3].sc.append(off)
                free = [gi for gi in (5, 11, 17, 29, 35) if not g[gi].vm][:3]
                assert len(free) == 3, (s, free)
                for i, gi in enumerate(free):
                    g[gi].vm.append(vload(A(12 * k + 4 * i, 4), DKV[i], SRD_K if it.kind == "K" else SRD_V, s_rp, 1024 * i,
                                          " nt" if self.cfg["nt_kv"] else "", tag=("reg", it.name)))
                it.rk = k
            for b in sorted({it.issue for it in its}):
                grp = [it for it in its if it.issue == b]
                wr = []
                for it in grp:
                    off = it.slot * SLOT
                    pre = []
                    if not (0 <= off - self.dbase and off - self.dbase + 2048 + 1024 <= 65536):
                        nb = min(off, (self.R - 5) * SLOT)
                        d = nb - self.dbase
                        self.dbase = nb
                        pre = [valu("v_add_u32", AWR, d, AWR) if d > 0 else valu("v_subrev_u32", AWR, -d, AWR)]
                    wr.append((it, pre, [ds_write(AWR, A(12 * it.rk + 4 * i, 4), off - self.dbase + 1024 * i, tag=("dump", it.name)) for i in range(3)]))
                if b % 52 == 19:
                    blk = []
                    for it, pre, w in wr: blk += [WaitTag([("reg", it.name)])] + pre + w
                    self.dump_block[b] = blk
                    continue
                cand = [(b, gi) for gi in range(24, 36)] + [(b + 1, gi) for gi in range(0, 22)]
                ci = 0
                for it, pre, w in wr:
                    first = True
                    for x in w:
                        while True:
                            st_, gi = cand[ci]
                            gp = self.gaps[st_][gi]
                            ok = not gp.vm and gp.free() >= 1 and len(gp.ds) < 2
                            if first and pre:
                                pst, pg = cand[ci - 1] if ci > 0 else (None, None)
                                ok = ok and ci > 0
                            if ok: break
                            ci += 1
                        if first:
                            gp.sc.append(WaitTag([("reg", it.name)]))
                            if pre:
                                pst, pg = cand[ci - 1]
                                self.gaps[pst][pg].va += pre
                            first = False
                        gp.ds.append(x)
                        ci += 1

    def frame3(self, s, mf):
        it = self.item[s]
        nx = self.item[s + 1] if s + 1 < NSTEP else None
        gaps = [Gap(mf(i, FB((i // 6) % 3, (i // 3) % 2))) for i in range(36)]
        nds = [0] * 6
        self.pending_fix = []
        for Gi in range(6):
            if Gi < 4:
                nds[Gi] = self.place_reads3(gaps, 6 * Gi, it, Gi + 2)
            elif nx is not None:
                nds[Gi] = self.place_reads3(gaps, 6 * Gi, nx, Gi - 4, cur=it)
        xs = [x for x in self.X.values() if x.need == s]
        if xs:
            rd = self.x_reads3(xs[0])
            for k, gi in enumerate((24, 25, 26, 27, 30, 31)):
                gaps[gi].ds.append(rd[k])
            nds[4] += 4
            nds[5] += 2
        need = [("item", x.name) for x in self.seq if x.need == s]
        for Gi in range(6):
            gi = 6 * Gi + 5
            if Gi == 3 and nx is not None:
                lt = [("dump", x.name) for x in self.seq if x.need == s]
                bar = barrier()
                bar.info = lt
                gaps[gi].sc += [WaitTag(need, lgkm="auto", ltags=lt), bar]
            elif Gi == 5:
                if nx is not None: gaps[gi].sc.append(WaitTag([], lgkm="auto"))
            else:
                gaps[gi].sc.append(WaitTag([], lgkm="auto"))
        self.fixes[s] = self.pending_fix
        if self.cfg["steptime"]:
            gaps[24].post.append(I("s_memtime s[92:93]", "salu"))
            gaps[33].post += [raw("s_waitcnt lgkmcnt(0)"), raw(f"v_writelane_b32 v{253 + s // 64}, s92, {s % 64}", "valu")]
        self.gaps[s] = gaps

    def build_frames(self):
        for h in range(2):
            for t in range(20):
                def mf(i, fr, t=t):
                    T, qb = i // 3, i % 3
                    return mfma(ACC(T, qb), fr, XF(t // 2, t % 2, qb), 0 if t == 0 else ACC(T, qb))
                self.frame3(52 * h + t, mf)
            for j in range(32):
                kind, n = a_item(j)
                p = n % 2
                if kind == "K":
                    def mf(i, fr, p=p, n=n):
                        f, qb = i // 3, i % 3
                        kt, kb = f // 6, f % 6
                        c = (0 if n < 2 else NEGM(qb)) if kb == 0 else SB(p, kt, qb)
                        return mfma(SB(p, kt, qb), fr, QF(kb, qb), c)
                else:
                    def mf(i, fr, p=p, n=n):
                        T, qb = i // 3, i % 3
                        return mfma(OA(T, qb), fr, PB(p, qb), 0 if n == 0 else OA(T, qb))
                self.frame3(52 * h + 20 + j, mf)
        for j in range(40):
            c, s = o_cs(j, self.cfg["hide_n"])

            def mf(i, fr, s=s, p=c % 2):
                f, qb = i // 3, i % 3
                jj, nt = f // 4, f % 4
                ks = 3 * s + jj
                h, kb = ks // 6, ks % 6
                b = O0P(kb, qb) if h == 0 else QF(kb, qb)
                return mfma(OACC(p, nt, qb), fr, b, 0 if ks == 0 else OACC(p, nt, qb))
            self.frame3(104 + j, mf)

    def a_fill(self, h):
        s0 = 52 * h + 20
        gaps = [g for j in range(32) for g in self.gaps[s0 + j]]
        Gx = lambda j, i=0: 36 * j + i
        mops, fin = self.max_ops(0)
        for o in mops: o.earliest = Gx(1, 0)
        sm0, _ = self.softmax_ops(0, sub_deps=fin, earliest_kt=(Gx(1, 0), Gx(1, 2)))
        pend = list_schedule(gaps, mops + sm0, Gx(1, 0), Gx(2, 0))
        self.post[s0 + 1] += autonop(self.emit_tail(pend)) + [valu("v_mov_b32", L(qb), LT(qb)) for qb in range(3)]
        for n in range(1, 16):
            p = n % 2
            j0 = 2 * n
            j1 = j0 + 2 if n <= 14 else j0 + 1
            sub = [None, None, None] if n == 1 else None
            sm, ltl = self.softmax_ops(p, sub_deps=sub, earliest_kt=(Gx(j0, 0), Gx(j0, 3)), lacc=(n > 1))
            pend = list_schedule(gaps, sm + self.check_ops(ltl, p), Gx(j0, 0), Gx(j1, 0))
            self.post[s0 + j1 - 1] += autonop(self.emit_tail(pend)) + self.check_branch(p)
            if n == 15: self.post[s0 + j1 - 1] += self.l_acc()

    RINV = [V(192), V(193), V(194)]

    def rinv_fill(self, h):
        gaps = self.gaps[52 * h + 51]
        y = [MT(3 + qb) for qb in range(3)]
        dst = self.RINV if h == 0 else [MT(8), MT(9), MT(10)]
        ops, prev = [], [None] * 3
        for sw in ("v_permlane32_swap_b32", "v_permlane16_swap_b32"):
            for qb in range(3):
                o = Op(valu("v_mov_b32", y[qb], L(qb)), [(prev[qb], 0)] if prev[qb] else []); ops.append(o); prev[qb] = o
            for qb in range(3):
                o = Op(perm(sw, L(qb), y[qb]), [(prev[qb], 2)]); ops.append(o); prev[qb] = o
            for qb in range(3):
                o = Op(valu("v_add_f32", L(qb), L(qb), y[qb]), [(prev[qb], 1)]); ops.append(o); prev[qb] = o
        for qb in range(3):
            o = Op(vrcp(dst[qb], L(qb)), [(prev[qb], 0)]); ops.append(o)
        assert not list_schedule(gaps, ops, 0, 36)

    def norm_ops(self, h, tsets, rinv):
        ops, last_use, rd_last, unit_last = [], [[] for _ in tsets], {}, {}
        k = 0
        for kb in range(6):
            for qb in range(3):
                ts = k % len(tsets)
                t = tsets[ts]
                dep0 = [(x, 0) for x in last_use[ts]]
                rds = []
                for tt, T in enumerate((2 * kb, 2 * kb + 1)):
                    for r in range(4):
                        o = Op(I(f"v_accvgpr_read_b32 v{t + 4 * tt + r}, {rtxt(OAr(T, qb, r))}", "valu", [V(t + 4 * tt + r)], [OAr(T, qb, r)]), list(dep0))
                        ops.append(o); rds.append(o)
                        rd_last[T] = o
                mul = []
                for r in range(8):
                    o = Op(valu("v_mul_f32", V(t + r), V(t + r), rinv[qb]), [(rds[r], 0)]); ops.append(o); mul.append(o)
                cv = []
                for r in range(4):
                    d = V(t + r) if h == 0 else QFr(kb, qb, r)
                    deps = [(mul[2 * r], 0), (mul[2 * r + 1], 0)] + ([(cv[-1], 0)] if cv and h == 0 else [])
                    o = Op(valu("v_cvt_pk_bf16_f32", d, V(t + 2 * r), V(t + 2 * r + 1)), deps); ops.append(o); cv.append(o)
                fin = cv
                if h == 0:
                    fin = []
                    for r in range(4):
                        o = Op(I(f"v_accvgpr_write_b32 {rtxt(O0Pr(kb, qb, r))}, v{t + r}", "valu", [O0Pr(kb, qb, r)], [V(t + r)]), [(cv[r], 0), (cv[-1], 0)])
                        ops.append(o); fin.append(o)
                last_use[ts] = fin
                unit_last[(kb, qb)] = fin
                k += 1
        return ops, rd_last, unit_last

    def n0_fill(self):
        gaps = [g for s in range(52, 72) for g in self.gaps[s]]
        ops, rd_last, _ = self.norm_ops(0, [198, 206], self.RINV)
        pend = list_schedule(gaps, ops, 0, 36 * 19)
        assert not pend, len(pend)
        self.n0_free = {T: 52 * 36 + o.gap for T, o in rd_last.items()}
        for k, g0 in self.rp1_first.items():
            assert self.n0_free[k] < g0, (k, self.n0_free[k], g0)

    def n1_fill(self):
        gaps = [g for j in range(8) for g in self.gaps[104 + j]]
        rinv = [MT(8), MT(9), MT(10)]
        ops, _, unit_last = self.norm_ops(1, [112, 120], rinv)
        done = []
        lim = {kb: 36 * (4 + kb // 3) + 12 * (kb % 3) - 1 for kb in range(6)}
        g = 0
        rest = ops
        for kb in range(6):
            mine = [o for o in rest if any(o in unit_ops for unit_ops in [self._unit_ops(ops, kb)])]
            pend = list_schedule(gaps, mine, g, lim[kb])
            if pend:
                gi = lim[kb]
                gaps[gi].post += autonop([o.ins for o in pend]) + [nop(1)]
                for o in pend: o.gap = gi + 1
            rest = [o for o in rest if o not in mine]

    def _unit_ops(self, ops, kb):
        return ops[60 * kb:60 * kb + 60]

    def n_block(self, h):
        out = []
        if h == 1 and self.cfg["fused"]:
            out += self.hu_setup()
        out += self.rinv_ops()
        tmp = [V(0 + 8 * k, 8) for k in range(3)]
        pk = [V(24 + 4 * k, 4) for k in range(3)]
        for kb in range(6):
            for qb in range(3):
                t = tmp[qb][1]
                for tt, T in enumerate((2 * kb, 2 * kb + 1)):
                    for r in range(4):
                        out.append(I(f"v_accvgpr_read_b32 v{t + 4 * tt + r}, {rtxt(OAr(T, qb, r))}", "valu",
                                     [V(t + 4 * tt + r)], [OAr(T, qb, r)]))
            for qb in range(3):
                t = tmp[qb][1]
                for h2 in range(4):
                    out.append(valu("v_pk_mul_f32", V(t + 2 * h2, 2), V(t + 2 * h2, 2), V(MT(8 + 2 * qb)[1], 2)))
            for qb in range(3):
                t = tmp[qb][1]
                for r in range(4):
                    d = V(pk[qb][1] + r) if h == 0 else QFr(kb, qb, r)
                    out.append(valu("v_cvt_pk_bf16_f32", d, V(t + 2 * r), V(t + 2 * r + 1)))
            if h == 0:
                for qb in range(3):
                    for r in range(4):
                        out.append(I(f"v_accvgpr_write_b32 {rtxt(O0Pr(kb, qb, r))}, v{pk[qb][1] + r}", "valu",
                                     [O0Pr(kb, qb, r)], [V(pk[qb][1] + r)]))
        return autonop(out)

    def o_fill(self):
        gaps = [g for j in range(40) for g in self.gaps[104 + j]]

        def cvts(p):
            ops = []
            for ntp in range(2):
                for qb in range(3):
                    u = ntp * 3 + qb
                    for h in range(2):
                        a = OACC(p, 2 * ntp + h, qb)[1]
                        ops.append(valu("v_cvt_pk_bf16_f32", CTr(u, 2 * h), V(a), V(a + 1)))
                        ops.append(valu("v_cvt_pk_bf16_f32", CTr(u, 2 * h + 1), V(a + 2), V(a + 3)))
            return ops

        def store(u, c):
            return vstore(CT(u), PSV, SRD_WS, s_pst[u // 4], (u % 4) * 1024, self.cfg["pst_flags"], tag=("st", c))

        spos = [(0, 22), (0, 34), (1, 10), (1, 22), (1, 34), (2, 10)]
        last_step = {}
        for j in range(40): last_step[o_cs(j, self.cfg["hide_n"])[0]] = j
        prev_store_gap = -1
        for c in range(9):
            j0 = last_step[c] + 1
            g0 = 36 * j0
            e0 = max(g0 + 3, prev_store_gap + 1)
            ops = [Op(x, earliest=e0) for x in cvts(c % 2)]
            pos = [g0 + 36 * s + gi for s, gi in spos]
            pos = [p_ for p_ in pos if p_ > e0 + 8]
            k = 3
            while len(pos) < 6:
                nxt = g0 + 36 * (k // 1) + (10, 22, 34)[0]
                for gi in (10, 22, 34):
                    p_ = g0 + 36 * 2 + gi if k == 3 else g0 + 36 * (k - 1) + gi
                    if p_ not in pos and p_ > (pos[-1] if pos else 0) and len(pos) < 6: pos.append(p_)
                k += 1
            for u, p_ in enumerate(pos):
                if not self.cfg["no_st"]:
                    gaps[p_].vm.append(store(u, c))
            assert not list_schedule(gaps, ops, e0, e0 + 40)
            for u, p_ in enumerate(pos):
                assert max(o.gap for o in ops[4 * u:4 * u + 4]) < p_, (c, u, p_)
            prev_store_gap = pos[-1]
            self.last_store = getattr(self, "last_store", {})
            self.last_store[c] = pos[-1]
            ga = pos[-1] + 1
            gaps[ga].sc.append(salu("s_add_u32", s_pst[0], s_pst[0], 24576))
            gaps[ga + 1].sc.append(salu("s_add_u32", s_pst[1], s_pst[1], 24576))
        fused = self.cfg["fused"]
        if fused:
            self.hu_fill(gaps)
        tail = autonop([nop(7)] + cvts(1) + [store(u, 9) for u in range(6)])
        if fused: tail += self.hu_tail()
        self.post[143] += tail

    HU_NEED = [1, 2, 3, 5, 6, 7, 8, 9]
    HU_BASE = [0, 64, 128, 192, 256, 320, 384, 432]
    HU_LIM = [480, 480, 480, 480, 480, 480, 432, 480]

    def hu_buf(self, rho, t): return A(32 * (rho % 4 if rho in self.hu_inloop else rho) + 4 * t, 4)

    def hu_load(self, rho, t):
        return vload(self.hu_buf(rho, t), VHL, SRD_WS, s_rl2[rho % 2], 0, self.cfg["red_flags"], tag=("red", rho, t))

    def hu_adv(self, rho):
        return salu("s_add_u32", s_rl2[rho % 2], s_rl2[rho % 2], 2 * 245760)

    def s_out(self, rho):
        return S(76 + rho) if self.cfg["hu_pre"] else s_ro[rho % 2]

    def hu_mfma(self, rho):
        o = []
        for t in range(8):
            if t % 4 == 0: o.append(WaitTag([("red", rho, t + 3)]))
            o.append(mfma(RD[0], SEL[0], self.hu_buf(rho, t), 0 if t == 0 else RD[0]))
        a = RD[0][1]
        o += [nop(7), valu("v_cvt_pk_bf16_f32", V(RD[1][1]), V(a), V(a + 1)), valu("v_cvt_pk_bf16_f32", V(RD[1][1] + 1), V(a + 2), V(a + 3)),
              vstore(V(RD[1][1], 2), VOUT, SRD_OUT, self.s_out(rho), 0, self.cfg["out_flags"], tag=("out", rho), width=2), nop(1)]
        return ([] if self.cfg["hu_pre"] else self.hu_out_off(rho)) + o

    def hu_out_off(self, rho):
        hu, n, c, rem, w2, u, ntp, a = s_t[0], s_t[1], s_t[2], s_t[3], S(100), S(101), S(61), self.s_out(rho)
        o = [salu("s_add_u32", hu, s_kw, self.HU_BASE[rho]), salu("s_lshr_b32", n, hu, 1),
             salu("s_mul_hi_u32", c, n, (2 ** 32 + 23) // 24), salu("s_mul_i32", rem, c, 24), salu("s_sub_u32", rem, n, rem),
             salu("s_mul_hi_u32", w2, rem, (2 ** 32 + 5) // 6), salu("s_mul_i32", u, w2, 6), salu("s_sub_u32", u, rem, u),
             salu("s_mul_hi_u32", ntp, u, (2 ** 32 + 2) // 3), salu("s_mul_i32", rem, ntp, 3), salu("s_sub_u32", u, u, rem),
             salu("s_mul_i32", a, s_b, 192), salu("s_mul_i32", w2, w2, 48), salu("s_add_u32", a, a, w2),
             salu("s_lshl_b32", u, u, 4), salu("s_add_u32", a, a, u), salu("s_mul_i32", a, a, 1280),
             salu("s_lshl_b32", c, c, 7), salu("s_add_u32", a, a, c), salu("s_lshl_b32", ntp, ntp, 6), salu("s_add_u32", a, a, ntp),
             salu("s_and_b32", n, hu, 1), salu("s_lshl_b32", n, n, 4), salu("s_add_u32", a, a, n)]
        if rho >= 6:
            o += [scmp("s_cmp_ge_u32", hu, self.HU_LIM[rho]), salu("s_cselect_b32", a, 0x7FFF0000, a)]
        return o

    def hu_base(self, rho):
        return salu("s_add_u32", s_rl2[rho % 2], s_pb, 512 * self.HU_BASE[rho])

    def hu_setup(self):
        lane, g_, m_, t0, t1 = V(96), V(97), V(98), V(99), V(100)
        o = srd(SRD_OUT, None, 16 * 192 * 640 * 2, s_outp)
        o += [WaitTag([("chk",)]), scmp("s_cmp_eq_u32", s_w, 0), branch("s_cbranch_scc0", "L_chk_ok"),
              I(f"v_readfirstlane_b32 {rtxt(s_t[1])}, {rtxt(VCHK)}", "valu", [s_t[1]], [VCHK]), raw("s_nop 3"),
              scmp("s_cmp_ge_u32", s_t[1], 16), branch("s_cbranch_scc1", "L_chk_ok"),
              salu("s_mov_b32", s_t[0], 1 << 18), label("L_chk_loop"),
              salu("s_sub_u32", s_t[0], s_t[0], 1), branch("s_cbranch_scc1", "L_chk_ok"), raw("s_sleep 8"),
              I(f"buffer_load_dword {rtxt(VCHK)}, {rtxt(VFO)}, {rtxt(SRD_DBG)}, {rtxt(s_b16)} offen sc1", "salu"), raw("s_waitcnt vmcnt(0)"),
              I(f"v_readfirstlane_b32 {rtxt(s_t[1])}, {rtxt(VCHK)}", "salu"), raw("s_nop 3"),
              scmp("s_cmp_ge_u32", s_t[1], 16), branch("s_cbranch_scc0", "L_chk_loop"), label("L_chk_ok")]
        cnd = lambda d, a, b: I(f"v_cndmask_b32 {rtxt(d)}, {rtxt(a)}, {rtxt(b)}, vcc", "valu", [d], [a, b])
        cmp_ = lambda txt, u: I(txt, "valu", [], [u])
        o += [valu("v_and_b32", lane, 63, TID), valu("v_lshrrev_b32", g_, 4, lane), valu("v_and_b32", m_, 15, lane),
              valu("v_mov_b32", VZ, 0),
              valu("v_mul_u32_u24", t0, 1280, m_), valu("v_and_b32", t1, 1, g_), valu("v_lshlrev_b32", t1, 5, t1), valu("v_add_u32", t0, t0, t1),
              valu("v_lshrrev_b32", t1, 1, g_), valu("v_lshlrev_b32", t1, 3, t1), valu("v_add_u32", VOUT, t0, t1),
              valu("v_lshrrev_b32", t0, 5, lane), valu("v_mul_u32_u24", t0, 245760, t0), valu("v_and_b32", t1, 31, lane),
              valu("v_lshlrev_b32", t1, 4, t1), valu("v_add_u32", VHL, t0, t1),
              valu("v_lshlrev_b32", t0, 2, TID), valu("v_mov_b32", VPOLL, 0x7FFFFF00),
              cmp_(f"v_cmp_gt_u32 vcc, 16, {rtxt(TID)}", TID), nop(1), cnd(VPOLL, VPOLL, t0),
              valu("v_and_b32", t0, 1, m_), valu("v_lshlrev_b32", t0, 4, t0), valu("v_mov_b32", t1, 0x3F80), valu("v_lshlrev_b32", t1, t0, t1),
              valu("v_lshrrev_b32", t0, 3, m_), valu("v_and_b32", g_, 1, g_),
              cmp_(f"v_cmp_eq_u32 vcc, {rtxt(t0)}, {rtxt(g_)}", t0), nop(1), cnd(t1, VZ, t1),
              valu("v_lshrrev_b32", t0, 1, m_), valu("v_and_b32", t0, 3, t0)]
        for d in range(4):
            o += [cmp_(f"v_cmp_eq_u32 vcc, {d}, {rtxt(t0)}", t0), nop(1), cnd(V(SEL[0][1] + d), VZ, t1)]
        o += [salu("s_lshl_b32", s_b16, s_b, 8), salu("s_add_u32", s_b16, s_b16, FLAG_OFF),
              salu("s_lshl_b32", s_t[0], s_pj, 2), salu("s_add_u32", s_t[5], s_b16, s_t[0]), salu("s_add_u32", s_kw, s_t[0], s_w),
              salu("s_mul_i32", s_pb, s_b, 16 * 245760), salu("s_lshl_b32", s_t[0], s_kw, 9), salu("s_add_u32", s_pb, s_pb, s_t[0]),
              salu("s_add_u32", s_pb, s_pb, PART_OFF)]
        return o

    def add_wait_tag(self, gaps, fs, tag):
        for x in gaps[36 * fs + 23].sc:
            if isinstance(x, WaitTag):
                x.tag = ("waittag", x.tag[1] + (tag,))

    def spread_scalars(self, gaps, ins, g0):
        g = g0
        k = 0
        while k < len(ins):
            while gaps[g].sc or gaps[g].vm: g += 1
            grp = [ins[k]]
            if ins[k].txt.startswith("s_cmp"):
                grp.append(ins[k + 1])
            gaps[g].sc += grp
            k += len(grp)
            g += 1
        return g

    def hu_fill(self, gaps):
        if self.cfg["hu_pre"]:
            seq_ = []
            for rho in range(8): seq_ += self.hu_out_off(rho)
            end = self.spread_scalars(gaps, seq_, 36 * 1)
            assert end < 36 * 13, end
        self.hu_fill2(gaps)

    def hu_fill2(self, gaps):
        d_flag, d_poll, d_chk = int(self.cfg["d_flag"]), int(self.cfg["d_poll"]), int(self.cfg["d_chk"])
        n_in = int(self.cfg["hu_in"])
        self.hu_pending = []
        self.hu_inloop = set()
        published = set()
        for rho in range(8):
            c = self.HU_NEED[rho]
            if c >= 8: break
            fs = self.last_store[c] // 36 + d_flag
            if c not in published and fs <= 38:
                published.add(c)
                self.add_wait_tag(gaps, fs, ("st", c))
                gaps[36 * fs + 24].va.insert(0, valu("v_mov_b32", VFV, c + 1))
                gaps[36 * fs + 29].vm.append(self.flag_store())
            ps = fs + d_poll
            cs = ps + d_chk
            if rho >= n_in or cs > 38:
                self.hu_pending.append((rho, 0))
                continue
            self.hu_inloop.add(rho)
            gaps[36 * ps + 35].vm.append(self.poll_load(("poll", rho)))
            self.post[104 + cs - 1] += self.check_spin(c + 1, f"L_sp{rho}", WaitTag([("poll", rho)])) + [self.hu_base(rho)]
            t, st_ = 0, cs
            while t < 8 and st_ < 40:
                for gi in sorted((35, 11, 17)[:int(self.cfg['hu_per'])]):
                    if t == 8: break
                    if st_ == cs and gi < 24: continue
                    g = gaps[36 * st_ + gi]
                    if g.vm: continue
                    g.vm.append(self.hu_load(rho, t))
                    g.post.append(self.hu_adv(rho))
                    t += 1
                st_ += 1
            self.hu_end = getattr(self, "hu_end", {})
            self.hu_end[rho] = st_
            if rho - 2 in self.hu_end: assert self.hu_end[rho - 2] <= cs, (rho, self.hu_end, cs)
            ms = st_ + int(self.cfg["d_mfma"])
            if t == 8 and ms <= 39:
                self.post[104 + ms - 1] += self.hu_mfma(rho)
            else:
                self.hu_pending.append((rho, t, "polled"))

    def hu_tail(self):
        pend = self.hu_pending
        ready = [p[0] for p in pend if len(p) == 3 and p[1] == 8]
        partial = [(p[0], p[1]) for p in pend if len(p) == 3 and p[1] < 8]
        late = [p[0] for p in pend if len(p) == 2]
        flag = lambda k: [valu("v_mov_b32", VFV, k), self.flag_store()]

        def loads(r, t0=0):
            o = [self.hu_base(r)] if t0 == 0 else []
            for t in range(t0, 8): o += [self.hu_load(r, t), self.hu_adv(r)]
            return o
        o = self.tstamp(0)
        if late: o += [self.poll_load(("poll", "late"))]
        o += [WaitTag([("st", 8)]), barrier()] + flag(9)
        for r in ready: o += self.hu_mfma(r)
        o += self.tstamp(1)
        if late:
            c = max(self.HU_NEED[r] for r in late)
            o += self.check_spin(c + 1, "L_spl", WaitTag([("poll", "late")]))
        o += [WaitTag([("st", 9)]), barrier()] + self.tstamp(2) + [self.poll_load(("poll", 9))] + flag(10)
        inflight = []
        for r, t0 in partial:
            o += loads(r, t0)
            inflight.append(r)
        for r in late:
            if len(inflight) >= 4: o += self.hu_mfma(inflight.pop(0))
            o += loads(r)
            inflight.append(r)
        o += self.tstamp(3)
        while len(inflight) > 1: o += self.hu_mfma(inflight.pop(0))
        o += self.check_spin(9, "L_sp9", WaitTag([("poll", 9)])) + [barrier()] + self.tstamp(4)
        o += loads(6) + [self.poll_load(("poll", "fin"))]
        for r in inflight: o += self.hu_mfma(r)
        o += self.tstamp(5) + self.check_spin(10, "L_spf", WaitTag([("poll", "fin")])) + [barrier()] + self.tstamp(6)
        o += loads(7) + self.tstamp(7) + self.hu_mfma(6) + self.tstamp(8) + self.hu_mfma(7) + self.tstamp(9) + self.tstamp(10)
        return o

    def tstamp(self, k):
        if not self.cfg["steptime"]: return []
        return [I("s_memtime s[92:93]", "salu"), raw("s_waitcnt lgkmcnt(0)"), raw(f"v_writelane_b32 v255, s92, {20 + k}", "valu")]


def stamp(k):
    return [I("s_memtime s[56:57]", "salu"), raw("s_waitcnt lgkmcnt(0)"), salu("s_mov_b32", S(64 + k), S(56))]


def main_kernel(cfg):
    g = Gen3(cfg)
    T = cfg["timing"]
    pro = [label("mha_main_kernel"), scmp("s_cmp_ge_u32", S(2), 256), branch("s_cbranch_scc1", "L_main_exit"),
           raw("s_load_dwordx16 s[64:79], s[0:1], 0")]
    if T and cfg["stamp_entry"]: pro.insert(1, I("s_memrealtime s[86:87]", "salu"))
    if cfg["pf_entry"]:
        pro += [I("s_getpc_b64 s[56:57]", "salu"), label("L_pce"), raw("s_add_u32 s56, s56, mha_main_kernel-L_pce"), raw("s_addc_u32 s57, s57, -1") if False else raw("s_subb_u32 s57, s57, 0") if False else raw("s_nop 0"),
                ]
        pro = pro[:-4] + [I("s_getpc_b64 s[56:57]", "salu"), label("L_pce"),
                raw("s_and_b32 s56, s56, 0xffffff00"),
                valu("v_lshlrev_b32", V(1), 7, V(0)), raw("v_mov_b32 v3, s57", "valu"),
                raw("v_add_co_u32 v2, vcc, s56, v1", "valu"), raw("s_nop 1"), raw("v_addc_co_u32 v3, vcc, 0, v3, vcc", "valu"),
                I(f"global_load_dword {rtxt(JUNK)}, v[2:3], off", "vmem", [], [])]
    lane_ops = []
    wreg = build_lane_consts(lane_ops)
    t0, t1 = s_t[0], s_t[1]
    nb = int(cfg["map_nb"]); npair = 32 // nb
    lg = lambda v: v.bit_length() - 1
    seen = set()
    for wg in range(256):
        a0, j = wg & 7, wg >> 3
        pj = (j & (npair - 1)) + ((a0 & (16 // npair - 1)) << lg(npair))
        bb = (j >> lg(npair)) + ((a0 >> lg(16 // npair)) << lg(nb))
        seen.add((bb, pj))
    assert len(seen) == 256
    ids = [
        salu("s_and_b32", t0, S(2), 7), salu("s_lshr_b32", t1, S(2), 3),
        salu("s_and_b32", s_pj, t1, npair - 1), salu("s_lshr_b32", s_b, t1, lg(npair)),
        salu("s_and_b32", t1, t0, 16 // npair - 1), salu("s_lshl_b32", t1, t1, lg(npair)), salu("s_add_u32", s_pj, s_pj, t1),
        salu("s_lshr_b32", t0, t0, lg(16 // npair)), salu("s_lshl_b32", t0, t0, lg(nb)), salu("s_add_u32", s_b, s_b, t0),
        salu("s_lshl_b32", s_h0, s_pj, 1),
        salu("s_mul_i32", s_wb, s_h0, 384), salu("s_mul_i32", s_xb, s_b, 245760)]
    wave_sc = [salu("s_mul_i32", s_w3072, s_w, 3072), salu("s_lshl_b32", s_w6144, s_w3072, 1)]
    srd_first = srd(SRD_X, 64, 16 * 192 * 640 * 2) + srd(SRD_W, 70, 640 * 6144 * 2)
    srd_rest = srd(SRD_K, 66, 16 * 32 * 512 * 192 * 2) + srd(SRD_V, 68, 16 * 32 * 512 * 192 * 2)
    srd_rest += srd(SRD_WO, 72, 6144 * 640 * 2) + srd(SRD_WS, 78, 402653184)
    srd_rest += [salu("s_mov_b32", s_outp[0], S(74)), salu("s_mov_b32", s_outp[1], S(75)),
                 salu("s_mov_b32", s_dbgp[0], S(76)), salu("s_mov_b32", s_dbgp[1], S(77))]
    sc_rest = [
        salu("s_lshl_b32", t0, s_b, 5), salu("s_add_u32", t0, t0, s_h0), salu("s_mul_i32", s_kvb, t0, 196608),
        salu("s_add_u32", s_kvb1, s_kvb, 196608),
        salu("s_lshr_b32", s_n0, S(2), int(cfg["rot_shift"])), salu("s_mul_i32", s_n0, s_n0, int(cfg["rot_mul"])), salu("s_and_b32", s_n0, s_n0, 15),
        salu("s_mul_i32", s_ob, s_h0, 245760),
        salu("s_lshl_b32", t0, s_b, 4), salu("s_add_u32", t0, t0, s_pj),
        salu("s_mul_i32", s_pst[0], t0, 245760), salu("s_add_u32", s_pst[0], s_pst[0], PART_OFF),
        salu("s_add_u32", s_pst[1], s_pst[0], 4096),
        salu("s_mov_b32", s_thr, THR_BITS), salu("s_mov_b32", S(48), C_BITS), salu("s_mov_b32", S(49), C_BITS),
    ]
    clr = []
    if cfg["fused"]:
        clr = [salu("s_lshl_b32", t0, s_b, 8), salu("s_lshl_b32", t1, s_pj, 2), salu("s_add_u32", t0, t0, t1),
               salu("s_add_u32", t0, t0, FLAG_OFF), valu("v_mov_b32", PT(8), 0),
               vstore(PT(8), VFO, SRD_WS, t0, 0, " sc1", tag=("clr",), width=1)]
    rfl = [nop(0), I(f"v_readfirstlane_b32 {rtxt(s_w)}, {rtxt(wreg)}", "valu", [s_w], [wreg])]
    first = [it for it in g.seq if it.issue == -1]
    first_tiles = []
    for it in first:
        for m0, off, ins in g.units(it):
            first_tiles += [m0] + (off if isinstance(off, list) else [off]) + [nop(0)] + ins
    if cfg["fast_pro"]:
        need = set()
        for r in DA + DB + [wreg]: need |= regs(r)
        keep = []
        for ins in reversed(lane_ops):
            if ins.defs & need:
                keep.append(ins)
                if not (ins.defs <= ins.uses): need -= ins.defs
                need |= {u for u in ins.uses if u[0] == "v"}
        keep.reverse()
        pro += ids + keep + rfl + [raw("s_waitcnt lgkmcnt(0)")] + srd_first + wave_sc
        if T and not cfg["stamp_entry"]: pro += [I("s_memrealtime s[86:87]", "salu")]
        if T and cfg["stamp_entry"]: pro += [I("s_memrealtime s[94:95]", "salu")]
        pro += first_tiles
        pro += lane_ops + srd_rest + sc_rest + clr
        if T: pro += stamp(0)
    else:
        pro += lane_ops + rfl + [raw("s_waitcnt lgkmcnt(0)")] + srd_first + srd_rest + ids + wave_sc + sc_rest
        if T: pro += ([] if cfg["stamp_entry"] else [I("s_memrealtime s[86:87]", "salu")]) + ([I("s_memrealtime s[94:95]", "salu")] if cfg["stamp_entry"] else []) + stamp(0)
        pro += clr

    gw = S(59)
    lane, lane128 = PT(3), PT(2)
    OOB = 0x7FFFFF00

    def masked(dst, src, n):
        return [valu("v_mov_b32", dst, OOB), raw(f"v_cmp_gt_u32 vcc, {n}, {rtxt(lane)}", "valu"), raw("s_nop 1"),
                raw(f"v_cndmask_b32 {rtxt(dst)}, {rtxt(dst)}, {rtxt(src)}, vcc", "valu")]
    pfs = [salu("s_lshl_b32", gw, S(2), 2), salu("s_add_u32", gw, gw, s_w),
           valu("v_and_b32", lane, 63, TID), valu("v_lshlrev_b32", lane128, 7, lane),
           valu("v_mul_u32_u24", PT(5), 21846, lane), valu("v_lshrrev_b32", PT(5), 16, PT(5)),
           valu("v_mul_u32_u24", PT(6), 3, PT(5)), valu("v_sub_u32", PT(6), lane, PT(6)),
           valu("v_mul_u32_u24", PT(5), 12288, PT(5)), valu("v_lshlrev_b32", PT(6), 7, PT(6)), valu("v_add_u32", PT(5), PT(5), PT(6))]
    pfs += masked(VTK[0], PT(5), 30) + masked(VTK[1], lane128, 60) + masked(PT(4), lane128, 30)
    pfs += [salu("s_and_b32", t0, gw, 15), salu("s_mul_i32", t0, t0, 768), salu("s_lshr_b32", S(100), gw, 4),
            salu("s_mul_i32", S(100), S(100), 122880), salu("s_add_u32", S(100), S(100), t0), salu("s_mul_i32", S(101), gw, 7680)]
    start = []
    if "x" in cfg["pf_start"]:
        start += [salu("s_mul_i32", t0, gw, 3840), pf_load(PT(4), SRD_X, t0)]
    if "w" in cfg["pf_start"]:
        start += [pf_load(VTK[0], SRD_W, S(100))]
    if "1" in cfg["pf_start"]:
        start += [salu("s_add_u32", t0, S(100), 384), pf_load(VTK[0], SRD_W, t0)]
    code_steps = cfg["_code_steps"]
    pfs2 = []
    if cfg["pf_code"]:
        pfs2 += [valu("v_and_b32", PT(7), 31, lane), valu("v_lshlrev_b32", PT(7), 7, PT(7)),
                 salu("s_lshl_b32", t0, s_w, 12), valu("v_add_u32", VL128, t0, PT(7))]
    if int(cfg["pf_start_step"]) == -2:
        pro += pfs + start
        pfs, start = [], []
    pfs += pfs2
    pfs += [valu("v_and_b32", PT(7), 63, TID), valu("v_lshlrev_b32", PT(7), 4, PT(7)), valu("v_add_u32", AWR, s_w3072, PT(7))]

    if not cfg["fast_pro"]: pro += first_tiles
    if cfg["tlb"]:
        tl = [valu("v_and_b32", PT(9), 1, TID)]
        for what in str(cfg["tlb"]):
            if what in "kv":
                tl += [valu("v_mul_u32_u24", PT(10), 393216 - 128, PT(9)), pf_load(PT(10), SRD_K if what == "k" else SRD_V, s_kvb)]
            elif what == "o":
                tl += [valu("v_mul_u32_u24", PT(10), 491520 - 128, PT(9)), pf_load(PT(10), SRD_WO, s_ob)]
            elif what == "p":
                tl += [valu("v_mul_u32_u24", PT(10), 245760 - 128, PT(9)), pf_load(PT(10), SRD_WS, s_pst[0])]
        pro += tl
    pro += pfs
    if cfg["pf_code"]:
        for k, st_ in enumerate(code_steps):
            if st_ < 0 and not (cfg["pf_entry"] and k == 0): pro += code_pf(f"L_code+{16384 * k}", sub=int(cfg["pf_sub"]))
    if cfg["pf_code_all"]:
        pro += [valu("v_lshlrev_b32", PT(9), 7, TID), valu("v_mov_b32", PT(10), S(2)), valu("v_lshlrev_b32", PT(10), 9, PT(10)),
                valu("v_add_u32", PT(9), PT(9), PT(10)),
                I("s_getpc_b64 s[56:57]", "salu"), label("L_pcall"), raw("s_add_u32 s56, s56, L_code-L_pcall"), raw("s_addc_u32 s57, s57, 0"),
                raw(f"v_mov_b32 v{VPC[1] + 1}, s57", "valu"), raw(f"v_add_co_u32 v{VPC[1]}, vcc, s56, {rtxt(PT(9))}", "valu"), raw("s_nop 1"),
                raw(f"v_addc_co_u32 v{VPC[1] + 1}, vcc, 0, v{VPC[1] + 1}, vcc", "valu"),
                raw(f"v_cmp_gt_u32 vcc, 4, {rtxt(TID)}", "valu"), raw("s_and_saveexec_b64 s[56:57], vcc"),
                raw("s_cbranch_execz L_pcall_skip"),
                I(f"global_load_dword {rtxt(JUNK)}, {rtxt(VPC)}, off", "salu", [], []), label("L_pcall_skip"),
                raw("s_mov_b64 exec, s[56:57]")]
    if int(cfg["pf_start_step"]) == -1: pro += start
    pro += [WaitTag([("item", it.name) for it in g.seq if it.need == -1]), barrier()]
    cnt_blk = []
    if cfg["fused"]:
        TMP = S(96, 4)
        vone = V(212) if cfg["fast_pro"] else PT(8)
        cnt_blk = srd(TMP, None, 256, s_dbgp) + [salu("s_lshl_b32", t0, s_b, 4), valu("v_mov_b32", vone, 1), WaitTag([("clr",)]),
                I(f"buffer_atomic_add {rtxt(vone)}, {rtxt(VFO)}, {rtxt(TMP)}, {rtxt(t0)} offen", "store", [], [vone, VFO, TMP, t0], tag=("cnt",))]
        if not cfg["fast_pro"]: pro += cnt_blk
    pro += g.x_reads3(g.X[(0, 0)]) + g.first_reads3(g.item[0]) + [wait(lgkm=4)]
    pro.append(label("L_code"))

    if cfg["fast_pro"]: g.pre[5] += cnt_blk
    g.build_frames()
    g.place_dma()
    g.place_reg_tiles()
    g.place_fixes()
    def put(s, gi, ins_list):
        gp = g.gaps[s][gi]
        for x in ins_list:
            if x.cls in ("vmem",): gp.vm.append(x)
            else: gp.sc.append(x)
    def tlb_touch(h, tmp):
        st = int(cfg["tlb_stride"])
        n = (196608 + st - 1) // st
        o = [valu("v_mul_u32_u24", tmp, st, TID), valu("v_mov_b32", V(tmp[1] + 1), OOB),
             raw(f"v_cmp_gt_u32 vcc, {n}, {rtxt(TID)}", "valu"), raw("s_nop 1"),
             raw(f"v_cndmask_b32 {rtxt(tmp)}, v{tmp[1] + 1}, {rtxt(tmp)}, vcc", "valu"),
             salu("s_add_u32", t0, s_kvb, h * 196608)]
        for sr in (SRD_K, SRD_V):
            x = pf_load(tmp, sr, t0)
            x.txt += " nt"
            o.append(x)
        return o
    if int(cfg["tlb0"]) >= 0: g.pre[int(cfg["tlb0"])] += tlb_touch(0, V(192))
    if int(cfg["tlb1"]) >= 0: g.pre[int(cfg["tlb1"])] += tlb_touch(1, V(128))
    if int(cfg["pf_start_step"]) >= 0:
        g.pre[int(cfg["pf_start_step"])] += start
    if cfg["w1_split"]:
        steps_ = [int(x) for x in str(cfg["w1_split"]).split(".")]
        n_ = 30 // len(steps_)
        for k, st_ in enumerate(steps_):
            g.pre[st_] += [valu("v_subrev_u32", V(213), n_ * k, V(215)), valu("v_mov_b32", V(214), OOB),
                           raw(f"v_cmp_gt_u32 vcc, {n_}, v213", "valu"), raw("s_nop 1"),
                           raw(f"v_cndmask_b32 v214, v214, {rtxt(VTK[0])}, vcc", "valu"),
                           salu("s_add_u32", t0, S(100), 384), pf_load(V(214), SRD_W, t0)]
        g.pre[steps_[0]] = [valu("v_and_b32", V(215), 63, TID)] + g.pre[steps_[0]]
    elif int(cfg["pf_w1"]) == 19:
        g.post[19] = [salu("s_add_u32", t0, S(100), 384), pf_load(VTK[0], SRD_W, t0)] + g.post[19]
    elif int(cfg["pf_w1"]) >= 0:
        put(int(cfg["pf_w1"]), 9, [salu("s_add_u32", t0, S(100), 384)])
        put(int(cfg["pf_w1"]), 11, [pf_load(VTK[0], SRD_W, t0)])
    if cfg["wo_split"]:
        steps_ = [int(x) for x in str(cfg["wo_split"]).split(".")]
        n_ = 60 // len(steps_)
        for k, st_ in enumerate(steps_):
            g.pre[st_] += [valu("v_mov_b32", V(214), OOB), raw(f"v_cmp_gt_u32 vcc, {n_}, {rtxt(V(215))}", "valu"), raw("s_nop 1"),
                           raw(f"v_cndmask_b32 v214, v214, {rtxt(VTK[1])}, vcc", "valu"),
                           salu("s_add_u32", t0, S(101), 128 * n_ * k), pf_load(V(214), SRD_WO, t0)]
        g.pre[steps_[0]] = [valu("v_and_b32", V(215), 63, TID)] + g.pre[steps_[0]]
    elif int(cfg["pf_wo"]) == 52:
        g.post[51] += [pf_load(VTK[1], SRD_WO, S(101))]
    elif int(cfg["pf_wo"]) >= 0:
        put(int(cfg["pf_wo"]), 11, [pf_load(VTK[1], SRD_WO, S(101))])
    if cfg["pf_code"]:
        for k, st_ in enumerate(code_steps):
            if st_ >= 0: g.pre[st_] += code_pf(f"L_code+{16384 * k}", sub=int(cfg["pf_sub"]))
    if cfg["fused"]:
        g.pre[80] += srd(SRD_DBG2, None, 256, s_dbgp) + [salu("s_lshl_b32", s_b16, s_b, 4),
                      I(f"buffer_load_dword {rtxt(VCHK)}, {rtxt(VFO)}, {rtxt(SRD_DBG2)}, {rtxt(s_b16)} offen sc1", "vmem", [VCHK],
                        [VFO, SRD_DBG2, s_b16], tag=("chk",))]
    if cfg["hide_n"]:
        g.rinv_fill(0); g.rinv_fill(1)
        g.n0_fill()
        g.n1_fill()
        if cfg["fused"]:
            g.post[103] += g.hu_setup()
    for h in range(2):
        g.a_fill(h)
        g.post[52 * h + 19] += g.dump_block.get(52 * h + 19, []) + g.q_pack()
        if not cfg["hide_n"]:
            g.post[52 * h + 51] += g.n_block(h)
    g.o_fill()

    body = []
    marks = {0: 1, 20: 3, 52: 5, 72: 7}
    ends = {19: 2, 51: 4, 71: 6, 103: 8}
    for s in range(NSTEP):
        body.append(label(f"L_st{s}"))
        if T and s in marks: body += stamp(marks[s])
        body += g.pre[s]
        for gp in g.gaps[s]: body += gp.flat()
        if T and s in ends: body += stamp(ends[s])
        body += g.post[s]

    fin = []
    if T:
        fin += stamp(9)
    fin += [raw("s_waitcnt vmcnt(0)")]
    if T:
        fin += [I("s_memtime s[56:57]", "salu"), I("s_memrealtime s[88:89]", "salu"), raw("s_waitcnt lgkmcnt(0)"),
                salu("s_mov_b32", S(74), S(56)), salu("s_mov_b32", S(90), S(88)), salu("s_sub_u32", S(88), S(88), S(86))]
        lst = [64, 65, 66, 67, 68, 69, 70, 71, 72, 73, 74, 88, 86, 90] + ([94] if cfg['stamp_entry'] else [])
        for k, sr in enumerate(lst): fin.append(valu("v_mov_b32", V(k), S(sr)))
        fin += [salu("s_lshl_b32", t0, S(2), 6), salu("s_add_u32", t0, t0, 300 * 1024 * 1024), valu("v_mov_b32", V(20), 0),
                raw(f"v_cmp_eq_u32 vcc, 0, {rtxt(TID)}", "valu"), raw("s_and_saveexec_b64 s[56:57], vcc")]
        for k in range(0, 16, 4): fin.append(vstore(V(k, 4), V(20), SRD_WS, t0, 4 * k))
        fin += [raw("s_waitcnt vmcnt(0)")]
        if cfg["steptime"]:
            fin += [raw("s_mov_b64 exec, -1"), salu("s_mul_i32", t0, S(2), 768), salu("s_add_u32", t0, t0, 320 * 1024 * 1024),
                    raw(f"v_cmp_gt_u32 vcc, 64, {rtxt(TID)}", "valu"), raw("s_and_saveexec_b64 s[56:57], vcc"),
                    valu("v_lshlrev_b32", V(20), 2, TID)]
            for k in range(3): fin.append(vstore(V(253 + k), V(20), SRD_WS, t0, 256 * k, width=1))
            fin += [raw("s_waitcnt vmcnt(0)")]
    fin += [label("L_main_exit"), raw("s_endpgm")]

    seq = pro + body
    state = {"checked": set(), "published": set()}
    for x in seq:
        if x.cls == "label" and str(x.info).startswith("L_sp") and str(x.info).endswith("_ok"):
            state["checked"].add(x.info[4:-3])
        elif x.cls == "barrier":
            state["published"] |= state["checked"]
        elif x.cls == "vmem" and isinstance(x.tag, tuple) and x.tag and x.tag[0] == "red":
            rho = x.tag[1]
            ok = str(rho) in state["published"] or "f" in state["published"] or ("l" in state["published"] and rho < 6) or (rho == 6 and "9" in state["published"])
            assert ok, ("partial load not ordered after its check", x.tag, state)
    res, errs, _, maxout = resolve_and_check(seq, "main")
    for e in errs[:30]: print("ERR", e, file=sys.stderr)
    assert not errs, len(errs)
    assert maxout <= 63, maxout
    final = []
    for w in seq:
        if isinstance(w, WaitTag):
            vals = [v for v in res[id(w)] if v is not None]
            vm, lgk = (min(vals) if vals else None), (w.lres if w.info[1] == "auto" else w.info[1])
            if vm is None and lgk is None:
                continue
            final.append(wait(vm, lgk))
        else:
            final.append(w)
    seq = final
    _, errs, _, _ = resolve_and_check(seq, "final")
    for e in errs[:30]: print("ERR", e, file=sys.stderr)
    assert not errs, len(errs)
    stubs = []
    for k, p in enumerate(g.rare_sites):
        stubs += [label(f"L_rs{k}"), I(f"s_call_b64 {rtxt(s_ret)}, L_rare{p}", "branch"), branch("s_branch", f"L_rr{k}")]
    rare = g.rare_code(0) + g.rare_code(1)
    return seq + fin + stubs + rare


SRD_DBG2 = SRD_DBG

MACROS = """.macro MF d,a,b,c
v_mfma_f32_16x16x32_bf16 \\d,\\a,\\b,\\c
.endm
.macro TR d,a,o
ds_read_b64_tr_b16 \\d,\\a offset:\\o
.endm
.macro RD d,a,o
ds_read_b128 \\d,\\a offset:\\o
.endm
"""


def compact(line):
    import re
    t = line.strip()
    if t.startswith("v_mfma_f32_16x16x32_bf16 "):
        return "MF " + t.split(" ", 1)[1].replace(", ", ",")
    m = re.match(r"ds_read_b64_tr_b16 (\S+), (\S+) offset:(\d+)$", t)
    if m: return f"TR {m.group(1)},{m.group(2)},{m.group(3)}"
    m = re.match(r"ds_read_b128 (\S+), (\S+) offset:(\d+)$", t)
    if m: return f"RD {m.group(1)},{m.group(2)},{m.group(3)}"
    return t.replace(", ", ",")


HEADER = """; Fused multi-head attention block for MI355X (gfx950); assembly produced by my own generator script.
"""


def text_of(cfg, m, pad):
    kname = KNAME if cfg["single"] else "mha_main_kernel"
    lds = int(cfg["R"]) * SLOT
    s = HEADER
    if cfg["single"]:
        s += f"; @launch grid=(256,1,1) block=(256,1,1) lds={lds}\n"
    else:
        s += f"; @launch kernel=mha_main_kernel grid=(256,1,1) block=(256,1,1) lds={lds}\n"
        if not cfg["fused"]:
            s += "; @launch kernel=mha_reduce_kernel grid=(960,1,1) block=(256,1,1) lds=0\n"
    s += '.amdgcn_target "amdgcn-amd-amdhsa--gfx950"\n'
    if cfg["macros"]: s += MACROS
    s += ".text\n"
    ks = [(kname, m)]
    if not cfg["fused"]: ks.append(("mha_reduce_kernel", G.reducer_kernel(cfg)))
    for nm, code in ks:
        lines = []
        for i in code:
            for ln in i.txt.split("\n"):
                lines.append(compact(ln) if cfg["macros"] and i.cls != "label" else ln)
        s += f".globl {nm}\n.p2align 8\n.type {nm},@function\n" + "\n".join(lines).replace("mha_main_kernel:", kname + ":") + "\n"
    s += f".fill {pad}, 4, 0xBF800000\nL_text_end:\n"
    s += '.section .rodata,"a"\n.p2align 6\n' + kd(kname, 512, 256)
    if not cfg["fused"]: s += ".p2align 6\n" + kd("mha_reduce_kernel", 88, 88)
    return s


def assemble_syms(text):
    open("_g3.s", "w").write(text)
    r = subprocess.run(["clang", "-x", "assembler", "-target", "amdgcn-amd-amdhsa", "-mcpu=gfx950", "-c", "_g3.s", "-o", "_g3.o"],
                       capture_output=True, text=True)
    assert r.returncode == 0, r.stderr[:2000]
    sy = subprocess.run(["llvm-readelf", "-s", "_g3.o"], capture_output=True, text=True).stdout
    return {ln.split()[-1]: int(ln.split()[1], 16) for ln in sy.splitlines() if " L_" in ln and len(ln.split()) >= 8}


def build(cfg, path):
    import importlib
    cfg = dict(cfg)
    cfg["_code_steps"] = [-1] + [max(0, 21 * k - 10) for k in range(1, 8)]
    for it in range(2):
        G.code_pf.n = 0
        m = main_kernel(cfg)
        addr = assemble_syms(text_of(cfg, m, 64))
        base = addr["L_code"]
        end = addr["L_main_exit"] - base
        npiece = (end + 16383) // 16384
        steps = []
        for k in range(npiece):
            first = min([s for s in range(NSTEP) if addr[f"L_st{s}"] - base + 1024 > 16384 * k] or [NSTEP - 1])
            s_ = first - int(cfg["code_lead"])
            steps.append(-1 if s_ < 0 else s_)
        cfg["_code_steps"] = steps
    G.code_pf.n = 0
    m = main_kernel(cfg)
    addr = assemble_syms(text_of(cfg, m, 64))
    span = max(16384 * len(cfg["_code_steps"]), 131072)
    need = addr["L_code"] + span + 256 - addr["L_text_end"]
    pad = 64 + max(0, (need + 3) // 4)
    s = text_of(cfg, m, pad)
    open(path, "w").write(s)
    n_main = sum(1 for i in m if i.cls != "label")
    print(f"wrote {path}: {len(s)} bytes, {n_main} instrs, code {addr['L_main_exit'] - addr['L_code']} B, pad {pad}, code pf steps {cfg['_code_steps']}", file=sys.stderr)


if __name__ == "__main__":
    cfg = dict(CFG)
    path = "out3.s"
    for a in sys.argv[1:]:
        if "=" in a:
            k, v = a.split("=", 1)
            assert k in cfg, k
            cfg[k] = {"True": True, "False": False}.get(v, v)
        else:
            path = a
    build(cfg, path)
```

```python
import sys
import subprocess
import numpy as np
from asmlib import *
import gen as G
from gen import (ACC, SB, SBr, PB, PBr, TT, NEGM, NEGMr, L, LT, MT, OACC, CT, CTr, QF, QFr, AK, AV, AW, AO, DKV, DA, DB, DO,
                 AX, PSV, PT, TID, JUNK, VPC, VL128, VTK, VFO, VCHK, RD, SEL, FLG, VPOLL, VFV, VOUT, VZ, PSL, PART_OFF, FLAG_OFF,
                 SRD_DBG, SRD_OUT, s_outp, s_dbgp, s_b16, s_kw, s_pb, s_ro, s_rl, OA, OAr, O0P, O0Pr, FB, FBh,
                 SRD_A, SRD_K, SRD_V, SRD_WO, SRD_WS, SRD_B, s_w3072, s_pst, s_thr, s_c2, s_h0, s_b, s_pj, s_w, s_t, s_ret,
                 THR_BITS, C_BITS, SLOT, build_lane_consts, autonop, srd, pf_load, code_pf, kd, KNAME, Gen, a_item)
import sched

CFG = dict(
    nt_kv=True, timing=False, steptime=False, pst_flags=" sc1", red_flags=" sc1",
    dspair_v=True, dspair_k=False, dspair_w=False, no_st=False, map_nb=8,
    fused=True, single=False, kv_same=False,
    R=13, P=3, P0=None, DW=4, DX=3, NW0=6, NX0=2, xres=23,
    kv_rot=False, rot_shift=0, rot_mul=1,
    tlb0=-1, tlb1=-1, tlb_stride=4096,
    npair0=0, DX0=0, NX00=0, nt_w0=False, nt_w1=False, nt_x0=False, nt_x1=False,
    RP=0, npair=2, rp_start0=3, rp_start1=0, rp_space=1.2,
    DW0=0, NW00=0, tlb='', park0='', park1='', d_flag=2, d_poll=1, d_chk=2, d_mfma=3, hu_in=6, hu_per=3, hide_setup=True, hu_pre=True, spin_sleep=2, stamp_entry=False, fast_pro=True, out_flags='', pf_sub=8, pf_entry=False, hide_n=True, wo_split='53.57.61.65', w1_split='', pro_max=7, early_max=4, early_steps=3,
    pf_code=True, pf_w1=8, pf_wo=52, pf_start="xw", pf_start_step=0, code_lead=14, pf_code_all=False, macros=True,
)

SRD_X, SRD_W = SRD_A, SRD_B
G.SRD_DBG = S(4, 4)
SRD_DBG = G.SRD_DBG
s_kvb, s_wb, s_xb, s_ob = S(33), S(34), S(37), S(38)
s_do = [S(35), S(36)]
s_w6144 = S(41)
NSTEP = 144


VCHK = V(143)
AWR = V(246)
s_rp = S(39)
s_n0, s_kvb1 = S(40), S(42)
s_rl2 = [S(63), S(62)]
VHL = V(132)


def o_cs(j, reorder):
    if reorder and j < 8:
        return [(0, 0), (0, 1), (1, 0), (1, 1), (0, 2), (0, 3), (1, 2), (1, 3)][j]
    return j // 4, j % 4


def XF(u, half, qb): return V(144 + ((u % 2) * 2 + half) * 12 + 4 * qb, 4)


class Gen3(Gen):
    def __init__(self, cfg):
        self.cfg = cfg
        self.rare_sites = []
        i = lambda k: int(cfg[k])
        self.R = i("R")
        self.seq, self.X, self.W, self.KV, self.O = sched.build(
            R=self.R, P=i("P"), DW=i("DW"), DX=i("DX"), NW0=i("NW0"), NX0=i("NX0"),
            P0=None if cfg["P0"] in (None, "None") else int(cfg["P0"]), xres=i("xres"),
            pro_max=i("pro_max"), early_max=i("early_max"), early_steps=i("early_steps"),
            park0=[int(x) for x in str(cfg["park0"]).split(".")] if cfg["park0"] else None,
            park1=[int(x) for x in str(cfg["park1"]).split(".")] if cfg["park1"] else None,
            DW0=int(cfg["DW0"]) or None, NW00=int(cfg["NW00"]) or None, RP=i("RP"), npair=i("npair"),
            rp_load=self.rp_load_step, npair0=int(cfg["npair0"]) or None, DX0=int(cfg["DX0"]) or None, NX00=int(cfg["NX00"]) or None)
        self.item = []
        for h in range(2):
            self.item += [self.W[(h, t)] for t in range(20)] + [self.KV[(h, j)] for j in range(32)]
        self.item += [self.O[j] for j in range(40)]
        self.gaps = [None] * NSTEP
        self.pre = {s: [] for s in range(NSTEP)}
        self.post = {s: [] for s in range(NSTEP)}
        self.regs = {"K": AK, "V": AV, "W": AW, "O": AO}
        self.plan = {}
        for kind in self.regs:
            its = [it for it in self.item if it.kind == kind]
            k = 0
            while k < len(its):
                lo = hi = its[k].slot
                e = k
                while e + 1 < len(its):
                    nl, nh = min(lo, its[e + 1].slot), max(hi, its[e + 1].slot)
                    if nh - nl > 4: break
                    lo, hi = nl, nh
                    e += 1
                for q in range(k, e + 1): self.plan[its[q].name] = lo * SLOT
                k = e + 1
        self.base = {kind: [0] * len(self.regs[kind]) for kind in self.regs}
        self.nunit = 0
        self.fixes = {}
        self.dump_block = {}
        self.rp1_first = {}

    def rp_load_step(self, h, k):
        s = int(float(self.cfg["rp_start0" if h == 0 else "rp_start1"]) + k * float(self.cfg["rp_space"]))
        if h == 1 and self.cfg["hide_n"]:
            s = max(s, int(2.45 * (k // 2 + 1)) + 1)
        return s

    def place_fixes(self):
        for s, lst in self.fixes.items():
            gaps = self.gaps[s]
            for x, lo, hi in lst:
                c = [g for g in range(lo, hi + 1) if gaps[g].free() == 1 and not gaps[g].vm and g != 23]
                if not c: c = [g for g in range(lo, hi + 1) if gaps[g].free() >= 1 and not gaps[g].vm and g != 23]
                if not c: c = [hi]
                gaps[c[0]].va.append(x)

    def frag_reads3(self, it, f, buf):
        win = self.plan[it.name]
        off = it.slot * SLOT - win
        kind = it.kind
        if kind == "K":
            kt, kb = f // 6, f % 6
            ri = kb % 2
            return [(ds_read("ds_read_b128", FB(buf, f % 2), AK[ri], off + kt * 6144 + (kb // 2) * 128), ri, win)]
        ri, j = f % 4, f // 4
        o, d2 = {"V": (off + 128 * j, 6144), "W": (off + 128 * j, 1536), "O": (off + 4096 * j, 2048)}[kind]
        r = self.regs[kind][ri]
        return [(ds_read("ds_read_b64_tr_b16", FBh(buf, f % 2, 0), r, o), ri, win),
                (ds_read("ds_read_b64_tr_b16", FBh(buf, f % 2, 1), r, o + d2), ri, win)]

    def fix(self, kind, ri, win):
        B = self.base[kind]
        if B[ri] == win: return None
        d = win - B[ri]
        B[ri] = win
        r = self.regs[kind][ri]
        return valu("v_add_u32", r, d, r) if d > 0 else valu("v_subrev_u32", r, -d, r)

    def place_reads3(self, gaps, g0, it, grp, cur=None):
        rl = []
        for f in (2 * grp, 2 * grp + 1):
            rl += self.frag_reads3(it, f, grp % 3)
        fx = [x for x in (self.fix(it.kind, ri, win) for _, ri, win in rl) if x is not None]
        if fx:
            same = (cur is not None and cur.kind == it.kind)
            if it.kind == "K":
                lo = 20 if same else 2
            elif g0 == 24:
                lo = 16 if same else 2
            else:
                lo = 22 if same else 2
            self.pending_fix += [(x, lo, g0 - 1) for x in fx]
        pair = self.cfg["dspair_k"] if it.kind == "K" else (self.cfg["dspair_v"] if it.kind == "V" else self.cfg["dspair_w"])
        for k, (ins, ri, win) in enumerate(rl):
            gaps[g0 + (k // 2 if pair else k)].ds.append(ins)
        return len(rl)

    def first_reads3(self, it):
        out = []
        for grp in range(2):
            for f in (2 * grp, 2 * grp + 1):
                for ins, ri, win in self.frag_reads3(it, f, grp % 3):
                    x = self.fix(it.kind, ri, win)
                    if x is not None: out.append(x)
                    out.append(ins)
        for ri in range(len(self.regs[it.kind])):
            x = self.fix(it.kind, ri, self.plan[it.name])
            if x is not None: out.append(x)
        return out

    def x_reads3(self, it):
        u = it.n
        return [ds_read("ds_read_b128", XF(u, half, qb), AX[half], it.slot * SLOT + 2048 * qb) for half in range(2) for qb in range(3)]

    def units(self, it):
        tag = ("item", it.name)
        out = []
        for k in range(it.units):
            so = s_do[self.nunit % 2]
            self.nunit += 1
            nt = False
            if it.kind == "X":
                m0 = salu("s_add_u32", "m0", s_w6144, it.slot * SLOT + 3072 * k)
                off = salu("s_add_u32", so, s_xb, 128 * it.n + 30720 * k)
                vo, sr = DA, SRD_X
                nt = bool(self.cfg["nt_x0"]) if it.h == 0 else bool(self.cfg["nt_x1"])
            else:
                m0 = salu("s_add_u32", "m0", s_w3072, it.slot * SLOT)
                if it.kind in "KV":
                    off = self.kv_off(so, it)
                    vo, sr = DKV, (SRD_K if it.kind == "K" else SRD_V)
                    nt = self.cfg["nt_kv"]
                elif it.kind == "W":
                    off = salu("s_add_u32", so, s_wb, it.h * 384 + it.n * 393216)
                    vo, sr = DB, SRD_W
                    nt = bool(self.cfg["nt_w0"]) if it.h == 0 else bool(self.cfg["nt_w1"])
                else:
                    c, s = o_cs(it.n, self.cfg["hide_n"])
                    off = salu("s_add_u32", so, s_ob, s * 122880 + c * 128)
                    vo, sr = DO, SRD_WO
            out.append((m0, off, [dma(vo[i], sr, so, 1024 * i, nt, tag=tag) for i in range(3)]))
        return out

    def kv_off(self, so, it):
        if self.cfg["kv_rot"] and not self.cfg["kv_same"]:
            return [salu("s_xor_b32", so, s_n0, it.n), salu("s_mul_i32", so, so, 12288),
                    salu("s_add_u32", so, so, s_kvb if it.h == 0 else s_kvb1)]
        imm = it.h * 196608 + (0 if self.cfg["kv_same"] else it.n * 12288)
        return salu("s_add_u32", so, s_kvb, imm)

    def place_dma(self):
        for b in range(NSTEP):
            un = []
            for it in self.seq:
                if it.issue == b and not getattr(it, "reg", False): un += self.units(it)
            assert len(un) <= 4
            if len(un) == 1:
                pos = [[(0, 28), (1, 4), (1, 16)]]
            elif len(un) == 2:
                pos = [[(0, 28), (0, 34), (1, 4)], [(1, 10), (1, 16), (1, 22)]]
            elif len(un) > 2:
                pos = [[(0, 28), (0, 29), (0, 34)], [(1, 2), (1, 4), (1, 5)], [(1, 8), (1, 10), (1, 11)], [(1, 14), (1, 16), (1, 17)]][:len(un)]
            else:
                pos = []
            for (m0, off, ins), ps in zip(un, pos):
                for i, (ds_, gi) in enumerate(ps):
                    g = self.gaps[b + ds_]
                    if i == 0:
                        if isinstance(off, list):
                            (g[gi - 3] if gi >= 3 else self.gaps[b + ds_ - 1][36 + gi - 3]).sc.append(off[0])
                            g[gi - 2].sc += [off[1], m0]; g[gi - 1].sc.append(off[2])
                        else:
                            g[gi - 2].sc.append(m0)
                            g[gi - 1].sc.append(off)
                    if len(un) > 2 and gi % 6 < 4 and g[gi].ds:
                        pass
                    g[gi].vm.append(ins[i])

    def place_reg_tiles(self):
        self.dbase = 0
        for h in range(2):
            its = [self.KV[(h, j)] for j in range(32) if getattr(self.KV[(h, j)], "reg", False)]
            start = float(self.cfg["rp_start0" if h == 0 else "rp_start1"])
            last_s = -1
            for k, it in enumerate(its):
                s = 52 * h + self.rp_load_step(h, k)
                while len([gi for gi in (5, 11, 17, 29, 35) if not self.gaps[s][gi].vm]) < 3 or s <= last_s: s += 1
                if h == 1: self.rp1_first[k] = s * 36 + min(gi for gi in (5, 11, 17, 29, 35) if not self.gaps[s][gi].vm)
                last_s = s
                assert s + 2 <= it.issue, (it, s)
                g = self.gaps[s]
                off = self.kv_off(s_rp, it)
                if isinstance(off, list):
                    for q, x in enumerate(off): g[1 + q].sc.append(x)
                else:
                    g[3].sc.append(off)
                free = [gi for gi in (5, 11, 17, 29, 35) if not g[gi].vm][:3]
                assert len(free) == 3, (s, free)
                for i, gi in enumerate(free):
                    g[gi].vm.append(vload(A(12 * k + 4 * i, 4), DKV[i], SRD_K if it.kind == "K" else SRD_V, s_rp, 1024 * i,
                                          " nt" if self.cfg["nt_kv"] else "", tag=("reg", it.name)))
                it.rk = k
            for b in sorted({it.issue for it in its}):
                grp = [it for it in its if it.issue == b]
                wr = []
                for it in grp:
                    off = it.slot * SLOT
                    pre = []
                    if not (0 <= off - self.dbase and off - self.dbase + 2048 + 1024 <= 65536):
                        nb = min(off, (self.R - 5) * SLOT)
                        d = nb - self.dbase
                        self.dbase = nb
                        pre = [valu("v_add_u32", AWR, d, AWR) if d > 0 else valu("v_subrev_u32", AWR, -d, AWR)]
                    wr.append((it, pre, [ds_write(AWR, A(12 * it.rk + 4 * i, 4), off - self.dbase + 1024 * i, tag=("dump", it.name)) for i in range(3)]))
                if b % 52 == 19:
                    blk = []
                    for it, pre, w in wr: blk += [WaitTag([("reg", it.name)])] + pre + w
                    self.dump_block[b] = blk
                    continue
                cand = [(b, gi) for gi in range(24, 36)] + [(b + 1, gi) for gi in range(0, 22)]
                ci = 0
                for it, pre, w in wr:
                    first = True
                    for x in w:
                        while True:
                            st_, gi = cand[ci]
                            gp = self.gaps[st_][gi]
                            ok = not gp.vm and gp.free() >= 1 and len(gp.ds) < 2
                            if first and pre:
                                pst, pg = cand[ci - 1] if ci > 0 else (None, None)
                                ok = ok and ci > 0
                            if ok: break
                            ci += 1
                        if first:
                            gp.sc.append(WaitTag([("reg", it.name)]))
                            if pre:
                                pst, pg = cand[ci - 1]
                                self.gaps[pst][pg].va += pre
                            first = False
                        gp.ds.append(x)
                        ci += 1

    def frame3(self, s, mf):
        it = self.item[s]
        nx = self.item[s + 1] if s + 1 < NSTEP else None
        gaps = [Gap(mf(i, FB((i // 6) % 3, (i // 3) % 2))) for i in range(36)]
        nds = [0] * 6
        self.pending_fix = []
        for Gi in range(6):
            if Gi < 4:
                nds[Gi] = self.place_reads3(gaps, 6 * Gi, it, Gi + 2)
            elif nx is not None:
                nds[Gi] = self.place_reads3(gaps, 6 * Gi, nx, Gi - 4, cur=it)
        xs = [x for x in self.X.values() if x.need == s]
        if xs:
            rd = self.x_reads3(xs[0])
            for k, gi in enumerate((24, 25, 26, 27, 30, 31)):
                gaps[gi].ds.append(rd[k])
            nds[4] += 4
            nds[5] += 2
        need = [("item", x.name) for x in self.seq if x.need == s]
        for Gi in range(6):
            gi = 6 * Gi + 5
            if Gi == 3 and nx is not None:
                lt = [("dump", x.name) for x in self.seq if x.need == s]
                bar = barrier()
                bar.info = lt
                gaps[gi].sc += [WaitTag(need, lgkm="auto", ltags=lt), bar]
            elif Gi == 5:
                if nx is not None: gaps[gi].sc.append(WaitTag([], lgkm="auto"))
            else:
                gaps[gi].sc.append(WaitTag([], lgkm="auto"))
        self.fixes[s] = self.pending_fix
        if self.cfg["steptime"]:
            gaps[24].post.append(I("s_memtime s[92:93]", "salu"))
            gaps[33].post += [raw("s_waitcnt lgkmcnt(0)"), raw(f"v_writelane_b32 v{253 + s // 64}, s92, {s % 64}", "valu")]
        self.gaps[s] = gaps

    def build_frames(self):
        for h in range(2):
            for t in range(20):
                def mf(i, fr, t=t):
                    T, qb = i // 3, i % 3
                    return mfma(ACC(T, qb), fr, XF(t // 2, t % 2, qb), 0 if t == 0 else ACC(T, qb))
                self.frame3(52 * h + t, mf)
            for j in range(32):
                kind, n = a_item(j)
                p = n % 2
                if kind == "K":
                    def mf(i, fr, p=p, n=n):
                        f, qb = i // 3, i % 3
                        kt, kb = f // 6, f % 6
                        c = (0 if n < 2 else NEGM(qb)) if kb == 0 else SB(p, kt, qb)
                        return mfma(SB(p, kt, qb), fr, QF(kb, qb), c)
                else:
                    def mf(i, fr, p=p, n=n):
                        T, qb = i // 3, i % 3
                        return mfma(OA(T, qb), fr, PB(p, qb), 0 if n == 0 else OA(T, qb))
                self.frame3(52 * h + 20 + j, mf)
        for j in range(40):
            c, s = o_cs(j, self.cfg["hide_n"])

            def mf(i, fr, s=s, p=c % 2):
                f, qb = i // 3, i % 3
                jj, nt = f // 4, f % 4
                ks = 3 * s + jj
                h, kb = ks // 6, ks % 6
                b = O0P(kb, qb) if h == 0 else QF(kb, qb)
                return mfma(OACC(p, nt, qb), fr, b, 0 if ks == 0 else OACC(p, nt, qb))
            self.frame3(104 + j, mf)

    def a_fill(self, h):
        s0 = 52 * h + 20
        gaps = [g for j in range(32) for g in self.gaps[s0 + j]]
        Gx = lambda j, i=0: 36 * j + i
        mops, fin = self.max_ops(0)
        for o in mops: o.earliest = Gx(1, 0)
        sm0, _ = self.softmax_ops(0, sub_deps=fin, earliest_kt=(Gx(1, 0), Gx(1, 2)))
        pend = list_schedule(gaps, mops + sm0, Gx(1, 0), Gx(2, 0))
        self.post[s0 + 1] += autonop(self.emit_tail(pend)) + [valu("v_mov_b32", L(qb), LT(qb)) for qb in range(3)]
        for n in range(1, 16):
            p = n % 2
            j0 = 2 * n
            j1 = j0 + 2 if n <= 14 else j0 + 1
            sub = [None, None, None] if n == 1 else None
            sm, ltl = self.softmax_ops(p, sub_deps=sub, earliest_kt=(Gx(j0, 0), Gx(j0, 3)), lacc=(n > 1))
            pend = list_schedule(gaps, sm + self.check_ops(ltl, p), Gx(j0, 0), Gx(j1, 0))
            self.post[s0 + j1 - 1] += autonop(self.emit_tail(pend)) + self.check_branch(p)
            if n == 15: self.post[s0 + j1 - 1] += self.l_acc()

    RINV = [V(192), V(193), V(194)]

    def rinv_fill(self, h):
        gaps = self.gaps[52 * h + 51]
        y = [MT(3 + qb) for qb in range(3)]
        dst = self.RINV if h == 0 else [MT(8), MT(9), MT(10)]
        ops, prev = [], [None] * 3
        for sw in ("v_permlane32_swap_b32", "v_permlane16_swap_b32"):
            for qb in range(3):
                o = Op(valu("v_mov_b32", y[qb], L(qb)), [(prev[qb], 0)] if prev[qb] else []); ops.append(o); prev[qb] = o
            for qb in range(3):
                o = Op(perm(sw, L(qb), y[qb]), [(prev[qb], 2)]); ops.append(o); prev[qb] = o
            for qb in range(3):
                o = Op(valu("v_add_f32", L(qb), L(qb), y[qb]), [(prev[qb], 1)]); ops.append(o); prev[qb] = o
        for qb in range(3):
            o = Op(vrcp(dst[qb], L(qb)), [(prev[qb], 0)]); ops.append(o)
        assert not list_schedule(gaps, ops, 0, 36)

    def norm_ops(self, h, tsets, rinv):
        ops, last_use, rd_last, unit_last = [], [[] for _ in tsets], {}, {}
        k = 0
        for kb in range(6):
            for qb in range(3):
                ts = k % len(tsets)
                t = tsets[ts]
                dep0 = [(x, 0) for x in last_use[ts]]
                rds = []
                for tt, T in enumerate((2 * kb, 2 * kb + 1)):
                    for r in range(4):
                        o = Op(I(f"v_accvgpr_read_b32 v{t + 4 * tt + r}, {rtxt(OAr(T, qb, r))}", "valu", [V(t + 4 * tt + r)], [OAr(T, qb, r)]), list(dep0))
                        ops.append(o); rds.append(o)
                        rd_last[T] = o
                mul = []
                for r in range(8):
                    o = Op(valu("v_mul_f32", V(t + r), V(t + r), rinv[qb]), [(rds[r], 0)]); ops.append(o); mul.append(o)
                cv = []
                for r in range(4):
                    d = V(t + r) if h == 0 else QFr(kb, qb, r)
                    deps = [(mul[2 * r], 0), (mul[2 * r + 1], 0)] + ([(cv[-1], 0)] if cv and h == 0 else [])
                    o = Op(valu("v_cvt_pk_bf16_f32", d, V(t + 2 * r), V(t + 2 * r + 1)), deps); ops.append(o); cv.append(o)
                fin = cv
                if h == 0:
                    fin = []
                    for r in range(4):
                        o = Op(I(f"v_accvgpr_write_b32 {rtxt(O0Pr(kb, qb, r))}, v{t + r}", "valu", [O0Pr(kb, qb, r)], [V(t + r)]), [(cv[r], 0), (cv[-1], 0)])
                        ops.append(o); fin.append(o)
                last_use[ts] = fin
                unit_last[(kb, qb)] = fin
                k += 1
        return ops, rd_last, unit_last

    def n0_fill(self):
        gaps = [g for s in range(52, 72) for g in self.gaps[s]]
        ops, rd_last, _ = self.norm_ops(0, [198, 206], self.RINV)
        pend = list_schedule(gaps, ops, 0, 36 * 19)
        assert not pend, len(pend)
        self.n0_free = {T: 52 * 36 + o.gap for T, o in rd_last.items()}
        for k, g0 in self.rp1_first.items():
            assert self.n0_free[k] < g0, (k, self.n0_free[k], g0)

    def n1_fill(self):
        gaps = [g for j in range(8) for g in self.gaps[104 + j]]
        rinv = [MT(8), MT(9), MT(10)]
        ops, _, unit_last = self.norm_ops(1, [112, 120], rinv)
        done = []
        lim = {kb: 36 * (4 + kb // 3) + 12 * (kb % 3) - 1 for kb in range(6)}
        g = 0
        rest = ops
        for kb in range(6):
            mine = [o for o in rest if any(o in unit_ops for unit_ops in [self._unit_ops(ops, kb)])]
            pend = list_schedule(gaps, mine, g, lim[kb])
            if pend:
                gi = lim[kb]
                gaps[gi].post += autonop([o.ins for o in pend]) + [nop(1)]
                for o in pend: o.gap = gi + 1
            rest = [o for o in rest if o not in mine]

    def _unit_ops(self, ops, kb):
        return ops[60 * kb:60 * kb + 60]

    def n_block(self, h):
        out = []
        if h == 1 and self.cfg["fused"]:
            out += self.hu_setup()
        out += self.rinv_ops()
        tmp = [V(0 + 8 * k, 8) for k in range(3)]
        pk = [V(24 + 4 * k, 4) for k in range(3)]
        for kb in range(6):
            for qb in range(3):
                t = tmp[qb][1]
                for tt, T in enumerate((2 * kb, 2 * kb + 1)):
                    for r in range(4):
                        out.append(I(f"v_accvgpr_read_b32 v{t + 4 * tt + r}, {rtxt(OAr(T, qb, r))}", "valu",
                                     [V(t + 4 * tt + r)], [OAr(T, qb, r)]))
            for qb in range(3):
                t = tmp[qb][1]
                for h2 in range(4):
                    out.append(valu("v_pk_mul_f32", V(t + 2 * h2, 2), V(t + 2 * h2, 2), V(MT(8 + 2 * qb)[1], 2)))
            for qb in range(3):
                t = tmp[qb][1]
                for r in range(4):
                    d = V(pk[qb][1] + r) if h == 0 else QFr(kb, qb, r)
                    out.append(valu("v_cvt_pk_bf16_f32", d, V(t + 2 * r), V(t + 2 * r + 1)))
            if h == 0:
                for qb in range(3):
                    for r in range(4):
                        out.append(I(f"v_accvgpr_write_b32 {rtxt(O0Pr(kb, qb, r))}, v{pk[qb][1] + r}", "valu",
                                     [O0Pr(kb, qb, r)], [V(pk[qb][1] + r)]))
        return autonop(out)

    def o_fill(self):
        gaps = [g for j in range(40) for g in self.gaps[104 + j]]

        def cvts(p):
            ops = []
            for ntp in range(2):
                for qb in range(3):
                    u = ntp * 3 + qb
                    for h in range(2):
                        a = OACC(p, 2 * ntp + h, qb)[1]
                        ops.append(valu("v_cvt_pk_bf16_f32", CTr(u, 2 * h), V(a), V(a + 1)))
                        ops.append(valu("v_cvt_pk_bf16_f32", CTr(u, 2 * h + 1), V(a + 2), V(a + 3)))
            return ops

        def store(u, c):
            return vstore(CT(u), PSV, SRD_WS, s_pst[u // 4], (u % 4) * 1024, self.cfg["pst_flags"], tag=("st", c))

        spos = [(0, 22), (0, 34), (1, 10), (1, 22), (1, 34), (2, 10)]
        last_step = {}
        for j in range(40): last_step[o_cs(j, self.cfg["hide_n"])[0]] = j
        prev_store_gap = -1
        for c in range(9):
            j0 = last_step[c] + 1
            g0 = 36 * j0
            e0 = max(g0 + 3, prev_store_gap + 1)
            ops = [Op(x, earliest=e0) for x in cvts(c % 2)]
            pos = [g0 + 36 * s + gi for s, gi in spos]
            pos = [p_ for p_ in pos if p_ > e0 + 8]
            k = 3
            while len(pos) < 6:
                nxt = g0 + 36 * (k // 1) + (10, 22, 34)[0]
                for gi in (10, 22, 34):
                    p_ = g0 + 36 * 2 + gi if k == 3 else g0 + 36 * (k - 1) + gi
                    if p_ not in pos and p_ > (pos[-1] if pos else 0) and len(pos) < 6: pos.append(p_)
                k += 1
            for u, p_ in enumerate(pos):
                if not self.cfg["no_st"]:
                    gaps[p_].vm.append(store(u, c))
            assert not list_schedule(gaps, ops, e0, e0 + 40)
            for u, p_ in enumerate(pos):
                assert max(o.gap for o in ops[4 * u:4 * u + 4]) < p_, (c, u, p_)
            prev_store_gap = pos[-1]
            self.last_store = getattr(self, "last_store", {})
            self.last_store[c] = pos[-1]
            ga = pos[-1] + 1
            gaps[ga].sc.append(salu("s_add_u32", s_pst[0], s_pst[0], 24576))
            gaps[ga + 1].sc.append(salu("s_add_u32", s_pst[1], s_pst[1], 24576))
        fused = self.cfg["fused"]
        if fused:
            self.hu_fill(gaps)
        tail = autonop([nop(7)] + cvts(1) + [store(u, 9) for u in range(6)])
        if fused: tail += self.hu_tail()
        self.post[143] += tail

    HU_NEED = [1, 2, 3, 5, 6, 7, 8, 9]
    HU_BASE = [0, 64, 128, 192, 256, 320, 384, 432]
    HU_LIM = [480, 480, 480, 480, 480, 480, 432, 480]

    def hu_buf(self, rho, t): return A(32 * (rho % 4 if rho in self.hu_inloop else rho) + 4 * t, 4)

    def hu_load(self, rho, t):
        return vload(self.hu_buf(rho, t), VHL, SRD_WS, s_rl2[rho % 2], 0, self.cfg["red_flags"], tag=("red", rho, t))

    def hu_adv(self, rho):
        return salu("s_add_u32", s_rl2[rho % 2], s_rl2[rho % 2], 2 * 245760)

    def s_out(self, rho):
        return S(76 + rho) if self.cfg["hu_pre"] else s_ro[rho % 2]

    def hu_mfma(self, rho):
        o = []
        for t in range(8):
            if t % 4 == 0: o.append(WaitTag([("red", rho, t + 3)]))
            o.append(mfma(RD[0], SEL[0], self.hu_buf(rho, t), 0 if t == 0 else RD[0]))
        a = RD[0][1]
        o += [nop(7), valu("v_cvt_pk_bf16_f32", V(RD[1][1]), V(a), V(a + 1)), valu("v_cvt_pk_bf16_f32", V(RD[1][1] + 1), V(a + 2), V(a + 3)),
              vstore(V(RD[1][1], 2), VOUT, SRD_OUT, self.s_out(rho), 0, self.cfg["out_flags"], tag=("out", rho), width=2), nop(1)]
        return ([] if self.cfg["hu_pre"] else self.hu_out_off(rho)) + o

    def hu_out_off(self, rho):
        hu, n, c, rem, w2, u, ntp, a = s_t[0], s_t[1], s_t[2], s_t[3], S(100), S(101), S(61), self.s_out(rho)
        o = [salu("s_add_u32", hu, s_kw, self.HU_BASE[rho]), salu("s_lshr_b32", n, hu, 1),
             salu("s_mul_hi_u32", c, n, (2 ** 32 + 23) // 24), salu("s_mul_i32", rem, c, 24), salu("s_sub_u32", rem, n, rem),
             salu("s_mul_hi_u32", w2, rem, (2 ** 32 + 5) // 6), salu("s_mul_i32", u, w2, 6), salu("s_sub_u32", u, rem, u),
             salu("s_mul_hi_u32", ntp, u, (2 ** 32 + 2) // 3), salu("s_mul_i32", rem, ntp, 3), salu("s_sub_u32", u, u, rem),
             salu("s_mul_i32", a, s_b, 192), salu("s_mul_i32", w2, w2, 48), salu("s_add_u32", a, a, w2),
             salu("s_lshl_b32", u, u, 4), salu("s_add_u32", a, a, u), salu("s_mul_i32", a, a, 1280),
             salu("s_lshl_b32", c, c, 7), salu("s_add_u32", a, a, c), salu("s_lshl_b32", ntp, ntp, 6), salu("s_add_u32", a, a, ntp),
             salu("s_and_b32", n, hu, 1), salu("s_lshl_b32", n, n, 4), salu("s_add_u32", a, a, n)]
        if rho >= 6:
            o += [scmp("s_cmp_ge_u32", hu, self.HU_LIM[rho]), salu("s_cselect_b32", a, 0x7FFF0000, a)]
        return o

    def hu_base(self, rho):
        return salu("s_add_u32", s_rl2[rho % 2], s_pb, 512 * self.HU_BASE[rho])

    def hu_setup(self):
        hide = self.cfg["hide_setup"]
        lane, g_, m_, t0, t1 = (V(133), V(134), V(135), V(137), V(138)) if hide else (V(96), V(97), V(98), V(99), V(100))
        o = srd(SRD_OUT, None, 16 * 192 * 640 * 2, s_outp)
        o += [WaitTag([("chk",)]), scmp("s_cmp_eq_u32", s_w, 0), branch("s_cbranch_scc0", "L_chk_ok"),
              I(f"v_readfirstlane_b32 {rtxt(s_t[1])}, {rtxt(VCHK)}", "valu", [s_t[1]], [VCHK]), raw("s_nop 3"),
              scmp("s_cmp_ge_u32", s_t[1], 16), branch("s_cbranch_scc1", "L_chk_ok"),
              salu("s_mov_b32", s_t[0], 1 << 18), label("L_chk_loop"),
              salu("s_sub_u32", s_t[0], s_t[0], 1), branch("s_cbranch_scc1", "L_chk_ok"), raw("s_sleep 8"),
              I(f"buffer_load_dword {rtxt(VCHK)}, {rtxt(VFO)}, {rtxt(SRD_DBG)}, {rtxt(s_b16)} offen sc1", "salu"), raw("s_waitcnt vmcnt(0)"),
              I(f"v_readfirstlane_b32 {rtxt(s_t[1])}, {rtxt(VCHK)}", "salu"), raw("s_nop 3"),
              scmp("s_cmp_ge_u32", s_t[1], 16), branch("s_cbranch_scc0", "L_chk_loop"), label("L_chk_ok")]
        cnd = lambda d, a, b: I(f"v_cndmask_b32 {rtxt(d)}, {rtxt(a)}, {rtxt(b)}, vcc", "valu", [d], [a, b])
        cmp_ = lambda txt, u: I(txt, "valu", [], [u])
        head = o
        o = []
        o += [valu("v_and_b32", lane, 63, TID), valu("v_lshrrev_b32", g_, 4, lane), valu("v_and_b32", m_, 15, lane),
              valu("v_mov_b32", VZ, 0),
              valu("v_mul_u32_u24", t0, 1280, m_), valu("v_and_b32", t1, 1, g_), valu("v_lshlrev_b32", t1, 5, t1), valu("v_add_u32", t0, t0, t1),
              valu("v_lshrrev_b32", t1, 1, g_), valu("v_lshlrev_b32", t1, 3, t1), valu("v_add_u32", VOUT, t0, t1),
              valu("v_lshrrev_b32", t0, 5, lane), valu("v_mul_u32_u24", t0, 245760, t0), valu("v_and_b32", t1, 31, lane),
              valu("v_lshlrev_b32", t1, 4, t1), valu("v_add_u32", VHL, t0, t1),
              valu("v_lshlrev_b32", t0, 2, TID), valu("v_mov_b32", VPOLL, 0x7FFFFF00),
              cmp_(f"v_cmp_gt_u32 vcc, 16, {rtxt(TID)}", TID), nop(1), cnd(VPOLL, VPOLL, t0),
              valu("v_and_b32", t0, 1, m_), valu("v_lshlrev_b32", t0, 4, t0), valu("v_mov_b32", t1, 0x3F80), valu("v_lshlrev_b32", t1, t0, t1),
              valu("v_lshrrev_b32", t0, 3, m_), valu("v_and_b32", g_, 1, g_),
              cmp_(f"v_cmp_eq_u32 vcc, {rtxt(t0)}, {rtxt(g_)}", t0), nop(1), cnd(t1, VZ, t1),
              valu("v_lshrrev_b32", t0, 1, m_), valu("v_and_b32", t0, 3, t0)]
        for d in range(4):
            o += [cmp_(f"v_cmp_eq_u32 vcc, {d}, {rtxt(t0)}", t0), nop(1), cnd(V(SEL[0][1] + d), VZ, t1)]
        if hide:
            self.setup_valu = [x for x in o if x.cls != "nop"]
            o = head
        else:
            o = head + o
        o += [salu("s_lshl_b32", s_b16, s_b, 8), salu("s_add_u32", s_b16, s_b16, FLAG_OFF),
              salu("s_lshl_b32", s_t[0], s_pj, 2), salu("s_add_u32", s_t[5], s_b16, s_t[0]), salu("s_add_u32", s_kw, s_t[0], s_w),
              salu("s_mul_i32", s_pb, s_b, 16 * 245760), salu("s_lshl_b32", s_t[0], s_kw, 9), salu("s_add_u32", s_pb, s_pb, s_t[0]),
              salu("s_add_u32", s_pb, s_pb, PART_OFF)]
        return o

    def add_wait_tag(self, gaps, fs, tag):
        for x in gaps[36 * fs + 23].sc:
            if isinstance(x, WaitTag):
                x.tag = ("waittag", x.tag[1] + (tag,))

    def spread_scalars(self, gaps, ins, g0):
        g = g0
        k = 0
        while k < len(ins):
            while gaps[g].sc or gaps[g].vm: g += 1
            grp = [ins[k]]
            if ins[k].txt.startswith("s_cmp"):
                grp.append(ins[k + 1])
            gaps[g].sc += grp
            k += len(grp)
            g += 1
        return g

    def hu_fill(self, gaps):
        if self.cfg["hide_setup"]:
            ops, prev = [], None
            for x in self.setup_valu:
                d = 2 if x.txt.startswith("v_cndmask") else 0
                op = Op(x, [(prev, d)] if prev else [], earliest=36 * 6)
                ops.append(op); prev = op
            assert not list_schedule(gaps, ops, 36 * 6, 36 * 12)
        if self.cfg["hu_pre"]:
            seq_ = []
            for rho in range(8): seq_ += self.hu_out_off(rho)
            end = self.spread_scalars(gaps, seq_, 36 * 1)
            assert end < 36 * 13, end
        self.hu_fill2(gaps)

    def hu_fill2(self, gaps):
        d_flag, d_poll, d_chk = int(self.cfg["d_flag"]), int(self.cfg["d_poll"]), int(self.cfg["d_chk"])
        n_in = int(self.cfg["hu_in"])
        self.hu_pending = []
        self.hu_inloop = set()
        published = set()
        for rho in range(8):
            c = self.HU_NEED[rho]
            if c >= 8: break
            fs = self.last_store[c] // 36 + d_flag
            if c not in published and fs <= 38:
                published.add(c)
                self.add_wait_tag(gaps, fs, ("st", c))
                gaps[36 * fs + 24].va.insert(0, valu("v_mov_b32", VFV, c + 1))
                gaps[36 * fs + 29].vm.append(self.flag_store())
            ps = fs + d_poll
            cs = ps + d_chk
            if rho >= n_in or cs > 38:
                self.hu_pending.append((rho, 0))
                continue
            self.hu_inloop.add(rho)
            gaps[36 * ps + 35].vm.append(self.poll_load(("poll", rho)))
            self.post[104 + cs - 1] += self.check_spin(c + 1, f"L_sp{rho}", WaitTag([("poll", rho)])) + [self.hu_base(rho)]
            t, st_ = 0, cs
            while t < 8 and st_ < 40:
                for gi in sorted((35, 11, 17)[:int(self.cfg['hu_per'])]):
                    if t == 8: break
                    if st_ == cs and gi < 24: continue
                    g = gaps[36 * st_ + gi]
                    if g.vm: continue
                    g.vm.append(self.hu_load(rho, t))
                    g.post.append(self.hu_adv(rho))
                    t += 1
                st_ += 1
            self.hu_end = getattr(self, "hu_end", {})
            self.hu_end[rho] = st_
            if rho - 2 in self.hu_end: assert self.hu_end[rho - 2] <= cs, (rho, self.hu_end, cs)
            ms = st_ + int(self.cfg["d_mfma"])
            if t == 8 and ms <= 39:
                self.post[104 + ms - 1] += self.hu_mfma(rho)
            else:
                self.hu_pending.append((rho, t, "polled"))

    def hu_tail(self):
        pend = self.hu_pending
        ready = [p[0] for p in pend if len(p) == 3 and p[1] == 8]
        partial = [(p[0], p[1]) for p in pend if len(p) == 3 and p[1] < 8]
        late = [p[0] for p in pend if len(p) == 2]
        flag = lambda k: [valu("v_mov_b32", VFV, k), self.flag_store()]

        def loads(r, t0=0):
            o = [self.hu_base(r)] if t0 == 0 else []
            for t in range(t0, 8): o += [self.hu_load(r, t), self.hu_adv(r)]
            return o
        o = self.tstamp(0)
        if late: o += [self.poll_load(("poll", "late"))]
        o += [WaitTag([("st", 8)]), barrier()] + flag(9)
        for r in ready: o += self.hu_mfma(r)
        o += self.tstamp(1)
        if late:
            c = max(self.HU_NEED[r] for r in late)
            o += self.check_spin(c + 1, "L_spl", WaitTag([("poll", "late")]))
        o += [WaitTag([("st", 9)]), barrier()] + self.tstamp(2) + [self.poll_load(("poll", 9))] + flag(10)
        inflight = []
        for r, t0 in partial:
            o += loads(r, t0)
            inflight.append(r)
        for r in late:
            if len(inflight) >= 4: o += self.hu_mfma(inflight.pop(0))
            o += loads(r)
            inflight.append(r)
        o += self.tstamp(3)
        while len(inflight) > 1: o += self.hu_mfma(inflight.pop(0))
        o += self.check_spin(9, "L_sp9", WaitTag([("poll", 9)])) + [barrier()] + self.tstamp(4)
        o += loads(6) + [self.poll_load(("poll", "fin"))]
        for r in inflight: o += self.hu_mfma(r)
        o += self.tstamp(5) + self.check_spin(10, "L_spf", WaitTag([("poll", "fin")])) + [barrier()] + self.tstamp(6)
        o += loads(7) + self.tstamp(7) + self.hu_mfma(6) + self.tstamp(8) + self.hu_mfma(7) + self.tstamp(9) + self.tstamp(10)
        return o

    def tstamp(self, k):
        if not self.cfg["steptime"]: return []
        return [I("s_memtime s[92:93]", "salu"), raw("s_waitcnt lgkmcnt(0)"), raw(f"v_writelane_b32 v255, s92, {20 + k}", "valu")]


def stamp(k):
    return [I("s_memtime s[56:57]", "salu"), raw("s_waitcnt lgkmcnt(0)"), salu("s_mov_b32", S(64 + k), S(56))]


def main_kernel(cfg):
    g = Gen3(cfg)
    T = cfg["timing"]
    pro = [label("mha_main_kernel"), scmp("s_cmp_ge_u32", S(2), 256), branch("s_cbranch_scc1", "L_main_exit"),
           raw("s_load_dwordx16 s[64:79], s[0:1], 0")]
    if T and cfg["stamp_entry"]: pro.insert(1, I("s_memrealtime s[86:87]", "salu"))
    if cfg["pf_entry"]:
        pro += [I("s_getpc_b64 s[56:57]", "salu"), label("L_pce"), raw("s_add_u32 s56, s56, mha_main_kernel-L_pce"), raw("s_addc_u32 s57, s57, -1") if False else raw("s_subb_u32 s57, s57, 0") if False else raw("s_nop 0"),
                ]
        pro = pro[:-4] + [I("s_getpc_b64 s[56:57]", "salu"), label("L_pce"),
                raw("s_and_b32 s56, s56, 0xffffff00"),
                valu("v_lshlrev_b32", V(1), 7, V(0)), raw("v_mov_b32 v3, s57", "valu"),
                raw("v_add_co_u32 v2, vcc, s56, v1", "valu"), raw("s_nop 1"), raw("v_addc_co_u32 v3, vcc, 0, v3, vcc", "valu"),
                I(f"global_load_dword {rtxt(JUNK)}, v[2:3], off", "vmem", [], [])]
    lane_ops = []
    wreg = build_lane_consts(lane_ops)
    t0, t1 = s_t[0], s_t[1]
    nb = int(cfg["map_nb"]); npair = 32 // nb
    lg = lambda v: v.bit_length() - 1
    seen = set()
    for wg in range(256):
        a0, j = wg & 7, wg >> 3
        pj = (j & (npair - 1)) + ((a0 & (16 // npair - 1)) << lg(npair))
        bb = (j >> lg(npair)) + ((a0 >> lg(16 // npair)) << lg(nb))
        seen.add((bb, pj))
    assert len(seen) == 256
    ids = [
        salu("s_and_b32", t0, S(2), 7), salu("s_lshr_b32", t1, S(2), 3),
        salu("s_and_b32", s_pj, t1, npair - 1), salu("s_lshr_b32", s_b, t1, lg(npair)),
        salu("s_and_b32", t1, t0, 16 // npair - 1), salu("s_lshl_b32", t1, t1, lg(npair)), salu("s_add_u32", s_pj, s_pj, t1),
        salu("s_lshr_b32", t0, t0, lg(16 // npair)), salu("s_lshl_b32", t0, t0, lg(nb)), salu("s_add_u32", s_b, s_b, t0),
        salu("s_lshl_b32", s_h0, s_pj, 1),
        salu("s_mul_i32", s_wb, s_h0, 384), salu("s_mul_i32", s_xb, s_b, 245760)]
    wave_sc = [salu("s_mul_i32", s_w3072, s_w, 3072), salu("s_lshl_b32", s_w6144, s_w3072, 1)]
    srd_first = srd(SRD_X, 64, 16 * 192 * 640 * 2) + srd(SRD_W, 70, 640 * 6144 * 2)
    srd_rest = srd(SRD_K, 66, 16 * 32 * 512 * 192 * 2) + srd(SRD_V, 68, 16 * 32 * 512 * 192 * 2)
    srd_rest += srd(SRD_WO, 72, 6144 * 640 * 2) + srd(SRD_WS, 78, 402653184)
    srd_rest += [salu("s_mov_b32", s_outp[0], S(74)), salu("s_mov_b32", s_outp[1], S(75)),
                 salu("s_mov_b32", s_dbgp[0], S(76)), salu("s_mov_b32", s_dbgp[1], S(77))]
    sc_rest = [
        salu("s_lshl_b32", t0, s_b, 5), salu("s_add_u32", t0, t0, s_h0), salu("s_mul_i32", s_kvb, t0, 196608),
        salu("s_add_u32", s_kvb1, s_kvb, 196608),
        salu("s_lshr_b32", s_n0, S(2), int(cfg["rot_shift"])), salu("s_mul_i32", s_n0, s_n0, int(cfg["rot_mul"])), salu("s_and_b32", s_n0, s_n0, 15),
        salu("s_mul_i32", s_ob, s_h0, 245760),
        salu("s_lshl_b32", t0, s_b, 4), salu("s_add_u32", t0, t0, s_pj),
        salu("s_mul_i32", s_pst[0], t0, 245760), salu("s_add_u32", s_pst[0], s_pst[0], PART_OFF),
        salu("s_add_u32", s_pst[1], s_pst[0], 4096),
        salu("s_mov_b32", s_thr, THR_BITS), salu("s_mov_b32", S(48), C_BITS), salu("s_mov_b32", S(49), C_BITS),
    ]
    clr = []
    if cfg["fused"]:
        clr = [salu("s_lshl_b32", t0, s_b, 8), salu("s_lshl_b32", t1, s_pj, 2), salu("s_add_u32", t0, t0, t1),
               salu("s_add_u32", t0, t0, FLAG_OFF), valu("v_mov_b32", PT(8), 0),
               vstore(PT(8), VFO, SRD_WS, t0, 0, " sc1", tag=("clr",), width=1)]
    rfl = [nop(0), I(f"v_readfirstlane_b32 {rtxt(s_w)}, {rtxt(wreg)}", "valu", [s_w], [wreg])]
    first = [it for it in g.seq if it.issue == -1]
    first_tiles = []
    for it in first:
        for m0, off, ins in g.units(it):
            first_tiles += [m0] + (off if isinstance(off, list) else [off]) + [nop(0)] + ins
    if cfg["fast_pro"]:
        need = set()
        for r in DA + DB + [wreg]: need |= regs(r)
        keep = []
        for ins in reversed(lane_ops):
            if ins.defs & need:
                keep.append(ins)
                if not (ins.defs <= ins.uses): need -= ins.defs
                need |= {u for u in ins.uses if u[0] == "v"}
        keep.reverse()
        pro += ids + keep + rfl + [raw("s_waitcnt lgkmcnt(0)")] + srd_first + wave_sc
        if T and not cfg["stamp_entry"]: pro += [I("s_memrealtime s[86:87]", "salu")]
        if T and cfg["stamp_entry"]: pro += [I("s_memrealtime s[94:95]", "salu")]
        pro += first_tiles
        pro += lane_ops + srd_rest + sc_rest + clr
        if T: pro += stamp(0)
    else:
        pro += lane_ops + rfl + [raw("s_waitcnt lgkmcnt(0)")] + srd_first + srd_rest + ids + wave_sc + sc_rest
        if T: pro += ([] if cfg["stamp_entry"] else [I("s_memrealtime s[86:87]", "salu")]) + ([I("s_memrealtime s[94:95]", "salu")] if cfg["stamp_entry"] else []) + stamp(0)
        pro += clr

    gw = S(59)
    lane, lane128 = PT(3), PT(2)
    OOB = 0x7FFFFF00

    def masked(dst, src, n):
        return [valu("v_mov_b32", dst, OOB), raw(f"v_cmp_gt_u32 vcc, {n}, {rtxt(lane)}", "valu"), raw("s_nop 1"),
                raw(f"v_cndmask_b32 {rtxt(dst)}, {rtxt(dst)}, {rtxt(src)}, vcc", "valu")]
    pfs = [salu("s_lshl_b32", gw, S(2), 2), salu("s_add_u32", gw, gw, s_w),
           valu("v_and_b32", lane, 63, TID), valu("v_lshlrev_b32", lane128, 7, lane),
           valu("v_mul_u32_u24", PT(5), 21846, lane), valu("v_lshrrev_b32", PT(5), 16, PT(5)),
           valu("v_mul_u32_u24", PT(6), 3, PT(5)), valu("v_sub_u32", PT(6), lane, PT(6)),
           valu("v_mul_u32_u24", PT(5), 12288, PT(5)), valu("v_lshlrev_b32", PT(6), 7, PT(6)), valu("v_add_u32", PT(5), PT(5), PT(6))]
    pfs += masked(VTK[0], PT(5), 30) + masked(VTK[1], lane128, 60) + masked(PT(4), lane128, 30)
    pfs += [salu("s_and_b32", t0, gw, 15), salu("s_mul_i32", t0, t0, 768), salu("s_lshr_b32", S(100), gw, 4),
            salu("s_mul_i32", S(100), S(100), 122880), salu("s_add_u32", S(100), S(100), t0), salu("s_mul_i32", S(101), gw, 7680)]
    start = []
    if "x" in cfg["pf_start"]:
        start += [salu("s_mul_i32", t0, gw, 3840), pf_load(PT(4), SRD_X, t0)]
    if "w" in cfg["pf_start"]:
        start += [pf_load(VTK[0], SRD_W, S(100))]
    if "1" in cfg["pf_start"]:
        start += [salu("s_add_u32", t0, S(100), 384), pf_load(VTK[0], SRD_W, t0)]
    code_steps = cfg["_code_steps"]
    pfs2 = []
    if cfg["pf_code"]:
        pfs2 += [valu("v_and_b32", PT(7), 31, lane), valu("v_lshlrev_b32", PT(7), 7, PT(7)),
                 salu("s_lshl_b32", t0, s_w, 12), valu("v_add_u32", VL128, t0, PT(7))]
    if int(cfg["pf_start_step"]) == -2:
        pro += pfs + start
        pfs, start = [], []
    pfs += pfs2
    pfs += [valu("v_and_b32", PT(7), 63, TID), valu("v_lshlrev_b32", PT(7), 4, PT(7)), valu("v_add_u32", AWR, s_w3072, PT(7))]

    if not cfg["fast_pro"]: pro += first_tiles
    if cfg["tlb"]:
        tl = [valu("v_and_b32", PT(9), 1, TID)]
        for what in str(cfg["tlb"]):
            if what in "kv":
                tl += [valu("v_mul_u32_u24", PT(10), 393216 - 128, PT(9)), pf_load(PT(10), SRD_K if what == "k" else SRD_V, s_kvb)]
            elif what == "o":
                tl += [valu("v_mul_u32_u24", PT(10), 491520 - 128, PT(9)), pf_load(PT(10), SRD_WO, s_ob)]
            elif what == "p":
                tl += [valu("v_mul_u32_u24", PT(10), 245760 - 128, PT(9)), pf_load(PT(10), SRD_WS, s_pst[0])]
        pro += tl
    pro += pfs
    if cfg["pf_code"]:
        for k, st_ in enumerate(code_steps):
            if st_ < 0 and not (cfg["pf_entry"] and k == 0): pro += code_pf(f"L_code+{16384 * k}", sub=int(cfg["pf_sub"]))
    if cfg["pf_code_all"]:
        pro += [valu("v_lshlrev_b32", PT(9), 7, TID), valu("v_mov_b32", PT(10), S(2)), valu("v_lshlrev_b32", PT(10), 9, PT(10)),
                valu("v_add_u32", PT(9), PT(9), PT(10)),
                I("s_getpc_b64 s[56:57]", "salu"), label("L_pcall"), raw("s_add_u32 s56, s56, L_code-L_pcall"), raw("s_addc_u32 s57, s57, 0"),
                raw(f"v_mov_b32 v{VPC[1] + 1}, s57", "valu"), raw(f"v_add_co_u32 v{VPC[1]}, vcc, s56, {rtxt(PT(9))}", "valu"), raw("s_nop 1"),
                raw(f"v_addc_co_u32 v{VPC[1] + 1}, vcc, 0, v{VPC[1] + 1}, vcc", "valu"),
                raw(f"v_cmp_gt_u32 vcc, 4, {rtxt(TID)}", "valu"), raw("s_and_saveexec_b64 s[56:57], vcc"),
                raw("s_cbranch_execz L_pcall_skip"),
                I(f"global_load_dword {rtxt(JUNK)}, {rtxt(VPC)}, off", "salu", [], []), label("L_pcall_skip"),
                raw("s_mov_b64 exec, s[56:57]")]
    if int(cfg["pf_start_step"]) == -1: pro += start
    pro += [WaitTag([("item", it.name) for it in g.seq if it.need == -1]), barrier()]
    cnt_blk = []
    if cfg["fused"]:
        TMP = S(96, 4)
        vone = V(212) if cfg["fast_pro"] else PT(8)
        cnt_blk = srd(TMP, None, 256, s_dbgp) + [salu("s_lshl_b32", t0, s_b, 4), valu("v_mov_b32", vone, 1), WaitTag([("clr",)]),
                I(f"buffer_atomic_add {rtxt(vone)}, {rtxt(VFO)}, {rtxt(TMP)}, {rtxt(t0)} offen", "store", [], [vone, VFO, TMP, t0], tag=("cnt",))]
        if not cfg["fast_pro"]: pro += cnt_blk
    pro += g.x_reads3(g.X[(0, 0)]) + g.first_reads3(g.item[0]) + [wait(lgkm=4)]
    pro.append(label("L_code"))

    if cfg["fast_pro"]: g.pre[5] += cnt_blk
    g.build_frames()
    g.place_dma()
    g.place_reg_tiles()
    g.place_fixes()
    def put(s, gi, ins_list):
        gp = g.gaps[s][gi]
        for x in ins_list:
            if x.cls in ("vmem",): gp.vm.append(x)
            else: gp.sc.append(x)
    def tlb_touch(h, tmp):
        st = int(cfg["tlb_stride"])
        n = (196608 + st - 1) // st
        o = [valu("v_mul_u32_u24", tmp, st, TID), valu("v_mov_b32", V(tmp[1] + 1), OOB),
             raw(f"v_cmp_gt_u32 vcc, {n}, {rtxt(TID)}", "valu"), raw("s_nop 1"),
             raw(f"v_cndmask_b32 {rtxt(tmp)}, v{tmp[1] + 1}, {rtxt(tmp)}, vcc", "valu"),
             salu("s_add_u32", t0, s_kvb, h * 196608)]
        for sr in (SRD_K, SRD_V):
            x = pf_load(tmp, sr, t0)
            x.txt += " nt"
            o.append(x)
        return o
    if int(cfg["tlb0"]) >= 0: g.pre[int(cfg["tlb0"])] += tlb_touch(0, V(192))
    if int(cfg["tlb1"]) >= 0: g.pre[int(cfg["tlb1"])] += tlb_touch(1, V(128))
    if int(cfg["pf_start_step"]) >= 0:
        g.pre[int(cfg["pf_start_step"])] += start
    if cfg["w1_split"]:
        steps_ = [int(x) for x in str(cfg["w1_split"]).split(".")]
        n_ = 30 // len(steps_)
        for k, st_ in enumerate(steps_):
            g.pre[st_] += [valu("v_subrev_u32", V(213), n_ * k, V(215)), valu("v_mov_b32", V(214), OOB),
                           raw(f"v_cmp_gt_u32 vcc, {n_}, v213", "valu"), raw("s_nop 1"),
                           raw(f"v_cndmask_b32 v214, v214, {rtxt(VTK[0])}, vcc", "valu"),
                           salu("s_add_u32", t0, S(100), 384), pf_load(V(214), SRD_W, t0)]
        g.pre[steps_[0]] = [valu("v_and_b32", V(215), 63, TID)] + g.pre[steps_[0]]
    elif int(cfg["pf_w1"]) == 19:
        g.post[19] = [salu("s_add_u32", t0, S(100), 384), pf_load(VTK[0], SRD_W, t0)] + g.post[19]
    elif int(cfg["pf_w1"]) >= 0:
        put(int(cfg["pf_w1"]), 9, [salu("s_add_u32", t0, S(100), 384)])
        put(int(cfg["pf_w1"]), 11, [pf_load(VTK[0], SRD_W, t0)])
    if cfg["wo_split"]:
        steps_ = [int(x) for x in str(cfg["wo_split"]).split(".")]
        n_ = 60 // len(steps_)
        for k, st_ in enumerate(steps_):
            g.pre[st_] += [valu("v_mov_b32", V(214), OOB), raw(f"v_cmp_gt_u32 vcc, {n_}, {rtxt(V(215))}", "valu"), raw("s_nop 1"),
                           raw(f"v_cndmask_b32 v214, v214, {rtxt(VTK[1])}, vcc", "valu"),
                           salu("s_add_u32", t0, S(101), 128 * n_ * k), pf_load(V(214), SRD_WO, t0)]
        g.pre[steps_[0]] = [valu("v_and_b32", V(215), 63, TID)] + g.pre[steps_[0]]
    elif int(cfg["pf_wo"]) == 52:
        g.post[51] += [pf_load(VTK[1], SRD_WO, S(101))]
    elif int(cfg["pf_wo"]) >= 0:
        put(int(cfg["pf_wo"]), 11, [pf_load(VTK[1], SRD_WO, S(101))])
    if cfg["pf_code"]:
        for k, st_ in enumerate(code_steps):
            if st_ >= 0: g.pre[st_] += code_pf(f"L_code+{16384 * k}", sub=int(cfg["pf_sub"]))
    if cfg["fused"]:
        g.pre[80] += srd(SRD_DBG2, None, 256, s_dbgp) + [salu("s_lshl_b32", s_b16, s_b, 4),
                      I(f"buffer_load_dword {rtxt(VCHK)}, {rtxt(VFO)}, {rtxt(SRD_DBG2)}, {rtxt(s_b16)} offen sc1", "vmem", [VCHK],
                        [VFO, SRD_DBG2, s_b16], tag=("chk",))]
    if cfg["hide_n"]:
        g.rinv_fill(0); g.rinv_fill(1)
        g.n0_fill()
        g.n1_fill()
        if cfg["fused"]:
            g.post[103] += g.hu_setup()
    for h in range(2):
        g.a_fill(h)
        g.post[52 * h + 19] += g.dump_block.get(52 * h + 19, []) + g.q_pack()
        if not cfg["hide_n"]:
            g.post[52 * h + 51] += g.n_block(h)
    g.o_fill()

    body = []
    marks = {0: 1, 20: 3, 52: 5, 72: 7}
    ends = {19: 2, 51: 4, 71: 6, 103: 8}
    for s in range(NSTEP):
        body.append(label(f"L_st{s}"))
        if T and s in marks: body += stamp(marks[s])
        body += g.pre[s]
        for gp in g.gaps[s]: body += gp.flat()
        if T and s in ends: body += stamp(ends[s])
        body += g.post[s]

    fin = []
    if T:
        fin += stamp(9)
    fin += [raw("s_waitcnt vmcnt(0)")]
    if T:
        fin += [I("s_memtime s[56:57]", "salu"), I("s_memrealtime s[88:89]", "salu"), raw("s_waitcnt lgkmcnt(0)"),
                salu("s_mov_b32", S(74), S(56)), salu("s_mov_b32", S(90), S(88)), salu("s_sub_u32", S(88), S(88), S(86))]
        lst = [64, 65, 66, 67, 68, 69, 70, 71, 72, 73, 74, 88, 86, 90] + ([94] if cfg['stamp_entry'] else [])
        for k, sr in enumerate(lst): fin.append(valu("v_mov_b32", V(k), S(sr)))
        fin += [salu("s_lshl_b32", t0, S(2), 6), salu("s_add_u32", t0, t0, 300 * 1024 * 1024), valu("v_mov_b32", V(20), 0),
                raw(f"v_cmp_eq_u32 vcc, 0, {rtxt(TID)}", "valu"), raw("s_and_saveexec_b64 s[56:57], vcc")]
        for k in range(0, 16, 4): fin.append(vstore(V(k, 4), V(20), SRD_WS, t0, 4 * k))
        fin += [raw("s_waitcnt vmcnt(0)")]
        if cfg["steptime"]:
            fin += [raw("s_mov_b64 exec, -1"), salu("s_mul_i32", t0, S(2), 768), salu("s_add_u32", t0, t0, 320 * 1024 * 1024),
                    raw(f"v_cmp_gt_u32 vcc, 64, {rtxt(TID)}", "valu"), raw("s_and_saveexec_b64 s[56:57], vcc"),
                    valu("v_lshlrev_b32", V(20), 2, TID)]
            for k in range(3): fin.append(vstore(V(253 + k), V(20), SRD_WS, t0, 256 * k, width=1))
            fin += [raw("s_waitcnt vmcnt(0)")]
    fin += [label("L_main_exit"), raw("s_endpgm")]

    seq = pro + body
    state = {"checked": set(), "published": set()}
    for x in seq:
        if x.cls == "label" and str(x.info).startswith("L_sp") and str(x.info).endswith("_ok"):
            state["checked"].add(x.info[4:-3])
        elif x.cls == "barrier":
            state["published"] |= state["checked"]
        elif x.cls == "vmem" and isinstance(x.tag, tuple) and x.tag and x.tag[0] == "red":
            rho = x.tag[1]
            ok = str(rho) in state["published"] or "f" in state["published"] or ("l" in state["published"] and rho < 6) or (rho == 6 and "9" in state["published"])
            assert ok, ("partial load not ordered after its check", x.tag, state)
    res, errs, _, maxout = resolve_and_check(seq, "main")
    for e in errs[:30]: print("ERR", e, file=sys.stderr)
    assert not errs, len(errs)
    assert maxout <= 63, maxout
    final = []
    for w in seq:
        if isinstance(w, WaitTag):
            vals = [v for v in res[id(w)] if v is not None]
            vm, lgk = (min(vals) if vals else None), (w.lres if w.info[1] == "auto" else w.info[1])
            if vm is None and lgk is None:
                continue
            final.append(wait(vm, lgk))
        else:
            final.append(w)
    seq = final
    _, errs, _, _ = resolve_and_check(seq, "final")
    for e in errs[:30]: print("ERR", e, file=sys.stderr)
    assert not errs, len(errs)
    stubs = []
    for k, p in enumerate(g.rare_sites):
        stubs += [label(f"L_rs{k}"), I(f"s_call_b64 {rtxt(s_ret)}, L_rare{p}", "branch"), branch("s_branch", f"L_rr{k}")]
    rare = g.rare_code(0) + g.rare_code(1)
    return seq + fin + stubs + rare


SRD_DBG2 = SRD_DBG

MACROS = """.macro MF d,a,b,c
v_mfma_f32_16x16x32_bf16 \\d,\\a,\\b,\\c
.endm
.macro TR d,a,o
ds_read_b64_tr_b16 \\d,\\a offset:\\o
.endm
.macro RD d,a,o
ds_read_b128 \\d,\\a offset:\\o
.endm
"""


def compact(line):
    import re
    t = line.strip()
    if t.startswith("v_mfma_f32_16x16x32_bf16 "):
        return "MF " + t.split(" ", 1)[1].replace(", ", ",")
    m = re.match(r"ds_read_b64_tr_b16 (\S+), (\S+) offset:(\d+)$", t)
    if m: return f"TR {m.group(1)},{m.group(2)},{m.group(3)}"
    m = re.match(r"ds_read_b128 (\S+), (\S+) offset:(\d+)$", t)
    if m: return f"RD {m.group(1)},{m.group(2)},{m.group(3)}"
    return t.replace(", ", ",")


HEADER = """; Fused multi-head attention block for MI355X (gfx950); assembly produced by my own generator script.
"""


def text_of(cfg, m, pad):
    kname = KNAME if cfg["single"] else "mha_main_kernel"
    lds = int(cfg["R"]) * SLOT
    s = HEADER
    if cfg["single"]:
        s += f"; @launch grid=(256,1,1) block=(256,1,1) lds={lds}\n"
    else:
        s += f"; @launch kernel=mha_main_kernel grid=(256,1,1) block=(256,1,1) lds={lds}\n"
        if not cfg["fused"]:
            s += "; @launch kernel=mha_reduce_kernel grid=(960,1,1) block=(256,1,1) lds=0\n"
    s += '.amdgcn_target "amdgcn-amd-amdhsa--gfx950"\n'
    if cfg["macros"]: s += MACROS
    s += ".text\n"
    ks = [(kname, m)]
    if not cfg["fused"]: ks.append(("mha_reduce_kernel", G.reducer_kernel(cfg)))
    for nm, code in ks:
        lines = []
        for i in code:
            for ln in i.txt.split("\n"):
                lines.append(compact(ln) if cfg["macros"] and i.cls != "label" else ln)
        s += f".globl {nm}\n.p2align 8\n.type {nm},@function\n" + "\n".join(lines).replace("mha_main_kernel:", kname + ":") + "\n"
    s += f".fill {pad}, 4, 0xBF800000\nL_text_end:\n"
    s += '.section .rodata,"a"\n.p2align 6\n' + kd(kname, 512, 256)
    if not cfg["fused"]: s += ".p2align 6\n" + kd("mha_reduce_kernel", 88, 88)
    return s


def assemble_syms(text):
    open("_g3.s", "w").write(text)
    r = subprocess.run(["clang", "-x", "assembler", "-target", "amdgcn-amd-amdhsa", "-mcpu=gfx950", "-c", "_g3.s", "-o", "_g3.o"],
                       capture_output=True, text=True)
    assert r.returncode == 0, r.stderr[:2000]
    sy = subprocess.run(["llvm-readelf", "-s", "_g3.o"], capture_output=True, text=True).stdout
    return {ln.split()[-1]: int(ln.split()[1], 16) for ln in sy.splitlines() if " L_" in ln and len(ln.split()) >= 8}


def build(cfg, path):
    import importlib
    cfg = dict(cfg)
    cfg["_code_steps"] = [-1] + [max(0, 21 * k - 10) for k in range(1, 8)]
    for it in range(2):
        G.code_pf.n = 0
        m = main_kernel(cfg)
        addr = assemble_syms(text_of(cfg, m, 64))
        base = addr["L_code"]
        end = addr["L_main_exit"] - base
        npiece = (end + 16383) // 16384
        steps = []
        for k in range(npiece):
            first = min([s for s in range(NSTEP) if addr[f"L_st{s}"] - base + 1024 > 16384 * k] or [NSTEP - 1])
            s_ = first - int(cfg["code_lead"])
            steps.append(-1 if s_ < 0 else s_)
        cfg["_code_steps"] = steps
    G.code_pf.n = 0
    m = main_kernel(cfg)
    addr = assemble_syms(text_of(cfg, m, 64))
    span = max(16384 * len(cfg["_code_steps"]), 131072)
    need = addr["L_code"] + span + 256 - addr["L_text_end"]
    pad = 64 + max(0, (need + 3) // 4)
    s = text_of(cfg, m, pad)
    open(path, "w").write(s)
    n_main = sum(1 for i in m if i.cls != "label")
    print(f"wrote {path}: {len(s)} bytes, {n_main} instrs, code {addr['L_main_exit'] - addr['L_code']} B, pad {pad}, code pf steps {cfg['_code_steps']}", file=sys.stderr)


if __name__ == "__main__":
    cfg = dict(CFG)
    path = "out3.s"
    for a in sys.argv[1:]:
        if "=" in a:
            k, v = a.split("=", 1)
            assert k in cfg, k
            cfg[k] = {"True": True, "False": False}.get(v, v)
        else:
            path = a
    build(cfg, path)
```

```python
SLOT = 12288

def a_item(j):
    if j == 0: return ("K", 0)
    if j == 1: return ("K", 1)
    if j == 31: return ("V", 15)
    if j % 2 == 0: return ("V", (j - 2) // 2)
    return ("K", (j + 1) // 2)

QS = [0, 52]; AS = [20, 72]; OS = 104; NSTEP = 144

class Item:
    def __init__(self, name, kind, h, n, need, free, units=1, earliest=-10**9):
        self.name, self.kind, self.h, self.n = name, kind, h, n
        self.need, self.free, self.units, self.earliest = need, free, units, earliest
        self.slot = None; self.issue = None
    def __repr__(self): return f"{self.name}@{self.slot}(i{self.issue},n{self.need})"

def build(R=13, P=4, DW=3, DX=3, NW0=5, NX0=2, maxper=2, P0=None, xres=23, pro_max=99, early_max=2, early_steps=0, park0=None, park1=None, kv_end_max=2, DW0=None, NW00=None, RP=0, npair=2, dump_max=3, npair0=None, DX0=None, NX00=None, rp_load=None, n_o=40, DO=None):
    X = {(h, u): Item(f"X{h}.{u}", "X", h, u, QS[h] + 2 * u - 1, QS[h] + 2 * u, 2) for h in range(2) for u in range(10)}
    W = {(h, t): Item(f"W{h}.{t}", "W", h, t, QS[h] + t - 1, QS[h] + t + 1) for h in range(2) for t in range(20)}
    KV = {}
    for h in range(2):
        for j in range(32):
            k, n = a_item(j)
            KV[(h, j)] = Item(f"{k}{h}.{n}", k, h, n, AS[h] + j - 1, AS[h] + j + 1)
    O = {j: Item(f"O{j}", "O", 0, j, OS + j - 1, OS + j + 1) for j in range(n_o)}
    xslots = set(range(2 * npair))
    for h in range(2):
        p = P if (h == 1 or P0 is None) else P0
        prev_last = KV[(0, 31)] if h == 1 else None
        for u in range(10):
            it = X[(h, u)]; it.prio = it.need
            dx = DX0 if (h == 0 and DX0) else DX
            nx0 = NX00 if (h == 0 and NX00) else NX0
            it.earliest = it.need - dx if u >= nx0 else -10**9
            it.allowed = None
        for t in range(20):
            it = W[(h, t)]; it.prio = it.need
            dw = DW0 if (h == 0 and DW0) else DW
            nw0 = NW00 if (h == 0 and NW00) else NW0
            it.earliest = it.need - dw if t >= nw0 else -10**9
        for j in range(32):
            it = KV[(h, j)]
            it.prio = it.need
            it.parked = j < p
            it.reg = p <= j < p + RP
            if it.reg and rp_load: it.dump_earliest = QS[h] + rp_load(h, j - p) + 3
            if j < p:
                it.prio = QS[h] + min(NW0, 2 * NX0) - 1.5
                pk = park0 if h == 0 else park1
                if pk: it.earliest = QS[h] + pk[j]; it.prio = it.earliest
    for j in range(n_o):
        O[j].prio = O[j].need
        if DO: O[j].earliest = O[j].need - DO
    queues = [[X[(h, u)] for h in range(2) for u in range(10)], [W[(h, t)] for h in range(2) for t in range(20)],
              [KV[(h, j)] for h in range(2) for j in range(32)], [O[j] for j in range(n_o)]]
    def gated(it):
        if it.kind in "XW":
            return it.h == 1 and KV[(0, 31)].issue is None
        if it.kind in "KV":
            if it.h == 1 and KV[(0, 31)].issue is None: return True
            if it.parked:
                need_first = [X[(it.h, u)] for u in range(NX0)] + [W[(it.h, t)] for t in range(NW0)]
                return any(x.issue is None for x in need_first)
            return X[(it.h, 9)].issue is None or W[(it.h, 19)].issue is None
        return KV[(1, 31)].issue is None
    owner = [None] * R
    seq = []
    def try_alloc(it, b):
        fr = [s for s in range(R) if owner[s] is None]
        if it.kind == "X":
            np_ = npair0 if (it.h == 0 and npair0) else npair
            c = [s for s in range(0, 2 * np_, 2) if s in fr and s + 1 in fr]
            return c[0] if c else None
        inq = any(QS[h] - 14 <= b < QS[h] + 16 for h in range(2))
        if it.kind == "W" or (it.kind in "KV" and (it.parked or (it.h == 0 and AS[0] + xres - 13 <= it.need - 12 and it.n is not None and KVidx[it.name] >= xres))):
            xs_ = set(range(2 * (npair0 if (it.h == 0 and npair0) else npair)))
            fr = [s for s in fr if s not in (xs_ if (it.kind == 'W' or it.parked) else {0, 1, 2, 3})]
        return fr[0] if fr else None
    KVidx = {KV[k].name: k[1] for k in KV}
    for b in range(-1, OS + n_o):
        for s in range(R):
            it = owner[s]
            if it is not None and it.free <= b: owner[s] = None
        units = 0
        xtra = 0
        dumps = 0
        while True:
            cands = []
            for q in queues:
                if not q: continue
                it = q[0]
                extra = 1 if (it.kind in "KV" and it.parked and it.earliest > -10**8) else 0
                lim = (early_max if b < early_steps else maxper) + extra + xtra
                if getattr(it, "reg", False):
                    if gated(it) or dumps >= (12 if b in (19, 71) else dump_max) or b < getattr(it, "dump_earliest", -99): continue
                elif gated(it) or (b >= 0 and (it.earliest > b or units + it.units > lim)): continue
                if b < 0 and units + it.units > pro_max: continue
                s = try_alloc(it, b)
                if s is None: continue
                cands.append((it.prio, len(cands), q, it, s))
            if not cands: break
            _, _, q, it, s = min(cands, key=lambda c: (c[0], c[1]))
            q.pop(0)
            it.slot = s; it.issue = b
            for k in range(it.units): owner[s + k] = it
            if getattr(it, "reg", False): dumps += 1
            else: units += it.units
            if b >= 0 and it.kind in "KV" and it.parked and it.earliest > -10**8: xtra += 1
            seq.append(it)
    assert not any(queues), [q[0] for q in queues if q]
    for it in seq:
        assert it.issue < it.need or it.issue == -1, it
        if getattr(it, "reg", False):
            assert it.issue <= AS[it.h], it
    return seq, X, W, KV, O

def simulate(seq, cq=625, ca=640, co=635, lf=0.55, lh=0.85, svc=0.43, clk=1850., cold_q0=1.0, extra=None):
    extra = extra or {19: 1300, 51: 1900, 71: 1300, 103: 1900, 21: 500, 73: 500, 49: 400, 101: 400}
    byb = {}
    for it in seq: byb.setdefault(it.issue, []).append(it)
    t = 2.3 - 0.0; hbm = 0.0; vis = 0.0
    land = {}
    def issue(it, now):
        nonlocal hbm, vis
        if it.kind in "KV":
            hbm = max(hbm + svc, now + lh)
            f = hbm
        else:
            f = now + (cold_q0 * 2.0 if (it.h == 0 and it.kind in "XW") and cold_q0 > 1 else lf) + 0.05 * it.units
        vis = max(vis, f)
        land[it.name] = vis
    now0 = 0.6
    for it in byb.get(-1, []):
        issue(it, now0); now0 += 0.035 * it.units
    needs = {}
    for it in seq: needs.setdefault(it.need, []).append(it)
    t = max([land[i.name] for i in needs.get(-1, [])] + [now0])
    marks = {}
    stall_tot = 0
    for s in range(NSTEP):
        c = (cq if (s % 52) < 20 and s < 104 else (ca if s < 104 else co)) / clk
        tb = t + c * 2 / 3
        need = max([land[i.name] for i in needs.get(s, [])] + [0])
        st = max(0, need - tb); stall_tot += st
        tb += st
        for k, it in enumerate(byb.get(s, [])):
            issue(it, tb + 0.05 + 0.15 * k)
        t = tb + c / 3 + extra.get(s, 0) / clk
        marks[s] = (t, st)
    return t, stall_tot, marks

if __name__ == "__main__":
    for R, P, DW, DX, NW0, NX0 in ((13, 0, 7, 3, 9, 2), (13, 2, 5, 3, 7, 2), (13, 4, 3, 3, 5, 2), (13, 3, 4, 3, 6, 2), (13, 5, 2, 3, 4, 2)):
        try:
            seq, X, W, KV, O = build(R, P, DW, DX, NW0, NX0)
        except AssertionError as e:
            print(R, P, DW, DX, "infeasible", e); continue
        t, st, marks = simulate(seq)
        ph = lambda a, b: sum(marks[s][1] for s in range(a, b))
        dmin = min(it.need - it.issue for it in seq if it.issue >= 0)
        print(f"R={R} P={P} DW={DW} DX={DX}: total {t:.1f} us stalls {st:.2f}  Q0 {ph(0,19):.2f} A0 {ph(19,51):.2f} Q1 {ph(51,71):.2f} A1 {ph(71,103):.2f} O {ph(103,144):.2f} minD {dmin}")
    seq, X, W, KV, O = build(13, 4, 3, 3, 5, 2)
    print(" ".join(repr(i) for i in seq))
```

```python
import sys
import subprocess
import numpy as np
from asmlib import *
import gen as G
from gen import (ACC, SB, SBr, PB, PBr, TT, NEGM, NEGMr, L, LT, MT, OACC, CT, CTr, QF, QFr, AK, AV, AW, AO, DKV, DA, DB, DO,
                 AX, PSV, PT, TID, JUNK, VPC, VL128, VTK, VFO, VCHK, RD, SEL, FLG, VPOLL, VFV, VOUT, VZ, PSL, PART_OFF, FLAG_OFF,
                 SRD_DBG, SRD_OUT, s_outp, s_dbgp, s_b16, s_kw, s_pb, s_ro, s_rl, OA, OAr, O0P, O0Pr, FB, FBh,
                 SRD_A, SRD_K, SRD_V, SRD_WO, SRD_WS, SRD_B, s_w3072, s_pst, s_thr, s_c2, s_h0, s_b, s_pj, s_w, s_t, s_ret,
                 THR_BITS, C_BITS, SLOT, build_lane_consts, autonop, srd, pf_load, code_pf, kd, KNAME, Gen, a_item)
import sched

CFG = dict(
    nt_kv=True, timing=False, steptime=False, pst_flags=" sc1", red_flags=" sc1",
    dspair_v=True, dspair_k=False, dspair_w=False, no_st=False, map_nb=8,
    fused=True, single=False, kv_same=False,
    R=13, P=3, P0=None, DW=4, DX=3, NW0=6, NX0=2, xres=23,
    kv_rot=False, rot_shift=0, rot_mul=1,
    tlb0=-1, tlb1=-1, tlb_stride=4096,
    npair0=0, DX0=0, NX00=0, nt_w0=False, nt_w1=False, nt_x0=False, nt_x1=False,
    RP=0, npair=2, rp_start0=3, rp_start1=0, rp_space=1.2,
    DW0=0, NW00=0, tlb='', park0='', park1='', d_flag=2, d_poll=1, d_chk=2, d_mfma=3, hu_in=6, hu_per=3, g_poll=4, g_chk=1, g_hide_tail=True, p4=False, o0_start=99, o0_per=4, o0_poll=96, DO=7, d_bl=7, d_oflag=4, g_oflag=3, hide_setup=True, hu_pre=True, spin_sleep=2, stamp_entry=False, fast_pro=True, out_flags='', pf_sub=8, pf_entry=False, hide_n=True, wo_split='53.57.61.65', w1_split='', pro_max=7, early_max=4, early_steps=3,
    pf_code=True, pf_w1=8, pf_wo=52, pf_start="xw", pf_start_step=0, code_lead=14, pf_code_all=False, macros=True,
)

SRD_X, SRD_W = SRD_A, SRD_B
G.SRD_DBG = S(4, 4)
SRD_DBG = G.SRD_DBG
s_kvb, s_wb, s_xb, s_ob = S(33), S(34), S(37), S(38)
s_do = [S(35), S(36)]
s_w6144 = S(41)
NSTEP = 144


VCHK = V(143)
AWR = V(246)
s_rp = S(39)
VOX = V(246)
PSL16 = V(243)
RIN2 = [V(112, 2), V(114, 2), V(116, 2)]
s_bl2 = [S(62), S(63)]
s_oout, s_pin = S(61), S(75)
OX_OFF = 72 << 20
PX_OFF = 112 << 20
s_gq = [S(76), S(77), S(78), S(79)]
s_oq = [None, S(80), S(81), S(82)]
s_oown, s_px, s_bl, s_mgrp, s_mfin = S(83), S(84), S(85), S(91 + 4), S(91 + 3)
s_n0, s_kvb1 = S(40), S(42)
s_rl2 = [S(63), S(62)]
VHL = V(132)


def o_cs(j, reorder):
    if reorder and j < 8:
        return [(0, 0), (0, 1), (1, 0), (1, 1), (0, 2), (0, 3), (1, 2), (1, 3)][j]
    return j // 4, j % 4


def GACC(t, qb): return V((t * 3 + qb) * 4, 4)


def XF(u, half, qb): return V(144 + ((u % 2) * 2 + half) * 12 + 4 * qb, 4)


class Gen3(Gen):
    def __init__(self, cfg):
        self.cfg = cfg
        self.rare_sites = []
        i = lambda k: int(cfg[k])
        self.R = i("R")
        self.seq, self.X, self.W, self.KV, self.O = sched.build(
            R=self.R, P=i("P"), DW=i("DW"), DX=i("DX"), NW0=i("NW0"), NX0=i("NX0"),
            P0=None if cfg["P0"] in (None, "None") else int(cfg["P0"]), xres=i("xres"),
            pro_max=i("pro_max"), early_max=i("early_max"), early_steps=i("early_steps"),
            park0=[int(x) for x in str(cfg["park0"]).split(".")] if cfg["park0"] else None,
            park1=[int(x) for x in str(cfg["park1"]).split(".")] if cfg["park1"] else None,
            DW0=int(cfg["DW0"]) or None, NW00=int(cfg["NW00"]) or None, RP=i("RP"), npair=i("npair"),
            n_o=48 if cfg["p4"] else 40, DO=int(cfg["DO"]) if cfg["p4"] else None, rp_load=self.rp_load_step, npair0=int(cfg["npair0"]) or None, DX0=int(cfg["DX0"]) or None, NX00=int(cfg["NX00"]) or None)
        self.item = []
        for h in range(2):
            self.item += [self.W[(h, t)] for t in range(20)] + [self.KV[(h, j)] for j in range(32)]
        self.p4 = bool(cfg["p4"])
        self.NO = 48 if self.p4 else 40
        self.NS = 104 + self.NO
        self.item += [self.O[j] for j in range(self.NO)]
        self.gaps = [None] * self.NS
        self.pre = {s: [] for s in range(self.NS)}
        self.post = {s: [] for s in range(self.NS)}
        self.regs = {"K": AK, "V": AV, "W": AW, "O": AO}
        if self.p4:
            self.regs = {"K": AK, "V": AV, "W": AW, "Oa": AO[:2], "Ob": AO[2:]}
        self.plan = {}
        for kind in self.regs:
            its = [it for it in self.item if self.akind(it) == kind]
            k = 0
            while k < len(its):
                lo = hi = its[k].slot
                e = k
                while e + 1 < len(its):
                    nl, nh = min(lo, its[e + 1].slot), max(hi, its[e + 1].slot)
                    if nh - nl > 4: break
                    lo, hi = nl, nh
                    e += 1
                for q in range(k, e + 1): self.plan[its[q].name] = lo * SLOT
                k = e + 1
        self.base = {kind: [0] * len(self.regs[kind]) for kind in self.regs}
        self.nunit = 0
        self.fixes = {}
        self.dump_block = {}
        self.rp1_first = {}

    def akind(self, it):
        if it.kind == "O" and self.p4: return "Oa" if it.n % 2 == 0 else "Ob"
        return it.kind

    def rp_load_step(self, h, k):
        s = int(float(self.cfg["rp_start0" if h == 0 else "rp_start1"]) + k * float(self.cfg["rp_space"]))
        if h == 1 and self.cfg["hide_n"]:
            s = max(s, int(2.45 * (k // 2 + 1)) + 1)
        return s

    def place_fixes(self):
        for s, lst in self.fixes.items():
            gaps = self.gaps[s]
            for x, lo, hi in lst:
                c = [g for g in range(lo, hi + 1) if gaps[g].free() == 1 and not gaps[g].vm and g != 23]
                if not c: c = [g for g in range(lo, hi + 1) if gaps[g].free() >= 1 and not gaps[g].vm and g != 23]
                if not c: c = [hi]
                gaps[c[0]].va.append(x)

    def frag_reads3(self, it, f, buf):
        win = self.plan[it.name]
        off = it.slot * SLOT - win
        kind = it.kind
        if kind == "K":
            kt, kb = f // 6, f % 6
            ri = kb % 2
            return [(ds_read("ds_read_b128", FB(buf, f % 2), AK[ri], off + kt * 6144 + (kb // 2) * 128), ri, win)]
        if kind == "O" and self.p4:
            ri = f % 2
            o, d2 = off + 64 * (f // 2), 6144
        else:
            ri, j = f % 4, f // 4
            o, d2 = {"V": (off + 128 * j, 6144), "W": (off + 128 * j, 1536), "O": (off + 4096 * j, 2048)}[kind]
        r = self.regs[self.akind(it)][ri]
        return [(ds_read("ds_read_b64_tr_b16", FBh(buf, f % 2, 0), r, o), ri, win),
                (ds_read("ds_read_b64_tr_b16", FBh(buf, f % 2, 1), r, o + d2), ri, win)]

    def fix(self, kind, ri, win):
        B = self.base[kind]
        if B[ri] == win: return None
        d = win - B[ri]
        B[ri] = win
        r = self.regs[kind][ri]
        return valu("v_add_u32", r, d, r) if d > 0 else valu("v_subrev_u32", r, -d, r)

    def place_reads3(self, gaps, g0, it, grp, cur=None, buf=None):
        rl = []
        for f in (2 * grp, 2 * grp + 1):
            rl += self.frag_reads3(it, f, grp % 3 if buf is None else buf)
        fx = [x for x in (self.fix(self.akind(it), ri, win) for _, ri, win in rl) if x is not None]
        if fx and it.kind == "O" and self.p4:
            self.pending_fix += [(x, 2, g0 - 1) for x in fx]
        elif fx:
            same = (cur is not None and cur.kind == it.kind)
            if it.kind == "K":
                lo = 20 if same else 2
            elif g0 == 24:
                lo = 16 if same else 2
            else:
                lo = 22 if same else 2
            self.pending_fix += [(x, lo, g0 - 1) for x in fx]
        pair = self.cfg["dspair_k"] if it.kind == "K" else (self.cfg["dspair_v"] if it.kind == "V" else self.cfg["dspair_w"])
        for k, (ins, ri, win) in enumerate(rl):
            gaps[g0 + (k // 2 if pair else k)].ds.append(ins)
        return len(rl)

    def first_reads3(self, it):
        out = []
        for grp in range(2):
            for f in (2 * grp, 2 * grp + 1):
                for ins, ri, win in self.frag_reads3(it, f, grp % 3):
                    x = self.fix(self.akind(it), ri, win)
                    if x is not None: out.append(x)
                    out.append(ins)
        for ri in range(len(self.regs[self.akind(it)])):
            x = self.fix(self.akind(it), ri, self.plan[it.name])
            if x is not None: out.append(x)
        return out

    def x_reads3(self, it):
        u = it.n
        return [ds_read("ds_read_b128", XF(u, half, qb), AX[half], it.slot * SLOT + 2048 * qb) for half in range(2) for qb in range(3)]

    def units(self, it):
        tag = ("item", it.name)
        out = []
        for k in range(it.units):
            so = s_do[self.nunit % 2]
            self.nunit += 1
            nt = False
            if it.kind == "X":
                m0 = salu("s_add_u32", "m0", s_w6144, it.slot * SLOT + 3072 * k)
                off = salu("s_add_u32", so, s_xb, 128 * it.n + 30720 * k)
                vo, sr = DA, SRD_X
                nt = bool(self.cfg["nt_x0"]) if it.h == 0 else bool(self.cfg["nt_x1"])
            else:
                m0 = salu("s_add_u32", "m0", s_w3072, it.slot * SLOT)
                if it.kind in "KV":
                    off = self.kv_off(so, it)
                    vo, sr = DKV, (SRD_K if it.kind == "K" else SRD_V)
                    nt = self.cfg["nt_kv"]
                elif it.kind == "W":
                    off = salu("s_add_u32", so, s_wb, it.h * 384 + it.n * 393216)
                    vo, sr = DB, SRD_W
                    nt = bool(self.cfg["nt_w0"]) if it.h == 0 else bool(self.cfg["nt_w1"])
                elif self.p4:
                    q, hh, kb = self.g_kstep(it.n)
                    off = salu("s_add_u32", so, s_gq[q], (hh * 192 + 32 * kb) * 1280)
                    vo, sr = DO, SRD_WO
                else:
                    c, s = o_cs(it.n, self.cfg["hide_n"])
                    off = salu("s_add_u32", so, s_ob, s * 122880 + c * 128)
                    vo, sr = DO, SRD_WO
            out.append((m0, off, [dma(vo[i], sr, so, 1024 * i, nt, tag=tag) for i in range(3)]))
        return out

    def kv_off(self, so, it):
        if self.cfg["kv_rot"] and not self.cfg["kv_same"]:
            return [salu("s_xor_b32", so, s_n0, it.n), salu("s_mul_i32", so, so, 12288),
                    salu("s_add_u32", so, so, s_kvb if it.h == 0 else s_kvb1)]
        imm = it.h * 196608 + (0 if self.cfg["kv_same"] else it.n * 12288)
        return salu("s_add_u32", so, s_kvb, imm)

    def place_dma(self):
        for b in range(self.NS):
            un = []
            for it in self.seq:
                if it.issue == b and not getattr(it, "reg", False): un += self.units(it)
            assert len(un) <= 4
            if self.p4 and b >= 104:
                pos = [[(0, 22), (1, 4), (1, 10)]]
                assert len(un) <= 1
            elif self.p4 and b == 103:
                pos = [[(0, 28), (1, 4), (1, 10)]]
                assert len(un) <= 1
            elif len(un) == 1:
                pos = [[(0, 28), (1, 4), (1, 16)]]
            elif len(un) == 2:
                pos = [[(0, 28), (0, 34), (1, 4)], [(1, 10), (1, 16), (1, 22)]]
            elif len(un) > 2:
                pos = [[(0, 28), (0, 29), (0, 34)], [(1, 2), (1, 4), (1, 5)], [(1, 8), (1, 10), (1, 11)], [(1, 14), (1, 16), (1, 17)]][:len(un)]
            else:
                pos = []
            for (m0, off, ins), ps in zip(un, pos):
                for i, (ds_, gi) in enumerate(ps):
                    g = self.gaps[b + ds_]
                    if i == 0:
                        if isinstance(off, list):
                            (g[gi - 3] if gi >= 3 else self.gaps[b + ds_ - 1][36 + gi - 3]).sc.append(off[0])
                            g[gi - 2].sc += [off[1], m0]; g[gi - 1].sc.append(off[2])
                        else:
                            g[gi - 2].sc.append(m0)
                            g[gi - 1].sc.append(off)
                    if len(un) > 2 and gi % 6 < 4 and g[gi].ds:
                        pass
                    g[gi].vm.append(ins[i])

    def place_reg_tiles(self):
        self.dbase = 0
        for h in range(2):
            its = [self.KV[(h, j)] for j in range(32) if getattr(self.KV[(h, j)], "reg", False)]
            start = float(self.cfg["rp_start0" if h == 0 else "rp_start1"])
            last_s = -1
            for k, it in enumerate(its):
                s = 52 * h + self.rp_load_step(h, k)
                while len([gi for gi in (5, 11, 17, 29, 35) if not self.gaps[s][gi].vm]) < 3 or s <= last_s: s += 1
                if h == 1: self.rp1_first[k] = s * 36 + min(gi for gi in (5, 11, 17, 29, 35) if not self.gaps[s][gi].vm)
                last_s = s
                assert s + 2 <= it.issue, (it, s)
                g = self.gaps[s]
                off = self.kv_off(s_rp, it)
                if isinstance(off, list):
                    for q, x in enumerate(off): g[1 + q].sc.append(x)
                else:
                    g[3].sc.append(off)
                free = [gi for gi in (5, 11, 17, 29, 35) if not g[gi].vm][:3]
                assert len(free) == 3, (s, free)
                for i, gi in enumerate(free):
                    g[gi].vm.append(vload(A(12 * k + 4 * i, 4), DKV[i], SRD_K if it.kind == "K" else SRD_V, s_rp, 1024 * i,
                                          " nt" if self.cfg["nt_kv"] else "", tag=("reg", it.name)))
                it.rk = k
            for b in sorted({it.issue for it in its}):
                grp = [it for it in its if it.issue == b]
                wr = []
                for it in grp:
                    off = it.slot * SLOT
                    pre = []
                    if not (0 <= off - self.dbase and off - self.dbase + 2048 + 1024 <= 65536):
                        nb = min(off, (self.R - 5) * SLOT)
                        d = nb - self.dbase
                        self.dbase = nb
                        pre = [valu("v_add_u32", AWR, d, AWR) if d > 0 else valu("v_subrev_u32", AWR, -d, AWR)]
                    wr.append((it, pre, [ds_write(AWR, A(12 * it.rk + 4 * i, 4), off - self.dbase + 1024 * i, tag=("dump", it.name)) for i in range(3)]))
                if b % 52 == 19:
                    blk = []
                    for it, pre, w in wr: blk += [WaitTag([("reg", it.name)])] + pre + w
                    self.dump_block[b] = blk
                    continue
                cand = [(b, gi) for gi in range(24, 36)] + [(b + 1, gi) for gi in range(0, 22)]
                ci = 0
                for it, pre, w in wr:
                    first = True
                    for x in w:
                        while True:
                            st_, gi = cand[ci]
                            gp = self.gaps[st_][gi]
                            ok = not gp.vm and gp.free() >= 1 and len(gp.ds) < 2
                            if first and pre:
                                pst, pg = cand[ci - 1] if ci > 0 else (None, None)
                                ok = ok and ci > 0
                            if ok: break
                            ci += 1
                        if first:
                            gp.sc.append(WaitTag([("reg", it.name)]))
                            if pre:
                                pst, pg = cand[ci - 1]
                                self.gaps[pst][pg].va += pre
                            first = False
                        gp.ds.append(x)
                        ci += 1

    def frame3(self, s, mf):
        it = self.item[s]
        nx = self.item[s + 1] if s + 1 < self.NS else None
        gaps = [Gap(mf(i, FB((i // 6) % 3, (i // 3) % 2))) for i in range(36)]
        nds = [0] * 6
        self.pending_fix = []
        for Gi in range(6):
            if Gi < 4:
                nds[Gi] = self.place_reads3(gaps, 6 * Gi, it, Gi + 2)
            elif nx is not None:
                nds[Gi] = self.place_reads3(gaps, 6 * Gi, nx, Gi - 4, cur=it)
        xs = [x for x in self.X.values() if x.need == s]
        if xs:
            rd = self.x_reads3(xs[0])
            for k, gi in enumerate((24, 25, 26, 27, 30, 31)):
                gaps[gi].ds.append(rd[k])
            nds[4] += 4
            nds[5] += 2
        need = [("item", x.name) for x in self.seq if x.need == s]
        for Gi in range(6):
            gi = 6 * Gi + 5
            if Gi == 3 and nx is not None:
                lt = [("dump", x.name) for x in self.seq if x.need == s]
                bar = barrier()
                bar.info = lt
                gaps[gi].sc += [WaitTag(need, lgkm="auto", ltags=lt), bar]
            elif Gi == 5:
                if nx is not None: gaps[gi].sc.append(WaitTag([], lgkm="auto"))
            else:
                gaps[gi].sc.append(WaitTag([], lgkm="auto"))
        self.fixes[s] = self.pending_fix
        if self.cfg["steptime"]:
            gaps[24].post.append(I("s_memtime s[92:93]", "salu"))
            gaps[33].post += [raw("s_waitcnt lgkmcnt(0)"), raw(f"v_writelane_b32 v{253 + s // 64}, s92, {s % 64}", "valu")]
        self.gaps[s] = gaps

    @staticmethod
    def g_kstep(j):
        if j < 12: return 0, j // 6, j % 6
        r = j - 12
        return 1 + r // 12, (r % 12) // 6, r % 6

    def g_bidx(self, j):
        q, hh, kb = self.g_kstep(j)
        return None if q == 0 else j - 12

    def g_breg(self, j, qb):
        q, hh, kb = self.g_kstep(j)
        if q == 0: return O0P(kb, qb) if hh == 0 else QF(kb, qb)
        return A(12 * (self.g_bidx(j) % 12) + 4 * qb, 4)

    def frame_g(self, j):
        s = 104 + j
        it = self.item[s]
        nx = self.item[s + 1] if s + 1 < self.NS else None
        buf = lambda jj, G: (5 * jj + G) % 3

        def mf(i):
            t, qb = i // 3, i % 3
            return mfma(GACC(t, qb), FB(buf(j, i // 6), t % 2), self.g_breg(j, qb), 0 if j == 0 else GACC(t, qb))
        gaps = [Gap(mf(i)) for i in range(30)]
        self.pending_fix = []
        for Gi in range(5):
            if Gi < 3:
                self.place_reads3(gaps, 6 * Gi, it, Gi + 2, buf=buf(j, Gi + 2))
            elif nx is not None:
                self.place_reads3(gaps, 6 * Gi, nx, Gi - 3, cur=it, buf=buf(j + 1, Gi - 3))
        need = [("item", x.name) for x in self.seq if x.need == s]
        if j + 1 < 48 and self.g_bidx(j + 1) is not None: need.append(("bl", j + 1))
        for Gi in range(5):
            gi = 6 * Gi + 5
            if Gi == 2 and nx is not None:
                gaps[gi].sc += [WaitTag(need, lgkm="auto"), barrier()]
            elif Gi == 4:
                if nx is not None: gaps[gi].sc.append(WaitTag([], lgkm="auto"))
            else:
                gaps[gi].sc.append(WaitTag([], lgkm="auto"))
        self.fixes[s] = self.pending_fix
        if self.cfg["steptime"]:
            gaps[18].post.append(I("s_memtime s[92:93]", "salu"))
            gaps[27].post += [raw("s_waitcnt lgkmcnt(0)"), raw(f"v_writelane_b32 v{253 + s // 64}, s92, {s % 64}", "valu")]
        self.gaps[s] = gaps

    def build_frames(self):
        for h in range(2):
            for t in range(20):
                def mf(i, fr, t=t):
                    T, qb = i // 3, i % 3
                    return mfma(ACC(T, qb), fr, XF(t // 2, t % 2, qb), 0 if t == 0 else ACC(T, qb))
                self.frame3(52 * h + t, mf)
            for j in range(32):
                kind, n = a_item(j)
                p = n % 2
                if kind == "K":
                    def mf(i, fr, p=p, n=n):
                        f, qb = i // 3, i % 3
                        kt, kb = f // 6, f % 6
                        c = (0 if n < 2 else NEGM(qb)) if kb == 0 else SB(p, kt, qb)
                        return mfma(SB(p, kt, qb), fr, QF(kb, qb), c)
                else:
                    def mf(i, fr, p=p, n=n):
                        T, qb = i // 3, i % 3
                        return mfma(OA(T, qb), fr, PB(p, qb), 0 if n == 0 else OA(T, qb))
                self.frame3(52 * h + 20 + j, mf)
        if self.p4:
            for j in range(48): self.frame_g(j)
            return
        for j in range(40):
            c, s = o_cs(j, self.cfg["hide_n"])

            def mf(i, fr, s=s, p=c % 2):
                f, qb = i // 3, i % 3
                jj, nt = f // 4, f % 4
                ks = 3 * s + jj
                h, kb = ks // 6, ks % 6
                b = O0P(kb, qb) if h == 0 else QF(kb, qb)
                return mfma(OACC(p, nt, qb), fr, b, 0 if ks == 0 else OACC(p, nt, qb))
            self.frame3(104 + j, mf)

    def a_fill(self, h):
        s0 = 52 * h + 20
        gaps = [g for j in range(32) for g in self.gaps[s0 + j]]
        Gx = lambda j, i=0: 36 * j + i
        mops, fin = self.max_ops(0)
        for o in mops: o.earliest = Gx(1, 0)
        sm0, _ = self.softmax_ops(0, sub_deps=fin, earliest_kt=(Gx(1, 0), Gx(1, 2)))
        pend = list_schedule(gaps, mops + sm0, Gx(1, 0), Gx(2, 0))
        self.post[s0 + 1] += autonop(self.emit_tail(pend)) + [valu("v_mov_b32", L(qb), LT(qb)) for qb in range(3)]
        for n in range(1, 16):
            p = n % 2
            j0 = 2 * n
            j1 = j0 + 2 if n <= 14 else j0 + 1
            sub = [None, None, None] if n == 1 else None
            sm, ltl = self.softmax_ops(p, sub_deps=sub, earliest_kt=(Gx(j0, 0), Gx(j0, 3)), lacc=(n > 1))
            pend = list_schedule(gaps, sm + self.check_ops(ltl, p), Gx(j0, 0), Gx(j1, 0))
            self.post[s0 + j1 - 1] += autonop(self.emit_tail(pend)) + self.check_branch(p)
            if n == 15: self.post[s0 + j1 - 1] += self.l_acc()

    RINV = [V(192), V(193), V(194)]

    def rinv_fill(self, h):
        gaps = self.gaps[52 * h + 51]
        y = [MT(3 + qb) for qb in range(3)]
        dst = self.RINV if h == 0 else [MT(8), MT(9), MT(10)]
        ops, prev = [], [None] * 3
        for sw in ("v_permlane32_swap_b32", "v_permlane16_swap_b32"):
            for qb in range(3):
                o = Op(valu("v_mov_b32", y[qb], L(qb)), [(prev[qb], 0)] if prev[qb] else []); ops.append(o); prev[qb] = o
            for qb in range(3):
                o = Op(perm(sw, L(qb), y[qb]), [(prev[qb], 2)]); ops.append(o); prev[qb] = o
            for qb in range(3):
                o = Op(valu("v_add_f32", L(qb), L(qb), y[qb]), [(prev[qb], 1)]); ops.append(o); prev[qb] = o
        for qb in range(3):
            o = Op(vrcp(dst[qb], L(qb)), [(prev[qb], 0)]); ops.append(o)
        assert not list_schedule(gaps, ops, 0, 36)

    def norm_ops(self, h, tsets, rinv):
        ops, last_use, rd_last, unit_last = [], [[] for _ in tsets], {}, {}
        store_dep = [None for _ in tsets]
        k = 0
        for kb in range(6):
            for qb in range(3):
                ts = k % len(tsets)
                t = tsets[ts]
                dep0 = [(x, 0) for x in last_use[ts]] + ([(store_dep[ts], 2)] if store_dep[ts] else [])
                rds = []
                for tt, T in enumerate((2 * kb, 2 * kb + 1)):
                    for r in range(4):
                        o = Op(I(f"v_accvgpr_read_b32 v{t + 4 * tt + r}, {rtxt(OAr(T, qb, r))}", "valu", [V(t + 4 * tt + r)], [OAr(T, qb, r)]), list(dep0))
                        ops.append(o); rds.append(o)
                        rd_last[T] = o
                mul = []
                for r in range(8):
                    o = Op(valu("v_mul_f32", V(t + r), V(t + r), rinv[qb]), [(rds[r], 0)]); ops.append(o); mul.append(o)
                cv = []
                for r in range(4):
                    d = V(t + r) if h == 0 else QFr(kb, qb, r)
                    deps = [(mul[2 * r], 0), (mul[2 * r + 1], 0)] + ([(cv[-1], 0)] if cv and h == 0 else [])
                    o = Op(valu("v_cvt_pk_bf16_f32", d, V(t + 2 * r), V(t + 2 * r + 1)), deps); ops.append(o); cv.append(o)
                fin = cv
                if h == 0:
                    fin = []
                    for r in range(4):
                        o = Op(I(f"v_accvgpr_write_b32 {rtxt(O0Pr(kb, qb, r))}, v{t + r}", "valu", [O0Pr(kb, qb, r)], [V(t + r)]), [(cv[r], 0), (cv[-1], 0)])
                        ops.append(o); fin.append(o)
                if h == 0 and self.p4 and int(self.cfg["o0_start"]) < 0:
                    deps = [(cv[-1], 0)] + ([(self._ost_adv, 0)] if getattr(self, "_ost_adv", None) else [])
                    st = Op(vstore(V(t, 4), VOX, SRD_WS, s_bl, 1024 * qb, " sc1", tag=("ost", 0)), deps)
                    ops.append(st)
                    fin = fin + [st]
                    self._ost_last = st
                    if qb == 2 and kb < 5:
                        self._ost_adv = Op(salu("s_add_u32", s_bl, s_bl, 3072), [(st, 0)])
                        ops.append(self._ost_adv)
                    last_use[ts] = [(x) for x in fin]
                    store_dep[ts] = st
                else:
                    last_use[ts] = fin
                unit_last[(kb, qb)] = fin
                k += 1
        return ops, rd_last, unit_last

    def n0_fill(self):
        gaps = [g for s in range(52, 72) for g in self.gaps[s]]
        ops, rd_last, _ = self.norm_ops(0, [198, 206], self.RINV)
        pend = list_schedule(gaps, ops, 0, 36 * 19)
        assert not pend, len(pend)
        if self.p4 and int(self.cfg["o0_start"]) >= 0:
            self.o0_stores()
        elif self.p4:
            fs = self._ost_last.gap // 36 + int(self.cfg["d_oflag"])
            assert fs <= 19, fs
            self.add_wait_tag(gaps, fs, ("ost", 0))
            gaps[36 * fs + 24].va.insert(0, valu("v_mov_b32", V(214), 1))
            gaps[36 * fs + 29].vm.append(vstore(V(214), VFO, SRD_WS, s_t[5], 0, " sc1", tag=("flag",), width=1))
        self.n0_free = {T: 52 * 36 + o.gap for T, o in rd_last.items()}
        for k, g0 in self.rp1_first.items():
            assert self.n0_free[k] < g0, (k, self.n0_free[k], g0)

    def o0_stores(self):
        s0, per = int(self.cfg["o0_start"]), int(self.cfg["o0_per"])
        s, k = s0, 0
        units = [(kb, qb) for kb in range(6) for qb in range(3)]
        while k < 18:
            g = self.gaps[s]
            free = [gi for gi in (5, 11, 17, 29, 35) if not g[gi].vm and g[gi].free() >= 2][:per]
            for gi in free:
                if k == 18: break
                kb, qb = units[k]
                if qb == 0:
                    g[gi - 2].sc.append(salu("s_add_u32", s_bl, s_oown, 3072 * kb))
                g[gi].vm.append(vstore(O0P(kb, qb), VOX, SRD_WS, s_bl, 1024 * qb, " sc1", tag=("ost", 0)))
                k += 1
            s += 1
        assert s <= 104, s
        return
        fs = s - 1 + int(self.cfg["d_oflag"])
        allg = [x for st_ in range(self.NS) if self.gaps[st_] for x in self.gaps[st_]]
        for x in self.gaps[fs][23].sc:
            if isinstance(x, WaitTag): x.tag = ("waittag", x.tag[1] + (("ost", 0),))
        vt = V(214) if fs < 72 else V(139)
        self.gaps[fs][24].va.insert(0, valu("v_mov_b32", vt, 1))
        gi = [q for q in (29, 35) if not self.gaps[fs][q].vm][0]
        self.gaps[fs][gi].vm.append(vstore(vt, VFO, SRD_WS, s_t[5], 0, " sc1", tag=("flag",), width=1))
        self.o0_flag_step = fs

    def n1_fill(self):
        gaps = [g for j in range(8) for g in self.gaps[104 + j]]
        rinv = [MT(8), MT(9), MT(10)]
        ops, _, unit_last = self.norm_ops(1, [112, 120], rinv)
        done = []
        lim = {kb: 36 * (4 + kb // 3) + 12 * (kb % 3) - 1 for kb in range(6)}
        g = 0
        rest = ops
        for kb in range(6):
            mine = [o for o in rest if any(o in unit_ops for unit_ops in [self._unit_ops(ops, kb)])]
            pend = list_schedule(gaps, mine, g, lim[kb])
            if pend:
                gi = lim[kb]
                gaps[gi].post += autonop([o.ins for o in pend]) + [nop(1)]
                for o in pend: o.gap = gi + 1
            rest = [o for o in rest if o not in mine]

    def _unit_ops(self, ops, kb):
        return ops[60 * kb:60 * kb + 60]

    def n_block(self, h):
        out = []
        if h == 1 and self.cfg["fused"]:
            out += self.hu_setup()
        out += self.rinv_ops()
        tmp = [V(0 + 8 * k, 8) for k in range(3)]
        pk = [V(24 + 4 * k, 4) for k in range(3)]
        for kb in range(6):
            for qb in range(3):
                t = tmp[qb][1]
                for tt, T in enumerate((2 * kb, 2 * kb + 1)):
                    for r in range(4):
                        out.append(I(f"v_accvgpr_read_b32 v{t + 4 * tt + r}, {rtxt(OAr(T, qb, r))}", "valu",
                                     [V(t + 4 * tt + r)], [OAr(T, qb, r)]))
            for qb in range(3):
                t = tmp[qb][1]
                for h2 in range(4):
                    out.append(valu("v_pk_mul_f32", V(t + 2 * h2, 2), V(t + 2 * h2, 2), V(MT(8 + 2 * qb)[1], 2)))
            for qb in range(3):
                t = tmp[qb][1]
                for r in range(4):
                    d = V(pk[qb][1] + r) if h == 0 else QFr(kb, qb, r)
                    out.append(valu("v_cvt_pk_bf16_f32", d, V(t + 2 * r), V(t + 2 * r + 1)))
            if h == 0:
                for qb in range(3):
                    for r in range(4):
                        out.append(I(f"v_accvgpr_write_b32 {rtxt(O0Pr(kb, qb, r))}, v{pk[qb][1] + r}", "valu",
                                     [O0Pr(kb, qb, r)], [V(pk[qb][1] + r)]))
        return autonop(out)

    def mask_test(self, k, mask):
        return [I(f"v_cmp_le_u32 vcc, {k}, {rtxt(FLG)}", "valu", [], [FLG]), raw("s_nop 0"),
                raw(f"s_and_b32 {rtxt(s_t[1])}, vcc_lo, {rtxt(mask)}"), raw(f"s_cmp_eq_u32 {rtxt(s_t[1])}, {rtxt(mask)}")]

    def mask_spin(self, k, mask, name, first_wait):
        body = [raw(f"s_sleep {self.cfg['spin_sleep']}"), I(self.poll_load(None).txt, "salu"), raw("s_waitcnt vmcnt(0)")]
        body += [I(x.txt, "salu") for x in self.mask_test(k, mask)]
        o = [first_wait, scmp("s_cmp_eq_u32", s_w, 0), branch("s_cbranch_scc0", f"{name}_ok")]
        o += self.mask_test(k, mask) + [branch("s_cbranch_scc1", f"{name}_ok"), salu("s_mov_b32", s_t[0], 1 << 18), label(f"{name}_loop")]
        o += [salu("s_sub_u32", s_t[0], s_t[0], 1), branch("s_cbranch_scc1", f"{name}_ok")]
        o += body + [branch("s_cbranch_scc0", f"{name}_loop"), label(f"{name}_ok")]
        return o

    def g_bloads(self, j):
        q, hh, kb = self.g_kstep(j)
        e = self.g_bidx(j) % 12
        so = s_bl2[self.g_bidx(j) % 2]
        return (salu("s_add_u32", so, s_oq[q], hh * 73728 + kb * 3072),
                [vload(A(12 * e + 4 * qb, 4), VOX, SRD_WS, so, 1024 * qb, " sc1", tag=("bl", j)) for qb in range(3)])

    def g_check_block(self):
        o = [WaitTag([("chk",)]), scmp("s_cmp_eq_u32", s_w, 0), branch("s_cbranch_scc0", "L_chk_ok"),
             I(f"v_readfirstlane_b32 {rtxt(s_t[1])}, {rtxt(VCHK)}", "valu", [s_t[1]], [VCHK]), raw("s_nop 3"),
             scmp("s_cmp_ge_u32", s_t[1], 16), branch("s_cbranch_scc1", "L_chk_ok"),
             salu("s_mov_b32", s_t[0], 1 << 18), label("L_chk_loop"),
             salu("s_sub_u32", s_t[0], s_t[0], 1), branch("s_cbranch_scc1", "L_chk_ok"), raw("s_sleep 8"),
             I(f"buffer_load_dword {rtxt(VCHK)}, {rtxt(VFO)}, {rtxt(SRD_DBG)}, {rtxt(s_b16)} offen sc1", "salu"), raw("s_waitcnt vmcnt(0)"),
             I(f"v_readfirstlane_b32 {rtxt(s_t[1])}, {rtxt(VCHK)}", "salu"), raw("s_nop 3"),
             scmp("s_cmp_ge_u32", s_t[1], 16), branch("s_cbranch_scc0", "L_chk_loop"), label("L_chk_ok"),
             salu("s_lshl_b32", s_b16, s_b, 8), salu("s_add_u32", s_b16, s_b16, FLAG_OFF),
             valu("v_lshlrev_b32", V(137), 2, TID), valu("v_mov_b32", VPOLL, 0x7FFFFF00),
             I(f"v_cmp_gt_u32 vcc, 16, {rtxt(TID)}", "valu", [], [TID]), nop(1),
             I(f"v_cndmask_b32 {rtxt(VPOLL)}, {rtxt(VPOLL)}, v137, vcc", "valu", [VPOLL], [VPOLL, V(137)])]
        return o

    def g_n1_block(self):
        out = srd(SRD_OUT, None, 16 * 192 * 640 * 2, s_outp) + [salu("s_add_u32", s_bl, s_oown, 73728)]
        rinv = [MT(8), MT(9), MT(10)]
        first = []
        tmp = [V(0 + 8 * k, 8) for k in range(3)]
        for kb in range(6):
            for qb in range(3):
                t = tmp[qb][1]
                for tt, T in enumerate((2 * kb, 2 * kb + 1)):
                    for r in range(4):
                        out.append(I(f"v_accvgpr_read_b32 v{t + 4 * tt + r}, {rtxt(OAr(T, qb, r))}", "valu", [V(t + 4 * tt + r)], [OAr(T, qb, r)]))
            for qb in range(3):
                t = tmp[qb][1]
                for h2 in range(4):
                    out.append(valu("v_pk_mul_f32", V(t + 2 * h2, 2), V(t + 2 * h2, 2), V(RIN2[qb][1], 2)))
            for qb in range(3):
                t = tmp[qb][1]
                for r in range(4):
                    out.append(valu("v_cvt_pk_bf16_f32", QFr(kb, qb, r), V(t + 2 * r), V(t + 2 * r + 1)))
            for qb in range(3):
                out.append(vstore(QF(kb, qb), VOX, SRD_WS, s_bl, 1024 * qb, " sc1", tag=("ost", 1)))
            if kb < 5: out.append(salu("s_add_u32", s_bl, s_bl, 3072))
            for j in first:
                if (self.g_bidx(j) % 12) // 2 == kb:
                    su, ld = self.g_bloads(j)
                    out += [su] + ld
        dup = []
        for qb in range(3):
            dup += [valu("v_mov_b32", V(RIN2[qb][1]), rinv[qb]), valu("v_mov_b32", V(RIN2[qb][1] + 1), rinv[qb])]
        return autonop(dup + out)

    def g_fill(self):
        G0 = 104
        gaps = lambda j: self.gaps[G0 + j]
        d_bl = int(self.cfg["d_bl"])
        fs = int(self.cfg["g_oflag"])
        for x in gaps(fs)[17].sc:
            if isinstance(x, WaitTag): x.tag = ("waittag", x.tag[1] + (("ost", 1), ("ost", 0)))
        gaps(fs)[18].va.insert(0, valu("v_mov_b32", VFV, 2))
        gaps(fs)[23].vm.append(self.flag_store())
        ps = fs + int(self.cfg["g_poll"])
        cs = ps + int(self.cfg["g_chk"])
        gaps(ps)[29].vm.append(self.poll_load(("poll", "o1")))
        self.post[G0 + cs - 1] += self.mask_spin(2, s_mgrp, "L_spb", WaitTag([("poll", "o1")]))
        self.bl_issue = {}
        nxt = 12
        for js in range(cs, 48):
            g = gaps(js)
            sets = [(23, 28, 29)] if js == cs else [(11, 16, 28), (5, 23, 29)]
            chosen = []
            for pos in sets:
                k_ = nxt + len(chosen)
                if k_ >= 48 or k_ - js > d_bl or any(g[gi].vm for gi in pos): continue
                chosen.append(pos)
            chosen.sort()
            for pos in chosen:
                su, ld = self.g_bloads(nxt)
                g[pos[0] - 2].sc.append(su)
                for x, gi in zip(ld, pos): g[gi].vm.append(x)
                self.bl_issue[nxt] = js
                nxt += 1
        assert nxt == 48
        for j, js in self.bl_issue.items():
            assert js < j, (j, js)
            if j - 12 >= 12: assert js > j - 12, (j, js)
        lane, g_, m_, t0, t1, d1 = V(133 + 3), V(137), V(138), V(139), V(124), V(125)
        cnd = lambda d, b: I(f"v_cndmask_b32 {rtxt(d)}, 0, {rtxt(b)}, vcc", "valu", [d], [b])
        cmp_ = lambda txt, u: I(txt, "valu", [], [u])
        lane = V(126)
        o = [valu("v_and_b32", lane, 63, TID), valu("v_lshrrev_b32", g_, 4, lane), valu("v_and_b32", m_, 15, lane),
             valu("v_mul_u32_u24", t0, 1280, m_), valu("v_lshlrev_b32", t1, 4, g_), valu("v_add_u32", VOUT, t0, t1),
             valu("v_lshlrev_b32", VZ, 4, lane),
             valu("v_lshrrev_b32", t0, 2, m_), valu("v_and_b32", t1, 1, t0), valu("v_lshlrev_b32", t1, 4, t1),
             valu("v_lshrrev_b32", t0, 1, t0), valu("v_lshlrev_b32", t0, 2, t0), valu("v_add_u32", t1, t1, t0),
             valu("v_and_b32", t0, 3, m_), valu("v_add_u32", t1, t1, t0),
             valu("v_lshlrev_b32", t0, 3, g_), valu("v_sub_u32", d1, t1, t0)]
        for k in range(2):
            if k: o.append(valu("v_add_u32", d1, 8, d1))
            o += [valu("v_and_b32", t0, 1, d1), valu("v_lshlrev_b32", t0, 4, t0), valu("v_mov_b32", t1, 0x3F80),
                  valu("v_lshlrev_b32", t1, t0, t1), valu("v_lshrrev_b32", t0, 1, d1)]
            for d in range(4):
                o += [cmp_(f"v_cmp_eq_u32 vcc, {d}, {rtxt(t0)}", t0), cnd(V(SEL[k][1] + d), t1)]
        allg = [g for j in range(48) for g in gaps(j)]
        ops, prev = [], None
        for x in o:
            op = Op(x, [(prev, 2 if x.txt.startswith("v_cndmask") else 0)] if prev else [], earliest=30 * 1)
            ops.append(op); prev = op
        assert not list_schedule(allg, ops, 30 * 1, 30 * 40)
        self.post[self.NS - 1] += self.g_tail()

    def g_out_scalars(self):
        o = []
        for k in range(4):
            u, ntp, qb, a = s_t[0], s_t[2], s_t[3], S(76 + k)
            o += [salu("s_add_u32", u, s_w, 4 * k), salu("s_mul_hi_u32", ntp, u, (2 ** 32 + 2) // 3), salu("s_mul_i32", qb, ntp, 3),
                  salu("s_sub_u32", qb, u, qb), salu("s_lshl_b32", qb, qb, 4), salu("s_mul_i32", a, qb, 1280),
                  salu("s_lshl_b32", ntp, ntp, 6), salu("s_add_u32", a, a, ntp), salu("s_add_u32", a, a, s_oout)]
            if k == 3:
                o += [scmp("s_cmp_ge_u32", u, 15), salu("s_cselect_b32", a, 0x7FFF0000, a)]
        return o

    def g_unit_ops(self):
        res = []
        for ntp in range(5):
            for qb in range(3):
                a, b = GACC(2 * ntp, qb)[1], GACC(2 * ntp + 1, qb)[1]
                cv = [valu("v_cvt_pk_bf16_f32", V(a), V(a), V(a + 1)), valu("v_cvt_pk_bf16_f32", V(a + 1), V(a + 2), V(a + 3)),
                      valu("v_cvt_pk_bf16_f32", V(a + 2), V(b), V(b + 1)), valu("v_cvt_pk_bf16_f32", V(a + 3), V(b + 2), V(b + 3))]
                u = ntp * 3 + qb
                so = s_bl2[(u // 4) % 2]
                sc = salu("s_add_u32", so, s_px, 1024 * u) if u % 4 == 0 else None
                res.append((ntp, cv, sc, vstore(V(a, 4), PSL16, SRD_WS, so, 1024 * (u % 4), " sc1", tag=("pst",))))
        return res

    def g_tail(self):
        units = self.g_unit_ops()
        left = []
        if self.cfg["g_hide_tail"]:
            gaps = self.gaps[self.NS - 1]
            allg = [g for j in range(48) for g in self.gaps[104 + j]]
            end = self.spread_scalars(allg, self.g_out_scalars(), 30 * 42)
            assert end <= 30 * 47
            ops, prev_st = [], None
            per_unit = []
            for ntp, cv, sc, st in units:
                e = 6 * ntp + 5 + 4
                oc, prev = [], None
                for x in cv:
                    op = Op(x, [(prev, 0)] if prev else [], earliest=e); oc.append(op); prev = op
                deps = [(prev, 0)] + ([(prev_st, 0)] if prev_st else [])
                if sc is not None:
                    osc = Op(sc, [(prev_st, 0)] if prev_st else [], earliest=e); oc.append(osc); deps.append((osc, 0))
                ost = Op(st, deps, earliest=e); oc.append(ost); prev_st = ost
                ops += oc
            left = [o_.ins for o_ in list_schedule(gaps, ops, 0, 30)]
            o = autonop([nop(7)] + left)
        else:
            o = [nop(7)]
            for ntp, cv, sc, st in units:
                o += cv + ([sc] if sc is not None else []) + [st]
            o = autonop(o)
        o += self.tstamp(0)
        if not self.cfg["g_hide_tail"]: o += self.g_out_scalars()
        o += [WaitTag([("pst",)]), barrier()] + self.tstamp(1)
        o += [valu("v_mov_b32", VFV, 3), self.flag_store(), self.poll_load(("poll", "fin"))]
        o += self.mask_spin(3, s_mfin, "L_spf", WaitTag([("poll", "fin")])) + [barrier()] + self.tstamp(2)
        for k in range(4):
            for ks in range(4):
                o += [salu("s_add_u32", s_bl, s_pin, ks * 61440 + 4096 * k),
                      vload(A(16 * k + 4 * ks, 4), VZ, SRD_WS, s_bl, 0, " sc1", tag=("red", 7, k, ks))]
        o += self.tstamp(3)
        for k in range(4):
            o.append(WaitTag([("red", 7, k, 3)]))
            for ks in range(4):
                for h in range(2):
                    o.append(mfma(RD[h], SEL[h], A(16 * k + 4 * ks, 4), 0 if ks == 0 else RD[h]))
            o.append(nop(7))
            for h in range(2):
                a = RD[h][1]
                o += [valu("v_cvt_pk_bf16_f32", V(2 * h), V(a), V(a + 1)), valu("v_cvt_pk_bf16_f32", V(2 * h + 1), V(a + 2), V(a + 3))]
            o += [vstore(V(0, 4), VOUT, SRD_OUT, S(76 + k), 0, self.cfg["out_flags"], tag=("out", k)), nop(1)]
        o += self.tstamp(4)
        return o

    def o_fill(self):
        gaps = [g for j in range(40) for g in self.gaps[104 + j]]

        def cvts(p):
            ops = []
            for ntp in range(2):
                for qb in range(3):
                    u = ntp * 3 + qb
                    for h in range(2):
                        a = OACC(p, 2 * ntp + h, qb)[1]
                        ops.append(valu("v_cvt_pk_bf16_f32", CTr(u, 2 * h), V(a), V(a + 1)))
                        ops.append(valu("v_cvt_pk_bf16_f32", CTr(u, 2 * h + 1), V(a + 2), V(a + 3)))
            return ops

        def store(u, c):
            return vstore(CT(u), PSV, SRD_WS, s_pst[u // 4], (u % 4) * 1024, self.cfg["pst_flags"], tag=("st", c))

        spos = [(0, 22), (0, 34), (1, 10), (1, 22), (1, 34), (2, 10)]
        last_step = {}
        for j in range(40): last_step[o_cs(j, self.cfg["hide_n"])[0]] = j
        prev_store_gap = -1
        for c in range(9):
            j0 = last_step[c] + 1
            g0 = 36 * j0
            e0 = max(g0 + 3, prev_store_gap + 1)
            ops = [Op(x, earliest=e0) for x in cvts(c % 2)]
            pos = [g0 + 36 * s + gi for s, gi in spos]
            pos = [p_ for p_ in pos if p_ > e0 + 8]
            k = 3
            while len(pos) < 6:
                nxt = g0 + 36 * (k // 1) + (10, 22, 34)[0]
                for gi in (10, 22, 34):
                    p_ = g0 + 36 * 2 + gi if k == 3 else g0 + 36 * (k - 1) + gi
                    if p_ not in pos and p_ > (pos[-1] if pos else 0) and len(pos) < 6: pos.append(p_)
                k += 1
            for u, p_ in enumerate(pos):
                if not self.cfg["no_st"]:
                    gaps[p_].vm.append(store(u, c))
            assert not list_schedule(gaps, ops, e0, e0 + 40)
            for u, p_ in enumerate(pos):
                assert max(o.gap for o in ops[4 * u:4 * u + 4]) < p_, (c, u, p_)
            prev_store_gap = pos[-1]
            self.last_store = getattr(self, "last_store", {})
            self.last_store[c] = pos[-1]
            ga = pos[-1] + 1
            gaps[ga].sc.append(salu("s_add_u32", s_pst[0], s_pst[0], 24576))
            gaps[ga + 1].sc.append(salu("s_add_u32", s_pst[1], s_pst[1], 24576))
        fused = self.cfg["fused"]
        if fused:
            self.hu_fill(gaps)
        tail = autonop([nop(7)] + cvts(1) + [store(u, 9) for u in range(6)])
        if fused: tail += self.hu_tail()
        self.post[143] += tail

    HU_NEED = [1, 2, 3, 5, 6, 7, 8, 9]
    HU_BASE = [0, 64, 128, 192, 256, 320, 384, 432]
    HU_LIM = [480, 480, 480, 480, 480, 480, 432, 480]

    def hu_buf(self, rho, t): return A(32 * (rho % 4 if rho in self.hu_inloop else rho) + 4 * t, 4)

    def hu_load(self, rho, t):
        return vload(self.hu_buf(rho, t), VHL, SRD_WS, s_rl2[rho % 2], 0, self.cfg["red_flags"], tag=("red", rho, t))

    def hu_adv(self, rho):
        return salu("s_add_u32", s_rl2[rho % 2], s_rl2[rho % 2], 2 * 245760)

    def s_out(self, rho):
        return S(76 + rho) if self.cfg["hu_pre"] else s_ro[rho % 2]

    def hu_mfma(self, rho):
        o = []
        for t in range(8):
            if t % 4 == 0: o.append(WaitTag([("red", rho, t + 3)]))
            o.append(mfma(RD[0], SEL[0], self.hu_buf(rho, t), 0 if t == 0 else RD[0]))
        a = RD[0][1]
        o += [nop(7), valu("v_cvt_pk_bf16_f32", V(RD[1][1]), V(a), V(a + 1)), valu("v_cvt_pk_bf16_f32", V(RD[1][1] + 1), V(a + 2), V(a + 3)),
              vstore(V(RD[1][1], 2), VOUT, SRD_OUT, self.s_out(rho), 0, self.cfg["out_flags"], tag=("out", rho), width=2), nop(1)]
        return ([] if self.cfg["hu_pre"] else self.hu_out_off(rho)) + o

    def hu_out_off(self, rho):
        hu, n, c, rem, w2, u, ntp, a = s_t[0], s_t[1], s_t[2], s_t[3], S(100), S(101), S(61), self.s_out(rho)
        o = [salu("s_add_u32", hu, s_kw, self.HU_BASE[rho]), salu("s_lshr_b32", n, hu, 1),
             salu("s_mul_hi_u32", c, n, (2 ** 32 + 23) // 24), salu("s_mul_i32", rem, c, 24), salu("s_sub_u32", rem, n, rem),
             salu("s_mul_hi_u32", w2, rem, (2 ** 32 + 5) // 6), salu("s_mul_i32", u, w2, 6), salu("s_sub_u32", u, rem, u),
             salu("s_mul_hi_u32", ntp, u, (2 ** 32 + 2) // 3), salu("s_mul_i32", rem, ntp, 3), salu("s_sub_u32", u, u, rem),
             salu("s_mul_i32", a, s_b, 192), salu("s_mul_i32", w2, w2, 48), salu("s_add_u32", a, a, w2),
             salu("s_lshl_b32", u, u, 4), salu("s_add_u32", a, a, u), salu("s_mul_i32", a, a, 1280),
             salu("s_lshl_b32", c, c, 7), salu("s_add_u32", a, a, c), salu("s_lshl_b32", ntp, ntp, 6), salu("s_add_u32", a, a, ntp),
             salu("s_and_b32", n, hu, 1), salu("s_lshl_b32", n, n, 4), salu("s_add_u32", a, a, n)]
        if rho >= 6:
            o += [scmp("s_cmp_ge_u32", hu, self.HU_LIM[rho]), salu("s_cselect_b32", a, 0x7FFF0000, a)]
        return o

    def hu_base(self, rho):
        return salu("s_add_u32", s_rl2[rho % 2], s_pb, 512 * self.HU_BASE[rho])

    def hu_setup(self):
        hide = self.cfg["hide_setup"]
        lane, g_, m_, t0, t1 = (V(133), V(134), V(135), V(137), V(138)) if hide else (V(96), V(97), V(98), V(99), V(100))
        o = srd(SRD_OUT, None, 16 * 192 * 640 * 2, s_outp)
        o += [WaitTag([("chk",)]), scmp("s_cmp_eq_u32", s_w, 0), branch("s_cbranch_scc0", "L_chk_ok"),
              I(f"v_readfirstlane_b32 {rtxt(s_t[1])}, {rtxt(VCHK)}", "valu", [s_t[1]], [VCHK]), raw("s_nop 3"),
              scmp("s_cmp_ge_u32", s_t[1], 16), branch("s_cbranch_scc1", "L_chk_ok"),
              salu("s_mov_b32", s_t[0], 1 << 18), label("L_chk_loop"),
              salu("s_sub_u32", s_t[0], s_t[0], 1), branch("s_cbranch_scc1", "L_chk_ok"), raw("s_sleep 8"),
              I(f"buffer_load_dword {rtxt(VCHK)}, {rtxt(VFO)}, {rtxt(SRD_DBG)}, {rtxt(s_b16)} offen sc1", "salu"), raw("s_waitcnt vmcnt(0)"),
              I(f"v_readfirstlane_b32 {rtxt(s_t[1])}, {rtxt(VCHK)}", "salu"), raw("s_nop 3"),
              scmp("s_cmp_ge_u32", s_t[1], 16), branch("s_cbranch_scc0", "L_chk_loop"), label("L_chk_ok")]
        cnd = lambda d, a, b: I(f"v_cndmask_b32 {rtxt(d)}, {rtxt(a)}, {rtxt(b)}, vcc", "valu", [d], [a, b])
        cmp_ = lambda txt, u: I(txt, "valu", [], [u])
        head = o
        o = []
        o += [valu("v_and_b32", lane, 63, TID), valu("v_lshrrev_b32", g_, 4, lane), valu("v_and_b32", m_, 15, lane),
              valu("v_mov_b32", VZ, 0),
              valu("v_mul_u32_u24", t0, 1280, m_), valu("v_and_b32", t1, 1, g_), valu("v_lshlrev_b32", t1, 5, t1), valu("v_add_u32", t0, t0, t1),
              valu("v_lshrrev_b32", t1, 1, g_), valu("v_lshlrev_b32", t1, 3, t1), valu("v_add_u32", VOUT, t0, t1),
              valu("v_lshrrev_b32", t0, 5, lane), valu("v_mul_u32_u24", t0, 245760, t0), valu("v_and_b32", t1, 31, lane),
              valu("v_lshlrev_b32", t1, 4, t1), valu("v_add_u32", VHL, t0, t1),
              valu("v_lshlrev_b32", t0, 2, TID), valu("v_mov_b32", VPOLL, 0x7FFFFF00),
              cmp_(f"v_cmp_gt_u32 vcc, 16, {rtxt(TID)}", TID), nop(1), cnd(VPOLL, VPOLL, t0),
              valu("v_and_b32", t0, 1, m_), valu("v_lshlrev_b32", t0, 4, t0), valu("v_mov_b32", t1, 0x3F80), valu("v_lshlrev_b32", t1, t0, t1),
              valu("v_lshrrev_b32", t0, 3, m_), valu("v_and_b32", g_, 1, g_),
              cmp_(f"v_cmp_eq_u32 vcc, {rtxt(t0)}, {rtxt(g_)}", t0), nop(1), cnd(t1, VZ, t1),
              valu("v_lshrrev_b32", t0, 1, m_), valu("v_and_b32", t0, 3, t0)]
        for d in range(4):
            o += [cmp_(f"v_cmp_eq_u32 vcc, {d}, {rtxt(t0)}", t0), nop(1), cnd(V(SEL[0][1] + d), VZ, t1)]
        if hide:
            self.setup_valu = [x for x in o if x.cls != "nop"]
            o = head
        else:
            o = head + o
        o += [salu("s_lshl_b32", s_b16, s_b, 8), salu("s_add_u32", s_b16, s_b16, FLAG_OFF),
              salu("s_lshl_b32", s_t[0], s_pj, 2), salu("s_add_u32", s_t[5], s_b16, s_t[0]), salu("s_add_u32", s_kw, s_t[0], s_w),
              salu("s_mul_i32", s_pb, s_b, 16 * 245760), salu("s_lshl_b32", s_t[0], s_kw, 9), salu("s_add_u32", s_pb, s_pb, s_t[0]),
              salu("s_add_u32", s_pb, s_pb, PART_OFF)]
        return o

    def add_wait_tag(self, gaps, fs, tag):
        for x in gaps[36 * fs + 23].sc:
            if isinstance(x, WaitTag):
                x.tag = ("waittag", x.tag[1] + (tag,))

    def spread_scalars(self, gaps, ins, g0):
        g = g0
        k = 0
        while k < len(ins):
            while gaps[g].sc or gaps[g].vm: g += 1
            grp = [ins[k]]
            if ins[k].txt.startswith("s_cmp"):
                grp.append(ins[k + 1])
            gaps[g].sc += grp
            k += len(grp)
            g += 1
        return g

    def hu_fill(self, gaps):
        if self.cfg["hide_setup"]:
            ops, prev = [], None
            for x in self.setup_valu:
                d = 2 if x.txt.startswith("v_cndmask") else 0
                op = Op(x, [(prev, d)] if prev else [], earliest=36 * 6)
                ops.append(op); prev = op
            assert not list_schedule(gaps, ops, 36 * 6, 36 * 12)
        if self.cfg["hu_pre"]:
            seq_ = []
            for rho in range(8): seq_ += self.hu_out_off(rho)
            end = self.spread_scalars(gaps, seq_, 36 * 1)
            assert end < 36 * 13, end
        self.hu_fill2(gaps)

    def hu_fill2(self, gaps):
        d_flag, d_poll, d_chk = int(self.cfg["d_flag"]), int(self.cfg["d_poll"]), int(self.cfg["d_chk"])
        n_in = int(self.cfg["hu_in"])
        self.hu_pending = []
        self.hu_inloop = set()
        published = set()
        for rho in range(8):
            c = self.HU_NEED[rho]
            if c >= 8: break
            fs = self.last_store[c] // 36 + d_flag
            if c not in published and fs <= 38:
                published.add(c)
                self.add_wait_tag(gaps, fs, ("st", c))
                gaps[36 * fs + 24].va.insert(0, valu("v_mov_b32", VFV, c + 1))
                gaps[36 * fs + 29].vm.append(self.flag_store())
            ps = fs + d_poll
            cs = ps + d_chk
            if rho >= n_in or cs > 38:
                self.hu_pending.append((rho, 0))
                continue
            self.hu_inloop.add(rho)
            gaps[36 * ps + 35].vm.append(self.poll_load(("poll", rho)))
            self.post[104 + cs - 1] += self.check_spin(c + 1, f"L_sp{rho}", WaitTag([("poll", rho)])) + [self.hu_base(rho)]
            t, st_ = 0, cs
            while t < 8 and st_ < 40:
                for gi in sorted((35, 11, 17)[:int(self.cfg['hu_per'])]):
                    if t == 8: break
                    if st_ == cs and gi < 24: continue
                    g = gaps[36 * st_ + gi]
                    if g.vm: continue
                    g.vm.append(self.hu_load(rho, t))
                    g.post.append(self.hu_adv(rho))
                    t += 1
                st_ += 1
            self.hu_end = getattr(self, "hu_end", {})
            self.hu_end[rho] = st_
            if rho - 2 in self.hu_end: assert self.hu_end[rho - 2] <= cs, (rho, self.hu_end, cs)
            ms = st_ + int(self.cfg["d_mfma"])
            if t == 8 and ms <= 39:
                self.post[104 + ms - 1] += self.hu_mfma(rho)
            else:
                self.hu_pending.append((rho, t, "polled"))

    def hu_tail(self):
        pend = self.hu_pending
        ready = [p[0] for p in pend if len(p) == 3 and p[1] == 8]
        partial = [(p[0], p[1]) for p in pend if len(p) == 3 and p[1] < 8]
        late = [p[0] for p in pend if len(p) == 2]
        flag = lambda k: [valu("v_mov_b32", VFV, k), self.flag_store()]

        def loads(r, t0=0):
            o = [self.hu_base(r)] if t0 == 0 else []
            for t in range(t0, 8): o += [self.hu_load(r, t), self.hu_adv(r)]
            return o
        o = self.tstamp(0)
        if late: o += [self.poll_load(("poll", "late"))]
        o += [WaitTag([("st", 8)]), barrier()] + flag(9)
        for r in ready: o += self.hu_mfma(r)
        o += self.tstamp(1)
        if late:
            c = max(self.HU_NEED[r] for r in late)
            o += self.check_spin(c + 1, "L_spl", WaitTag([("poll", "late")]))
        o += [WaitTag([("st", 9)]), barrier()] + self.tstamp(2) + [self.poll_load(("poll", 9))] + flag(10)
        inflight = []
        for r, t0 in partial:
            o += loads(r, t0)
            inflight.append(r)
        for r in late:
            if len(inflight) >= 4: o += self.hu_mfma(inflight.pop(0))
            o += loads(r)
            inflight.append(r)
        o += self.tstamp(3)
        while len(inflight) > 1: o += self.hu_mfma(inflight.pop(0))
        o += self.check_spin(9, "L_sp9", WaitTag([("poll", 9)])) + [barrier()] + self.tstamp(4)
        o += loads(6) + [self.poll_load(("poll", "fin"))]
        for r in inflight: o += self.hu_mfma(r)
        o += self.tstamp(5) + self.check_spin(10, "L_spf", WaitTag([("poll", "fin")])) + [barrier()] + self.tstamp(6)
        o += loads(7) + self.tstamp(7) + self.hu_mfma(6) + self.tstamp(8) + self.hu_mfma(7) + self.tstamp(9) + self.tstamp(10)
        return o

    def tstamp(self, k):
        if not self.cfg["steptime"]: return []
        return [I("s_memtime s[92:93]", "salu"), raw("s_waitcnt lgkmcnt(0)"), raw(f"v_writelane_b32 v255, s92, {(30 if self.p4 else 20) + k}", "valu")]


def g_lane_consts():
    out = []
    lc = G.LaneCalc(out)
    lc.val[TID] = np.arange(256, dtype=np.int64)
    lane, w, g_, r, c, t0, t1, t2, t3 = [PT(11 + k) for k in range(9)]
    lc.op("v_and_b32", lane, 63, TID); lc.op("v_lshrrev_b32", w, 6, TID); lc.op("v_lshrrev_b32", g_, 4, lane)
    lc.op("v_lshrrev_b32", r, 2, lane); lc.op("v_and_b32", r, 3, r); lc.op("v_and_b32", c, 3, lane)
    L_ = np.arange(256) & 63; W_ = np.arange(256) >> 6
    G_, R_, C_ = L_ >> 4, (L_ & 15) >> 2, L_ & 3
    lc.op("v_lshrrev_b32", t0, 1, g_); lc.op("v_mul_u32_u24", t0, 3072, t0)
    lc.op("v_and_b32", t1, 1, g_); lc.op("v_lshlrev_b32", t2, 2, t1); lc.op("v_add_u32", t2, t2, r)
    lc.op("v_mul_u32_u24", t2, 320, t2); lc.op("v_add_u32", t0, t0, t2)
    lc.op("v_lshrrev_b32", t2, 1, c); lc.op("v_lshlrev_b32", t2, 4, t2); lc.op("v_add_u32", t0, t0, t2)
    lc.op("v_and_b32", t2, 1, c); lc.op("v_lshlrev_b32", t2, 3, t2); lc.op("v_add_u32", t0, t0, t2)
    lc.op("v_lshlrev_b32", t1, 5, t1)
    lc.op("v_add_u32", AO[0], t0, t1); lc.op("v_add_u32", AO[2], t0, t1)
    lc.op("v_xor_b32", t1, 32, t1)
    lc.op("v_add_u32", AO[1], t0, t1); lc.op("v_add_u32", AO[3], t0, t1)
    base = (G_ >> 1) * 3072 + (4 * (G_ & 1) + R_) * 320 + (C_ >> 1) * 16 + (C_ & 1) * 8
    for k in (0, 2): assert (lc.val[AO[k]] == base + (G_ & 1) * 32).all()
    for k in (1, 3): assert (lc.val[AO[k]] == base + (1 - (G_ & 1)) * 32).all()
    for i in range(3):
        lc.op("v_add_u32", t0, 64 * i, lane)
        lc.op("v_mul_u32_u24", t1, 3277, t0); lc.op("v_lshrrev_b32", t1, 16, t1)
        lc.op("v_mul_u32_u24", t2, 20, t1); lc.op("v_sub_u32", t2, t0, t2)
        lc.op("v_lshrrev_b32", t3, 2, t1); lc.op("v_and_b32", t3, 1, t3); lc.op("v_lshlrev_b32", t3, 1, t3)
        lc.op("v_xor_b32", t2, t2, t3); lc.op("v_lshlrev_b32", t2, 4, t2)
        lc.op("v_lshlrev_b32", t3, 3, w); lc.op("v_add_u32", t3, t3, t1); lc.op("v_mul_u32_u24", t3, 1280, t3)
        lc.op("v_add_u32", t2, t2, t3)
        P = 64 * i + L_
        RL, CP = P // 20, P % 20
        want = (8 * W_ + RL) * 1280 + (CP ^ (2 * ((RL >> 2) & 1))) * 16
        assert (lc.val[t2][P < 160] == want[P < 160]).all()
        if i: out.append(valu("v_subrev_u32", t2, 1024 * i, t2))
        if i < 2:
            out.append(valu("v_mov_b32", DO[i], t2))
        else:
            out += [valu("v_mov_b32", DO[i], 0x7FFFFF00), I(f"v_cmp_gt_u32 vcc, 32, {rtxt(lane)}", "valu", [], [lane]), nop(1),
                    I(f"v_cndmask_b32 {rtxt(DO[i])}, {rtxt(DO[i])}, {rtxt(t2)}, vcc", "valu", [DO[i]], [DO[i], t2])]
    lc.op("v_lshlrev_b32", t0, 4, lane)
    lc.op("v_mul_u32_u24", t1, 18432, w); lc.op("v_add_u32", VOX, t0, t1)
    lc.op("v_mul_u32_u24", t1, 15360, w); lc.op("v_add_u32", PSL16, t0, t1)
    return out


def g_scalars():
    t0, t1, ks, nt = s_t[0], s_t[1], s_t[2], s_t[3]
    o = [salu("s_lshr_b32", ks, s_pj, 2), salu("s_and_b32", nt, s_pj, 3),
         salu("s_lshl_b32", s_mgrp, ks, 2), salu("s_lshl_b32", s_mgrp, 15, s_mgrp), salu("s_lshl_b32", s_mfin, 0x1111, nt)]
    for q in range(4):
        if q == 0:
            o += [salu("s_mov_b32", t0, nt)]
        else:
            o += [scmp("s_cmp_le_u32", nt, q - 1), salu("s_cselect_b32", t0, q, q - 1)]
        o += [salu("s_lshl_b32", t1, ks, 2), salu("s_add_u32", t0, t0, t1),
              salu("s_mul_i32", s_gq[q], t0, 491520), salu("s_mul_i32", t1, nt, 320), salu("s_add_u32", s_gq[q], s_gq[q], t1),
              salu("s_lshl_b32", t1, s_b, 4), salu("s_add_u32", t0, t0, t1), salu("s_mul_i32", t0, t0, 147456),
              salu("s_add_u32", s_oown if q == 0 else s_oq[q], t0, OX_OFF)]
    o += [salu("s_lshl_b32", t0, s_b, 2), salu("s_add_u32", t0, t0, nt), salu("s_lshl_b32", t0, t0, 2),
          salu("s_add_u32", t1, t0, ks), salu("s_mul_i32", s_px, t1, 61440), salu("s_add_u32", s_px, s_px, PX_OFF),
          salu("s_lshl_b32", t0, t0, 2), salu("s_add_u32", t0, t0, ks), salu("s_mul_i32", s_pin, t0, 15360),
          salu("s_lshl_b32", t1, s_w, 10), salu("s_add_u32", s_pin, s_pin, t1), salu("s_add_u32", s_pin, s_pin, PX_OFF),
          salu("s_mul_i32", s_oout, s_b, 192), salu("s_mul_i32", t1, ks, 48), salu("s_add_u32", s_oout, s_oout, t1),
          salu("s_mul_i32", s_oout, s_oout, 1280), salu("s_mul_i32", t1, nt, 320), salu("s_add_u32", s_oout, s_oout, t1),
          salu("s_lshl_b32", t0, s_b, 8), salu("s_lshl_b32", t1, s_pj, 2), salu("s_add_u32", t0, t0, t1), salu("s_add_u32", s_t[5], t0, FLAG_OFF),
          salu("s_mov_b32", s_bl, s_oown)]
    return o


def stamp(k):
    return [I("s_memtime s[56:57]", "salu"), raw("s_waitcnt lgkmcnt(0)"), salu("s_mov_b32", S(64 + k), S(56))]


def main_kernel(cfg):
    g = Gen3(cfg)
    T = cfg["timing"]
    pro = [label("mha_main_kernel"), scmp("s_cmp_ge_u32", S(2), 256), branch("s_cbranch_scc1", "L_main_exit"),
           raw("s_load_dwordx16 s[64:79], s[0:1], 0")]
    if T and cfg["stamp_entry"]: pro.insert(1, I("s_memrealtime s[86:87]", "salu"))
    if cfg["pf_entry"]:
        pro += [I("s_getpc_b64 s[56:57]", "salu"), label("L_pce"), raw("s_add_u32 s56, s56, mha_main_kernel-L_pce"), raw("s_addc_u32 s57, s57, -1") if False else raw("s_subb_u32 s57, s57, 0") if False else raw("s_nop 0"),
                ]
        pro = pro[:-4] + [I("s_getpc_b64 s[56:57]", "salu"), label("L_pce"),
                raw("s_and_b32 s56, s56, 0xffffff00"),
                valu("v_lshlrev_b32", V(1), 7, V(0)), raw("v_mov_b32 v3, s57", "valu"),
                raw("v_add_co_u32 v2, vcc, s56, v1", "valu"), raw("s_nop 1"), raw("v_addc_co_u32 v3, vcc, 0, v3, vcc", "valu"),
                I(f"global_load_dword {rtxt(JUNK)}, v[2:3], off", "vmem", [], [])]
    lane_ops = []
    wreg = build_lane_consts(lane_ops)
    t0, t1 = s_t[0], s_t[1]
    nb = int(cfg["map_nb"]); npair = 32 // nb
    lg = lambda v: v.bit_length() - 1
    seen = set()
    for wg in range(256):
        a0, j = wg & 7, wg >> 3
        pj = (j & (npair - 1)) + ((a0 & (16 // npair - 1)) << lg(npair))
        bb = (j >> lg(npair)) + ((a0 >> lg(16 // npair)) << lg(nb))
        seen.add((bb, pj))
    assert len(seen) == 256
    ids = [
        salu("s_and_b32", t0, S(2), 7), salu("s_lshr_b32", t1, S(2), 3),
        salu("s_and_b32", s_pj, t1, npair - 1), salu("s_lshr_b32", s_b, t1, lg(npair)),
        salu("s_and_b32", t1, t0, 16 // npair - 1), salu("s_lshl_b32", t1, t1, lg(npair)), salu("s_add_u32", s_pj, s_pj, t1),
        salu("s_lshr_b32", t0, t0, lg(16 // npair)), salu("s_lshl_b32", t0, t0, lg(nb)), salu("s_add_u32", s_b, s_b, t0),
        salu("s_lshl_b32", s_h0, s_pj, 1),
        salu("s_mul_i32", s_wb, s_h0, 384), salu("s_mul_i32", s_xb, s_b, 245760)]
    wave_sc = [salu("s_mul_i32", s_w3072, s_w, 3072), salu("s_lshl_b32", s_w6144, s_w3072, 1)]
    srd_first = srd(SRD_X, 64, 16 * 192 * 640 * 2) + srd(SRD_W, 70, 640 * 6144 * 2)
    srd_rest = srd(SRD_K, 66, 16 * 32 * 512 * 192 * 2) + srd(SRD_V, 68, 16 * 32 * 512 * 192 * 2)
    srd_rest += srd(SRD_WO, 72, 6144 * 640 * 2) + srd(SRD_WS, 78, 402653184)
    srd_rest += [salu("s_mov_b32", s_outp[0], S(74)), salu("s_mov_b32", s_outp[1], S(75)),
                 salu("s_mov_b32", s_dbgp[0], S(76)), salu("s_mov_b32", s_dbgp[1], S(77))]
    sc_rest = [
        salu("s_lshl_b32", t0, s_b, 5), salu("s_add_u32", t0, t0, s_h0), salu("s_mul_i32", s_kvb, t0, 196608),
        salu("s_add_u32", s_kvb1, s_kvb, 196608),
        salu("s_lshr_b32", s_n0, S(2), int(cfg["rot_shift"])), salu("s_mul_i32", s_n0, s_n0, int(cfg["rot_mul"])), salu("s_and_b32", s_n0, s_n0, 15),
        salu("s_mul_i32", s_ob, s_h0, 245760),
        salu("s_lshl_b32", t0, s_b, 4), salu("s_add_u32", t0, t0, s_pj),
        salu("s_mul_i32", s_pst[0], t0, 245760), salu("s_add_u32", s_pst[0], s_pst[0], PART_OFF),
        salu("s_add_u32", s_pst[1], s_pst[0], 4096),
        salu("s_mov_b32", s_thr, THR_BITS), salu("s_mov_b32", S(48), C_BITS), salu("s_mov_b32", S(49), C_BITS),
    ]
    clr = []
    if cfg["fused"]:
        clr = [salu("s_lshl_b32", t0, s_b, 8), salu("s_lshl_b32", t1, s_pj, 2), salu("s_add_u32", t0, t0, t1),
               salu("s_add_u32", t0, t0, FLAG_OFF), valu("v_mov_b32", PT(8), 0),
               vstore(PT(8), VFO, SRD_WS, t0, 0, " sc1", tag=("clr",), width=1)]
    rfl = [nop(0), I(f"v_readfirstlane_b32 {rtxt(s_w)}, {rtxt(wreg)}", "valu", [s_w], [wreg])]
    first = [it for it in g.seq if it.issue == -1]
    first_tiles = []
    for it in first:
        for m0, off, ins in g.units(it):
            first_tiles += [m0] + (off if isinstance(off, list) else [off]) + [nop(0)] + ins
    if cfg["fast_pro"]:
        need = set()
        for r in DA + DB + [wreg]: need |= regs(r)
        keep = []
        for ins in reversed(lane_ops):
            if ins.defs & need:
                keep.append(ins)
                if not (ins.defs <= ins.uses): need -= ins.defs
                need |= {u for u in ins.uses if u[0] == "v"}
        keep.reverse()
        pro += ids + keep + rfl + [raw("s_waitcnt lgkmcnt(0)")] + srd_first + wave_sc
        if T and not cfg["stamp_entry"]: pro += [I("s_memrealtime s[86:87]", "salu")]
        if T and cfg["stamp_entry"]: pro += [I("s_memrealtime s[94:95]", "salu")]
        pro += first_tiles
        pro += lane_ops + srd_rest + sc_rest + clr
        if T: pro += stamp(0)
    else:
        pro += lane_ops + rfl + [raw("s_waitcnt lgkmcnt(0)")] + srd_first + srd_rest + ids + wave_sc + sc_rest
        if T: pro += ([] if cfg["stamp_entry"] else [I("s_memrealtime s[86:87]", "salu")]) + ([I("s_memrealtime s[94:95]", "salu")] if cfg["stamp_entry"] else []) + stamp(0)
        pro += clr

    gw = S(59)
    lane, lane128 = PT(3), PT(2)
    OOB = 0x7FFFFF00

    def masked(dst, src, n):
        return [valu("v_mov_b32", dst, OOB), raw(f"v_cmp_gt_u32 vcc, {n}, {rtxt(lane)}", "valu"), raw("s_nop 1"),
                raw(f"v_cndmask_b32 {rtxt(dst)}, {rtxt(dst)}, {rtxt(src)}, vcc", "valu")]
    pfs = [salu("s_lshl_b32", gw, S(2), 2), salu("s_add_u32", gw, gw, s_w),
           valu("v_and_b32", lane, 63, TID), valu("v_lshlrev_b32", lane128, 7, lane),
           valu("v_mul_u32_u24", PT(5), 21846, lane), valu("v_lshrrev_b32", PT(5), 16, PT(5)),
           valu("v_mul_u32_u24", PT(6), 3, PT(5)), valu("v_sub_u32", PT(6), lane, PT(6)),
           valu("v_mul_u32_u24", PT(5), 12288, PT(5)), valu("v_lshlrev_b32", PT(6), 7, PT(6)), valu("v_add_u32", PT(5), PT(5), PT(6))]
    pfs += masked(VTK[0], PT(5), 30) + masked(VTK[1], lane128, 60) + masked(PT(4), lane128, 30)
    pfs += [salu("s_and_b32", t0, gw, 15), salu("s_mul_i32", t0, t0, 768), salu("s_lshr_b32", S(100), gw, 4),
            salu("s_mul_i32", S(100), S(100), 122880), salu("s_add_u32", S(100), S(100), t0), salu("s_mul_i32", S(101), gw, 7680)]
    start = []
    if "x" in cfg["pf_start"]:
        start += [salu("s_mul_i32", t0, gw, 3840), pf_load(PT(4), SRD_X, t0)]
    if "w" in cfg["pf_start"]:
        start += [pf_load(VTK[0], SRD_W, S(100))]
    if "1" in cfg["pf_start"]:
        start += [salu("s_add_u32", t0, S(100), 384), pf_load(VTK[0], SRD_W, t0)]
    code_steps = cfg["_code_steps"]
    pfs2 = []
    if cfg["pf_code"]:
        pfs2 += [valu("v_and_b32", PT(7), 31, lane), valu("v_lshlrev_b32", PT(7), 7, PT(7)),
                 salu("s_lshl_b32", t0, s_w, 12), valu("v_add_u32", VL128, t0, PT(7))]
    if int(cfg["pf_start_step"]) == -2:
        pro += pfs + start
        pfs, start = [], []
    pfs += pfs2
    pfs += [valu("v_and_b32", PT(7), 63, TID), valu("v_lshlrev_b32", PT(7), 4, PT(7)), valu("v_add_u32", AWR, s_w3072, PT(7))]

    if not cfg["fast_pro"]: pro += first_tiles
    if cfg["tlb"]:
        tl = [valu("v_and_b32", PT(9), 1, TID)]
        for what in str(cfg["tlb"]):
            if what in "kv":
                tl += [valu("v_mul_u32_u24", PT(10), 393216 - 128, PT(9)), pf_load(PT(10), SRD_K if what == "k" else SRD_V, s_kvb)]
            elif what == "o":
                tl += [valu("v_mul_u32_u24", PT(10), 491520 - 128, PT(9)), pf_load(PT(10), SRD_WO, s_ob)]
            elif what == "p":
                tl += [valu("v_mul_u32_u24", PT(10), 245760 - 128, PT(9)), pf_load(PT(10), SRD_WS, s_pst[0])]
        pro += tl
    pro += pfs
    if cfg["pf_code"]:
        for k, st_ in enumerate(code_steps):
            if st_ < 0 and not (cfg["pf_entry"] and k == 0): pro += code_pf(f"L_code+{16384 * k}", sub=int(cfg["pf_sub"]))
    if cfg["pf_code_all"]:
        pro += [valu("v_lshlrev_b32", PT(9), 7, TID), valu("v_mov_b32", PT(10), S(2)), valu("v_lshlrev_b32", PT(10), 9, PT(10)),
                valu("v_add_u32", PT(9), PT(9), PT(10)),
                I("s_getpc_b64 s[56:57]", "salu"), label("L_pcall"), raw("s_add_u32 s56, s56, L_code-L_pcall"), raw("s_addc_u32 s57, s57, 0"),
                raw(f"v_mov_b32 v{VPC[1] + 1}, s57", "valu"), raw(f"v_add_co_u32 v{VPC[1]}, vcc, s56, {rtxt(PT(9))}", "valu"), raw("s_nop 1"),
                raw(f"v_addc_co_u32 v{VPC[1] + 1}, vcc, 0, v{VPC[1] + 1}, vcc", "valu"),
                raw(f"v_cmp_gt_u32 vcc, 4, {rtxt(TID)}", "valu"), raw("s_and_saveexec_b64 s[56:57], vcc"),
                raw("s_cbranch_execz L_pcall_skip"),
                I(f"global_load_dword {rtxt(JUNK)}, {rtxt(VPC)}, off", "salu", [], []), label("L_pcall_skip"),
                raw("s_mov_b64 exec, s[56:57]")]
    if cfg["p4"]: pro += g_lane_consts()
    if int(cfg["pf_start_step"]) == -1: pro += start
    pro += [WaitTag([("item", it.name) for it in g.seq if it.need == -1]), barrier()]
    cnt_blk = []
    if cfg["fused"]:
        TMP = S(96, 4)
        vone = V(212) if cfg["fast_pro"] else PT(8)
        cnt_blk = srd(TMP, None, 256, s_dbgp) + [salu("s_lshl_b32", t0, s_b, 4), valu("v_mov_b32", vone, 1), WaitTag([("clr",)]),
                I(f"buffer_atomic_add {rtxt(vone)}, {rtxt(VFO)}, {rtxt(TMP)}, {rtxt(t0)} offen", "store", [], [vone, VFO, TMP, t0], tag=("cnt",))]
        if not cfg["fast_pro"]: pro += cnt_blk
    pro += g.x_reads3(g.X[(0, 0)]) + g.first_reads3(g.item[0]) + [wait(lgkm=4)]
    pro.append(label("L_code"))

    if cfg["fast_pro"]: g.pre[5] += cnt_blk
    g.build_frames()
    g.place_dma()
    g.place_reg_tiles()
    g.place_fixes()
    def put(s, gi, ins_list):
        gp = g.gaps[s][gi]
        for x in ins_list:
            if x.cls in ("vmem",): gp.vm.append(x)
            else: gp.sc.append(x)
    def tlb_touch(h, tmp):
        st = int(cfg["tlb_stride"])
        n = (196608 + st - 1) // st
        o = [valu("v_mul_u32_u24", tmp, st, TID), valu("v_mov_b32", V(tmp[1] + 1), OOB),
             raw(f"v_cmp_gt_u32 vcc, {n}, {rtxt(TID)}", "valu"), raw("s_nop 1"),
             raw(f"v_cndmask_b32 {rtxt(tmp)}, v{tmp[1] + 1}, {rtxt(tmp)}, vcc", "valu"),
             salu("s_add_u32", t0, s_kvb, h * 196608)]
        for sr in (SRD_K, SRD_V):
            x = pf_load(tmp, sr, t0)
            x.txt += " nt"
            o.append(x)
        return o
    if int(cfg["tlb0"]) >= 0: g.pre[int(cfg["tlb0"])] += tlb_touch(0, V(192))
    if int(cfg["tlb1"]) >= 0: g.pre[int(cfg["tlb1"])] += tlb_touch(1, V(128))
    if int(cfg["pf_start_step"]) >= 0:
        g.pre[int(cfg["pf_start_step"])] += start
    if cfg["w1_split"]:
        steps_ = [int(x) for x in str(cfg["w1_split"]).split(".")]
        n_ = 30 // len(steps_)
        for k, st_ in enumerate(steps_):
            g.pre[st_] += [valu("v_subrev_u32", V(213), n_ * k, V(215)), valu("v_mov_b32", V(214), OOB),
                           raw(f"v_cmp_gt_u32 vcc, {n_}, v213", "valu"), raw("s_nop 1"),
                           raw(f"v_cndmask_b32 v214, v214, {rtxt(VTK[0])}, vcc", "valu"),
                           salu("s_add_u32", t0, S(100), 384), pf_load(V(214), SRD_W, t0)]
        g.pre[steps_[0]] = [valu("v_and_b32", V(215), 63, TID)] + g.pre[steps_[0]]
    elif int(cfg["pf_w1"]) == 19:
        g.post[19] = [salu("s_add_u32", t0, S(100), 384), pf_load(VTK[0], SRD_W, t0)] + g.post[19]
    elif int(cfg["pf_w1"]) >= 0:
        put(int(cfg["pf_w1"]), 9, [salu("s_add_u32", t0, S(100), 384)])
        put(int(cfg["pf_w1"]), 11, [pf_load(VTK[0], SRD_W, t0)])
    if cfg["wo_split"]:
        steps_ = [int(x) for x in str(cfg["wo_split"]).split(".")]
        n_ = 60 // len(steps_)
        for k, st_ in enumerate(steps_):
            g.pre[st_] += [valu("v_mov_b32", V(214), OOB), raw(f"v_cmp_gt_u32 vcc, {n_}, {rtxt(V(215))}", "valu"), raw("s_nop 1"),
                           raw(f"v_cndmask_b32 v214, v214, {rtxt(VTK[1])}, vcc", "valu"),
                           salu("s_add_u32", t0, S(101), 128 * n_ * k), pf_load(V(214), SRD_WO, t0)]
        g.pre[steps_[0]] = [valu("v_and_b32", V(215), 63, TID)] + g.pre[steps_[0]]
    elif int(cfg["pf_wo"]) == 52:
        g.post[51] += [pf_load(VTK[1], SRD_WO, S(101))]
    elif int(cfg["pf_wo"]) >= 0:
        put(int(cfg["pf_wo"]), 11, [pf_load(VTK[1], SRD_WO, S(101))])
    if cfg["pf_code"]:
        for k, st_ in enumerate(code_steps):
            if st_ >= 0: g.pre[st_] += code_pf(f"L_code+{16384 * k}", sub=int(cfg["pf_sub"]))
    if cfg["p4"]:
        g.pre[10] += g_scalars()
        g.post[90] += g.g_check_block()

    if cfg["fused"]:
        g.pre[80] += srd(SRD_DBG2, None, 256, s_dbgp) + [salu("s_lshl_b32", s_b16, s_b, 4),
                      I(f"buffer_load_dword {rtxt(VCHK)}, {rtxt(VFO)}, {rtxt(SRD_DBG2)}, {rtxt(s_b16)} offen sc1", "vmem", [VCHK],
                        [VFO, SRD_DBG2, s_b16], tag=("chk",))]
    if cfg["hide_n"]:
        g.rinv_fill(0); g.rinv_fill(1)
        g.n0_fill()
        if cfg["p4"]:
            g.post[103] += g.g_n1_block()
        else:
            g.n1_fill()
            if cfg["fused"]:
                g.post[103] += g.hu_setup()
    for h in range(2):
        g.a_fill(h)
        g.post[52 * h + 19] += g.dump_block.get(52 * h + 19, []) + g.q_pack()
        if not cfg["hide_n"]:
            g.post[52 * h + 51] += g.n_block(h)
    if cfg["p4"]: g.g_fill()
    else: g.o_fill()

    body = []
    marks = {0: 1, 20: 3, 52: 5, 72: 7}
    ends = {19: 2, 51: 4, 71: 6, 103: 8}
    for s in range(g.NS):
        body.append(label(f"L_st{s}"))
        if T and s in marks: body += stamp(marks[s])
        body += g.pre[s]
        for gp in g.gaps[s]: body += gp.flat()
        if T and s in ends: body += stamp(ends[s])
        body += g.post[s]

    fin = []
    if T:
        fin += stamp(9)
    fin += [raw("s_waitcnt vmcnt(0)")]
    if T:
        fin += [I("s_memtime s[56:57]", "salu"), I("s_memrealtime s[88:89]", "salu"), raw("s_waitcnt lgkmcnt(0)"),
                salu("s_mov_b32", S(74), S(56)), salu("s_mov_b32", S(90), S(88)), salu("s_sub_u32", S(88), S(88), S(86))]
        lst = [64, 65, 66, 67, 68, 69, 70, 71, 72, 73, 74, 88, 86, 90] + ([94] if cfg['stamp_entry'] else [])
        for k, sr in enumerate(lst): fin.append(valu("v_mov_b32", V(k), S(sr)))
        fin += [salu("s_lshl_b32", t0, S(2), 6), salu("s_add_u32", t0, t0, 300 * 1024 * 1024), valu("v_mov_b32", V(20), 0),
                raw(f"v_cmp_eq_u32 vcc, 0, {rtxt(TID)}", "valu"), raw("s_and_saveexec_b64 s[56:57], vcc")]
        for k in range(0, 16, 4): fin.append(vstore(V(k, 4), V(20), SRD_WS, t0, 4 * k))
        fin += [raw("s_waitcnt vmcnt(0)")]
        if cfg["steptime"]:
            fin += [raw("s_mov_b64 exec, -1"), salu("s_mul_i32", t0, S(2), 768), salu("s_add_u32", t0, t0, 320 * 1024 * 1024),
                    raw(f"v_cmp_gt_u32 vcc, 64, {rtxt(TID)}", "valu"), raw("s_and_saveexec_b64 s[56:57], vcc"),
                    valu("v_lshlrev_b32", V(20), 2, TID)]
            for k in range(3): fin.append(vstore(V(253 + k), V(20), SRD_WS, t0, 256 * k, width=1))
            fin += [raw("s_waitcnt vmcnt(0)")]
    fin += [label("L_main_exit"), raw("s_endpgm")]

    seq = pro + body
    state = {"checked": set(), "published": set()}
    for x in seq:
        if x.cls == "label" and str(x.info).startswith("L_sp") and str(x.info).endswith("_ok"):
            state["checked"].add(x.info[4:-3])
        elif x.cls == "barrier":
            state["published"] |= state["checked"]
        elif x.cls == "vmem" and isinstance(x.tag, tuple) and x.tag and x.tag[0] == "red":
            rho = x.tag[1]
            if cfg["p4"]:
                assert "f" in state["published"], ("partial load not ordered after its check", x.tag)
                continue
            ok = str(rho) in state["published"] or "f" in state["published"] or ("l" in state["published"] and rho < 6) or (rho == 6 and "9" in state["published"])
            assert ok, ("partial load not ordered after its check", x.tag, state)
    if cfg["p4"]:
        st2 = {"checked": set(), "published": set()}
        for x in seq:
            if x.cls == "label" and str(x.info).startswith("L_sp") and str(x.info).endswith("_ok"): st2["checked"].add(x.info[4:-3])
            elif x.cls == "barrier": st2["published"] |= st2["checked"]
            elif x.cls == "vmem" and isinstance(x.tag, tuple) and x.tag and x.tag[0] == "bl":
                hh = g.g_kstep(x.tag[1])[1]
                assert "b" in st2["published"], ("O load not ordered after its check", x.tag)
    res, errs, _, maxout = resolve_and_check(seq, "main")
    for e in errs[:30]: print("ERR", e, file=sys.stderr)
    assert not errs, len(errs)
    assert maxout <= 63, maxout
    final = []
    for w in seq:
        if isinstance(w, WaitTag):
            vals = [v for v in res[id(w)] if v is not None]
            vm, lgk = (min(vals) if vals else None), (w.lres if w.info[1] == "auto" else w.info[1])
            if vm is None and lgk is None:
                continue
            final.append(wait(vm, lgk))
        else:
            final.append(w)
    seq = final
    _, errs, _, _ = resolve_and_check(seq, "final")
    for e in errs[:30]: print("ERR", e, file=sys.stderr)
    assert not errs, len(errs)
    stubs = []
    for k, p in enumerate(g.rare_sites):
        stubs += [label(f"L_rs{k}"), I(f"s_call_b64 {rtxt(s_ret)}, L_rare{p}", "branch"), branch("s_branch", f"L_rr{k}")]
    rare = g.rare_code(0) + g.rare_code(1)
    return seq + fin + stubs + rare


SRD_DBG2 = SRD_DBG

MACROS = """.macro MF d,a,b,c
v_mfma_f32_16x16x32_bf16 \\d,\\a,\\b,\\c
.endm
.macro TR d,a,o
ds_read_b64_tr_b16 \\d,\\a offset:\\o
.endm
.macro RD d,a,o
ds_read_b128 \\d,\\a offset:\\o
.endm
"""


def compact(line):
    import re
    t = line.strip()
    if t.startswith("v_mfma_f32_16x16x32_bf16 "):
        return "MF " + t.split(" ", 1)[1].replace(", ", ",")
    m = re.match(r"ds_read_b64_tr_b16 (\S+), (\S+) offset:(\d+)$", t)
    if m: return f"TR {m.group(1)},{m.group(2)},{m.group(3)}"
    m = re.match(r"ds_read_b128 (\S+), (\S+) offset:(\d+)$", t)
    if m: return f"RD {m.group(1)},{m.group(2)},{m.group(3)}"
    return t.replace(", ", ",")


HEADER = """; Fused multi-head attention block for MI355X (gfx950); assembly produced by my own generator script.
"""


def text_of(cfg, m, pad):
    kname = KNAME if cfg["single"] else "mha_main_kernel"
    lds = int(cfg["R"]) * SLOT
    s = HEADER + ("; p4: split-K output projection\n" if cfg["p4"] else "")
    if cfg["single"]:
        s += f"; @launch grid=(256,1,1) block=(256,1,1) lds={lds}\n"
    else:
        s += f"; @launch kernel=mha_main_kernel grid=(256,1,1) block=(256,1,1) lds={lds}\n"
        if not cfg["fused"]:
            s += "; @launch kernel=mha_reduce_kernel grid=(960,1,1) block=(256,1,1) lds=0\n"
    s += '.amdgcn_target "amdgcn-amd-amdhsa--gfx950"\n'
    if cfg["macros"]: s += MACROS
    s += ".text\n"
    ks = [(kname, m)]
    if not cfg["fused"]: ks.append(("mha_reduce_kernel", G.reducer_kernel(cfg)))
    for nm, code in ks:
        lines = []
        for i in code:
            for ln in i.txt.split("\n"):
                lines.append(compact(ln) if cfg["macros"] and i.cls != "label" else ln)
        s += f".globl {nm}\n.p2align 8\n.type {nm},@function\n" + "\n".join(lines).replace("mha_main_kernel:", kname + ":") + "\n"
    s += f".fill {pad}, 4, 0xBF800000\nL_text_end:\n"
    s += '.section .rodata,"a"\n.p2align 6\n' + kd(kname, 512, 256)
    if not cfg["fused"]: s += ".p2align 6\n" + kd("mha_reduce_kernel", 88, 88)
    return s


def assemble_syms(text):
    open("_g3.s", "w").write(text)
    r = subprocess.run(["clang", "-x", "assembler", "-target", "amdgcn-amd-amdhsa", "-mcpu=gfx950", "-c", "_g3.s", "-o", "_g3.o"],
                       capture_output=True, text=True)
    assert r.returncode == 0, r.stderr[:2000]
    sy = subprocess.run(["llvm-readelf", "-s", "_g3.o"], capture_output=True, text=True).stdout
    return {ln.split()[-1]: int(ln.split()[1], 16) for ln in sy.splitlines() if " L_" in ln and len(ln.split()) >= 8}


def build(cfg, path):
    import importlib
    cfg = dict(cfg)
    cfg["_code_steps"] = [-1] + [max(0, 21 * k - 10) for k in range(1, 8)]
    for it in range(2):
        G.code_pf.n = 0
        m = main_kernel(cfg)
        addr = assemble_syms(text_of(cfg, m, 64))
        base = addr["L_code"]
        end = addr["L_main_exit"] - base
        npiece = (end + 16383) // 16384
        steps = []
        for k in range(npiece):
            ns = 152 if cfg["p4"] else 144
            first = min([s for s in range(ns) if addr[f"L_st{s}"] - base + 1024 > 16384 * k] or [ns - 1])
            s_ = first - int(cfg["code_lead"])
            steps.append(-1 if s_ < 0 else s_)
        cfg["_code_steps"] = steps
    G.code_pf.n = 0
    m = main_kernel(cfg)
    addr = assemble_syms(text_of(cfg, m, 64))
    span = max(16384 * len(cfg["_code_steps"]), 131072)
    need = addr["L_code"] + span + 256 - addr["L_text_end"]
    pad = 64 + max(0, (need + 3) // 4)
    s = text_of(cfg, m, pad)
    open(path, "w").write(s)
    n_main = sum(1 for i in m if i.cls != "label")
    print(f"wrote {path}: {len(s)} bytes, {n_main} instrs, code {addr['L_main_exit'] - addr['L_code']} B, pad {pad}, code pf steps {cfg['_code_steps']}", file=sys.stderr)


if __name__ == "__main__":
    cfg = dict(CFG)
    path = "out3.s"
    for a in sys.argv[1:]:
        if "=" in a:
            k, v = a.split("=", 1)
            assert k in cfg, k
            cfg[k] = {"True": True, "False": False}.get(v, v)
        else:
            path = a
    build(cfg, path)
```

```python
import sys
import subprocess
import numpy as np
from asmlib import *
import gen as G
from gen import (ACC, SB, SBr, PB, PBr, TT, NEGM, NEGMr, L, LT, MT, OACC, CT, CTr, QF, QFr, AK, AV, AW, AO, DKV, DA, DB, DO,
                 AX, PSV, PT, TID, JUNK, VPC, VL128, VTK, VFO, VCHK, RD, SEL, FLG, VPOLL, VFV, VOUT, VZ, PSL, PART_OFF, FLAG_OFF,
                 SRD_DBG, SRD_OUT, s_outp, s_dbgp, s_b16, s_kw, s_pb, s_ro, s_rl, OA, OAr, O0P, O0Pr, FB, FBh,
                 SRD_A, SRD_K, SRD_V, SRD_WO, SRD_WS, SRD_B, s_w3072, s_pst, s_thr, s_c2, s_h0, s_b, s_pj, s_w, s_t, s_ret,
                 THR_BITS, C_BITS, SLOT, build_lane_consts, autonop, srd, pf_load, code_pf, kd, KNAME, Gen, a_item)
import sched

CFG = dict(
    nt_kv=True, timing=False, steptime=False, pst_flags=" sc1", red_flags=" sc1",
    dspair_v=True, dspair_k=False, dspair_w=False, no_st=False, map_nb=8,
    fused=True, single=False, kv_same=False,
    R=13, P=3, P0=None, DW=4, DX=3, NW0=6, NX0=2, xres=23,
    kv_rot=False, rot_shift=0, rot_mul=1,
    tlb0=-1, tlb1=-1, tlb_stride=4096,
    npair0=0, DX0=0, NX00=0, nt_w0=False, nt_w1=False, nt_x0=False, nt_x1=False,
    RP=0, npair=2, rp_start0=3, rp_start1=0, rp_space=1.2,
    DW0=0, NW00=0, tlb='', park0='', park1='', d_flag=2, d_poll=1, d_chk=2, d_mfma=3, hu_in=6, hu_per=3, poll_wave=1, g_poll=4, g_chk=1, g_hide_tail=True, p4=True, o0_start=94, o0_per=2, o0_poll=96, DO=7, d_bl=7, d_oflag=4, g_oflag=3, hide_setup=True, hu_pre=True, spin_sleep=2, stamp_entry=False, fast_pro=True, out_flags='', pf_sub=8, pf_entry=False, hide_n=True, wo_split='53.57.61.65', w1_split='', pro_max=7, early_max=4, early_steps=3,
    pf_code=True, pf_w1=8, pf_wo=52, pf_start="xw", pf_start_step=0, code_lead=14, pf_code_all=False, macros=True,
)

SRD_X, SRD_W = SRD_A, SRD_B
G.SRD_DBG = S(4, 4)
SRD_DBG = G.SRD_DBG
s_kvb, s_wb, s_xb, s_ob = S(33), S(34), S(37), S(38)
s_do = [S(35), S(36)]
s_w6144 = S(41)
NSTEP = 144


VCHK = V(143)
AWR = V(246)
s_rp = S(39)
VOX = V(246)
PSL16 = V(243)
RIN2 = [V(112, 2), V(114, 2), V(116, 2)]
s_bl2 = [S(62), S(63)]
s_oout, s_pin = S(61), S(75)
OX_OFF = 72 << 20
PX_OFF = 112 << 20
s_gq = [S(76), S(77), S(78), S(79)]
s_oq = [None, S(80), S(81), S(82)]
s_oown, s_px, s_bl, s_mgrp, s_mfin = S(83), S(84), S(85), S(91 + 4), S(91 + 3)
s_n0, s_kvb1 = S(40), S(42)
s_rl2 = [S(63), S(62)]
VHL = V(132)


def o_cs(j, reorder):
    if reorder and j < 8:
        return [(0, 0), (0, 1), (1, 0), (1, 1), (0, 2), (0, 3), (1, 2), (1, 3)][j]
    return j // 4, j % 4


def GACC(t, qb): return V((t * 3 + qb) * 4, 4)


def XF(u, half, qb): return V(144 + ((u % 2) * 2 + half) * 12 + 4 * qb, 4)


class Gen3(Gen):
    def __init__(self, cfg):
        self.cfg = cfg
        self.rare_sites = []
        i = lambda k: int(cfg[k])
        self.R = i("R")
        self.seq, self.X, self.W, self.KV, self.O = sched.build(
            R=self.R, P=i("P"), DW=i("DW"), DX=i("DX"), NW0=i("NW0"), NX0=i("NX0"),
            P0=None if cfg["P0"] in (None, "None") else int(cfg["P0"]), xres=i("xres"),
            pro_max=i("pro_max"), early_max=i("early_max"), early_steps=i("early_steps"),
            park0=[int(x) for x in str(cfg["park0"]).split(".")] if cfg["park0"] else None,
            park1=[int(x) for x in str(cfg["park1"]).split(".")] if cfg["park1"] else None,
            DW0=int(cfg["DW0"]) or None, NW00=int(cfg["NW00"]) or None, RP=i("RP"), npair=i("npair"),
            n_o=48 if cfg["p4"] else 40, DO=int(cfg["DO"]) if cfg["p4"] else None, rp_load=self.rp_load_step, npair0=int(cfg["npair0"]) or None, DX0=int(cfg["DX0"]) or None, NX00=int(cfg["NX00"]) or None)
        self.item = []
        for h in range(2):
            self.item += [self.W[(h, t)] for t in range(20)] + [self.KV[(h, j)] for j in range(32)]
        self.p4 = bool(cfg["p4"])
        self.NO = 48 if self.p4 else 40
        self.NS = 104 + self.NO
        self.item += [self.O[j] for j in range(self.NO)]
        self.gaps = [None] * self.NS
        self.pre = {s: [] for s in range(self.NS)}
        self.post = {s: [] for s in range(self.NS)}
        self.regs = {"K": AK, "V": AV, "W": AW, "O": AO}
        if self.p4:
            self.regs = {"K": AK, "V": AV, "W": AW, "Oa": AO[:2], "Ob": AO[2:]}
        self.plan = {}
        for kind in self.regs:
            its = [it for it in self.item if self.akind(it) == kind]
            k = 0
            while k < len(its):
                lo = hi = its[k].slot
                e = k
                while e + 1 < len(its):
                    nl, nh = min(lo, its[e + 1].slot), max(hi, its[e + 1].slot)
                    if nh - nl > 4: break
                    lo, hi = nl, nh
                    e += 1
                for q in range(k, e + 1): self.plan[its[q].name] = lo * SLOT
                k = e + 1
        self.base = {kind: [0] * len(self.regs[kind]) for kind in self.regs}
        self.nunit = 0
        self.fixes = {}
        self.dump_block = {}
        self.rp1_first = {}

    def akind(self, it):
        if it.kind == "O" and self.p4: return "Oa" if it.n % 2 == 0 else "Ob"
        return it.kind

    def rp_load_step(self, h, k):
        s = int(float(self.cfg["rp_start0" if h == 0 else "rp_start1"]) + k * float(self.cfg["rp_space"]))
        if h == 1 and self.cfg["hide_n"]:
            s = max(s, int(2.45 * (k // 2 + 1)) + 1)
        return s

    def place_fixes(self):
        for s, lst in self.fixes.items():
            gaps = self.gaps[s]
            for x, lo, hi in lst:
                c = [g for g in range(lo, hi + 1) if gaps[g].free() == 1 and not gaps[g].vm and g != 23]
                if not c: c = [g for g in range(lo, hi + 1) if gaps[g].free() >= 1 and not gaps[g].vm and g != 23]
                if not c: c = [hi]
                gaps[c[0]].va.append(x)

    def frag_reads3(self, it, f, buf):
        win = self.plan[it.name]
        off = it.slot * SLOT - win
        kind = it.kind
        if kind == "K":
            kt, kb = f // 6, f % 6
            ri = kb % 2
            return [(ds_read("ds_read_b128", FB(buf, f % 2), AK[ri], off + kt * 6144 + (kb // 2) * 128), ri, win)]
        if kind == "O" and self.p4:
            ri = f % 2
            o, d2 = off + 64 * (f // 2), 6144
        else:
            ri, j = f % 4, f // 4
            o, d2 = {"V": (off + 128 * j, 6144), "W": (off + 128 * j, 1536), "O": (off + 4096 * j, 2048)}[kind]
        r = self.regs[self.akind(it)][ri]
        return [(ds_read("ds_read_b64_tr_b16", FBh(buf, f % 2, 0), r, o), ri, win),
                (ds_read("ds_read_b64_tr_b16", FBh(buf, f % 2, 1), r, o + d2), ri, win)]

    def fix(self, kind, ri, win):
        B = self.base[kind]
        if B[ri] == win: return None
        d = win - B[ri]
        B[ri] = win
        r = self.regs[kind][ri]
        return valu("v_add_u32", r, d, r) if d > 0 else valu("v_subrev_u32", r, -d, r)

    def place_reads3(self, gaps, g0, it, grp, cur=None, buf=None):
        rl = []
        for f in (2 * grp, 2 * grp + 1):
            rl += self.frag_reads3(it, f, grp % 3 if buf is None else buf)
        fx = [x for x in (self.fix(self.akind(it), ri, win) for _, ri, win in rl) if x is not None]
        if fx and it.kind == "O" and self.p4:
            self.pending_fix += [(x, 2, g0 - 1) for x in fx]
        elif fx:
            same = (cur is not None and cur.kind == it.kind)
            if it.kind == "K":
                lo = 20 if same else 2
            elif g0 == 24:
                lo = 16 if same else 2
            else:
                lo = 22 if same else 2
            self.pending_fix += [(x, lo, g0 - 1) for x in fx]
        pair = self.cfg["dspair_k"] if it.kind == "K" else (self.cfg["dspair_v"] if it.kind == "V" else self.cfg["dspair_w"])
        for k, (ins, ri, win) in enumerate(rl):
            gaps[g0 + (k // 2 if pair else k)].ds.append(ins)
        return len(rl)

    def first_reads3(self, it):
        out = []
        for grp in range(2):
            for f in (2 * grp, 2 * grp + 1):
                for ins, ri, win in self.frag_reads3(it, f, grp % 3):
                    x = self.fix(self.akind(it), ri, win)
                    if x is not None: out.append(x)
                    out.append(ins)
        for ri in range(len(self.regs[self.akind(it)])):
            x = self.fix(self.akind(it), ri, self.plan[it.name])
            if x is not None: out.append(x)
        return out

    def x_reads3(self, it):
        u = it.n
        return [ds_read("ds_read_b128", XF(u, half, qb), AX[half], it.slot * SLOT + 2048 * qb) for half in range(2) for qb in range(3)]

    def units(self, it):
        tag = ("item", it.name)
        out = []
        for k in range(it.units):
            so = s_do[self.nunit % 2]
            self.nunit += 1
            nt = False
            if it.kind == "X":
                m0 = salu("s_add_u32", "m0", s_w6144, it.slot * SLOT + 3072 * k)
                off = salu("s_add_u32", so, s_xb, 128 * it.n + 30720 * k)
                vo, sr = DA, SRD_X
                nt = bool(self.cfg["nt_x0"]) if it.h == 0 else bool(self.cfg["nt_x1"])
            else:
                m0 = salu("s_add_u32", "m0", s_w3072, it.slot * SLOT)
                if it.kind in "KV":
                    off = self.kv_off(so, it)
                    vo, sr = DKV, (SRD_K if it.kind == "K" else SRD_V)
                    nt = self.cfg["nt_kv"]
                elif it.kind == "W":
                    off = salu("s_add_u32", so, s_wb, it.h * 384 + it.n * 393216)
                    vo, sr = DB, SRD_W
                    nt = bool(self.cfg["nt_w0"]) if it.h == 0 else bool(self.cfg["nt_w1"])
                elif self.p4:
                    q, hh, kb = self.g_kstep(it.n)
                    off = salu("s_add_u32", so, s_gq[q], (hh * 192 + 32 * kb) * 1280)
                    vo, sr = DO, SRD_WO
                else:
                    c, s = o_cs(it.n, self.cfg["hide_n"])
                    off = salu("s_add_u32", so, s_ob, s * 122880 + c * 128)
                    vo, sr = DO, SRD_WO
            out.append((m0, off, [dma(vo[i], sr, so, 1024 * i, nt, tag=tag) for i in range(3)]))
        return out

    def kv_off(self, so, it):
        if self.cfg["kv_rot"] and not self.cfg["kv_same"]:
            return [salu("s_xor_b32", so, s_n0, it.n), salu("s_mul_i32", so, so, 12288),
                    salu("s_add_u32", so, so, s_kvb if it.h == 0 else s_kvb1)]
        imm = it.h * 196608 + (0 if self.cfg["kv_same"] else it.n * 12288)
        return salu("s_add_u32", so, s_kvb, imm)

    def place_dma(self):
        for b in range(self.NS):
            un = []
            for it in self.seq:
                if it.issue == b and not getattr(it, "reg", False): un += self.units(it)
            assert len(un) <= 4
            if self.p4 and b >= 104:
                pos = [[(0, 22), (1, 4), (1, 10)]]
                assert len(un) <= 1
            elif self.p4 and b == 103:
                pos = [[(0, 28), (1, 4), (1, 10)]]
                assert len(un) <= 1
            elif len(un) == 1:
                pos = [[(0, 28), (1, 4), (1, 16)]]
            elif len(un) == 2:
                pos = [[(0, 28), (0, 34), (1, 4)], [(1, 10), (1, 16), (1, 22)]]
            elif len(un) > 2:
                pos = [[(0, 28), (0, 29), (0, 34)], [(1, 2), (1, 4), (1, 5)], [(1, 8), (1, 10), (1, 11)], [(1, 14), (1, 16), (1, 17)]][:len(un)]
            else:
                pos = []
            for (m0, off, ins), ps in zip(un, pos):
                for i, (ds_, gi) in enumerate(ps):
                    g = self.gaps[b + ds_]
                    if i == 0:
                        if isinstance(off, list):
                            (g[gi - 3] if gi >= 3 else self.gaps[b + ds_ - 1][36 + gi - 3]).sc.append(off[0])
                            g[gi - 2].sc += [off[1], m0]; g[gi - 1].sc.append(off[2])
                        else:
                            g[gi - 2].sc.append(m0)
                            g[gi - 1].sc.append(off)
                    if len(un) > 2 and gi % 6 < 4 and g[gi].ds:
                        pass
                    g[gi].vm.append(ins[i])

    def place_reg_tiles(self):
        self.dbase = 0
        for h in range(2):
            its = [self.KV[(h, j)] for j in range(32) if getattr(self.KV[(h, j)], "reg", False)]
            start = float(self.cfg["rp_start0" if h == 0 else "rp_start1"])
            last_s = -1
            for k, it in enumerate(its):
                s = 52 * h + self.rp_load_step(h, k)
                while len([gi for gi in (5, 11, 17, 29, 35) if not self.gaps[s][gi].vm]) < 3 or s <= last_s: s += 1
                if h == 1: self.rp1_first[k] = s * 36 + min(gi for gi in (5, 11, 17, 29, 35) if not self.gaps[s][gi].vm)
                last_s = s
                assert s + 2 <= it.issue, (it, s)
                g = self.gaps[s]
                off = self.kv_off(s_rp, it)
                if isinstance(off, list):
                    for q, x in enumerate(off): g[1 + q].sc.append(x)
                else:
                    g[3].sc.append(off)
                free = [gi for gi in (5, 11, 17, 29, 35) if not g[gi].vm][:3]
                assert len(free) == 3, (s, free)
                for i, gi in enumerate(free):
                    g[gi].vm.append(vload(A(12 * k + 4 * i, 4), DKV[i], SRD_K if it.kind == "K" else SRD_V, s_rp, 1024 * i,
                                          " nt" if self.cfg["nt_kv"] else "", tag=("reg", it.name)))
                it.rk = k
            for b in sorted({it.issue for it in its}):
                grp = [it for it in its if it.issue == b]
                wr = []
                for it in grp:
                    off = it.slot * SLOT
                    pre = []
                    if not (0 <= off - self.dbase and off - self.dbase + 2048 + 1024 <= 65536):
                        nb = min(off, (self.R - 5) * SLOT)
                        d = nb - self.dbase
                        self.dbase = nb
                        pre = [valu("v_add_u32", AWR, d, AWR) if d > 0 else valu("v_subrev_u32", AWR, -d, AWR)]
                    wr.append((it, pre, [ds_write(AWR, A(12 * it.rk + 4 * i, 4), off - self.dbase + 1024 * i, tag=("dump", it.name)) for i in range(3)]))
                if b % 52 == 19:
                    blk = []
                    for it, pre, w in wr: blk += [WaitTag([("reg", it.name)])] + pre + w
                    self.dump_block[b] = blk
                    continue
                cand = [(b, gi) for gi in range(24, 36)] + [(b + 1, gi) for gi in range(0, 22)]
                ci = 0
                for it, pre, w in wr:
                    first = True
                    for x in w:
                        while True:
                            st_, gi = cand[ci]
                            gp = self.gaps[st_][gi]
                            ok = not gp.vm and gp.free() >= 1 and len(gp.ds) < 2
                            if first and pre:
                                pst, pg = cand[ci - 1] if ci > 0 else (None, None)
                                ok = ok and ci > 0
                            if ok: break
                            ci += 1
                        if first:
                            gp.sc.append(WaitTag([("reg", it.name)]))
                            if pre:
                                pst, pg = cand[ci - 1]
                                self.gaps[pst][pg].va += pre
                            first = False
                        gp.ds.append(x)
                        ci += 1

    def frame3(self, s, mf):
        it = self.item[s]
        nx = self.item[s + 1] if s + 1 < self.NS else None
        gaps = [Gap(mf(i, FB((i // 6) % 3, (i // 3) % 2))) for i in range(36)]
        nds = [0] * 6
        self.pending_fix = []
        for Gi in range(6):
            if Gi < 4:
                nds[Gi] = self.place_reads3(gaps, 6 * Gi, it, Gi + 2)
            elif nx is not None:
                nds[Gi] = self.place_reads3(gaps, 6 * Gi, nx, Gi - 4, cur=it)
        xs = [x for x in self.X.values() if x.need == s]
        if xs:
            rd = self.x_reads3(xs[0])
            for k, gi in enumerate((24, 25, 26, 27, 30, 31)):
                gaps[gi].ds.append(rd[k])
            nds[4] += 4
            nds[5] += 2
        need = [("item", x.name) for x in self.seq if x.need == s]
        for Gi in range(6):
            gi = 6 * Gi + 5
            if Gi == 3 and nx is not None:
                lt = [("dump", x.name) for x in self.seq if x.need == s]
                bar = barrier()
                bar.info = lt
                gaps[gi].sc += [WaitTag(need, lgkm="auto", ltags=lt), bar]
            elif Gi == 5:
                if nx is not None: gaps[gi].sc.append(WaitTag([], lgkm="auto"))
            else:
                gaps[gi].sc.append(WaitTag([], lgkm="auto"))
        self.fixes[s] = self.pending_fix
        if self.cfg["steptime"]:
            gaps[24].post.append(I("s_memtime s[92:93]", "salu"))
            gaps[33].post += [raw("s_waitcnt lgkmcnt(0)"), raw(f"v_writelane_b32 v{253 + s // 64}, s92, {s % 64}", "valu")]
        self.gaps[s] = gaps

    @staticmethod
    def g_kstep(j):
        if j < 12: return 0, j // 6, j % 6
        r = j - 12
        return 1 + r // 12, (r % 12) // 6, r % 6

    def g_bidx(self, j):
        q, hh, kb = self.g_kstep(j)
        return None if q == 0 else j - 12

    def g_breg(self, j, qb):
        q, hh, kb = self.g_kstep(j)
        if q == 0: return O0P(kb, qb) if hh == 0 else QF(kb, qb)
        return A(12 * (self.g_bidx(j) % 12) + 4 * qb, 4)

    def frame_g(self, j):
        s = 104 + j
        it = self.item[s]
        nx = self.item[s + 1] if s + 1 < self.NS else None
        buf = lambda jj, G: (5 * jj + G) % 3

        def mf(i):
            t, qb = i // 3, i % 3
            return mfma(GACC(t, qb), FB(buf(j, i // 6), t % 2), self.g_breg(j, qb), 0 if j == 0 else GACC(t, qb))
        gaps = [Gap(mf(i)) for i in range(30)]
        self.pending_fix = []
        for Gi in range(5):
            if Gi < 3:
                self.place_reads3(gaps, 6 * Gi, it, Gi + 2, buf=buf(j, Gi + 2))
            elif nx is not None:
                self.place_reads3(gaps, 6 * Gi, nx, Gi - 3, cur=it, buf=buf(j + 1, Gi - 3))
        need = [("item", x.name) for x in self.seq if x.need == s]
        if j + 1 < 48 and self.g_bidx(j + 1) is not None: need.append(("bl", j + 1))
        for Gi in range(5):
            gi = 6 * Gi + 5
            if Gi == 2 and nx is not None:
                gaps[gi].sc += [WaitTag(need, lgkm="auto"), barrier()]
            elif Gi == 4:
                if nx is not None: gaps[gi].sc.append(WaitTag([], lgkm="auto"))
            else:
                gaps[gi].sc.append(WaitTag([], lgkm="auto"))
        self.fixes[s] = self.pending_fix
        if self.cfg["steptime"]:
            gaps[18].post.append(I("s_memtime s[92:93]", "salu"))
            gaps[27].post += [raw("s_waitcnt lgkmcnt(0)"), raw(f"v_writelane_b32 v{253 + s // 64}, s92, {s % 64}", "valu")]
        self.gaps[s] = gaps

    def build_frames(self):
        for h in range(2):
            for t in range(20):
                def mf(i, fr, t=t):
                    T, qb = i // 3, i % 3
                    return mfma(ACC(T, qb), fr, XF(t // 2, t % 2, qb), 0 if t == 0 else ACC(T, qb))
                self.frame3(52 * h + t, mf)
            for j in range(32):
                kind, n = a_item(j)
                p = n % 2
                if kind == "K":
                    def mf(i, fr, p=p, n=n):
                        f, qb = i // 3, i % 3
                        kt, kb = f // 6, f % 6
                        c = (0 if n < 2 else NEGM(qb)) if kb == 0 else SB(p, kt, qb)
                        return mfma(SB(p, kt, qb), fr, QF(kb, qb), c)
                else:
                    def mf(i, fr, p=p, n=n):
                        T, qb = i // 3, i % 3
                        return mfma(OA(T, qb), fr, PB(p, qb), 0 if n == 0 else OA(T, qb))
                self.frame3(52 * h + 20 + j, mf)
        if self.p4:
            for j in range(48): self.frame_g(j)
            return
        for j in range(40):
            c, s = o_cs(j, self.cfg["hide_n"])

            def mf(i, fr, s=s, p=c % 2):
                f, qb = i // 3, i % 3
                jj, nt = f // 4, f % 4
                ks = 3 * s + jj
                h, kb = ks // 6, ks % 6
                b = O0P(kb, qb) if h == 0 else QF(kb, qb)
                return mfma(OACC(p, nt, qb), fr, b, 0 if ks == 0 else OACC(p, nt, qb))
            self.frame3(104 + j, mf)

    def a_fill(self, h):
        s0 = 52 * h + 20
        gaps = [g for j in range(32) for g in self.gaps[s0 + j]]
        Gx = lambda j, i=0: 36 * j + i
        mops, fin = self.max_ops(0)
        for o in mops: o.earliest = Gx(1, 0)
        sm0, _ = self.softmax_ops(0, sub_deps=fin, earliest_kt=(Gx(1, 0), Gx(1, 2)))
        pend = list_schedule(gaps, mops + sm0, Gx(1, 0), Gx(2, 0))
        self.post[s0 + 1] += autonop(self.emit_tail(pend)) + [valu("v_mov_b32", L(qb), LT(qb)) for qb in range(3)]
        for n in range(1, 16):
            p = n % 2
            j0 = 2 * n
            j1 = j0 + 2 if n <= 14 else j0 + 1
            sub = [None, None, None] if n == 1 else None
            sm, ltl = self.softmax_ops(p, sub_deps=sub, earliest_kt=(Gx(j0, 0), Gx(j0, 3)), lacc=(n > 1))
            pend = list_schedule(gaps, sm + self.check_ops(ltl, p), Gx(j0, 0), Gx(j1, 0))
            self.post[s0 + j1 - 1] += autonop(self.emit_tail(pend)) + self.check_branch(p)
            if n == 15: self.post[s0 + j1 - 1] += self.l_acc()

    RINV = [V(192), V(193), V(194)]

    def rinv_fill(self, h):
        gaps = self.gaps[52 * h + 51]
        y = [MT(3 + qb) for qb in range(3)]
        dst = self.RINV if h == 0 else [MT(8), MT(9), MT(10)]
        ops, prev = [], [None] * 3
        for sw in ("v_permlane32_swap_b32", "v_permlane16_swap_b32"):
            for qb in range(3):
                o = Op(valu("v_mov_b32", y[qb], L(qb)), [(prev[qb], 0)] if prev[qb] else []); ops.append(o); prev[qb] = o
            for qb in range(3):
                o = Op(perm(sw, L(qb), y[qb]), [(prev[qb], 2)]); ops.append(o); prev[qb] = o
            for qb in range(3):
                o = Op(valu("v_add_f32", L(qb), L(qb), y[qb]), [(prev[qb], 1)]); ops.append(o); prev[qb] = o
        for qb in range(3):
            o = Op(vrcp(dst[qb], L(qb)), [(prev[qb], 0)]); ops.append(o)
        assert not list_schedule(gaps, ops, 0, 36)

    def norm_ops(self, h, tsets, rinv):
        ops, last_use, rd_last, unit_last = [], [[] for _ in tsets], {}, {}
        store_dep = [None for _ in tsets]
        k = 0
        for kb in range(6):
            for qb in range(3):
                ts = k % len(tsets)
                t = tsets[ts]
                dep0 = [(x, 0) for x in last_use[ts]] + ([(store_dep[ts], 2)] if store_dep[ts] else [])
                rds = []
                for tt, T in enumerate((2 * kb, 2 * kb + 1)):
                    for r in range(4):
                        o = Op(I(f"v_accvgpr_read_b32 v{t + 4 * tt + r}, {rtxt(OAr(T, qb, r))}", "valu", [V(t + 4 * tt + r)], [OAr(T, qb, r)]), list(dep0))
                        ops.append(o); rds.append(o)
                        rd_last[T] = o
                mul = []
                for r in range(8):
                    o = Op(valu("v_mul_f32", V(t + r), V(t + r), rinv[qb]), [(rds[r], 0)]); ops.append(o); mul.append(o)
                cv = []
                for r in range(4):
                    d = V(t + r) if h == 0 else QFr(kb, qb, r)
                    deps = [(mul[2 * r], 0), (mul[2 * r + 1], 0)] + ([(cv[-1], 0)] if cv and h == 0 else [])
                    o = Op(valu("v_cvt_pk_bf16_f32", d, V(t + 2 * r), V(t + 2 * r + 1)), deps); ops.append(o); cv.append(o)
                fin = cv
                if h == 0:
                    fin = []
                    for r in range(4):
                        o = Op(I(f"v_accvgpr_write_b32 {rtxt(O0Pr(kb, qb, r))}, v{t + r}", "valu", [O0Pr(kb, qb, r)], [V(t + r)]), [(cv[r], 0), (cv[-1], 0)])
                        ops.append(o); fin.append(o)
                if h == 0 and self.p4 and int(self.cfg["o0_start"]) < 0:
                    deps = [(cv[-1], 0)] + ([(self._ost_adv, 0)] if getattr(self, "_ost_adv", None) else [])
                    st = Op(vstore(V(t, 4), VOX, SRD_WS, s_bl, 1024 * qb, " sc1", tag=("ost", 0)), deps)
                    ops.append(st)
                    fin = fin + [st]
                    self._ost_last = st
                    if qb == 2 and kb < 5:
                        self._ost_adv = Op(salu("s_add_u32", s_bl, s_bl, 3072), [(st, 0)])
                        ops.append(self._ost_adv)
                    last_use[ts] = [(x) for x in fin]
                    store_dep[ts] = st
                else:
                    last_use[ts] = fin
                unit_last[(kb, qb)] = fin
                k += 1
        return ops, rd_last, unit_last

    def n0_fill(self):
        gaps = [g for s in range(52, 72) for g in self.gaps[s]]
        ops, rd_last, _ = self.norm_ops(0, [198, 206], self.RINV)
        pend = list_schedule(gaps, ops, 0, 36 * 19)
        assert not pend, len(pend)
        if self.p4 and int(self.cfg["o0_start"]) >= 104:
            pass
        elif self.p4 and int(self.cfg["o0_start"]) >= 0:
            self.o0_stores()
        elif self.p4:
            fs = self._ost_last.gap // 36 + int(self.cfg["d_oflag"])
            assert fs <= 19, fs
            self.add_wait_tag(gaps, fs, ("ost", 0))
            gaps[36 * fs + 24].va.insert(0, valu("v_mov_b32", V(214), 1))
            gaps[36 * fs + 29].vm.append(vstore(V(214), VFO, SRD_WS, s_t[5], 0, " sc1", tag=("flag",), width=1))
        self.n0_free = {T: 52 * 36 + o.gap for T, o in rd_last.items()}
        for k, g0 in self.rp1_first.items():
            assert self.n0_free[k] < g0, (k, self.n0_free[k], g0)

    def o0_stores(self):
        s0, per = int(self.cfg["o0_start"]), int(self.cfg["o0_per"])
        s, k = s0, 0
        units = [(kb, qb) for kb in range(6) for qb in range(3)]
        while k < 18:
            g = self.gaps[s]
            free = [gi for gi in (5, 11, 17, 29, 35) if not g[gi].vm and g[gi].free() >= 2][:per]
            for gi in free:
                if k == 18: break
                kb, qb = units[k]
                if qb == 0:
                    g[gi - 2].sc.append(salu("s_add_u32", s_bl, s_oown, 3072 * kb))
                g[gi].vm.append(vstore(O0P(kb, qb), VOX, SRD_WS, s_bl, 1024 * qb, " sc1", tag=("ost", 0)))
                k += 1
            s += 1
        assert s <= 104, s
        return
        fs = s - 1 + int(self.cfg["d_oflag"])
        allg = [x for st_ in range(self.NS) if self.gaps[st_] for x in self.gaps[st_]]
        for x in self.gaps[fs][23].sc:
            if isinstance(x, WaitTag): x.tag = ("waittag", x.tag[1] + (("ost", 0),))
        vt = V(214) if fs < 72 else V(139)
        self.gaps[fs][24].va.insert(0, valu("v_mov_b32", vt, 1))
        gi = [q for q in (29, 35) if not self.gaps[fs][q].vm][0]
        self.gaps[fs][gi].vm.append(vstore(vt, VFO, SRD_WS, s_t[5], 0, " sc1", tag=("flag",), width=1))
        self.o0_flag_step = fs

    def n1_fill(self):
        gaps = [g for j in range(8) for g in self.gaps[104 + j]]
        rinv = [MT(8), MT(9), MT(10)]
        ops, _, unit_last = self.norm_ops(1, [112, 120], rinv)
        done = []
        lim = {kb: 36 * (4 + kb // 3) + 12 * (kb % 3) - 1 for kb in range(6)}
        g = 0
        rest = ops
        for kb in range(6):
            mine = [o for o in rest if any(o in unit_ops for unit_ops in [self._unit_ops(ops, kb)])]
            pend = list_schedule(gaps, mine, g, lim[kb])
            if pend:
                gi = lim[kb]
                gaps[gi].post += autonop([o.ins for o in pend]) + [nop(1)]
                for o in pend: o.gap = gi + 1
            rest = [o for o in rest if o not in mine]

    def _unit_ops(self, ops, kb):
        return ops[60 * kb:60 * kb + 60]

    def n_block(self, h):
        out = []
        if h == 1 and self.cfg["fused"]:
            out += self.hu_setup()
        out += self.rinv_ops()
        tmp = [V(0 + 8 * k, 8) for k in range(3)]
        pk = [V(24 + 4 * k, 4) for k in range(3)]
        for kb in range(6):
            for qb in range(3):
                t = tmp[qb][1]
                for tt, T in enumerate((2 * kb, 2 * kb + 1)):
                    for r in range(4):
                        out.append(I(f"v_accvgpr_read_b32 v{t + 4 * tt + r}, {rtxt(OAr(T, qb, r))}", "valu",
                                     [V(t + 4 * tt + r)], [OAr(T, qb, r)]))
            for qb in range(3):
                t = tmp[qb][1]
                for h2 in range(4):
                    out.append(valu("v_pk_mul_f32", V(t + 2 * h2, 2), V(t + 2 * h2, 2), V(MT(8 + 2 * qb)[1], 2)))
            for qb in range(3):
                t = tmp[qb][1]
                for r in range(4):
                    d = V(pk[qb][1] + r) if h == 0 else QFr(kb, qb, r)
                    out.append(valu("v_cvt_pk_bf16_f32", d, V(t + 2 * r), V(t + 2 * r + 1)))
            if h == 0:
                for qb in range(3):
                    for r in range(4):
                        out.append(I(f"v_accvgpr_write_b32 {rtxt(O0Pr(kb, qb, r))}, v{pk[qb][1] + r}", "valu",
                                     [O0Pr(kb, qb, r)], [V(pk[qb][1] + r)]))
        return autonop(out)

    def mask_test(self, k, mask):
        return [I(f"v_cmp_le_u32 vcc, {k}, {rtxt(FLG)}", "valu", [], [FLG]), raw("s_nop 0"),
                raw(f"s_and_b32 {rtxt(s_t[1])}, vcc_lo, {rtxt(mask)}"), raw(f"s_cmp_eq_u32 {rtxt(s_t[1])}, {rtxt(mask)}")]

    def mask_spin(self, k, mask, name, first_wait):
        body = [raw(f"s_sleep {self.cfg['spin_sleep']}"), I(self.poll_load(None).txt, "salu"), raw("s_waitcnt vmcnt(0)")]
        body += [I(x.txt, "salu") for x in self.mask_test(k, mask)]
        o = [first_wait, scmp("s_cmp_eq_u32", s_w, int(self.cfg["poll_wave"])), branch("s_cbranch_scc0", f"{name}_ok")]
        o += self.mask_test(k, mask) + [branch("s_cbranch_scc1", f"{name}_ok"), salu("s_mov_b32", s_t[0], 1 << 18), label(f"{name}_loop")]
        o += [salu("s_sub_u32", s_t[0], s_t[0], 1), branch("s_cbranch_scc1", f"{name}_ok")]
        o += body + [branch("s_cbranch_scc0", f"{name}_loop"), label(f"{name}_ok")]
        return o

    def g_bloads(self, j):
        q, hh, kb = self.g_kstep(j)
        e = self.g_bidx(j) % 12
        so = s_bl2[self.g_bidx(j) % 2]
        return (salu("s_add_u32", so, s_oq[q], hh * 73728 + kb * 3072),
                [vload(A(12 * e + 4 * qb, 4), VOX, SRD_WS, so, 1024 * qb, " sc1", tag=("bl", j)) for qb in range(3)])

    def g_check_block(self):
        o = [WaitTag([("chk",)]), scmp("s_cmp_eq_u32", s_w, 0), branch("s_cbranch_scc0", "L_chk_ok"),
             I(f"v_readfirstlane_b32 {rtxt(s_t[1])}, {rtxt(VCHK)}", "valu", [s_t[1]], [VCHK]), raw("s_nop 3"),
             scmp("s_cmp_ge_u32", s_t[1], 16), branch("s_cbranch_scc1", "L_chk_ok"),
             salu("s_mov_b32", s_t[0], 1 << 18), label("L_chk_loop"),
             salu("s_sub_u32", s_t[0], s_t[0], 1), branch("s_cbranch_scc1", "L_chk_ok"), raw("s_sleep 8"),
             I(f"buffer_load_dword {rtxt(VCHK)}, {rtxt(VFO)}, {rtxt(SRD_DBG)}, {rtxt(s_b16)} offen sc1", "salu"), raw("s_waitcnt vmcnt(0)"),
             I(f"v_readfirstlane_b32 {rtxt(s_t[1])}, {rtxt(VCHK)}", "salu"), raw("s_nop 3"),
             scmp("s_cmp_ge_u32", s_t[1], 16), branch("s_cbranch_scc0", "L_chk_loop"), label("L_chk_ok"),
             salu("s_lshl_b32", s_b16, s_b, 8), salu("s_add_u32", s_b16, s_b16, FLAG_OFF),
             valu("v_subrev_u32", V(138), 64 * int(self.cfg["poll_wave"]), TID),
             valu("v_lshlrev_b32", V(137), 2, V(138)), valu("v_mov_b32", VPOLL, 0x7FFFFF00),
             I("v_cmp_gt_u32 vcc, 16, v138", "valu", [], [V(138)]), nop(1),
             I(f"v_cndmask_b32 {rtxt(VPOLL)}, {rtxt(VPOLL)}, v137, vcc", "valu", [VPOLL], [VPOLL, V(137)])]
        return o

    def g_n1_block(self):
        out = srd(SRD_OUT, None, 16 * 192 * 640 * 2, s_outp) + [salu("s_add_u32", s_bl, s_oown, 73728)]
        rinv = [MT(8), MT(9), MT(10)]
        first = []
        tmp = [V(0 + 8 * k, 8) for k in range(3)]
        in_blk = int(self.cfg["o0_start"]) >= 104
        for kb in range(6):
            if in_blk: out.append(salu("s_add_u32", s_bl2[0], s_oown, 3072 * kb))
            for qb in range(3):
                t = tmp[qb][1]
                if in_blk: out.append(vstore(O0P(kb, qb), VOX, SRD_WS, s_bl2[0], 1024 * qb, " sc1", tag=("ost", 0)))
                for tt, T in enumerate((2 * kb, 2 * kb + 1)):
                    for r in range(4):
                        out.append(I(f"v_accvgpr_read_b32 v{t + 4 * tt + r}, {rtxt(OAr(T, qb, r))}", "valu", [V(t + 4 * tt + r)], [OAr(T, qb, r)]))
            for qb in range(3):
                t = tmp[qb][1]
                for h2 in range(4):
                    out.append(valu("v_pk_mul_f32", V(t + 2 * h2, 2), V(t + 2 * h2, 2), V(RIN2[qb][1], 2)))
            for qb in range(3):
                t = tmp[qb][1]
                for r in range(4):
                    out.append(valu("v_cvt_pk_bf16_f32", QFr(kb, qb, r), V(t + 2 * r), V(t + 2 * r + 1)))
            for qb in range(3):
                out.append(vstore(QF(kb, qb), VOX, SRD_WS, s_bl, 1024 * qb, " sc1", tag=("ost", 1)))
            if kb < 5: out.append(salu("s_add_u32", s_bl, s_bl, 3072))
            for j in first:
                if (self.g_bidx(j) % 12) // 2 == kb:
                    su, ld = self.g_bloads(j)
                    out += [su] + ld
        dup = []
        for qb in range(3):
            dup += [valu("v_mov_b32", V(RIN2[qb][1]), rinv[qb]), valu("v_mov_b32", V(RIN2[qb][1] + 1), rinv[qb])]
        return autonop(dup + out)

    def g_fill(self):
        G0 = 104
        gaps = lambda j: self.gaps[G0 + j]
        d_bl = int(self.cfg["d_bl"])
        fs = int(self.cfg["g_oflag"])
        for x in gaps(fs)[17].sc:
            if isinstance(x, WaitTag): x.tag = ("waittag", x.tag[1] + (("ost", 1), ("ost", 0)))
        gaps(fs)[18].va.insert(0, valu("v_mov_b32", VFV, 2))
        gaps(fs)[23].vm.append(self.flag_store())
        ps = fs + int(self.cfg["g_poll"])
        cs = ps + int(self.cfg["g_chk"])
        gaps(ps)[29].vm.append(self.poll_load(("poll", "o1")))
        self.post[G0 + cs - 1] += self.mask_spin(2, s_mgrp, "L_spb", WaitTag([("poll", "o1")]))
        self.bl_issue = {}
        nxt = 12
        for js in range(cs, 48):
            g = gaps(js)
            sets = [(23, 28, 29)] if js == cs else [(11, 16, 28), (5, 23, 29)]
            chosen = []
            for pos in sets:
                k_ = nxt + len(chosen)
                if k_ >= 48 or k_ - js > d_bl or any(g[gi].vm for gi in pos): continue
                chosen.append(pos)
            chosen.sort()
            for pos in chosen:
                su, ld = self.g_bloads(nxt)
                g[pos[0] - 2].sc.append(su)
                for x, gi in zip(ld, pos): g[gi].vm.append(x)
                self.bl_issue[nxt] = js
                nxt += 1
        assert nxt == 48
        for j, js in self.bl_issue.items():
            assert js < j, (j, js)
            if j - 12 >= 12: assert js > j - 12, (j, js)
        lane, g_, m_, t0, t1, d1 = V(133 + 3), V(137), V(138), V(139), V(124), V(125)
        cnd = lambda d, b: I(f"v_cndmask_b32 {rtxt(d)}, 0, {rtxt(b)}, vcc", "valu", [d], [b])
        cmp_ = lambda txt, u: I(txt, "valu", [], [u])
        lane = V(126)
        o = [valu("v_and_b32", lane, 63, TID), valu("v_lshrrev_b32", g_, 4, lane), valu("v_and_b32", m_, 15, lane),
             valu("v_mul_u32_u24", t0, 1280, m_), valu("v_lshlrev_b32", t1, 4, g_), valu("v_add_u32", VOUT, t0, t1),
             valu("v_lshlrev_b32", VZ, 4, lane),
             valu("v_lshrrev_b32", t0, 2, m_), valu("v_and_b32", t1, 1, t0), valu("v_lshlrev_b32", t1, 4, t1),
             valu("v_lshrrev_b32", t0, 1, t0), valu("v_lshlrev_b32", t0, 2, t0), valu("v_add_u32", t1, t1, t0),
             valu("v_and_b32", t0, 3, m_), valu("v_add_u32", t1, t1, t0),
             valu("v_lshlrev_b32", t0, 3, g_), valu("v_sub_u32", d1, t1, t0)]
        for k in range(2):
            if k: o.append(valu("v_add_u32", d1, 8, d1))
            o += [valu("v_and_b32", t0, 1, d1), valu("v_lshlrev_b32", t0, 4, t0), valu("v_mov_b32", t1, 0x3F80),
                  valu("v_lshlrev_b32", t1, t0, t1), valu("v_lshrrev_b32", t0, 1, d1)]
            for d in range(4):
                o += [cmp_(f"v_cmp_eq_u32 vcc, {d}, {rtxt(t0)}", t0), cnd(V(SEL[k][1] + d), t1)]
        allg = [g for j in range(48) for g in gaps(j)]
        ops, prev = [], None
        for x in o:
            op = Op(x, [(prev, 2 if x.txt.startswith("v_cndmask") else 0)] if prev else [], earliest=30 * 1)
            ops.append(op); prev = op
        assert not list_schedule(allg, ops, 30 * 1, 30 * 40)
        self.post[self.NS - 1] += self.g_tail()

    def g_out_scalars(self):
        o = []
        for k in range(4):
            u, ntp, qb, a = s_t[0], s_t[2], s_t[3], S(76 + k)
            o += [salu("s_add_u32", u, s_w, 4 * k), salu("s_mul_hi_u32", ntp, u, (2 ** 32 + 2) // 3), salu("s_mul_i32", qb, ntp, 3),
                  salu("s_sub_u32", qb, u, qb), salu("s_lshl_b32", qb, qb, 4), salu("s_mul_i32", a, qb, 1280),
                  salu("s_lshl_b32", ntp, ntp, 6), salu("s_add_u32", a, a, ntp), salu("s_add_u32", a, a, s_oout)]
            if k == 3:
                o += [scmp("s_cmp_ge_u32", u, 15), salu("s_cselect_b32", a, 0x7FFF0000, a)]
        return o

    def g_unit_ops(self):
        res = []
        for ntp in range(5):
            for qb in range(3):
                a, b = GACC(2 * ntp, qb)[1], GACC(2 * ntp + 1, qb)[1]
                cv = [valu("v_cvt_pk_bf16_f32", V(a), V(a), V(a + 1)), valu("v_cvt_pk_bf16_f32", V(a + 1), V(a + 2), V(a + 3)),
                      valu("v_cvt_pk_bf16_f32", V(a + 2), V(b), V(b + 1)), valu("v_cvt_pk_bf16_f32", V(a + 3), V(b + 2), V(b + 3))]
                u = ntp * 3 + qb
                so = s_bl2[(u // 4) % 2]
                sc = salu("s_add_u32", so, s_px, 1024 * u) if u % 4 == 0 else None
                res.append((ntp, cv, sc, vstore(V(a, 4), PSL16, SRD_WS, so, 1024 * (u % 4), " sc1", tag=("pst",))))
        return res

    def g_tail(self):
        units = self.g_unit_ops()
        left = []
        if self.cfg["g_hide_tail"]:
            gaps = self.gaps[self.NS - 1]
            allg = [g for j in range(48) for g in self.gaps[104 + j]]
            end = self.spread_scalars(allg, self.g_out_scalars(), 30 * 42)
            assert end <= 30 * 47
            ops, prev_st = [], None
            per_unit = []
            for ntp, cv, sc, st in units:
                e = 6 * ntp + 5 + 4
                oc, prev = [], None
                for x in cv:
                    op = Op(x, [(prev, 0)] if prev else [], earliest=e); oc.append(op); prev = op
                deps = [(prev, 0)] + ([(prev_st, 0)] if prev_st else [])
                if sc is not None:
                    osc = Op(sc, [(prev_st, 0)] if prev_st else [], earliest=e); oc.append(osc); deps.append((osc, 0))
                ost = Op(st, deps, earliest=e); oc.append(ost); prev_st = ost
                ops += oc
            left = [o_.ins for o_ in list_schedule(gaps, ops, 0, 30)]
            o = autonop([nop(7)] + left)
        else:
            o = [nop(7)]
            for ntp, cv, sc, st in units:
                o += cv + ([sc] if sc is not None else []) + [st]
            o = autonop(o)
        o += self.tstamp(0)
        if not self.cfg["g_hide_tail"]: o += self.g_out_scalars()
        o += [WaitTag([("pst",)]), barrier()] + self.tstamp(1)
        o += [valu("v_mov_b32", VFV, 3), self.flag_store(), self.poll_load(("poll", "fin"))]
        o += self.mask_spin(3, s_mfin, "L_spf", WaitTag([("poll", "fin")])) + [barrier()] + self.tstamp(2)
        for k in range(4):
            for ks in range(4):
                o += [salu("s_add_u32", s_bl, s_pin, ks * 61440 + 4096 * k),
                      vload(A(16 * k + 4 * ks, 4), VZ, SRD_WS, s_bl, 0, " sc1", tag=("red", 7, k, ks))]
        o += self.tstamp(3)
        for k in range(4):
            o.append(WaitTag([("red", 7, k, 3)]))
            for ks in range(4):
                for h in range(2):
                    o.append(mfma(RD[h], SEL[h], A(16 * k + 4 * ks, 4), 0 if ks == 0 else RD[h]))
            o.append(nop(7))
            for h in range(2):
                a = RD[h][1]
                o += [valu("v_cvt_pk_bf16_f32", V(2 * h), V(a), V(a + 1)), valu("v_cvt_pk_bf16_f32", V(2 * h + 1), V(a + 2), V(a + 3))]
            o += [vstore(V(0, 4), VOUT, SRD_OUT, S(76 + k), 0, self.cfg["out_flags"], tag=("out", k)), nop(1)]
        o += self.tstamp(4)
        return o

    def o_fill(self):
        gaps = [g for j in range(40) for g in self.gaps[104 + j]]

        def cvts(p):
            ops = []
            for ntp in range(2):
                for qb in range(3):
                    u = ntp * 3 + qb
                    for h in range(2):
                        a = OACC(p, 2 * ntp + h, qb)[1]
                        ops.append(valu("v_cvt_pk_bf16_f32", CTr(u, 2 * h), V(a), V(a + 1)))
                        ops.append(valu("v_cvt_pk_bf16_f32", CTr(u, 2 * h + 1), V(a + 2), V(a + 3)))
            return ops

        def store(u, c):
            return vstore(CT(u), PSV, SRD_WS, s_pst[u // 4], (u % 4) * 1024, self.cfg["pst_flags"], tag=("st", c))

        spos = [(0, 22), (0, 34), (1, 10), (1, 22), (1, 34), (2, 10)]
        last_step = {}
        for j in range(40): last_step[o_cs(j, self.cfg["hide_n"])[0]] = j
        prev_store_gap = -1
        for c in range(9):
            j0 = last_step[c] + 1
            g0 = 36 * j0
            e0 = max(g0 + 3, prev_store_gap + 1)
            ops = [Op(x, earliest=e0) for x in cvts(c % 2)]
            pos = [g0 + 36 * s + gi for s, gi in spos]
            pos = [p_ for p_ in pos if p_ > e0 + 8]
            k = 3
            while len(pos) < 6:
                nxt = g0 + 36 * (k // 1) + (10, 22, 34)[0]
                for gi in (10, 22, 34):
                    p_ = g0 + 36 * 2 + gi if k == 3 else g0 + 36 * (k - 1) + gi
                    if p_ not in pos and p_ > (pos[-1] if pos else 0) and len(pos) < 6: pos.append(p_)
                k += 1
            for u, p_ in enumerate(pos):
                if not self.cfg["no_st"]:
                    gaps[p_].vm.append(store(u, c))
            assert not list_schedule(gaps, ops, e0, e0 + 40)
            for u, p_ in enumerate(pos):
                assert max(o.gap for o in ops[4 * u:4 * u + 4]) < p_, (c, u, p_)
            prev_store_gap = pos[-1]
            self.last_store = getattr(self, "last_store", {})
            self.last_store[c] = pos[-1]
            ga = pos[-1] + 1
            gaps[ga].sc.append(salu("s_add_u32", s_pst[0], s_pst[0], 24576))
            gaps[ga + 1].sc.append(salu("s_add_u32", s_pst[1], s_pst[1], 24576))
        fused = self.cfg["fused"]
        if fused:
            self.hu_fill(gaps)
        tail = autonop([nop(7)] + cvts(1) + [store(u, 9) for u in range(6)])
        if fused: tail += self.hu_tail()
        self.post[143] += tail

    HU_NEED = [1, 2, 3, 5, 6, 7, 8, 9]
    HU_BASE = [0, 64, 128, 192, 256, 320, 384, 432]
    HU_LIM = [480, 480, 480, 480, 480, 480, 432, 480]

    def hu_buf(self, rho, t): return A(32 * (rho % 4 if rho in self.hu_inloop else rho) + 4 * t, 4)

    def hu_load(self, rho, t):
        return vload(self.hu_buf(rho, t), VHL, SRD_WS, s_rl2[rho % 2], 0, self.cfg["red_flags"], tag=("red", rho, t))

    def hu_adv(self, rho):
        return salu("s_add_u32", s_rl2[rho % 2], s_rl2[rho % 2], 2 * 245760)

    def s_out(self, rho):
        return S(76 + rho) if self.cfg["hu_pre"] else s_ro[rho % 2]

    def hu_mfma(self, rho):
        o = []
        for t in range(8):
            if t % 4 == 0: o.append(WaitTag([("red", rho, t + 3)]))
            o.append(mfma(RD[0], SEL[0], self.hu_buf(rho, t), 0 if t == 0 else RD[0]))
        a = RD[0][1]
        o += [nop(7), valu("v_cvt_pk_bf16_f32", V(RD[1][1]), V(a), V(a + 1)), valu("v_cvt_pk_bf16_f32", V(RD[1][1] + 1), V(a + 2), V(a + 3)),
              vstore(V(RD[1][1], 2), VOUT, SRD_OUT, self.s_out(rho), 0, self.cfg["out_flags"], tag=("out", rho), width=2), nop(1)]
        return ([] if self.cfg["hu_pre"] else self.hu_out_off(rho)) + o

    def hu_out_off(self, rho):
        hu, n, c, rem, w2, u, ntp, a = s_t[0], s_t[1], s_t[2], s_t[3], S(100), S(101), S(61), self.s_out(rho)
        o = [salu("s_add_u32", hu, s_kw, self.HU_BASE[rho]), salu("s_lshr_b32", n, hu, 1),
             salu("s_mul_hi_u32", c, n, (2 ** 32 + 23) // 24), salu("s_mul_i32", rem, c, 24), salu("s_sub_u32", rem, n, rem),
             salu("s_mul_hi_u32", w2, rem, (2 ** 32 + 5) // 6), salu("s_mul_i32", u, w2, 6), salu("s_sub_u32", u, rem, u),
             salu("s_mul_hi_u32", ntp, u, (2 ** 32 + 2) // 3), salu("s_mul_i32", rem, ntp, 3), salu("s_sub_u32", u, u, rem),
             salu("s_mul_i32", a, s_b, 192), salu("s_mul_i32", w2, w2, 48), salu("s_add_u32", a, a, w2),
             salu("s_lshl_b32", u, u, 4), salu("s_add_u32", a, a, u), salu("s_mul_i32", a, a, 1280),
             salu("s_lshl_b32", c, c, 7), salu("s_add_u32", a, a, c), salu("s_lshl_b32", ntp, ntp, 6), salu("s_add_u32", a, a, ntp),
             salu("s_and_b32", n, hu, 1), salu("s_lshl_b32", n, n, 4), salu("s_add_u32", a, a, n)]
        if rho >= 6:
            o += [scmp("s_cmp_ge_u32", hu, self.HU_LIM[rho]), salu("s_cselect_b32", a, 0x7FFF0000, a)]
        return o

    def hu_base(self, rho):
        return salu("s_add_u32", s_rl2[rho % 2], s_pb, 512 * self.HU_BASE[rho])

    def hu_setup(self):
        hide = self.cfg["hide_setup"]
        lane, g_, m_, t0, t1 = (V(133), V(134), V(135), V(137), V(138)) if hide else (V(96), V(97), V(98), V(99), V(100))
        o = srd(SRD_OUT, None, 16 * 192 * 640 * 2, s_outp)
        o += [WaitTag([("chk",)]), scmp("s_cmp_eq_u32", s_w, 0), branch("s_cbranch_scc0", "L_chk_ok"),
              I(f"v_readfirstlane_b32 {rtxt(s_t[1])}, {rtxt(VCHK)}", "valu", [s_t[1]], [VCHK]), raw("s_nop 3"),
              scmp("s_cmp_ge_u32", s_t[1], 16), branch("s_cbranch_scc1", "L_chk_ok"),
              salu("s_mov_b32", s_t[0], 1 << 18), label("L_chk_loop"),
              salu("s_sub_u32", s_t[0], s_t[0], 1), branch("s_cbranch_scc1", "L_chk_ok"), raw("s_sleep 8"),
              I(f"buffer_load_dword {rtxt(VCHK)}, {rtxt(VFO)}, {rtxt(SRD_DBG)}, {rtxt(s_b16)} offen sc1", "salu"), raw("s_waitcnt vmcnt(0)"),
              I(f"v_readfirstlane_b32 {rtxt(s_t[1])}, {rtxt(VCHK)}", "salu"), raw("s_nop 3"),
              scmp("s_cmp_ge_u32", s_t[1], 16), branch("s_cbranch_scc0", "L_chk_loop"), label("L_chk_ok")]
        cnd = lambda d, a, b: I(f"v_cndmask_b32 {rtxt(d)}, {rtxt(a)}, {rtxt(b)}, vcc", "valu", [d], [a, b])
        cmp_ = lambda txt, u: I(txt, "valu", [], [u])
        head = o
        o = []
        o += [valu("v_and_b32", lane, 63, TID), valu("v_lshrrev_b32", g_, 4, lane), valu("v_and_b32", m_, 15, lane),
              valu("v_mov_b32", VZ, 0),
              valu("v_mul_u32_u24", t0, 1280, m_), valu("v_and_b32", t1, 1, g_), valu("v_lshlrev_b32", t1, 5, t1), valu("v_add_u32", t0, t0, t1),
              valu("v_lshrrev_b32", t1, 1, g_), valu("v_lshlrev_b32", t1, 3, t1), valu("v_add_u32", VOUT, t0, t1),
              valu("v_lshrrev_b32", t0, 5, lane), valu("v_mul_u32_u24", t0, 245760, t0), valu("v_and_b32", t1, 31, lane),
              valu("v_lshlrev_b32", t1, 4, t1), valu("v_add_u32", VHL, t0, t1),
              valu("v_lshlrev_b32", t0, 2, TID), valu("v_mov_b32", VPOLL, 0x7FFFFF00),
              cmp_(f"v_cmp_gt_u32 vcc, 16, {rtxt(TID)}", TID), nop(1), cnd(VPOLL, VPOLL, t0),
              valu("v_and_b32", t0, 1, m_), valu("v_lshlrev_b32", t0, 4, t0), valu("v_mov_b32", t1, 0x3F80), valu("v_lshlrev_b32", t1, t0, t1),
              valu("v_lshrrev_b32", t0, 3, m_), valu("v_and_b32", g_, 1, g_),
              cmp_(f"v_cmp_eq_u32 vcc, {rtxt(t0)}, {rtxt(g_)}", t0), nop(1), cnd(t1, VZ, t1),
              valu("v_lshrrev_b32", t0, 1, m_), valu("v_and_b32", t0, 3, t0)]
        for d in range(4):
            o += [cmp_(f"v_cmp_eq_u32 vcc, {d}, {rtxt(t0)}", t0), nop(1), cnd(V(SEL[0][1] + d), VZ, t1)]
        if hide:
            self.setup_valu = [x for x in o if x.cls != "nop"]
            o = head
        else:
            o = head + o
        o += [salu("s_lshl_b32", s_b16, s_b, 8), salu("s_add_u32", s_b16, s_b16, FLAG_OFF),
              salu("s_lshl_b32", s_t[0], s_pj, 2), salu("s_add_u32", s_t[5], s_b16, s_t[0]), salu("s_add_u32", s_kw, s_t[0], s_w),
              salu("s_mul_i32", s_pb, s_b, 16 * 245760), salu("s_lshl_b32", s_t[0], s_kw, 9), salu("s_add_u32", s_pb, s_pb, s_t[0]),
              salu("s_add_u32", s_pb, s_pb, PART_OFF)]
        return o

    def add_wait_tag(self, gaps, fs, tag):
        for x in gaps[36 * fs + 23].sc:
            if isinstance(x, WaitTag):
                x.tag = ("waittag", x.tag[1] + (tag,))

    def spread_scalars(self, gaps, ins, g0):
        g = g0
        k = 0
        while k < len(ins):
            while gaps[g].sc or gaps[g].vm: g += 1
            grp = [ins[k]]
            if ins[k].txt.startswith("s_cmp"):
                grp.append(ins[k + 1])
            gaps[g].sc += grp
            k += len(grp)
            g += 1
        return g

    def hu_fill(self, gaps):
        if self.cfg["hide_setup"]:
            ops, prev = [], None
            for x in self.setup_valu:
                d = 2 if x.txt.startswith("v_cndmask") else 0
                op = Op(x, [(prev, d)] if prev else [], earliest=36 * 6)
                ops.append(op); prev = op
            assert not list_schedule(gaps, ops, 36 * 6, 36 * 12)
        if self.cfg["hu_pre"]:
            seq_ = []
            for rho in range(8): seq_ += self.hu_out_off(rho)
            end = self.spread_scalars(gaps, seq_, 36 * 1)
            assert end < 36 * 13, end
        self.hu_fill2(gaps)

    def hu_fill2(self, gaps):
        d_flag, d_poll, d_chk = int(self.cfg["d_flag"]), int(self.cfg["d_poll"]), int(self.cfg["d_chk"])
        n_in = int(self.cfg["hu_in"])
        self.hu_pending = []
        self.hu_inloop = set()
        published = set()
        for rho in range(8):
            c = self.HU_NEED[rho]
            if c >= 8: break
            fs = self.last_store[c] // 36 + d_flag
            if c not in published and fs <= 38:
                published.add(c)
                self.add_wait_tag(gaps, fs, ("st", c))
                gaps[36 * fs + 24].va.insert(0, valu("v_mov_b32", VFV, c + 1))
                gaps[36 * fs + 29].vm.append(self.flag_store())
            ps = fs + d_poll
            cs = ps + d_chk
            if rho >= n_in or cs > 38:
                self.hu_pending.append((rho, 0))
                continue
            self.hu_inloop.add(rho)
            gaps[36 * ps + 35].vm.append(self.poll_load(("poll", rho)))
            self.post[104 + cs - 1] += self.check_spin(c + 1, f"L_sp{rho}", WaitTag([("poll", rho)])) + [self.hu_base(rho)]
            t, st_ = 0, cs
            while t < 8 and st_ < 40:
                for gi in sorted((35, 11, 17)[:int(self.cfg['hu_per'])]):
                    if t == 8: break
                    if st_ == cs and gi < 24: continue
                    g = gaps[36 * st_ + gi]
                    if g.vm: continue
                    g.vm.append(self.hu_load(rho, t))
                    g.post.append(self.hu_adv(rho))
                    t += 1
                st_ += 1
            self.hu_end = getattr(self, "hu_end", {})
            self.hu_end[rho] = st_
            if rho - 2 in self.hu_end: assert self.hu_end[rho - 2] <= cs, (rho, self.hu_end, cs)
            ms = st_ + int(self.cfg["d_mfma"])
            if t == 8 and ms <= 39:
                self.post[104 + ms - 1] += self.hu_mfma(rho)
            else:
                self.hu_pending.append((rho, t, "polled"))

    def hu_tail(self):
        pend = self.hu_pending
        ready = [p[0] for p in pend if len(p) == 3 and p[1] == 8]
        partial = [(p[0], p[1]) for p in pend if len(p) == 3 and p[1] < 8]
        late = [p[0] for p in pend if len(p) == 2]
        flag = lambda k: [valu("v_mov_b32", VFV, k), self.flag_store()]

        def loads(r, t0=0):
            o = [self.hu_base(r)] if t0 == 0 else []
            for t in range(t0, 8): o += [self.hu_load(r, t), self.hu_adv(r)]
            return o
        o = self.tstamp(0)
        if late: o += [self.poll_load(("poll", "late"))]
        o += [WaitTag([("st", 8)]), barrier()] + flag(9)
        for r in ready: o += self.hu_mfma(r)
        o += self.tstamp(1)
        if late:
            c = max(self.HU_NEED[r] for r in late)
            o += self.check_spin(c + 1, "L_spl", WaitTag([("poll", "late")]))
        o += [WaitTag([("st", 9)]), barrier()] + self.tstamp(2) + [self.poll_load(("poll", 9))] + flag(10)
        inflight = []
        for r, t0 in partial:
            o += loads(r, t0)
            inflight.append(r)
        for r in late:
            if len(inflight) >= 4: o += self.hu_mfma(inflight.pop(0))
            o += loads(r)
            inflight.append(r)
        o += self.tstamp(3)
        while len(inflight) > 1: o += self.hu_mfma(inflight.pop(0))
        o += self.check_spin(9, "L_sp9", WaitTag([("poll", 9)])) + [barrier()] + self.tstamp(4)
        o += loads(6) + [self.poll_load(("poll", "fin"))]
        for r in inflight: o += self.hu_mfma(r)
        o += self.tstamp(5) + self.check_spin(10, "L_spf", WaitTag([("poll", "fin")])) + [barrier()] + self.tstamp(6)
        o += loads(7) + self.tstamp(7) + self.hu_mfma(6) + self.tstamp(8) + self.hu_mfma(7) + self.tstamp(9) + self.tstamp(10)
        return o

    def tstamp(self, k):
        if not self.cfg["steptime"]: return []
        return [I("s_memtime s[92:93]", "salu"), raw("s_waitcnt lgkmcnt(0)"), raw(f"v_writelane_b32 v255, s92, {(30 if self.p4 else 20) + k}", "valu")]


def g_lane_consts():
    out = []
    lc = G.LaneCalc(out)
    lc.val[TID] = np.arange(256, dtype=np.int64)
    lane, w, g_, r, c, t0, t1, t2, t3 = [PT(11 + k) for k in range(9)]
    lc.op("v_and_b32", lane, 63, TID); lc.op("v_lshrrev_b32", w, 6, TID); lc.op("v_lshrrev_b32", g_, 4, lane)
    lc.op("v_lshrrev_b32", r, 2, lane); lc.op("v_and_b32", r, 3, r); lc.op("v_and_b32", c, 3, lane)
    L_ = np.arange(256) & 63; W_ = np.arange(256) >> 6
    G_, R_, C_ = L_ >> 4, (L_ & 15) >> 2, L_ & 3
    lc.op("v_lshrrev_b32", t0, 1, g_); lc.op("v_mul_u32_u24", t0, 3072, t0)
    lc.op("v_and_b32", t1, 1, g_); lc.op("v_lshlrev_b32", t2, 2, t1); lc.op("v_add_u32", t2, t2, r)
    lc.op("v_mul_u32_u24", t2, 320, t2); lc.op("v_add_u32", t0, t0, t2)
    lc.op("v_lshrrev_b32", t2, 1, c); lc.op("v_lshlrev_b32", t2, 4, t2); lc.op("v_add_u32", t0, t0, t2)
    lc.op("v_and_b32", t2, 1, c); lc.op("v_lshlrev_b32", t2, 3, t2); lc.op("v_add_u32", t0, t0, t2)
    lc.op("v_lshlrev_b32", t1, 5, t1)
    lc.op("v_add_u32", AO[0], t0, t1); lc.op("v_add_u32", AO[2], t0, t1)
    lc.op("v_xor_b32", t1, 32, t1)
    lc.op("v_add_u32", AO[1], t0, t1); lc.op("v_add_u32", AO[3], t0, t1)
    base = (G_ >> 1) * 3072 + (4 * (G_ & 1) + R_) * 320 + (C_ >> 1) * 16 + (C_ & 1) * 8
    for k in (0, 2): assert (lc.val[AO[k]] == base + (G_ & 1) * 32).all()
    for k in (1, 3): assert (lc.val[AO[k]] == base + (1 - (G_ & 1)) * 32).all()
    for i in range(3):
        lc.op("v_add_u32", t0, 64 * i, lane)
        lc.op("v_mul_u32_u24", t1, 3277, t0); lc.op("v_lshrrev_b32", t1, 16, t1)
        lc.op("v_mul_u32_u24", t2, 20, t1); lc.op("v_sub_u32", t2, t0, t2)
        lc.op("v_lshrrev_b32", t3, 2, t1); lc.op("v_and_b32", t3, 1, t3); lc.op("v_lshlrev_b32", t3, 1, t3)
        lc.op("v_xor_b32", t2, t2, t3); lc.op("v_lshlrev_b32", t2, 4, t2)
        lc.op("v_lshlrev_b32", t3, 3, w); lc.op("v_add_u32", t3, t3, t1); lc.op("v_mul_u32_u24", t3, 1280, t3)
        lc.op("v_add_u32", t2, t2, t3)
        P = 64 * i + L_
        RL, CP = P // 20, P % 20
        want = (8 * W_ + RL) * 1280 + (CP ^ (2 * ((RL >> 2) & 1))) * 16
        assert (lc.val[t2][P < 160] == want[P < 160]).all()
        if i: out.append(valu("v_subrev_u32", t2, 1024 * i, t2))
        if i < 2:
            out.append(valu("v_mov_b32", DO[i], t2))
        else:
            out += [valu("v_mov_b32", DO[i], 0x7FFFFF00), I(f"v_cmp_gt_u32 vcc, 32, {rtxt(lane)}", "valu", [], [lane]), nop(1),
                    I(f"v_cndmask_b32 {rtxt(DO[i])}, {rtxt(DO[i])}, {rtxt(t2)}, vcc", "valu", [DO[i]], [DO[i], t2])]
    lc.op("v_lshlrev_b32", t0, 4, lane)
    lc.op("v_mul_u32_u24", t1, 18432, w); lc.op("v_add_u32", VOX, t0, t1)
    lc.op("v_mul_u32_u24", t1, 15360, w); lc.op("v_add_u32", PSL16, t0, t1)
    return out


def g_scalars():
    t0, t1, ks, nt = s_t[0], s_t[1], s_t[2], s_t[3]
    o = [salu("s_lshr_b32", ks, s_pj, 2), salu("s_and_b32", nt, s_pj, 3),
         salu("s_lshl_b32", s_mgrp, ks, 2), salu("s_lshl_b32", s_mgrp, 15, s_mgrp), salu("s_lshl_b32", s_mfin, 0x1111, nt)]
    for q in range(4):
        if q == 0:
            o += [salu("s_mov_b32", t0, nt)]
        else:
            o += [scmp("s_cmp_le_u32", nt, q - 1), salu("s_cselect_b32", t0, q, q - 1)]
        o += [salu("s_lshl_b32", t1, ks, 2), salu("s_add_u32", t0, t0, t1),
              salu("s_mul_i32", s_gq[q], t0, 491520), salu("s_mul_i32", t1, nt, 320), salu("s_add_u32", s_gq[q], s_gq[q], t1),
              salu("s_lshl_b32", t1, s_b, 4), salu("s_add_u32", t0, t0, t1), salu("s_mul_i32", t0, t0, 147456),
              salu("s_add_u32", s_oown if q == 0 else s_oq[q], t0, OX_OFF)]
    o += [salu("s_lshl_b32", t0, s_b, 2), salu("s_add_u32", t0, t0, nt), salu("s_lshl_b32", t0, t0, 2),
          salu("s_add_u32", t1, t0, ks), salu("s_mul_i32", s_px, t1, 61440), salu("s_add_u32", s_px, s_px, PX_OFF),
          salu("s_lshl_b32", t0, t0, 2), salu("s_add_u32", t0, t0, ks), salu("s_mul_i32", s_pin, t0, 15360),
          salu("s_lshl_b32", t1, s_w, 10), salu("s_add_u32", s_pin, s_pin, t1), salu("s_add_u32", s_pin, s_pin, PX_OFF),
          salu("s_mul_i32", s_oout, s_b, 192), salu("s_mul_i32", t1, ks, 48), salu("s_add_u32", s_oout, s_oout, t1),
          salu("s_mul_i32", s_oout, s_oout, 1280), salu("s_mul_i32", t1, nt, 320), salu("s_add_u32", s_oout, s_oout, t1),
          salu("s_lshl_b32", t0, s_b, 8), salu("s_lshl_b32", t1, s_pj, 2), salu("s_add_u32", t0, t0, t1), salu("s_add_u32", s_t[5], t0, FLAG_OFF),
          salu("s_mov_b32", s_bl, s_oown)]
    return o


def stamp(k):
    return [I("s_memtime s[56:57]", "salu"), raw("s_waitcnt lgkmcnt(0)"), salu("s_mov_b32", S(64 + k), S(56))]


def main_kernel(cfg):
    g = Gen3(cfg)
    T = cfg["timing"]
    pro = [label("mha_main_kernel"), scmp("s_cmp_ge_u32", S(2), 256), branch("s_cbranch_scc1", "L_main_exit"),
           raw("s_load_dwordx16 s[64:79], s[0:1], 0")]
    if T and cfg["stamp_entry"]: pro.insert(1, I("s_memrealtime s[86:87]", "salu"))
    if cfg["pf_entry"]:
        pro += [I("s_getpc_b64 s[56:57]", "salu"), label("L_pce"), raw("s_add_u32 s56, s56, mha_main_kernel-L_pce"), raw("s_addc_u32 s57, s57, -1") if False else raw("s_subb_u32 s57, s57, 0") if False else raw("s_nop 0"),
                ]
        pro = pro[:-4] + [I("s_getpc_b64 s[56:57]", "salu"), label("L_pce"),
                raw("s_and_b32 s56, s56, 0xffffff00"),
                valu("v_lshlrev_b32", V(1), 7, V(0)), raw("v_mov_b32 v3, s57", "valu"),
                raw("v_add_co_u32 v2, vcc, s56, v1", "valu"), raw("s_nop 1"), raw("v_addc_co_u32 v3, vcc, 0, v3, vcc", "valu"),
                I(f"global_load_dword {rtxt(JUNK)}, v[2:3], off", "vmem", [], [])]
    lane_ops = []
    wreg = build_lane_consts(lane_ops)
    t0, t1 = s_t[0], s_t[1]
    nb = int(cfg["map_nb"]); npair = 32 // nb
    lg = lambda v: v.bit_length() - 1
    seen = set()
    for wg in range(256):
        a0, j = wg & 7, wg >> 3
        pj = (j & (npair - 1)) + ((a0 & (16 // npair - 1)) << lg(npair))
        bb = (j >> lg(npair)) + ((a0 >> lg(16 // npair)) << lg(nb))
        seen.add((bb, pj))
    assert len(seen) == 256
    ids = [
        salu("s_and_b32", t0, S(2), 7), salu("s_lshr_b32", t1, S(2), 3),
        salu("s_and_b32", s_pj, t1, npair - 1), salu("s_lshr_b32", s_b, t1, lg(npair)),
        salu("s_and_b32", t1, t0, 16 // npair - 1), salu("s_lshl_b32", t1, t1, lg(npair)), salu("s_add_u32", s_pj, s_pj, t1),
        salu("s_lshr_b32", t0, t0, lg(16 // npair)), salu("s_lshl_b32", t0, t0, lg(nb)), salu("s_add_u32", s_b, s_b, t0),
        salu("s_lshl_b32", s_h0, s_pj, 1),
        salu("s_mul_i32", s_wb, s_h0, 384), salu("s_mul_i32", s_xb, s_b, 245760)]
    wave_sc = [salu("s_mul_i32", s_w3072, s_w, 3072), salu("s_lshl_b32", s_w6144, s_w3072, 1)]
    srd_first = srd(SRD_X, 64, 16 * 192 * 640 * 2) + srd(SRD_W, 70, 640 * 6144 * 2)
    srd_rest = srd(SRD_K, 66, 16 * 32 * 512 * 192 * 2) + srd(SRD_V, 68, 16 * 32 * 512 * 192 * 2)
    srd_rest += srd(SRD_WO, 72, 6144 * 640 * 2) + srd(SRD_WS, 78, 402653184)
    srd_rest += [salu("s_mov_b32", s_outp[0], S(74)), salu("s_mov_b32", s_outp[1], S(75)),
                 salu("s_mov_b32", s_dbgp[0], S(76)), salu("s_mov_b32", s_dbgp[1], S(77))]
    sc_rest = [
        salu("s_lshl_b32", t0, s_b, 5), salu("s_add_u32", t0, t0, s_h0), salu("s_mul_i32", s_kvb, t0, 196608),
        salu("s_add_u32", s_kvb1, s_kvb, 196608),
        salu("s_lshr_b32", s_n0, S(2), int(cfg["rot_shift"])), salu("s_mul_i32", s_n0, s_n0, int(cfg["rot_mul"])), salu("s_and_b32", s_n0, s_n0, 15),
        salu("s_mul_i32", s_ob, s_h0, 245760),
        salu("s_lshl_b32", t0, s_b, 4), salu("s_add_u32", t0, t0, s_pj),
        salu("s_mul_i32", s_pst[0], t0, 245760), salu("s_add_u32", s_pst[0], s_pst[0], PART_OFF),
        salu("s_add_u32", s_pst[1], s_pst[0], 4096),
        salu("s_mov_b32", s_thr, THR_BITS), salu("s_mov_b32", S(48), C_BITS), salu("s_mov_b32", S(49), C_BITS),
    ]
    clr = []
    if cfg["fused"]:
        clr = [salu("s_lshl_b32", t0, s_b, 8), salu("s_lshl_b32", t1, s_pj, 2), salu("s_add_u32", t0, t0, t1),
               salu("s_add_u32", t0, t0, FLAG_OFF), valu("v_mov_b32", PT(8), 0),
               vstore(PT(8), VFO, SRD_WS, t0, 0, " sc1", tag=("clr",), width=1)]
    rfl = [nop(0), I(f"v_readfirstlane_b32 {rtxt(s_w)}, {rtxt(wreg)}", "valu", [s_w], [wreg])]
    first = [it for it in g.seq if it.issue == -1]
    first_tiles = []
    for it in first:
        for m0, off, ins in g.units(it):
            first_tiles += [m0] + (off if isinstance(off, list) else [off]) + [nop(0)] + ins
    if cfg["fast_pro"]:
        need = set()
        for r in DA + DB + [wreg]: need |= regs(r)
        keep = []
        for ins in reversed(lane_ops):
            if ins.defs & need:
                keep.append(ins)
                if not (ins.defs <= ins.uses): need -= ins.defs
                need |= {u for u in ins.uses if u[0] == "v"}
        keep.reverse()
        pro += ids + keep + rfl + [raw("s_waitcnt lgkmcnt(0)")] + srd_first + wave_sc
        if T and not cfg["stamp_entry"]: pro += [I("s_memrealtime s[86:87]", "salu")]
        if T and cfg["stamp_entry"]: pro += [I("s_memrealtime s[94:95]", "salu")]
        pro += first_tiles
        pro += lane_ops + srd_rest + sc_rest + clr
        if T: pro += stamp(0)
    else:
        pro += lane_ops + rfl + [raw("s_waitcnt lgkmcnt(0)")] + srd_first + srd_rest + ids + wave_sc + sc_rest
        if T: pro += ([] if cfg["stamp_entry"] else [I("s_memrealtime s[86:87]", "salu")]) + ([I("s_memrealtime s[94:95]", "salu")] if cfg["stamp_entry"] else []) + stamp(0)
        pro += clr

    gw = S(59)
    lane, lane128 = PT(3), PT(2)
    OOB = 0x7FFFFF00

    def masked(dst, src, n):
        return [valu("v_mov_b32", dst, OOB), raw(f"v_cmp_gt_u32 vcc, {n}, {rtxt(lane)}", "valu"), raw("s_nop 1"),
                raw(f"v_cndmask_b32 {rtxt(dst)}, {rtxt(dst)}, {rtxt(src)}, vcc", "valu")]
    pfs = [salu("s_lshl_b32", gw, S(2), 2), salu("s_add_u32", gw, gw, s_w),
           valu("v_and_b32", lane, 63, TID), valu("v_lshlrev_b32", lane128, 7, lane),
           valu("v_mul_u32_u24", PT(5), 21846, lane), valu("v_lshrrev_b32", PT(5), 16, PT(5)),
           valu("v_mul_u32_u24", PT(6), 3, PT(5)), valu("v_sub_u32", PT(6), lane, PT(6)),
           valu("v_mul_u32_u24", PT(5), 12288, PT(5)), valu("v_lshlrev_b32", PT(6), 7, PT(6)), valu("v_add_u32", PT(5), PT(5), PT(6))]
    pfs += masked(VTK[0], PT(5), 30) + masked(VTK[1], lane128, 60) + masked(PT(4), lane128, 30)
    pfs += [salu("s_and_b32", t0, gw, 15), salu("s_mul_i32", t0, t0, 768), salu("s_lshr_b32", S(100), gw, 4),
            salu("s_mul_i32", S(100), S(100), 122880), salu("s_add_u32", S(100), S(100), t0), salu("s_mul_i32", S(101), gw, 7680)]
    start = []
    if "x" in cfg["pf_start"]:
        start += [salu("s_mul_i32", t0, gw, 3840), pf_load(PT(4), SRD_X, t0)]
    if "w" in cfg["pf_start"]:
        start += [pf_load(VTK[0], SRD_W, S(100))]
    if "1" in cfg["pf_start"]:
        start += [salu("s_add_u32", t0, S(100), 384), pf_load(VTK[0], SRD_W, t0)]
    code_steps = cfg["_code_steps"]
    pfs2 = []
    if cfg["pf_code"]:
        pfs2 += [valu("v_and_b32", PT(7), 31, lane), valu("v_lshlrev_b32", PT(7), 7, PT(7)),
                 salu("s_lshl_b32", t0, s_w, 12), valu("v_add_u32", VL128, t0, PT(7))]
    if int(cfg["pf_start_step"]) == -2:
        pro += pfs + start
        pfs, start = [], []
    pfs += pfs2
    pfs += [valu("v_and_b32", PT(7), 63, TID), valu("v_lshlrev_b32", PT(7), 4, PT(7)), valu("v_add_u32", AWR, s_w3072, PT(7))]

    if not cfg["fast_pro"]: pro += first_tiles
    if cfg["tlb"]:
        tl = [valu("v_and_b32", PT(9), 1, TID)]
        for what in str(cfg["tlb"]):
            if what in "kv":
                tl += [valu("v_mul_u32_u24", PT(10), 393216 - 128, PT(9)), pf_load(PT(10), SRD_K if what == "k" else SRD_V, s_kvb)]
            elif what == "o":
                tl += [valu("v_mul_u32_u24", PT(10), 491520 - 128, PT(9)), pf_load(PT(10), SRD_WO, s_ob)]
            elif what == "p":
                tl += [valu("v_mul_u32_u24", PT(10), 245760 - 128, PT(9)), pf_load(PT(10), SRD_WS, s_pst[0])]
        pro += tl
    pro += pfs
    if cfg["pf_code"]:
        for k, st_ in enumerate(code_steps):
            if st_ < 0 and not (cfg["pf_entry"] and k == 0): pro += code_pf(f"L_code+{16384 * k}", sub=int(cfg["pf_sub"]))
    if cfg["pf_code_all"]:
        pro += [valu("v_lshlrev_b32", PT(9), 7, TID), valu("v_mov_b32", PT(10), S(2)), valu("v_lshlrev_b32", PT(10), 9, PT(10)),
                valu("v_add_u32", PT(9), PT(9), PT(10)),
                I("s_getpc_b64 s[56:57]", "salu"), label("L_pcall"), raw("s_add_u32 s56, s56, L_code-L_pcall"), raw("s_addc_u32 s57, s57, 0"),
                raw(f"v_mov_b32 v{VPC[1] + 1}, s57", "valu"), raw(f"v_add_co_u32 v{VPC[1]}, vcc, s56, {rtxt(PT(9))}", "valu"), raw("s_nop 1"),
                raw(f"v_addc_co_u32 v{VPC[1] + 1}, vcc, 0, v{VPC[1] + 1}, vcc", "valu"),
                raw(f"v_cmp_gt_u32 vcc, 4, {rtxt(TID)}", "valu"), raw("s_and_saveexec_b64 s[56:57], vcc"),
                raw("s_cbranch_execz L_pcall_skip"),
                I(f"global_load_dword {rtxt(JUNK)}, {rtxt(VPC)}, off", "salu", [], []), label("L_pcall_skip"),
                raw("s_mov_b64 exec, s[56:57]")]
    if cfg["p4"]: pro += g_lane_consts()
    if int(cfg["pf_start_step"]) == -1: pro += start
    pro += [WaitTag([("item", it.name) for it in g.seq if it.need == -1]), barrier()]
    cnt_blk = []
    if cfg["fused"]:
        TMP = S(96, 4)
        vone = V(212) if cfg["fast_pro"] else PT(8)
        cnt_blk = srd(TMP, None, 256, s_dbgp) + [salu("s_lshl_b32", t0, s_b, 4), valu("v_mov_b32", vone, 1), WaitTag([("clr",)]),
                I(f"buffer_atomic_add {rtxt(vone)}, {rtxt(VFO)}, {rtxt(TMP)}, {rtxt(t0)} offen", "store", [], [vone, VFO, TMP, t0], tag=("cnt",))]
        if not cfg["fast_pro"]: pro += cnt_blk
    pro += g.x_reads3(g.X[(0, 0)]) + g.first_reads3(g.item[0]) + [wait(lgkm=4)]
    pro.append(label("L_code"))

    if cfg["fast_pro"]: g.pre[5] += cnt_blk
    g.build_frames()
    g.place_dma()
    g.place_reg_tiles()
    g.place_fixes()
    def put(s, gi, ins_list):
        gp = g.gaps[s][gi]
        for x in ins_list:
            if x.cls in ("vmem",): gp.vm.append(x)
            else: gp.sc.append(x)
    def tlb_touch(h, tmp):
        st = int(cfg["tlb_stride"])
        n = (196608 + st - 1) // st
        o = [valu("v_mul_u32_u24", tmp, st, TID), valu("v_mov_b32", V(tmp[1] + 1), OOB),
             raw(f"v_cmp_gt_u32 vcc, {n}, {rtxt(TID)}", "valu"), raw("s_nop 1"),
             raw(f"v_cndmask_b32 {rtxt(tmp)}, v{tmp[1] + 1}, {rtxt(tmp)}, vcc", "valu"),
             salu("s_add_u32", t0, s_kvb, h * 196608)]
        for sr in (SRD_K, SRD_V):
            x = pf_load(tmp, sr, t0)
            x.txt += " nt"
            o.append(x)
        return o
    if int(cfg["tlb0"]) >= 0: g.pre[int(cfg["tlb0"])] += tlb_touch(0, V(192))
    if int(cfg["tlb1"]) >= 0: g.pre[int(cfg["tlb1"])] += tlb_touch(1, V(128))
    if int(cfg["pf_start_step"]) >= 0:
        g.pre[int(cfg["pf_start_step"])] += start
    if cfg["w1_split"]:
        steps_ = [int(x) for x in str(cfg["w1_split"]).split(".")]
        n_ = 30 // len(steps_)
        for k, st_ in enumerate(steps_):
            g.pre[st_] += [valu("v_subrev_u32", V(213), n_ * k, V(215)), valu("v_mov_b32", V(214), OOB),
                           raw(f"v_cmp_gt_u32 vcc, {n_}, v213", "valu"), raw("s_nop 1"),
                           raw(f"v_cndmask_b32 v214, v214, {rtxt(VTK[0])}, vcc", "valu"),
                           salu("s_add_u32", t0, S(100), 384), pf_load(V(214), SRD_W, t0)]
        g.pre[steps_[0]] = [valu("v_and_b32", V(215), 63, TID)] + g.pre[steps_[0]]
    elif int(cfg["pf_w1"]) == 19:
        g.post[19] = [salu("s_add_u32", t0, S(100), 384), pf_load(VTK[0], SRD_W, t0)] + g.post[19]
    elif int(cfg["pf_w1"]) >= 0:
        put(int(cfg["pf_w1"]), 9, [salu("s_add_u32", t0, S(100), 384)])
        put(int(cfg["pf_w1"]), 11, [pf_load(VTK[0], SRD_W, t0)])
    if cfg["wo_split"]:
        steps_ = [int(x) for x in str(cfg["wo_split"]).split(".")]
        n_ = 60 // len(steps_)
        for k, st_ in enumerate(steps_):
            g.pre[st_] += [valu("v_mov_b32", V(214), OOB), raw(f"v_cmp_gt_u32 vcc, {n_}, {rtxt(V(215))}", "valu"), raw("s_nop 1"),
                           raw(f"v_cndmask_b32 v214, v214, {rtxt(VTK[1])}, vcc", "valu"),
                           salu("s_add_u32", t0, S(101), 128 * n_ * k), pf_load(V(214), SRD_WO, t0)]
        g.pre[steps_[0]] = [valu("v_and_b32", V(215), 63, TID)] + g.pre[steps_[0]]
    elif int(cfg["pf_wo"]) == 52:
        g.post[51] += [pf_load(VTK[1], SRD_WO, S(101))]
    elif int(cfg["pf_wo"]) >= 0:
        put(int(cfg["pf_wo"]), 11, [pf_load(VTK[1], SRD_WO, S(101))])
    if cfg["pf_code"]:
        for k, st_ in enumerate(code_steps):
            if st_ >= 0: g.pre[st_] += code_pf(f"L_code+{16384 * k}", sub=int(cfg["pf_sub"]))
    if cfg["p4"]:
        g.pre[10] += g_scalars()
        g.post[90] += g.g_check_block()

    if cfg["fused"]:
        g.pre[80] += srd(SRD_DBG2, None, 256, s_dbgp) + [salu("s_lshl_b32", s_b16, s_b, 4),
                      I(f"buffer_load_dword {rtxt(VCHK)}, {rtxt(VFO)}, {rtxt(SRD_DBG2)}, {rtxt(s_b16)} offen sc1", "vmem", [VCHK],
                        [VFO, SRD_DBG2, s_b16], tag=("chk",))]
    if cfg["hide_n"]:
        g.rinv_fill(0); g.rinv_fill(1)
        g.n0_fill()
        if cfg["p4"]:
            g.post[103] += g.g_n1_block()
        else:
            g.n1_fill()
            if cfg["fused"]:
                g.post[103] += g.hu_setup()
    for h in range(2):
        g.a_fill(h)
        g.post[52 * h + 19] += g.dump_block.get(52 * h + 19, []) + g.q_pack()
        if not cfg["hide_n"]:
            g.post[52 * h + 51] += g.n_block(h)
    if cfg["p4"]: g.g_fill()
    else: g.o_fill()

    body = []
    marks = {0: 1, 20: 3, 52: 5, 72: 7}
    ends = {19: 2, 51: 4, 71: 6, 103: 8}
    for s in range(g.NS):
        body.append(label(f"L_st{s}"))
        if T and s in marks: body += stamp(marks[s])
        body += g.pre[s]
        for gp in g.gaps[s]: body += gp.flat()
        if T and s in ends: body += stamp(ends[s])
        body += g.post[s]

    fin = []
    if T:
        fin += stamp(9)
    fin += [raw("s_waitcnt vmcnt(0)")]
    if T:
        fin += [I("s_memtime s[56:57]", "salu"), I("s_memrealtime s[88:89]", "salu"), raw("s_waitcnt lgkmcnt(0)"),
                salu("s_mov_b32", S(74), S(56)), salu("s_mov_b32", S(90), S(88)), salu("s_sub_u32", S(88), S(88), S(86))]
        lst = [64, 65, 66, 67, 68, 69, 70, 71, 72, 73, 74, 88, 86, 90] + ([94] if cfg['stamp_entry'] else [])
        for k, sr in enumerate(lst): fin.append(valu("v_mov_b32", V(k), S(sr)))
        fin += [salu("s_lshl_b32", t0, S(2), 6), salu("s_add_u32", t0, t0, 300 * 1024 * 1024), valu("v_mov_b32", V(20), 0),
                raw(f"v_cmp_eq_u32 vcc, 0, {rtxt(TID)}", "valu"), raw("s_and_saveexec_b64 s[56:57], vcc")]
        for k in range(0, 16, 4): fin.append(vstore(V(k, 4), V(20), SRD_WS, t0, 4 * k))
        fin += [raw("s_waitcnt vmcnt(0)")]
        if cfg["steptime"]:
            fin += [raw("s_mov_b64 exec, -1"), salu("s_mul_i32", t0, S(2), 768), salu("s_add_u32", t0, t0, 320 * 1024 * 1024),
                    raw(f"v_cmp_gt_u32 vcc, 64, {rtxt(TID)}", "valu"), raw("s_and_saveexec_b64 s[56:57], vcc"),
                    valu("v_lshlrev_b32", V(20), 2, TID)]
            for k in range(3): fin.append(vstore(V(253 + k), V(20), SRD_WS, t0, 256 * k, width=1))
            fin += [raw("s_waitcnt vmcnt(0)")]
    fin += [label("L_main_exit"), raw("s_endpgm")]

    seq = pro + body
    state = {"checked": set(), "published": set()}
    for x in seq:
        if x.cls == "label" and str(x.info).startswith("L_sp") and str(x.info).endswith("_ok"):
            state["checked"].add(x.info[4:-3])
        elif x.cls == "barrier":
            state["published"] |= state["checked"]
        elif x.cls == "vmem" and isinstance(x.tag, tuple) and x.tag and x.tag[0] == "red":
            rho = x.tag[1]
            if cfg["p4"]:
                assert "f" in state["published"], ("partial load not ordered after its check", x.tag)
                continue
            ok = str(rho) in state["published"] or "f" in state["published"] or ("l" in state["published"] and rho < 6) or (rho == 6 and "9" in state["published"])
            assert ok, ("partial load not ordered after its check", x.tag, state)
    if cfg["p4"]:
        st2 = {"checked": set(), "published": set()}
        for x in seq:
            if x.cls == "label" and str(x.info).startswith("L_sp") and str(x.info).endswith("_ok"): st2["checked"].add(x.info[4:-3])
            elif x.cls == "barrier": st2["published"] |= st2["checked"]
            elif x.cls == "vmem" and isinstance(x.tag, tuple) and x.tag and x.tag[0] == "bl":
                hh = g.g_kstep(x.tag[1])[1]
                assert "b" in st2["published"], ("O load not ordered after its check", x.tag)
    res, errs, _, maxout = resolve_and_check(seq, "main")
    for e in errs[:30]: print("ERR", e, file=sys.stderr)
    assert not errs, len(errs)
    assert maxout <= 63, maxout
    final = []
    for w in seq:
        if isinstance(w, WaitTag):
            vals = [v for v in res[id(w)] if v is not None]
            vm, lgk = (min(vals) if vals else None), (w.lres if w.info[1] == "auto" else w.info[1])
            if vm is None and lgk is None:
                continue
            final.append(wait(vm, lgk))
        else:
            final.append(w)
    seq = final
    _, errs, _, _ = resolve_and_check(seq, "final")
    for e in errs[:30]: print("ERR", e, file=sys.stderr)
    assert not errs, len(errs)
    stubs = []
    for k, p in enumerate(g.rare_sites):
        stubs += [label(f"L_rs{k}"), I(f"s_call_b64 {rtxt(s_ret)}, L_rare{p}", "branch"), branch("s_branch", f"L_rr{k}")]
    rare = g.rare_code(0) + g.rare_code(1)
    return seq + fin + stubs + rare


SRD_DBG2 = SRD_DBG

MACROS = """.macro MF d,a,b,c
v_mfma_f32_16x16x32_bf16 \\d,\\a,\\b,\\c
.endm
.macro TR d,a,o
ds_read_b64_tr_b16 \\d,\\a offset:\\o
.endm
.macro RD d,a,o
ds_read_b128 \\d,\\a offset:\\o
.endm
"""


def compact(line):
    import re
    t = line.strip()
    if t.startswith("v_mfma_f32_16x16x32_bf16 "):
        return "MF " + t.split(" ", 1)[1].replace(", ", ",")
    m = re.match(r"ds_read_b64_tr_b16 (\S+), (\S+) offset:(\d+)$", t)
    if m: return f"TR {m.group(1)},{m.group(2)},{m.group(3)}"
    m = re.match(r"ds_read_b128 (\S+), (\S+) offset:(\d+)$", t)
    if m: return f"RD {m.group(1)},{m.group(2)},{m.group(3)}"
    return t.replace(", ", ",")


HEADER = """; Fused multi-head attention block for MI355X (gfx950); assembly produced by my own generator script.
"""


def text_of(cfg, m, pad):
    kname = KNAME if cfg["single"] else "mha_main_kernel"
    lds = int(cfg["R"]) * SLOT
    s = HEADER + ("; p4: split-K output projection\n" if cfg["p4"] else "")
    if cfg["single"]:
        s += f"; @launch grid=(256,1,1) block=(256,1,1) lds={lds}\n"
    else:
        s += f"; @launch kernel=mha_main_kernel grid=(256,1,1) block=(256,1,1) lds={lds}\n"
        if not cfg["fused"]:
            s += "; @launch kernel=mha_reduce_kernel grid=(960,1,1) block=(256,1,1) lds=0\n"
    s += '.amdgcn_target "amdgcn-amd-amdhsa--gfx950"\n'
    if cfg["macros"]: s += MACROS
    s += ".text\n"
    ks = [(kname, m)]
    if not cfg["fused"]: ks.append(("mha_reduce_kernel", G.reducer_kernel(cfg)))
    for nm, code in ks:
        lines = []
        for i in code:
            for ln in i.txt.split("\n"):
                lines.append(compact(ln) if cfg["macros"] and i.cls != "label" else ln)
        s += f".globl {nm}\n.p2align 8\n.type {nm},@function\n" + "\n".join(lines).replace("mha_main_kernel:", kname + ":") + "\n"
    s += f".fill {pad}, 4, 0xBF800000\nL_text_end:\n"
    s += '.section .rodata,"a"\n.p2align 6\n' + kd(kname, 512, 256)
    if not cfg["fused"]: s += ".p2align 6\n" + kd("mha_reduce_kernel", 88, 88)
    return s


def assemble_syms(text):
    open("_g3.s", "w").write(text)
    r = subprocess.run(["clang", "-x", "assembler", "-target", "amdgcn-amd-amdhsa", "-mcpu=gfx950", "-c", "_g3.s", "-o", "_g3.o"],
                       capture_output=True, text=True)
    assert r.returncode == 0, r.stderr[:2000]
    sy = subprocess.run(["llvm-readelf", "-s", "_g3.o"], capture_output=True, text=True).stdout
    return {ln.split()[-1]: int(ln.split()[1], 16) for ln in sy.splitlines() if " L_" in ln and len(ln.split()) >= 8}


def build(cfg, path):
    import importlib
    cfg = dict(cfg)
    cfg["_code_steps"] = [-1] + [max(0, 21 * k - 10) for k in range(1, 8)]
    for it in range(2):
        G.code_pf.n = 0
        m = main_kernel(cfg)
        addr = assemble_syms(text_of(cfg, m, 64))
        base = addr["L_code"]
        end = addr["L_main_exit"] - base
        npiece = (end + 16383) // 16384
        steps = []
        for k in range(npiece):
            ns = 152 if cfg["p4"] else 144
            first = min([s for s in range(ns) if addr[f"L_st{s}"] - base + 1024 > 16384 * k] or [ns - 1])
            s_ = first - int(cfg["code_lead"])
            steps.append(-1 if s_ < 0 else s_)
        cfg["_code_steps"] = steps
    G.code_pf.n = 0
    m = main_kernel(cfg)
    addr = assemble_syms(text_of(cfg, m, 64))
    span = max(16384 * len(cfg["_code_steps"]), 131072)
    need = addr["L_code"] + span + 256 - addr["L_text_end"]
    pad = 64 + max(0, (need + 3) // 4)
    s = text_of(cfg, m, pad)
    open(path, "w").write(s)
    n_main = sum(1 for i in m if i.cls != "label")
    print(f"wrote {path}: {len(s)} bytes, {n_main} instrs, code {addr['L_main_exit'] - addr['L_code']} B, pad {pad}, code pf steps {cfg['_code_steps']}", file=sys.stderr)


if __name__ == "__main__":
    cfg = dict(CFG)
    path = "out3.s"
    for a in sys.argv[1:]:
        if "=" in a:
            k, v = a.split("=", 1)
            assert k in cfg, k
            cfg[k] = {"True": True, "False": False}.get(v, v)
        else:
            path = a
    build(cfg, path)
```

```python
import sys
import subprocess
import numpy as np
from asmlib import *
import gen as G
from gen import (ACC, SB, SBr, PB, PBr, TT, NEGM, NEGMr, L, LT, MT, OACC, CT, CTr, QF, QFr, AK, AV, AW, AO, DKV, DA, DB, DO,
                 AX, PSV, PT, TID, JUNK, VPC, VL128, VTK, VFO, VCHK, RD, SEL, FLG, VPOLL, VFV, VOUT, VZ, PSL, PART_OFF, FLAG_OFF,
                 SRD_DBG, SRD_OUT, s_outp, s_dbgp, s_b16, s_kw, s_pb, s_ro, s_rl, OA, OAr, O0P, O0Pr, FB, FBh,
                 SRD_A, SRD_K, SRD_V, SRD_WO, SRD_WS, SRD_B, s_w3072, s_pst, s_thr, s_c2, s_h0, s_b, s_pj, s_w, s_t, s_ret,
                 THR_BITS, C_BITS, SLOT, build_lane_consts, autonop, srd, pf_load, code_pf, kd, KNAME, Gen, a_item)
import sched

CFG = dict(
    nt_kv=True, timing=False, steptime=False, pst_flags=" sc1", red_flags=" sc1",
    dspair_v=True, dspair_k=False, dspair_w=False, no_st=False, map_nb=8,
    fused=True, single=False, kv_same=False,
    R=13, P=3, P0=None, DW=4, DX=3, NW0=6, NX0=2, xres=23,
    kv_rot=False, rot_shift=0, rot_mul=1,
    tlb0=-1, tlb1=-1, tlb_stride=4096,
    npair0=0, DX0=0, NX00=0, nt_w0=False, nt_w1=False, nt_x0=False, nt_x1=False,
    RP=0, npair=2, rp_start0=3, rp_start1=0, rp_space=1.2,
    DW0=0, NW00=0, tlb='', park0='', park1='', d_flag=2, d_poll=1, d_chk=2, d_mfma=3, hu_in=6, hu_per=3, poll_wave=1, g_poll=4, g_chk=1, g_hide_tail=True, p4=True, o0_start=94, o0_per=2, o0_poll=96, DO=7, d_bl=7, d_oflag=4, g_oflag=3, hide_setup=True, hu_pre=True, spin_sleep=2, stamp_entry=False, fast_pro=True, out_flags='', pf_sub=8, pf_entry=False, hide_n=True, wo_split='53.57.61.65', w1_split='', pro_max=7, early_max=4, early_steps=3,
    pf_code=True, pf_w1=8, pf_wo=52, pf_start="xw", pf_start_step=0, code_lead=14, pf_code_all=False, macros=True,
)

SRD_X, SRD_W = SRD_A, SRD_B
G.SRD_DBG = S(4, 4)
SRD_DBG = G.SRD_DBG
s_kvb, s_wb, s_xb, s_ob = S(33), S(34), S(37), S(38)
s_do = [S(35), S(36)]
s_w6144 = S(41)
NSTEP = 144


VCHK = V(143)
AWR = V(246)
s_rp = S(39)
VOX = V(246)
PSL16 = V(243)
RIN2 = [V(112, 2), V(114, 2), V(116, 2)]
s_bl2 = [S(62), S(63)]
s_oout, s_pin = S(61), S(75)
OX_OFF = 72 << 20
PX_OFF = 112 << 20
s_gq = [S(76), S(77), S(78), S(79)]
s_oq = [None, S(80), S(81), S(82)]
s_oown, s_px, s_bl, s_mgrp, s_mfin = S(83), S(84), S(85), S(91 + 4), S(91 + 3)
s_n0, s_kvb1 = S(40), S(42)
s_rl2 = [S(63), S(62)]
VHL = V(132)


def o_cs(j, reorder):
    if reorder and j < 8:
        return [(0, 0), (0, 1), (1, 0), (1, 1), (0, 2), (0, 3), (1, 2), (1, 3)][j]
    return j // 4, j % 4


def GACC(t, qb): return V((t * 3 + qb) * 4, 4)


def XF(u, half, qb): return V(144 + ((u % 2) * 2 + half) * 12 + 4 * qb, 4)


class Gen3(Gen):
    def __init__(self, cfg):
        self.cfg = cfg
        self.rare_sites = []
        i = lambda k: int(cfg[k])
        self.R = i("R")
        self.seq, self.X, self.W, self.KV, self.O = sched.build(
            R=self.R, P=i("P"), DW=i("DW"), DX=i("DX"), NW0=i("NW0"), NX0=i("NX0"),
            P0=None if cfg["P0"] in (None, "None") else int(cfg["P0"]), xres=i("xres"),
            pro_max=i("pro_max"), early_max=i("early_max"), early_steps=i("early_steps"),
            park0=[int(x) for x in str(cfg["park0"]).split(".")] if cfg["park0"] else None,
            park1=[int(x) for x in str(cfg["park1"]).split(".")] if cfg["park1"] else None,
            DW0=int(cfg["DW0"]) or None, NW00=int(cfg["NW00"]) or None, RP=i("RP"), npair=i("npair"),
            n_o=48 if cfg["p4"] else 40, DO=int(cfg["DO"]) if cfg["p4"] else None, rp_load=self.rp_load_step, npair0=int(cfg["npair0"]) or None, DX0=int(cfg["DX0"]) or None, NX00=int(cfg["NX00"]) or None)
        self.item = []
        for h in range(2):
            self.item += [self.W[(h, t)] for t in range(20)] + [self.KV[(h, j)] for j in range(32)]
        self.p4 = bool(cfg["p4"])
        self.NO = 48 if self.p4 else 40
        self.NS = 104 + self.NO
        self.item += [self.O[j] for j in range(self.NO)]
        self.gaps = [None] * self.NS
        self.pre = {s: [] for s in range(self.NS)}
        self.post = {s: [] for s in range(self.NS)}
        self.regs = {"K": AK, "V": AV, "W": AW, "O": AO}
        if self.p4:
            self.regs = {"K": AK, "V": AV, "W": AW, "Oa": AO[:2], "Ob": AO[2:]}
        self.plan = {}
        for kind in self.regs:
            its = [it for it in self.item if self.akind(it) == kind]
            k = 0
            while k < len(its):
                lo = hi = its[k].slot
                e = k
                while e + 1 < len(its):
                    nl, nh = min(lo, its[e + 1].slot), max(hi, its[e + 1].slot)
                    if nh - nl > 4: break
                    lo, hi = nl, nh
                    e += 1
                for q in range(k, e + 1): self.plan[its[q].name] = lo * SLOT
                k = e + 1
        self.base = {kind: [0] * len(self.regs[kind]) for kind in self.regs}
        self.nunit = 0
        self.fixes = {}
        self.dump_block = {}
        self.rp1_first = {}

    def akind(self, it):
        if it.kind == "O" and self.p4: return "Oa" if it.n % 2 == 0 else "Ob"
        return it.kind

    def rp_load_step(self, h, k):
        s = int(float(self.cfg["rp_start0" if h == 0 else "rp_start1"]) + k * float(self.cfg["rp_space"]))
        if h == 1 and self.cfg["hide_n"]:
            s = max(s, int(2.45 * (k // 2 + 1)) + 1)
        return s

    def place_fixes(self):
        for s, lst in self.fixes.items():
            gaps = self.gaps[s]
            for x, lo, hi in lst:
                c = [g for g in range(lo, hi + 1) if gaps[g].free() == 1 and not gaps[g].vm and g != 23]
                if not c: c = [g for g in range(lo, hi + 1) if gaps[g].free() >= 1 and not gaps[g].vm and g != 23]
                if not c: c = [hi]
                gaps[c[0]].va.append(x)

    def frag_reads3(self, it, f, buf):
        win = self.plan[it.name]
        off = it.slot * SLOT - win
        kind = it.kind
        if kind == "K":
            kt, kb = f // 6, f % 6
            ri = kb % 2
            return [(ds_read("ds_read_b128", FB(buf, f % 2), AK[ri], off + kt * 6144 + (kb // 2) * 128), ri, win)]
        if kind == "O" and self.p4:
            ri = f % 2
            o, d2 = off + 64 * (f // 2), 6144
        else:
            ri, j = f % 4, f // 4
            o, d2 = {"V": (off + 128 * j, 6144), "W": (off + 128 * j, 1536), "O": (off + 4096 * j, 2048)}[kind]
        r = self.regs[self.akind(it)][ri]
        return [(ds_read("ds_read_b64_tr_b16", FBh(buf, f % 2, 0), r, o), ri, win),
                (ds_read("ds_read_b64_tr_b16", FBh(buf, f % 2, 1), r, o + d2), ri, win)]

    def fix(self, kind, ri, win):
        B = self.base[kind]
        if B[ri] == win: return None
        d = win - B[ri]
        B[ri] = win
        r = self.regs[kind][ri]
        return valu("v_add_u32", r, d, r) if d > 0 else valu("v_subrev_u32", r, -d, r)

    def place_reads3(self, gaps, g0, it, grp, cur=None, buf=None):
        rl = []
        for f in (2 * grp, 2 * grp + 1):
            rl += self.frag_reads3(it, f, grp % 3 if buf is None else buf)
        fx = [x for x in (self.fix(self.akind(it), ri, win) for _, ri, win in rl) if x is not None]
        if fx and it.kind == "O" and self.p4:
            self.pending_fix += [(x, 2, g0 - 1) for x in fx]
        elif fx:
            same = (cur is not None and cur.kind == it.kind)
            if it.kind == "K":
                lo = 20 if same else 2
            elif g0 == 24:
                lo = 16 if same else 2
            else:
                lo = 22 if same else 2
            self.pending_fix += [(x, lo, g0 - 1) for x in fx]
        pair = self.cfg["dspair_k"] if it.kind == "K" else (self.cfg["dspair_v"] if it.kind == "V" else self.cfg["dspair_w"])
        for k, (ins, ri, win) in enumerate(rl):
            gaps[g0 + (k // 2 if pair else k)].ds.append(ins)
        return len(rl)

    def first_reads3(self, it):
        out = []
        for grp in range(2):
            for f in (2 * grp, 2 * grp + 1):
                for ins, ri, win in self.frag_reads3(it, f, grp % 3):
                    x = self.fix(self.akind(it), ri, win)
                    if x is not None: out.append(x)
                    out.append(ins)
        for ri in range(len(self.regs[self.akind(it)])):
            x = self.fix(self.akind(it), ri, self.plan[it.name])
            if x is not None: out.append(x)
        return out

    def x_reads3(self, it):
        u = it.n
        return [ds_read("ds_read_b128", XF(u, half, qb), AX[half], it.slot * SLOT + 2048 * qb) for half in range(2) for qb in range(3)]

    def units(self, it):
        tag = ("item", it.name)
        out = []
        for k in range(it.units):
            so = s_do[self.nunit % 2]
            self.nunit += 1
            nt = False
            if it.kind == "X":
                m0 = salu("s_add_u32", "m0", s_w6144, it.slot * SLOT + 3072 * k)
                off = salu("s_add_u32", so, s_xb, 128 * it.n + 30720 * k)
                vo, sr = DA, SRD_X
                nt = bool(self.cfg["nt_x0"]) if it.h == 0 else bool(self.cfg["nt_x1"])
            else:
                m0 = salu("s_add_u32", "m0", s_w3072, it.slot * SLOT)
                if it.kind in "KV":
                    off = self.kv_off(so, it)
                    vo, sr = DKV, (SRD_K if it.kind == "K" else SRD_V)
                    nt = self.cfg["nt_kv"]
                elif it.kind == "W":
                    off = salu("s_add_u32", so, s_wb, it.h * 384 + it.n * 393216)
                    vo, sr = DB, SRD_W
                    nt = bool(self.cfg["nt_w0"]) if it.h == 0 else bool(self.cfg["nt_w1"])
                elif self.p4:
                    q, hh, kb = self.g_kstep(it.n)
                    off = salu("s_add_u32", so, s_gq[q], (hh * 192 + 32 * kb) * 1280)
                    vo, sr = DO, SRD_WO
                else:
                    c, s = o_cs(it.n, self.cfg["hide_n"])
                    off = salu("s_add_u32", so, s_ob, s * 122880 + c * 128)
                    vo, sr = DO, SRD_WO
            out.append((m0, off, [dma(vo[i], sr, so, 1024 * i, nt, tag=tag) for i in range(3)]))
        return out

    def kv_off(self, so, it):
        if self.cfg["kv_rot"] and not self.cfg["kv_same"]:
            return [salu("s_xor_b32", so, s_n0, it.n), salu("s_mul_i32", so, so, 12288),
                    salu("s_add_u32", so, so, s_kvb if it.h == 0 else s_kvb1)]
        imm = it.h * 196608 + (0 if self.cfg["kv_same"] else it.n * 12288)
        return salu("s_add_u32", so, s_kvb, imm)

    def place_dma(self):
        for b in range(self.NS):
            un = []
            for it in self.seq:
                if it.issue == b and not getattr(it, "reg", False): un += self.units(it)
            assert len(un) <= 4
            if self.p4 and b >= 104:
                pos = [[(0, 22), (1, 4), (1, 10)]]
                assert len(un) <= 1
            elif self.p4 and b == 103:
                pos = [[(0, 28), (1, 4), (1, 10)]]
                assert len(un) <= 1
            elif len(un) == 1:
                pos = [[(0, 28), (1, 4), (1, 16)]]
            elif len(un) == 2:
                pos = [[(0, 28), (0, 34), (1, 4)], [(1, 10), (1, 16), (1, 22)]]
            elif len(un) > 2:
                pos = [[(0, 28), (0, 29), (0, 34)], [(1, 2), (1, 4), (1, 5)], [(1, 8), (1, 10), (1, 11)], [(1, 14), (1, 16), (1, 17)]][:len(un)]
            else:
                pos = []
            for (m0, off, ins), ps in zip(un, pos):
                for i, (ds_, gi) in enumerate(ps):
                    g = self.gaps[b + ds_]
                    if i == 0:
                        if isinstance(off, list):
                            (g[gi - 3] if gi >= 3 else self.gaps[b + ds_ - 1][36 + gi - 3]).sc.append(off[0])
                            g[gi - 2].sc += [off[1], m0]; g[gi - 1].sc.append(off[2])
                        else:
                            g[gi - 2].sc.append(m0)
                            g[gi - 1].sc.append(off)
                    if len(un) > 2 and gi % 6 < 4 and g[gi].ds:
                        pass
                    g[gi].vm.append(ins[i])

    def place_reg_tiles(self):
        self.dbase = 0
        awr = V(247) if self.p4 else AWR
        for h in range(2):
            its = [self.KV[(h, j)] for j in range(32) if getattr(self.KV[(h, j)], "reg", False)]
            start = float(self.cfg["rp_start0" if h == 0 else "rp_start1"])
            last_s = -1
            for k, it in enumerate(its):
                s = 52 * h + self.rp_load_step(h, k)
                while len([gi for gi in (5, 11, 17, 29, 35) if not self.gaps[s][gi].vm]) < 3 or s <= last_s: s += 1
                if h == 1: self.rp1_first[k] = s * 36 + min(gi for gi in (5, 11, 17, 29, 35) if not self.gaps[s][gi].vm)
                last_s = s
                assert s + 2 <= it.issue, (it, s)
                g = self.gaps[s]
                off = self.kv_off(s_rp, it)
                if isinstance(off, list):
                    for q, x in enumerate(off): g[1 + q].sc.append(x)
                else:
                    g[3].sc.append(off)
                free = [gi for gi in (5, 11, 17, 29, 35) if not g[gi].vm][:3]
                assert len(free) == 3, (s, free)
                for i, gi in enumerate(free):
                    g[gi].vm.append(vload(A(12 * k + 4 * i, 4), DKV[i], SRD_K if it.kind == "K" else SRD_V, s_rp, 1024 * i,
                                          " nt" if self.cfg["nt_kv"] else "", tag=("reg", it.name)))
                it.rk = k
            for b in sorted({it.issue for it in its}):
                grp = [it for it in its if it.issue == b]
                wr = []
                for it in grp:
                    off = it.slot * SLOT
                    pre = []
                    if not (0 <= off - self.dbase and off - self.dbase + 2048 + 1024 <= 65536):
                        nb = min(off, (self.R - 5) * SLOT)
                        d = nb - self.dbase
                        self.dbase = nb
                        pre = [valu("v_add_u32", awr, d, awr) if d > 0 else valu("v_subrev_u32", awr, -d, awr)]
                    wr.append((it, pre, [ds_write(awr, A(12 * it.rk + 4 * i, 4), off - self.dbase + 1024 * i, tag=("dump", it.name)) for i in range(3)]))
                if b % 52 == 19:
                    blk = []
                    for it, pre, w in wr: blk += [WaitTag([("reg", it.name)])] + pre + w
                    self.dump_block[b] = blk
                    continue
                cand = [(b, gi) for gi in range(24, 36)] + [(b + 1, gi) for gi in range(0, 22)]
                ci = 0
                for it, pre, w in wr:
                    first = True
                    for x in w:
                        while True:
                            st_, gi = cand[ci]
                            gp = self.gaps[st_][gi]
                            ok = not gp.vm and gp.free() >= 1 and len(gp.ds) < 2
                            if first and pre:
                                pst, pg = cand[ci - 1] if ci > 0 else (None, None)
                                ok = ok and ci > 0
                            if ok: break
                            ci += 1
                        if first:
                            gp.sc.append(WaitTag([("reg", it.name)]))
                            if pre:
                                pst, pg = cand[ci - 1]
                                self.gaps[pst][pg].va += pre
                            first = False
                        gp.ds.append(x)
                        ci += 1

    def frame3(self, s, mf):
        it = self.item[s]
        nx = self.item[s + 1] if s + 1 < self.NS else None
        gaps = [Gap(mf(i, FB((i // 6) % 3, (i // 3) % 2))) for i in range(36)]
        nds = [0] * 6
        self.pending_fix = []
        for Gi in range(6):
            if Gi < 4:
                nds[Gi] = self.place_reads3(gaps, 6 * Gi, it, Gi + 2)
            elif nx is not None:
                nds[Gi] = self.place_reads3(gaps, 6 * Gi, nx, Gi - 4, cur=it)
        xs = [x for x in self.X.values() if x.need == s]
        if xs:
            rd = self.x_reads3(xs[0])
            for k, gi in enumerate((24, 25, 26, 27, 30, 31)):
                gaps[gi].ds.append(rd[k])
            nds[4] += 4
            nds[5] += 2
        need = [("item", x.name) for x in self.seq if x.need == s]
        for Gi in range(6):
            gi = 6 * Gi + 5
            if Gi == 3 and nx is not None:
                lt = [("dump", x.name) for x in self.seq if x.need == s]
                bar = barrier()
                bar.info = lt
                gaps[gi].sc += [WaitTag(need, lgkm="auto", ltags=lt), bar]
            elif Gi == 5:
                if nx is not None: gaps[gi].sc.append(WaitTag([], lgkm="auto"))
            else:
                gaps[gi].sc.append(WaitTag([], lgkm="auto"))
        self.fixes[s] = self.pending_fix
        if self.cfg["steptime"]:
            gaps[24].post.append(I("s_memtime s[92:93]", "salu"))
            gaps[33].post += [raw("s_waitcnt lgkmcnt(0)"), raw(f"v_writelane_b32 v{253 + s // 64}, s92, {s % 64}", "valu")]
        self.gaps[s] = gaps

    @staticmethod
    def g_kstep(j):
        if j < 12: return 0, j // 6, j % 6
        r = j - 12
        return 1 + r // 12, (r % 12) // 6, r % 6

    def g_bidx(self, j):
        q, hh, kb = self.g_kstep(j)
        return None if q == 0 else j - 12

    def g_breg(self, j, qb):
        q, hh, kb = self.g_kstep(j)
        if q == 0: return O0P(kb, qb) if hh == 0 else QF(kb, qb)
        return A(12 * (self.g_bidx(j) % 12) + 4 * qb, 4)

    def frame_g(self, j):
        s = 104 + j
        it = self.item[s]
        nx = self.item[s + 1] if s + 1 < self.NS else None
        buf = lambda jj, G: (5 * jj + G) % 3

        def mf(i):
            t, qb = i // 3, i % 3
            return mfma(GACC(t, qb), FB(buf(j, i // 6), t % 2), self.g_breg(j, qb), 0 if j == 0 else GACC(t, qb))
        gaps = [Gap(mf(i)) for i in range(30)]
        self.pending_fix = []
        for Gi in range(5):
            if Gi < 3:
                self.place_reads3(gaps, 6 * Gi, it, Gi + 2, buf=buf(j, Gi + 2))
            elif nx is not None:
                self.place_reads3(gaps, 6 * Gi, nx, Gi - 3, cur=it, buf=buf(j + 1, Gi - 3))
        need = [("item", x.name) for x in self.seq if x.need == s]
        if j + 1 < 48 and self.g_bidx(j + 1) is not None: need.append(("bl", j + 1))
        for Gi in range(5):
            gi = 6 * Gi + 5
            if Gi == 2 and nx is not None:
                gaps[gi].sc += [WaitTag(need, lgkm="auto"), barrier()]
            elif Gi == 4:
                if nx is not None: gaps[gi].sc.append(WaitTag([], lgkm="auto"))
            else:
                gaps[gi].sc.append(WaitTag([], lgkm="auto"))
        self.fixes[s] = self.pending_fix
        if self.cfg["steptime"]:
            gaps[18].post.append(I("s_memtime s[92:93]", "salu"))
            gaps[27].post += [raw("s_waitcnt lgkmcnt(0)"), raw(f"v_writelane_b32 v{253 + s // 64}, s92, {s % 64}", "valu")]
        self.gaps[s] = gaps

    def build_frames(self):
        for h in range(2):
            for t in range(20):
                def mf(i, fr, t=t):
                    T, qb = i // 3, i % 3
                    return mfma(ACC(T, qb), fr, XF(t // 2, t % 2, qb), 0 if t == 0 else ACC(T, qb))
                self.frame3(52 * h + t, mf)
            for j in range(32):
                kind, n = a_item(j)
                p = n % 2
                if kind == "K":
                    def mf(i, fr, p=p, n=n):
                        f, qb = i // 3, i % 3
                        kt, kb = f // 6, f % 6
                        c = (0 if n < 2 else NEGM(qb)) if kb == 0 else SB(p, kt, qb)
                        return mfma(SB(p, kt, qb), fr, QF(kb, qb), c)
                else:
                    def mf(i, fr, p=p, n=n):
                        T, qb = i // 3, i % 3
                        return mfma(OA(T, qb), fr, PB(p, qb), 0 if n == 0 else OA(T, qb))
                self.frame3(52 * h + 20 + j, mf)
        if self.p4:
            for j in range(48): self.frame_g(j)
            return
        for j in range(40):
            c, s = o_cs(j, self.cfg["hide_n"])

            def mf(i, fr, s=s, p=c % 2):
                f, qb = i // 3, i % 3
                jj, nt = f // 4, f % 4
                ks = 3 * s + jj
                h, kb = ks // 6, ks % 6
                b = O0P(kb, qb) if h == 0 else QF(kb, qb)
                return mfma(OACC(p, nt, qb), fr, b, 0 if ks == 0 else OACC(p, nt, qb))
            self.frame3(104 + j, mf)

    def a_fill(self, h):
        s0 = 52 * h + 20
        gaps = [g for j in range(32) for g in self.gaps[s0 + j]]
        Gx = lambda j, i=0: 36 * j + i
        mops, fin = self.max_ops(0)
        for o in mops: o.earliest = Gx(1, 0)
        sm0, _ = self.softmax_ops(0, sub_deps=fin, earliest_kt=(Gx(1, 0), Gx(1, 2)))
        pend = list_schedule(gaps, mops + sm0, Gx(1, 0), Gx(2, 0))
        self.post[s0 + 1] += autonop(self.emit_tail(pend)) + [valu("v_mov_b32", L(qb), LT(qb)) for qb in range(3)]
        for n in range(1, 16):
            p = n % 2
            j0 = 2 * n
            j1 = j0 + 2 if n <= 14 else j0 + 1
            sub = [None, None, None] if n == 1 else None
            sm, ltl = self.softmax_ops(p, sub_deps=sub, earliest_kt=(Gx(j0, 0), Gx(j0, 3)), lacc=(n > 1))
            pend = list_schedule(gaps, sm + self.check_ops(ltl, p), Gx(j0, 0), Gx(j1, 0))
            self.post[s0 + j1 - 1] += autonop(self.emit_tail(pend)) + self.check_branch(p)
            if n == 15: self.post[s0 + j1 - 1] += self.l_acc()

    RINV = [V(192), V(193), V(194)]

    def rinv_fill(self, h):
        gaps = self.gaps[52 * h + 51]
        y = [MT(3 + qb) for qb in range(3)]
        dst = self.RINV if h == 0 else [MT(8), MT(9), MT(10)]
        ops, prev = [], [None] * 3
        for sw in ("v_permlane32_swap_b32", "v_permlane16_swap_b32"):
            for qb in range(3):
                o = Op(valu("v_mov_b32", y[qb], L(qb)), [(prev[qb], 0)] if prev[qb] else []); ops.append(o); prev[qb] = o
            for qb in range(3):
                o = Op(perm(sw, L(qb), y[qb]), [(prev[qb], 2)]); ops.append(o); prev[qb] = o
            for qb in range(3):
                o = Op(valu("v_add_f32", L(qb), L(qb), y[qb]), [(prev[qb], 1)]); ops.append(o); prev[qb] = o
        for qb in range(3):
            o = Op(vrcp(dst[qb], L(qb)), [(prev[qb], 0)]); ops.append(o)
        assert not list_schedule(gaps, ops, 0, 36)

    def norm_ops(self, h, tsets, rinv):
        ops, last_use, rd_last, unit_last = [], [[] for _ in tsets], {}, {}
        store_dep = [None for _ in tsets]
        k = 0
        for kb in range(6):
            for qb in range(3):
                ts = k % len(tsets)
                t = tsets[ts]
                dep0 = [(x, 0) for x in last_use[ts]] + ([(store_dep[ts], 2)] if store_dep[ts] else [])
                rds = []
                for tt, T in enumerate((2 * kb, 2 * kb + 1)):
                    for r in range(4):
                        o = Op(I(f"v_accvgpr_read_b32 v{t + 4 * tt + r}, {rtxt(OAr(T, qb, r))}", "valu", [V(t + 4 * tt + r)], [OAr(T, qb, r)]), list(dep0))
                        ops.append(o); rds.append(o)
                        rd_last[T] = o
                mul = []
                for r in range(8):
                    o = Op(valu("v_mul_f32", V(t + r), V(t + r), rinv[qb]), [(rds[r], 0)]); ops.append(o); mul.append(o)
                cv = []
                for r in range(4):
                    d = V(t + r) if h == 0 else QFr(kb, qb, r)
                    deps = [(mul[2 * r], 0), (mul[2 * r + 1], 0)] + ([(cv[-1], 0)] if cv and h == 0 else [])
                    o = Op(valu("v_cvt_pk_bf16_f32", d, V(t + 2 * r), V(t + 2 * r + 1)), deps); ops.append(o); cv.append(o)
                fin = cv
                if h == 0:
                    fin = []
                    for r in range(4):
                        o = Op(I(f"v_accvgpr_write_b32 {rtxt(O0Pr(kb, qb, r))}, v{t + r}", "valu", [O0Pr(kb, qb, r)], [V(t + r)]), [(cv[r], 0), (cv[-1], 0)])
                        ops.append(o); fin.append(o)
                if h == 0 and self.p4 and int(self.cfg["o0_start"]) < 0:
                    deps = [(cv[-1], 0)] + ([(self._ost_adv, 0)] if getattr(self, "_ost_adv", None) else [])
                    st = Op(vstore(V(t, 4), VOX, SRD_WS, s_bl, 1024 * qb, " sc1", tag=("ost", 0)), deps)
                    ops.append(st)
                    fin = fin + [st]
                    self._ost_last = st
                    if qb == 2 and kb < 5:
                        self._ost_adv = Op(salu("s_add_u32", s_bl, s_bl, 3072), [(st, 0)])
                        ops.append(self._ost_adv)
                    last_use[ts] = [(x) for x in fin]
                    store_dep[ts] = st
                else:
                    last_use[ts] = fin
                unit_last[(kb, qb)] = fin
                k += 1
        return ops, rd_last, unit_last

    def n0_fill(self):
        gaps = [g for s in range(52, 72) for g in self.gaps[s]]
        ops, rd_last, _ = self.norm_ops(0, [198, 206], self.RINV)
        pend = list_schedule(gaps, ops, 0, 36 * 19)
        assert not pend, len(pend)
        if self.p4 and int(self.cfg["o0_start"]) >= 104:
            pass
        elif self.p4 and int(self.cfg["o0_start"]) >= 0:
            self.o0_stores()
        elif self.p4:
            fs = self._ost_last.gap // 36 + int(self.cfg["d_oflag"])
            assert fs <= 19, fs
            self.add_wait_tag(gaps, fs, ("ost", 0))
            gaps[36 * fs + 24].va.insert(0, valu("v_mov_b32", V(214), 1))
            gaps[36 * fs + 29].vm.append(vstore(V(214), VFO, SRD_WS, s_t[5], 0, " sc1", tag=("flag",), width=1))
        self.n0_free = {T: 52 * 36 + o.gap for T, o in rd_last.items()}
        for k, g0 in self.rp1_first.items():
            assert self.n0_free[k] < g0, (k, self.n0_free[k], g0)

    def o0_stores(self):
        s0, per = int(self.cfg["o0_start"]), int(self.cfg["o0_per"])
        s, k = s0, 0
        units = [(kb, qb) for kb in range(6) for qb in range(3)]
        while k < 18:
            g = self.gaps[s]
            free = [gi for gi in (5, 11, 17, 29, 35) if not g[gi].vm and g[gi].free() >= 2][:per]
            for gi in free:
                if k == 18: break
                kb, qb = units[k]
                if qb == 0:
                    g[gi - 2].sc.append(salu("s_add_u32", s_bl, s_oown, 3072 * kb))
                g[gi].vm.append(vstore(O0P(kb, qb), VOX, SRD_WS, s_bl, 1024 * qb, " sc1", tag=("ost", 0)))
                k += 1
            s += 1
        assert s <= 104, s
        return
        fs = s - 1 + int(self.cfg["d_oflag"])
        allg = [x for st_ in range(self.NS) if self.gaps[st_] for x in self.gaps[st_]]
        for x in self.gaps[fs][23].sc:
            if isinstance(x, WaitTag): x.tag = ("waittag", x.tag[1] + (("ost", 0),))
        vt = V(214) if fs < 72 else V(139)
        self.gaps[fs][24].va.insert(0, valu("v_mov_b32", vt, 1))
        gi = [q for q in (29, 35) if not self.gaps[fs][q].vm][0]
        self.gaps[fs][gi].vm.append(vstore(vt, VFO, SRD_WS, s_t[5], 0, " sc1", tag=("flag",), width=1))
        self.o0_flag_step = fs

    def n1_fill(self):
        gaps = [g for j in range(8) for g in self.gaps[104 + j]]
        rinv = [MT(8), MT(9), MT(10)]
        ops, _, unit_last = self.norm_ops(1, [112, 120], rinv)
        done = []
        lim = {kb: 36 * (4 + kb // 3) + 12 * (kb % 3) - 1 for kb in range(6)}
        g = 0
        rest = ops
        for kb in range(6):
            mine = [o for o in rest if any(o in unit_ops for unit_ops in [self._unit_ops(ops, kb)])]
            pend = list_schedule(gaps, mine, g, lim[kb])
            if pend:
                gi = lim[kb]
                gaps[gi].post += autonop([o.ins for o in pend]) + [nop(1)]
                for o in pend: o.gap = gi + 1
            rest = [o for o in rest if o not in mine]

    def _unit_ops(self, ops, kb):
        return ops[60 * kb:60 * kb + 60]

    def n_block(self, h):
        out = []
        if h == 1 and self.cfg["fused"]:
            out += self.hu_setup()
        out += self.rinv_ops()
        tmp = [V(0 + 8 * k, 8) for k in range(3)]
        pk = [V(24 + 4 * k, 4) for k in range(3)]
        for kb in range(6):
            for qb in range(3):
                t = tmp[qb][1]
                for tt, T in enumerate((2 * kb, 2 * kb + 1)):
                    for r in range(4):
                        out.append(I(f"v_accvgpr_read_b32 v{t + 4 * tt + r}, {rtxt(OAr(T, qb, r))}", "valu",
                                     [V(t + 4 * tt + r)], [OAr(T, qb, r)]))
            for qb in range(3):
                t = tmp[qb][1]
                for h2 in range(4):
                    out.append(valu("v_pk_mul_f32", V(t + 2 * h2, 2), V(t + 2 * h2, 2), V(MT(8 + 2 * qb)[1], 2)))
            for qb in range(3):
                t = tmp[qb][1]
                for r in range(4):
                    d = V(pk[qb][1] + r) if h == 0 else QFr(kb, qb, r)
                    out.append(valu("v_cvt_pk_bf16_f32", d, V(t + 2 * r), V(t + 2 * r + 1)))
            if h == 0:
                for qb in range(3):
                    for r in range(4):
                        out.append(I(f"v_accvgpr_write_b32 {rtxt(O0Pr(kb, qb, r))}, v{pk[qb][1] + r}", "valu",
                                     [O0Pr(kb, qb, r)], [V(pk[qb][1] + r)]))
        return autonop(out)

    def mask_test(self, k, mask):
        return [I(f"v_cmp_le_u32 vcc, {k}, {rtxt(FLG)}", "valu", [], [FLG]), raw("s_nop 0"),
                raw(f"s_and_b32 {rtxt(s_t[1])}, vcc_lo, {rtxt(mask)}"), raw(f"s_cmp_eq_u32 {rtxt(s_t[1])}, {rtxt(mask)}")]

    def mask_spin(self, k, mask, name, first_wait):
        body = [raw(f"s_sleep {self.cfg['spin_sleep']}"), I(self.poll_load(None).txt, "salu"), raw("s_waitcnt vmcnt(0)")]
        body += [I(x.txt, "salu") for x in self.mask_test(k, mask)]
        o = [first_wait, scmp("s_cmp_eq_u32", s_w, int(self.cfg["poll_wave"])), branch("s_cbranch_scc0", f"{name}_ok")]
        o += self.mask_test(k, mask) + [branch("s_cbranch_scc1", f"{name}_ok"), salu("s_mov_b32", s_t[0], 1 << 18), label(f"{name}_loop")]
        o += [salu("s_sub_u32", s_t[0], s_t[0], 1), branch("s_cbranch_scc1", f"{name}_ok")]
        o += body + [branch("s_cbranch_scc0", f"{name}_loop"), label(f"{name}_ok")]
        return o

    def g_bloads(self, j):
        q, hh, kb = self.g_kstep(j)
        e = self.g_bidx(j) % 12
        so = s_bl2[self.g_bidx(j) % 2]
        return (salu("s_add_u32", so, s_oq[q], hh * 73728 + kb * 3072),
                [vload(A(12 * e + 4 * qb, 4), VOX, SRD_WS, so, 1024 * qb, " sc1", tag=("bl", j)) for qb in range(3)])

    def g_check_block(self):
        o = [WaitTag([("chk",)]), scmp("s_cmp_eq_u32", s_w, 0), branch("s_cbranch_scc0", "L_chk_ok"),
             I(f"v_readfirstlane_b32 {rtxt(s_t[1])}, {rtxt(VCHK)}", "valu", [s_t[1]], [VCHK]), raw("s_nop 3"),
             scmp("s_cmp_ge_u32", s_t[1], 16), branch("s_cbranch_scc1", "L_chk_ok"),
             salu("s_mov_b32", s_t[0], 1 << 18), label("L_chk_loop"),
             salu("s_sub_u32", s_t[0], s_t[0], 1), branch("s_cbranch_scc1", "L_chk_ok"), raw("s_sleep 8"),
             I(f"buffer_load_dword {rtxt(VCHK)}, {rtxt(VFO)}, {rtxt(SRD_DBG)}, {rtxt(s_b16)} offen sc1", "salu"), raw("s_waitcnt vmcnt(0)"),
             I(f"v_readfirstlane_b32 {rtxt(s_t[1])}, {rtxt(VCHK)}", "salu"), raw("s_nop 3"),
             scmp("s_cmp_ge_u32", s_t[1], 16), branch("s_cbranch_scc0", "L_chk_loop"), label("L_chk_ok"),
             salu("s_lshl_b32", s_b16, s_b, 8), salu("s_add_u32", s_b16, s_b16, FLAG_OFF),
             valu("v_subrev_u32", V(138), 64 * int(self.cfg["poll_wave"]), TID),
             valu("v_lshlrev_b32", V(137), 2, V(138)), valu("v_mov_b32", VPOLL, 0x7FFFFF00),
             I("v_cmp_gt_u32 vcc, 16, v138", "valu", [], [V(138)]), nop(1),
             I(f"v_cndmask_b32 {rtxt(VPOLL)}, {rtxt(VPOLL)}, v137, vcc", "valu", [VPOLL], [VPOLL, V(137)])]
        return o

    def g_n1_block(self):
        out = srd(SRD_OUT, None, 16 * 192 * 640 * 2, s_outp) + [salu("s_add_u32", s_bl, s_oown, 73728)]
        rinv = [MT(8), MT(9), MT(10)]
        first = []
        tmp = [V(0 + 8 * k, 8) for k in range(3)]
        in_blk = int(self.cfg["o0_start"]) >= 104
        for kb in range(6):
            if in_blk: out.append(salu("s_add_u32", s_bl2[0], s_oown, 3072 * kb))
            for qb in range(3):
                t = tmp[qb][1]
                if in_blk: out.append(vstore(O0P(kb, qb), VOX, SRD_WS, s_bl2[0], 1024 * qb, " sc1", tag=("ost", 0)))
                for tt, T in enumerate((2 * kb, 2 * kb + 1)):
                    for r in range(4):
                        out.append(I(f"v_accvgpr_read_b32 v{t + 4 * tt + r}, {rtxt(OAr(T, qb, r))}", "valu", [V(t + 4 * tt + r)], [OAr(T, qb, r)]))
            for qb in range(3):
                t = tmp[qb][1]
                for h2 in range(4):
                    out.append(valu("v_pk_mul_f32", V(t + 2 * h2, 2), V(t + 2 * h2, 2), V(RIN2[qb][1], 2)))
            for qb in range(3):
                t = tmp[qb][1]
                for r in range(4):
                    out.append(valu("v_cvt_pk_bf16_f32", QFr(kb, qb, r), V(t + 2 * r), V(t + 2 * r + 1)))
            for qb in range(3):
                out.append(vstore(QF(kb, qb), VOX, SRD_WS, s_bl, 1024 * qb, " sc1", tag=("ost", 1)))
            if kb < 5: out.append(salu("s_add_u32", s_bl, s_bl, 3072))
            for j in first:
                if (self.g_bidx(j) % 12) // 2 == kb:
                    su, ld = self.g_bloads(j)
                    out += [su] + ld
        dup = []
        for qb in range(3):
            dup += [valu("v_mov_b32", V(RIN2[qb][1]), rinv[qb]), valu("v_mov_b32", V(RIN2[qb][1] + 1), rinv[qb])]
        return autonop(dup + out)

    def g_fill(self):
        G0 = 104
        gaps = lambda j: self.gaps[G0 + j]
        d_bl = int(self.cfg["d_bl"])
        fs = int(self.cfg["g_oflag"])
        for x in gaps(fs)[17].sc:
            if isinstance(x, WaitTag): x.tag = ("waittag", x.tag[1] + (("ost", 1), ("ost", 0)))
        gaps(fs)[18].va.insert(0, valu("v_mov_b32", VFV, 2))
        gaps(fs)[23].vm.append(self.flag_store())
        ps = fs + int(self.cfg["g_poll"])
        cs = ps + int(self.cfg["g_chk"])
        gaps(ps)[29].vm.append(self.poll_load(("poll", "o1")))
        self.post[G0 + cs - 1] += self.mask_spin(2, s_mgrp, "L_spb", WaitTag([("poll", "o1")]))
        self.bl_issue = {}
        nxt = 12
        for js in range(cs, 48):
            g = gaps(js)
            sets = [(23, 28, 29)] if js == cs else [(11, 16, 28), (5, 23, 29)]
            chosen = []
            for pos in sets:
                k_ = nxt + len(chosen)
                if k_ >= 48 or k_ - js > d_bl or any(g[gi].vm for gi in pos): continue
                chosen.append(pos)
            chosen.sort()
            for pos in chosen:
                su, ld = self.g_bloads(nxt)
                g[pos[0] - 2].sc.append(su)
                for x, gi in zip(ld, pos): g[gi].vm.append(x)
                self.bl_issue[nxt] = js
                nxt += 1
        assert nxt == 48
        for j, js in self.bl_issue.items():
            assert js < j, (j, js)
            if j - 12 >= 12: assert js > j - 12, (j, js)
        lane, g_, m_, t0, t1, d1 = V(133 + 3), V(137), V(138), V(139), V(124), V(125)
        cnd = lambda d, b: I(f"v_cndmask_b32 {rtxt(d)}, 0, {rtxt(b)}, vcc", "valu", [d], [b])
        cmp_ = lambda txt, u: I(txt, "valu", [], [u])
        lane = V(126)
        o = [valu("v_and_b32", lane, 63, TID), valu("v_lshrrev_b32", g_, 4, lane), valu("v_and_b32", m_, 15, lane),
             valu("v_mul_u32_u24", t0, 1280, m_), valu("v_lshlrev_b32", t1, 4, g_), valu("v_add_u32", VOUT, t0, t1),
             valu("v_lshlrev_b32", VZ, 4, lane),
             valu("v_lshrrev_b32", t0, 2, m_), valu("v_and_b32", t1, 1, t0), valu("v_lshlrev_b32", t1, 4, t1),
             valu("v_lshrrev_b32", t0, 1, t0), valu("v_lshlrev_b32", t0, 2, t0), valu("v_add_u32", t1, t1, t0),
             valu("v_and_b32", t0, 3, m_), valu("v_add_u32", t1, t1, t0),
             valu("v_lshlrev_b32", t0, 3, g_), valu("v_sub_u32", d1, t1, t0)]
        for k in range(2):
            if k: o.append(valu("v_add_u32", d1, 8, d1))
            o += [valu("v_and_b32", t0, 1, d1), valu("v_lshlrev_b32", t0, 4, t0), valu("v_mov_b32", t1, 0x3F80),
                  valu("v_lshlrev_b32", t1, t0, t1), valu("v_lshrrev_b32", t0, 1, d1)]
            for d in range(4):
                o += [cmp_(f"v_cmp_eq_u32 vcc, {d}, {rtxt(t0)}", t0), cnd(V(SEL[k][1] + d), t1)]
        allg = [g for j in range(48) for g in gaps(j)]
        ops, prev = [], None
        for x in o:
            op = Op(x, [(prev, 2 if x.txt.startswith("v_cndmask") else 0)] if prev else [], earliest=30 * 1)
            ops.append(op); prev = op
        assert not list_schedule(allg, ops, 30 * 1, 30 * 40)
        self.post[self.NS - 1] += self.g_tail()

    def g_out_scalars(self):
        o = []
        for k in range(4):
            u, ntp, qb, a = s_t[0], s_t[2], s_t[3], S(76 + k)
            o += [salu("s_add_u32", u, s_w, 4 * k), salu("s_mul_hi_u32", ntp, u, (2 ** 32 + 2) // 3), salu("s_mul_i32", qb, ntp, 3),
                  salu("s_sub_u32", qb, u, qb), salu("s_lshl_b32", qb, qb, 4), salu("s_mul_i32", a, qb, 1280),
                  salu("s_lshl_b32", ntp, ntp, 6), salu("s_add_u32", a, a, ntp), salu("s_add_u32", a, a, s_oout)]
            if k == 3:
                o += [scmp("s_cmp_ge_u32", u, 15), salu("s_cselect_b32", a, 0x7FFF0000, a)]
        return o

    def g_unit_ops(self):
        res = []
        for ntp in range(5):
            for qb in range(3):
                a, b = GACC(2 * ntp, qb)[1], GACC(2 * ntp + 1, qb)[1]
                cv = [valu("v_cvt_pk_bf16_f32", V(a), V(a), V(a + 1)), valu("v_cvt_pk_bf16_f32", V(a + 1), V(a + 2), V(a + 3)),
                      valu("v_cvt_pk_bf16_f32", V(a + 2), V(b), V(b + 1)), valu("v_cvt_pk_bf16_f32", V(a + 3), V(b + 2), V(b + 3))]
                u = ntp * 3 + qb
                so = s_bl2[(u // 4) % 2]
                sc = salu("s_add_u32", so, s_px, 1024 * u) if u % 4 == 0 else None
                res.append((ntp, cv, sc, vstore(V(a, 4), PSL16, SRD_WS, so, 1024 * (u % 4), " sc1", tag=("pst",))))
        return res

    def g_tail(self):
        units = self.g_unit_ops()
        left = []
        if self.cfg["g_hide_tail"]:
            gaps = self.gaps[self.NS - 1]
            allg = [g for j in range(48) for g in self.gaps[104 + j]]
            end = self.spread_scalars(allg, self.g_out_scalars(), 30 * 42)
            assert end <= 30 * 47
            ops, prev_st = [], None
            per_unit = []
            for ntp, cv, sc, st in units:
                e = 6 * ntp + 5 + 4
                oc, prev = [], None
                for x in cv:
                    op = Op(x, [(prev, 0)] if prev else [], earliest=e); oc.append(op); prev = op
                deps = [(prev, 0)] + ([(prev_st, 0)] if prev_st else [])
                if sc is not None:
                    osc = Op(sc, [(prev_st, 0)] if prev_st else [], earliest=e); oc.append(osc); deps.append((osc, 0))
                ost = Op(st, deps, earliest=e); oc.append(ost); prev_st = ost
                ops += oc
            left = [o_.ins for o_ in list_schedule(gaps, ops, 0, 30)]
            o = autonop([nop(7)] + left)
        else:
            o = [nop(7)]
            for ntp, cv, sc, st in units:
                o += cv + ([sc] if sc is not None else []) + [st]
            o = autonop(o)
        o += self.tstamp(0)
        if not self.cfg["g_hide_tail"]: o += self.g_out_scalars()
        o += [WaitTag([("pst",)]), barrier()] + self.tstamp(1)
        o += [valu("v_mov_b32", VFV, 3), self.flag_store(), self.poll_load(("poll", "fin"))]
        o += self.mask_spin(3, s_mfin, "L_spf", WaitTag([("poll", "fin")])) + [barrier()] + self.tstamp(2)
        for k in range(4):
            for ks in range(4):
                o += [salu("s_add_u32", s_bl, s_pin, ks * 61440 + 4096 * k),
                      vload(A(16 * k + 4 * ks, 4), VZ, SRD_WS, s_bl, 0, " sc1", tag=("red", 7, k, ks))]
        o += self.tstamp(3)
        for k in range(4):
            o.append(WaitTag([("red", 7, k, 3)]))
            for ks in range(4):
                for h in range(2):
                    o.append(mfma(RD[h], SEL[h], A(16 * k + 4 * ks, 4), 0 if ks == 0 else RD[h]))
            o.append(nop(7))
            for h in range(2):
                a = RD[h][1]
                o += [valu("v_cvt_pk_bf16_f32", V(2 * h), V(a), V(a + 1)), valu("v_cvt_pk_bf16_f32", V(2 * h + 1), V(a + 2), V(a + 3))]
            o += [vstore(V(0, 4), VOUT, SRD_OUT, S(76 + k), 0, self.cfg["out_flags"], tag=("out", k)), nop(1)]
        o += self.tstamp(4)
        return o

    def o_fill(self):
        gaps = [g for j in range(40) for g in self.gaps[104 + j]]

        def cvts(p):
            ops = []
            for ntp in range(2):
                for qb in range(3):
                    u = ntp * 3 + qb
                    for h in range(2):
                        a = OACC(p, 2 * ntp + h, qb)[1]
                        ops.append(valu("v_cvt_pk_bf16_f32", CTr(u, 2 * h), V(a), V(a + 1)))
                        ops.append(valu("v_cvt_pk_bf16_f32", CTr(u, 2 * h + 1), V(a + 2), V(a + 3)))
            return ops

        def store(u, c):
            return vstore(CT(u), PSV, SRD_WS, s_pst[u // 4], (u % 4) * 1024, self.cfg["pst_flags"], tag=("st", c))

        spos = [(0, 22), (0, 34), (1, 10), (1, 22), (1, 34), (2, 10)]
        last_step = {}
        for j in range(40): last_step[o_cs(j, self.cfg["hide_n"])[0]] = j
        prev_store_gap = -1
        for c in range(9):
            j0 = last_step[c] + 1
            g0 = 36 * j0
            e0 = max(g0 + 3, prev_store_gap + 1)
            ops = [Op(x, earliest=e0) for x in cvts(c % 2)]
            pos = [g0 + 36 * s + gi for s, gi in spos]
            pos = [p_ for p_ in pos if p_ > e0 + 8]
            k = 3
            while len(pos) < 6:
                nxt = g0 + 36 * (k // 1) + (10, 22, 34)[0]
                for gi in (10, 22, 34):
                    p_ = g0 + 36 * 2 + gi if k == 3 else g0 + 36 * (k - 1) + gi
                    if p_ not in pos and p_ > (pos[-1] if pos else 0) and len(pos) < 6: pos.append(p_)
                k += 1
            for u, p_ in enumerate(pos):
                if not self.cfg["no_st"]:
                    gaps[p_].vm.append(store(u, c))
            assert not list_schedule(gaps, ops, e0, e0 + 40)
            for u, p_ in enumerate(pos):
                assert max(o.gap for o in ops[4 * u:4 * u + 4]) < p_, (c, u, p_)
            prev_store_gap = pos[-1]
            self.last_store = getattr(self, "last_store", {})
            self.last_store[c] = pos[-1]
            ga = pos[-1] + 1
            gaps[ga].sc.append(salu("s_add_u32", s_pst[0], s_pst[0], 24576))
            gaps[ga + 1].sc.append(salu("s_add_u32", s_pst[1], s_pst[1], 24576))
        fused = self.cfg["fused"]
        if fused:
            self.hu_fill(gaps)
        tail = autonop([nop(7)] + cvts(1) + [store(u, 9) for u in range(6)])
        if fused: tail += self.hu_tail()
        self.post[143] += tail

    HU_NEED = [1, 2, 3, 5, 6, 7, 8, 9]
    HU_BASE = [0, 64, 128, 192, 256, 320, 384, 432]
    HU_LIM = [480, 480, 480, 480, 480, 480, 432, 480]

    def hu_buf(self, rho, t): return A(32 * (rho % 4 if rho in self.hu_inloop else rho) + 4 * t, 4)

    def hu_load(self, rho, t):
        return vload(self.hu_buf(rho, t), VHL, SRD_WS, s_rl2[rho % 2], 0, self.cfg["red_flags"], tag=("red", rho, t))

    def hu_adv(self, rho):
        return salu("s_add_u32", s_rl2[rho % 2], s_rl2[rho % 2], 2 * 245760)

    def s_out(self, rho):
        return S(76 + rho) if self.cfg["hu_pre"] else s_ro[rho % 2]

    def hu_mfma(self, rho):
        o = []
        for t in range(8):
            if t % 4 == 0: o.append(WaitTag([("red", rho, t + 3)]))
            o.append(mfma(RD[0], SEL[0], self.hu_buf(rho, t), 0 if t == 0 else RD[0]))
        a = RD[0][1]
        o += [nop(7), valu("v_cvt_pk_bf16_f32", V(RD[1][1]), V(a), V(a + 1)), valu("v_cvt_pk_bf16_f32", V(RD[1][1] + 1), V(a + 2), V(a + 3)),
              vstore(V(RD[1][1], 2), VOUT, SRD_OUT, self.s_out(rho), 0, self.cfg["out_flags"], tag=("out", rho), width=2), nop(1)]
        return ([] if self.cfg["hu_pre"] else self.hu_out_off(rho)) + o

    def hu_out_off(self, rho):
        hu, n, c, rem, w2, u, ntp, a = s_t[0], s_t[1], s_t[2], s_t[3], S(100), S(101), S(61), self.s_out(rho)
        o = [salu("s_add_u32", hu, s_kw, self.HU_BASE[rho]), salu("s_lshr_b32", n, hu, 1),
             salu("s_mul_hi_u32", c, n, (2 ** 32 + 23) // 24), salu("s_mul_i32", rem, c, 24), salu("s_sub_u32", rem, n, rem),
             salu("s_mul_hi_u32", w2, rem, (2 ** 32 + 5) // 6), salu("s_mul_i32", u, w2, 6), salu("s_sub_u32", u, rem, u),
             salu("s_mul_hi_u32", ntp, u, (2 ** 32 + 2) // 3), salu("s_mul_i32", rem, ntp, 3), salu("s_sub_u32", u, u, rem),
             salu("s_mul_i32", a, s_b, 192), salu("s_mul_i32", w2, w2, 48), salu("s_add_u32", a, a, w2),
             salu("s_lshl_b32", u, u, 4), salu("s_add_u32", a, a, u), salu("s_mul_i32", a, a, 1280),
             salu("s_lshl_b32", c, c, 7), salu("s_add_u32", a, a, c), salu("s_lshl_b32", ntp, ntp, 6), salu("s_add_u32", a, a, ntp),
             salu("s_and_b32", n, hu, 1), salu("s_lshl_b32", n, n, 4), salu("s_add_u32", a, a, n)]
        if rho >= 6:
            o += [scmp("s_cmp_ge_u32", hu, self.HU_LIM[rho]), salu("s_cselect_b32", a, 0x7FFF0000, a)]
        return o

    def hu_base(self, rho):
        return salu("s_add_u32", s_rl2[rho % 2], s_pb, 512 * self.HU_BASE[rho])

    def hu_setup(self):
        hide = self.cfg["hide_setup"]
        lane, g_, m_, t0, t1 = (V(133), V(134), V(135), V(137), V(138)) if hide else (V(96), V(97), V(98), V(99), V(100))
        o = srd(SRD_OUT, None, 16 * 192 * 640 * 2, s_outp)
        o += [WaitTag([("chk",)]), scmp("s_cmp_eq_u32", s_w, 0), branch("s_cbranch_scc0", "L_chk_ok"),
              I(f"v_readfirstlane_b32 {rtxt(s_t[1])}, {rtxt(VCHK)}", "valu", [s_t[1]], [VCHK]), raw("s_nop 3"),
              scmp("s_cmp_ge_u32", s_t[1], 16), branch("s_cbranch_scc1", "L_chk_ok"),
              salu("s_mov_b32", s_t[0], 1 << 18), label("L_chk_loop"),
              salu("s_sub_u32", s_t[0], s_t[0], 1), branch("s_cbranch_scc1", "L_chk_ok"), raw("s_sleep 8"),
              I(f"buffer_load_dword {rtxt(VCHK)}, {rtxt(VFO)}, {rtxt(SRD_DBG)}, {rtxt(s_b16)} offen sc1", "salu"), raw("s_waitcnt vmcnt(0)"),
              I(f"v_readfirstlane_b32 {rtxt(s_t[1])}, {rtxt(VCHK)}", "salu"), raw("s_nop 3"),
              scmp("s_cmp_ge_u32", s_t[1], 16), branch("s_cbranch_scc0", "L_chk_loop"), label("L_chk_ok")]
        cnd = lambda d, a, b: I(f"v_cndmask_b32 {rtxt(d)}, {rtxt(a)}, {rtxt(b)}, vcc", "valu", [d], [a, b])
        cmp_ = lambda txt, u: I(txt, "valu", [], [u])
        head = o
        o = []
        o += [valu("v_and_b32", lane, 63, TID), valu("v_lshrrev_b32", g_, 4, lane), valu("v_and_b32", m_, 15, lane),
              valu("v_mov_b32", VZ, 0),
              valu("v_mul_u32_u24", t0, 1280, m_), valu("v_and_b32", t1, 1, g_), valu("v_lshlrev_b32", t1, 5, t1), valu("v_add_u32", t0, t0, t1),
              valu("v_lshrrev_b32", t1, 1, g_), valu("v_lshlrev_b32", t1, 3, t1), valu("v_add_u32", VOUT, t0, t1),
              valu("v_lshrrev_b32", t0, 5, lane), valu("v_mul_u32_u24", t0, 245760, t0), valu("v_and_b32", t1, 31, lane),
              valu("v_lshlrev_b32", t1, 4, t1), valu("v_add_u32", VHL, t0, t1),
              valu("v_lshlrev_b32", t0, 2, TID), valu("v_mov_b32", VPOLL, 0x7FFFFF00),
              cmp_(f"v_cmp_gt_u32 vcc, 16, {rtxt(TID)}", TID), nop(1), cnd(VPOLL, VPOLL, t0),
              valu("v_and_b32", t0, 1, m_), valu("v_lshlrev_b32", t0, 4, t0), valu("v_mov_b32", t1, 0x3F80), valu("v_lshlrev_b32", t1, t0, t1),
              valu("v_lshrrev_b32", t0, 3, m_), valu("v_and_b32", g_, 1, g_),
              cmp_(f"v_cmp_eq_u32 vcc, {rtxt(t0)}, {rtxt(g_)}", t0), nop(1), cnd(t1, VZ, t1),
              valu("v_lshrrev_b32", t0, 1, m_), valu("v_and_b32", t0, 3, t0)]
        for d in range(4):
            o += [cmp_(f"v_cmp_eq_u32 vcc, {d}, {rtxt(t0)}", t0), nop(1), cnd(V(SEL[0][1] + d), VZ, t1)]
        if hide:
            self.setup_valu = [x for x in o if x.cls != "nop"]
            o = head
        else:
            o = head + o
        o += [salu("s_lshl_b32", s_b16, s_b, 8), salu("s_add_u32", s_b16, s_b16, FLAG_OFF),
              salu("s_lshl_b32", s_t[0], s_pj, 2), salu("s_add_u32", s_t[5], s_b16, s_t[0]), salu("s_add_u32", s_kw, s_t[0], s_w),
              salu("s_mul_i32", s_pb, s_b, 16 * 245760), salu("s_lshl_b32", s_t[0], s_kw, 9), salu("s_add_u32", s_pb, s_pb, s_t[0]),
              salu("s_add_u32", s_pb, s_pb, PART_OFF)]
        return o

    def add_wait_tag(self, gaps, fs, tag):
        for x in gaps[36 * fs + 23].sc:
            if isinstance(x, WaitTag):
                x.tag = ("waittag", x.tag[1] + (tag,))

    def spread_scalars(self, gaps, ins, g0):
        g = g0
        k = 0
        while k < len(ins):
            while gaps[g].sc or gaps[g].vm: g += 1
            grp = [ins[k]]
            if ins[k].txt.startswith("s_cmp"):
                grp.append(ins[k + 1])
            gaps[g].sc += grp
            k += len(grp)
            g += 1
        return g

    def hu_fill(self, gaps):
        if self.cfg["hide_setup"]:
            ops, prev = [], None
            for x in self.setup_valu:
                d = 2 if x.txt.startswith("v_cndmask") else 0
                op = Op(x, [(prev, d)] if prev else [], earliest=36 * 6)
                ops.append(op); prev = op
            assert not list_schedule(gaps, ops, 36 * 6, 36 * 12)
        if self.cfg["hu_pre"]:
            seq_ = []
            for rho in range(8): seq_ += self.hu_out_off(rho)
            end = self.spread_scalars(gaps, seq_, 36 * 1)
            assert end < 36 * 13, end
        self.hu_fill2(gaps)

    def hu_fill2(self, gaps):
        d_flag, d_poll, d_chk = int(self.cfg["d_flag"]), int(self.cfg["d_poll"]), int(self.cfg["d_chk"])
        n_in = int(self.cfg["hu_in"])
        self.hu_pending = []
        self.hu_inloop = set()
        published = set()
        for rho in range(8):
            c = self.HU_NEED[rho]
            if c >= 8: break
            fs = self.last_store[c] // 36 + d_flag
            if c not in published and fs <= 38:
                published.add(c)
                self.add_wait_tag(gaps, fs, ("st", c))
                gaps[36 * fs + 24].va.insert(0, valu("v_mov_b32", VFV, c + 1))
                gaps[36 * fs + 29].vm.append(self.flag_store())
            ps = fs + d_poll
            cs = ps + d_chk
            if rho >= n_in or cs > 38:
                self.hu_pending.append((rho, 0))
                continue
            self.hu_inloop.add(rho)
            gaps[36 * ps + 35].vm.append(self.poll_load(("poll", rho)))
            self.post[104 + cs - 1] += self.check_spin(c + 1, f"L_sp{rho}", WaitTag([("poll", rho)])) + [self.hu_base(rho)]
            t, st_ = 0, cs
            while t < 8 and st_ < 40:
                for gi in sorted((35, 11, 17)[:int(self.cfg['hu_per'])]):
                    if t == 8: break
                    if st_ == cs and gi < 24: continue
                    g = gaps[36 * st_ + gi]
                    if g.vm: continue
                    g.vm.append(self.hu_load(rho, t))
                    g.post.append(self.hu_adv(rho))
                    t += 1
                st_ += 1
            self.hu_end = getattr(self, "hu_end", {})
            self.hu_end[rho] = st_
            if rho - 2 in self.hu_end: assert self.hu_end[rho - 2] <= cs, (rho, self.hu_end, cs)
            ms = st_ + int(self.cfg["d_mfma"])
            if t == 8 and ms <= 39:
                self.post[104 + ms - 1] += self.hu_mfma(rho)
            else:
                self.hu_pending.append((rho, t, "polled"))

    def hu_tail(self):
        pend = self.hu_pending
        ready = [p[0] for p in pend if len(p) == 3 and p[1] == 8]
        partial = [(p[0], p[1]) for p in pend if len(p) == 3 and p[1] < 8]
        late = [p[0] for p in pend if len(p) == 2]
        flag = lambda k: [valu("v_mov_b32", VFV, k), self.flag_store()]

        def loads(r, t0=0):
            o = [self.hu_base(r)] if t0 == 0 else []
            for t in range(t0, 8): o += [self.hu_load(r, t), self.hu_adv(r)]
            return o
        o = self.tstamp(0)
        if late: o += [self.poll_load(("poll", "late"))]
        o += [WaitTag([("st", 8)]), barrier()] + flag(9)
        for r in ready: o += self.hu_mfma(r)
        o += self.tstamp(1)
        if late:
            c = max(self.HU_NEED[r] for r in late)
            o += self.check_spin(c + 1, "L_spl", WaitTag([("poll", "late")]))
        o += [WaitTag([("st", 9)]), barrier()] + self.tstamp(2) + [self.poll_load(("poll", 9))] + flag(10)
        inflight = []
        for r, t0 in partial:
            o += loads(r, t0)
            inflight.append(r)
        for r in late:
            if len(inflight) >= 4: o += self.hu_mfma(inflight.pop(0))
            o += loads(r)
            inflight.append(r)
        o += self.tstamp(3)
        while len(inflight) > 1: o += self.hu_mfma(inflight.pop(0))
        o += self.check_spin(9, "L_sp9", WaitTag([("poll", 9)])) + [barrier()] + self.tstamp(4)
        o += loads(6) + [self.poll_load(("poll", "fin"))]
        for r in inflight: o += self.hu_mfma(r)
        o += self.tstamp(5) + self.check_spin(10, "L_spf", WaitTag([("poll", "fin")])) + [barrier()] + self.tstamp(6)
        o += loads(7) + self.tstamp(7) + self.hu_mfma(6) + self.tstamp(8) + self.hu_mfma(7) + self.tstamp(9) + self.tstamp(10)
        return o

    def tstamp(self, k):
        if not self.cfg["steptime"]: return []
        return [I("s_memtime s[92:93]", "salu"), raw("s_waitcnt lgkmcnt(0)"), raw(f"v_writelane_b32 v255, s92, {(30 if self.p4 else 20) + k}", "valu")]


def g_lane_consts():
    out = []
    lc = G.LaneCalc(out)
    lc.val[TID] = np.arange(256, dtype=np.int64)
    lane, w, g_, r, c, t0, t1, t2, t3 = [PT(11 + k) for k in range(9)]
    lc.op("v_and_b32", lane, 63, TID); lc.op("v_lshrrev_b32", w, 6, TID); lc.op("v_lshrrev_b32", g_, 4, lane)
    lc.op("v_lshrrev_b32", r, 2, lane); lc.op("v_and_b32", r, 3, r); lc.op("v_and_b32", c, 3, lane)
    L_ = np.arange(256) & 63; W_ = np.arange(256) >> 6
    G_, R_, C_ = L_ >> 4, (L_ & 15) >> 2, L_ & 3
    lc.op("v_lshrrev_b32", t0, 1, g_); lc.op("v_mul_u32_u24", t0, 3072, t0)
    lc.op("v_and_b32", t1, 1, g_); lc.op("v_lshlrev_b32", t2, 2, t1); lc.op("v_add_u32", t2, t2, r)
    lc.op("v_mul_u32_u24", t2, 320, t2); lc.op("v_add_u32", t0, t0, t2)
    lc.op("v_lshrrev_b32", t2, 1, c); lc.op("v_lshlrev_b32", t2, 4, t2); lc.op("v_add_u32", t0, t0, t2)
    lc.op("v_and_b32", t2, 1, c); lc.op("v_lshlrev_b32", t2, 3, t2); lc.op("v_add_u32", t0, t0, t2)
    lc.op("v_lshlrev_b32", t1, 5, t1)
    lc.op("v_add_u32", AO[0], t0, t1); lc.op("v_add_u32", AO[2], t0, t1)
    lc.op("v_xor_b32", t1, 32, t1)
    lc.op("v_add_u32", AO[1], t0, t1); lc.op("v_add_u32", AO[3], t0, t1)
    base = (G_ >> 1) * 3072 + (4 * (G_ & 1) + R_) * 320 + (C_ >> 1) * 16 + (C_ & 1) * 8
    for k in (0, 2): assert (lc.val[AO[k]] == base + (G_ & 1) * 32).all()
    for k in (1, 3): assert (lc.val[AO[k]] == base + (1 - (G_ & 1)) * 32).all()
    for i in range(3):
        lc.op("v_add_u32", t0, 64 * i, lane)
        lc.op("v_mul_u32_u24", t1, 3277, t0); lc.op("v_lshrrev_b32", t1, 16, t1)
        lc.op("v_mul_u32_u24", t2, 20, t1); lc.op("v_sub_u32", t2, t0, t2)
        lc.op("v_lshrrev_b32", t3, 2, t1); lc.op("v_and_b32", t3, 1, t3); lc.op("v_lshlrev_b32", t3, 1, t3)
        lc.op("v_xor_b32", t2, t2, t3); lc.op("v_lshlrev_b32", t2, 4, t2)
        lc.op("v_lshlrev_b32", t3, 3, w); lc.op("v_add_u32", t3, t3, t1); lc.op("v_mul_u32_u24", t3, 1280, t3)
        lc.op("v_add_u32", t2, t2, t3)
        P = 64 * i + L_
        RL, CP = P // 20, P % 20
        want = (8 * W_ + RL) * 1280 + (CP ^ (2 * ((RL >> 2) & 1))) * 16
        assert (lc.val[t2][P < 160] == want[P < 160]).all()
        if i: out.append(valu("v_subrev_u32", t2, 1024 * i, t2))
        if i < 2:
            out.append(valu("v_mov_b32", DO[i], t2))
        else:
            out += [valu("v_mov_b32", DO[i], 0x7FFFFF00), I(f"v_cmp_gt_u32 vcc, 32, {rtxt(lane)}", "valu", [], [lane]), nop(1),
                    I(f"v_cndmask_b32 {rtxt(DO[i])}, {rtxt(DO[i])}, {rtxt(t2)}, vcc", "valu", [DO[i]], [DO[i], t2])]
    lc.op("v_lshlrev_b32", t0, 4, lane)
    lc.op("v_mul_u32_u24", t1, 18432, w); lc.op("v_add_u32", VOX, t0, t1)
    lc.op("v_mul_u32_u24", t1, 15360, w); lc.op("v_add_u32", PSL16, t0, t1)
    return out


def g_scalars():
    t0, t1, ks, nt = s_t[0], s_t[1], s_t[2], s_t[3]
    o = [salu("s_lshr_b32", ks, s_pj, 2), salu("s_and_b32", nt, s_pj, 3),
         salu("s_lshl_b32", s_mgrp, ks, 2), salu("s_lshl_b32", s_mgrp, 15, s_mgrp), salu("s_lshl_b32", s_mfin, 0x1111, nt)]
    for q in range(4):
        if q == 0:
            o += [salu("s_mov_b32", t0, nt)]
        else:
            o += [scmp("s_cmp_le_u32", nt, q - 1), salu("s_cselect_b32", t0, q, q - 1)]
        o += [salu("s_lshl_b32", t1, ks, 2), salu("s_add_u32", t0, t0, t1),
              salu("s_mul_i32", s_gq[q], t0, 491520), salu("s_mul_i32", t1, nt, 320), salu("s_add_u32", s_gq[q], s_gq[q], t1),
              salu("s_lshl_b32", t1, s_b, 4), salu("s_add_u32", t0, t0, t1), salu("s_mul_i32", t0, t0, 147456),
              salu("s_add_u32", s_oown if q == 0 else s_oq[q], t0, OX_OFF)]
    o += [salu("s_lshl_b32", t0, s_b, 2), salu("s_add_u32", t0, t0, nt), salu("s_lshl_b32", t0, t0, 2),
          salu("s_add_u32", t1, t0, ks), salu("s_mul_i32", s_px, t1, 61440), salu("s_add_u32", s_px, s_px, PX_OFF),
          salu("s_lshl_b32", t0, t0, 2), salu("s_add_u32", t0, t0, ks), salu("s_mul_i32", s_pin, t0, 15360),
          salu("s_lshl_b32", t1, s_w, 10), salu("s_add_u32", s_pin, s_pin, t1), salu("s_add_u32", s_pin, s_pin, PX_OFF),
          salu("s_mul_i32", s_oout, s_b, 192), salu("s_mul_i32", t1, ks, 48), salu("s_add_u32", s_oout, s_oout, t1),
          salu("s_mul_i32", s_oout, s_oout, 1280), salu("s_mul_i32", t1, nt, 320), salu("s_add_u32", s_oout, s_oout, t1),
          salu("s_lshl_b32", t0, s_b, 8), salu("s_lshl_b32", t1, s_pj, 2), salu("s_add_u32", t0, t0, t1), salu("s_add_u32", s_t[5], t0, FLAG_OFF),
          salu("s_mov_b32", s_bl, s_oown)]
    return o


def stamp(k):
    return [I("s_memtime s[56:57]", "salu"), raw("s_waitcnt lgkmcnt(0)"), salu("s_mov_b32", S(64 + k), S(56))]


def main_kernel(cfg):
    g = Gen3(cfg)
    T = cfg["timing"]
    pro = [label("mha_main_kernel"), scmp("s_cmp_ge_u32", S(2), 256), branch("s_cbranch_scc1", "L_main_exit"),
           raw("s_load_dwordx16 s[64:79], s[0:1], 0")]
    if T and cfg["stamp_entry"]: pro.insert(1, I("s_memrealtime s[86:87]", "salu"))
    if cfg["pf_entry"]:
        pro += [I("s_getpc_b64 s[56:57]", "salu"), label("L_pce"), raw("s_add_u32 s56, s56, mha_main_kernel-L_pce"), raw("s_addc_u32 s57, s57, -1") if False else raw("s_subb_u32 s57, s57, 0") if False else raw("s_nop 0"),
                ]
        pro = pro[:-4] + [I("s_getpc_b64 s[56:57]", "salu"), label("L_pce"),
                raw("s_and_b32 s56, s56, 0xffffff00"),
                valu("v_lshlrev_b32", V(1), 7, V(0)), raw("v_mov_b32 v3, s57", "valu"),
                raw("v_add_co_u32 v2, vcc, s56, v1", "valu"), raw("s_nop 1"), raw("v_addc_co_u32 v3, vcc, 0, v3, vcc", "valu"),
                I(f"global_load_dword {rtxt(JUNK)}, v[2:3], off", "vmem", [], [])]
    lane_ops = []
    wreg = build_lane_consts(lane_ops)
    t0, t1 = s_t[0], s_t[1]
    nb = int(cfg["map_nb"]); npair = 32 // nb
    lg = lambda v: v.bit_length() - 1
    seen = set()
    for wg in range(256):
        a0, j = wg & 7, wg >> 3
        pj = (j & (npair - 1)) + ((a0 & (16 // npair - 1)) << lg(npair))
        bb = (j >> lg(npair)) + ((a0 >> lg(16 // npair)) << lg(nb))
        seen.add((bb, pj))
    assert len(seen) == 256
    ids = [
        salu("s_and_b32", t0, S(2), 7), salu("s_lshr_b32", t1, S(2), 3),
        salu("s_and_b32", s_pj, t1, npair - 1), salu("s_lshr_b32", s_b, t1, lg(npair)),
        salu("s_and_b32", t1, t0, 16 // npair - 1), salu("s_lshl_b32", t1, t1, lg(npair)), salu("s_add_u32", s_pj, s_pj, t1),
        salu("s_lshr_b32", t0, t0, lg(16 // npair)), salu("s_lshl_b32", t0, t0, lg(nb)), salu("s_add_u32", s_b, s_b, t0),
        salu("s_lshl_b32", s_h0, s_pj, 1),
        salu("s_mul_i32", s_wb, s_h0, 384), salu("s_mul_i32", s_xb, s_b, 245760)]
    wave_sc = [salu("s_mul_i32", s_w3072, s_w, 3072), salu("s_lshl_b32", s_w6144, s_w3072, 1)]
    srd_first = srd(SRD_X, 64, 16 * 192 * 640 * 2) + srd(SRD_W, 70, 640 * 6144 * 2)
    srd_rest = srd(SRD_K, 66, 16 * 32 * 512 * 192 * 2) + srd(SRD_V, 68, 16 * 32 * 512 * 192 * 2)
    srd_rest += srd(SRD_WO, 72, 6144 * 640 * 2) + srd(SRD_WS, 78, 402653184)
    srd_rest += [salu("s_mov_b32", s_outp[0], S(74)), salu("s_mov_b32", s_outp[1], S(75)),
                 salu("s_mov_b32", s_dbgp[0], S(76)), salu("s_mov_b32", s_dbgp[1], S(77))]
    sc_rest = [
        salu("s_lshl_b32", t0, s_b, 5), salu("s_add_u32", t0, t0, s_h0), salu("s_mul_i32", s_kvb, t0, 196608),
        salu("s_add_u32", s_kvb1, s_kvb, 196608),
        salu("s_lshr_b32", s_n0, S(2), int(cfg["rot_shift"])), salu("s_mul_i32", s_n0, s_n0, int(cfg["rot_mul"])), salu("s_and_b32", s_n0, s_n0, 15),
        salu("s_mul_i32", s_ob, s_h0, 245760),
        salu("s_lshl_b32", t0, s_b, 4), salu("s_add_u32", t0, t0, s_pj),
        salu("s_mul_i32", s_pst[0], t0, 245760), salu("s_add_u32", s_pst[0], s_pst[0], PART_OFF),
        salu("s_add_u32", s_pst[1], s_pst[0], 4096),
        salu("s_mov_b32", s_thr, THR_BITS), salu("s_mov_b32", S(48), C_BITS), salu("s_mov_b32", S(49), C_BITS),
    ]
    clr = []
    if cfg["fused"]:
        clr = [salu("s_lshl_b32", t0, s_b, 8), salu("s_lshl_b32", t1, s_pj, 2), salu("s_add_u32", t0, t0, t1),
               salu("s_add_u32", t0, t0, FLAG_OFF), valu("v_mov_b32", PT(8), 0),
               vstore(PT(8), VFO, SRD_WS, t0, 0, " sc1", tag=("clr",), width=1)]
    rfl = [nop(0), I(f"v_readfirstlane_b32 {rtxt(s_w)}, {rtxt(wreg)}", "valu", [s_w], [wreg])]
    first = [it for it in g.seq if it.issue == -1]
    first_tiles = []
    for it in first:
        for m0, off, ins in g.units(it):
            first_tiles += [m0] + (off if isinstance(off, list) else [off]) + [nop(0)] + ins
    if cfg["fast_pro"]:
        need = set()
        for r in DA + DB + [wreg]: need |= regs(r)
        keep = []
        for ins in reversed(lane_ops):
            if ins.defs & need:
                keep.append(ins)
                if not (ins.defs <= ins.uses): need -= ins.defs
                need |= {u for u in ins.uses if u[0] == "v"}
        keep.reverse()
        pro += ids + keep + rfl + [raw("s_waitcnt lgkmcnt(0)")] + srd_first + wave_sc
        if T and not cfg["stamp_entry"]: pro += [I("s_memrealtime s[86:87]", "salu")]
        if T and cfg["stamp_entry"]: pro += [I("s_memrealtime s[94:95]", "salu")]
        pro += first_tiles
        pro += lane_ops + srd_rest + sc_rest + clr
        if T: pro += stamp(0)
    else:
        pro += lane_ops + rfl + [raw("s_waitcnt lgkmcnt(0)")] + srd_first + srd_rest + ids + wave_sc + sc_rest
        if T: pro += ([] if cfg["stamp_entry"] else [I("s_memrealtime s[86:87]", "salu")]) + ([I("s_memrealtime s[94:95]", "salu")] if cfg["stamp_entry"] else []) + stamp(0)
        pro += clr

    gw = S(59)
    lane, lane128 = PT(3), PT(2)
    OOB = 0x7FFFFF00

    def masked(dst, src, n):
        return [valu("v_mov_b32", dst, OOB), raw(f"v_cmp_gt_u32 vcc, {n}, {rtxt(lane)}", "valu"), raw("s_nop 1"),
                raw(f"v_cndmask_b32 {rtxt(dst)}, {rtxt(dst)}, {rtxt(src)}, vcc", "valu")]
    pfs = [salu("s_lshl_b32", gw, S(2), 2), salu("s_add_u32", gw, gw, s_w),
           valu("v_and_b32", lane, 63, TID), valu("v_lshlrev_b32", lane128, 7, lane),
           valu("v_mul_u32_u24", PT(5), 21846, lane), valu("v_lshrrev_b32", PT(5), 16, PT(5)),
           valu("v_mul_u32_u24", PT(6), 3, PT(5)), valu("v_sub_u32", PT(6), lane, PT(6)),
           valu("v_mul_u32_u24", PT(5), 12288, PT(5)), valu("v_lshlrev_b32", PT(6), 7, PT(6)), valu("v_add_u32", PT(5), PT(5), PT(6))]
    pfs += masked(VTK[0], PT(5), 30) + masked(VTK[1], lane128, 60) + masked(PT(4), lane128, 30)
    pfs += [salu("s_and_b32", t0, gw, 15), salu("s_mul_i32", t0, t0, 768), salu("s_lshr_b32", S(100), gw, 4),
            salu("s_mul_i32", S(100), S(100), 122880), salu("s_add_u32", S(100), S(100), t0), salu("s_mul_i32", S(101), gw, 7680)]
    start = []
    if "x" in cfg["pf_start"]:
        start += [salu("s_mul_i32", t0, gw, 3840), pf_load(PT(4), SRD_X, t0)]
    if "w" in cfg["pf_start"]:
        start += [pf_load(VTK[0], SRD_W, S(100))]
    if "1" in cfg["pf_start"]:
        start += [salu("s_add_u32", t0, S(100), 384), pf_load(VTK[0], SRD_W, t0)]
    code_steps = cfg["_code_steps"]
    pfs2 = []
    if cfg["pf_code"]:
        pfs2 += [valu("v_and_b32", PT(7), 31, lane), valu("v_lshlrev_b32", PT(7), 7, PT(7)),
                 salu("s_lshl_b32", t0, s_w, 12), valu("v_add_u32", VL128, t0, PT(7))]
    if int(cfg["pf_start_step"]) == -2:
        pro += pfs + start
        pfs, start = [], []
    pfs += pfs2
    pfs += [valu("v_and_b32", PT(7), 63, TID), valu("v_lshlrev_b32", PT(7), 4, PT(7)), valu("v_add_u32", AWR, s_w3072, PT(7))]

    if not cfg["fast_pro"]: pro += first_tiles
    if cfg["tlb"]:
        tl = [valu("v_and_b32", PT(9), 1, TID)]
        for what in str(cfg["tlb"]):
            if what in "kv":
                tl += [valu("v_mul_u32_u24", PT(10), 393216 - 128, PT(9)), pf_load(PT(10), SRD_K if what == "k" else SRD_V, s_kvb)]
            elif what == "o":
                tl += [valu("v_mul_u32_u24", PT(10), 491520 - 128, PT(9)), pf_load(PT(10), SRD_WO, s_ob)]
            elif what == "p":
                tl += [valu("v_mul_u32_u24", PT(10), 245760 - 128, PT(9)), pf_load(PT(10), SRD_WS, s_pst[0])]
        pro += tl
    pro += pfs
    if cfg["pf_code"]:
        for k, st_ in enumerate(code_steps):
            if st_ < 0 and not (cfg["pf_entry"] and k == 0): pro += code_pf(f"L_code+{16384 * k}", sub=int(cfg["pf_sub"]))
    if cfg["pf_code_all"]:
        pro += [valu("v_lshlrev_b32", PT(9), 7, TID), valu("v_mov_b32", PT(10), S(2)), valu("v_lshlrev_b32", PT(10), 9, PT(10)),
                valu("v_add_u32", PT(9), PT(9), PT(10)),
                I("s_getpc_b64 s[56:57]", "salu"), label("L_pcall"), raw("s_add_u32 s56, s56, L_code-L_pcall"), raw("s_addc_u32 s57, s57, 0"),
                raw(f"v_mov_b32 v{VPC[1] + 1}, s57", "valu"), raw(f"v_add_co_u32 v{VPC[1]}, vcc, s56, {rtxt(PT(9))}", "valu"), raw("s_nop 1"),
                raw(f"v_addc_co_u32 v{VPC[1] + 1}, vcc, 0, v{VPC[1] + 1}, vcc", "valu"),
                raw(f"v_cmp_gt_u32 vcc, 4, {rtxt(TID)}", "valu"), raw("s_and_saveexec_b64 s[56:57], vcc"),
                raw("s_cbranch_execz L_pcall_skip"),
                I(f"global_load_dword {rtxt(JUNK)}, {rtxt(VPC)}, off", "salu", [], []), label("L_pcall_skip"),
                raw("s_mov_b64 exec, s[56:57]")]
    if cfg["p4"]: pro += g_lane_consts()
    if int(cfg["pf_start_step"]) == -1: pro += start
    pro += [WaitTag([("item", it.name) for it in g.seq if it.need == -1]), barrier()]
    cnt_blk = []
    if cfg["fused"]:
        TMP = S(96, 4)
        vone = V(212) if cfg["fast_pro"] else PT(8)
        cnt_blk = srd(TMP, None, 256, s_dbgp) + [salu("s_lshl_b32", t0, s_b, 4), valu("v_mov_b32", vone, 1), WaitTag([("clr",)]),
                I(f"buffer_atomic_add {rtxt(vone)}, {rtxt(VFO)}, {rtxt(TMP)}, {rtxt(t0)} offen", "store", [], [vone, VFO, TMP, t0], tag=("cnt",))]
        if not cfg["fast_pro"]: pro += cnt_blk
    pro += g.x_reads3(g.X[(0, 0)]) + g.first_reads3(g.item[0]) + [wait(lgkm=4)]
    pro.append(label("L_code"))

    if cfg["fast_pro"]: g.pre[5] += cnt_blk
    g.build_frames()
    g.place_dma()
    g.place_reg_tiles()
    g.place_fixes()
    def put(s, gi, ins_list):
        gp = g.gaps[s][gi]
        for x in ins_list:
            if x.cls in ("vmem",): gp.vm.append(x)
            else: gp.sc.append(x)
    def tlb_touch(h, tmp):
        st = int(cfg["tlb_stride"])
        n = (196608 + st - 1) // st
        o = [valu("v_mul_u32_u24", tmp, st, TID), valu("v_mov_b32", V(tmp[1] + 1), OOB),
             raw(f"v_cmp_gt_u32 vcc, {n}, {rtxt(TID)}", "valu"), raw("s_nop 1"),
             raw(f"v_cndmask_b32 {rtxt(tmp)}, v{tmp[1] + 1}, {rtxt(tmp)}, vcc", "valu"),
             salu("s_add_u32", t0, s_kvb, h * 196608)]
        for sr in (SRD_K, SRD_V):
            x = pf_load(tmp, sr, t0)
            x.txt += " nt"
            o.append(x)
        return o
    if int(cfg["tlb0"]) >= 0: g.pre[int(cfg["tlb0"])] += tlb_touch(0, V(192))
    if int(cfg["tlb1"]) >= 0: g.pre[int(cfg["tlb1"])] += tlb_touch(1, V(128))
    if int(cfg["pf_start_step"]) >= 0:
        g.pre[int(cfg["pf_start_step"])] += start
    if cfg["w1_split"]:
        steps_ = [int(x) for x in str(cfg["w1_split"]).split(".")]
        n_ = 30 // len(steps_)
        for k, st_ in enumerate(steps_):
            g.pre[st_] += [valu("v_subrev_u32", V(213), n_ * k, V(215)), valu("v_mov_b32", V(214), OOB),
                           raw(f"v_cmp_gt_u32 vcc, {n_}, v213", "valu"), raw("s_nop 1"),
                           raw(f"v_cndmask_b32 v214, v214, {rtxt(VTK[0])}, vcc", "valu"),
                           salu("s_add_u32", t0, S(100), 384), pf_load(V(214), SRD_W, t0)]
        g.pre[steps_[0]] = [valu("v_and_b32", V(215), 63, TID)] + g.pre[steps_[0]]
    elif int(cfg["pf_w1"]) == 19:
        g.post[19] = [salu("s_add_u32", t0, S(100), 384), pf_load(VTK[0], SRD_W, t0)] + g.post[19]
    elif int(cfg["pf_w1"]) >= 0:
        put(int(cfg["pf_w1"]), 9, [salu("s_add_u32", t0, S(100), 384)])
        put(int(cfg["pf_w1"]), 11, [pf_load(VTK[0], SRD_W, t0)])
    if cfg["wo_split"]:
        steps_ = [int(x) for x in str(cfg["wo_split"]).split(".")]
        n_ = 60 // len(steps_)
        for k, st_ in enumerate(steps_):
            g.pre[st_] += [valu("v_mov_b32", V(214), OOB), raw(f"v_cmp_gt_u32 vcc, {n_}, {rtxt(V(215))}", "valu"), raw("s_nop 1"),
                           raw(f"v_cndmask_b32 v214, v214, {rtxt(VTK[1])}, vcc", "valu"),
                           salu("s_add_u32", t0, S(101), 128 * n_ * k), pf_load(V(214), SRD_WO, t0)]
        g.pre[steps_[0]] = [valu("v_and_b32", V(215), 63, TID)] + g.pre[steps_[0]]
    elif int(cfg["pf_wo"]) == 52:
        g.post[51] += [pf_load(VTK[1], SRD_WO, S(101))]
    elif int(cfg["pf_wo"]) >= 0:
        put(int(cfg["pf_wo"]), 11, [pf_load(VTK[1], SRD_WO, S(101))])
    if cfg["pf_code"]:
        for k, st_ in enumerate(code_steps):
            if st_ >= 0: g.pre[st_] += code_pf(f"L_code+{16384 * k}", sub=int(cfg["pf_sub"]))
    if cfg["p4"]:
        if int(cfg["RP"]):
            assert int(cfg["pf_w1"]) < 10 and not cfg["w1_split"]
            g.pre[10] += [valu("v_and_b32", V(247), 63, TID), valu("v_lshlrev_b32", V(247), 4, V(247)), valu("v_add_u32", V(247), s_w3072, V(247))]
        g.pre[10] += g_scalars()
        g.post[90] += g.g_check_block()

    if cfg["fused"]:
        g.pre[80] += srd(SRD_DBG2, None, 256, s_dbgp) + [salu("s_lshl_b32", s_b16, s_b, 4),
                      I(f"buffer_load_dword {rtxt(VCHK)}, {rtxt(VFO)}, {rtxt(SRD_DBG2)}, {rtxt(s_b16)} offen sc1", "vmem", [VCHK],
                        [VFO, SRD_DBG2, s_b16], tag=("chk",))]
    if cfg["hide_n"]:
        g.rinv_fill(0); g.rinv_fill(1)
        g.n0_fill()
        if cfg["p4"]:
            g.post[103] += g.g_n1_block()
        else:
            g.n1_fill()
            if cfg["fused"]:
                g.post[103] += g.hu_setup()
    for h in range(2):
        g.a_fill(h)
        g.post[52 * h + 19] += g.dump_block.get(52 * h + 19, []) + g.q_pack()
        if not cfg["hide_n"]:
            g.post[52 * h + 51] += g.n_block(h)
    if cfg["p4"]: g.g_fill()
    else: g.o_fill()

    body = []
    marks = {0: 1, 20: 3, 52: 5, 72: 7}
    ends = {19: 2, 51: 4, 71: 6, 103: 8}
    for s in range(g.NS):
        body.append(label(f"L_st{s}"))
        if T and s in marks: body += stamp(marks[s])
        body += g.pre[s]
        for gp in g.gaps[s]: body += gp.flat()
        if T and s in ends: body += stamp(ends[s])
        body += g.post[s]

    fin = []
    if T:
        fin += stamp(9)
    fin += [raw("s_waitcnt vmcnt(0)")]
    if T:
        fin += [I("s_memtime s[56:57]", "salu"), I("s_memrealtime s[88:89]", "salu"), raw("s_waitcnt lgkmcnt(0)"),
                salu("s_mov_b32", S(74), S(56)), salu("s_mov_b32", S(90), S(88)), salu("s_sub_u32", S(88), S(88), S(86))]
        lst = [64, 65, 66, 67, 68, 69, 70, 71, 72, 73, 74, 88, 86, 90] + ([94] if cfg['stamp_entry'] else [])
        for k, sr in enumerate(lst): fin.append(valu("v_mov_b32", V(k), S(sr)))
        fin += [salu("s_lshl_b32", t0, S(2), 6), salu("s_add_u32", t0, t0, 300 * 1024 * 1024), valu("v_mov_b32", V(20), 0),
                raw(f"v_cmp_eq_u32 vcc, 0, {rtxt(TID)}", "valu"), raw("s_and_saveexec_b64 s[56:57], vcc")]
        for k in range(0, 16, 4): fin.append(vstore(V(k, 4), V(20), SRD_WS, t0, 4 * k))
        fin += [raw("s_waitcnt vmcnt(0)")]
        if cfg["steptime"]:
            fin += [raw("s_mov_b64 exec, -1"), salu("s_mul_i32", t0, S(2), 768), salu("s_add_u32", t0, t0, 320 * 1024 * 1024),
                    raw(f"v_cmp_gt_u32 vcc, 64, {rtxt(TID)}", "valu"), raw("s_and_saveexec_b64 s[56:57], vcc"),
                    valu("v_lshlrev_b32", V(20), 2, TID)]
            for k in range(3): fin.append(vstore(V(253 + k), V(20), SRD_WS, t0, 256 * k, width=1))
            fin += [raw("s_waitcnt vmcnt(0)")]
    fin += [label("L_main_exit"), raw("s_endpgm")]

    seq = pro + body
    state = {"checked": set(), "published": set()}
    for x in seq:
        if x.cls == "label" and str(x.info).startswith("L_sp") and str(x.info).endswith("_ok"):
            state["checked"].add(x.info[4:-3])
        elif x.cls == "barrier":
            state["published"] |= state["checked"]
        elif x.cls == "vmem" and isinstance(x.tag, tuple) and x.tag and x.tag[0] == "red":
            rho = x.tag[1]
            if cfg["p4"]:
                assert "f" in state["published"], ("partial load not ordered after its check", x.tag)
                continue
            ok = str(rho) in state["published"] or "f" in state["published"] or ("l" in state["published"] and rho < 6) or (rho == 6 and "9" in state["published"])
            assert ok, ("partial load not ordered after its check", x.tag, state)
    if cfg["p4"]:
        st2 = {"checked": set(), "published": set()}
        for x in seq:
            if x.cls == "label" and str(x.info).startswith("L_sp") and str(x.info).endswith("_ok"): st2["checked"].add(x.info[4:-3])
            elif x.cls == "barrier": st2["published"] |= st2["checked"]
            elif x.cls == "vmem" and isinstance(x.tag, tuple) and x.tag and x.tag[0] == "bl":
                hh = g.g_kstep(x.tag[1])[1]
                assert "b" in st2["published"], ("O load not ordered after its check", x.tag)
    res, errs, _, maxout = resolve_and_check(seq, "main")
    for e in errs[:30]: print("ERR", e, file=sys.stderr)
    assert not errs, len(errs)
    assert maxout <= 63, maxout
    final = []
    for w in seq:
        if isinstance(w, WaitTag):
            vals = [v for v in res[id(w)] if v is not None]
            vm, lgk = (min(vals) if vals else None), (w.lres if w.info[1] == "auto" else w.info[1])
            if vm is None and lgk is None:
                continue
            final.append(wait(vm, lgk))
        else:
            final.append(w)
    seq = final
    _, errs, _, _ = resolve_and_check(seq, "final")
    for e in errs[:30]: print("ERR", e, file=sys.stderr)
    assert not errs, len(errs)
    stubs = []
    for k, p in enumerate(g.rare_sites):
        stubs += [label(f"L_rs{k}"), I(f"s_call_b64 {rtxt(s_ret)}, L_rare{p}", "branch"), branch("s_branch", f"L_rr{k}")]
    rare = g.rare_code(0) + g.rare_code(1)
    return seq + fin + stubs + rare


SRD_DBG2 = SRD_DBG

MACROS = """.macro MF d,a,b,c
v_mfma_f32_16x16x32_bf16 \\d,\\a,\\b,\\c
.endm
.macro TR d,a,o
ds_read_b64_tr_b16 \\d,\\a offset:\\o
.endm
.macro RD d,a,o
ds_read_b128 \\d,\\a offset:\\o
.endm
"""


def compact(line):
    import re
    t = line.strip()
    if t.startswith("v_mfma_f32_16x16x32_bf16 "):
        return "MF " + t.split(" ", 1)[1].replace(", ", ",")
    m = re.match(r"ds_read_b64_tr_b16 (\S+), (\S+) offset:(\d+)$", t)
    if m: return f"TR {m.group(1)},{m.group(2)},{m.group(3)}"
    m = re.match(r"ds_read_b128 (\S+), (\S+) offset:(\d+)$", t)
    if m: return f"RD {m.group(1)},{m.group(2)},{m.group(3)}"
    return t.replace(", ", ",")


HEADER = """; Fused multi-head attention block for MI355X (gfx950); assembly produced by my own generator script.
"""


def text_of(cfg, m, pad):
    kname = KNAME if cfg["single"] else "mha_main_kernel"
    lds = int(cfg["R"]) * SLOT
    s = HEADER + ("; p4: split-K output projection\n" if cfg["p4"] else "")
    if cfg["single"]:
        s += f"; @launch grid=(256,1,1) block=(256,1,1) lds={lds}\n"
    else:
        s += f"; @launch kernel=mha_main_kernel grid=(256,1,1) block=(256,1,1) lds={lds}\n"
        if not cfg["fused"]:
            s += "; @launch kernel=mha_reduce_kernel grid=(960,1,1) block=(256,1,1) lds=0\n"
    s += '.amdgcn_target "amdgcn-amd-amdhsa--gfx950"\n'
    if cfg["macros"]: s += MACROS
    s += ".text\n"
    ks = [(kname, m)]
    if not cfg["fused"]: ks.append(("mha_reduce_kernel", G.reducer_kernel(cfg)))
    for nm, code in ks:
        lines = []
        for i in code:
            for ln in i.txt.split("\n"):
                lines.append(compact(ln) if cfg["macros"] and i.cls != "label" else ln)
        s += f".globl {nm}\n.p2align 8\n.type {nm},@function\n" + "\n".join(lines).replace("mha_main_kernel:", kname + ":") + "\n"
    s += f".fill {pad}, 4, 0xBF800000\nL_text_end:\n"
    s += '.section .rodata,"a"\n.p2align 6\n' + kd(kname, 512, 256)
    if not cfg["fused"]: s += ".p2align 6\n" + kd("mha_reduce_kernel", 88, 88)
    return s


def assemble_syms(text):
    open("_g3.s", "w").write(text)
    r = subprocess.run(["clang", "-x", "assembler", "-target", "amdgcn-amd-amdhsa", "-mcpu=gfx950", "-c", "_g3.s", "-o", "_g3.o"],
                       capture_output=True, text=True)
    assert r.returncode == 0, r.stderr[:2000]
    sy = subprocess.run(["llvm-readelf", "-s", "_g3.o"], capture_output=True, text=True).stdout
    return {ln.split()[-1]: int(ln.split()[1], 16) for ln in sy.splitlines() if " L_" in ln and len(ln.split()) >= 8}


def build(cfg, path):
    import importlib
    cfg = dict(cfg)
    cfg["_code_steps"] = [-1] + [max(0, 21 * k - 10) for k in range(1, 8)]
    for it in range(2):
        G.code_pf.n = 0
        m = main_kernel(cfg)
        addr = assemble_syms(text_of(cfg, m, 64))
        base = addr["L_code"]
        end = addr["L_main_exit"] - base
        npiece = (end + 16383) // 16384
        steps = []
        for k in range(npiece):
            ns = 152 if cfg["p4"] else 144
            first = min([s for s in range(ns) if addr[f"L_st{s}"] - base + 1024 > 16384 * k] or [ns - 1])
            s_ = first - int(cfg["code_lead"])
            steps.append(-1 if s_ < 0 else s_)
        cfg["_code_steps"] = steps
    G.code_pf.n = 0
    m = main_kernel(cfg)
    addr = assemble_syms(text_of(cfg, m, 64))
    span = max(16384 * len(cfg["_code_steps"]), 131072)
    need = addr["L_code"] + span + 256 - addr["L_text_end"]
    pad = 64 + max(0, (need + 3) // 4)
    s = text_of(cfg, m, pad)
    open(path, "w").write(s)
    n_main = sum(1 for i in m if i.cls != "label")
    print(f"wrote {path}: {len(s)} bytes, {n_main} instrs, code {addr['L_main_exit'] - addr['L_code']} B, pad {pad}, code pf steps {cfg['_code_steps']}", file=sys.stderr)


if __name__ == "__main__":
    cfg = dict(CFG)
    path = "out3.s"
    for a in sys.argv[1:]:
        if "=" in a:
            k, v = a.split("=", 1)
            assert k in cfg, k
            cfg[k] = {"True": True, "False": False}.get(v, v)
        else:
            path = a
    build(cfg, path)
```

```python
import sys
import subprocess
import numpy as np
from asmlib import *
import gen as G
from gen import (ACC, SB, SBr, PB, PBr, TT, NEGM, NEGMr, L, LT, MT, OACC, CT, CTr, QF, QFr, AK, AV, AW, AO, DKV, DA, DB, DO,
                 AX, PSV, PT, TID, JUNK, VPC, VL128, VTK, VFO, VCHK, RD, SEL, FLG, VPOLL, VFV, VOUT, VZ, PSL, PART_OFF, FLAG_OFF,
                 SRD_DBG, SRD_OUT, s_outp, s_dbgp, s_b16, s_kw, s_pb, s_ro, s_rl, OA, OAr, O0P, O0Pr, FB, FBh,
                 SRD_A, SRD_K, SRD_V, SRD_WO, SRD_WS, SRD_B, s_w3072, s_pst, s_thr, s_c2, s_h0, s_b, s_pj, s_w, s_t, s_ret,
                 THR_BITS, C_BITS, SLOT, build_lane_consts, autonop, srd, pf_load, code_pf, kd, KNAME, Gen, a_item)
import sched

CFG = dict(
    nt_kv=True, timing=False, steptime=False, pst_flags=" sc1", red_flags=" sc1",
    dspair_v=True, dspair_k=False, dspair_w=False, no_st=False, map_nb=8,
    fused=True, single=False, kv_same=False,
    R=13, P=3, P0=None, DW=4, DX=3, NW0=6, NX0=2, xres=23,
    kv_rot=False, rot_shift=0, rot_mul=1,
    tlb0=-1, tlb1=-1, tlb_stride=4096,
    npair0=0, DX0=0, NX00=0, nt_w0=False, nt_w1=False, nt_x0=False, nt_x1=False,
    RP=0, npair=2, rp_start0=3, rp_start1=0, rp_space=1.2,
    DW0=0, NW00=0, tlb='', park0='', park1='', d_flag=2, d_poll=1, d_chk=2, d_mfma=3, hu_in=6, hu_per=3, poll_wave=1, g_poll=4, g_chk=1, g_hide_tail=True, p4=True, o0_start=94, o0_per=2, o0_poll=96, DO=7, d_bl=7, d_oflag=4, g_oflag=3, hide_setup=True, hu_pre=True, spin_sleep=2, stamp_entry=False, fast_pro=True, out_flags='', pf_sub=8, pf_entry=False, hide_n=True, wo_split='53.57.61.65', w1_split='', pro_max=7, early_max=4, early_steps=3,
    pf_code=True, pf_w1=8, pf_wo=52, pf_start="xw", pf_start_step=0, code_lead=14, pf_code_all=False, macros=True,
)

SRD_X, SRD_W = SRD_A, SRD_B
G.SRD_DBG = S(4, 4)
SRD_DBG = G.SRD_DBG
s_kvb, s_wb, s_xb, s_ob = S(33), S(34), S(37), S(38)
s_do = [S(35), S(36)]
s_w6144 = S(41)
NSTEP = 144


VCHK = V(143)
AWR = V(246)
s_rp = S(39)
VOX = V(246)
PSL16 = V(243)
RIN2 = [V(112, 2), V(114, 2), V(116, 2)]
s_bl2 = [S(62), S(63)]
s_oout, s_pin = S(61), S(75)
OX_OFF = 72 << 20
PX_OFF = 112 << 20
s_gq = [S(76), S(77), S(78), S(79)]
s_oq = [None, S(80), S(81), S(82)]
s_oown, s_px, s_bl, s_mgrp, s_mfin = S(83), S(84), S(85), S(91 + 4), S(91 + 3)
s_n0, s_kvb1 = S(40), S(42)
s_rl2 = [S(63), S(62)]
VHL = V(132)


def o_cs(j, reorder):
    if reorder and j < 8:
        return [(0, 0), (0, 1), (1, 0), (1, 1), (0, 2), (0, 3), (1, 2), (1, 3)][j]
    return j // 4, j % 4


def GACC(t, qb): return V((t * 3 + qb) * 4, 4)


def XF(u, half, qb): return V(144 + ((u % 2) * 2 + half) * 12 + 4 * qb, 4)


class Gen3(Gen):
    def __init__(self, cfg):
        self.cfg = cfg
        self.rare_sites = []
        i = lambda k: int(cfg[k])
        self.R = i("R")
        self.seq, self.X, self.W, self.KV, self.O = sched.build(
            R=self.R, P=i("P"), DW=i("DW"), DX=i("DX"), NW0=i("NW0"), NX0=i("NX0"),
            P0=None if cfg["P0"] in (None, "None") else int(cfg["P0"]), xres=i("xres"),
            pro_max=i("pro_max"), early_max=i("early_max"), early_steps=i("early_steps"),
            park0=[int(x) for x in str(cfg["park0"]).split(".")] if cfg["park0"] else None,
            park1=[int(x) for x in str(cfg["park1"]).split(".")] if cfg["park1"] else None,
            DW0=int(cfg["DW0"]) or None, NW00=int(cfg["NW00"]) or None, RP=i("RP"), npair=i("npair"),
            n_o=48 if cfg["p4"] else 40, DO=int(cfg["DO"]) if cfg["p4"] else None, rp_load=self.rp_load_step, npair0=int(cfg["npair0"]) or None, DX0=int(cfg["DX0"]) or None, NX00=int(cfg["NX00"]) or None)
        self.item = []
        for h in range(2):
            self.item += [self.W[(h, t)] for t in range(20)] + [self.KV[(h, j)] for j in range(32)]
        self.p4 = bool(cfg["p4"])
        self.NO = 48 if self.p4 else 40
        self.NS = 104 + self.NO
        self.item += [self.O[j] for j in range(self.NO)]
        self.gaps = [None] * self.NS
        self.pre = {s: [] for s in range(self.NS)}
        self.post = {s: [] for s in range(self.NS)}
        self.regs = {"K": AK, "V": AV, "W": AW, "O": AO}
        if self.p4:
            self.regs = {"K": AK, "V": AV, "W": AW, "Oa": AO[:2], "Ob": AO[2:]}
        self.plan = {}
        for kind in self.regs:
            its = [it for it in self.item if self.akind(it) == kind]
            k = 0
            while k < len(its):
                lo = hi = its[k].slot
                e = k
                while e + 1 < len(its):
                    nl, nh = min(lo, its[e + 1].slot), max(hi, its[e + 1].slot)
                    if nh - nl > 4: break
                    lo, hi = nl, nh
                    e += 1
                for q in range(k, e + 1): self.plan[its[q].name] = lo * SLOT
                k = e + 1
        self.base = {kind: [0] * len(self.regs[kind]) for kind in self.regs}
        self.nunit = 0
        self.fixes = {}
        self.dump_block = {}
        self.rp1_first = {}

    def akind(self, it):
        if it.kind == "O" and self.p4: return "Oa" if it.n % 2 == 0 else "Ob"
        return it.kind

    def rp_load_step(self, h, k):
        s = int(float(self.cfg["rp_start0" if h == 0 else "rp_start1"]) + k * float(self.cfg["rp_space"]))
        if h == 1 and self.cfg["hide_n"]:
            s = max(s, int(2.45 * (k // 2 + 1)) + 1)
        return s

    def place_fixes(self):
        for s, lst in self.fixes.items():
            gaps = self.gaps[s]
            for x, lo, hi in lst:
                c = [g for g in range(lo, hi + 1) if gaps[g].free() == 1 and not gaps[g].vm and g != 23]
                if not c: c = [g for g in range(lo, hi + 1) if gaps[g].free() >= 1 and not gaps[g].vm and g != 23]
                if not c: c = [hi]
                gaps[c[0]].va.append(x)

    def frag_reads3(self, it, f, buf):
        win = self.plan[it.name]
        off = it.slot * SLOT - win
        kind = it.kind
        if kind == "K":
            kt, kb = f // 6, f % 6
            ri = kb % 2
            return [(ds_read("ds_read_b128", FB(buf, f % 2), AK[ri], off + kt * 6144 + (kb // 2) * 128), ri, win)]
        if kind == "O" and self.p4:
            ri = f % 2
            o, d2 = off + 64 * (f // 2), 6144
        else:
            ri, j = f % 4, f // 4
            o, d2 = {"V": (off + 128 * j, 6144), "W": (off + 128 * j, 1536), "O": (off + 4096 * j, 2048)}[kind]
        r = self.regs[self.akind(it)][ri]
        return [(ds_read("ds_read_b64_tr_b16", FBh(buf, f % 2, 0), r, o), ri, win),
                (ds_read("ds_read_b64_tr_b16", FBh(buf, f % 2, 1), r, o + d2), ri, win)]

    def fix(self, kind, ri, win):
        B = self.base[kind]
        if B[ri] == win: return None
        d = win - B[ri]
        B[ri] = win
        r = self.regs[kind][ri]
        return valu("v_add_u32", r, d, r) if d > 0 else valu("v_subrev_u32", r, -d, r)

    def place_reads3(self, gaps, g0, it, grp, cur=None, buf=None):
        rl = []
        for f in (2 * grp, 2 * grp + 1):
            rl += self.frag_reads3(it, f, grp % 3 if buf is None else buf)
        fx = [x for x in (self.fix(self.akind(it), ri, win) for _, ri, win in rl) if x is not None]
        if fx and it.kind == "O" and self.p4:
            self.pending_fix += [(x, 2, g0 - 1) for x in fx]
        elif fx:
            same = (cur is not None and cur.kind == it.kind)
            if it.kind == "K":
                lo = 20 if same else 2
            elif g0 == 24:
                lo = 16 if same else 2
            else:
                lo = 22 if same else 2
            self.pending_fix += [(x, lo, g0 - 1) for x in fx]
        pair = self.cfg["dspair_k"] if it.kind == "K" else (self.cfg["dspair_v"] if it.kind == "V" else self.cfg["dspair_w"])
        for k, (ins, ri, win) in enumerate(rl):
            gaps[g0 + (k // 2 if pair else k)].ds.append(ins)
        return len(rl)

    def first_reads3(self, it):
        out = []
        for grp in range(2):
            for f in (2 * grp, 2 * grp + 1):
                for ins, ri, win in self.frag_reads3(it, f, grp % 3):
                    x = self.fix(self.akind(it), ri, win)
                    if x is not None: out.append(x)
                    out.append(ins)
        for ri in range(len(self.regs[self.akind(it)])):
            x = self.fix(self.akind(it), ri, self.plan[it.name])
            if x is not None: out.append(x)
        return out

    def x_reads3(self, it):
        u = it.n
        return [ds_read("ds_read_b128", XF(u, half, qb), AX[half], it.slot * SLOT + 2048 * qb) for half in range(2) for qb in range(3)]

    def units(self, it):
        tag = ("item", it.name)
        out = []
        for k in range(it.units):
            so = s_do[self.nunit % 2]
            self.nunit += 1
            nt = False
            if it.kind == "X":
                m0 = salu("s_add_u32", "m0", s_w6144, it.slot * SLOT + 3072 * k)
                off = salu("s_add_u32", so, s_xb, 128 * it.n + 30720 * k)
                vo, sr = DA, SRD_X
                nt = bool(self.cfg["nt_x0"]) if it.h == 0 else bool(self.cfg["nt_x1"])
            else:
                m0 = salu("s_add_u32", "m0", s_w3072, it.slot * SLOT)
                if it.kind in "KV":
                    off = self.kv_off(so, it)
                    vo, sr = DKV, (SRD_K if it.kind == "K" else SRD_V)
                    nt = self.cfg["nt_kv"]
                elif it.kind == "W":
                    off = salu("s_add_u32", so, s_wb, it.h * 384 + it.n * 393216)
                    vo, sr = DB, SRD_W
                    nt = bool(self.cfg["nt_w0"]) if it.h == 0 else bool(self.cfg["nt_w1"])
                elif self.p4:
                    q, hh, kb = self.g_kstep(it.n)
                    off = salu("s_add_u32", so, s_gq[q], (hh * 192 + 32 * kb) * 1280)
                    vo, sr = DO, SRD_WO
                else:
                    c, s = o_cs(it.n, self.cfg["hide_n"])
                    off = salu("s_add_u32", so, s_ob, s * 122880 + c * 128)
                    vo, sr = DO, SRD_WO
            out.append((m0, off, [dma(vo[i], sr, so, 1024 * i, nt, tag=tag) for i in range(3)]))
        return out

    def kv_off(self, so, it):
        if self.cfg["kv_rot"] and not self.cfg["kv_same"]:
            return [salu("s_xor_b32", so, s_n0, it.n), salu("s_mul_i32", so, so, 12288),
                    salu("s_add_u32", so, so, s_kvb if it.h == 0 else s_kvb1)]
        imm = it.h * 196608 + (0 if self.cfg["kv_same"] else it.n * 12288)
        return salu("s_add_u32", so, s_kvb, imm)

    def place_dma(self):
        for b in range(self.NS):
            un = []
            for it in self.seq:
                if it.issue == b and not getattr(it, "reg", False): un += self.units(it)
            assert len(un) <= 4
            if self.p4 and b >= 104:
                pos = [[(0, 22), (1, 4), (1, 10)]]
                assert len(un) <= 1
            elif self.p4 and b == 103:
                pos = [[(0, 28), (1, 4), (1, 10)]]
                assert len(un) <= 1
            elif len(un) == 1:
                pos = [[(0, 28), (1, 4), (1, 16)]]
            elif len(un) == 2:
                pos = [[(0, 28), (0, 34), (1, 4)], [(1, 10), (1, 16), (1, 22)]]
            elif len(un) > 2:
                pos = [[(0, 28), (0, 29), (0, 34)], [(1, 2), (1, 4), (1, 5)], [(1, 8), (1, 10), (1, 11)], [(1, 14), (1, 16), (1, 17)]][:len(un)]
            else:
                pos = []
            for (m0, off, ins), ps in zip(un, pos):
                for i, (ds_, gi) in enumerate(ps):
                    g = self.gaps[b + ds_]
                    if i == 0:
                        if isinstance(off, list):
                            (g[gi - 3] if gi >= 3 else self.gaps[b + ds_ - 1][36 + gi - 3]).sc.append(off[0])
                            g[gi - 2].sc += [off[1], m0]; g[gi - 1].sc.append(off[2])
                        else:
                            g[gi - 2].sc.append(m0)
                            g[gi - 1].sc.append(off)
                    if len(un) > 2 and gi % 6 < 4 and g[gi].ds:
                        pass
                    g[gi].vm.append(ins[i])

    def place_reg_tiles(self):
        self.dbase = 0
        awr = V(247) if self.p4 else AWR
        for h in range(2):
            its = [self.KV[(h, j)] for j in range(32) if getattr(self.KV[(h, j)], "reg", False)]
            start = float(self.cfg["rp_start0" if h == 0 else "rp_start1"])
            last_s = -1
            for k, it in enumerate(its):
                s = 52 * h + self.rp_load_step(h, k)
                while len([gi for gi in (5, 11, 17, 29, 35) if not self.gaps[s][gi].vm]) < 3 or s <= last_s: s += 1
                if h == 1: self.rp1_first[k] = s * 36 + min(gi for gi in (5, 11, 17, 29, 35) if not self.gaps[s][gi].vm)
                last_s = s
                assert s + 2 <= it.issue, (it, s)
                g = self.gaps[s]
                off = self.kv_off(s_rp, it)
                if isinstance(off, list):
                    for q, x in enumerate(off): g[1 + q].sc.append(x)
                else:
                    g[3].sc.append(off)
                free = [gi for gi in (5, 11, 17, 29, 35) if not g[gi].vm][:3]
                assert len(free) == 3, (s, free)
                for i, gi in enumerate(free):
                    g[gi].vm.append(vload(A(12 * k + 4 * i, 4), DKV[i], SRD_K if it.kind == "K" else SRD_V, s_rp, 1024 * i,
                                          " nt" if self.cfg["nt_kv"] else "", tag=("reg", it.name)))
                it.rk = k
            for b in sorted({it.issue for it in its}):
                grp = [it for it in its if it.issue == b]
                wr = []
                for it in grp:
                    off = it.slot * SLOT
                    pre = []
                    if not (0 <= off - self.dbase and off - self.dbase + 2048 + 1024 <= 65536):
                        nb = min(off, (self.R - 5) * SLOT)
                        d = nb - self.dbase
                        self.dbase = nb
                        pre = [valu("v_add_u32", awr, d, awr) if d > 0 else valu("v_subrev_u32", awr, -d, awr)]
                    wr.append((it, pre, [ds_write(awr, A(12 * it.rk + 4 * i, 4), off - self.dbase + 1024 * i, tag=("dump", it.name)) for i in range(3)]))
                if b % 52 == 19:
                    blk = []
                    for it, pre, w in wr: blk += [WaitTag([("reg", it.name)])] + pre + w
                    self.dump_block[b] = blk
                    continue
                cand = [(b, gi) for gi in range(24, 36)] + [(b + 1, gi) for gi in range(0, 22)]
                ci = 0
                for it, pre, w in wr:
                    first = True
                    for x in w:
                        while True:
                            st_, gi = cand[ci]
                            gp = self.gaps[st_][gi]
                            ok = not gp.vm and gp.free() >= 1 and len(gp.ds) < 2
                            if first and pre:
                                pst, pg = cand[ci - 1] if ci > 0 else (None, None)
                                ok = ok and ci > 0
                            if ok: break
                            ci += 1
                        if first:
                            gp.sc.append(WaitTag([("reg", it.name)]))
                            if pre:
                                pst, pg = cand[ci - 1]
                                self.gaps[pst][pg].va += pre
                            first = False
                        gp.ds.append(x)
                        ci += 1

    def frame3(self, s, mf):
        it = self.item[s]
        nx = self.item[s + 1] if s + 1 < self.NS else None
        gaps = [Gap(mf(i, FB((i // 6) % 3, (i // 3) % 2))) for i in range(36)]
        nds = [0] * 6
        self.pending_fix = []
        for Gi in range(6):
            if Gi < 4:
                nds[Gi] = self.place_reads3(gaps, 6 * Gi, it, Gi + 2)
            elif nx is not None:
                nds[Gi] = self.place_reads3(gaps, 6 * Gi, nx, Gi - 4, cur=it)
        xs = [x for x in self.X.values() if x.need == s]
        if xs:
            rd = self.x_reads3(xs[0])
            for k, gi in enumerate((24, 25, 26, 27, 30, 31)):
                gaps[gi].ds.append(rd[k])
            nds[4] += 4
            nds[5] += 2
        need = [("item", x.name) for x in self.seq if x.need == s]
        for Gi in range(6):
            gi = 6 * Gi + 5
            if Gi == 3 and nx is not None:
                lt = [("dump", x.name) for x in self.seq if x.need == s]
                bar = barrier()
                bar.info = lt
                gaps[gi].sc += [WaitTag(need, lgkm="auto", ltags=lt), bar]
            elif Gi == 5:
                if nx is not None: gaps[gi].sc.append(WaitTag([], lgkm="auto"))
            else:
                gaps[gi].sc.append(WaitTag([], lgkm="auto"))
        self.fixes[s] = self.pending_fix
        if self.cfg["steptime"]:
            gaps[24].post.append(I("s_memtime s[92:93]", "salu"))
            gaps[33].post += [raw("s_waitcnt lgkmcnt(0)"), raw(f"v_writelane_b32 v{253 + s // 64}, s92, {s % 64}", "valu")]
        self.gaps[s] = gaps

    @staticmethod
    def g_kstep(j):
        if j < 12: return 0, j // 6, j % 6
        r = j - 12
        return 1 + r // 12, (r % 12) // 6, r % 6

    def g_bidx(self, j):
        q, hh, kb = self.g_kstep(j)
        return None if q == 0 else j - 12

    def g_breg(self, j, qb):
        q, hh, kb = self.g_kstep(j)
        if q == 0: return O0P(kb, qb) if hh == 0 else QF(kb, qb)
        return A(12 * (self.g_bidx(j) % 12) + 4 * qb, 4)

    def frame_g(self, j):
        s = 104 + j
        it = self.item[s]
        nx = self.item[s + 1] if s + 1 < self.NS else None
        buf = lambda jj, G: (5 * jj + G) % 3

        def mf(i):
            t, qb = i // 3, i % 3
            return mfma(GACC(t, qb), FB(buf(j, i // 6), t % 2), self.g_breg(j, qb), 0 if j == 0 else GACC(t, qb))
        gaps = [Gap(mf(i)) for i in range(30)]
        self.pending_fix = []
        for Gi in range(5):
            if Gi < 3:
                self.place_reads3(gaps, 6 * Gi, it, Gi + 2, buf=buf(j, Gi + 2))
            elif nx is not None:
                self.place_reads3(gaps, 6 * Gi, nx, Gi - 3, cur=it, buf=buf(j + 1, Gi - 3))
        need = [("item", x.name) for x in self.seq if x.need == s]
        if j + 1 < 48 and self.g_bidx(j + 1) is not None: need.append(("bl", j + 1))
        for Gi in range(5):
            gi = 6 * Gi + 5
            if Gi == 2 and nx is not None:
                gaps[gi].sc += [WaitTag(need, lgkm="auto"), barrier()]
            elif Gi == 4:
                if nx is not None: gaps[gi].sc.append(WaitTag([], lgkm="auto"))
            else:
                gaps[gi].sc.append(WaitTag([], lgkm="auto"))
        self.fixes[s] = self.pending_fix
        if self.cfg["steptime"]:
            gaps[18].post.append(I("s_memtime s[92:93]", "salu"))
            gaps[27].post += [raw("s_waitcnt lgkmcnt(0)"), raw(f"v_writelane_b32 v{253 + s // 64}, s92, {s % 64}", "valu")]
        self.gaps[s] = gaps

    def build_frames(self):
        for h in range(2):
            for t in range(20):
                def mf(i, fr, t=t):
                    T, qb = i // 3, i % 3
                    return mfma(ACC(T, qb), fr, XF(t // 2, t % 2, qb), 0 if t == 0 else ACC(T, qb))
                self.frame3(52 * h + t, mf)
            for j in range(32):
                kind, n = a_item(j)
                p = n % 2
                if kind == "K":
                    def mf(i, fr, p=p, n=n):
                        f, qb = i // 3, i % 3
                        kt, kb = f // 6, f % 6
                        c = (0 if n < 2 else NEGM(qb)) if kb == 0 else SB(p, kt, qb)
                        return mfma(SB(p, kt, qb), fr, QF(kb, qb), c)
                else:
                    def mf(i, fr, p=p, n=n):
                        T, qb = i // 3, i % 3
                        return mfma(OA(T, qb), fr, PB(p, qb), 0 if n == 0 else OA(T, qb))
                self.frame3(52 * h + 20 + j, mf)
        if self.p4:
            for j in range(48): self.frame_g(j)
            return
        for j in range(40):
            c, s = o_cs(j, self.cfg["hide_n"])

            def mf(i, fr, s=s, p=c % 2):
                f, qb = i // 3, i % 3
                jj, nt = f // 4, f % 4
                ks = 3 * s + jj
                h, kb = ks // 6, ks % 6
                b = O0P(kb, qb) if h == 0 else QF(kb, qb)
                return mfma(OACC(p, nt, qb), fr, b, 0 if ks == 0 else OACC(p, nt, qb))
            self.frame3(104 + j, mf)

    def a_fill(self, h):
        s0 = 52 * h + 20
        gaps = [g for j in range(32) for g in self.gaps[s0 + j]]
        Gx = lambda j, i=0: 36 * j + i
        mops, fin = self.max_ops(0)
        for o in mops: o.earliest = Gx(1, 0)
        sm0, _ = self.softmax_ops(0, sub_deps=fin, earliest_kt=(Gx(1, 0), Gx(1, 2)))
        pend = list_schedule(gaps, mops + sm0, Gx(1, 0), Gx(2, 0))
        self.post[s0 + 1] += autonop(self.emit_tail(pend)) + [valu("v_mov_b32", L(qb), LT(qb)) for qb in range(3)]
        for n in range(1, 16):
            p = n % 2
            j0 = 2 * n
            j1 = j0 + 2 if n <= 14 else j0 + 1
            sub = [None, None, None] if n == 1 else None
            sm, ltl = self.softmax_ops(p, sub_deps=sub, earliest_kt=(Gx(j0, 0), Gx(j0, 3)), lacc=(n > 1))
            pend = list_schedule(gaps, sm + self.check_ops(ltl, p), Gx(j0, 0), Gx(j1, 0))
            self.post[s0 + j1 - 1] += autonop(self.emit_tail(pend)) + self.check_branch(p)
            if n == 15: self.post[s0 + j1 - 1] += self.l_acc()

    RINV = [V(192), V(193), V(194)]

    def rinv_fill(self, h):
        gaps = self.gaps[52 * h + 51]
        y = [MT(3 + qb) for qb in range(3)]
        dst = self.RINV if h == 0 else [MT(8), MT(9), MT(10)]
        ops, prev = [], [None] * 3
        for sw in ("v_permlane32_swap_b32", "v_permlane16_swap_b32"):
            for qb in range(3):
                o = Op(valu("v_mov_b32", y[qb], L(qb)), [(prev[qb], 0)] if prev[qb] else []); ops.append(o); prev[qb] = o
            for qb in range(3):
                o = Op(perm(sw, L(qb), y[qb]), [(prev[qb], 2)]); ops.append(o); prev[qb] = o
            for qb in range(3):
                o = Op(valu("v_add_f32", L(qb), L(qb), y[qb]), [(prev[qb], 1)]); ops.append(o); prev[qb] = o
        for qb in range(3):
            o = Op(vrcp(dst[qb], L(qb)), [(prev[qb], 0)]); ops.append(o)
        assert not list_schedule(gaps, ops, 0, 36)

    def norm_ops(self, h, tsets, rinv):
        ops, last_use, rd_last, unit_last = [], [[] for _ in tsets], {}, {}
        store_dep = [None for _ in tsets]
        k = 0
        for kb in range(6):
            for qb in range(3):
                ts = k % len(tsets)
                t = tsets[ts]
                dep0 = [(x, 0) for x in last_use[ts]] + ([(store_dep[ts], 2)] if store_dep[ts] else [])
                rds = []
                for tt, T in enumerate((2 * kb, 2 * kb + 1)):
                    for r in range(4):
                        o = Op(I(f"v_accvgpr_read_b32 v{t + 4 * tt + r}, {rtxt(OAr(T, qb, r))}", "valu", [V(t + 4 * tt + r)], [OAr(T, qb, r)]), list(dep0))
                        ops.append(o); rds.append(o)
                        rd_last[T] = o
                mul = []
                for r in range(8):
                    o = Op(valu("v_mul_f32", V(t + r), V(t + r), rinv[qb]), [(rds[r], 0)]); ops.append(o); mul.append(o)
                cv = []
                for r in range(4):
                    d = V(t + r) if h == 0 else QFr(kb, qb, r)
                    deps = [(mul[2 * r], 0), (mul[2 * r + 1], 0)] + ([(cv[-1], 0)] if cv and h == 0 else [])
                    o = Op(valu("v_cvt_pk_bf16_f32", d, V(t + 2 * r), V(t + 2 * r + 1)), deps); ops.append(o); cv.append(o)
                fin = cv
                if h == 0:
                    fin = []
                    for r in range(4):
                        o = Op(I(f"v_accvgpr_write_b32 {rtxt(O0Pr(kb, qb, r))}, v{t + r}", "valu", [O0Pr(kb, qb, r)], [V(t + r)]), [(cv[r], 0), (cv[-1], 0)])
                        ops.append(o); fin.append(o)
                if h == 0 and self.p4 and int(self.cfg["o0_start"]) < 0:
                    deps = [(cv[-1], 0)] + ([(self._ost_adv, 0)] if getattr(self, "_ost_adv", None) else [])
                    st = Op(vstore(V(t, 4), VOX, SRD_WS, s_bl, 1024 * qb, " sc1", tag=("ost", 0)), deps)
                    ops.append(st)
                    fin = fin + [st]
                    self._ost_last = st
                    if qb == 2 and kb < 5:
                        self._ost_adv = Op(salu("s_add_u32", s_bl, s_bl, 3072), [(st, 0)])
                        ops.append(self._ost_adv)
                    last_use[ts] = [(x) for x in fin]
                    store_dep[ts] = st
                else:
                    last_use[ts] = fin
                unit_last[(kb, qb)] = fin
                k += 1
        return ops, rd_last, unit_last

    def n0_fill(self):
        gaps = [g for s in range(52, 72) for g in self.gaps[s]]
        ops, rd_last, _ = self.norm_ops(0, [198, 206], self.RINV)
        pend = list_schedule(gaps, ops, 0, 36 * 19)
        assert not pend, len(pend)
        if self.p4 and int(self.cfg["o0_start"]) >= 104:
            pass
        elif self.p4 and int(self.cfg["o0_start"]) >= 0:
            self.o0_stores()
        elif self.p4:
            fs = self._ost_last.gap // 36 + int(self.cfg["d_oflag"])
            assert fs <= 19, fs
            self.add_wait_tag(gaps, fs, ("ost", 0))
            gaps[36 * fs + 24].va.insert(0, valu("v_mov_b32", V(214), 1))
            gaps[36 * fs + 29].vm.append(vstore(V(214), VFO, SRD_WS, s_t[5], 0, " sc1", tag=("flag",), width=1))
        self.n0_free = {T: 52 * 36 + o.gap for T, o in rd_last.items()}
        for k, g0 in self.rp1_first.items():
            assert self.n0_free[k] < g0, (k, self.n0_free[k], g0)

    def o0_stores(self):
        s0, per = int(self.cfg["o0_start"]), int(self.cfg["o0_per"])
        s, k = s0, 0
        units = [(kb, qb) for kb in range(6) for qb in range(3)]
        while k < 18:
            g = self.gaps[s]
            free = [gi for gi in (5, 11, 17, 29, 35) if not g[gi].vm and g[gi].free() >= 2][:per]
            for gi in free:
                if k == 18: break
                kb, qb = units[k]
                if qb == 0:
                    g[gi - 2].sc.append(salu("s_add_u32", s_bl, s_oown, 3072 * kb))
                g[gi].vm.append(vstore(O0P(kb, qb), VOX, SRD_WS, s_bl, 1024 * qb, " sc1", tag=("ost", 0)))
                k += 1
            s += 1
        assert s <= 104, s
        return
        fs = s - 1 + int(self.cfg["d_oflag"])
        allg = [x for st_ in range(self.NS) if self.gaps[st_] for x in self.gaps[st_]]
        for x in self.gaps[fs][23].sc:
            if isinstance(x, WaitTag): x.tag = ("waittag", x.tag[1] + (("ost", 0),))
        vt = V(214) if fs < 72 else V(139)
        self.gaps[fs][24].va.insert(0, valu("v_mov_b32", vt, 1))
        gi = [q for q in (29, 35) if not self.gaps[fs][q].vm][0]
        self.gaps[fs][gi].vm.append(vstore(vt, VFO, SRD_WS, s_t[5], 0, " sc1", tag=("flag",), width=1))
        self.o0_flag_step = fs

    def n1_fill(self):
        gaps = [g for j in range(8) for g in self.gaps[104 + j]]
        rinv = [MT(8), MT(9), MT(10)]
        ops, _, unit_last = self.norm_ops(1, [112, 120], rinv)
        done = []
        lim = {kb: 36 * (4 + kb // 3) + 12 * (kb % 3) - 1 for kb in range(6)}
        g = 0
        rest = ops
        for kb in range(6):
            mine = [o for o in rest if any(o in unit_ops for unit_ops in [self._unit_ops(ops, kb)])]
            pend = list_schedule(gaps, mine, g, lim[kb])
            if pend:
                gi = lim[kb]
                gaps[gi].post += autonop([o.ins for o in pend]) + [nop(1)]
                for o in pend: o.gap = gi + 1
            rest = [o for o in rest if o not in mine]

    def _unit_ops(self, ops, kb):
        return ops[60 * kb:60 * kb + 60]

    def n_block(self, h):
        out = []
        if h == 1 and self.cfg["fused"]:
            out += self.hu_setup()
        out += self.rinv_ops()
        tmp = [V(0 + 8 * k, 8) for k in range(3)]
        pk = [V(24 + 4 * k, 4) for k in range(3)]
        for kb in range(6):
            for qb in range(3):
                t = tmp[qb][1]
                for tt, T in enumerate((2 * kb, 2 * kb + 1)):
                    for r in range(4):
                        out.append(I(f"v_accvgpr_read_b32 v{t + 4 * tt + r}, {rtxt(OAr(T, qb, r))}", "valu",
                                     [V(t + 4 * tt + r)], [OAr(T, qb, r)]))
            for qb in range(3):
                t = tmp[qb][1]
                for h2 in range(4):
                    out.append(valu("v_pk_mul_f32", V(t + 2 * h2, 2), V(t + 2 * h2, 2), V(MT(8 + 2 * qb)[1], 2)))
            for qb in range(3):
                t = tmp[qb][1]
                for r in range(4):
                    d = V(pk[qb][1] + r) if h == 0 else QFr(kb, qb, r)
                    out.append(valu("v_cvt_pk_bf16_f32", d, V(t + 2 * r), V(t + 2 * r + 1)))
            if h == 0:
                for qb in range(3):
                    for r in range(4):
                        out.append(I(f"v_accvgpr_write_b32 {rtxt(O0Pr(kb, qb, r))}, v{pk[qb][1] + r}", "valu",
                                     [O0Pr(kb, qb, r)], [V(pk[qb][1] + r)]))
        return autonop(out)

    def mask_test(self, k, mask):
        return [I(f"v_cmp_le_u32 vcc, {k}, {rtxt(FLG)}", "valu", [], [FLG]), raw("s_nop 0"),
                raw(f"s_and_b32 {rtxt(s_t[1])}, vcc_lo, {rtxt(mask)}"), raw(f"s_cmp_eq_u32 {rtxt(s_t[1])}, {rtxt(mask)}")]

    def mask_spin(self, k, mask, name, first_wait):
        body = [raw(f"s_sleep {self.cfg['spin_sleep']}"), I(self.poll_load(None).txt, "salu"), raw("s_waitcnt vmcnt(0)")]
        body += [I(x.txt, "salu") for x in self.mask_test(k, mask)]
        o = [first_wait, scmp("s_cmp_eq_u32", s_w, int(self.cfg["poll_wave"])), branch("s_cbranch_scc0", f"{name}_ok")]
        o += self.mask_test(k, mask) + [branch("s_cbranch_scc1", f"{name}_ok"), salu("s_mov_b32", s_t[0], 1 << 18), label(f"{name}_loop")]
        o += [salu("s_sub_u32", s_t[0], s_t[0], 1), branch("s_cbranch_scc1", f"{name}_ok")]
        o += body + [branch("s_cbranch_scc0", f"{name}_loop"), label(f"{name}_ok")]
        return o

    def g_bloads(self, j):
        q, hh, kb = self.g_kstep(j)
        e = self.g_bidx(j) % 12
        so = s_bl2[self.g_bidx(j) % 2]
        return (salu("s_add_u32", so, s_oq[q], hh * 73728 + kb * 3072),
                [vload(A(12 * e + 4 * qb, 4), VOX, SRD_WS, so, 1024 * qb, " sc1", tag=("bl", j)) for qb in range(3)])

    def g_check_block(self):
        o = [WaitTag([("chk",)]), scmp("s_cmp_eq_u32", s_w, 0), branch("s_cbranch_scc0", "L_chk_ok"),
             I(f"v_readfirstlane_b32 {rtxt(s_t[1])}, {rtxt(VCHK)}", "valu", [s_t[1]], [VCHK]), raw("s_nop 3"),
             scmp("s_cmp_ge_u32", s_t[1], 16), branch("s_cbranch_scc1", "L_chk_ok"),
             salu("s_mov_b32", s_t[0], 1 << 18), label("L_chk_loop"),
             salu("s_sub_u32", s_t[0], s_t[0], 1), branch("s_cbranch_scc1", "L_chk_ok"), raw("s_sleep 8"),
             I(f"buffer_load_dword {rtxt(VCHK)}, {rtxt(VFO)}, {rtxt(SRD_DBG)}, {rtxt(s_b16)} offen sc1", "salu"), raw("s_waitcnt vmcnt(0)"),
             I(f"v_readfirstlane_b32 {rtxt(s_t[1])}, {rtxt(VCHK)}", "salu"), raw("s_nop 3"),
             scmp("s_cmp_ge_u32", s_t[1], 16), branch("s_cbranch_scc0", "L_chk_loop"), label("L_chk_ok"),
             salu("s_lshl_b32", s_b16, s_b, 8), salu("s_add_u32", s_b16, s_b16, FLAG_OFF),
             valu("v_subrev_u32", V(138), 64 * int(self.cfg["poll_wave"]), TID),
             valu("v_lshlrev_b32", V(137), 2, V(138)), valu("v_mov_b32", VPOLL, 0x7FFFFF00),
             I("v_cmp_gt_u32 vcc, 16, v138", "valu", [], [V(138)]), nop(1),
             I(f"v_cndmask_b32 {rtxt(VPOLL)}, {rtxt(VPOLL)}, v137, vcc", "valu", [VPOLL], [VPOLL, V(137)])]
        return o

    def g_n1_block(self):
        out = srd(SRD_OUT, None, 16 * 192 * 640 * 2, s_outp) + [salu("s_add_u32", s_bl, s_oown, 73728)]
        rinv = [MT(8), MT(9), MT(10)]
        first = []
        tmp = [V(0 + 8 * k, 8) for k in range(3)]
        in_blk = int(self.cfg["o0_start"]) >= 104
        for kb in range(6):
            if in_blk: out.append(salu("s_add_u32", s_bl2[0], s_oown, 3072 * kb))
            for qb in range(3):
                t = tmp[qb][1]
                if in_blk: out.append(vstore(O0P(kb, qb), VOX, SRD_WS, s_bl2[0], 1024 * qb, " sc1", tag=("ost", 0)))
                for tt, T in enumerate((2 * kb, 2 * kb + 1)):
                    for r in range(4):
                        out.append(I(f"v_accvgpr_read_b32 v{t + 4 * tt + r}, {rtxt(OAr(T, qb, r))}", "valu", [V(t + 4 * tt + r)], [OAr(T, qb, r)]))
            for qb in range(3):
                t = tmp[qb][1]
                for h2 in range(4):
                    out.append(valu("v_pk_mul_f32", V(t + 2 * h2, 2), V(t + 2 * h2, 2), V(RIN2[qb][1], 2)))
            for qb in range(3):
                t = tmp[qb][1]
                for r in range(4):
                    out.append(valu("v_cvt_pk_bf16_f32", QFr(kb, qb, r), V(t + 2 * r), V(t + 2 * r + 1)))
            for qb in range(3):
                out.append(vstore(QF(kb, qb), VOX, SRD_WS, s_bl, 1024 * qb, " sc1", tag=("ost", 1)))
            if kb < 5: out.append(salu("s_add_u32", s_bl, s_bl, 3072))
            for j in first:
                if (self.g_bidx(j) % 12) // 2 == kb:
                    su, ld = self.g_bloads(j)
                    out += [su] + ld
        dup = []
        for qb in range(3):
            dup += [valu("v_mov_b32", V(RIN2[qb][1]), rinv[qb]), valu("v_mov_b32", V(RIN2[qb][1] + 1), rinv[qb])]
        return autonop(dup + out)

    def g_fill(self):
        G0 = 104
        gaps = lambda j: self.gaps[G0 + j]
        d_bl = int(self.cfg["d_bl"])
        fs = int(self.cfg["g_oflag"])
        for x in gaps(fs)[17].sc:
            if isinstance(x, WaitTag): x.tag = ("waittag", x.tag[1] + (("ost", 1), ("ost", 0)))
        gaps(fs)[18].va.insert(0, valu("v_mov_b32", VFV, 2))
        gaps(fs)[23].vm.append(self.flag_store())
        ps = fs + int(self.cfg["g_poll"])
        cs = ps + int(self.cfg["g_chk"])
        gaps(ps)[29].vm.append(self.poll_load(("poll", "o1")))
        self.post[G0 + cs - 1] += self.mask_spin(2, s_mgrp, "L_spb", WaitTag([("poll", "o1")]))
        self.bl_issue = {}
        nxt = 12
        for js in range(cs, 48):
            g = gaps(js)
            sets = [(23, 28, 29)] if js == cs else [(11, 16, 28), (5, 23, 29)]
            chosen = []
            for pos in sets:
                k_ = nxt + len(chosen)
                if k_ >= 48 or k_ - js > d_bl or any(g[gi].vm for gi in pos): continue
                chosen.append(pos)
            chosen.sort()
            for pos in chosen:
                su, ld = self.g_bloads(nxt)
                g[pos[0] - 2].sc.append(su)
                for x, gi in zip(ld, pos): g[gi].vm.append(x)
                self.bl_issue[nxt] = js
                nxt += 1
        assert nxt == 48
        for j, js in self.bl_issue.items():
            assert js < j, (j, js)
            if j - 12 >= 12: assert js > j - 12, (j, js)
        lane, g_, m_, t0, t1, d1 = V(133 + 3), V(137), V(138), V(139), V(124), V(125)
        cnd = lambda d, b: I(f"v_cndmask_b32 {rtxt(d)}, 0, {rtxt(b)}, vcc", "valu", [d], [b])
        cmp_ = lambda txt, u: I(txt, "valu", [], [u])
        lane = V(126)
        o = [valu("v_and_b32", lane, 63, TID), valu("v_lshrrev_b32", g_, 4, lane), valu("v_and_b32", m_, 15, lane),
             valu("v_mul_u32_u24", t0, 1280, m_), valu("v_lshlrev_b32", t1, 4, g_), valu("v_add_u32", VOUT, t0, t1),
             valu("v_lshlrev_b32", VZ, 4, lane),
             valu("v_lshrrev_b32", t0, 2, m_), valu("v_and_b32", t1, 1, t0), valu("v_lshlrev_b32", t1, 4, t1),
             valu("v_lshrrev_b32", t0, 1, t0), valu("v_lshlrev_b32", t0, 2, t0), valu("v_add_u32", t1, t1, t0),
             valu("v_and_b32", t0, 3, m_), valu("v_add_u32", t1, t1, t0),
             valu("v_lshlrev_b32", t0, 3, g_), valu("v_sub_u32", d1, t1, t0)]
        for k in range(2):
            if k: o.append(valu("v_add_u32", d1, 8, d1))
            o += [valu("v_and_b32", t0, 1, d1), valu("v_lshlrev_b32", t0, 4, t0), valu("v_mov_b32", t1, 0x3F80),
                  valu("v_lshlrev_b32", t1, t0, t1), valu("v_lshrrev_b32", t0, 1, d1)]
            for d in range(4):
                o += [cmp_(f"v_cmp_eq_u32 vcc, {d}, {rtxt(t0)}", t0), cnd(V(SEL[k][1] + d), t1)]
        allg = [g for j in range(48) for g in gaps(j)]
        ops, prev = [], None
        for x in o:
            op = Op(x, [(prev, 2 if x.txt.startswith("v_cndmask") else 0)] if prev else [], earliest=30 * 1)
            ops.append(op); prev = op
        assert not list_schedule(allg, ops, 30 * 1, 30 * 40)
        self.post[self.NS - 1] += self.g_tail()

    def g_out_scalars(self):
        o = []
        for k in range(4):
            u, ntp, qb, a = s_t[0], s_t[2], s_t[3], S(76 + k)
            o += [salu("s_add_u32", u, s_w, 4 * k), salu("s_mul_hi_u32", ntp, u, (2 ** 32 + 2) // 3), salu("s_mul_i32", qb, ntp, 3),
                  salu("s_sub_u32", qb, u, qb), salu("s_lshl_b32", qb, qb, 4), salu("s_mul_i32", a, qb, 1280),
                  salu("s_lshl_b32", ntp, ntp, 6), salu("s_add_u32", a, a, ntp), salu("s_add_u32", a, a, s_oout)]
            if k == 3:
                o += [scmp("s_cmp_ge_u32", u, 15), salu("s_cselect_b32", a, 0x7FFF0000, a)]
        return o

    def g_unit_ops(self):
        res = []
        for ntp in range(5):
            for qb in range(3):
                a, b = GACC(2 * ntp, qb)[1], GACC(2 * ntp + 1, qb)[1]
                cv = [valu("v_cvt_pk_bf16_f32", V(a), V(a), V(a + 1)), valu("v_cvt_pk_bf16_f32", V(a + 1), V(a + 2), V(a + 3)),
                      valu("v_cvt_pk_bf16_f32", V(a + 2), V(b), V(b + 1)), valu("v_cvt_pk_bf16_f32", V(a + 3), V(b + 2), V(b + 3))]
                u = ntp * 3 + qb
                so = s_bl2[(u // 4) % 2]
                sc = salu("s_add_u32", so, s_px, 1024 * u) if u % 4 == 0 else None
                res.append((ntp, cv, sc, vstore(V(a, 4), PSL16, SRD_WS, so, 1024 * (u % 4), " sc1", tag=("pst",))))
        return res

    def g_tail(self):
        units = self.g_unit_ops()
        left = []
        if self.cfg["g_hide_tail"]:
            gaps = self.gaps[self.NS - 1]
            allg = [g for j in range(48) for g in self.gaps[104 + j]]
            end = self.spread_scalars(allg, self.g_out_scalars(), 30 * 42)
            assert end <= 30 * 47
            ops, prev_st = [], None
            per_unit = []
            for ntp, cv, sc, st in units:
                e = 6 * ntp + 5 + 4
                oc, prev = [], None
                for x in cv:
                    op = Op(x, [(prev, 0)] if prev else [], earliest=e); oc.append(op); prev = op
                deps = [(prev, 0)] + ([(prev_st, 0)] if prev_st else [])
                if sc is not None:
                    osc = Op(sc, [(prev_st, 0)] if prev_st else [], earliest=e); oc.append(osc); deps.append((osc, 0))
                ost = Op(st, deps, earliest=e); oc.append(ost); prev_st = ost
                ops += oc
            left = [o_.ins for o_ in list_schedule(gaps, ops, 0, 30)]
            o = autonop([nop(7)] + left)
        else:
            o = [nop(7)]
            for ntp, cv, sc, st in units:
                o += cv + ([sc] if sc is not None else []) + [st]
            o = autonop(o)
        o += self.tstamp(0)
        if not self.cfg["g_hide_tail"]: o += self.g_out_scalars()
        o += [WaitTag([("pst",)]), barrier()] + self.tstamp(1)
        o += [valu("v_mov_b32", VFV, 3), self.flag_store(), self.poll_load(("poll", "fin"))]
        o += self.mask_spin(3, s_mfin, "L_spf", WaitTag([("poll", "fin")])) + [barrier()] + self.tstamp(2)
        for k in range(4):
            for ks in range(4):
                o += [salu("s_add_u32", s_bl, s_pin, ks * 61440 + 4096 * k),
                      vload(A(16 * k + 4 * ks, 4), VZ, SRD_WS, s_bl, 0, " sc1", tag=("red", 7, k, ks))]
        o += self.tstamp(3)
        for k in range(4):
            o.append(WaitTag([("red", 7, k, 3)]))
            for ks in range(4):
                for h in range(2):
                    o.append(mfma(RD[h], SEL[h], A(16 * k + 4 * ks, 4), 0 if ks == 0 else RD[h]))
            o.append(nop(7))
            for h in range(2):
                a = RD[h][1]
                o += [valu("v_cvt_pk_bf16_f32", V(2 * h), V(a), V(a + 1)), valu("v_cvt_pk_bf16_f32", V(2 * h + 1), V(a + 2), V(a + 3))]
            o += [vstore(V(0, 4), VOUT, SRD_OUT, S(76 + k), 0, self.cfg["out_flags"], tag=("out", k)), nop(1)]
        o += self.tstamp(4)
        return o

    def o_fill(self):
        gaps = [g for j in range(40) for g in self.gaps[104 + j]]

        def cvts(p):
            ops = []
            for ntp in range(2):
                for qb in range(3):
                    u = ntp * 3 + qb
                    for h in range(2):
                        a = OACC(p, 2 * ntp + h, qb)[1]
                        ops.append(valu("v_cvt_pk_bf16_f32", CTr(u, 2 * h), V(a), V(a + 1)))
                        ops.append(valu("v_cvt_pk_bf16_f32", CTr(u, 2 * h + 1), V(a + 2), V(a + 3)))
            return ops

        def store(u, c):
            return vstore(CT(u), PSV, SRD_WS, s_pst[u // 4], (u % 4) * 1024, self.cfg["pst_flags"], tag=("st", c))

        spos = [(0, 22), (0, 34), (1, 10), (1, 22), (1, 34), (2, 10)]
        last_step = {}
        for j in range(40): last_step[o_cs(j, self.cfg["hide_n"])[0]] = j
        prev_store_gap = -1
        for c in range(9):
            j0 = last_step[c] + 1
            g0 = 36 * j0
            e0 = max(g0 + 3, prev_store_gap + 1)
            ops = [Op(x, earliest=e0) for x in cvts(c % 2)]
            pos = [g0 + 36 * s + gi for s, gi in spos]
            pos = [p_ for p_ in pos if p_ > e0 + 8]
            k = 3
            while len(pos) < 6:
                nxt = g0 + 36 * (k // 1) + (10, 22, 34)[0]
                for gi in (10, 22, 34):
                    p_ = g0 + 36 * 2 + gi if k == 3 else g0 + 36 * (k - 1) + gi
                    if p_ not in pos and p_ > (pos[-1] if pos else 0) and len(pos) < 6: pos.append(p_)
                k += 1
            for u, p_ in enumerate(pos):
                if not self.cfg["no_st"]:
                    gaps[p_].vm.append(store(u, c))
            assert not list_schedule(gaps, ops, e0, e0 + 40)
            for u, p_ in enumerate(pos):
                assert max(o.gap for o in ops[4 * u:4 * u + 4]) < p_, (c, u, p_)
            prev_store_gap = pos[-1]
            self.last_store = getattr(self, "last_store", {})
            self.last_store[c] = pos[-1]
            ga = pos[-1] + 1
            gaps[ga].sc.append(salu("s_add_u32", s_pst[0], s_pst[0], 24576))
            gaps[ga + 1].sc.append(salu("s_add_u32", s_pst[1], s_pst[1], 24576))
        fused = self.cfg["fused"]
        if fused:
            self.hu_fill(gaps)
        tail = autonop([nop(7)] + cvts(1) + [store(u, 9) for u in range(6)])
        if fused: tail += self.hu_tail()
        self.post[143] += tail

    HU_NEED = [1, 2, 3, 5, 6, 7, 8, 9]
    HU_BASE = [0, 64, 128, 192, 256, 320, 384, 432]
    HU_LIM = [480, 480, 480, 480, 480, 480, 432, 480]

    def hu_buf(self, rho, t): return A(32 * (rho % 4 if rho in self.hu_inloop else rho) + 4 * t, 4)

    def hu_load(self, rho, t):
        return vload(self.hu_buf(rho, t), VHL, SRD_WS, s_rl2[rho % 2], 0, self.cfg["red_flags"], tag=("red", rho, t))

    def hu_adv(self, rho):
        return salu("s_add_u32", s_rl2[rho % 2], s_rl2[rho % 2], 2 * 245760)

    def s_out(self, rho):
        return S(76 + rho) if self.cfg["hu_pre"] else s_ro[rho % 2]

    def hu_mfma(self, rho):
        o = []
        for t in range(8):
            if t % 4 == 0: o.append(WaitTag([("red", rho, t + 3)]))
            o.append(mfma(RD[0], SEL[0], self.hu_buf(rho, t), 0 if t == 0 else RD[0]))
        a = RD[0][1]
        o += [nop(7), valu("v_cvt_pk_bf16_f32", V(RD[1][1]), V(a), V(a + 1)), valu("v_cvt_pk_bf16_f32", V(RD[1][1] + 1), V(a + 2), V(a + 3)),
              vstore(V(RD[1][1], 2), VOUT, SRD_OUT, self.s_out(rho), 0, self.cfg["out_flags"], tag=("out", rho), width=2), nop(1)]
        return ([] if self.cfg["hu_pre"] else self.hu_out_off(rho)) + o

    def hu_out_off(self, rho):
        hu, n, c, rem, w2, u, ntp, a = s_t[0], s_t[1], s_t[2], s_t[3], S(100), S(101), S(61), self.s_out(rho)
        o = [salu("s_add_u32", hu, s_kw, self.HU_BASE[rho]), salu("s_lshr_b32", n, hu, 1),
             salu("s_mul_hi_u32", c, n, (2 ** 32 + 23) // 24), salu("s_mul_i32", rem, c, 24), salu("s_sub_u32", rem, n, rem),
             salu("s_mul_hi_u32", w2, rem, (2 ** 32 + 5) // 6), salu("s_mul_i32", u, w2, 6), salu("s_sub_u32", u, rem, u),
             salu("s_mul_hi_u32", ntp, u, (2 ** 32 + 2) // 3), salu("s_mul_i32", rem, ntp, 3), salu("s_sub_u32", u, u, rem),
             salu("s_mul_i32", a, s_b, 192), salu("s_mul_i32", w2, w2, 48), salu("s_add_u32", a, a, w2),
             salu("s_lshl_b32", u, u, 4), salu("s_add_u32", a, a, u), salu("s_mul_i32", a, a, 1280),
             salu("s_lshl_b32", c, c, 7), salu("s_add_u32", a, a, c), salu("s_lshl_b32", ntp, ntp, 6), salu("s_add_u32", a, a, ntp),
             salu("s_and_b32", n, hu, 1), salu("s_lshl_b32", n, n, 4), salu("s_add_u32", a, a, n)]
        if rho >= 6:
            o += [scmp("s_cmp_ge_u32", hu, self.HU_LIM[rho]), salu("s_cselect_b32", a, 0x7FFF0000, a)]
        return o

    def hu_base(self, rho):
        return salu("s_add_u32", s_rl2[rho % 2], s_pb, 512 * self.HU_BASE[rho])

    def hu_setup(self):
        hide = self.cfg["hide_setup"]
        lane, g_, m_, t0, t1 = (V(133), V(134), V(135), V(137), V(138)) if hide else (V(96), V(97), V(98), V(99), V(100))
        o = srd(SRD_OUT, None, 16 * 192 * 640 * 2, s_outp)
        o += [WaitTag([("chk",)]), scmp("s_cmp_eq_u32", s_w, 0), branch("s_cbranch_scc0", "L_chk_ok"),
              I(f"v_readfirstlane_b32 {rtxt(s_t[1])}, {rtxt(VCHK)}", "valu", [s_t[1]], [VCHK]), raw("s_nop 3"),
              scmp("s_cmp_ge_u32", s_t[1], 16), branch("s_cbranch_scc1", "L_chk_ok"),
              salu("s_mov_b32", s_t[0], 1 << 18), label("L_chk_loop"),
              salu("s_sub_u32", s_t[0], s_t[0], 1), branch("s_cbranch_scc1", "L_chk_ok"), raw("s_sleep 8"),
              I(f"buffer_load_dword {rtxt(VCHK)}, {rtxt(VFO)}, {rtxt(SRD_DBG)}, {rtxt(s_b16)} offen sc1", "salu"), raw("s_waitcnt vmcnt(0)"),
              I(f"v_readfirstlane_b32 {rtxt(s_t[1])}, {rtxt(VCHK)}", "salu"), raw("s_nop 3"),
              scmp("s_cmp_ge_u32", s_t[1], 16), branch("s_cbranch_scc0", "L_chk_loop"), label("L_chk_ok")]
        cnd = lambda d, a, b: I(f"v_cndmask_b32 {rtxt(d)}, {rtxt(a)}, {rtxt(b)}, vcc", "valu", [d], [a, b])
        cmp_ = lambda txt, u: I(txt, "valu", [], [u])
        head = o
        o = []
        o += [valu("v_and_b32", lane, 63, TID), valu("v_lshrrev_b32", g_, 4, lane), valu("v_and_b32", m_, 15, lane),
              valu("v_mov_b32", VZ, 0),
              valu("v_mul_u32_u24", t0, 1280, m_), valu("v_and_b32", t1, 1, g_), valu("v_lshlrev_b32", t1, 5, t1), valu("v_add_u32", t0, t0, t1),
              valu("v_lshrrev_b32", t1, 1, g_), valu("v_lshlrev_b32", t1, 3, t1), valu("v_add_u32", VOUT, t0, t1),
              valu("v_lshrrev_b32", t0, 5, lane), valu("v_mul_u32_u24", t0, 245760, t0), valu("v_and_b32", t1, 31, lane),
              valu("v_lshlrev_b32", t1, 4, t1), valu("v_add_u32", VHL, t0, t1),
              valu("v_lshlrev_b32", t0, 2, TID), valu("v_mov_b32", VPOLL, 0x7FFFFF00),
              cmp_(f"v_cmp_gt_u32 vcc, 16, {rtxt(TID)}", TID), nop(1), cnd(VPOLL, VPOLL, t0),
              valu("v_and_b32", t0, 1, m_), valu("v_lshlrev_b32", t0, 4, t0), valu("v_mov_b32", t1, 0x3F80), valu("v_lshlrev_b32", t1, t0, t1),
              valu("v_lshrrev_b32", t0, 3, m_), valu("v_and_b32", g_, 1, g_),
              cmp_(f"v_cmp_eq_u32 vcc, {rtxt(t0)}, {rtxt(g_)}", t0), nop(1), cnd(t1, VZ, t1),
              valu("v_lshrrev_b32", t0, 1, m_), valu("v_and_b32", t0, 3, t0)]
        for d in range(4):
            o += [cmp_(f"v_cmp_eq_u32 vcc, {d}, {rtxt(t0)}", t0), nop(1), cnd(V(SEL[0][1] + d), VZ, t1)]
        if hide:
            self.setup_valu = [x for x in o if x.cls != "nop"]
            o = head
        else:
            o = head + o
        o += [salu("s_lshl_b32", s_b16, s_b, 8), salu("s_add_u32", s_b16, s_b16, FLAG_OFF),
              salu("s_lshl_b32", s_t[0], s_pj, 2), salu("s_add_u32", s_t[5], s_b16, s_t[0]), salu("s_add_u32", s_kw, s_t[0], s_w),
              salu("s_mul_i32", s_pb, s_b, 16 * 245760), salu("s_lshl_b32", s_t[0], s_kw, 9), salu("s_add_u32", s_pb, s_pb, s_t[0]),
              salu("s_add_u32", s_pb, s_pb, PART_OFF)]
        return o

    def add_wait_tag(self, gaps, fs, tag):
        for x in gaps[36 * fs + 23].sc:
            if isinstance(x, WaitTag):
                x.tag = ("waittag", x.tag[1] + (tag,))

    def spread_scalars(self, gaps, ins, g0):
        g = g0
        k = 0
        while k < len(ins):
            while gaps[g].sc or gaps[g].vm: g += 1
            grp = [ins[k]]
            if ins[k].txt.startswith("s_cmp"):
                grp.append(ins[k + 1])
            gaps[g].sc += grp
            k += len(grp)
            g += 1
        return g

    def hu_fill(self, gaps):
        if self.cfg["hide_setup"]:
            ops, prev = [], None
            for x in self.setup_valu:
                d = 2 if x.txt.startswith("v_cndmask") else 0
                op = Op(x, [(prev, d)] if prev else [], earliest=36 * 6)
                ops.append(op); prev = op
            assert not list_schedule(gaps, ops, 36 * 6, 36 * 12)
        if self.cfg["hu_pre"]:
            seq_ = []
            for rho in range(8): seq_ += self.hu_out_off(rho)
            end = self.spread_scalars(gaps, seq_, 36 * 1)
            assert end < 36 * 13, end
        self.hu_fill2(gaps)

    def hu_fill2(self, gaps):
        d_flag, d_poll, d_chk = int(self.cfg["d_flag"]), int(self.cfg["d_poll"]), int(self.cfg["d_chk"])
        n_in = int(self.cfg["hu_in"])
        self.hu_pending = []
        self.hu_inloop = set()
        published = set()
        for rho in range(8):
            c = self.HU_NEED[rho]
            if c >= 8: break
            fs = self.last_store[c] // 36 + d_flag
            if c not in published and fs <= 38:
                published.add(c)
                self.add_wait_tag(gaps, fs, ("st", c))
                gaps[36 * fs + 24].va.insert(0, valu("v_mov_b32", VFV, c + 1))
                gaps[36 * fs + 29].vm.append(self.flag_store())
            ps = fs + d_poll
            cs = ps + d_chk
            if rho >= n_in or cs > 38:
                self.hu_pending.append((rho, 0))
                continue
            self.hu_inloop.add(rho)
            gaps[36 * ps + 35].vm.append(self.poll_load(("poll", rho)))
            self.post[104 + cs - 1] += self.check_spin(c + 1, f"L_sp{rho}", WaitTag([("poll", rho)])) + [self.hu_base(rho)]
            t, st_ = 0, cs
            while t < 8 and st_ < 40:
                for gi in sorted((35, 11, 17)[:int(self.cfg['hu_per'])]):
                    if t == 8: break
                    if st_ == cs and gi < 24: continue
                    g = gaps[36 * st_ + gi]
                    if g.vm: continue
                    g.vm.append(self.hu_load(rho, t))
                    g.post.append(self.hu_adv(rho))
                    t += 1
                st_ += 1
            self.hu_end = getattr(self, "hu_end", {})
            self.hu_end[rho] = st_
            if rho - 2 in self.hu_end: assert self.hu_end[rho - 2] <= cs, (rho, self.hu_end, cs)
            ms = st_ + int(self.cfg["d_mfma"])
            if t == 8 and ms <= 39:
                self.post[104 + ms - 1] += self.hu_mfma(rho)
            else:
                self.hu_pending.append((rho, t, "polled"))

    def hu_tail(self):
        pend = self.hu_pending
        ready = [p[0] for p in pend if len(p) == 3 and p[1] == 8]
        partial = [(p[0], p[1]) for p in pend if len(p) == 3 and p[1] < 8]
        late = [p[0] for p in pend if len(p) == 2]
        flag = lambda k: [valu("v_mov_b32", VFV, k), self.flag_store()]

        def loads(r, t0=0):
            o = [self.hu_base(r)] if t0 == 0 else []
            for t in range(t0, 8): o += [self.hu_load(r, t), self.hu_adv(r)]
            return o
        o = self.tstamp(0)
        if late: o += [self.poll_load(("poll", "late"))]
        o += [WaitTag([("st", 8)]), barrier()] + flag(9)
        for r in ready: o += self.hu_mfma(r)
        o += self.tstamp(1)
        if late:
            c = max(self.HU_NEED[r] for r in late)
            o += self.check_spin(c + 1, "L_spl", WaitTag([("poll", "late")]))
        o += [WaitTag([("st", 9)]), barrier()] + self.tstamp(2) + [self.poll_load(("poll", 9))] + flag(10)
        inflight = []
        for r, t0 in partial:
            o += loads(r, t0)
            inflight.append(r)
        for r in late:
            if len(inflight) >= 4: o += self.hu_mfma(inflight.pop(0))
            o += loads(r)
            inflight.append(r)
        o += self.tstamp(3)
        while len(inflight) > 1: o += self.hu_mfma(inflight.pop(0))
        o += self.check_spin(9, "L_sp9", WaitTag([("poll", 9)])) + [barrier()] + self.tstamp(4)
        o += loads(6) + [self.poll_load(("poll", "fin"))]
        for r in inflight: o += self.hu_mfma(r)
        o += self.tstamp(5) + self.check_spin(10, "L_spf", WaitTag([("poll", "fin")])) + [barrier()] + self.tstamp(6)
        o += loads(7) + self.tstamp(7) + self.hu_mfma(6) + self.tstamp(8) + self.hu_mfma(7) + self.tstamp(9) + self.tstamp(10)
        return o

    def tstamp(self, k):
        if not self.cfg["steptime"]: return []
        return [I("s_memtime s[92:93]", "salu"), raw("s_waitcnt lgkmcnt(0)"), raw(f"v_writelane_b32 v255, s92, {(30 if self.p4 else 20) + k}", "valu")]


def g_lane_consts():
    out = []
    lc = G.LaneCalc(out)
    lc.val[TID] = np.arange(256, dtype=np.int64)
    lane, w, g_, r, c, t0, t1, t2, t3 = [PT(11 + k) for k in range(9)]
    lc.op("v_and_b32", lane, 63, TID); lc.op("v_lshrrev_b32", w, 6, TID); lc.op("v_lshrrev_b32", g_, 4, lane)
    lc.op("v_lshrrev_b32", r, 2, lane); lc.op("v_and_b32", r, 3, r); lc.op("v_and_b32", c, 3, lane)
    L_ = np.arange(256) & 63; W_ = np.arange(256) >> 6
    G_, R_, C_ = L_ >> 4, (L_ & 15) >> 2, L_ & 3
    lc.op("v_lshrrev_b32", t0, 1, g_); lc.op("v_mul_u32_u24", t0, 3072, t0)
    lc.op("v_and_b32", t1, 1, g_); lc.op("v_lshlrev_b32", t2, 2, t1); lc.op("v_add_u32", t2, t2, r)
    lc.op("v_mul_u32_u24", t2, 320, t2); lc.op("v_add_u32", t0, t0, t2)
    lc.op("v_lshrrev_b32", t2, 1, c); lc.op("v_lshlrev_b32", t2, 4, t2); lc.op("v_add_u32", t0, t0, t2)
    lc.op("v_and_b32", t2, 1, c); lc.op("v_lshlrev_b32", t2, 3, t2); lc.op("v_add_u32", t0, t0, t2)
    lc.op("v_lshlrev_b32", t1, 5, t1)
    lc.op("v_add_u32", AO[0], t0, t1); lc.op("v_add_u32", AO[2], t0, t1)
    lc.op("v_xor_b32", t1, 32, t1)
    lc.op("v_add_u32", AO[1], t0, t1); lc.op("v_add_u32", AO[3], t0, t1)
    base = (G_ >> 1) * 3072 + (4 * (G_ & 1) + R_) * 320 + (C_ >> 1) * 16 + (C_ & 1) * 8
    for k in (0, 2): assert (lc.val[AO[k]] == base + (G_ & 1) * 32).all()
    for k in (1, 3): assert (lc.val[AO[k]] == base + (1 - (G_ & 1)) * 32).all()
    for i in range(3):
        lc.op("v_add_u32", t0, 64 * i, lane)
        lc.op("v_mul_u32_u24", t1, 3277, t0); lc.op("v_lshrrev_b32", t1, 16, t1)
        lc.op("v_mul_u32_u24", t2, 20, t1); lc.op("v_sub_u32", t2, t0, t2)
        lc.op("v_lshrrev_b32", t3, 2, t1); lc.op("v_and_b32", t3, 1, t3); lc.op("v_lshlrev_b32", t3, 1, t3)
        lc.op("v_xor_b32", t2, t2, t3); lc.op("v_lshlrev_b32", t2, 4, t2)
        lc.op("v_lshlrev_b32", t3, 3, w); lc.op("v_add_u32", t3, t3, t1); lc.op("v_mul_u32_u24", t3, 1280, t3)
        lc.op("v_add_u32", t2, t2, t3)
        P = 64 * i + L_
        RL, CP = P // 20, P % 20
        want = (8 * W_ + RL) * 1280 + (CP ^ (2 * ((RL >> 2) & 1))) * 16
        assert (lc.val[t2][P < 160] == want[P < 160]).all()
        if i: out.append(valu("v_subrev_u32", t2, 1024 * i, t2))
        if i < 2:
            out.append(valu("v_mov_b32", DO[i], t2))
        else:
            out += [valu("v_mov_b32", DO[i], 0x7FFFFF00), I(f"v_cmp_gt_u32 vcc, 32, {rtxt(lane)}", "valu", [], [lane]), nop(1),
                    I(f"v_cndmask_b32 {rtxt(DO[i])}, {rtxt(DO[i])}, {rtxt(t2)}, vcc", "valu", [DO[i]], [DO[i], t2])]
    lc.op("v_lshlrev_b32", t0, 4, lane)
    lc.op("v_mul_u32_u24", t1, 18432, w); lc.op("v_add_u32", VOX, t0, t1)
    lc.op("v_mul_u32_u24", t1, 15360, w); lc.op("v_add_u32", PSL16, t0, t1)
    return out


def g_scalars():
    t0, t1, ks, nt = s_t[0], s_t[1], s_t[2], s_t[3]
    o = [salu("s_lshr_b32", ks, s_pj, 2), salu("s_and_b32", nt, s_pj, 3),
         salu("s_lshl_b32", s_mgrp, ks, 2), salu("s_lshl_b32", s_mgrp, 15, s_mgrp), salu("s_lshl_b32", s_mfin, 0x1111, nt)]
    for q in range(4):
        if q == 0:
            o += [salu("s_mov_b32", t0, nt)]
        else:
            o += [scmp("s_cmp_le_u32", nt, q - 1), salu("s_cselect_b32", t0, q, q - 1)]
        o += [salu("s_lshl_b32", t1, ks, 2), salu("s_add_u32", t0, t0, t1),
              salu("s_mul_i32", s_gq[q], t0, 491520), salu("s_mul_i32", t1, nt, 320), salu("s_add_u32", s_gq[q], s_gq[q], t1),
              salu("s_lshl_b32", t1, s_b, 4), salu("s_add_u32", t0, t0, t1), salu("s_mul_i32", t0, t0, 147456),
              salu("s_add_u32", s_oown if q == 0 else s_oq[q], t0, OX_OFF)]
    o += [salu("s_lshl_b32", t0, s_b, 2), salu("s_add_u32", t0, t0, nt), salu("s_lshl_b32", t0, t0, 2),
          salu("s_add_u32", t1, t0, ks), salu("s_mul_i32", s_px, t1, 61440), salu("s_add_u32", s_px, s_px, PX_OFF),
          salu("s_lshl_b32", t0, t0, 2), salu("s_add_u32", t0, t0, ks), salu("s_mul_i32", s_pin, t0, 15360),
          salu("s_lshl_b32", t1, s_w, 10), salu("s_add_u32", s_pin, s_pin, t1), salu("s_add_u32", s_pin, s_pin, PX_OFF),
          salu("s_mul_i32", s_oout, s_b, 192), salu("s_mul_i32", t1, ks, 48), salu("s_add_u32", s_oout, s_oout, t1),
          salu("s_mul_i32", s_oout, s_oout, 1280), salu("s_mul_i32", t1, nt, 320), salu("s_add_u32", s_oout, s_oout, t1),
          salu("s_lshl_b32", t0, s_b, 8), salu("s_lshl_b32", t1, s_pj, 2), salu("s_add_u32", t0, t0, t1), salu("s_add_u32", s_t[5], t0, FLAG_OFF),
          salu("s_mov_b32", s_bl, s_oown)]
    return o


def stamp(k):
    return [I("s_memtime s[56:57]", "salu"), raw("s_waitcnt lgkmcnt(0)"), salu("s_mov_b32", S(64 + k), S(56))]


def main_kernel(cfg):
    g = Gen3(cfg)
    T = cfg["timing"]
    pro = [label("mha_main_kernel"), scmp("s_cmp_ge_u32", S(2), 256), branch("s_cbranch_scc1", "L_main_exit"),
           raw("s_load_dwordx16 s[64:79], s[0:1], 0")]
    if T and cfg["stamp_entry"]: pro.insert(1, I("s_memrealtime s[86:87]", "salu"))
    if cfg["pf_entry"]:
        pro += [I("s_getpc_b64 s[56:57]", "salu"), label("L_pce"), raw("s_add_u32 s56, s56, mha_main_kernel-L_pce"), raw("s_addc_u32 s57, s57, -1") if False else raw("s_subb_u32 s57, s57, 0") if False else raw("s_nop 0"),
                ]
        pro = pro[:-4] + [I("s_getpc_b64 s[56:57]", "salu"), label("L_pce"),
                raw("s_and_b32 s56, s56, 0xffffff00"),
                valu("v_lshlrev_b32", V(1), 7, V(0)), raw("v_mov_b32 v3, s57", "valu"),
                raw("v_add_co_u32 v2, vcc, s56, v1", "valu"), raw("s_nop 1"), raw("v_addc_co_u32 v3, vcc, 0, v3, vcc", "valu"),
                I(f"global_load_dword {rtxt(JUNK)}, v[2:3], off", "vmem", [], [])]
    lane_ops = []
    wreg = build_lane_consts(lane_ops)
    t0, t1 = s_t[0], s_t[1]
    nb = int(cfg["map_nb"]); npair = 32 // nb
    lg = lambda v: v.bit_length() - 1
    seen = set()
    for wg in range(256):
        a0, j = wg & 7, wg >> 3
        pj = (j & (npair - 1)) + ((a0 & (16 // npair - 1)) << lg(npair))
        bb = (j >> lg(npair)) + ((a0 >> lg(16 // npair)) << lg(nb))
        seen.add((bb, pj))
    assert len(seen) == 256
    ids = [
        salu("s_and_b32", t0, S(2), 7), salu("s_lshr_b32", t1, S(2), 3),
        salu("s_and_b32", s_pj, t1, npair - 1), salu("s_lshr_b32", s_b, t1, lg(npair)),
        salu("s_and_b32", t1, t0, 16 // npair - 1), salu("s_lshl_b32", t1, t1, lg(npair)), salu("s_add_u32", s_pj, s_pj, t1),
        salu("s_lshr_b32", t0, t0, lg(16 // npair)), salu("s_lshl_b32", t0, t0, lg(nb)), salu("s_add_u32", s_b, s_b, t0),
        salu("s_lshl_b32", s_h0, s_pj, 1),
        salu("s_mul_i32", s_wb, s_h0, 384), salu("s_mul_i32", s_xb, s_b, 245760)]
    wave_sc = [salu("s_mul_i32", s_w3072, s_w, 3072), salu("s_lshl_b32", s_w6144, s_w3072, 1)]
    srd_first = srd(SRD_X, 64, 16 * 192 * 640 * 2) + srd(SRD_W, 70, 640 * 6144 * 2)
    srd_rest = srd(SRD_K, 66, 16 * 32 * 512 * 192 * 2) + srd(SRD_V, 68, 16 * 32 * 512 * 192 * 2)
    srd_rest += srd(SRD_WO, 72, 6144 * 640 * 2) + srd(SRD_WS, 78, 402653184)
    srd_rest += [salu("s_mov_b32", s_outp[0], S(74)), salu("s_mov_b32", s_outp[1], S(75)),
                 salu("s_mov_b32", s_dbgp[0], S(76)), salu("s_mov_b32", s_dbgp[1], S(77))]
    sc_rest = [
        salu("s_lshl_b32", t0, s_b, 5), salu("s_add_u32", t0, t0, s_h0), salu("s_mul_i32", s_kvb, t0, 196608),
        salu("s_add_u32", s_kvb1, s_kvb, 196608),
        salu("s_lshr_b32", s_n0, S(2), int(cfg["rot_shift"])), salu("s_mul_i32", s_n0, s_n0, int(cfg["rot_mul"])), salu("s_and_b32", s_n0, s_n0, 15),
        salu("s_mul_i32", s_ob, s_h0, 245760),
        salu("s_lshl_b32", t0, s_b, 4), salu("s_add_u32", t0, t0, s_pj),
        salu("s_mul_i32", s_pst[0], t0, 245760), salu("s_add_u32", s_pst[0], s_pst[0], PART_OFF),
        salu("s_add_u32", s_pst[1], s_pst[0], 4096),
        salu("s_mov_b32", s_thr, THR_BITS), salu("s_mov_b32", S(48), C_BITS), salu("s_mov_b32", S(49), C_BITS),
    ]
    clr = []
    if cfg["fused"]:
        clr = [salu("s_lshl_b32", t0, s_b, 8), salu("s_lshl_b32", t1, s_pj, 2), salu("s_add_u32", t0, t0, t1),
               salu("s_add_u32", t0, t0, FLAG_OFF), valu("v_mov_b32", PT(8), 0),
               vstore(PT(8), VFO, SRD_WS, t0, 0, " sc1", tag=("clr",), width=1)]
    rfl = [nop(0), I(f"v_readfirstlane_b32 {rtxt(s_w)}, {rtxt(wreg)}", "valu", [s_w], [wreg])]
    first = [it for it in g.seq if it.issue == -1]
    first_tiles = []
    for it in first:
        for m0, off, ins in g.units(it):
            first_tiles += [m0] + (off if isinstance(off, list) else [off]) + [nop(0)] + ins
    if cfg["fast_pro"]:
        need = set()
        for r in DA + DB + [wreg]: need |= regs(r)
        keep = []
        for ins in reversed(lane_ops):
            if ins.defs & need:
                keep.append(ins)
                if not (ins.defs <= ins.uses): need -= ins.defs
                need |= {u for u in ins.uses if u[0] == "v"}
        keep.reverse()
        pro += ids + keep + rfl + [raw("s_waitcnt lgkmcnt(0)")] + srd_first + wave_sc
        if T and not cfg["stamp_entry"]: pro += [I("s_memrealtime s[86:87]", "salu")]
        if T and cfg["stamp_entry"]: pro += [I("s_memrealtime s[94:95]", "salu")]
        pro += first_tiles
        pro.append(label("L_early_pf"))
        pro += lane_ops + srd_rest + sc_rest + clr
        if T: pro += stamp(0)
    else:
        pro += lane_ops + rfl + [raw("s_waitcnt lgkmcnt(0)")] + srd_first + srd_rest + ids + wave_sc + sc_rest
        if T: pro += ([] if cfg["stamp_entry"] else [I("s_memrealtime s[86:87]", "salu")]) + ([I("s_memrealtime s[94:95]", "salu")] if cfg["stamp_entry"] else []) + stamp(0)
        pro += clr

    gw = S(59)
    lane, lane128 = PT(3), PT(2)
    OOB = 0x7FFFFF00

    def masked(dst, src, n):
        return [valu("v_mov_b32", dst, OOB), raw(f"v_cmp_gt_u32 vcc, {n}, {rtxt(lane)}", "valu"), raw("s_nop 1"),
                raw(f"v_cndmask_b32 {rtxt(dst)}, {rtxt(dst)}, {rtxt(src)}, vcc", "valu")]
    pfs = [salu("s_lshl_b32", gw, S(2), 2), salu("s_add_u32", gw, gw, s_w),
           valu("v_and_b32", lane, 63, TID), valu("v_lshlrev_b32", lane128, 7, lane),
           valu("v_mul_u32_u24", PT(5), 21846, lane), valu("v_lshrrev_b32", PT(5), 16, PT(5)),
           valu("v_mul_u32_u24", PT(6), 3, PT(5)), valu("v_sub_u32", PT(6), lane, PT(6)),
           valu("v_mul_u32_u24", PT(5), 12288, PT(5)), valu("v_lshlrev_b32", PT(6), 7, PT(6)), valu("v_add_u32", PT(5), PT(5), PT(6))]
    pfs += masked(VTK[0], PT(5), 30) + masked(VTK[1], lane128, 60) + masked(PT(4), lane128, 30)
    pfs += [salu("s_and_b32", t0, gw, 15), salu("s_mul_i32", t0, t0, 768), salu("s_lshr_b32", S(100), gw, 4),
            salu("s_mul_i32", S(100), S(100), 122880), salu("s_add_u32", S(100), S(100), t0), salu("s_mul_i32", S(101), gw, 7680)]
    start = []
    if "x" in cfg["pf_start"]:
        start += [salu("s_mul_i32", t0, gw, 3840), pf_load(PT(4), SRD_X, t0)]
    if "w" in cfg["pf_start"]:
        start += [pf_load(VTK[0], SRD_W, S(100))]
    if "1" in cfg["pf_start"]:
        start += [salu("s_add_u32", t0, S(100), 384), pf_load(VTK[0], SRD_W, t0)]
    code_steps = cfg["_code_steps"]
    pfs2 = []
    if cfg["pf_code"]:
        pfs2 += [valu("v_and_b32", PT(7), 31, TID), valu("v_lshlrev_b32", PT(7), 7, PT(7)),
                 salu("s_lshl_b32", t0, s_w, 12), valu("v_add_u32", VL128, t0, PT(7))]
    if int(cfg["pf_start_step"]) == -2:
        pro += pfs + start
        pfs, start = [], []
    if int(cfg["pf_start_step"]) == -3:
        k_ = [n for n, x in enumerate(pro) if x.cls == "label" and x.info == "L_early_pf"][0]
        pro[k_:k_ + 1] = pfs + start
        pfs = [valu("v_and_b32", lane, 63, TID), valu("v_lshlrev_b32", lane128, 7, lane)] + masked(VTK[1], lane128, 60)
        start = []
    pro = [x for x in pro if not (x.cls == "label" and x.info == "L_early_pf")]
    pfs += pfs2
    pfs += [valu("v_and_b32", PT(7), 63, TID), valu("v_lshlrev_b32", PT(7), 4, PT(7)), valu("v_add_u32", AWR, s_w3072, PT(7))]

    if not cfg["fast_pro"]: pro += first_tiles
    if cfg["tlb"]:
        tl = [valu("v_and_b32", PT(9), 1, TID)]
        for what in str(cfg["tlb"]):
            if what in "kv":
                tl += [valu("v_mul_u32_u24", PT(10), 393216 - 128, PT(9)), pf_load(PT(10), SRD_K if what == "k" else SRD_V, s_kvb)]
            elif what == "o":
                tl += [valu("v_mul_u32_u24", PT(10), 491520 - 128, PT(9)), pf_load(PT(10), SRD_WO, s_ob)]
            elif what == "p":
                tl += [valu("v_mul_u32_u24", PT(10), 245760 - 128, PT(9)), pf_load(PT(10), SRD_WS, s_pst[0])]
        pro += tl
    pro += pfs
    if cfg["pf_code"]:
        for k, st_ in enumerate(code_steps):
            if st_ < 0 and not (cfg["pf_entry"] and k == 0): pro += code_pf(f"L_code+{16384 * k}", sub=int(cfg["pf_sub"]))
    if cfg["pf_code_all"]:
        pro += [valu("v_lshlrev_b32", PT(9), 7, TID), valu("v_mov_b32", PT(10), S(2)), valu("v_lshlrev_b32", PT(10), 9, PT(10)),
                valu("v_add_u32", PT(9), PT(9), PT(10)),
                I("s_getpc_b64 s[56:57]", "salu"), label("L_pcall"), raw("s_add_u32 s56, s56, L_code-L_pcall"), raw("s_addc_u32 s57, s57, 0"),
                raw(f"v_mov_b32 v{VPC[1] + 1}, s57", "valu"), raw(f"v_add_co_u32 v{VPC[1]}, vcc, s56, {rtxt(PT(9))}", "valu"), raw("s_nop 1"),
                raw(f"v_addc_co_u32 v{VPC[1] + 1}, vcc, 0, v{VPC[1] + 1}, vcc", "valu"),
                raw(f"v_cmp_gt_u32 vcc, 4, {rtxt(TID)}", "valu"), raw("s_and_saveexec_b64 s[56:57], vcc"),
                raw("s_cbranch_execz L_pcall_skip"),
                I(f"global_load_dword {rtxt(JUNK)}, {rtxt(VPC)}, off", "salu", [], []), label("L_pcall_skip"),
                raw("s_mov_b64 exec, s[56:57]")]
    if cfg["p4"]: pro += g_lane_consts()
    if int(cfg["pf_start_step"]) == -1: pro += start
    pro += [WaitTag([("item", it.name) for it in g.seq if it.need == -1]), barrier()]
    cnt_blk = []
    if cfg["fused"]:
        TMP = S(96, 4)
        vone = V(212) if cfg["fast_pro"] else PT(8)
        cnt_blk = srd(TMP, None, 256, s_dbgp) + [salu("s_lshl_b32", t0, s_b, 4), valu("v_mov_b32", vone, 1), WaitTag([("clr",)]),
                I(f"buffer_atomic_add {rtxt(vone)}, {rtxt(VFO)}, {rtxt(TMP)}, {rtxt(t0)} offen", "store", [], [vone, VFO, TMP, t0], tag=("cnt",))]
        if not cfg["fast_pro"]: pro += cnt_blk
    pro += g.x_reads3(g.X[(0, 0)]) + g.first_reads3(g.item[0]) + [wait(lgkm=4)]
    pro.append(label("L_code"))

    if cfg["fast_pro"]: g.pre[5] += cnt_blk
    g.build_frames()
    g.place_dma()
    g.place_reg_tiles()
    g.place_fixes()
    def put(s, gi, ins_list):
        gp = g.gaps[s][gi]
        for x in ins_list:
            if x.cls in ("vmem",): gp.vm.append(x)
            else: gp.sc.append(x)
    def tlb_touch(h, tmp):
        st = int(cfg["tlb_stride"])
        n = (196608 + st - 1) // st
        o = [valu("v_mul_u32_u24", tmp, st, TID), valu("v_mov_b32", V(tmp[1] + 1), OOB),
             raw(f"v_cmp_gt_u32 vcc, {n}, {rtxt(TID)}", "valu"), raw("s_nop 1"),
             raw(f"v_cndmask_b32 {rtxt(tmp)}, v{tmp[1] + 1}, {rtxt(tmp)}, vcc", "valu"),
             salu("s_add_u32", t0, s_kvb, h * 196608)]
        for sr in (SRD_K, SRD_V):
            x = pf_load(tmp, sr, t0)
            x.txt += " nt"
            o.append(x)
        return o
    if int(cfg["tlb0"]) >= 0: g.pre[int(cfg["tlb0"])] += tlb_touch(0, V(192))
    if int(cfg["tlb1"]) >= 0: g.pre[int(cfg["tlb1"])] += tlb_touch(1, V(128))
    if int(cfg["pf_start_step"]) >= 0:
        g.pre[int(cfg["pf_start_step"])] += start
    if cfg["w1_split"]:
        steps_ = [int(x) for x in str(cfg["w1_split"]).split(".")]
        n_ = 30 // len(steps_)
        for k, st_ in enumerate(steps_):
            g.pre[st_] += [valu("v_subrev_u32", V(213), n_ * k, V(215)), valu("v_mov_b32", V(214), OOB),
                           raw(f"v_cmp_gt_u32 vcc, {n_}, v213", "valu"), raw("s_nop 1"),
                           raw(f"v_cndmask_b32 v214, v214, {rtxt(VTK[0])}, vcc", "valu"),
                           salu("s_add_u32", t0, S(100), 384), pf_load(V(214), SRD_W, t0)]
        g.pre[steps_[0]] = [valu("v_and_b32", V(215), 63, TID)] + g.pre[steps_[0]]
    elif int(cfg["pf_w1"]) == 19:
        g.post[19] = [salu("s_add_u32", t0, S(100), 384), pf_load(VTK[0], SRD_W, t0)] + g.post[19]
    elif int(cfg["pf_w1"]) >= 0:
        put(int(cfg["pf_w1"]), 9, [salu("s_add_u32", t0, S(100), 384)])
        put(int(cfg["pf_w1"]), 11, [pf_load(VTK[0], SRD_W, t0)])
    if cfg["wo_split"]:
        steps_ = [int(x) for x in str(cfg["wo_split"]).split(".")]
        n_ = 60 // len(steps_)
        for k, st_ in enumerate(steps_):
            g.pre[st_] += [valu("v_mov_b32", V(214), OOB), raw(f"v_cmp_gt_u32 vcc, {n_}, {rtxt(V(215))}", "valu"), raw("s_nop 1"),
                           raw(f"v_cndmask_b32 v214, v214, {rtxt(VTK[1])}, vcc", "valu"),
                           salu("s_add_u32", t0, S(101), 128 * n_ * k), pf_load(V(214), SRD_WO, t0)]
        g.pre[steps_[0]] = [valu("v_and_b32", V(215), 63, TID)] + g.pre[steps_[0]]
    elif int(cfg["pf_wo"]) == 52:
        g.post[51] += [pf_load(VTK[1], SRD_WO, S(101))]
    elif int(cfg["pf_wo"]) >= 0:
        put(int(cfg["pf_wo"]), 11, [pf_load(VTK[1], SRD_WO, S(101))])
    if cfg["pf_code"]:
        for k, st_ in enumerate(code_steps):
            if st_ >= 0: g.pre[st_] += code_pf(f"L_code+{16384 * k}", sub=int(cfg["pf_sub"]))
    if cfg["p4"]:
        if int(cfg["RP"]):
            assert int(cfg["pf_w1"]) < 10 and not cfg["w1_split"]
            g.pre[10] += [valu("v_and_b32", V(247), 63, TID), valu("v_lshlrev_b32", V(247), 4, V(247)), valu("v_add_u32", V(247), s_w3072, V(247))]
        g.pre[10] += g_scalars()
        g.post[90] += g.g_check_block()

    if cfg["fused"]:
        g.pre[80] += srd(SRD_DBG2, None, 256, s_dbgp) + [salu("s_lshl_b32", s_b16, s_b, 4),
                      I(f"buffer_load_dword {rtxt(VCHK)}, {rtxt(VFO)}, {rtxt(SRD_DBG2)}, {rtxt(s_b16)} offen sc1", "vmem", [VCHK],
                        [VFO, SRD_DBG2, s_b16], tag=("chk",))]
    if cfg["hide_n"]:
        g.rinv_fill(0); g.rinv_fill(1)
        g.n0_fill()
        if cfg["p4"]:
            g.post[103] += g.g_n1_block()
        else:
            g.n1_fill()
            if cfg["fused"]:
                g.post[103] += g.hu_setup()
    for h in range(2):
        g.a_fill(h)
        g.post[52 * h + 19] += g.dump_block.get(52 * h + 19, []) + g.q_pack()
        if not cfg["hide_n"]:
            g.post[52 * h + 51] += g.n_block(h)
    if cfg["p4"]: g.g_fill()
    else: g.o_fill()

    body = []
    marks = {0: 1, 20: 3, 52: 5, 72: 7}
    ends = {19: 2, 51: 4, 71: 6, 103: 8}
    for s in range(g.NS):
        body.append(label(f"L_st{s}"))
        if T and s in marks: body += stamp(marks[s])
        body += g.pre[s]
        for gp in g.gaps[s]: body += gp.flat()
        if T and s in ends: body += stamp(ends[s])
        body += g.post[s]

    fin = []
    if T:
        fin += stamp(9)
    fin += [raw("s_waitcnt vmcnt(0)")]
    if T:
        fin += [I("s_memtime s[56:57]", "salu"), I("s_memrealtime s[88:89]", "salu"), raw("s_waitcnt lgkmcnt(0)"),
                salu("s_mov_b32", S(74), S(56)), salu("s_mov_b32", S(90), S(88)), salu("s_sub_u32", S(88), S(88), S(86))]
        lst = [64, 65, 66, 67, 68, 69, 70, 71, 72, 73, 74, 88, 86, 90] + ([94] if cfg['stamp_entry'] else [])
        for k, sr in enumerate(lst): fin.append(valu("v_mov_b32", V(k), S(sr)))
        fin += [salu("s_lshl_b32", t0, S(2), 6), salu("s_add_u32", t0, t0, 300 * 1024 * 1024), valu("v_mov_b32", V(20), 0),
                raw(f"v_cmp_eq_u32 vcc, 0, {rtxt(TID)}", "valu"), raw("s_and_saveexec_b64 s[56:57], vcc")]
        for k in range(0, 16, 4): fin.append(vstore(V(k, 4), V(20), SRD_WS, t0, 4 * k))
        fin += [raw("s_waitcnt vmcnt(0)")]
        if cfg["steptime"]:
            fin += [raw("s_mov_b64 exec, -1"), salu("s_mul_i32", t0, S(2), 768), salu("s_add_u32", t0, t0, 320 * 1024 * 1024),
                    raw(f"v_cmp_gt_u32 vcc, 64, {rtxt(TID)}", "valu"), raw("s_and_saveexec_b64 s[56:57], vcc"),
                    valu("v_lshlrev_b32", V(20), 2, TID)]
            for k in range(3): fin.append(vstore(V(253 + k), V(20), SRD_WS, t0, 256 * k, width=1))
            fin += [raw("s_waitcnt vmcnt(0)")]
    fin += [label("L_main_exit"), raw("s_endpgm")]

    seq = pro + body
    state = {"checked": set(), "published": set()}
    for x in seq:
        if x.cls == "label" and str(x.info).startswith("L_sp") and str(x.info).endswith("_ok"):
            state["checked"].add(x.info[4:-3])
        elif x.cls == "barrier":
            state["published"] |= state["checked"]
        elif x.cls == "vmem" and isinstance(x.tag, tuple) and x.tag and x.tag[0] == "red":
            rho = x.tag[1]
            if cfg["p4"]:
                assert "f" in state["published"], ("partial load not ordered after its check", x.tag)
                continue
            ok = str(rho) in state["published"] or "f" in state["published"] or ("l" in state["published"] and rho < 6) or (rho == 6 and "9" in state["published"])
            assert ok, ("partial load not ordered after its check", x.tag, state)
    if cfg["p4"]:
        st2 = {"checked": set(), "published": set()}
        for x in seq:
            if x.cls == "label" and str(x.info).startswith("L_sp") and str(x.info).endswith("_ok"): st2["checked"].add(x.info[4:-3])
            elif x.cls == "barrier": st2["published"] |= st2["checked"]
            elif x.cls == "vmem" and isinstance(x.tag, tuple) and x.tag and x.tag[0] == "bl":
                hh = g.g_kstep(x.tag[1])[1]
                assert "b" in st2["published"], ("O load not ordered after its check", x.tag)
    res, errs, _, maxout = resolve_and_check(seq, "main")
    for e in errs[:30]: print("ERR", e, file=sys.stderr)
    assert not errs, len(errs)
    assert maxout <= 63, maxout
    final = []
    for w in seq:
        if isinstance(w, WaitTag):
            vals = [v for v in res[id(w)] if v is not None]
            vm, lgk = (min(vals) if vals else None), (w.lres if w.info[1] == "auto" else w.info[1])
            if vm is None and lgk is None:
                continue
            final.append(wait(vm, lgk))
        else:
            final.append(w)
    seq = final
    _, errs, _, _ = resolve_and_check(seq, "final")
    for e in errs[:30]: print("ERR", e, file=sys.stderr)
    assert not errs, len(errs)
    stubs = []
    for k, p in enumerate(g.rare_sites):
        stubs += [label(f"L_rs{k}"), I(f"s_call_b64 {rtxt(s_ret)}, L_rare{p}", "branch"), branch("s_branch", f"L_rr{k}")]
    rare = g.rare_code(0) + g.rare_code(1)
    return seq + fin + stubs + rare


SRD_DBG2 = SRD_DBG

MACROS = """.macro MF d,a,b,c
v_mfma_f32_16x16x32_bf16 \\d,\\a,\\b,\\c
.endm
.macro TR d,a,o
ds_read_b64_tr_b16 \\d,\\a offset:\\o
.endm
.macro RD d,a,o
ds_read_b128 \\d,\\a offset:\\o
.endm
"""


def compact(line):
    import re
    t = line.strip()
    if t.startswith("v_mfma_f32_16x16x32_bf16 "):
        return "MF " + t.split(" ", 1)[1].replace(", ", ",")
    m = re.match(r"ds_read_b64_tr_b16 (\S+), (\S+) offset:(\d+)$", t)
    if m: return f"TR {m.group(1)},{m.group(2)},{m.group(3)}"
    m = re.match(r"ds_read_b128 (\S+), (\S+) offset:(\d+)$", t)
    if m: return f"RD {m.group(1)},{m.group(2)},{m.group(3)}"
    return t.replace(", ", ",")


HEADER = """; Fused multi-head attention block for MI355X (gfx950); assembly produced by my own generator script.
"""


def text_of(cfg, m, pad):
    kname = KNAME if cfg["single"] else "mha_main_kernel"
    lds = int(cfg["R"]) * SLOT
    s = HEADER + ("; p4: split-K output projection\n" if cfg["p4"] else "")
    if cfg["single"]:
        s += f"; @launch grid=(256,1,1) block=(256,1,1) lds={lds}\n"
    else:
        s += f"; @launch kernel=mha_main_kernel grid=(256,1,1) block=(256,1,1) lds={lds}\n"
        if not cfg["fused"]:
            s += "; @launch kernel=mha_reduce_kernel grid=(960,1,1) block=(256,1,1) lds=0\n"
    s += '.amdgcn_target "amdgcn-amd-amdhsa--gfx950"\n'
    if cfg["macros"]: s += MACROS
    s += ".text\n"
    ks = [(kname, m)]
    if not cfg["fused"]: ks.append(("mha_reduce_kernel", G.reducer_kernel(cfg)))
    for nm, code in ks:
        lines = []
        for i in code:
            for ln in i.txt.split("\n"):
                lines.append(compact(ln) if cfg["macros"] and i.cls != "label" else ln)
        s += f".globl {nm}\n.p2align 8\n.type {nm},@function\n" + "\n".join(lines).replace("mha_main_kernel:", kname + ":") + "\n"
    s += f".fill {pad}, 4, 0xBF800000\nL_text_end:\n"
    s += '.section .rodata,"a"\n.p2align 6\n' + kd(kname, 512, 256)
    if not cfg["fused"]: s += ".p2align 6\n" + kd("mha_reduce_kernel", 88, 88)
    return s


def assemble_syms(text):
    open("_g3.s", "w").write(text)
    r = subprocess.run(["clang", "-x", "assembler", "-target", "amdgcn-amd-amdhsa", "-mcpu=gfx950", "-c", "_g3.s", "-o", "_g3.o"],
                       capture_output=True, text=True)
    assert r.returncode == 0, r.stderr[:2000]
    sy = subprocess.run(["llvm-readelf", "-s", "_g3.o"], capture_output=True, text=True).stdout
    return {ln.split()[-1]: int(ln.split()[1], 16) for ln in sy.splitlines() if " L_" in ln and len(ln.split()) >= 8}


def build(cfg, path):
    import importlib
    cfg = dict(cfg)
    cfg["_code_steps"] = [-1] + [max(0, 21 * k - 10) for k in range(1, 8)]
    for it in range(2):
        G.code_pf.n = 0
        m = main_kernel(cfg)
        addr = assemble_syms(text_of(cfg, m, 64))
        base = addr["L_code"]
        end = addr["L_main_exit"] - base
        npiece = (end + 16383) // 16384
        steps = []
        for k in range(npiece):
            ns = 152 if cfg["p4"] else 144
            first = min([s for s in range(ns) if addr[f"L_st{s}"] - base + 1024 > 16384 * k] or [ns - 1])
            s_ = first - int(cfg["code_lead"])
            steps.append(-1 if s_ < 0 else s_)
        cfg["_code_steps"] = steps
    G.code_pf.n = 0
    m = main_kernel(cfg)
    addr = assemble_syms(text_of(cfg, m, 64))
    span = max(16384 * len(cfg["_code_steps"]), 131072)
    need = addr["L_code"] + span + 256 - addr["L_text_end"]
    pad = 64 + max(0, (need + 3) // 4)
    s = text_of(cfg, m, pad)
    open(path, "w").write(s)
    n_main = sum(1 for i in m if i.cls != "label")
    print(f"wrote {path}: {len(s)} bytes, {n_main} instrs, code {addr['L_main_exit'] - addr['L_code']} B, pad {pad}, code pf steps {cfg['_code_steps']}", file=sys.stderr)


if __name__ == "__main__":
    cfg = dict(CFG)
    path = "out3.s"
    for a in sys.argv[1:]:
        if "=" in a:
            k, v = a.split("=", 1)
            assert k in cfg, k
            cfg[k] = {"True": True, "False": False}.get(v, v)
        else:
            path = a
    build(cfg, path)
```

```python
import sys
import subprocess
import numpy as np
from asmlib import *
import gen as G
from gen import (ACC, SB, SBr, PB, PBr, TT, NEGM, NEGMr, L, LT, MT, OACC, CT, CTr, QF, QFr, AK, AV, AW, AO, DKV, DA, DB, DO,
                 AX, PSV, PT, TID, JUNK, VPC, VL128, VTK, VFO, VCHK, RD, SEL, FLG, VPOLL, VFV, VOUT, VZ, PSL, PART_OFF, FLAG_OFF,
                 SRD_DBG, SRD_OUT, s_outp, s_dbgp, s_b16, s_kw, s_pb, s_ro, s_rl, OA, OAr, O0P, O0Pr, FB, FBh,
                 SRD_A, SRD_K, SRD_V, SRD_WO, SRD_WS, SRD_B, s_w3072, s_pst, s_thr, s_c2, s_h0, s_b, s_pj, s_w, s_t, s_ret,
                 THR_BITS, C_BITS, SLOT, build_lane_consts, autonop, srd, pf_load, code_pf, kd, KNAME, Gen, a_item)
import sched

CFG = dict(
    nt_kv=True, timing=False, steptime=False, pst_flags=" sc1", red_flags=" sc1",
    dspair_v=True, dspair_k=False, dspair_w=False, no_st=False, map_nb=8,
    fused=True, single=False, kv_same=False,
    R=13, P=3, P0=None, DW=4, DX=3, NW0=6, NX0=2, xres=23,
    kv_rot=False, rot_shift=0, rot_mul=1,
    tlb0=-1, tlb1=-1, tlb_stride=4096,
    npair0=0, DX0=0, NX00=0, nt_w0=False, nt_w1=False, nt_x0=False, nt_x1=False,
    RP=0, npair=2, rp_start0=3, rp_start1=0, rp_space=1.2,
    DW0=0, NW00=0, tlb='', park0='', park1='', d_flag=2, d_poll=1, d_chk=2, d_mfma=3, hu_in=6, hu_per=3, poll_wave=1, g_poll=4, g_chk=1, g_hide_tail=True, p4=True, o0_start=94, o0_per=2, o0_poll=96, DO=7, d_bl=7, d_oflag=4, g_oflag=3, hide_setup=True, hu_pre=True, spin_sleep=2, stamp_entry=False, fast_pro=True, out_flags='', pf_sub=8, pf_entry=False, hide_n=True, wo_split='53.57.61.65', w1_split='', pro_max=7, early_max=4, early_steps=3,
    pf_code=True, pf_w1=8, pf_wo=52, pf_start="xw", pf_start_step=-3, code_lead=14, pf_code_all=False, macros=True,
)

SRD_X, SRD_W = SRD_A, SRD_B
G.SRD_DBG = S(4, 4)
SRD_DBG = G.SRD_DBG
s_kvb, s_wb, s_xb, s_ob = S(33), S(34), S(37), S(38)
s_do = [S(35), S(36)]
s_w6144 = S(41)
NSTEP = 144


VCHK = V(143)
AWR = V(246)
s_rp = S(39)
VOX = V(246)
PSL16 = V(243)
RIN2 = [V(112, 2), V(114, 2), V(116, 2)]
s_bl2 = [S(62), S(63)]
s_oout, s_pin = S(61), S(75)
OX_OFF = 72 << 20
PX_OFF = 112 << 20
s_gq = [S(76), S(77), S(78), S(79)]
s_oq = [None, S(80), S(81), S(82)]
s_oown, s_px, s_bl, s_mgrp, s_mfin = S(83), S(84), S(85), S(91 + 4), S(91 + 3)
s_n0, s_kvb1 = S(40), S(42)
s_rl2 = [S(63), S(62)]
VHL = V(132)


def o_cs(j, reorder):
    if reorder and j < 8:
        return [(0, 0), (0, 1), (1, 0), (1, 1), (0, 2), (0, 3), (1, 2), (1, 3)][j]
    return j // 4, j % 4


def GACC(t, qb): return V((t * 3 + qb) * 4, 4)


def XF(u, half, qb): return V(144 + ((u % 2) * 2 + half) * 12 + 4 * qb, 4)


class Gen3(Gen):
    def __init__(self, cfg):
        self.cfg = cfg
        self.rare_sites = []
        i = lambda k: int(cfg[k])
        self.R = i("R")
        self.seq, self.X, self.W, self.KV, self.O = sched.build(
            R=self.R, P=i("P"), DW=i("DW"), DX=i("DX"), NW0=i("NW0"), NX0=i("NX0"),
            P0=None if cfg["P0"] in (None, "None") else int(cfg["P0"]), xres=i("xres"),
            pro_max=i("pro_max"), early_max=i("early_max"), early_steps=i("early_steps"),
            park0=[int(x) for x in str(cfg["park0"]).split(".")] if cfg["park0"] else None,
            park1=[int(x) for x in str(cfg["park1"]).split(".")] if cfg["park1"] else None,
            DW0=int(cfg["DW0"]) or None, NW00=int(cfg["NW00"]) or None, RP=i("RP"), npair=i("npair"),
            n_o=48 if cfg["p4"] else 40, DO=int(cfg["DO"]) if cfg["p4"] else None, rp_load=self.rp_load_step, npair0=int(cfg["npair0"]) or None, DX0=int(cfg["DX0"]) or None, NX00=int(cfg["NX00"]) or None)
        self.item = []
        for h in range(2):
            self.item += [self.W[(h, t)] for t in range(20)] + [self.KV[(h, j)] for j in range(32)]
        self.p4 = bool(cfg["p4"])
        self.NO = 48 if self.p4 else 40
        self.NS = 104 + self.NO
        self.item += [self.O[j] for j in range(self.NO)]
        self.gaps = [None] * self.NS
        self.pre = {s: [] for s in range(self.NS)}
        self.post = {s: [] for s in range(self.NS)}
        self.regs = {"K": AK, "V": AV, "W": AW, "O": AO}
        if self.p4:
            self.regs = {"K": AK, "V": AV, "W": AW, "Oa": AO[:2], "Ob": AO[2:]}
        self.plan = {}
        for kind in self.regs:
            its = [it for it in self.item if self.akind(it) == kind]
            k = 0
            while k < len(its):
                lo = hi = its[k].slot
                e = k
                while e + 1 < len(its):
                    nl, nh = min(lo, its[e + 1].slot), max(hi, its[e + 1].slot)
                    if nh - nl > 4: break
                    lo, hi = nl, nh
                    e += 1
                for q in range(k, e + 1): self.plan[its[q].name] = lo * SLOT
                k = e + 1
        self.base = {kind: [0] * len(self.regs[kind]) for kind in self.regs}
        self.nunit = 0
        self.fixes = {}
        self.dump_block = {}
        self.rp1_first = {}

    def akind(self, it):
        if it.kind == "O" and self.p4: return "Oa" if it.n % 2 == 0 else "Ob"
        return it.kind

    def rp_load_step(self, h, k):
        s = int(float(self.cfg["rp_start0" if h == 0 else "rp_start1"]) + k * float(self.cfg["rp_space"]))
        if h == 1 and self.cfg["hide_n"]:
            s = max(s, int(2.45 * (k // 2 + 1)) + 1)
        return s

    def place_fixes(self):
        for s, lst in self.fixes.items():
            gaps = self.gaps[s]
            for x, lo, hi in lst:
                c = [g for g in range(lo, hi + 1) if gaps[g].free() == 1 and not gaps[g].vm and g != 23]
                if not c: c = [g for g in range(lo, hi + 1) if gaps[g].free() >= 1 and not gaps[g].vm and g != 23]
                if not c: c = [hi]
                gaps[c[0]].va.append(x)

    def frag_reads3(self, it, f, buf):
        win = self.plan[it.name]
        off = it.slot * SLOT - win
        kind = it.kind
        if kind == "K":
            kt, kb = f // 6, f % 6
            ri = kb % 2
            return [(ds_read("ds_read_b128", FB(buf, f % 2), AK[ri], off + kt * 6144 + (kb // 2) * 128), ri, win)]
        if kind == "O" and self.p4:
            ri = f % 2
            o, d2 = off + 64 * (f // 2), 6144
        else:
            ri, j = f % 4, f // 4
            o, d2 = {"V": (off + 128 * j, 6144), "W": (off + 128 * j, 1536), "O": (off + 4096 * j, 2048)}[kind]
        r = self.regs[self.akind(it)][ri]
        return [(ds_read("ds_read_b64_tr_b16", FBh(buf, f % 2, 0), r, o), ri, win),
                (ds_read("ds_read_b64_tr_b16", FBh(buf, f % 2, 1), r, o + d2), ri, win)]

    def fix(self, kind, ri, win):
        B = self.base[kind]
        if B[ri] == win: return None
        d = win - B[ri]
        B[ri] = win
        r = self.regs[kind][ri]
        return valu("v_add_u32", r, d, r) if d > 0 else valu("v_subrev_u32", r, -d, r)

    def place_reads3(self, gaps, g0, it, grp, cur=None, buf=None):
        rl = []
        for f in (2 * grp, 2 * grp + 1):
            rl += self.frag_reads3(it, f, grp % 3 if buf is None else buf)
        fx = [x for x in (self.fix(self.akind(it), ri, win) for _, ri, win in rl) if x is not None]
        if fx and it.kind == "O" and self.p4:
            self.pending_fix += [(x, 2, g0 - 1) for x in fx]
        elif fx:
            same = (cur is not None and cur.kind == it.kind)
            if it.kind == "K":
                lo = 20 if same else 2
            elif g0 == 24:
                lo = 16 if same else 2
            else:
                lo = 22 if same else 2
            self.pending_fix += [(x, lo, g0 - 1) for x in fx]
        pair = self.cfg["dspair_k"] if it.kind == "K" else (self.cfg["dspair_v"] if it.kind == "V" else self.cfg["dspair_w"])
        for k, (ins, ri, win) in enumerate(rl):
            gaps[g0 + (k // 2 if pair else k)].ds.append(ins)
        return len(rl)

    def first_reads3(self, it):
        out = []
        for grp in range(2):
            for f in (2 * grp, 2 * grp + 1):
                for ins, ri, win in self.frag_reads3(it, f, grp % 3):
                    x = self.fix(self.akind(it), ri, win)
                    if x is not None: out.append(x)
                    out.append(ins)
        for ri in range(len(self.regs[self.akind(it)])):
            x = self.fix(self.akind(it), ri, self.plan[it.name])
            if x is not None: out.append(x)
        return out

    def x_reads3(self, it):
        u = it.n
        return [ds_read("ds_read_b128", XF(u, half, qb), AX[half], it.slot * SLOT + 2048 * qb) for half in range(2) for qb in range(3)]

    def units(self, it):
        tag = ("item", it.name)
        out = []
        for k in range(it.units):
            so = s_do[self.nunit % 2]
            self.nunit += 1
            nt = False
            if it.kind == "X":
                m0 = salu("s_add_u32", "m0", s_w6144, it.slot * SLOT + 3072 * k)
                off = salu("s_add_u32", so, s_xb, 128 * it.n + 30720 * k)
                vo, sr = DA, SRD_X
                nt = bool(self.cfg["nt_x0"]) if it.h == 0 else bool(self.cfg["nt_x1"])
            else:
                m0 = salu("s_add_u32", "m0", s_w3072, it.slot * SLOT)
                if it.kind in "KV":
                    off = self.kv_off(so, it)
                    vo, sr = DKV, (SRD_K if it.kind == "K" else SRD_V)
                    nt = self.cfg["nt_kv"]
                elif it.kind == "W":
                    off = salu("s_add_u32", so, s_wb, it.h * 384 + it.n * 393216)
                    vo, sr = DB, SRD_W
                    nt = bool(self.cfg["nt_w0"]) if it.h == 0 else bool(self.cfg["nt_w1"])
                elif self.p4:
                    q, hh, kb = self.g_kstep(it.n)
                    off = salu("s_add_u32", so, s_gq[q], (hh * 192 + 32 * kb) * 1280)
                    vo, sr = DO, SRD_WO
                else:
                    c, s = o_cs(it.n, self.cfg["hide_n"])
                    off = salu("s_add_u32", so, s_ob, s * 122880 + c * 128)
                    vo, sr = DO, SRD_WO
            out.append((m0, off, [dma(vo[i], sr, so, 1024 * i, nt, tag=tag) for i in range(3)]))
        return out

    def kv_off(self, so, it):
        if self.cfg["kv_rot"] and not self.cfg["kv_same"]:
            return [salu("s_xor_b32", so, s_n0, it.n), salu("s_mul_i32", so, so, 12288),
                    salu("s_add_u32", so, so, s_kvb if it.h == 0 else s_kvb1)]
        imm = it.h * 196608 + (0 if self.cfg["kv_same"] else it.n * 12288)
        return salu("s_add_u32", so, s_kvb, imm)

    def place_dma(self):
        for b in range(self.NS):
            un = []
            for it in self.seq:
                if it.issue == b and not getattr(it, "reg", False): un += self.units(it)
            assert len(un) <= 4
            if self.p4 and b >= 104:
                pos = [[(0, 22), (1, 4), (1, 10)]]
                assert len(un) <= 1
            elif self.p4 and b == 103:
                pos = [[(0, 28), (1, 4), (1, 10)]]
                assert len(un) <= 1
            elif len(un) == 1:
                pos = [[(0, 28), (1, 4), (1, 16)]]
            elif len(un) == 2:
                pos = [[(0, 28), (0, 34), (1, 4)], [(1, 10), (1, 16), (1, 22)]]
            elif len(un) > 2:
                pos = [[(0, 28), (0, 29), (0, 34)], [(1, 2), (1, 4), (1, 5)], [(1, 8), (1, 10), (1, 11)], [(1, 14), (1, 16), (1, 17)]][:len(un)]
            else:
                pos = []
            for (m0, off, ins), ps in zip(un, pos):
                for i, (ds_, gi) in enumerate(ps):
                    g = self.gaps[b + ds_]
                    if i == 0:
                        if isinstance(off, list):
                            (g[gi - 3] if gi >= 3 else self.gaps[b + ds_ - 1][36 + gi - 3]).sc.append(off[0])
                            g[gi - 2].sc += [off[1], m0]; g[gi - 1].sc.append(off[2])
                        else:
                            g[gi - 2].sc.append(m0)
                            g[gi - 1].sc.append(off)
                    if len(un) > 2 and gi % 6 < 4 and g[gi].ds:
                        pass
                    g[gi].vm.append(ins[i])

    def place_reg_tiles(self):
        self.dbase = 0
        awr = V(247) if self.p4 else AWR
        for h in range(2):
            its = [self.KV[(h, j)] for j in range(32) if getattr(self.KV[(h, j)], "reg", False)]
            start = float(self.cfg["rp_start0" if h == 0 else "rp_start1"])
            last_s = -1
            for k, it in enumerate(its):
                s = 52 * h + self.rp_load_step(h, k)
                while len([gi for gi in (5, 11, 17, 29, 35) if not self.gaps[s][gi].vm]) < 3 or s <= last_s: s += 1
                if h == 1: self.rp1_first[k] = s * 36 + min(gi for gi in (5, 11, 17, 29, 35) if not self.gaps[s][gi].vm)
                last_s = s
                assert s + 2 <= it.issue, (it, s)
                g = self.gaps[s]
                off = self.kv_off(s_rp, it)
                if isinstance(off, list):
                    for q, x in enumerate(off): g[1 + q].sc.append(x)
                else:
                    g[3].sc.append(off)
                free = [gi for gi in (5, 11, 17, 29, 35) if not g[gi].vm][:3]
                assert len(free) == 3, (s, free)
                for i, gi in enumerate(free):
                    g[gi].vm.append(vload(A(12 * k + 4 * i, 4), DKV[i], SRD_K if it.kind == "K" else SRD_V, s_rp, 1024 * i,
                                          " nt" if self.cfg["nt_kv"] else "", tag=("reg", it.name)))
                it.rk = k
            for b in sorted({it.issue for it in its}):
                grp = [it for it in its if it.issue == b]
                wr = []
                for it in grp:
                    off = it.slot * SLOT
                    pre = []
                    if not (0 <= off - self.dbase and off - self.dbase + 2048 + 1024 <= 65536):
                        nb = min(off, (self.R - 5) * SLOT)
                        d = nb - self.dbase
                        self.dbase = nb
                        pre = [valu("v_add_u32", awr, d, awr) if d > 0 else valu("v_subrev_u32", awr, -d, awr)]
                    wr.append((it, pre, [ds_write(awr, A(12 * it.rk + 4 * i, 4), off - self.dbase + 1024 * i, tag=("dump", it.name)) for i in range(3)]))
                if b % 52 == 19:
                    blk = []
                    for it, pre, w in wr: blk += [WaitTag([("reg", it.name)])] + pre + w
                    self.dump_block[b] = blk
                    continue
                cand = [(b, gi) for gi in range(24, 36)] + [(b + 1, gi) for gi in range(0, 22)]
                ci = 0
                for it, pre, w in wr:
                    first = True
                    for x in w:
                        while True:
                            st_, gi = cand[ci]
                            gp = self.gaps[st_][gi]
                            ok = not gp.vm and gp.free() >= 1 and len(gp.ds) < 2
                            if first and pre:
                                pst, pg = cand[ci - 1] if ci > 0 else (None, None)
                                ok = ok and ci > 0
                            if ok: break
                            ci += 1
                        if first:
                            gp.sc.append(WaitTag([("reg", it.name)]))
                            if pre:
                                pst, pg = cand[ci - 1]
                                self.gaps[pst][pg].va += pre
                            first = False
                        gp.ds.append(x)
                        ci += 1

    def frame3(self, s, mf):
        it = self.item[s]
        nx = self.item[s + 1] if s + 1 < self.NS else None
        gaps = [Gap(mf(i, FB((i // 6) % 3, (i // 3) % 2))) for i in range(36)]
        nds = [0] * 6
        self.pending_fix = []
        for Gi in range(6):
            if Gi < 4:
                nds[Gi] = self.place_reads3(gaps, 6 * Gi, it, Gi + 2)
            elif nx is not None:
                nds[Gi] = self.place_reads3(gaps, 6 * Gi, nx, Gi - 4, cur=it)
        xs = [x for x in self.X.values() if x.need == s]
        if xs:
            rd = self.x_reads3(xs[0])
            for k, gi in enumerate((24, 25, 26, 27, 30, 31)):
                gaps[gi].ds.append(rd[k])
            nds[4] += 4
            nds[5] += 2
        need = [("item", x.name) for x in self.seq if x.need == s]
        for Gi in range(6):
            gi = 6 * Gi + 5
            if Gi == 3 and nx is not None:
                lt = [("dump", x.name) for x in self.seq if x.need == s]
                bar = barrier()
                bar.info = lt
                gaps[gi].sc += [WaitTag(need, lgkm="auto", ltags=lt), bar]
            elif Gi == 5:
                if nx is not None: gaps[gi].sc.append(WaitTag([], lgkm="auto"))
            else:
                gaps[gi].sc.append(WaitTag([], lgkm="auto"))
        self.fixes[s] = self.pending_fix
        if self.cfg["steptime"]:
            gaps[24].post.append(I("s_memtime s[92:93]", "salu"))
            gaps[33].post += [raw("s_waitcnt lgkmcnt(0)"), raw(f"v_writelane_b32 v{253 + s // 64}, s92, {s % 64}", "valu")]
        self.gaps[s] = gaps

    @staticmethod
    def g_kstep(j):
        if j < 12: return 0, j // 6, j % 6
        r = j - 12
        return 1 + r // 12, (r % 12) // 6, r % 6

    def g_bidx(self, j):
        q, hh, kb = self.g_kstep(j)
        return None if q == 0 else j - 12

    def g_breg(self, j, qb):
        q, hh, kb = self.g_kstep(j)
        if q == 0: return O0P(kb, qb) if hh == 0 else QF(kb, qb)
        return A(12 * (self.g_bidx(j) % 12) + 4 * qb, 4)

    def frame_g(self, j):
        s = 104 + j
        it = self.item[s]
        nx = self.item[s + 1] if s + 1 < self.NS else None
        buf = lambda jj, G: (5 * jj + G) % 3

        def mf(i):
            t, qb = i // 3, i % 3
            return mfma(GACC(t, qb), FB(buf(j, i // 6), t % 2), self.g_breg(j, qb), 0 if j == 0 else GACC(t, qb))
        gaps = [Gap(mf(i)) for i in range(30)]
        self.pending_fix = []
        for Gi in range(5):
            if Gi < 3:
                self.place_reads3(gaps, 6 * Gi, it, Gi + 2, buf=buf(j, Gi + 2))
            elif nx is not None:
                self.place_reads3(gaps, 6 * Gi, nx, Gi - 3, cur=it, buf=buf(j + 1, Gi - 3))
        need = [("item", x.name) for x in self.seq if x.need == s]
        if j + 1 < 48 and self.g_bidx(j + 1) is not None: need.append(("bl", j + 1))
        for Gi in range(5):
            gi = 6 * Gi + 5
            if Gi == 2 and nx is not None:
                gaps[gi].sc += [WaitTag(need, lgkm="auto"), barrier()]
            elif Gi == 4:
                if nx is not None: gaps[gi].sc.append(WaitTag([], lgkm="auto"))
            else:
                gaps[gi].sc.append(WaitTag([], lgkm="auto"))
        self.fixes[s] = self.pending_fix
        if self.cfg["steptime"]:
            gaps[18].post.append(I("s_memtime s[92:93]", "salu"))
            gaps[27].post += [raw("s_waitcnt lgkmcnt(0)"), raw(f"v_writelane_b32 v{253 + s // 64}, s92, {s % 64}", "valu")]
        self.gaps[s] = gaps

    def build_frames(self):
        for h in range(2):
            for t in range(20):
                def mf(i, fr, t=t):
                    T, qb = i // 3, i % 3
                    return mfma(ACC(T, qb), fr, XF(t // 2, t % 2, qb), 0 if t == 0 else ACC(T, qb))
                self.frame3(52 * h + t, mf)
            for j in range(32):
                kind, n = a_item(j)
                p = n % 2
                if kind == "K":
                    def mf(i, fr, p=p, n=n):
                        f, qb = i // 3, i % 3
                        kt, kb = f // 6, f % 6
                        c = (0 if n < 2 else NEGM(qb)) if kb == 0 else SB(p, kt, qb)
                        return mfma(SB(p, kt, qb), fr, QF(kb, qb), c)
                else:
                    def mf(i, fr, p=p, n=n):
                        T, qb = i // 3, i % 3
                        return mfma(OA(T, qb), fr, PB(p, qb), 0 if n == 0 else OA(T, qb))
                self.frame3(52 * h + 20 + j, mf)
        if self.p4:
            for j in range(48): self.frame_g(j)
            return
        for j in range(40):
            c, s = o_cs(j, self.cfg["hide_n"])

            def mf(i, fr, s=s, p=c % 2):
                f, qb = i // 3, i % 3
                jj, nt = f // 4, f % 4
                ks = 3 * s + jj
                h, kb = ks // 6, ks % 6
                b = O0P(kb, qb) if h == 0 else QF(kb, qb)
                return mfma(OACC(p, nt, qb), fr, b, 0 if ks == 0 else OACC(p, nt, qb))
            self.frame3(104 + j, mf)

    def a_fill(self, h):
        s0 = 52 * h + 20
        gaps = [g for j in range(32) for g in self.gaps[s0 + j]]
        Gx = lambda j, i=0: 36 * j + i
        mops, fin = self.max_ops(0)
        for o in mops: o.earliest = Gx(1, 0)
        sm0, _ = self.softmax_ops(0, sub_deps=fin, earliest_kt=(Gx(1, 0), Gx(1, 2)))
        pend = list_schedule(gaps, mops + sm0, Gx(1, 0), Gx(2, 0))
        self.post[s0 + 1] += autonop(self.emit_tail(pend)) + [valu("v_mov_b32", L(qb), LT(qb)) for qb in range(3)]
        for n in range(1, 16):
            p = n % 2
            j0 = 2 * n
            j1 = j0 + 2 if n <= 14 else j0 + 1
            sub = [None, None, None] if n == 1 else None
            sm, ltl = self.softmax_ops(p, sub_deps=sub, earliest_kt=(Gx(j0, 0), Gx(j0, 3)), lacc=(n > 1))
            pend = list_schedule(gaps, sm + self.check_ops(ltl, p), Gx(j0, 0), Gx(j1, 0))
            self.post[s0 + j1 - 1] += autonop(self.emit_tail(pend)) + self.check_branch(p)
            if n == 15: self.post[s0 + j1 - 1] += self.l_acc()

    RINV = [V(192), V(193), V(194)]

    def rinv_fill(self, h):
        gaps = self.gaps[52 * h + 51]
        y = [MT(3 + qb) for qb in range(3)]
        dst = self.RINV if h == 0 else [MT(8), MT(9), MT(10)]
        ops, prev = [], [None] * 3
        for sw in ("v_permlane32_swap_b32", "v_permlane16_swap_b32"):
            for qb in range(3):
                o = Op(valu("v_mov_b32", y[qb], L(qb)), [(prev[qb], 0)] if prev[qb] else []); ops.append(o); prev[qb] = o
            for qb in range(3):
                o = Op(perm(sw, L(qb), y[qb]), [(prev[qb], 2)]); ops.append(o); prev[qb] = o
            for qb in range(3):
                o = Op(valu("v_add_f32", L(qb), L(qb), y[qb]), [(prev[qb], 1)]); ops.append(o); prev[qb] = o
        for qb in range(3):
            o = Op(vrcp(dst[qb], L(qb)), [(prev[qb], 0)]); ops.append(o)
        assert not list_schedule(gaps, ops, 0, 36)

    def norm_ops(self, h, tsets, rinv):
        ops, last_use, rd_last, unit_last = [], [[] for _ in tsets], {}, {}
        store_dep = [None for _ in tsets]
        k = 0
        for kb in range(6):
            for qb in range(3):
                ts = k % len(tsets)
                t = tsets[ts]
                dep0 = [(x, 0) for x in last_use[ts]] + ([(store_dep[ts], 2)] if store_dep[ts] else [])
                rds = []
                for tt, T in enumerate((2 * kb, 2 * kb + 1)):
                    for r in range(4):
                        o = Op(I(f"v_accvgpr_read_b32 v{t + 4 * tt + r}, {rtxt(OAr(T, qb, r))}", "valu", [V(t + 4 * tt + r)], [OAr(T, qb, r)]), list(dep0))
                        ops.append(o); rds.append(o)
                        rd_last[T] = o
                mul = []
                for r in range(8):
                    o = Op(valu("v_mul_f32", V(t + r), V(t + r), rinv[qb]), [(rds[r], 0)]); ops.append(o); mul.append(o)
                cv = []
                for r in range(4):
                    d = V(t + r) if h == 0 else QFr(kb, qb, r)
                    deps = [(mul[2 * r], 0), (mul[2 * r + 1], 0)] + ([(cv[-1], 0)] if cv and h == 0 else [])
                    o = Op(valu("v_cvt_pk_bf16_f32", d, V(t + 2 * r), V(t + 2 * r + 1)), deps); ops.append(o); cv.append(o)
                fin = cv
                if h == 0:
                    fin = []
                    for r in range(4):
                        o = Op(I(f"v_accvgpr_write_b32 {rtxt(O0Pr(kb, qb, r))}, v{t + r}", "valu", [O0Pr(kb, qb, r)], [V(t + r)]), [(cv[r], 0), (cv[-1], 0)])
                        ops.append(o); fin.append(o)
                if h == 0 and self.p4 and int(self.cfg["o0_start"]) < 0:
                    deps = [(cv[-1], 0)] + ([(self._ost_adv, 0)] if getattr(self, "_ost_adv", None) else [])
                    st = Op(vstore(V(t, 4), VOX, SRD_WS, s_bl, 1024 * qb, " sc1", tag=("ost", 0)), deps)
                    ops.append(st)
                    fin = fin + [st]
                    self._ost_last = st
                    if qb == 2 and kb < 5:
                        self._ost_adv = Op(salu("s_add_u32", s_bl, s_bl, 3072), [(st, 0)])
                        ops.append(self._ost_adv)
                    last_use[ts] = [(x) for x in fin]
                    store_dep[ts] = st
                else:
                    last_use[ts] = fin
                unit_last[(kb, qb)] = fin
                k += 1
        return ops, rd_last, unit_last

    def n0_fill(self):
        gaps = [g for s in range(52, 72) for g in self.gaps[s]]
        ops, rd_last, _ = self.norm_ops(0, [198, 206], self.RINV)
        pend = list_schedule(gaps, ops, 0, 36 * 19)
        assert not pend, len(pend)
        if self.p4 and int(self.cfg["o0_start"]) >= 104:
            pass
        elif self.p4 and int(self.cfg["o0_start"]) >= 0:
            self.o0_stores()
        elif self.p4:
            fs = self._ost_last.gap // 36 + int(self.cfg["d_oflag"])
            assert fs <= 19, fs
            self.add_wait_tag(gaps, fs, ("ost", 0))
            gaps[36 * fs + 24].va.insert(0, valu("v_mov_b32", V(214), 1))
            gaps[36 * fs + 29].vm.append(vstore(V(214), VFO, SRD_WS, s_t[5], 0, " sc1", tag=("flag",), width=1))
        self.n0_free = {T: 52 * 36 + o.gap for T, o in rd_last.items()}
        for k, g0 in self.rp1_first.items():
            assert self.n0_free[k] < g0, (k, self.n0_free[k], g0)

    def o0_stores(self):
        s0, per = int(self.cfg["o0_start"]), int(self.cfg["o0_per"])
        s, k = s0, 0
        units = [(kb, qb) for kb in range(6) for qb in range(3)]
        while k < 18:
            g = self.gaps[s]
            free = [gi for gi in (5, 11, 17, 29, 35) if not g[gi].vm and g[gi].free() >= 2][:per]
            for gi in free:
                if k == 18: break
                kb, qb = units[k]
                if qb == 0:
                    g[gi - 2].sc.append(salu("s_add_u32", s_bl, s_oown, 3072 * kb))
                g[gi].vm.append(vstore(O0P(kb, qb), VOX, SRD_WS, s_bl, 1024 * qb, " sc1", tag=("ost", 0)))
                k += 1
            s += 1
        assert s <= 104, s
        return
        fs = s - 1 + int(self.cfg["d_oflag"])
        allg = [x for st_ in range(self.NS) if self.gaps[st_] for x in self.gaps[st_]]
        for x in self.gaps[fs][23].sc:
            if isinstance(x, WaitTag): x.tag = ("waittag", x.tag[1] + (("ost", 0),))
        vt = V(214) if fs < 72 else V(139)
        self.gaps[fs][24].va.insert(0, valu("v_mov_b32", vt, 1))
        gi = [q for q in (29, 35) if not self.gaps[fs][q].vm][0]
        self.gaps[fs][gi].vm.append(vstore(vt, VFO, SRD_WS, s_t[5], 0, " sc1", tag=("flag",), width=1))
        self.o0_flag_step = fs

    def n1_fill(self):
        gaps = [g for j in range(8) for g in self.gaps[104 + j]]
        rinv = [MT(8), MT(9), MT(10)]
        ops, _, unit_last = self.norm_ops(1, [112, 120], rinv)
        done = []
        lim = {kb: 36 * (4 + kb // 3) + 12 * (kb % 3) - 1 for kb in range(6)}
        g = 0
        rest = ops
        for kb in range(6):
            mine = [o for o in rest if any(o in unit_ops for unit_ops in [self._unit_ops(ops, kb)])]
            pend = list_schedule(gaps, mine, g, lim[kb])
            if pend:
                gi = lim[kb]
                gaps[gi].post += autonop([o.ins for o in pend]) + [nop(1)]
                for o in pend: o.gap = gi + 1
            rest = [o for o in rest if o not in mine]

    def _unit_ops(self, ops, kb):
        return ops[60 * kb:60 * kb + 60]

    def n_block(self, h):
        out = []
        if h == 1 and self.cfg["fused"]:
            out += self.hu_setup()
        out += self.rinv_ops()
        tmp = [V(0 + 8 * k, 8) for k in range(3)]
        pk = [V(24 + 4 * k, 4) for k in range(3)]
        for kb in range(6):
            for qb in range(3):
                t = tmp[qb][1]
                for tt, T in enumerate((2 * kb, 2 * kb + 1)):
                    for r in range(4):
                        out.append(I(f"v_accvgpr_read_b32 v{t + 4 * tt + r}, {rtxt(OAr(T, qb, r))}", "valu",
                                     [V(t + 4 * tt + r)], [OAr(T, qb, r)]))
            for qb in range(3):
                t = tmp[qb][1]
                for h2 in range(4):
                    out.append(valu("v_pk_mul_f32", V(t + 2 * h2, 2), V(t + 2 * h2, 2), V(MT(8 + 2 * qb)[1], 2)))
            for qb in range(3):
                t = tmp[qb][1]
                for r in range(4):
                    d = V(pk[qb][1] + r) if h == 0 else QFr(kb, qb, r)
                    out.append(valu("v_cvt_pk_bf16_f32", d, V(t + 2 * r), V(t + 2 * r + 1)))
            if h == 0:
                for qb in range(3):
                    for r in range(4):
                        out.append(I(f"v_accvgpr_write_b32 {rtxt(O0Pr(kb, qb, r))}, v{pk[qb][1] + r}", "valu",
                                     [O0Pr(kb, qb, r)], [V(pk[qb][1] + r)]))
        return autonop(out)

    def mask_test(self, k, mask):
        return [I(f"v_cmp_le_u32 vcc, {k}, {rtxt(FLG)}", "valu", [], [FLG]), raw("s_nop 0"),
                raw(f"s_and_b32 {rtxt(s_t[1])}, vcc_lo, {rtxt(mask)}"), raw(f"s_cmp_eq_u32 {rtxt(s_t[1])}, {rtxt(mask)}")]

    def mask_spin(self, k, mask, name, first_wait):
        body = [raw(f"s_sleep {self.cfg['spin_sleep']}"), I(self.poll_load(None).txt, "salu"), raw("s_waitcnt vmcnt(0)")]
        body += [I(x.txt, "salu") for x in self.mask_test(k, mask)]
        o = [first_wait, scmp("s_cmp_eq_u32", s_w, int(self.cfg["poll_wave"])), branch("s_cbranch_scc0", f"{name}_ok")]
        o += self.mask_test(k, mask) + [branch("s_cbranch_scc1", f"{name}_ok"), salu("s_mov_b32", s_t[0], 1 << 18), label(f"{name}_loop")]
        o += [salu("s_sub_u32", s_t[0], s_t[0], 1), branch("s_cbranch_scc1", f"{name}_ok")]
        o += body + [branch("s_cbranch_scc0", f"{name}_loop"), label(f"{name}_ok")]
        return o

    def g_bloads(self, j):
        q, hh, kb = self.g_kstep(j)
        e = self.g_bidx(j) % 12
        so = s_bl2[self.g_bidx(j) % 2]
        return (salu("s_add_u32", so, s_oq[q], hh * 73728 + kb * 3072),
                [vload(A(12 * e + 4 * qb, 4), VOX, SRD_WS, so, 1024 * qb, " sc1", tag=("bl", j)) for qb in range(3)])

    def g_check_block(self):
        o = [WaitTag([("chk",)]), scmp("s_cmp_eq_u32", s_w, 0), branch("s_cbranch_scc0", "L_chk_ok"),
             I(f"v_readfirstlane_b32 {rtxt(s_t[1])}, {rtxt(VCHK)}", "valu", [s_t[1]], [VCHK]), raw("s_nop 3"),
             scmp("s_cmp_ge_u32", s_t[1], 16), branch("s_cbranch_scc1", "L_chk_ok"),
             salu("s_mov_b32", s_t[0], 1 << 18), label("L_chk_loop"),
             salu("s_sub_u32", s_t[0], s_t[0], 1), branch("s_cbranch_scc1", "L_chk_ok"), raw("s_sleep 8"),
             I(f"buffer_load_dword {rtxt(VCHK)}, {rtxt(VFO)}, {rtxt(SRD_DBG)}, {rtxt(s_b16)} offen sc1", "salu"), raw("s_waitcnt vmcnt(0)"),
             I(f"v_readfirstlane_b32 {rtxt(s_t[1])}, {rtxt(VCHK)}", "salu"), raw("s_nop 3"),
             scmp("s_cmp_ge_u32", s_t[1], 16), branch("s_cbranch_scc0", "L_chk_loop"), label("L_chk_ok"),
             salu("s_lshl_b32", s_b16, s_b, 8), salu("s_add_u32", s_b16, s_b16, FLAG_OFF),
             valu("v_subrev_u32", V(138), 64 * int(self.cfg["poll_wave"]), TID),
             valu("v_lshlrev_b32", V(137), 2, V(138)), valu("v_mov_b32", VPOLL, 0x7FFFFF00),
             I("v_cmp_gt_u32 vcc, 16, v138", "valu", [], [V(138)]), nop(1),
             I(f"v_cndmask_b32 {rtxt(VPOLL)}, {rtxt(VPOLL)}, v137, vcc", "valu", [VPOLL], [VPOLL, V(137)])]
        return o

    def g_n1_block(self):
        out = srd(SRD_OUT, None, 16 * 192 * 640 * 2, s_outp) + [salu("s_add_u32", s_bl, s_oown, 73728)]
        rinv = [MT(8), MT(9), MT(10)]
        first = []
        tmp = [V(0 + 8 * k, 8) for k in range(3)]
        in_blk = int(self.cfg["o0_start"]) >= 104
        for kb in range(6):
            if in_blk: out.append(salu("s_add_u32", s_bl2[0], s_oown, 3072 * kb))
            for qb in range(3):
                t = tmp[qb][1]
                if in_blk: out.append(vstore(O0P(kb, qb), VOX, SRD_WS, s_bl2[0], 1024 * qb, " sc1", tag=("ost", 0)))
                for tt, T in enumerate((2 * kb, 2 * kb + 1)):
                    for r in range(4):
                        out.append(I(f"v_accvgpr_read_b32 v{t + 4 * tt + r}, {rtxt(OAr(T, qb, r))}", "valu", [V(t + 4 * tt + r)], [OAr(T, qb, r)]))
            for qb in range(3):
                t = tmp[qb][1]
                for h2 in range(4):
                    out.append(valu("v_pk_mul_f32", V(t + 2 * h2, 2), V(t + 2 * h2, 2), V(RIN2[qb][1], 2)))
            for qb in range(3):
                t = tmp[qb][1]
                for r in range(4):
                    out.append(valu("v_cvt_pk_bf16_f32", QFr(kb, qb, r), V(t + 2 * r), V(t + 2 * r + 1)))
            for qb in range(3):
                out.append(vstore(QF(kb, qb), VOX, SRD_WS, s_bl, 1024 * qb, " sc1", tag=("ost", 1)))
            if kb < 5: out.append(salu("s_add_u32", s_bl, s_bl, 3072))
            for j in first:
                if (self.g_bidx(j) % 12) // 2 == kb:
                    su, ld = self.g_bloads(j)
                    out += [su] + ld
        dup = []
        for qb in range(3):
            dup += [valu("v_mov_b32", V(RIN2[qb][1]), rinv[qb]), valu("v_mov_b32", V(RIN2[qb][1] + 1), rinv[qb])]
        return autonop(dup + out)

    def g_fill(self):
        G0 = 104
        gaps = lambda j: self.gaps[G0 + j]
        d_bl = int(self.cfg["d_bl"])
        fs = int(self.cfg["g_oflag"])
        for x in gaps(fs)[17].sc:
            if isinstance(x, WaitTag): x.tag = ("waittag", x.tag[1] + (("ost", 1), ("ost", 0)))
        gaps(fs)[18].va.insert(0, valu("v_mov_b32", VFV, 2))
        gaps(fs)[23].vm.append(self.flag_store())
        ps = fs + int(self.cfg["g_poll"])
        cs = ps + int(self.cfg["g_chk"])
        gaps(ps)[29].vm.append(self.poll_load(("poll", "o1")))
        self.post[G0 + cs - 1] += self.mask_spin(2, s_mgrp, "L_spb", WaitTag([("poll", "o1")]))
        self.bl_issue = {}
        nxt = 12
        for js in range(cs, 48):
            g = gaps(js)
            sets = [(23, 28, 29)] if js == cs else [(11, 16, 28), (5, 23, 29)]
            chosen = []
            for pos in sets:
                k_ = nxt + len(chosen)
                if k_ >= 48 or k_ - js > d_bl or any(g[gi].vm for gi in pos): continue
                chosen.append(pos)
            chosen.sort()
            for pos in chosen:
                su, ld = self.g_bloads(nxt)
                g[pos[0] - 2].sc.append(su)
                for x, gi in zip(ld, pos): g[gi].vm.append(x)
                self.bl_issue[nxt] = js
                nxt += 1
        assert nxt == 48
        for j, js in self.bl_issue.items():
            assert js < j, (j, js)
            if j - 12 >= 12: assert js > j - 12, (j, js)
        lane, g_, m_, t0, t1, d1 = V(133 + 3), V(137), V(138), V(139), V(124), V(125)
        cnd = lambda d, b: I(f"v_cndmask_b32 {rtxt(d)}, 0, {rtxt(b)}, vcc", "valu", [d], [b])
        cmp_ = lambda txt, u: I(txt, "valu", [], [u])
        lane = V(126)
        o = [valu("v_and_b32", lane, 63, TID), valu("v_lshrrev_b32", g_, 4, lane), valu("v_and_b32", m_, 15, lane),
             valu("v_mul_u32_u24", t0, 1280, m_), valu("v_lshlrev_b32", t1, 4, g_), valu("v_add_u32", VOUT, t0, t1),
             valu("v_lshlrev_b32", VZ, 4, lane),
             valu("v_lshrrev_b32", t0, 2, m_), valu("v_and_b32", t1, 1, t0), valu("v_lshlrev_b32", t1, 4, t1),
             valu("v_lshrrev_b32", t0, 1, t0), valu("v_lshlrev_b32", t0, 2, t0), valu("v_add_u32", t1, t1, t0),
             valu("v_and_b32", t0, 3, m_), valu("v_add_u32", t1, t1, t0),
             valu("v_lshlrev_b32", t0, 3, g_), valu("v_sub_u32", d1, t1, t0)]
        for k in range(2):
            if k: o.append(valu("v_add_u32", d1, 8, d1))
            o += [valu("v_and_b32", t0, 1, d1), valu("v_lshlrev_b32", t0, 4, t0), valu("v_mov_b32", t1, 0x3F80),
                  valu("v_lshlrev_b32", t1, t0, t1), valu("v_lshrrev_b32", t0, 1, d1)]
            for d in range(4):
                o += [cmp_(f"v_cmp_eq_u32 vcc, {d}, {rtxt(t0)}", t0), cnd(V(SEL[k][1] + d), t1)]
        allg = [g for j in range(48) for g in gaps(j)]
        ops, prev = [], None
        for x in o:
            op = Op(x, [(prev, 2 if x.txt.startswith("v_cndmask") else 0)] if prev else [], earliest=30 * 1)
            ops.append(op); prev = op
        assert not list_schedule(allg, ops, 30 * 1, 30 * 40)
        self.post[self.NS - 1] += self.g_tail()

    def g_out_scalars(self):
        o = []
        for k in range(4):
            u, ntp, qb, a = s_t[0], s_t[2], s_t[3], S(76 + k)
            o += [salu("s_add_u32", u, s_w, 4 * k), salu("s_mul_hi_u32", ntp, u, (2 ** 32 + 2) // 3), salu("s_mul_i32", qb, ntp, 3),
                  salu("s_sub_u32", qb, u, qb), salu("s_lshl_b32", qb, qb, 4), salu("s_mul_i32", a, qb, 1280),
                  salu("s_lshl_b32", ntp, ntp, 6), salu("s_add_u32", a, a, ntp), salu("s_add_u32", a, a, s_oout)]
            if k == 3:
                o += [scmp("s_cmp_ge_u32", u, 15), salu("s_cselect_b32", a, 0x7FFF0000, a)]
        return o

    def g_unit_ops(self):
        res = []
        for ntp in range(5):
            for qb in range(3):
                a, b = GACC(2 * ntp, qb)[1], GACC(2 * ntp + 1, qb)[1]
                cv = [valu("v_cvt_pk_bf16_f32", V(a), V(a), V(a + 1)), valu("v_cvt_pk_bf16_f32", V(a + 1), V(a + 2), V(a + 3)),
                      valu("v_cvt_pk_bf16_f32", V(a + 2), V(b), V(b + 1)), valu("v_cvt_pk_bf16_f32", V(a + 3), V(b + 2), V(b + 3))]
                u = ntp * 3 + qb
                so = s_bl2[(u // 4) % 2]
                sc = salu("s_add_u32", so, s_px, 1024 * u) if u % 4 == 0 else None
                res.append((ntp, cv, sc, vstore(V(a, 4), PSL16, SRD_WS, so, 1024 * (u % 4), " sc1", tag=("pst",))))
        return res

    def g_tail(self):
        units = self.g_unit_ops()
        left = []
        if self.cfg["g_hide_tail"]:
            gaps = self.gaps[self.NS - 1]
            allg = [g for j in range(48) for g in self.gaps[104 + j]]
            end = self.spread_scalars(allg, self.g_out_scalars(), 30 * 42)
            assert end <= 30 * 47
            ops, prev_st = [], None
            per_unit = []
            for ntp, cv, sc, st in units:
                e = 6 * ntp + 5 + 4
                oc, prev = [], None
                for x in cv:
                    op = Op(x, [(prev, 0)] if prev else [], earliest=e); oc.append(op); prev = op
                deps = [(prev, 0)] + ([(prev_st, 0)] if prev_st else [])
                if sc is not None:
                    osc = Op(sc, [(prev_st, 0)] if prev_st else [], earliest=e); oc.append(osc); deps.append((osc, 0))
                ost = Op(st, deps, earliest=e); oc.append(ost); prev_st = ost
                ops += oc
            left = [o_.ins for o_ in list_schedule(gaps, ops, 0, 30)]
            o = autonop([nop(7)] + left)
        else:
            o = [nop(7)]
            for ntp, cv, sc, st in units:
                o += cv + ([sc] if sc is not None else []) + [st]
            o = autonop(o)
        o += self.tstamp(0)
        if not self.cfg["g_hide_tail"]: o += self.g_out_scalars()
        o += [WaitTag([("pst",)]), barrier()] + self.tstamp(1)
        o += [valu("v_mov_b32", VFV, 3), self.flag_store(), self.poll_load(("poll", "fin"))]
        o += self.mask_spin(3, s_mfin, "L_spf", WaitTag([("poll", "fin")])) + [barrier()] + self.tstamp(2)
        for k in range(4):
            for ks in range(4):
                o += [salu("s_add_u32", s_bl, s_pin, ks * 61440 + 4096 * k),
                      vload(A(16 * k + 4 * ks, 4), VZ, SRD_WS, s_bl, 0, " sc1", tag=("red", 7, k, ks))]
        o += self.tstamp(3)
        for k in range(4):
            o.append(WaitTag([("red", 7, k, 3)]))
            for ks in range(4):
                for h in range(2):
                    o.append(mfma(RD[h], SEL[h], A(16 * k + 4 * ks, 4), 0 if ks == 0 else RD[h]))
            o.append(nop(7))
            for h in range(2):
                a = RD[h][1]
                o += [valu("v_cvt_pk_bf16_f32", V(2 * h), V(a), V(a + 1)), valu("v_cvt_pk_bf16_f32", V(2 * h + 1), V(a + 2), V(a + 3))]
            o += [vstore(V(0, 4), VOUT, SRD_OUT, S(76 + k), 0, self.cfg["out_flags"], tag=("out", k)), nop(1)]
        o += self.tstamp(4)
        return o

    def o_fill(self):
        gaps = [g for j in range(40) for g in self.gaps[104 + j]]

        def cvts(p):
            ops = []
            for ntp in range(2):
                for qb in range(3):
                    u = ntp * 3 + qb
                    for h in range(2):
                        a = OACC(p, 2 * ntp + h, qb)[1]
                        ops.append(valu("v_cvt_pk_bf16_f32", CTr(u, 2 * h), V(a), V(a + 1)))
                        ops.append(valu("v_cvt_pk_bf16_f32", CTr(u, 2 * h + 1), V(a + 2), V(a + 3)))
            return ops

        def store(u, c):
            return vstore(CT(u), PSV, SRD_WS, s_pst[u // 4], (u % 4) * 1024, self.cfg["pst_flags"], tag=("st", c))

        spos = [(0, 22), (0, 34), (1, 10), (1, 22), (1, 34), (2, 10)]
        last_step = {}
        for j in range(40): last_step[o_cs(j, self.cfg["hide_n"])[0]] = j
        prev_store_gap = -1
        for c in range(9):
            j0 = last_step[c] + 1
            g0 = 36 * j0
            e0 = max(g0 + 3, prev_store_gap + 1)
            ops = [Op(x, earliest=e0) for x in cvts(c % 2)]
            pos = [g0 + 36 * s + gi for s, gi in spos]
            pos = [p_ for p_ in pos if p_ > e0 + 8]
            k = 3
            while len(pos) < 6:
                nxt = g0 + 36 * (k // 1) + (10, 22, 34)[0]
                for gi in (10, 22, 34):
                    p_ = g0 + 36 * 2 + gi if k == 3 else g0 + 36 * (k - 1) + gi
                    if p_ not in pos and p_ > (pos[-1] if pos else 0) and len(pos) < 6: pos.append(p_)
                k += 1
            for u, p_ in enumerate(pos):
                if not self.cfg["no_st"]:
                    gaps[p_].vm.append(store(u, c))
            assert not list_schedule(gaps, ops, e0, e0 + 40)
            for u, p_ in enumerate(pos):
                assert max(o.gap for o in ops[4 * u:4 * u + 4]) < p_, (c, u, p_)
            prev_store_gap = pos[-1]
            self.last_store = getattr(self, "last_store", {})
            self.last_store[c] = pos[-1]
            ga = pos[-1] + 1
            gaps[ga].sc.append(salu("s_add_u32", s_pst[0], s_pst[0], 24576))
            gaps[ga + 1].sc.append(salu("s_add_u32", s_pst[1], s_pst[1], 24576))
        fused = self.cfg["fused"]
        if fused:
            self.hu_fill(gaps)
        tail = autonop([nop(7)] + cvts(1) + [store(u, 9) for u in range(6)])
        if fused: tail += self.hu_tail()
        self.post[143] += tail

    HU_NEED = [1, 2, 3, 5, 6, 7, 8, 9]
    HU_BASE = [0, 64, 128, 192, 256, 320, 384, 432]
    HU_LIM = [480, 480, 480, 480, 480, 480, 432, 480]

    def hu_buf(self, rho, t): return A(32 * (rho % 4 if rho in self.hu_inloop else rho) + 4 * t, 4)

    def hu_load(self, rho, t):
        return vload(self.hu_buf(rho, t), VHL, SRD_WS, s_rl2[rho % 2], 0, self.cfg["red_flags"], tag=("red", rho, t))

    def hu_adv(self, rho):
        return salu("s_add_u32", s_rl2[rho % 2], s_rl2[rho % 2], 2 * 245760)

    def s_out(self, rho):
        return S(76 + rho) if self.cfg["hu_pre"] else s_ro[rho % 2]

    def hu_mfma(self, rho):
        o = []
        for t in range(8):
            if t % 4 == 0: o.append(WaitTag([("red", rho, t + 3)]))
            o.append(mfma(RD[0], SEL[0], self.hu_buf(rho, t), 0 if t == 0 else RD[0]))
        a = RD[0][1]
        o += [nop(7), valu("v_cvt_pk_bf16_f32", V(RD[1][1]), V(a), V(a + 1)), valu("v_cvt_pk_bf16_f32", V(RD[1][1] + 1), V(a + 2), V(a + 3)),
              vstore(V(RD[1][1], 2), VOUT, SRD_OUT, self.s_out(rho), 0, self.cfg["out_flags"], tag=("out", rho), width=2), nop(1)]
        return ([] if self.cfg["hu_pre"] else self.hu_out_off(rho)) + o

    def hu_out_off(self, rho):
        hu, n, c, rem, w2, u, ntp, a = s_t[0], s_t[1], s_t[2], s_t[3], S(100), S(101), S(61), self.s_out(rho)
        o = [salu("s_add_u32", hu, s_kw, self.HU_BASE[rho]), salu("s_lshr_b32", n, hu, 1),
             salu("s_mul_hi_u32", c, n, (2 ** 32 + 23) // 24), salu("s_mul_i32", rem, c, 24), salu("s_sub_u32", rem, n, rem),
             salu("s_mul_hi_u32", w2, rem, (2 ** 32 + 5) // 6), salu("s_mul_i32", u, w2, 6), salu("s_sub_u32", u, rem, u),
             salu("s_mul_hi_u32", ntp, u, (2 ** 32 + 2) // 3), salu("s_mul_i32", rem, ntp, 3), salu("s_sub_u32", u, u, rem),
             salu("s_mul_i32", a, s_b, 192), salu("s_mul_i32", w2, w2, 48), salu("s_add_u32", a, a, w2),
             salu("s_lshl_b32", u, u, 4), salu("s_add_u32", a, a, u), salu("s_mul_i32", a, a, 1280),
             salu("s_lshl_b32", c, c, 7), salu("s_add_u32", a, a, c), salu("s_lshl_b32", ntp, ntp, 6), salu("s_add_u32", a, a, ntp),
             salu("s_and_b32", n, hu, 1), salu("s_lshl_b32", n, n, 4), salu("s_add_u32", a, a, n)]
        if rho >= 6:
            o += [scmp("s_cmp_ge_u32", hu, self.HU_LIM[rho]), salu("s_cselect_b32", a, 0x7FFF0000, a)]
        return o

    def hu_base(self, rho):
        return salu("s_add_u32", s_rl2[rho % 2], s_pb, 512 * self.HU_BASE[rho])

    def hu_setup(self):
        hide = self.cfg["hide_setup"]
        lane, g_, m_, t0, t1 = (V(133), V(134), V(135), V(137), V(138)) if hide else (V(96), V(97), V(98), V(99), V(100))
        o = srd(SRD_OUT, None, 16 * 192 * 640 * 2, s_outp)
        o += [WaitTag([("chk",)]), scmp("s_cmp_eq_u32", s_w, 0), branch("s_cbranch_scc0", "L_chk_ok"),
              I(f"v_readfirstlane_b32 {rtxt(s_t[1])}, {rtxt(VCHK)}", "valu", [s_t[1]], [VCHK]), raw("s_nop 3"),
              scmp("s_cmp_ge_u32", s_t[1], 16), branch("s_cbranch_scc1", "L_chk_ok"),
              salu("s_mov_b32", s_t[0], 1 << 18), label("L_chk_loop"),
              salu("s_sub_u32", s_t[0], s_t[0], 1), branch("s_cbranch_scc1", "L_chk_ok"), raw("s_sleep 8"),
              I(f"buffer_load_dword {rtxt(VCHK)}, {rtxt(VFO)}, {rtxt(SRD_DBG)}, {rtxt(s_b16)} offen sc1", "salu"), raw("s_waitcnt vmcnt(0)"),
              I(f"v_readfirstlane_b32 {rtxt(s_t[1])}, {rtxt(VCHK)}", "salu"), raw("s_nop 3"),
              scmp("s_cmp_ge_u32", s_t[1], 16), branch("s_cbranch_scc0", "L_chk_loop"), label("L_chk_ok")]
        cnd = lambda d, a, b: I(f"v_cndmask_b32 {rtxt(d)}, {rtxt(a)}, {rtxt(b)}, vcc", "valu", [d], [a, b])
        cmp_ = lambda txt, u: I(txt, "valu", [], [u])
        head = o
        o = []
        o += [valu("v_and_b32", lane, 63, TID), valu("v_lshrrev_b32", g_, 4, lane), valu("v_and_b32", m_, 15, lane),
              valu("v_mov_b32", VZ, 0),
              valu("v_mul_u32_u24", t0, 1280, m_), valu("v_and_b32", t1, 1, g_), valu("v_lshlrev_b32", t1, 5, t1), valu("v_add_u32", t0, t0, t1),
              valu("v_lshrrev_b32", t1, 1, g_), valu("v_lshlrev_b32", t1, 3, t1), valu("v_add_u32", VOUT, t0, t1),
              valu("v_lshrrev_b32", t0, 5, lane), valu("v_mul_u32_u24", t0, 245760, t0), valu("v_and_b32", t1, 31, lane),
              valu("v_lshlrev_b32", t1, 4, t1), valu("v_add_u32", VHL, t0, t1),
              valu("v_lshlrev_b32", t0, 2, TID), valu("v_mov_b32", VPOLL, 0x7FFFFF00),
              cmp_(f"v_cmp_gt_u32 vcc, 16, {rtxt(TID)}", TID), nop(1), cnd(VPOLL, VPOLL, t0),
              valu("v_and_b32", t0, 1, m_), valu("v_lshlrev_b32", t0, 4, t0), valu("v_mov_b32", t1, 0x3F80), valu("v_lshlrev_b32", t1, t0, t1),
              valu("v_lshrrev_b32", t0, 3, m_), valu("v_and_b32", g_, 1, g_),
              cmp_(f"v_cmp_eq_u32 vcc, {rtxt(t0)}, {rtxt(g_)}", t0), nop(1), cnd(t1, VZ, t1),
              valu("v_lshrrev_b32", t0, 1, m_), valu("v_and_b32", t0, 3, t0)]
        for d in range(4):
            o += [cmp_(f"v_cmp_eq_u32 vcc, {d}, {rtxt(t0)}", t0), nop(1), cnd(V(SEL[0][1] + d), VZ, t1)]
        if hide:
            self.setup_valu = [x for x in o if x.cls != "nop"]
            o = head
        else:
            o = head + o
        o += [salu("s_lshl_b32", s_b16, s_b, 8), salu("s_add_u32", s_b16, s_b16, FLAG_OFF),
              salu("s_lshl_b32", s_t[0], s_pj, 2), salu("s_add_u32", s_t[5], s_b16, s_t[0]), salu("s_add_u32", s_kw, s_t[0], s_w),
              salu("s_mul_i32", s_pb, s_b, 16 * 245760), salu("s_lshl_b32", s_t[0], s_kw, 9), salu("s_add_u32", s_pb, s_pb, s_t[0]),
              salu("s_add_u32", s_pb, s_pb, PART_OFF)]
        return o

    def add_wait_tag(self, gaps, fs, tag):
        for x in gaps[36 * fs + 23].sc:
            if isinstance(x, WaitTag):
                x.tag = ("waittag", x.tag[1] + (tag,))

    def spread_scalars(self, gaps, ins, g0):
        g = g0
        k = 0
        while k < len(ins):
            while gaps[g].sc or gaps[g].vm: g += 1
            grp = [ins[k]]
            if ins[k].txt.startswith("s_cmp"):
                grp.append(ins[k + 1])
            gaps[g].sc += grp
            k += len(grp)
            g += 1
        return g

    def hu_fill(self, gaps):
        if self.cfg["hide_setup"]:
            ops, prev = [], None
            for x in self.setup_valu:
                d = 2 if x.txt.startswith("v_cndmask") else 0
                op = Op(x, [(prev, d)] if prev else [], earliest=36 * 6)
                ops.append(op); prev = op
            assert not list_schedule(gaps, ops, 36 * 6, 36 * 12)
        if self.cfg["hu_pre"]:
            seq_ = []
            for rho in range(8): seq_ += self.hu_out_off(rho)
            end = self.spread_scalars(gaps, seq_, 36 * 1)
            assert end < 36 * 13, end
        self.hu_fill2(gaps)

    def hu_fill2(self, gaps):
        d_flag, d_poll, d_chk = int(self.cfg["d_flag"]), int(self.cfg["d_poll"]), int(self.cfg["d_chk"])
        n_in = int(self.cfg["hu_in"])
        self.hu_pending = []
        self.hu_inloop = set()
        published = set()
        for rho in range(8):
            c = self.HU_NEED[rho]
            if c >= 8: break
            fs = self.last_store[c] // 36 + d_flag
            if c not in published and fs <= 38:
                published.add(c)
                self.add_wait_tag(gaps, fs, ("st", c))
                gaps[36 * fs + 24].va.insert(0, valu("v_mov_b32", VFV, c + 1))
                gaps[36 * fs + 29].vm.append(self.flag_store())
            ps = fs + d_poll
            cs = ps + d_chk
            if rho >= n_in or cs > 38:
                self.hu_pending.append((rho, 0))
                continue
            self.hu_inloop.add(rho)
            gaps[36 * ps + 35].vm.append(self.poll_load(("poll", rho)))
            self.post[104 + cs - 1] += self.check_spin(c + 1, f"L_sp{rho}", WaitTag([("poll", rho)])) + [self.hu_base(rho)]
            t, st_ = 0, cs
            while t < 8 and st_ < 40:
                for gi in sorted((35, 11, 17)[:int(self.cfg['hu_per'])]):
                    if t == 8: break
                    if st_ == cs and gi < 24: continue
                    g = gaps[36 * st_ + gi]
                    if g.vm: continue
                    g.vm.append(self.hu_load(rho, t))
                    g.post.append(self.hu_adv(rho))
                    t += 1
                st_ += 1
            self.hu_end = getattr(self, "hu_end", {})
            self.hu_end[rho] = st_
            if rho - 2 in self.hu_end: assert self.hu_end[rho - 2] <= cs, (rho, self.hu_end, cs)
            ms = st_ + int(self.cfg["d_mfma"])
            if t == 8 and ms <= 39:
                self.post[104 + ms - 1] += self.hu_mfma(rho)
            else:
                self.hu_pending.append((rho, t, "polled"))

    def hu_tail(self):
        pend = self.hu_pending
        ready = [p[0] for p in pend if len(p) == 3 and p[1] == 8]
        partial = [(p[0], p[1]) for p in pend if len(p) == 3 and p[1] < 8]
        late = [p[0] for p in pend if len(p) == 2]
        flag = lambda k: [valu("v_mov_b32", VFV, k), self.flag_store()]

        def loads(r, t0=0):
            o = [self.hu_base(r)] if t0 == 0 else []
            for t in range(t0, 8): o += [self.hu_load(r, t), self.hu_adv(r)]
            return o
        o = self.tstamp(0)
        if late: o += [self.poll_load(("poll", "late"))]
        o += [WaitTag([("st", 8)]), barrier()] + flag(9)
        for r in ready: o += self.hu_mfma(r)
        o += self.tstamp(1)
        if late:
            c = max(self.HU_NEED[r] for r in late)
            o += self.check_spin(c + 1, "L_spl", WaitTag([("poll", "late")]))
        o += [WaitTag([("st", 9)]), barrier()] + self.tstamp(2) + [self.poll_load(("poll", 9))] + flag(10)
        inflight = []
        for r, t0 in partial:
            o += loads(r, t0)
            inflight.append(r)
        for r in late:
            if len(inflight) >= 4: o += self.hu_mfma(inflight.pop(0))
            o += loads(r)
            inflight.append(r)
        o += self.tstamp(3)
        while len(inflight) > 1: o += self.hu_mfma(inflight.pop(0))
        o += self.check_spin(9, "L_sp9", WaitTag([("poll", 9)])) + [barrier()] + self.tstamp(4)
        o += loads(6) + [self.poll_load(("poll", "fin"))]
        for r in inflight: o += self.hu_mfma(r)
        o += self.tstamp(5) + self.check_spin(10, "L_spf", WaitTag([("poll", "fin")])) + [barrier()] + self.tstamp(6)
        o += loads(7) + self.tstamp(7) + self.hu_mfma(6) + self.tstamp(8) + self.hu_mfma(7) + self.tstamp(9) + self.tstamp(10)
        return o

    def tstamp(self, k):
        if not self.cfg["steptime"]: return []
        return [I("s_memtime s[92:93]", "salu"), raw("s_waitcnt lgkmcnt(0)"), raw(f"v_writelane_b32 v255, s92, {(30 if self.p4 else 20) + k}", "valu")]


def g_lane_consts():
    out = []
    lc = G.LaneCalc(out)
    lc.val[TID] = np.arange(256, dtype=np.int64)
    lane, w, g_, r, c, t0, t1, t2, t3 = [PT(11 + k) for k in range(9)]
    lc.op("v_and_b32", lane, 63, TID); lc.op("v_lshrrev_b32", w, 6, TID); lc.op("v_lshrrev_b32", g_, 4, lane)
    lc.op("v_lshrrev_b32", r, 2, lane); lc.op("v_and_b32", r, 3, r); lc.op("v_and_b32", c, 3, lane)
    L_ = np.arange(256) & 63; W_ = np.arange(256) >> 6
    G_, R_, C_ = L_ >> 4, (L_ & 15) >> 2, L_ & 3
    lc.op("v_lshrrev_b32", t0, 1, g_); lc.op("v_mul_u32_u24", t0, 3072, t0)
    lc.op("v_and_b32", t1, 1, g_); lc.op("v_lshlrev_b32", t2, 2, t1); lc.op("v_add_u32", t2, t2, r)
    lc.op("v_mul_u32_u24", t2, 320, t2); lc.op("v_add_u32", t0, t0, t2)
    lc.op("v_lshrrev_b32", t2, 1, c); lc.op("v_lshlrev_b32", t2, 4, t2); lc.op("v_add_u32", t0, t0, t2)
    lc.op("v_and_b32", t2, 1, c); lc.op("v_lshlrev_b32", t2, 3, t2); lc.op("v_add_u32", t0, t0, t2)
    lc.op("v_lshlrev_b32", t1, 5, t1)
    lc.op("v_add_u32", AO[0], t0, t1); lc.op("v_add_u32", AO[2], t0, t1)
    lc.op("v_xor_b32", t1, 32, t1)
    lc.op("v_add_u32", AO[1], t0, t1); lc.op("v_add_u32", AO[3], t0, t1)
    base = (G_ >> 1) * 3072 + (4 * (G_ & 1) + R_) * 320 + (C_ >> 1) * 16 + (C_ & 1) * 8
    for k in (0, 2): assert (lc.val[AO[k]] == base + (G_ & 1) * 32).all()
    for k in (1, 3): assert (lc.val[AO[k]] == base + (1 - (G_ & 1)) * 32).all()
    for i in range(3):
        lc.op("v_add_u32", t0, 64 * i, lane)
        lc.op("v_mul_u32_u24", t1, 3277, t0); lc.op("v_lshrrev_b32", t1, 16, t1)
        lc.op("v_mul_u32_u24", t2, 20, t1); lc.op("v_sub_u32", t2, t0, t2)
        lc.op("v_lshrrev_b32", t3, 2, t1); lc.op("v_and_b32", t3, 1, t3); lc.op("v_lshlrev_b32", t3, 1, t3)
        lc.op("v_xor_b32", t2, t2, t3); lc.op("v_lshlrev_b32", t2, 4, t2)
        lc.op("v_lshlrev_b32", t3, 3, w); lc.op("v_add_u32", t3, t3, t1); lc.op("v_mul_u32_u24", t3, 1280, t3)
        lc.op("v_add_u32", t2, t2, t3)
        P = 64 * i + L_
        RL, CP = P // 20, P % 20
        want = (8 * W_ + RL) * 1280 + (CP ^ (2 * ((RL >> 2) & 1))) * 16
        assert (lc.val[t2][P < 160] == want[P < 160]).all()
        if i: out.append(valu("v_subrev_u32", t2, 1024 * i, t2))
        if i < 2:
            out.append(valu("v_mov_b32", DO[i], t2))
        else:
            out += [valu("v_mov_b32", DO[i], 0x7FFFFF00), I(f"v_cmp_gt_u32 vcc, 32, {rtxt(lane)}", "valu", [], [lane]), nop(1),
                    I(f"v_cndmask_b32 {rtxt(DO[i])}, {rtxt(DO[i])}, {rtxt(t2)}, vcc", "valu", [DO[i]], [DO[i], t2])]
    lc.op("v_lshlrev_b32", t0, 4, lane)
    lc.op("v_mul_u32_u24", t1, 18432, w); lc.op("v_add_u32", VOX, t0, t1)
    lc.op("v_mul_u32_u24", t1, 15360, w); lc.op("v_add_u32", PSL16, t0, t1)
    return out


def g_scalars():
    t0, t1, ks, nt = s_t[0], s_t[1], s_t[2], s_t[3]
    o = [salu("s_lshr_b32", ks, s_pj, 2), salu("s_and_b32", nt, s_pj, 3),
         salu("s_lshl_b32", s_mgrp, ks, 2), salu("s_lshl_b32", s_mgrp, 15, s_mgrp), salu("s_lshl_b32", s_mfin, 0x1111, nt)]
    for q in range(4):
        if q == 0:
            o += [salu("s_mov_b32", t0, nt)]
        else:
            o += [scmp("s_cmp_le_u32", nt, q - 1), salu("s_cselect_b32", t0, q, q - 1)]
        o += [salu("s_lshl_b32", t1, ks, 2), salu("s_add_u32", t0, t0, t1),
              salu("s_mul_i32", s_gq[q], t0, 491520), salu("s_mul_i32", t1, nt, 320), salu("s_add_u32", s_gq[q], s_gq[q], t1),
              salu("s_lshl_b32", t1, s_b, 4), salu("s_add_u32", t0, t0, t1), salu("s_mul_i32", t0, t0, 147456),
              salu("s_add_u32", s_oown if q == 0 else s_oq[q], t0, OX_OFF)]
    o += [salu("s_lshl_b32", t0, s_b, 2), salu("s_add_u32", t0, t0, nt), salu("s_lshl_b32", t0, t0, 2),
          salu("s_add_u32", t1, t0, ks), salu("s_mul_i32", s_px, t1, 61440), salu("s_add_u32", s_px, s_px, PX_OFF),
          salu("s_lshl_b32", t0, t0, 2), salu("s_add_u32", t0, t0, ks), salu("s_mul_i32", s_pin, t0, 15360),
          salu("s_lshl_b32", t1, s_w, 10), salu("s_add_u32", s_pin, s_pin, t1), salu("s_add_u32", s_pin, s_pin, PX_OFF),
          salu("s_mul_i32", s_oout, s_b, 192), salu("s_mul_i32", t1, ks, 48), salu("s_add_u32", s_oout, s_oout, t1),
          salu("s_mul_i32", s_oout, s_oout, 1280), salu("s_mul_i32", t1, nt, 320), salu("s_add_u32", s_oout, s_oout, t1),
          salu("s_lshl_b32", t0, s_b, 8), salu("s_lshl_b32", t1, s_pj, 2), salu("s_add_u32", t0, t0, t1), salu("s_add_u32", s_t[5], t0, FLAG_OFF),
          salu("s_mov_b32", s_bl, s_oown)]
    return o


def stamp(k):
    return [I("s_memtime s[56:57]", "salu"), raw("s_waitcnt lgkmcnt(0)"), salu("s_mov_b32", S(64 + k), S(56))]


def main_kernel(cfg):
    g = Gen3(cfg)
    T = cfg["timing"]
    pro = [label("mha_main_kernel"), scmp("s_cmp_ge_u32", S(2), 256), branch("s_cbranch_scc1", "L_main_exit"),
           raw("s_load_dwordx16 s[64:79], s[0:1], 0")]
    if T and cfg["stamp_entry"]: pro.insert(1, I("s_memrealtime s[86:87]", "salu"))
    if cfg["pf_entry"]:
        pro += [I("s_getpc_b64 s[56:57]", "salu"), label("L_pce"), raw("s_add_u32 s56, s56, mha_main_kernel-L_pce"), raw("s_addc_u32 s57, s57, -1") if False else raw("s_subb_u32 s57, s57, 0") if False else raw("s_nop 0"),
                ]
        pro = pro[:-4] + [I("s_getpc_b64 s[56:57]", "salu"), label("L_pce"),
                raw("s_and_b32 s56, s56, 0xffffff00"),
                valu("v_lshlrev_b32", V(1), 7, V(0)), raw("v_mov_b32 v3, s57", "valu"),
                raw("v_add_co_u32 v2, vcc, s56, v1", "valu"), raw("s_nop 1"), raw("v_addc_co_u32 v3, vcc, 0, v3, vcc", "valu"),
                I(f"global_load_dword {rtxt(JUNK)}, v[2:3], off", "vmem", [], [])]
    lane_ops = []
    wreg = build_lane_consts(lane_ops)
    t0, t1 = s_t[0], s_t[1]
    nb = int(cfg["map_nb"]); npair = 32 // nb
    lg = lambda v: v.bit_length() - 1
    seen = set()
    for wg in range(256):
        a0, j = wg & 7, wg >> 3
        pj = (j & (npair - 1)) + ((a0 & (16 // npair - 1)) << lg(npair))
        bb = (j >> lg(npair)) + ((a0 >> lg(16 // npair)) << lg(nb))
        seen.add((bb, pj))
    assert len(seen) == 256
    ids = [
        salu("s_and_b32", t0, S(2), 7), salu("s_lshr_b32", t1, S(2), 3),
        salu("s_and_b32", s_pj, t1, npair - 1), salu("s_lshr_b32", s_b, t1, lg(npair)),
        salu("s_and_b32", t1, t0, 16 // npair - 1), salu("s_lshl_b32", t1, t1, lg(npair)), salu("s_add_u32", s_pj, s_pj, t1),
        salu("s_lshr_b32", t0, t0, lg(16 // npair)), salu("s_lshl_b32", t0, t0, lg(nb)), salu("s_add_u32", s_b, s_b, t0),
        salu("s_lshl_b32", s_h0, s_pj, 1),
        salu("s_mul_i32", s_wb, s_h0, 384), salu("s_mul_i32", s_xb, s_b, 245760)]
    wave_sc = [salu("s_mul_i32", s_w3072, s_w, 3072), salu("s_lshl_b32", s_w6144, s_w3072, 1)]
    srd_first = srd(SRD_X, 64, 16 * 192 * 640 * 2) + srd(SRD_W, 70, 640 * 6144 * 2)
    srd_rest = srd(SRD_K, 66, 16 * 32 * 512 * 192 * 2) + srd(SRD_V, 68, 16 * 32 * 512 * 192 * 2)
    srd_rest += srd(SRD_WO, 72, 6144 * 640 * 2) + srd(SRD_WS, 78, 402653184)
    srd_rest += [salu("s_mov_b32", s_outp[0], S(74)), salu("s_mov_b32", s_outp[1], S(75)),
                 salu("s_mov_b32", s_dbgp[0], S(76)), salu("s_mov_b32", s_dbgp[1], S(77))]
    sc_rest = [
        salu("s_lshl_b32", t0, s_b, 5), salu("s_add_u32", t0, t0, s_h0), salu("s_mul_i32", s_kvb, t0, 196608),
        salu("s_add_u32", s_kvb1, s_kvb, 196608),
        salu("s_lshr_b32", s_n0, S(2), int(cfg["rot_shift"])), salu("s_mul_i32", s_n0, s_n0, int(cfg["rot_mul"])), salu("s_and_b32", s_n0, s_n0, 15),
        salu("s_mul_i32", s_ob, s_h0, 245760),
        salu("s_lshl_b32", t0, s_b, 4), salu("s_add_u32", t0, t0, s_pj),
        salu("s_mul_i32", s_pst[0], t0, 245760), salu("s_add_u32", s_pst[0], s_pst[0], PART_OFF),
        salu("s_add_u32", s_pst[1], s_pst[0], 4096),
        salu("s_mov_b32", s_thr, THR_BITS), salu("s_mov_b32", S(48), C_BITS), salu("s_mov_b32", S(49), C_BITS),
    ]
    clr = []
    if cfg["fused"]:
        clr = [salu("s_lshl_b32", t0, s_b, 8), salu("s_lshl_b32", t1, s_pj, 2), salu("s_add_u32", t0, t0, t1),
               salu("s_add_u32", t0, t0, FLAG_OFF), valu("v_mov_b32", PT(8), 0),
               vstore(PT(8), VFO, SRD_WS, t0, 0, " sc1", tag=("clr",), width=1)]
    rfl = [nop(0), I(f"v_readfirstlane_b32 {rtxt(s_w)}, {rtxt(wreg)}", "valu", [s_w], [wreg])]
    first = [it for it in g.seq if it.issue == -1]
    first_tiles = []
    for it in first:
        for m0, off, ins in g.units(it):
            first_tiles += [m0] + (off if isinstance(off, list) else [off]) + [nop(0)] + ins
    if cfg["fast_pro"]:
        need = set()
        for r in DA + DB + [wreg]: need |= regs(r)
        keep = []
        for ins in reversed(lane_ops):
            if ins.defs & need:
                keep.append(ins)
                if not (ins.defs <= ins.uses): need -= ins.defs
                need |= {u for u in ins.uses if u[0] == "v"}
        keep.reverse()
        pro += ids + keep + rfl + [raw("s_waitcnt lgkmcnt(0)")] + srd_first + wave_sc
        if T and not cfg["stamp_entry"]: pro += [I("s_memrealtime s[86:87]", "salu")]
        if T and cfg["stamp_entry"]: pro += [I("s_memrealtime s[94:95]", "salu")]
        pro += first_tiles
        pro.append(label("L_early_pf"))
        pro += lane_ops + srd_rest + sc_rest + clr
        if T: pro += stamp(0)
    else:
        pro += lane_ops + rfl + [raw("s_waitcnt lgkmcnt(0)")] + srd_first + srd_rest + ids + wave_sc + sc_rest
        if T: pro += ([] if cfg["stamp_entry"] else [I("s_memrealtime s[86:87]", "salu")]) + ([I("s_memrealtime s[94:95]", "salu")] if cfg["stamp_entry"] else []) + stamp(0)
        pro += clr

    gw = S(59)
    lane, lane128 = PT(3), PT(2)
    OOB = 0x7FFFFF00

    def masked(dst, src, n):
        return [valu("v_mov_b32", dst, OOB), raw(f"v_cmp_gt_u32 vcc, {n}, {rtxt(lane)}", "valu"), raw("s_nop 1"),
                raw(f"v_cndmask_b32 {rtxt(dst)}, {rtxt(dst)}, {rtxt(src)}, vcc", "valu")]
    pfs = [salu("s_lshl_b32", gw, S(2), 2), salu("s_add_u32", gw, gw, s_w),
           valu("v_and_b32", lane, 63, TID), valu("v_lshlrev_b32", lane128, 7, lane),
           valu("v_mul_u32_u24", PT(5), 21846, lane), valu("v_lshrrev_b32", PT(5), 16, PT(5)),
           valu("v_mul_u32_u24", PT(6), 3, PT(5)), valu("v_sub_u32", PT(6), lane, PT(6)),
           valu("v_mul_u32_u24", PT(5), 12288, PT(5)), valu("v_lshlrev_b32", PT(6), 7, PT(6)), valu("v_add_u32", PT(5), PT(5), PT(6))]
    pfs += masked(VTK[0], PT(5), 30) + masked(VTK[1], lane128, 60) + masked(PT(4), lane128, 30)
    pfs += [salu("s_and_b32", t0, gw, 15), salu("s_mul_i32", t0, t0, 768), salu("s_lshr_b32", S(100), gw, 4),
            salu("s_mul_i32", S(100), S(100), 122880), salu("s_add_u32", S(100), S(100), t0), salu("s_mul_i32", S(101), gw, 7680)]
    start = []
    if "x" in cfg["pf_start"]:
        start += [salu("s_mul_i32", t0, gw, 3840), pf_load(PT(4), SRD_X, t0)]
    if "w" in cfg["pf_start"]:
        start += [pf_load(VTK[0], SRD_W, S(100))]
    if "1" in cfg["pf_start"]:
        start += [salu("s_add_u32", t0, S(100), 384), pf_load(VTK[0], SRD_W, t0)]
    code_steps = cfg["_code_steps"]
    pfs2 = []
    if cfg["pf_code"]:
        pfs2 += [valu("v_and_b32", PT(7), 31, TID), valu("v_lshlrev_b32", PT(7), 7, PT(7)),
                 salu("s_lshl_b32", t0, s_w, 12), valu("v_add_u32", VL128, t0, PT(7))]
    if int(cfg["pf_start_step"]) == -2:
        pro += pfs + start
        pfs, start = [], []
    if int(cfg["pf_start_step"]) == -3:
        k_ = [n for n, x in enumerate(pro) if x.cls == "label" and x.info == "L_early_pf"][0]
        pro[k_:k_ + 1] = pfs + start
        pfs = [valu("v_and_b32", lane, 63, TID), valu("v_lshlrev_b32", lane128, 7, lane)] + masked(VTK[1], lane128, 60)
        start = []
    pro = [x for x in pro if not (x.cls == "label" and x.info == "L_early_pf")]
    pfs += pfs2
    pfs += [valu("v_and_b32", PT(7), 63, TID), valu("v_lshlrev_b32", PT(7), 4, PT(7)), valu("v_add_u32", AWR, s_w3072, PT(7))]

    if not cfg["fast_pro"]: pro += first_tiles
    if cfg["tlb"]:
        tl = [valu("v_and_b32", PT(9), 1, TID)]
        for what in str(cfg["tlb"]):
            if what in "kv":
                tl += [valu("v_mul_u32_u24", PT(10), 393216 - 128, PT(9)), pf_load(PT(10), SRD_K if what == "k" else SRD_V, s_kvb)]
            elif what == "o":
                tl += [valu("v_mul_u32_u24", PT(10), 491520 - 128, PT(9)), pf_load(PT(10), SRD_WO, s_ob)]
            elif what == "p":
                tl += [valu("v_mul_u32_u24", PT(10), 245760 - 128, PT(9)), pf_load(PT(10), SRD_WS, s_pst[0])]
        pro += tl
    pro += pfs
    if cfg["pf_code"]:
        for k, st_ in enumerate(code_steps):
            if st_ < 0 and not (cfg["pf_entry"] and k == 0): pro += code_pf(f"L_code+{16384 * k}", sub=int(cfg["pf_sub"]))
    if cfg["pf_code_all"]:
        pro += [valu("v_lshlrev_b32", PT(9), 7, TID), valu("v_mov_b32", PT(10), S(2)), valu("v_lshlrev_b32", PT(10), 9, PT(10)),
                valu("v_add_u32", PT(9), PT(9), PT(10)),
                I("s_getpc_b64 s[56:57]", "salu"), label("L_pcall"), raw("s_add_u32 s56, s56, L_code-L_pcall"), raw("s_addc_u32 s57, s57, 0"),
                raw(f"v_mov_b32 v{VPC[1] + 1}, s57", "valu"), raw(f"v_add_co_u32 v{VPC[1]}, vcc, s56, {rtxt(PT(9))}", "valu"), raw("s_nop 1"),
                raw(f"v_addc_co_u32 v{VPC[1] + 1}, vcc, 0, v{VPC[1] + 1}, vcc", "valu"),
                raw(f"v_cmp_gt_u32 vcc, 4, {rtxt(TID)}", "valu"), raw("s_and_saveexec_b64 s[56:57], vcc"),
                raw("s_cbranch_execz L_pcall_skip"),
                I(f"global_load_dword {rtxt(JUNK)}, {rtxt(VPC)}, off", "salu", [], []), label("L_pcall_skip"),
                raw("s_mov_b64 exec, s[56:57]")]
    if cfg["p4"]: pro += g_lane_consts()
    if int(cfg["pf_start_step"]) == -1: pro += start
    pro += [WaitTag([("item", it.name) for it in g.seq if it.need == -1]), barrier()]
    cnt_blk = []
    if cfg["fused"]:
        TMP = S(96, 4)
        vone = V(212) if cfg["fast_pro"] else PT(8)
        cnt_blk = srd(TMP, None, 256, s_dbgp) + [salu("s_lshl_b32", t0, s_b, 4), valu("v_mov_b32", vone, 1), WaitTag([("clr",)]),
                I(f"buffer_atomic_add {rtxt(vone)}, {rtxt(VFO)}, {rtxt(TMP)}, {rtxt(t0)} offen", "store", [], [vone, VFO, TMP, t0], tag=("cnt",))]
        if not cfg["fast_pro"]: pro += cnt_blk
    pro += g.x_reads3(g.X[(0, 0)]) + g.first_reads3(g.item[0]) + [wait(lgkm=4)]
    pro.append(label("L_code"))

    if cfg["fast_pro"]: g.pre[5] += cnt_blk
    g.build_frames()
    g.place_dma()
    g.place_reg_tiles()
    g.place_fixes()
    def put(s, gi, ins_list):
        gp = g.gaps[s][gi]
        for x in ins_list:
            if x.cls in ("vmem",): gp.vm.append(x)
            else: gp.sc.append(x)
    def tlb_touch(h, tmp):
        st = int(cfg["tlb_stride"])
        n = (196608 + st - 1) // st
        o = [valu("v_mul_u32_u24", tmp, st, TID), valu("v_mov_b32", V(tmp[1] + 1), OOB),
             raw(f"v_cmp_gt_u32 vcc, {n}, {rtxt(TID)}", "valu"), raw("s_nop 1"),
             raw(f"v_cndmask_b32 {rtxt(tmp)}, v{tmp[1] + 1}, {rtxt(tmp)}, vcc", "valu"),
             salu("s_add_u32", t0, s_kvb, h * 196608)]
        for sr in (SRD_K, SRD_V):
            x = pf_load(tmp, sr, t0)
            x.txt += " nt"
            o.append(x)
        return o
    if int(cfg["tlb0"]) >= 0: g.pre[int(cfg["tlb0"])] += tlb_touch(0, V(192))
    if int(cfg["tlb1"]) >= 0: g.pre[int(cfg["tlb1"])] += tlb_touch(1, V(128))
    if int(cfg["pf_start_step"]) >= 0:
        g.pre[int(cfg["pf_start_step"])] += start
    if cfg["w1_split"]:
        steps_ = [int(x) for x in str(cfg["w1_split"]).split(".")]
        n_ = 30 // len(steps_)
        for k, st_ in enumerate(steps_):
            g.pre[st_] += [valu("v_subrev_u32", V(213), n_ * k, V(215)), valu("v_mov_b32", V(214), OOB),
                           raw(f"v_cmp_gt_u32 vcc, {n_}, v213", "valu"), raw("s_nop 1"),
                           raw(f"v_cndmask_b32 v214, v214, {rtxt(VTK[0])}, vcc", "valu"),
                           salu("s_add_u32", t0, S(100), 384), pf_load(V(214), SRD_W, t0)]
        g.pre[steps_[0]] = [valu("v_and_b32", V(215), 63, TID)] + g.pre[steps_[0]]
    elif int(cfg["pf_w1"]) == 19:
        g.post[19] = [salu("s_add_u32", t0, S(100), 384), pf_load(VTK[0], SRD_W, t0)] + g.post[19]
    elif int(cfg["pf_w1"]) >= 0:
        put(int(cfg["pf_w1"]), 9, [salu("s_add_u32", t0, S(100), 384)])
        put(int(cfg["pf_w1"]), 11, [pf_load(VTK[0], SRD_W, t0)])
    if cfg["wo_split"]:
        steps_ = [int(x) for x in str(cfg["wo_split"]).split(".")]
        n_ = 60 // len(steps_)
        for k, st_ in enumerate(steps_):
            g.pre[st_] += [valu("v_mov_b32", V(214), OOB), raw(f"v_cmp_gt_u32 vcc, {n_}, {rtxt(V(215))}", "valu"), raw("s_nop 1"),
                           raw(f"v_cndmask_b32 v214, v214, {rtxt(VTK[1])}, vcc", "valu"),
                           salu("s_add_u32", t0, S(101), 128 * n_ * k), pf_load(V(214), SRD_WO, t0)]
        g.pre[steps_[0]] = [valu("v_and_b32", V(215), 63, TID)] + g.pre[steps_[0]]
    elif int(cfg["pf_wo"]) == 52:
        g.post[51] += [pf_load(VTK[1], SRD_WO, S(101))]
    elif int(cfg["pf_wo"]) >= 0:
        put(int(cfg["pf_wo"]), 11, [pf_load(VTK[1], SRD_WO, S(101))])
    if cfg["pf_code"]:
        for k, st_ in enumerate(code_steps):
            if st_ >= 0: g.pre[st_] += code_pf(f"L_code+{16384 * k}", sub=int(cfg["pf_sub"]))
    if cfg["p4"]:
        if int(cfg["RP"]):
            assert int(cfg["pf_w1"]) < 10 and not cfg["w1_split"]
            g.pre[10] += [valu("v_and_b32", V(247), 63, TID), valu("v_lshlrev_b32", V(247), 4, V(247)), valu("v_add_u32", V(247), s_w3072, V(247))]
        g.pre[10] += g_scalars()
        g.post[90] += g.g_check_block()

    if cfg["fused"]:
        g.pre[80] += srd(SRD_DBG2, None, 256, s_dbgp) + [salu("s_lshl_b32", s_b16, s_b, 4),
                      I(f"buffer_load_dword {rtxt(VCHK)}, {rtxt(VFO)}, {rtxt(SRD_DBG2)}, {rtxt(s_b16)} offen sc1", "vmem", [VCHK],
                        [VFO, SRD_DBG2, s_b16], tag=("chk",))]
    if cfg["hide_n"]:
        g.rinv_fill(0); g.rinv_fill(1)
        g.n0_fill()
        if cfg["p4"]:
            g.post[103] += g.g_n1_block()
        else:
            g.n1_fill()
            if cfg["fused"]:
                g.post[103] += g.hu_setup()
    for h in range(2):
        g.a_fill(h)
        g.post[52 * h + 19] += g.dump_block.get(52 * h + 19, []) + g.q_pack()
        if not cfg["hide_n"]:
            g.post[52 * h + 51] += g.n_block(h)
    if cfg["p4"]: g.g_fill()
    else: g.o_fill()

    body = []
    marks = {0: 1, 20: 3, 52: 5, 72: 7}
    ends = {19: 2, 51: 4, 71: 6, 103: 8}
    for s in range(g.NS):
        body.append(label(f"L_st{s}"))
        if T and s in marks: body += stamp(marks[s])
        body += g.pre[s]
        for gp in g.gaps[s]: body += gp.flat()
        if T and s in ends: body += stamp(ends[s])
        body += g.post[s]

    fin = []
    if T:
        fin += stamp(9)
    fin += [raw("s_waitcnt vmcnt(0)")]
    if T:
        fin += [I("s_memtime s[56:57]", "salu"), I("s_memrealtime s[88:89]", "salu"), raw("s_waitcnt lgkmcnt(0)"),
                salu("s_mov_b32", S(74), S(56)), salu("s_mov_b32", S(90), S(88)), salu("s_sub_u32", S(88), S(88), S(86))]
        lst = [64, 65, 66, 67, 68, 69, 70, 71, 72, 73, 74, 88, 86, 90] + ([94] if cfg['stamp_entry'] else [])
        for k, sr in enumerate(lst): fin.append(valu("v_mov_b32", V(k), S(sr)))
        fin += [salu("s_lshl_b32", t0, S(2), 6), salu("s_add_u32", t0, t0, 300 * 1024 * 1024), valu("v_mov_b32", V(20), 0),
                raw(f"v_cmp_eq_u32 vcc, 0, {rtxt(TID)}", "valu"), raw("s_and_saveexec_b64 s[56:57], vcc")]
        for k in range(0, 16, 4): fin.append(vstore(V(k, 4), V(20), SRD_WS, t0, 4 * k))
        fin += [raw("s_waitcnt vmcnt(0)")]
        if cfg["steptime"]:
            fin += [raw("s_mov_b64 exec, -1"), salu("s_mul_i32", t0, S(2), 768), salu("s_add_u32", t0, t0, 320 * 1024 * 1024),
                    raw(f"v_cmp_gt_u32 vcc, 64, {rtxt(TID)}", "valu"), raw("s_and_saveexec_b64 s[56:57], vcc"),
                    valu("v_lshlrev_b32", V(20), 2, TID)]
            for k in range(3): fin.append(vstore(V(253 + k), V(20), SRD_WS, t0, 256 * k, width=1))
            fin += [raw("s_waitcnt vmcnt(0)")]
    fin += [label("L_main_exit"), raw("s_endpgm")]

    seq = pro + body
    state = {"checked": set(), "published": set()}
    for x in seq:
        if x.cls == "label" and str(x.info).startswith("L_sp") and str(x.info).endswith("_ok"):
            state["checked"].add(x.info[4:-3])
        elif x.cls == "barrier":
            state["published"] |= state["checked"]
        elif x.cls == "vmem" and isinstance(x.tag, tuple) and x.tag and x.tag[0] == "red":
            rho = x.tag[1]
            if cfg["p4"]:
                assert "f" in state["published"], ("partial load not ordered after its check", x.tag)
                continue
            ok = str(rho) in state["published"] or "f" in state["published"] or ("l" in state["published"] and rho < 6) or (rho == 6 and "9" in state["published"])
            assert ok, ("partial load not ordered after its check", x.tag, state)
    if cfg["p4"]:
        st2 = {"checked": set(), "published": set()}
        for x in seq:
            if x.cls == "label" and str(x.info).startswith("L_sp") and str(x.info).endswith("_ok"): st2["checked"].add(x.info[4:-3])
            elif x.cls == "barrier": st2["published"] |= st2["checked"]
            elif x.cls == "vmem" and isinstance(x.tag, tuple) and x.tag and x.tag[0] == "bl":
                hh = g.g_kstep(x.tag[1])[1]
                assert "b" in st2["published"], ("O load not ordered after its check", x.tag)
    res, errs, _, maxout = resolve_and_check(seq, "main")
    for e in errs[:30]: print("ERR", e, file=sys.stderr)
    assert not errs, len(errs)
    assert maxout <= 63, maxout
    final = []
    for w in seq:
        if isinstance(w, WaitTag):
            vals = [v for v in res[id(w)] if v is not None]
            vm, lgk = (min(vals) if vals else None), (w.lres if w.info[1] == "auto" else w.info[1])
            if vm is None and lgk is None:
                continue
            final.append(wait(vm, lgk))
        else:
            final.append(w)
    seq = final
    _, errs, _, _ = resolve_and_check(seq, "final")
    for e in errs[:30]: print("ERR", e, file=sys.stderr)
    assert not errs, len(errs)
    stubs = []
    for k, p in enumerate(g.rare_sites):
        stubs += [label(f"L_rs{k}"), I(f"s_call_b64 {rtxt(s_ret)}, L_rare{p}", "branch"), branch("s_branch", f"L_rr{k}")]
    rare = g.rare_code(0) + g.rare_code(1)
    return seq + fin + stubs + rare


SRD_DBG2 = SRD_DBG

MACROS = """.macro MF d,a,b,c
v_mfma_f32_16x16x32_bf16 \\d,\\a,\\b,\\c
.endm
.macro TR d,a,o
ds_read_b64_tr_b16 \\d,\\a offset:\\o
.endm
.macro RD d,a,o
ds_read_b128 \\d,\\a offset:\\o
.endm
"""


def compact(line):
    import re
    t = line.strip()
    if t.startswith("v_mfma_f32_16x16x32_bf16 "):
        return "MF " + t.split(" ", 1)[1].replace(", ", ",")
    m = re.match(r"ds_read_b64_tr_b16 (\S+), (\S+) offset:(\d+)$", t)
    if m: return f"TR {m.group(1)},{m.group(2)},{m.group(3)}"
    m = re.match(r"ds_read_b128 (\S+), (\S+) offset:(\d+)$", t)
    if m: return f"RD {m.group(1)},{m.group(2)},{m.group(3)}"
    return t.replace(", ", ",")


HEADER = """; Fused multi-head attention block for MI355X (gfx950); assembly produced by my own generator script.
"""


HEADER_P4 = """; Fused multi-head attention block for MI355X (gfx950); assembly produced by my own generator script.
; Hand-offs: write-through stores, a flag word per workgroup in d_ws (cleared at start, counted in d_debug), polled by one wave.
"""


def text_of(cfg, m, pad):
    kname = KNAME if cfg["single"] else "mha_main_kernel"
    lds = int(cfg["R"]) * SLOT
    s = (HEADER_P4 if cfg["p4"] else HEADER)
    if cfg["single"]:
        s += f"; @launch grid=(256,1,1) block=(256,1,1) lds={lds}\n"
    else:
        s += f"; @launch kernel=mha_main_kernel grid=(256,1,1) block=(256,1,1) lds={lds}\n"
        if not cfg["fused"]:
            s += "; @launch kernel=mha_reduce_kernel grid=(960,1,1) block=(256,1,1) lds=0\n"
    s += '.amdgcn_target "amdgcn-amd-amdhsa--gfx950"\n'
    if cfg["macros"]: s += MACROS
    s += ".text\n"
    ks = [(kname, m)]
    if not cfg["fused"]: ks.append(("mha_reduce_kernel", G.reducer_kernel(cfg)))
    for nm, code in ks:
        lines = []
        for i in code:
            for ln in i.txt.split("\n"):
                lines.append(compact(ln) if cfg["macros"] and i.cls != "label" else ln)
        s += f".globl {nm}\n.p2align 8\n.type {nm},@function\n" + "\n".join(lines).replace("mha_main_kernel:", kname + ":") + "\n"
    s += f".fill {pad}, 4, 0xBF800000\nL_text_end:\n"
    s += '.section .rodata,"a"\n.p2align 6\n' + kd(kname, 512, 256)
    if not cfg["fused"]: s += ".p2align 6\n" + kd("mha_reduce_kernel", 88, 88)
    return s


def assemble_syms(text):
    open("_g3.s", "w").write(text)
    r = subprocess.run(["clang", "-x", "assembler", "-target", "amdgcn-amd-amdhsa", "-mcpu=gfx950", "-c", "_g3.s", "-o", "_g3.o"],
                       capture_output=True, text=True)
    assert r.returncode == 0, r.stderr[:2000]
    sy = subprocess.run(["llvm-readelf", "-s", "_g3.o"], capture_output=True, text=True).stdout
    return {ln.split()[-1]: int(ln.split()[1], 16) for ln in sy.splitlines() if " L_" in ln and len(ln.split()) >= 8}


def build(cfg, path):
    import importlib
    cfg = dict(cfg)
    cfg["_code_steps"] = [-1] + [max(0, 21 * k - 10) for k in range(1, 8)]
    for it in range(2):
        G.code_pf.n = 0
        m = main_kernel(cfg)
        addr = assemble_syms(text_of(cfg, m, 64))
        base = addr["L_code"]
        end = addr["L_main_exit"] - base
        npiece = (end + 16383) // 16384
        steps = []
        for k in range(npiece):
            ns = 152 if cfg["p4"] else 144
            first = min([s for s in range(ns) if addr[f"L_st{s}"] - base + 1024 > 16384 * k] or [ns - 1])
            s_ = first - int(cfg["code_lead"])
            steps.append(-1 if s_ < 0 else s_)
        cfg["_code_steps"] = steps
    G.code_pf.n = 0
    m = main_kernel(cfg)
    addr = assemble_syms(text_of(cfg, m, 64))
    span = max(16384 * len(cfg["_code_steps"]), 131072)
    need = addr["L_code"] + span + 256 - addr["L_text_end"]
    pad = 64 + max(0, (need + 3) // 4)
    s = text_of(cfg, m, pad)
    open(path, "w").write(s)
    n_main = sum(1 for i in m if i.cls != "label")
    print(f"wrote {path}: {len(s)} bytes, {n_main} instrs, code {addr['L_main_exit'] - addr['L_code']} B, pad {pad}, code pf steps {cfg['_code_steps']}", file=sys.stderr)


if __name__ == "__main__":
    cfg = dict(CFG)
    path = "out3.s"
    for a in sys.argv[1:]:
        if "=" in a:
            k, v = a.split("=", 1)
            assert k in cfg, k
            cfg[k] = {"True": True, "False": False}.get(v, v)
        else:
            path = a
    build(cfg, path)
```
